```python
import torch

def _softmax(x, axis=-1):
    return torch.softmax(x, dim=axis)
def _gelu(x):
    return torch.nn.functional.gelu(x, approximate="tanh")
def _silu(x):
    return torch.nn.functional.silu(x)
def _sigmoid(x):
    return torch.sigmoid(x)
def _layernorm(x, axis=-1, eps=1e-5):
    m = x.mean(dim=axis, keepdim=True)
    v = x.var(dim=axis, keepdim=True, unbiased=False)
    return (x - m) / torch.sqrt(v + eps)
def _scatter_add(tgt, idx, src, axis=0):
    return tgt.clone().index_add_(axis, idx, src)
def _segment_sum(src, seg, n):
    out = torch.zeros((n,) + src.shape[1:], dtype=src.dtype)
    return out.index_add_(0, seg, src)
def _pad(x, pw):
    flat = tuple(v for pair in reversed(pw) for v in pair)
    return torch.nn.functional.pad(x, flat)

kernel_name = 'gather_scatter__mpnn_edge_mlp__graph'

def setup_inputs():

    _w = (lambda a: (lambda t: t.to(torch.bfloat16) if t.is_floating_point() else t)(torch.as_tensor(a)))
    N, deg, D, De = 10000, 16, 256, max(0, 1)
    E = N * deg
    return {
        "x": _w((lambda *s: torch.randn(*s, dtype=torch.bfloat16) * 0.05)(N, D)),
        "e_attr": _w((lambda *s: torch.randn(*s, dtype=torch.bfloat16) * 0.4)(E, De)),
        "src": _w((lambda lo, hi, *s: torch.randint(lo, hi, s))(0, N, E).to(torch.int64)),
        "dst": _w((lambda lo, hi, *s: torch.randint(lo, hi, s))(0, N, E).to(torch.int64)),
        "w_msg": _w((lambda *s: torch.randn(*s, dtype=torch.bfloat16) * 0.4)(2 * D + De, D)),
        "w_upd": _w((lambda *s: torch.randn(*s, dtype=torch.bfloat16) * 0.05)(2 * D, D)),
    }

def reference(x, e_attr, src, dst, w_msg, w_upd):
    N, D = x.shape
    m_in = torch.concatenate([x[src], x[dst], e_attr], axis=-1)
    msg = _silu(m_in @ w_msg)
    agg = _segment_sum(msg, dst, N)
    return _silu(torch.concatenate([x, agg], axis=-1) @ w_upd)
```

```python
import re

TRANS = ("v_exp_f32", "v_rcp_f32", "v_log_f32", "v_rsq_f32", "v_sqrt_f32")
REG_RE = re.compile(r"^(-|\|)?([vsa])(?:(\d+)|\[(\d+):(\d+)\])\|?$")


def regs_of(op):
    op = op.strip()
    if op == "vcc":
        return {("s", 106), ("s", 107)}
    if op == "exec":
        return {("s", 126), ("s", 127)}
    if op == "m0":
        return {("s", 124)}
    m = REG_RE.match(op)
    if not m:
        return set()
    f = m.group(2)
    if m.group(3) is not None:
        return {(f, int(m.group(3)))}
    return {(f, i) for i in range(int(m.group(4)), int(m.group(5)) + 1)}


class Ins:
    def __init__(self, text):
        self.text = text
        t = text.split(";")[0].strip()
        parts = t.split(None, 1)
        self.op = parts[0]
        rest = parts[1] if len(parts) > 1 else ""
        toks = [x.strip() for x in rest.split(",")]
        ops = []
        for tk in toks:
            if not tk:
                continue
            ops.append(tk.split()[0])
        self.ops = ops
        self.mods = rest
        op = self.op
        self.is_valu = op.startswith("v_")
        self.is_mfma = op.startswith("v_mfma")
        self.is_trans = any(op.startswith(x) for x in TRANS)
        self.is_dot = op.startswith("v_dot")
        self.is_dpp = "_dpp" in op
        self.is_vmem = op.startswith("buffer_") or op.startswith("global_")
        self.is_ds = op.startswith("ds_")
        self.is_salu = op.startswith("s_")
        self.is_lds_dma = self.is_vmem and re.search(r"\blds\b", rest) is not None
        self.dst = set()
        self.src = set()
        R = [regs_of(o) for o in ops]
        if self.is_valu:
            if op.startswith("v_cmp"):
                self.dst = R[0]
                for r in R[1:]:
                    self.src |= r
            elif op.startswith(("v_add_co", "v_sub_co", "v_addc_co", "v_subb_co")):
                self.dst = R[0] | R[1]
                for r in R[2:]:
                    self.src |= r
            elif op.startswith("v_permlane"):
                self.dst = R[0] | R[1]
                self.src = R[0] | R[1]
            else:
                self.dst = R[0]
                for r in R[1:]:
                    self.src |= r
                if op.startswith(("v_fmac", "v_writelane")) or self.is_dpp:
                    self.src |= R[0]
                if op.startswith("v_cndmask") and len(ops) == 3:
                    self.src |= regs_of("vcc")
        elif self.is_vmem:
            if "store" in op or self.is_lds_dma:
                for r in R:
                    self.src |= r
            else:
                self.dst = R[0]
                for r in R[1:]:
                    self.src |= r
        elif self.is_ds:
            if op.startswith(("ds_read", "ds_bpermute", "ds_permute")) or "_rtn" in op:
                self.dst = R[0]
                for r in R[1:]:
                    self.src |= r
            else:
                for r in R:
                    self.src |= r
        elif self.is_salu:
            if op.startswith(("s_cmp", "s_bitcmp", "s_cbranch", "s_branch", "s_waitcnt", "s_nop", "s_barrier", "s_endpgm", "s_sleep", "s_setprio")):
                for r in R:
                    self.src |= r
            elif R:
                self.dst = R[0]
                for r in R[1:]:
                    self.src |= r
                if "saveexec" in op:
                    self.dst |= regs_of("exec")
        self.states = 1
        if op == "s_nop":
            self.states = int(ops[0], 0) + 1

    def wide_store_data(self):
        if self.is_vmem and "store" in self.op and ("x4" in self.op or "x3" in self.op):
            return regs_of(self.ops[0])
        return set()


def need(prod, cons):
    n = 0
    vd = {r for r in prod.dst if r[0] == "v"}
    sd = {r for r in prod.dst if r[0] == "s"}
    if prod.is_valu and not prod.is_mfma:
        if sd:
            if cons.is_valu and (sd & cons.src):
                n = max(n, 4 if cons.op.startswith(("v_readlane", "v_writelane")) else 2)
            if cons.is_vmem and (sd & cons.src):
                n = max(n, 5)
        if vd & cons.src:
            if cons.op.startswith(("v_readlane", "v_readfirstlane")):
                n = max(n, 1)
            if cons.is_dpp or cons.op.startswith("v_permlane"):
                n = max(n, 2)
            if cons.is_mfma:
                n = max(n, 2)
            if prod.is_trans and cons.is_valu and not cons.is_trans:
                n = max(n, 1)
        if prod.is_dot and cons.op != prod.op and (vd & (cons.src | cons.dst)):
            n = max(n, 3)
    if prod.is_mfma:
        passes8 = "32x32" in prod.op
        if cons.is_mfma:
            c = regs_of(cons.ops[3]) if len(cons.ops) > 3 else set()
            ab = regs_of(cons.ops[1]) | regs_of(cons.ops[2])
            if vd & ab:
                n = max(n, 12 if passes8 else 8)
            if (vd & c) and vd != c:
                n = max(n, 10 if passes8 else 6)
        elif vd & (cons.src | cons.dst):
            n = max(n, 12 if passes8 else 8)
        c = regs_of(prod.ops[3]) if len(prod.ops) > 3 else set()
        if cons.is_valu and not cons.is_mfma and (c & cons.dst):
            n = max(n, 7 if passes8 else 3)
    if prod.is_salu and ("s", 124) in prod.dst and cons.is_lds_dma:
        n = max(n, 1)
    ws = prod.wide_store_data()
    if ws and (ws & cons.dst):
        n = max(n, 2)
    return n


class Asm:
    def __init__(self):
        self.lines = []
        self.hist = []
        self.nops = 0
        self.uid = 0

    def raw(self, s):
        self.lines.append(s)

    def comment(self, s):
        self.lines.append("    ; " + s)

    def label(self, name):
        self.lines.append(name + ":")

    def newlabel(self, base):
        self.uid += 1
        return "L_%s_%d" % (base, self.uid)

    def reset_hist(self):
        self.hist = []

    def __call__(self, text):
        for line in text.strip().split("\n"):
            line = line.strip()
            if not line:
                continue
            if line.endswith(":"):
                self.lines.append(line)
                continue
            if line.startswith(";"):
                self.lines.append("    " + line)
                continue
            ins = Ins(line)
            dist = 0
            pad = 0
            for p in reversed(self.hist):
                nn = need(p, ins)
                if nn > dist:
                    pad = max(pad, nn - dist)
                dist += p.states
                if dist >= 20:
                    break
            if pad:
                nop = Ins("s_nop %d" % (pad - 1))
                self.lines.append("    " + nop.text)
                self.hist.append(nop)
                self.nops += pad
            self.lines.append("    " + line)
            self.hist.append(ins)
            if len(self.hist) > 40:
                self.hist = self.hist[-30:]

    def text(self):
        return "\n".join(self.lines) + "\n"
```

```python
import sys
import struct
from asmlib import Asm

NAME = "gather_scatter__mpnn_edge_mlp__graph"
N, E, D = 10000, 160000, 256
T, NT, EC = 40, 250, 640

S0, S1, S2, S3 = 0, 32768, 65536, 98304
XB = 131072
HIST, BASE, SORT, USC = 151552, 152576, 153600, 158720
CNTN, MISC = 160768, 161024
IL, EL, DL = 151552, 153664, 157824
QB, QS = 0, 1040
AB = 41984
RING = 65536
PS = 65536
LDS_TOTAL = 163840

W_EPOCH, W_FA, W_FB = 0, 0x1000, 0x3000
W_OFFS, W_RECS, W_UT, W_P = 0x10000, 0x50000, 0x190000, 0x200000
W_STAMP = 0x800000
WS_SIZE = 0x900000
OOB = 0x80000000
POLL_LIMIT = 200000


def f2u(x):
    return struct.unpack("<I", struct.pack("<f", x))[0]


NLOG2E = f2u(-1.4426950408889634)
NLN2 = f2u(-0.6931471805599453)
BIG = f2u(2.0 ** 120)


def vr(a, n=1):
    return "v%d" % a if n == 1 else "v[%d:%d]" % (a, a + n - 1)


def sr(a, n=1):
    return "s%d" % a if n == 1 else "s[%d:%d]" % (a, a + n - 1)


TID, LANE = 0, 1
XA = 2
STG, GO, GO2, STR = 6, 7, 8, 9
TR0, TR1 = 10, 11
RBA, CQ = 10, 11
ACC = 12
UF = 24
XF, WF = 56, 80
WOFF, OFFV = 88, 89
TAG, FA, FB, POA, POB, POLLD = 90, 92, 93, 94, 95, 96
REC, RANK, DL4, SC = 104, 110, 113, 116
STAMPV = 123
W3 = 124
PA = (56, 64)
EE = (72, 74)
IA, Q, QE, Y, TT, NN, DD = 76, 78, 86, 90, 94, 98, 102
CK2, CK1, RG, IXA, EA, QA, AG, L4, L8, INFO, TM = 106, 108, 109, 110, 111, 112, 113, 114, 115, 116, 117

sT, sW = 2, 3
sX, sWM, sWU, sWS, sP, sOUT, sSRC, sDST, sEA = 4, 8, 12, 16, 20, 24, 28, 32, 36
sNL2E, sNLN2, s4096 = 58, 60, 62
sMASK, sI, sNE, sREM, sTRIP, sSLOT = 64, 66, 67, 68, 69, 70
sM, sP0, sNP, sMAXC, sFIRST, sMODE = 74, 75, 76, 77, 78, 79
sVAL = 80
sA, sB, sC, sD = 86, 87, 88, 89
sEX = 90


class Gen:
    def __init__(self, stamps=False, stop=None):
        self.a = Asm()
        self.stamps = stamps
        self.stop = stop
        self.nstamp = 0
        self.tail = []

    def stamp(self):
        if not self.stamps:
            return
        k = self.nstamp
        self.nstamp += 1
        self.a(f"""
        s_memrealtime s[92:93]
        s_waitcnt lgkmcnt(0)
        v_writelane_b32 v{STAMPV}, s92, {k}
        """)

    def barrier(self, vm=None, lgkm=True):
        w = []
        if vm is not None:
            w.append(f"vmcnt({vm})")
        if lgkm:
            w.append("lgkmcnt(0)")
        if w:
            self.a("s_waitcnt " + " ".join(w))
        self.a("s_barrier")
        self.stamp()

    def dma_w(self, c, slot, mat_off):
        a = self.a
        for mm in range(2):
            a(f"""
            s_add_u32 m0, s{sA}, {slot + mm * 16384}
            s_mov_b32 s{sB}, {mat_off + (2 * c + mm) * 16384}
            buffer_load_dwordx4 v{WOFF}, {sr(sWM, 4)}, s{sB} offen lds
            """)

    def xreads(self, c):
        a = self.a
        for sp in range(2):
            s = 2 * c + sp
            for rb in range(3):
                a(f"ds_read_b128 {vr(XF + 12 * sp + 4 * rb, 4)}, v{XA + (s & 3)} offset:{rb * 8192 + (s >> 2) * 256}")

    def trreads(self, slot):
        a = self.a
        tr = TR0 if slot < 65536 else TR1
        for sp in range(2):
            for p in range(2):
                a(f"ds_read_b64_tr_b16 {vr(WF + 4 * sp + 2 * p, 2)}, v{tr} offset:{(slot & 65535) + 16384 * sp + 2048 * p}")

    def mfmas(self, first):
        a = self.a
        for sp in range(2):
            a(f"s_waitcnt lgkmcnt({2 - 2 * sp})")
            for rb in range(3):
                c = "0" if (first and sp == 0) else vr(ACC + 4 * rb, 4)
                a(f"v_mfma_f32_16x16x32_bf16 {vr(ACC + 4 * rb, 4)}, {vr(WF + 4 * sp, 4)}, {vr(XF + 12 * sp + 4 * rb, 4)}, {c}")

    def gemm_regA(self, depth, first):
        a = self.a

        def rd(s):
            for rb in range(3):
                a(f"ds_read_b128 {vr(XF + 12 * (s % depth) + 4 * rb, 4)}, v{XA + (s & 3)} offset:{rb * 8192 + (s >> 2) * 256}")

        for s in range(depth):
            rd(s)
        for s in range(8):
            ahead = min(depth - 1, 7 - s)
            a(f"s_waitcnt lgkmcnt({3 * ahead})")
            for rb in range(3):
                c = "0" if (first and s == 0) else vr(ACC + 4 * rb, 4)
                a(f"v_mfma_f32_16x16x32_bf16 {vr(ACC + 4 * rb, 4)}, {vr(UF + 4 * s, 4)}, {vr(XF + 12 * (s % depth) + 4 * rb, 4)}, {c}")
            if s + depth < 8:
                rd(s + depth)

    def scan(self, v, tmp):
        a = self.a
        for sh in (1, 2, 4, 8):
            a(f"v_add_u32_dpp v{v}, v{v}, v{v} row_shr:{sh} row_mask:0xf bank_mask:0xf bound_ctrl:0")
        a(f"v_add_u32_dpp v{v}, v{v}, v{v} row_bcast:15 row_mask:0xa bank_mask:0xf")
        a(f"v_add_u32_dpp v{v}, v{v}, v{v} row_bcast:31 row_mask:0xc bank_mask:0xf")

    def poll_issue(self, addr):
        a = self.a
        a(f"""
        buffer_load_dwordx2 {vr(POLLD, 2)}, v{addr}, {sr(sWS, 4)}, 0 offen sc1
        buffer_load_dwordx2 {vr(POLLD + 2, 2)}, v{addr}, {sr(sWS, 4)}, 0 offen offset:2048 sc1
        buffer_load_dwordx2 {vr(POLLD + 4, 2)}, v{addr}, {sr(sWS, 4)}, s{s4096} offen sc1
        buffer_load_dwordx2 {vr(POLLD + 6, 2)}, v{addr}, {sr(sWS, 4)}, s{s4096} offen offset:2048 sc1
        """)

    def poll_wait(self, addr, issued):
        a = self.a
        lp, chk, done = a.newlabel("poll"), a.newlabel("pchk"), a.newlabel("pdone")
        a(f"s_mov_b32 s{sC}, 0")
        if issued:
            a(f"s_branch {chk}")
        a.label(lp)
        self.poll_issue(addr)
        a.label(chk)
        m58 = (1 << (NT - 192)) - 1
        a(f"""
        s_waitcnt vmcnt(0)
        v_cmp_ne_u64 s[40:41], {vr(POLLD, 2)}, {vr(TAG, 2)}
        v_cmp_ne_u64 s[42:43], {vr(POLLD + 2, 2)}, {vr(TAG, 2)}
        v_cmp_ne_u64 s[44:45], {vr(POLLD + 4, 2)}, {vr(TAG, 2)}
        v_cmp_ne_u64 s[46:47], {vr(POLLD + 6, 2)}, {vr(TAG, 2)}
        s_nop 1
        s_and_b32 s47, s47, {m58 >> 32}
        s_or_b64 s[40:41], s[40:41], s[42:43]
        s_or_b64 s[44:45], s[44:45], s[46:47]
        s_or_b64 s[40:41], s[40:41], s[44:45]
        s_cbranch_scc0 {done}
        s_add_u32 s{sC}, s{sC}, 1
        s_cmp_lt_u32 s{sC}, {POLL_LIMIT}
        s_cbranch_scc1 {lp}
        """)
        a.label(done)

    def edge(self, pb, which, exact, first):
        a = self.a
        p = PA[pb] + 4 * which
        sel = "op_sel:[1,0,0] op_sel_hi:[1,1,1]" if which else "op_sel:[0,0,0] op_sel_hi:[0,1,1]"
        y = NN if (first and not exact) else Y
        for h in range(2):
            a(f"v_pk_fma_f32 {vr(QE + 2 * h, 2)}, {vr(EE[pb], 2)}, {vr(W3 + 2 * h, 2)}, {vr(Q + 2 * h, 2)} {sel}")
        for h in range(2):
            a(f"v_pk_add_f32 {vr(y + 2 * h, 2)}, {vr(p + 2 * h, 2)}, {vr(QE + 2 * h, 2)}")
        for r in range(4):
            a(f"v_exp_f32 v{TT + r}, v{y + r}")
        if exact:
            for h in range(2):
                a(f"v_pk_add_f32 {vr(TT + 2 * h, 2)}, {vr(TT + 2 * h, 2)}, 1.0 op_sel_hi:[1,0]")
            for r in range(4):
                a(f"v_rcp_f32 v{TT + r}, v{TT + r}")
            for h in range(2):
                if first:
                    a(f"v_pk_mul_f32 {vr(NN + 2 * h, 2)}, {vr(Y + 2 * h, 2)}, {vr(TT + 2 * h, 2)}")
                else:
                    a(f"v_pk_fma_f32 {vr(NN + 2 * h, 2)}, {vr(Y + 2 * h, 2)}, {vr(TT + 2 * h, 2)}, {vr(NN + 2 * h, 2)}")
        elif first:
            for h in range(2):
                a(f"v_pk_add_f32 {vr(DD + 2 * h, 2)}, {vr(TT + 2 * h, 2)}, 1.0 op_sel_hi:[1,0]")
        else:
            for h in range(2):
                a(f"v_pk_fma_f32 {vr(NN + 2 * h, 2)}, {vr(NN + 2 * h, 2)}, {vr(TT + 2 * h, 2)}, {vr(NN + 2 * h, 2)}")
            for h in range(2):
                a(f"v_pk_fma_f32 {vr(NN + 2 * h, 2)}, {vr(Y + 2 * h, 2)}, {vr(DD + 2 * h, 2)}, {vr(NN + 2 * h, 2)}")
            for h in range(2):
                a(f"v_pk_fma_f32 {vr(DD + 2 * h, 2)}, {vr(DD + 2 * h, 2)}, {vr(TT + 2 * h, 2)}, {vr(DD + 2 * h, 2)}")

    def flush_math(self, exact, mid=None):
        a = self.a
        if exact:
            if mid:
                a("s_nop 3")
                mid()
            src = NN
        else:
            for r in range(4):
                a(f"v_rcp_f32 v{TT + r}, v{DD + r}")
            if mid:
                mid()
            a(f"v_max3_f32 v{CK1}, v{CK1}, v{DD}, v{DD + 1}")
            a(f"v_max3_f32 v{CK1}, v{CK1}, v{DD + 2}, v{DD + 3}")
            for h in range(2):
                a(f"v_pk_mul_f32 {vr(Y + 2 * h, 2)}, {vr(NN + 2 * h, 2)}, {vr(TT + 2 * h, 2)}")
            for h in range(2):
                a(f"v_pk_fma_f32 {vr(CK2, 2)}, {vr(Y + 2 * h, 2)}, 0, {vr(CK2, 2)} op_sel_hi:[1,0,1]")
            src = Y
        a(f"v_cvt_pk_bf16_f32 v{TT}, v{src}, v{src + 1}")
        a(f"v_cvt_pk_bf16_f32 v{TT + 1}, v{src + 2}, v{src + 3}")
        a(f"ds_pk_add_bf16 v{AG}, v{TT}")
        a(f"ds_pk_add_bf16 v{AG}, v{TT + 1} offset:4")

    def p_reads(self, pb, slot):
        a = self.a
        for row in range(2):
            for r in range(4):
                a(f"ds_read_u16_d16_hi v{PA[pb] + 4 * row + r}, v{RG} offset:{slot * 1024 + row * 512 + r * 128}")

    def gather(self, slot):
        a = self.a
        a(f"""
        s_mov_b32 m0, s{sSLOT + slot}
        s_cmp_gt_i32 s{sREM}, 0
        s_cselect_b32 s{sP + 2}, {N}, 0
        s_sub_u32 s{sREM}, s{sREM}, 1
        buffer_load_dwordx4 {vr(IA, 2)}, {sr(sP, 4)}, 0 idxen offen sc1 lds
        """)

    def main_loop(self, exact, exit_label):
        a = self.a
        tag = "x" if exact else "f"
        loop = f"L_loop_{tag}"
        blocks = []
        a.label(loop)
        for jj in range(4):
            pb = jj & 1
            w3l = a.newlabel("w3")
            a(f"""
            s_waitcnt vmcnt(11)
            s_cmp_eq_u32 s{sTRIP}, 0
            s_cbranch_scc1 {w3l}
            s_waitcnt vmcnt(3)
            """)
            a.label(w3l)
            self.p_reads(pb ^ 1, (jj + 1) & 3)
            a(f"ds_read_b64 {vr(EE[pb ^ 1], 2)}, v{EA} offset:{8 * (jj + 1)}")
            a(f"ds_read_u16 v{IA}, v{IXA} offset:{4 * (jj + 5)}")
            for which in range(2):
                blk, back = f"L_blk_{tag}_{jj}_{which}", f"L_back_{tag}_{jj}_{which}"
                if which == 0:
                    a(f"s_bitcmp1_b32 s{sMASK}, 1")
                    a(f"s_cbranch_scc1 {blk}")
                    self.edge(pb, 0, exact, False)
                    a.label(back)
                    a(f"s_lshr_b64 {sr(sMASK, 2)}, {sr(sMASK, 2)}, 2")
                    if jj == 0:
                        a.label(f"L_post_{tag}")
                else:
                    a(f"s_bitcmp1_b32 s{sMASK}, 0")
                    a(f"s_cbranch_scc1 {blk}")
                    self.edge(pb, 1, exact, False)
                    a.label(back)
                blocks.append((blk, back, pb, which))
            a("s_waitcnt lgkmcnt(0)")
            self.gather((jj + 1) & 3)
            a(f"s_add_u32 s{sI}, s{sI}, 2")
        a(f"""
        v_add_u32 v{IXA}, 16, v{IXA}
        v_add_u32 v{EA}, 32, v{EA}
        s_mov_b32 s{sTRIP}, 1
        s_branch {loop}
        """)
        fin = f"L_fin_{tag}"
        for blk, back, pb, which in blocks:
            a.reset_hist()
            a.label(blk)
            a(f"""
            s_add_u32 s{sA}, s{sI}, {which}
            s_cmp_eq_u32 s{sA}, s{sNE}
            s_cbranch_scc1 {fin}
            v_readlane_b32 s{sB}, v{INFO}, s{sA}
            """)

            def mid():
                a(f"""
                s_and_b32 s{sC}, s{sB}, 0xffff
                s_lshr_b32 s{sD}, s{sB}, 16
                v_add_u32 v{QA}, s{sC}, v{L4}
                ds_read2st64_b32 {vr(Q, 2)}, v{QA} offset0:0 offset1:1
                ds_read2st64_b32 {vr(Q + 2, 2)}, v{QA} offset0:2 offset1:3
                """)

            self.flush_math(exact, mid)
            a(f"""
            v_xor_b32 v{AG}, s{sD}, v{L8}
            s_waitcnt lgkmcnt(2)
            """)
            self.edge(pb, which, exact, True)
            a(f"s_branch {back}")
        a.reset_hist()
        a.label(fin)
        self.flush_math(exact)
        a(f"s_branch {exit_label}")

    def build(self):
        a = self.a
        t0, t1, t2, t3, t4, t5, t6, t7 = range(24, 32)
        DST, SRC, EV, TILE, RK = 32, 33, 34, 35, 36
        H0 = 40
        B0 = 44
        SQ = 48
        SO = 52
        PQ = 24

        a(f"""
        s_cmp_ge_u32 s{sT}, {NT}
        s_cbranch_scc1 L_end
        s_load_dwordx16 s[40:55], s[0:1], 0
        s_load_dwordx2 s[56:57], s[0:1], 64
        v_and_b32 v{LANE}, 63, v{TID}
        v_lshrrev_b32 v{t0}, 6, v{TID}
        s_mul_i32 s{sA}, s{sT}, {EC * 4}
        v_readfirstlane_b32 s{sW}, v{t0}
        v_lshl_add_u32 v{t1}, v{TID}, 2, s{sA}
        v_lshrrev_b32 v{t2}, 1, v{t1}
        v_lshrrev_b32 v{t3}, 5, v{TID}
        v_and_b32 v{t4}, 31, v{TID}
        v_and_b32 v{t5}, 15, v{t3}
        v_xor_b32 v{t5}, v{t5}, v{t4}
        v_lshlrev_b32 v{t5}, 4, v{t5}
        s_mul_i32 s{sB}, s{sT}, {T * 512}
        v_lshl_add_u32 v{t5}, v{t3}, 9, v{t5}
        v_add_u32 v{GO}, s{sB}, v{t5}
        v_mov_b32 v{EV}, 0
        """)
        if self.stamps:
            a(f"v_mov_b32 v{STAMPV}, 0")
        a(f"""
        v_and_b32 v{t6}, 3, v{t3}
        v_lshrrev_b32 v{t7}, 1, v{t3}
        v_and_b32 v{t7}, 4, v{t7}
        v_or_b32 v{t6}, v{t6}, v{t7}
        v_lshlrev_b32 v{t6}, 1, v{t6}
        v_xor_b32 v{t6}, v{t6}, v{t4}
        v_lshlrev_b32 v{t6}, 4, v{t6}
        v_lshl_add_u32 v{WOFF}, v{t3}, 9, v{t6}
        s_waitcnt lgkmcnt(0)
        """)

        def srd(s, p, nbytes):
            a(f"""
            s_mov_b32 s{s}, s{p}
            s_mov_b32 s{s + 1}, s{p + 1}
            s_mov_b32 s{s + 2}, {nbytes}
            s_mov_b32 s{s + 3}, 0x20000
            """)

        srd(sDST, 46, E * 4)
        srd(sSRC, 44, E * 4)
        srd(sEA, 42, E * 2)
        srd(sX, 40, N * 512)
        srd(sWM, 48, 513 * 512)
        srd(sWU, 50, 512 * 512)
        srd(sWS, 56, WS_SIZE)
        self.stamp()
        a(f"""
        s_cmp_ge_u32 s{sW}, 10
        s_cbranch_scc1 L_role_hi
        buffer_load_dword v{DST}, v{t1}, {sr(sDST, 4)}, 0 offen
        buffer_load_dword v{SRC}, v{t1}, {sr(sSRC, 4)}, 0 offen
        buffer_load_short_d16_hi v{EV}, v{t2}, {sr(sEA, 4)}, 0 offen
        s_branch L_role_done
        L_role_hi:
        s_cmp_eq_u32 s{sW}, 15
        s_cbranch_scc0 L_role_u
        v_mov_b32 v{t6}, {W_EPOCH}
        buffer_load_dwordx2 {vr(TAG, 2)}, v{t6}, {sr(sWS, 4)}, 0 offen sc1
        s_branch L_role_done
        L_role_u:
        s_cmp_gt_u32 s{sW}, 11
        s_cbranch_scc1 L_role_done
        s_sub_u32 s{sC}, s{sW}, 10
        s_mul_i32 s{sD}, s{sC}, {NT}
        s_add_u32 s{sD}, s{sD}, s{sT}
        s_cmp_ge_u32 s{sD}, 256
        s_cbranch_scc1 L_role_done
        s_lshl_b32 s{sC}, s{sC}, 10
        s_add_u32 m0, s{sC}, {USC}
        s_and_b32 s40, s{sD}, 7
        s_lshl_b32 s40, s40, 5
        s_lshr_b32 s41, s{sD}, 3
        s_and_b32 s41, s41, 15
        s_lshl_b32 s41, s41, 5
        v_lshrrev_b32 v{t6}, 1, v{LANE}
        v_add_u32 v{t6}, s40, v{t6}
        s_cmp_lt_u32 s{sD}, 128
        s_cbranch_scc1 L_role_u1
        v_and_b32 v{t7}, 3, v{t6}
        v_lshrrev_b32 v{t6}, 2, v{t6}
        v_lshl_add_u32 v{t6}, v{t7}, 6, v{t6}
        v_add_u32 v{t6}, 256, v{t6}
        L_role_u1:
        v_and_b32 v{t7}, 1, v{LANE}
        v_lshlrev_b32 v{t7}, 4, v{t7}
        v_lshl_add_u32 v{t6}, v{t6}, 9, v{t7}
        buffer_load_dwordx4 v{t6}, {sr(sWU, 4)}, s41 offen lds
        L_role_done:
        """)
        a(f"""
        s_lshl_b32 s{sA}, s{sW}, 10
        s_cmp_lt_u32 s{sW}, 12
        s_cbranch_scc1 L_x1
        s_add_u32 m0, s{sA}, {XB + 4096}
        v_xor_b32 v{t6}, 0x80, v{GO}
        s_mov_b32 s{sB}, 4096
        buffer_load_dwordx4 v{t6}, {sr(sX, 4)}, s{sB} offen lds
        L_x1:
        s_add_u32 m0, s{sA}, {XB}
        s_nop 0
        buffer_load_dwordx4 v{GO}, {sr(sX, 4)}, 0 offen lds
        """)
        for c, slot in enumerate((S0, S1, S2, S3)):
            self.dma_w(c, slot, 0)
        srd(sOUT, 52, N * 512)
        a(f"""
        s_add_u32 s{sP}, s56, {W_P}
        s_addc_u32 s{sP + 1}, s57, 0
        s_or_b32 s{sP + 1}, s{sP + 1}, {512 << 16}
        s_mov_b32 s{sP + 2}, {N}
        s_mov_b32 s{sP + 3}, 0x20000
        s_mov_b32 s{sNL2E}, {NLOG2E}
        s_mov_b32 s{sNL2E + 1}, {NLOG2E}
        s_mov_b32 s{sNLN2}, {NLN2}
        s_mov_b32 s{sNLN2 + 1}, {NLN2}
        s_mov_b32 s{s4096}, 4096
        """)
        a(f"""
        v_mov_b32 v{t6}, 0
        v_lshlrev_b32 v{t7}, 2, v{TID}
        v_add_u32 v{t7}, {HIST}, v{t7}
        s_cmp_lt_u32 s{sW}, 4
        s_cbranch_scc1 L_z1
        s_cmp_gt_u32 s{sW}, 5
        s_cbranch_scc1 L_z2
        v_add_u32 v{t7}, {CNTN - HIST - 1024}, v{t7}
        L_z1:
        ds_write_b32 v{t7}, v{t6}
        L_z2:
        """)
        a(f"""
        v_and_b32 v{t0}, 15, v{LANE}
        v_lshrrev_b32 v{t1}, 4, v{LANE}
        v_bfe_u32 v{t2}, v{LANE}, 2, 2
        v_and_b32 v{t3}, 3, v{LANE}
        s_lshl_b32 s{sB}, s{sW}, 1
        v_and_b32 v{t4}, 1, v{t1}
        v_lshl_or_b32 v{t4}, v{t4}, 2, v{t2}
        v_lshlrev_b32 v{t4}, 1, v{t4}
        v_lshrrev_b32 v{t5}, 1, v{t3}
        v_add_u32 v{t5}, s{sB}, v{t5}
        v_xor_b32 v{t4}, v{t4}, v{t5}
        v_lshlrev_b32 v{t4}, 4, v{t4}
        v_and_b32 v{t5}, 1, v{t3}
        v_lshl_add_u32 v{t4}, v{t5}, 3, v{t4}
        v_lshl_add_u32 v{t5}, v{t1}, 3, v{t2}
        v_lshl_add_u32 v{TR0}, v{t5}, 9, v{t4}
        v_add_u32 v{TR1}, 65536, v{TR0}
        v_lshlrev_b32 v{t5}, 9, v{t0}
        v_add_u32 v{t5}, {XB}, v{t5}
        """)
        for k in range(4):
            a(f"""
            v_add_u32 v{t4}, {4 * k}, v{t1}
            v_xor_b32 v{t4}, v{t4}, v{t0}
            v_lshl_add_u32 v{XA + k}, v{t4}, 4, v{t5}
            """)
        a(f"""
        v_lshrrev_b32 v{t4}, 1, v{t1}
        v_add_u32 v{t4}, s{sB}, v{t4}
        v_xor_b32 v{t4}, v{t4}, v{t0}
        v_lshlrev_b32 v{t4}, 4, v{t4}
        v_and_b32 v{t6}, 1, v{t1}
        v_lshl_add_u32 v{t4}, v{t6}, 3, v{t4}
        v_lshl_add_u32 v{t4}, v{t0}, 9, v{t4}
        v_add_u32 v{STG}, {PS}, v{t4}
        v_lshlrev_b32 v{STR}, 4, v{TID}
        v_add_u32 v{STR}, {PS}, v{STR}
        v_add_u32 v{GO2}, 16384, v{GO}
        v_mov_b32 v{SO}, {OOB}
        s_cmp_lt_u32 s{sW}, 4
        s_cbranch_scc1 L_go2
        v_mov_b32 v{GO2}, {OOB}
        L_go2:
        """)
        a(f"""
        s_lshl_b32 s{sB}, s{sT}, 5
        v_mov_b32 v{t5}, {OOB}
        v_cmp_eq_u32 vcc, 0, v{LANE}
        s_add_u32 s{sB}, s{sB}, {W_FA}
        v_mov_b32 v{t6}, s{sB}
        v_cndmask_b32 v{FA}, v{t5}, v{t6}, vcc
        v_add_u32 v{t6}, {W_FB - W_FA}, v{t6}
        v_cndmask_b32 v{FB}, v{t5}, v{t6}, vcc
        v_lshlrev_b32 v{POA}, 5, v{LANE}
        v_add_u32 v{POB}, {W_FB}, v{POA}
        v_add_u32 v{POA}, {W_FA}, v{POA}
        """)
        self.barrier()
        a(f"""
        s_cmp_ge_u32 s{sW}, 10
        s_cbranch_scc1 L_h_done
        s_waitcnt vmcnt(9)
        v_mul_u32_u24 v{TILE}, 52429, v{DST}
        v_lshrrev_b32 v{TILE}, 21, v{TILE}
        v_min_u32 v{TILE}, 255, v{TILE}
        v_mul_u32_u24 v{t4}, {T}, v{TILE}
        v_sub_u32 v{t4}, v{DST}, v{t4}
        v_and_b32 v{t4}, 63, v{t4}
        v_and_b32 v{SRC}, 0xffff, v{SRC}
        v_lshl_or_b32 v{SRC}, v{t4}, 16, v{SRC}
        v_lshlrev_b32 v{TILE}, 2, v{TILE}
        v_add_u32 v{t5}, {HIST}, v{TILE}
        v_mov_b32 v{t6}, 1
        ds_add_rtn_u32 v{RK}, v{t5}, v{t6}
        L_h_done:
        """)
        self.barrier(vm=8)
        self.xreads(0)
        a(f"""
        s_cmp_ge_u32 s{sW}, 10
        s_cbranch_scc1 L_s_hi
        v_lshlrev_b32 v{t5}, 4, v{LANE}
        v_add_u32 v{t6}, {HIST}, v{t5}
        ds_read_b128 {vr(H0, 4)}, v{t6}
        s_waitcnt lgkmcnt(0)
        v_add_u32 v{B0 + 1}, v{H0}, v{H0 + 1}
        v_add_u32 v{t7}, v{H0 + 2}, v{H0 + 3}
        v_add_u32 v{t7}, v{t7}, v{B0 + 1}
        v_mov_b32 v{t4}, v{t7}
        """)
        self.scan(t4, None)
        a(f"""
        v_sub_u32 v{B0}, v{t4}, v{t7}
        v_add_u32 v{B0 + 2}, v{B0}, v{B0 + 1}
        v_add_u32 v{B0 + 1}, v{B0}, v{H0}
        v_add_u32 v{B0 + 3}, v{B0 + 2}, v{H0 + 2}
        ds_write_b128 v{t6}, {vr(B0, 4)} offset:{BASE - HIST}
        v_add_u32 v{t4}, {BASE}, v{TILE}
        s_waitcnt lgkmcnt(0)
        ds_read_b32 v{t4}, v{t4}
        v_lshl_or_b32 v{SQ}, v{H0}, 16, v{B0}
        v_lshl_or_b32 v{SQ + 1}, v{H0 + 1}, 16, v{B0 + 1}
        v_lshl_or_b32 v{SQ + 2}, v{H0 + 2}, 16, v{B0 + 2}
        v_lshl_or_b32 v{SQ + 3}, v{H0 + 3}, 16, v{B0 + 3}
        s_lshl_b32 s{sB}, s{sT}, 10
        s_add_u32 s{sB}, s{sB}, {W_OFFS}
        s_waitcnt lgkmcnt(0)
        v_add_u32 v{t4}, v{t4}, v{RK}
        v_lshlrev_b32 v{t4}, 3, v{t4}
        v_add_u32 v{t4}, {SORT}, v{t4}
        v_mov_b32 v{DST}, v{SRC}
        v_mov_b32 v{SRC}, v{EV}
        ds_write_b64 v{t4}, {vr(DST, 2)}
        s_cmp_eq_u32 s{sW}, 5
        s_cbranch_scc0 L_s_done
        v_add_u32 v{SO}, s{sB}, v{t5}
        s_branch L_s_done
        L_s_hi:
        s_cmp_eq_u32 s{sW}, 15
        s_cbranch_scc0 L_s_u
        v_add_co_u32 v{TAG}, vcc, 1, v{TAG}
        v_addc_co_u32 v{TAG + 1}, vcc, 0, v{TAG + 1}, vcc
        s_branch L_s_done
        L_s_u:
        s_cmp_gt_u32 s{sW}, 11
        s_cbranch_scc1 L_s_done
        s_sub_u32 s{sC}, s{sW}, 10
        s_mul_i32 s{sD}, s{sC}, {NT}
        s_add_u32 s{sD}, s{sD}, s{sT}
        s_cmp_ge_u32 s{sD}, 256
        s_cbranch_scc1 L_s_done
        s_lshl_b32 s{sC}, s{sC}, 10
        s_add_u32 s{sC}, s{sC}, {USC}
        v_lshl_add_u32 v{t5}, v{t1}, 3, v{t2}
        v_lshlrev_b32 v{t5}, 5, v{t5}
        v_lshl_add_u32 v{t5}, v{t3}, 3, v{t5}
        v_add_u32 v{t5}, s{sC}, v{t5}
        ds_read_b64_tr_b16 {vr(SQ, 2)}, v{t5}
        ds_read_b64_tr_b16 {vr(SQ + 2, 2)}, v{t5} offset:128
        s_lshl_b32 s{sD}, s{sD}, 10
        s_add_u32 s{sD}, s{sD}, {W_UT}
        v_lshlrev_b32 v{t6}, 4, v{LANE}
        v_add_u32 v{SO}, s{sD}, v{t6}
        L_s_done:
        """)
        self.barrier(vm=6)
        a(f"""
        s_lshl_b32 s{sA}, s{sW}, 10
        s_cmp_ge_u32 s{sW}, 5
        s_cbranch_scc1 L_b_st
        v_lshlrev_b32 v{t5}, 4, v{TID}
        v_add_u32 v{t6}, {SORT}, v{t5}
        ds_read_b128 {vr(SQ, 4)}, v{t6}
        s_mul_i32 s{sB}, s{sT}, {EC * 8}
        s_add_u32 s{sB}, s{sB}, {W_RECS}
        v_add_u32 v{SO}, s{sB}, v{t5}
        L_b_st:
        """)
        self.trreads(S0)
        a(f"""
        s_waitcnt lgkmcnt(4)
        buffer_store_dwordx4 {vr(SQ, 4)}, v{SO}, {sr(sWS, 4)}, 0 offen sc1
        """)
        self.mfmas(True)
        self.xreads(1)
        self.barrier(vm=5, lgkm=False)
        self.dma_w(0, S0, 131072)
        self.trreads(S1)
        self.mfmas(False)
        self.xreads(2)
        self.barrier(vm=5, lgkm=False)
        self.dma_w(1, S1, 131072)
        self.trreads(S2)
        self.mfmas(False)
        self.xreads(3)
        self.barrier(vm=4, lgkm=False)
        a(f"""
        s_cmp_eq_u32 s{sW}, 15
        s_cbranch_scc0 L_fa_done
        buffer_store_dwordx2 {vr(TAG, 2)}, v{FA}, {sr(sWS, 4)}, 0 offen sc1
        L_fa_done:
        """)
        self.trreads(S3)
        self.mfmas(False)
        for rb in range(3):
            for h in range(2):
                a(f"v_pk_mul_f32 {vr(ACC + 4 * rb + 2 * h, 2)}, {vr(ACC + 4 * rb + 2 * h, 2)}, {sr(sNL2E, 2)} op_sel_hi:[1,0]")
            a(f"v_cvt_pk_bf16_f32 v{PQ + 2 * rb}, v{ACC + 4 * rb}, v{ACC + 4 * rb + 1}")
            a(f"v_cvt_pk_bf16_f32 v{PQ + 2 * rb + 1}, v{ACC + 4 * rb + 2}, v{ACC + 4 * rb + 3}")
            a(f"ds_write_b64 v{STG}, {vr(PQ + 2 * rb, 2)} offset:{rb * 8192}")
        self.barrier()
        a(f"""
        ds_read_b128 {vr(PQ, 4)}, v{STR}
        ds_read_b128 {vr(PQ + 4, 4)}, v{STR} offset:16384
        """)
        self.dma_w(2, S3, 131072)
        self.xreads(0)
        a(f"""
        s_mov_b32 s{sB}, {W_P}
        s_waitcnt lgkmcnt(7)
        buffer_store_dwordx4 {vr(PQ, 4)}, v{GO}, {sr(sWS, 4)}, s{sB} offen sc1
        s_waitcnt lgkmcnt(6)
        buffer_store_dwordx4 {vr(PQ + 4, 4)}, v{GO2}, {sr(sWS, 4)}, s{sB} offen sc1
        """)
        self.barrier(vm=6, lgkm=False)
        self.dma_w(3, S2, 131072)
        self.trreads(S0)
        self.mfmas(True)
        self.xreads(1)
        self.barrier(vm=6, lgkm=False)
        self.trreads(S1)
        self.mfmas(False)
        self.xreads(2)
        self.barrier(vm=4, lgkm=False)
        a(f"""
        s_cmp_eq_u32 s{sW}, 15
        s_cbranch_scc0 L_pa0
        """)
        self.poll_issue(POA)
        a.label("L_pa0")
        self.trreads(S3)
        self.mfmas(False)
        self.xreads(3)
        a(f"""
        s_cmp_eq_u32 s{sW}, 15
        s_cbranch_scc0 L_pa1
        """)
        self.poll_wait(POA, True)
        a.label("L_pa1")
        self.barrier(vm=0, lgkm=False)
        a(f"""
        s_cmp_eq_u32 s{sW}, 15
        s_cbranch_scc0 L_fb_done
        buffer_store_dwordx2 {vr(TAG, 2)}, v{FB}, {sr(sWS, 4)}, 0 offen sc1
        s_cmp_eq_u32 s{sT}, 0
        s_cbranch_scc0 L_fb_done
        v_subrev_u32 v{t4}, {W_FA - W_EPOCH}, v{FA}
        buffer_store_dwordx2 {vr(TAG, 2)}, v{t4}, {sr(sWS, 4)}, 0 offen sc1
        L_fb_done:
        v_lshrrev_b32 v{t4}, 2, v{TID}
        s_lshl_b32 s{sB}, s{sT}, 2
        s_add_u32 s{sB}, s{sB}, {W_OFFS}
        v_lshlrev_b32 v{t5}, 10, v{t4}
        v_add_u32 v{t5}, s{sB}, v{t5}
        v_mov_b32 v{t6}, {OOB}
        v_cmp_gt_u32 vcc, {NT}, v{t4}
        v_lshlrev_b32 v{t7}, 1, v{LANE}
        v_cndmask_b32 v{t5}, v{t6}, v{t5}, vcc
        buffer_load_dword v{OFFV}, v{t5}, {sr(sWS, 4)}, 0 offen sc1
        s_mov_b32 s{sB}, {512 * 512}
        """)
        for r in range(4):
            a(f"v_mov_b32 v{W3 + r}, 0")
        for r in range(4):
            a(f"buffer_load_short_d16_hi v{W3 + r}, v{t7}, {sr(sWM, 4)}, s{sB} offen offset:{128 * r}")
        self.trreads(S2)
        self.mfmas(False)
        a(f"""
        v_mov_b64 {vr(H0, 2)}, 0
        v_mov_b64 {vr(H0 + 2, 2)}, 0
        v_add_u32 v{t0}, {(AB - PS) & 0xffffffff}, v{STR}
        """)
        self.zero_agg(t0, H0, "a")
        a(f"""
        v_and_b32 v{t1}, 15, v{LANE}
        v_lshrrev_b32 v{t2}, 4, v{LANE}
        s_lshl_b32 s{sB}, s{sW}, 6
        v_mul_u32_u24 v{t3}, {QS}, v{t1}
        v_lshl_add_u32 v{t3}, v{t2}, 4, v{t3}
        v_add_u32 v{t3}, s{sB}, v{t3}
        v_cmp_gt_u32 vcc, 8, v{t1}
        """)
        for rb in range(3):
            for h in range(2):
                a(f"v_pk_mul_f32 {vr(ACC + 4 * rb + 2 * h, 2)}, {vr(ACC + 4 * rb + 2 * h, 2)}, {sr(sNL2E, 2)} op_sel_hi:[1,0]")
            if rb == 2:
                a("s_mov_b64 exec, vcc")
            a(f"ds_write_b128 v{t3}, {vr(ACC + 4 * rb, 4)} offset:{QB + rb * 16 * QS}")
        a(f"""
        s_mov_b64 exec, -1
        v_and_b32 v{t5}, 3, v{TID}
        v_mul_u32_u24 v{t4}, {EC * 8}, v{t4}
        s_waitcnt vmcnt(4)
        v_and_b32 v{t6}, 0xffff, v{OFFV}
        v_lshrrev_b32 v{t7}, 16, v{OFFV}
        v_add_u32 v{t6}, v{t6}, v{t5}
        v_lshl_add_u32 v{t4}, v{t6}, 3, v{t4}
        v_add_u32 v{RBA}, {W_RECS}, v{t4}
        v_sub_u32 v{CQ}, v{t7}, v{t5}
        v_cmp_lt_u32 vcc, 12, v{t7}
        v_mov_b32 v{t4}, {MISC}
        s_mov_b32 s{sP0}, 0
        s_mov_b32 s{sNP}, 3
        s_mov_b32 s{sFIRST}, 3
        s_mov_b32 s{sMODE}, 0
        s_and_saveexec_b64 {sr(sEX, 2)}, vcc
        s_cbranch_execz L_nomax
        ds_max_u32 v{t4}, v{t7}
        L_nomax:
        s_mov_b64 exec, -1
        """)
        a.label("L_round")
        a(f"""
        s_lshl_b32 s{sA}, s{sP0}, 2
        s_lshl_b32 s{sB}, s{sP0}, 5
        v_mov_b32 v{SC}, {OOB}
        """)
        for k in range(3):
            a(f"v_cmp_lt_i32 {sr(sVAL + 2 * k, 2)}, s{sA}, v{CQ}")
            if k:
                a(f"""
                s_cmp_gt_u32 s{sNP}, {k}
                s_cselect_b64 {sr(sVAL + 2 * k, 2)}, {sr(sVAL + 2 * k, 2)}, 0
                """)
            a(f"""
            s_add_u32 s{sA}, s{sA}, 4
            v_cndmask_b32 v{SC + 1 + k}, v{SC}, v{RBA}, {sr(sVAL + 2 * k, 2)}
            buffer_load_dwordx2 {vr(REC + 2 * k, 2)}, v{SC + 1 + k}, {sr(sWS, 4)}, s{sB} offen offset:{32 * k} sc1
            """)
        a(f"""
        s_bitcmp1_b32 s{sFIRST}, 0
        s_cbranch_scc0 L_nou1
        s_lshl_b32 s{sA}, s{sW}, 13
        s_add_u32 s{sA}, s{sA}, {W_UT}
        s_add_u32 s{sB}, s{sA}, 4096
        v_lshlrev_b32 v{SC}, 4, v{LANE}
        """)
        for s in range(8):
            so = sA if s < 4 else sB
            a(f"buffer_load_dwordx4 {vr(UF + 4 * s, 4)}, v{SC}, {sr(sWS, 4)}, s{so} offen offset:{(s & 3) * 1024} sc1")
        a(f"""
        s_bitset0_b32 s{sFIRST}, 0
        s_waitcnt vmcnt(8)
        v_pk_mul_f32 {vr(W3, 2)}, {vr(W3, 2)}, {sr(sNL2E, 2)} op_sel_hi:[1,0]
        v_pk_mul_f32 {vr(W3 + 2, 2)}, {vr(W3 + 2, 2)}, {sr(sNL2E, 2)} op_sel_hi:[1,0]
        s_branch L_recs
        L_nou1:
        s_waitcnt vmcnt(0)
        L_recs:
        v_mov_b32 v{SC}, 1
        """)
        for k in range(3):
            a(f"""
            v_bfe_u32 v{DL4 + k}, v{REC + 2 * k}, 16, 6
            v_lshlrev_b32 v{DL4 + k}, 2, v{DL4 + k}
            v_add_u32 v{SC + 1 + k}, {CNTN}, v{DL4 + k}
            s_mov_b64 exec, {sr(sVAL + 2 * k, 2)}
            ds_add_rtn_u32 v{RANK + k}, v{SC + 1 + k}, v{SC}
            s_mov_b64 exec, -1
            """)
        self.barrier()
        a(f"""
        v_lshlrev_b32 v{SC}, 2, v{LANE}
        v_add_u32 v{SC + 3}, {CNTN}, v{SC}
        v_mov_b32 v{SC + 2}, {MISC}
        ds_read_b32 v{SC}, v{SC + 3}
        ds_read_b32 v{SC + 2}, v{SC + 2}
        s_waitcnt lgkmcnt(0)
        v_mov_b32 v{SC + 1}, v{SC}
        v_readfirstlane_b32 s{sMAXC}, v{SC + 2}
        """)
        self.scan(SC + 1, None)
        a(f"""
        v_readlane_b32 s{sM}, v{SC + 1}, 63
        v_sub_u32 v{SC + 1}, v{SC + 1}, v{SC}
        s_cmp_eq_u32 s{sNP}, 3
        s_cbranch_scc0 L_lists
        s_cmp_gt_u32 s{sM}, 1024
        s_cbranch_scc1 L_generic
        s_cmp_eq_u32 s{sMAXC}, 0
        s_cbranch_scc1 L_lists
        L_generic:
        s_barrier
        v_mov_b32 v{SC}, 0
        ds_write_b32 v{SC + 3}, v{SC}
        s_mov_b32 s{sNP}, 1
        s_waitcnt vmcnt(0) lgkmcnt(0)
        s_barrier
        s_branch L_round
        L_lists:
        """)
        for k in range(3):
            a(f"ds_bpermute_b32 v{SC + 4 + k}, v{DL4 + k}, v{SC + 1}")
        for k in range(3):
            a(f"""
            v_bfe_u32 v{SC + 2}, v{RANK + k}, 5, 1
            v_lshrrev_b32 v{DL4 + k}, 2, v{DL4 + k}
            v_lshl_or_b32 v{DL4 + k}, v{SC + 2}, 6, v{DL4 + k}
            """)
        a("s_waitcnt lgkmcnt(0)")
        for k in range(3):
            a(f"""
            v_add_u32 v{RANK + k}, v{RANK + k}, v{SC + 4 + k}
            v_lshlrev_b32 v{SC}, 1, v{RANK + k}
            v_add_u32 v{SC}, {IL}, v{SC}
            v_lshlrev_b32 v{SC + 2}, 2, v{RANK + k}
            v_add_u32 v{SC + 2}, {EL}, v{SC + 2}
            v_add_u32 v{RANK + k}, {DL}, v{RANK + k}
            s_mov_b64 exec, {sr(sVAL + 2 * k, 2)}
            ds_write_b16 v{SC}, v{REC + 2 * k}
            ds_write_b32 v{SC + 2}, v{REC + 2 * k + 1}
            ds_write_b8 v{RANK + k}, v{DL4 + k}
            s_mov_b64 exec, -1
            """)
        a(f"""
        s_bitcmp1_b32 s{sFIRST}, 1
        s_cbranch_scc0 L_nor
        s_waitcnt vmcnt(0) lgkmcnt(0)
        """)
        self.gemm_regA(2, True)
        for h in range(6):
            a(f"v_pk_mul_f32 {vr(ACC + 2 * h, 2)}, {vr(ACC + 2 * h, 2)}, {sr(sNL2E, 2)} op_sel_hi:[1,0]")
        for k in range(4):
            a(f"v_add_u32 v{XA + k}, {(AB - XB) & 0xffffffff}, v{XA + k}")
        a(f"""
        s_cmp_eq_u32 s{sW}, 15
        s_cbranch_scc0 L_nor
        """)
        self.poll_wait(POB, False)
        a.label("L_nor")
        self.barrier()
        a(f"""
        v_mov_b32 v{TM}, 0
        ds_write_b32 v{SC + 3}, v{TM}
        s_add_u32 s{sA}, s{sM}, 1
        s_lshr_b32 s{sA}, s{sA}, 1
        s_mul_i32 s{sB}, s{sA}, s{sW}
        s_add_u32 s{sC}, s{sB}, s{sA}
        s_lshr_b32 s{sB}, s{sB}, 4
        s_lshr_b32 s{sC}, s{sC}, 4
        s_sub_u32 s{sREM}, s{sC}, s{sB}
        s_lshl_b32 s{sC}, s{sC}, 1
        s_min_u32 s{sC}, s{sC}, s{sM}
        s_lshl_b32 s{sD}, s{sB}, 1
        s_sub_u32 s{sNE}, s{sC}, s{sD}
        v_lshrrev_b32 v{TM}, 5, v{LANE}
        s_lshl_b32 s{sA}, s{sB}, 2
        s_add_u32 s{sA}, s{sA}, {IL}
        v_lshl_add_u32 v{IXA}, v{TM}, 1, s{sA}
        s_add_u32 s{sD}, s{sD}, {DL}
        v_add_u32 v{TM + 1}, s{sD}, v{LANE}
        s_cmp_gt_i32 s{sNE}, 0
        s_cbranch_scc0 L_empty
        """)
        for k in range(5):
            a(f"ds_read_u16 v{PA[0] + 2 * k}, v{IXA} offset:{4 * k}")
        a(f"""
        ds_read_u8 v{TM + 2}, v{TM + 1}
        ds_read_u8 v{TM + 1}, v{TM + 1} offset:1
        s_lshl_b32 s{sA}, s{sB}, 3
        s_add_u32 s{sA}, s{sA}, {EL}
        v_mov_b32 v{EA}, s{sA}
        s_lshl_b32 s{sA}, s{sW}, 12
        s_add_u32 s{sSLOT}, s{sA}, {RING}
        s_add_u32 s{sSLOT + 1}, s{sA}, {RING + 1024}
        s_add_u32 s{sSLOT + 2}, s{sA}, {RING + 2048}
        s_add_u32 s{sSLOT + 3}, s{sA}, {RING + 3072}
        v_lshl_add_u32 v{RG}, v{LANE}, 1, s{sSLOT}
        v_and_b32 v{IA + 1}, 31, v{LANE}
        v_lshlrev_b32 v{IA + 1}, 4, v{IA + 1}
        v_lshlrev_b32 v{L4}, 2, v{LANE}
        v_lshlrev_b32 v{L8}, 3, v{LANE}
        ds_read_b64 {vr(EE[0], 2)}, v{EA}
        s_waitcnt lgkmcnt(3)
        """)
        for k in range(4):
            a(f"v_mov_b32 v{IA}, v{PA[0] + 2 * k}")
            self.gather(k)
        a(f"""
        v_mov_b32 v{IA}, v{PA[0] + 8}
        s_waitcnt lgkmcnt(0)
        v_cmp_ne_u32 {sr(sMASK, 2)}, v{TM + 2}, v{TM + 1}
        v_and_b32 v{TM + 2}, 63, v{TM + 2}
        v_mul_u32_u24 v{INFO}, {QS}, v{TM + 2}
        v_and_b32 v{TM + 1}, 15, v{TM + 2}
        v_lshlrev_b32 v{TM + 1}, 4, v{TM + 1}
        v_lshl_add_u32 v{TM + 1}, v{TM + 2}, 9, v{TM + 1}
        v_add_u32 v{TM + 1}, {AB}, v{TM + 1}
        v_lshl_or_b32 v{INFO}, v{TM + 1}, 16, v{INFO}
        s_sub_u32 s{sA}, s{sNE}, 1
        s_bitset1_b64 {sr(sMASK, 2)}, s{sA}
        v_readfirstlane_b32 s{sB}, v{INFO}
        """)
        for k in range(16):
            a(f"v_mov_b32 v{PA[0] + k}, 0")
        a(f"""
        s_and_b32 s{sC}, s{sB}, 0xffff
        s_lshr_b32 s{sD}, s{sB}, 16
        v_add_u32 v{QA}, s{sC}, v{L4}
        v_xor_b32 v{AG}, s{sD}, v{L8}
        ds_read2st64_b32 {vr(Q, 2)}, v{QA} offset0:0 offset1:1
        ds_read2st64_b32 {vr(Q + 2, 2)}, v{QA} offset0:2 offset1:3
        v_mov_b64 {vr(NN, 2)}, 0
        v_mov_b64 {vr(NN + 2, 2)}, 0
        v_mov_b32 v{DD}, 1.0
        v_mov_b32 v{DD + 1}, 1.0
        v_mov_b32 v{DD + 2}, 1.0
        v_mov_b32 v{DD + 3}, 1.0
        v_mov_b64 {vr(CK2, 2)}, 0
        v_mov_b32 v{CK1}, 0
        s_mov_b32 s{sI}, 0
        s_mov_b32 s{sTRIP}, 1
        s_waitcnt vmcnt(3)
        """)
        self.p_reads(0, 0)
        a("s_waitcnt lgkmcnt(0)")
        self.gather(0)
        a(f"""
        s_bitcmp1_b32 s{sFIRST}, 1
        s_cbranch_scc0 L_nou2
        """)
        self.u2_loads()
        a(f"""
        s_mov_b32 s{sTRIP}, 0
        L_nou2:
        s_cmp_eq_u32 s{sMODE}, 0
        s_cbranch_scc0 L_go_exact
        """)
        self.loop_entry(False)
        a.label("L_go_exact")
        self.loop_entry(True)
        self.main_loop(False, "L_main_done")
        self.main_loop(True, "L_main_done")
        a.reset_hist()
        a.label("L_empty")
        a(f"""
        s_bitcmp1_b32 s{sFIRST}, 1
        s_cbranch_scc0 L_after
        """)
        self.u2_loads()
        a("s_branch L_after")
        a.label("L_main_done")
        a(f"""
        s_cmp_eq_u32 s{sMODE}, 0
        s_cbranch_scc0 L_after
        v_add_f32 v{CK2}, v{CK2}, v{CK2 + 1}
        v_mov_b32 v{TM}, {BIG}
        v_cmp_u_f32 vcc, v{CK2}, v{CK2}
        v_cmp_nle_f32 s[40:41], v{CK1}, v{TM}
        s_nop 1
        s_or_b64 vcc, vcc, s[40:41]
        s_cbranch_scc0 L_after
        v_mov_b32 v{TM}, {MISC + 4}
        v_mov_b32 v{TM + 1}, 1
        ds_write_b32 v{TM}, v{TM + 1}
        L_after:
        s_mov_b32 s{sFIRST}, 0
        """)
        self.barrier(vm=0)
        a(f"""
        s_cmp_eq_u32 s{sNP}, 3
        s_cbranch_scc1 L_rounds_done
        s_add_u32 s{sP0}, s{sP0}, 1
        s_max_u32 s{sA}, s{sMAXC}, 12
        s_lshl_b32 s{sB}, s{sP0}, 2
        s_cmp_lt_u32 s{sB}, s{sA}
        s_cbranch_scc1 L_round
        L_rounds_done:
        v_mov_b32 v{TM}, {MISC + 4}
        ds_read_b32 v{TM + 1}, v{TM}
        s_cmp_eq_u32 s{sMODE}, 0
        s_cbranch_scc0 L_final
        s_waitcnt lgkmcnt(0)
        v_readfirstlane_b32 s{sA}, v{TM + 1}
        s_nop 1
        s_cmp_eq_u32 s{sA}, 0
        s_cbranch_scc1 L_final
        s_mov_b32 s{sMODE}, 1
        s_mov_b32 s{sP0}, 0
        v_mov_b64 {vr(XF, 2)}, 0
        v_mov_b64 {vr(XF + 2, 2)}, 0
        v_add_u32 v{XF + 4}, {(AB - PS) & 0xffffffff}, v{STR}
        """)
        self.zero_agg(XF + 4, XF, "b")
        a("""
        s_branch L_round
        L_final:
        s_waitcnt lgkmcnt(0)
        """)
        self.gemm_regA(4, False)
        TE = XF
        for r in range(12):
            a(f"v_exp_f32 v{TE + r}, v{ACC + r}")
        for h in range(6):
            a(f"v_pk_add_f32 {vr(TE + 2 * h, 2)}, {vr(TE + 2 * h, 2)}, 1.0 op_sel_hi:[1,0]")
        for r in range(12):
            a(f"v_rcp_f32 v{TE + r}, v{TE + r}")
        for h in range(6):
            a(f"v_pk_mul_f32 {vr(ACC + 2 * h, 2)}, {vr(ACC + 2 * h, 2)}, {sr(sNLN2, 2)} op_sel_hi:[1,0]")
        for rb in range(3):
            for h in range(2):
                a(f"v_pk_mul_f32 {vr(ACC + 4 * rb + 2 * h, 2)}, {vr(ACC + 4 * rb + 2 * h, 2)}, {vr(TE + 4 * rb + 2 * h, 2)}")
            a(f"v_cvt_pk_bf16_f32 v{PQ + 2 * rb}, v{ACC + 4 * rb}, v{ACC + 4 * rb + 1}")
            a(f"v_cvt_pk_bf16_f32 v{PQ + 2 * rb + 1}, v{ACC + 4 * rb + 2}, v{ACC + 4 * rb + 3}")
            a(f"ds_write_b64 v{STG}, {vr(PQ + 2 * rb, 2)} offset:{rb * 8192}")
        self.barrier()
        a(f"""
        ds_read_b128 {vr(PQ + 8, 4)}, v{STR}
        ds_read_b128 {vr(PQ + 12, 4)}, v{STR} offset:16384
        s_waitcnt lgkmcnt(1)
        buffer_store_dwordx4 {vr(PQ + 8, 4)}, v{GO}, {sr(sOUT, 4)}, 0 offen
        s_waitcnt lgkmcnt(0)
        buffer_store_dwordx4 {vr(PQ + 12, 4)}, v{GO2}, {sr(sOUT, 4)}, 0 offen
        """)
        if self.stamps:
            a("s_waitcnt vmcnt(0)")
            self.stamp()
            a(f"""
            s_lshl_b32 s{sA}, s{sT}, 4
            s_add_u32 s{sA}, s{sA}, s{sW}
            s_lshl_b32 s{sA}, s{sA}, 7
            s_add_u32 s{sA}, s{sA}, {W_STAMP}
            v_lshlrev_b32 v{TM}, 2, v{LANE}
            v_cmp_gt_u32 vcc, 32, v{LANE}
            s_mov_b64 exec, vcc
            buffer_store_dword v{STAMPV}, v{TM}, {sr(sWS, 4)}, s{sA} offen
            """)
        a.label("L_end")
        a("s_endpgm")

    def zero_agg(self, addr, zq, tag):
        a = self.a
        a(f"""
        ds_write_b128 v{addr}, {vr(zq, 4)}
        s_cmp_lt_u32 s{sW}, 4
        s_cbranch_scc0 L_zagg_{tag}
        ds_write_b128 v{addr}, {vr(zq, 4)} offset:16384
        L_zagg_{tag}:
        """)

    def u2_loads(self):
        a = self.a
        a(f"""
        s_lshl_b32 s{sA}, s{sW}, 13
        s_add_u32 s{sA}, s{sA}, {W_UT + 131072}
        s_add_u32 s{sB}, s{sA}, 4096
        v_lshlrev_b32 v{TM}, 4, v{LANE}
        """)
        for s in range(8):
            so = sA if s < 4 else sB
            a(f"buffer_load_dwordx4 {vr(UF + 4 * s, 4)}, v{TM}, {sr(sWS, 4)}, s{so} offen offset:{(s & 3) * 1024} sc1")

    def loop_entry(self, exact):
        a = self.a
        tag = "x" if exact else "f"
        w = a.newlabel("e3")
        a(f"""
        s_waitcnt vmcnt(11)
        s_cmp_eq_u32 s{sTRIP}, 0
        s_cbranch_scc1 {w}
        s_waitcnt vmcnt(3)
        """)
        a.label(w)
        self.p_reads(1, 1)
        a(f"ds_read_b64 {vr(EE[1], 2)}, v{EA} offset:8")
        a(f"ds_read_u16 v{IA}, v{IXA} offset:20")
        self.edge(0, 0, exact, False)
        a(f"s_branch L_post_{tag}")

    def text(self):
        hdr = f"""; Fused MPNN edge-MLP kernel: P = x W1 published per tile, edges binned by destination tile,
; @launch grid=({NT},1,1) block=(1024,1,1) lds={LDS_TOTAL}
.amdgcn_target "amdgcn-amd-amdhsa--gfx950"
.text
.globl {NAME}_kernel
.p2align 8
.type {NAME}_kernel,@function
{NAME}_kernel:
"""
        ftr = f""".section .rodata,"a"
.p2align 6
.amdhsa_kernel {NAME}_kernel
  .amdhsa_next_free_vgpr 128
  .amdhsa_next_free_sgpr 96
  .amdhsa_accum_offset 128
  .amdhsa_group_segment_fixed_size 0
  .amdhsa_kernarg_size 72
  .amdhsa_user_sgpr_count 2
  .amdhsa_user_sgpr_kernarg_segment_ptr 1
  .amdhsa_system_sgpr_workgroup_id_x 1
.end_amdhsa_kernel
"""
        return hdr + self.a.text() + ftr


if __name__ == "__main__":
    stamps = "--stamps" in sys.argv
    out = [x for x in sys.argv[1:] if not x.startswith("--")]
    g = Gen(stamps=stamps)
    g.build()
    txt = g.text()
    open(out[0] if out else "cdna_kernels/%s.s" % NAME, "w").write(txt)
    print("nops inserted:", g.a.nops, "lines:", len(g.a.lines), "stamps:", g.nstamp)
```

```python
import sys
import struct
from asmlib import Asm

NAME = "gather_scatter__mpnn_edge_mlp__graph"
N, E, D = 10000, 160000, 256
T, NT, EC = 40, 250, 640

SLOT = (0, 32768, 65536, 98304)
XB = 131072
SIDE = XB
HIST, BASE, SORT, USC = 151552, 152576, 153600, 158720
CNTN, MISC = 160768, 161024
IL, EL, DL = 151552, 153664, 157824
QB, QS = 0, 1040
AB = 41984
RING = 65536
PS = 65536
LDS_TOTAL = 163840

W_EPOCH, W_FA, W_FB = 0, 0x1000, 0x3000
W_OFFS, W_RECS, W_UT, W_P = 0x10000, 0x50000, 0x190000, 0x200000
W_STAMP = 0x800000
WS_SIZE = 0xA00000
OOB = 0x80000000
POLL_LIMIT = 200000


def f2u(x):
    return struct.unpack("<I", struct.pack("<f", x))[0]


NLOG2E = f2u(-1.4426950408889634)
NLN2 = f2u(-0.6931471805599453)
BIG = f2u(2.0 ** 120)


def vr(a, n=1):
    return "v%d" % a if n == 1 else "v[%d:%d]" % (a, a + n - 1)


def sr(a, n=1):
    return "s%d" % a if n == 1 else "s[%d:%d]" % (a, a + n - 1)


TID, LANE = 0, 1
XA = 2
STG, GO, GO2, STR = 6, 7, 8, 9
RBA, CQ = 10, 11
ACC = 12
UF = 24
XF, WF = 56, 80
AC2 = 88
TAG, FA, POA, POLLD = 100, 102, 103, 24
WOFF, TR0, TR1, OFFV = 104, 105, 106, 107
STAMPV = 123
W3 = 124
REC, RANK, DL4, SC = 32, 38, 41, 44
PA = (56, 64)
EE = (72, 74)
IA, Q, QE, Y, TT, NN, DD = 76, 78, 86, 90, 94, 98, 102
CK2, CK1 = 106, 108
RG, IXA, EA, QA, AG, L4, L8, INFO, TM, IOF = 109, 110, 111, 112, 113, 114, 115, 116, 117, 122

sT, sW = 2, 3
sX, sWM, sWU, sWS, sP, sOUT, sSRC, sDST, sEA = 4, 8, 12, 16, 20, 24, 28, 32, 36
sNL2E, sNLN2, s4096, sW1K = 58, 60, 62, 63
sMASK, sI, sNE, sREM, sTRIP, sSLOT = 64, 66, 67, 68, 69, 70
sM, sP0, sNP, sMAXC, sFIRST, sMODE = 74, 75, 76, 77, 78, 79
sVAL = 80
sA, sB, sC, sD = 86, 87, 88, 89
sEX = 90
sCO = 48


class Gen:
    def __init__(self, opts=()):
        self.opts = set(opts)
        self.a = Asm()
        self.stamps = "stamps" in self.opts
        self.nstamp = 0
        self.names = []
        self.q = {"L": [], "N": []}

    def opt(self, name, default):
        for o in self.opts:
            if o.startswith(name + "="):
                return int(o.split("=")[1])
        return default

    STAMP_REGS = [92, 94, 96, 98, 100, 50, 54, 28, 30, 32, 34, 36, 38]

    def stamp(self, name):
        if not self.stamps:
            return
        sel = [o[3:].split("+") for o in self.opts if o.startswith("st=")]
        if name not in ("start", "end") and sel and name not in sel[0]:
            return
        k = self.nstamp
        self.nstamp += 1
        self.names.append(name)
        if name in ("start", "end"):
            self.a(f"""
            s_memrealtime s[40:41]
            s_waitcnt lgkmcnt(0)
            v_writelane_b32 v{STAMPV}, s40, {0 if name == "start" else 1}
            """)
        self.a(f"s_memtime {sr(self.STAMP_REGS[k], 2)}")
        if name == "end":
            self.a("s_waitcnt lgkmcnt(0)")
            for i in range(self.nstamp):
                self.a(f"v_writelane_b32 v{STAMPV}, s{self.STAMP_REGS[i]}, {32 + i}")

    def vm(self, roles, tag, n=1):
        for r in roles:
            self.q[r] += [tag] * n

    def vmwait(self, tags):
        need = {}
        for r, lst in self.q.items():
            last = max((i for i, t in enumerate(lst) if t in tags), default=None)
            if last is None:
                need[r] = None
            else:
                need[r] = len(lst) - 1 - last
                self.q[r] = lst[last + 1:]
        a = self.a
        if need["L"] == need["N"]:
            if need["L"] is not None:
                a(f"s_waitcnt vmcnt({need['L']})")
            return
        lab = a.newlabel("vw")
        if need["N"] is None:
            a(f"s_cmp_lt_u32 s{sW}, 8\ns_cbranch_scc1 {lab}\ns_waitcnt vmcnt({need['L']})\n{lab}:")
        elif need["L"] is None:
            a(f"s_cmp_ge_u32 s{sW}, 8\ns_cbranch_scc1 {lab}\ns_waitcnt vmcnt({need['N']})\n{lab}:")
        elif need["L"] > need["N"]:
            a(f"s_waitcnt vmcnt({need['L']})\ns_cmp_ge_u32 s{sW}, 8\ns_cbranch_scc1 {lab}\ns_waitcnt vmcnt({need['N']})\n{lab}:")
        else:
            a(f"s_waitcnt vmcnt({need['N']})\ns_cmp_lt_u32 s{sW}, 8\ns_cbranch_scc1 {lab}\ns_waitcnt vmcnt({need['L']})\n{lab}:")

    def barrier(self, name, lgkm=True):
        if lgkm:
            self.a("s_waitcnt lgkmcnt(0)")
        self.a("s_barrier")
        self.stamp(name)

    def dma_body(self, k, slot):
        a = self.a
        srd, base = ((sWM, 0), (sWU, 0), (sWM, 131072))[k // 4]
        c = k % 4
        for m in range(4):
            a(f"""
            s_add_u32 m0, s{sW1K}, {SLOT[slot] + m * 8192}
            s_mov_b32 s{sB}, {base + c * 32768 + m * 8192}
            buffer_load_dwordx4 v{WOFF}, {sr(srd, 4)}, s{sB} offen lds
            """)
        self.vm("L", f"c{k}", 4)

    def dma(self, k, slot):
        a = self.a
        lab = a.newlabel("dma")
        a(f"s_cmp_lt_u32 s{sW}, 8\ns_cbranch_scc1 {lab}")
        self.dma_body(k, slot)
        a.label(lab)

    def xreads(self, c):
        a = self.a
        for sp in range(2):
            s = 2 * c + sp
            for rb in range(3):
                a(f"ds_read_b128 {vr(XF + 12 * sp + 4 * rb, 4)}, v{XA + (s & 3)} offset:{rb * 8192 + (s >> 2) * 256}")

    def trreads(self, slot):
        a = self.a
        base = SLOT[slot]
        tr = TR0 if base < 65536 else TR1
        for sp in range(2):
            for p in range(2):
                a(f"ds_read_b64_tr_b16 {vr(WF + 4 * sp + 2 * p, 2)}, v{tr} offset:{(base & 65535) + 16384 * sp + 2048 * p}")

    def mfmas(self, acc, first):
        a = self.a
        for sp in range(2):
            a(f"s_waitcnt lgkmcnt({2 - 2 * sp})")
            for rb in range(3):
                c = "0" if (first and sp == 0) else vr(acc + 4 * rb, 4)
                a(f"v_mfma_f32_16x16x32_bf16 {vr(acc + 4 * rb, 4)}, {vr(WF + 4 * sp, 4)}, {vr(XF + 12 * sp + 4 * rb, 4)}, {c}")

    def scan(self, v):
        a = self.a
        for sh in (1, 2, 4, 8):
            a(f"v_add_u32_dpp v{v}, v{v}, v{v} row_shr:{sh} row_mask:0xf bank_mask:0xf bound_ctrl:0")
        a(f"v_add_u32_dpp v{v}, v{v}, v{v} row_bcast:15 row_mask:0xa bank_mask:0xf")
        a(f"v_add_u32_dpp v{v}, v{v}, v{v} row_bcast:31 row_mask:0xc bank_mask:0xf")

    def poll_issue(self, base):
        a = self.a
        a(f"s_mov_b32 s{sB}, {base}\ns_mov_b32 s{sD}, {base + 4096}")
        for k in range(4):
            a(f"buffer_load_dwordx2 {vr(POLLD + 2 * k, 2)}, v{POA}, {sr(sWS, 4)}, s{sB if k < 2 else sD} offen offset:{2048 * (k & 1)} sc1")

    def poll_wait(self, base, issued):
        a = self.a
        lp, chk, done = a.newlabel("poll"), a.newlabel("pchk"), a.newlabel("pdone")
        a(f"s_mov_b32 s{sC}, 0")
        if issued:
            a(f"s_branch {chk}")
        a.label(lp)
        self.poll_issue(base)
        a.label(chk)
        m58 = (1 << (NT - 192)) - 1
        a(f"""
        s_waitcnt vmcnt(0)
        v_cmp_ne_u64 s[40:41], {vr(POLLD, 2)}, {vr(TAG, 2)}
        v_cmp_ne_u64 s[42:43], {vr(POLLD + 2, 2)}, {vr(TAG, 2)}
        v_cmp_ne_u64 s[44:45], {vr(POLLD + 4, 2)}, {vr(TAG, 2)}
        v_cmp_ne_u64 s[46:47], {vr(POLLD + 6, 2)}, {vr(TAG, 2)}
        s_nop 1
        s_and_b32 s47, s47, {m58 >> 32}
        s_or_b64 s[40:41], s[40:41], s[42:43]
        s_or_b64 s[44:45], s[44:45], s[46:47]
        s_or_b64 s[40:41], s[40:41], s[44:45]
        s_cbranch_scc0 {done}
        s_add_u32 s{sC}, s{sC}, 1
        s_cmp_lt_u32 s{sC}, {POLL_LIMIT}
        s_cbranch_scc1 {lp}
        """)
        a.label(done)

    def wave0(self, fn):
        a = self.a
        lab = a.newlabel("w0")
        a(f"s_cmp_eq_u32 s{sW}, 0\ns_cbranch_scc0 {lab}")
        fn()
        a.label(lab)

    def edge(self, pb, which, exact, first):
        a = self.a
        if "noedge" in self.opts:
            return
        p = PA[pb] + 4 * which
        sel = "op_sel:[1,0,0] op_sel_hi:[1,1,1]" if which else "op_sel:[0,0,0] op_sel_hi:[0,1,1]"
        y = NN if (first and not exact) else Y
        for h in range(2):
            a(f"v_pk_fma_f32 {vr(QE + 2 * h, 2)}, {vr(EE[pb], 2)}, {vr(W3 + 2 * h, 2)}, {vr(Q + 2 * h, 2)} {sel}")
        for h in range(2):
            a(f"v_pk_add_f32 {vr(y + 2 * h, 2)}, {vr(p + 2 * h, 2)}, {vr(QE + 2 * h, 2)}")
        for r in range(4):
            a(f"v_exp_f32 v{TT + r}, v{y + r}")
        if exact:
            for h in range(2):
                a(f"v_pk_add_f32 {vr(TT + 2 * h, 2)}, {vr(TT + 2 * h, 2)}, 1.0 op_sel_hi:[1,0]")
            for r in range(4):
                a(f"v_rcp_f32 v{TT + r}, v{TT + r}")
            for h in range(2):
                if first:
                    a(f"v_pk_mul_f32 {vr(NN + 2 * h, 2)}, {vr(Y + 2 * h, 2)}, {vr(TT + 2 * h, 2)}")
                else:
                    a(f"v_pk_fma_f32 {vr(NN + 2 * h, 2)}, {vr(Y + 2 * h, 2)}, {vr(TT + 2 * h, 2)}, {vr(NN + 2 * h, 2)}")
        elif first:
            for h in range(2):
                a(f"v_pk_add_f32 {vr(DD + 2 * h, 2)}, {vr(TT + 2 * h, 2)}, 1.0 op_sel_hi:[1,0]")
        else:
            for h in range(2):
                a(f"v_pk_fma_f32 {vr(NN + 2 * h, 2)}, {vr(NN + 2 * h, 2)}, {vr(TT + 2 * h, 2)}, {vr(NN + 2 * h, 2)}")
            for h in range(2):
                a(f"v_pk_fma_f32 {vr(NN + 2 * h, 2)}, {vr(Y + 2 * h, 2)}, {vr(DD + 2 * h, 2)}, {vr(NN + 2 * h, 2)}")
            for h in range(2):
                a(f"v_pk_fma_f32 {vr(DD + 2 * h, 2)}, {vr(DD + 2 * h, 2)}, {vr(TT + 2 * h, 2)}, {vr(DD + 2 * h, 2)}")

    def flush(self, exact, mid=None, final=False):
        a = self.a
        if exact:
            if mid:
                mid()
            a(f"v_cvt_pk_bf16_f32 v{TT}, v{NN}, v{NN + 1}")
            a(f"v_cvt_pk_bf16_f32 v{TT + 1}, v{NN + 2}, v{NN + 3}")
            a(f"ds_pk_add_bf16 v{AG}, v{TT}")
            a(f"ds_pk_add_bf16 v{AG}, v{TT + 1} offset:4")
            return 2
        for r in range(4):
            a(f"v_rcp_f32 v{TT + r}, v{DD + r}")
        if mid:
            mid()
        a(f"v_max3_f32 v{CK1}, v{CK1}, v{DD}, v{DD + 1}")
        a(f"v_max3_f32 v{CK1}, v{CK1}, v{DD + 2}, v{DD + 3}")
        for h in range(2):
            a(f"v_pk_mul_f32 {vr(Y + 2 * h, 2)}, {vr(NN + 2 * h, 2)}, {vr(TT + 2 * h, 2)}")
        for h in range(2):
            a(f"v_pk_fma_f32 {vr(CK2, 2)}, {vr(Y + 2 * h, 2)}, 0, {vr(CK2, 2)} op_sel_hi:[1,0,1]")
        if final:
            a(f"""
            s_cmp_eq_u32 s{sCO}, 0
            s_cbranch_scc1 L_noside
            s_lshl_b32 s{sA}, s{sW}, 9
            s_add_u32 s{sA}, s{sA}, {SIDE + 512}
            v_add_u32 v{QA}, s{sA}, v{L8}
            s_mov_b32 s{sC}, 0
            L_side:
            ds_read_b64 {vr(TT, 2)}, v{QA}
            s_add_u32 s{sC}, s{sC}, 1
            s_waitcnt lgkmcnt(0)
            v_cmp_eq_u64 vcc, -1, {vr(TT, 2)}
            s_cmp_gt_u32 s{sC}, 4000
            s_cbranch_scc1 L_side_go
            s_cbranch_vccnz L_side
            L_side_go:
            v_lshlrev_b32 v{QE}, 16, v{TT}
            v_and_b32 v{QE + 1}, 0xffff0000, v{TT}
            v_lshlrev_b32 v{QE + 2}, 16, v{TT + 1}
            v_and_b32 v{QE + 3}, 0xffff0000, v{TT + 1}
            v_pk_add_f32 {vr(Y, 2)}, {vr(Y, 2)}, {vr(QE, 2)}
            v_pk_add_f32 {vr(Y + 2, 2)}, {vr(Y + 2, 2)}, {vr(QE + 2, 2)}
            L_noside:
            """)
        a(f"v_cvt_pk_bf16_f32 v{TT}, v{Y}, v{Y + 1}")
        a(f"v_cvt_pk_bf16_f32 v{TT + 1}, v{Y + 2}, v{Y + 3}")
        a(f"ds_write_b64 v{AG}, {vr(TT, 2)}")
        return 1

    def p_reads(self, pb, slot):
        a = self.a
        for row in range(2):
            for r in range(4):
                a(f"ds_read_u16_d16_hi v{PA[pb] + 4 * row + r}, v{RG} offset:{slot * 1024 + row * 512 + r * 128}")

    def gather(self, slot):
        a = self.a
        if "nodma" in self.opts:
            return
        a(f"""
        s_mov_b32 m0, s{sSLOT + slot}
        s_cmp_gt_i32 s{sREM}, 0
        s_cselect_b32 s{sP + 2}, {N}, 0
        s_sub_u32 s{sREM}, s{sREM}, 1
        buffer_load_dwordx4 {vr(IA, 2)}, {sr(sP, 4)}, 0 idxen offen sc1 lds
        """)

    def head(self, jj):
        a = self.a
        pb = jj & 1
        w3l = a.newlabel("w3")
        a(f"""
        s_waitcnt vmcnt(11)
        s_cmp_eq_u32 s{sTRIP}, 0
        s_cbranch_scc1 {w3l}
        s_waitcnt vmcnt(3)
        """)
        a.label(w3l)
        self.p_reads(pb ^ 1, (jj + 1) & 3)
        a(f"ds_read_b64 {vr(EE[pb ^ 1], 2)}, v{EA} offset:{8 * (jj + 1)}")
        a(f"ds_read_u16 v{IA}, v{IXA} offset:{4 * (jj + 5)}")

    def main_loop(self, exact, exit_label):
        a = self.a
        tag = "x" if exact else "f"
        loop = f"L_loop_{tag}"
        blocks = []
        a.label(f"L_enter_{tag}")
        self.head(0)
        self.edge(0, 0, exact, False)
        a(f"s_branch L_post_{tag}")
        a.label(loop)
        for jj in range(4):
            pb = jj & 1
            self.head(jj)
            for which in range(2):
                blk, back = f"L_blk_{tag}_{jj}_{which}", f"L_back_{tag}_{jj}_{which}"
                a(f"s_bitcmp1_b32 s{sMASK}, {1 - which}")
                a(f"s_cbranch_scc1 {blk}")
                self.edge(pb, which, exact, False)
                a.label(back)
                if which == 0:
                    a(f"s_lshr_b64 {sr(sMASK, 2)}, {sr(sMASK, 2)}, 2")
                    if jj == 0:
                        a.label(f"L_post_{tag}")
                blocks.append((blk, back, pb, which))
            a("s_waitcnt lgkmcnt(0)")
            self.gather((jj + 1) & 3)
            a(f"s_add_u32 s{sI}, s{sI}, 2")
        a(f"""
        v_add_u32 v{IXA}, 16, v{IXA}
        v_add_u32 v{EA}, 32, v{EA}
        s_mov_b32 s{sTRIP}, 1
        """)
        if not exact and "noprio" not in self.opts:
            t2, t1, t0 = self.opt("p2", 9), self.opt("p1", 5), self.opt("p0", 1)
            a(f"""
            s_cmp_gt_i32 s{sREM}, {t2}
            s_cbranch_scc1 {loop}
            s_setprio 2
            s_cmp_gt_i32 s{sREM}, {t1}
            s_cbranch_scc1 {loop}
            s_setprio 1
            s_cmp_gt_i32 s{sREM}, {t0}
            s_cbranch_scc1 {loop}
            s_setprio 0
            """)
        a(f"s_branch {loop}")
        fin = f"L_fin_{tag}"
        for blk, back, pb, which in blocks:
            a.reset_hist()
            a.label(blk)
            a(f"""
            s_add_u32 s{sA}, s{sI}, {which}
            s_cmp_eq_u32 s{sA}, s{sNE}
            s_cbranch_scc1 {fin}
            v_readlane_b32 s{sB}, v{INFO}, s{sA}
            """)

            def mid():
                a(f"""
                s_and_b32 s{sC}, s{sB}, 0xffff
                s_lshr_b32 s{sD}, s{sB}, 16
                v_add_u32 v{QA}, s{sC}, v{L4}
                ds_read2st64_b32 {vr(Q, 2)}, v{QA} offset0:0 offset1:1
                ds_read2st64_b32 {vr(Q + 2, 2)}, v{QA} offset0:2 offset1:3
                """)

            n = self.flush(exact, mid)
            a(f"""
            v_xor_b32 v{AG}, s{sD}, v{L8}
            s_waitcnt lgkmcnt({n})
            """)
            self.edge(pb, which, exact, True)
            a(f"s_branch {back}")
        a.reset_hist()
        a.label(fin)
        self.flush(exact, final=True)
        a(f"s_branch {exit_label}")

    def zero_agg(self, addr, zq):
        a = self.a
        lab = a.newlabel("zagg")
        a(f"""
        ds_write_b128 v{addr}, {vr(zq, 4)}
        s_cmp_lt_u32 s{sW}, 4
        s_cbranch_scc0 {lab}
        ds_write_b128 v{addr}, {vr(zq, 4)} offset:16384
        {lab}:
        """)

    def u2_loads(self):
        a = self.a
        a(f"""
        s_lshl_b32 s{sA}, s{sW}, 13
        s_add_u32 s{sA}, s{sA}, {W_UT}
        s_add_u32 s{sB}, s{sA}, 4096
        v_lshlrev_b32 v{TM}, 4, v{LANE}
        """)
        for s in range(8):
            so = sA if s < 4 else sB
            a(f"buffer_load_dwordx4 {vr(UF + 4 * s, 4)}, v{TM}, {sr(sWS, 4)}, s{so} offen offset:{(s & 3) * 1024} sc1")

    def rec_issue(self):
        a = self.a
        a(f"""
        s_lshl_b32 s{sA}, s{sP0}, 2
        s_lshl_b32 s{sB}, s{sP0}, 5
        v_mov_b32 v{SC}, {OOB}
        """)
        for k in range(3):
            a(f"v_cmp_lt_i32 {sr(sVAL + 2 * k, 2)}, s{sA}, v{CQ}")
            if k:
                a(f"""
                s_cmp_gt_u32 s{sNP}, {k}
                s_cselect_b64 {sr(sVAL + 2 * k, 2)}, {sr(sVAL + 2 * k, 2)}, 0
                """)
            a(f"""
            s_add_u32 s{sA}, s{sA}, 4
            v_cndmask_b32 v{SC + 1 + k}, v{SC}, v{RBA}, {sr(sVAL + 2 * k, 2)}
            buffer_load_dwordx2 {vr(REC + 2 * k, 2)}, v{SC + 1 + k}, {sr(sWS, 4)}, s{sB} offen offset:{32 * k} sc1
            """)

    def binning(self):
        a = self.a
        DV, SV, EP, RV, AD, RK = 24, 34, 44, 56, 76, 88
        H0, B0, SQ, t4, t5, t6 = 50, 108, 112, 116, 117, 118
        a("s_waitcnt vmcnt(0)")
        self.stamp("edges")
        R10 = range(10)
        for i in R10:
            a(f"v_mul_u32_u24 v{AD + i}, 52429, v{DV + i}")
        for i in R10:
            a(f"v_lshrrev_b32 v{AD + i}, 21, v{AD + i}")
        for i in R10:
            a(f"v_min_u32 v{RK + i}, 255, v{AD + i}")
        for i in R10:
            a(f"v_lshl_add_u32 v{AD + i}, v{RK + i}, 2, s{sD}")
        for i in R10:
            a(f"v_mad_i32_i24 v{DV + i}, v{RK + i}, s{sC}, v{DV + i}")
            a(f"ds_add_rtn_u32 v{RK + i}, v{AD + i}, v{t4}")
        for i in R10:
            a(f"v_lshl_or_b32 v{RV + 2 * i}, v{DV + i}, 16, v{SV + i}")
            if i & 1:
                a(f"v_and_b32 v{RV + 2 * i + 1}, 0xffff0000, v{EP + i // 2}")
            else:
                a(f"v_lshlrev_b32 v{RV + 2 * i + 1}, 16, v{EP + i // 2}")
        a(f"""
        v_lshlrev_b32 v{t5}, 4, v{LANE}
        v_add_u32 v{t6}, {HIST}, v{t5}
        v_add_co_u32 v{TAG}, vcc, 1, v{TAG}
        ds_read_b128 {vr(H0, 4)}, v{t6}
        v_addc_co_u32 v{TAG + 1}, vcc, 0, v{TAG + 1}, vcc
        s_waitcnt lgkmcnt(0)
        v_add_u32 v{B0 + 1}, v{H0}, v{H0 + 1}
        v_add_u32 v{SQ}, v{H0 + 2}, v{H0 + 3}
        v_add_u32 v{SQ}, v{SQ}, v{B0 + 1}
        v_mov_b32 v{t4}, v{SQ}
        """)
        self.scan(t4)
        a(f"""
        v_sub_u32 v{B0}, v{t4}, v{SQ}
        v_add_u32 v{B0 + 2}, v{B0}, v{B0 + 1}
        v_add_u32 v{B0 + 1}, v{B0}, v{H0}
        v_add_u32 v{B0 + 3}, v{B0 + 2}, v{H0 + 2}
        ds_write_b128 v{t6}, {vr(B0, 4)} offset:{BASE - HIST}
        """)
        for i in range(10):
            a(f"ds_read_b32 v{DV + i}, v{AD + i} offset:{BASE - HIST}")
        for i in range(4):
            a(f"v_lshl_or_b32 v{SQ + i}, v{H0 + i}, 16, v{B0 + i}")
        a(f"""
        s_lshl_b32 s{sB}, s{sT}, 10
        s_add_u32 s{sB}, s{sB}, {W_OFFS}
        buffer_store_dwordx4 {vr(SQ, 4)}, v{t5}, {sr(sWS, 4)}, s{sB} offen sc1
        s_mov_b32 s{sD}, {SORT}
        """)
        a("s_waitcnt lgkmcnt(0)")
        for i in R10:
            a(f"v_add_u32 v{DV + i}, v{DV + i}, v{RK + i}")
        for i in R10:
            a(f"v_lshl_add_u32 v{DV + i}, v{DV + i}, 3, s{sD}")
        for i in R10:
            a(f"ds_write_b64 v{DV + i}, {vr(RV + 2 * i, 2)}")
        a(f"""
        v_add_u32 v{t6}, {SORT}, v{t5}
        s_mul_i32 s{sB}, s{sT}, {EC * 8}
        s_add_u32 s{sB}, s{sB}, {W_RECS}
        s_add_u32 s{sD}, s{sB}, 4096
        """)
        for i in range(5):
            a(f"ds_read_b128 {vr(SV + 4 * i, 4)}, v{t6} offset:{1024 * i}")
        for i in range(5):
            a(f"""
            s_waitcnt lgkmcnt({4 - i})
            buffer_store_dwordx4 {vr(SV + 4 * i, 4)}, v{t5}, {sr(sWS, 4)}, s{sB if i < 4 else sD} offen offset:{1024 * (i & 3)} sc1
            """)
        self.stamp("binned")

    def build(self):
        a = self.a
        t0, t1, t2, t3, t4, t5, t6, t7 = range(108, 116)
        PQ = 24
        UQ = 48

        a(f"""
        s_cmp_ge_u32 s{sT}, {NT}
        s_cbranch_scc1 L_end
        s_load_dwordx16 s[40:55], s[0:1], 0
        s_load_dwordx2 s[56:57], s[0:1], 64
        v_and_b32 v{LANE}, 63, v{TID}
        v_lshrrev_b32 v{t0}, 6, v{TID}
        v_mov_b32 v{t6}, 0
        v_lshlrev_b32 v{t7}, 2, v{TID}
        v_readfirstlane_b32 s{sW}, v{t0}
        v_add_u32 v{t7}, {HIST}, v{t7}
        s_cmp_lt_u32 s{sW}, 4
        s_cbranch_scc1 L_z1
        s_cmp_gt_u32 s{sW}, 5
        s_cbranch_scc1 L_z2
        v_add_u32 v{t7}, {CNTN - HIST - 1024}, v{t7}
        L_z1:
        ds_write_b32 v{t7}, v{t6}
        L_z2:
        v_lshrrev_b32 v{t3}, 5, v{TID}
        v_and_b32 v{t4}, 31, v{TID}
        v_and_b32 v{t5}, 15, v{t3}
        v_xor_b32 v{t6}, v{t5}, v{t4}
        v_lshlrev_b32 v{t6}, 4, v{t6}
        s_mul_i32 s{sB}, s{sT}, {T * 512}
        v_lshl_add_u32 v{t6}, v{t3}, 9, v{t6}
        v_add_u32 v{GO}, s{sB}, v{t6}
        v_and_b32 v{t6}, 3, v{t5}
        v_lshrrev_b32 v{t7}, 1, v{t5}
        v_and_b32 v{t7}, 4, v{t7}
        v_or_b32 v{t6}, v{t6}, v{t7}
        v_lshlrev_b32 v{t6}, 1, v{t6}
        v_xor_b32 v{t6}, v{t6}, v{t4}
        v_lshlrev_b32 v{t6}, 4, v{t6}
        v_lshl_add_u32 v{WOFF}, v{t5}, 9, v{t6}
        s_and_b32 s{sW1K}, s{sW}, 7
        s_lshl_b32 s{sW1K}, s{sW1K}, 10
        """)
        if self.stamps:
            a(f"v_mov_b32 v{STAMPV}, 0")
            for r in self.STAMP_REGS[:5]:
                a(f"s_mov_b32 s{r}, 0")
        a("s_waitcnt lgkmcnt(0)")

        def srd(s, p, nbytes):
            a(f"""
            s_mov_b32 s{s}, s{p}
            s_mov_b32 s{s + 1}, s{p + 1}
            s_mov_b32 s{s + 2}, {nbytes}
            s_mov_b32 s{s + 3}, 0x20000
            """)

        srd(sDST, 46, E * 4)
        srd(sSRC, 44, E * 4)
        srd(sEA, 42, E * 2)
        srd(sX, 40, N * 512)
        srd(sWM, 48, 513 * 512)
        srd(sWU, 50, 512 * 512)
        srd(sWS, 56, WS_SIZE)
        a("s_barrier")
        self.stamp("start")
        a(f"""
        s_cmp_ge_u32 s{sW}, 8
        s_cbranch_scc1 L_role_l
        s_cmp_ge_u32 s{sW}, 4
        s_cbranch_scc1 L_role_x
        s_cmp_eq_u32 s{sW}, 0
        s_cbranch_scc0 L_role_u
        s_setprio 3
        v_mul_u32_u24 v{t6}, 40, v{LANE}
        v_mul_u32_u24 v{t7}, 20, v{LANE}
        s_mul_i32 s{sA}, s{sT}, {EC * 4}
        s_mul_i32 s{sB}, s{sT}, {EC * 2}
        buffer_load_dwordx4 v[24:27], v{t6}, {sr(sDST, 4)}, s{sA} offen
        buffer_load_dwordx4 v[28:31], v{t6}, {sr(sDST, 4)}, s{sA} offen offset:16
        buffer_load_dwordx2 v[32:33], v{t6}, {sr(sDST, 4)}, s{sA} offen offset:32
        buffer_load_dwordx4 v[34:37], v{t6}, {sr(sSRC, 4)}, s{sA} offen
        buffer_load_dwordx4 v[38:41], v{t6}, {sr(sSRC, 4)}, s{sA} offen offset:16
        buffer_load_dwordx2 v[42:43], v{t6}, {sr(sSRC, 4)}, s{sA} offen offset:32
        buffer_load_dwordx4 v[44:47], v{t7}, {sr(sEA, 4)}, s{sB} offen
        buffer_load_dword v48, v{t7}, {sr(sEA, 4)}, s{sB} offen offset:16
        v_mov_b32 v{t6}, {W_EPOCH}
        buffer_load_dwordx2 {vr(TAG, 2)}, v{t6}, {sr(sWS, 4)}, 0 offen sc1
        s_branch L_role_done
        L_role_u:
        s_cmp_eq_u32 s{sW}, 1
        s_cbranch_scc0 L_role_done
        s_cmp_ge_u32 s{sT}, 128
        s_cbranch_scc1 L_role_done
        s_mov_b32 m0, {USC}
        s_and_b32 s{sA}, s{sT}, 7
        s_lshl_b32 s{sA}, s{sA}, 5
        s_lshr_b32 s{sB}, s{sT}, 3
        s_lshl_b32 s{sB}, s{sB}, 5
        v_lshrrev_b32 v{t6}, 1, v{LANE}
        v_add_u32 v{t6}, s{sA}, v{t6}
        v_and_b32 v{t7}, 3, v{t6}
        v_lshrrev_b32 v{t6}, 2, v{t6}
        v_lshl_add_u32 v{t6}, v{t7}, 6, v{t6}
        v_add_u32 v{t6}, 256, v{t6}
        v_and_b32 v{t7}, 1, v{LANE}
        v_lshlrev_b32 v{t7}, 4, v{t7}
        v_lshl_add_u32 v{t6}, v{t6}, 9, v{t7}
        buffer_load_dwordx4 v{t6}, {sr(sWU, 4)}, s{sB} offen lds
        s_branch L_role_done
        L_role_x:
        v_subrev_u32 v{t7}, 4096, v{GO}
        v_xor_b32 v{t6}, 0x80, v{t7}
        s_lshl_b32 s{sA}, s{sW}, 10
        """)
        for m in range(5):
            a(f"""
            s_add_u32 m0, s{sA}, {XB - 4096 + 4096 * m}
            s_mov_b32 s{sB}, {4096 * m}
            buffer_load_dwordx4 v{t7 if (m & 1) else t6}, {sr(sX, 4)}, s{sB} offen lds
            """)
        a(f"""
        s_branch L_role_done
        L_role_l:
        """)
        if "nowarm" not in self.opts:
            a(f"""
            s_lshr_b32 s{sA}, s{sT}, 3
            s_lshl_b32 s{sA}, s{sA}, 13
            s_add_u32 s{sA}, s{sA}, s{sW1K}
            v_lshlrev_b32 v{t6}, 4, v{LANE}
            buffer_load_dwordx4 v[24:27], v{t6}, {sr(sWM, 4)}, s{sA} offen
            s_lshr_b32 s{sA}, s{sA}, 1
            s_and_b32 s{sA}, s{sA}, 0x1fe00
            v_lshlrev_b32 v{t7}, 3, v{LANE}
            buffer_load_dwordx2 v[28:29], v{t7}, {sr(sWU, 4)}, s{sA} offen
            """)
        for k in range(2):
            self.dma_body(k, k)
        a.label("L_role_done")
        self.vm("N", "x")
        srd(sOUT, 52, N * 512)
        a(f"""
        s_add_u32 s{sP}, s56, {W_P}
        s_addc_u32 s{sP + 1}, s57, 0
        s_or_b32 s{sP + 1}, s{sP + 1}, {512 << 16}
        s_mov_b32 s{sP + 2}, {N}
        s_mov_b32 s{sP + 3}, 0x20000
        s_mov_b32 s{sNL2E}, {NLOG2E}
        s_mov_b32 s{sNL2E + 1}, {NLOG2E}
        s_mov_b32 s{sNLN2}, {NLN2}
        s_mov_b32 s{sNLN2 + 1}, {NLN2}
        v_and_b32 v{t0}, 15, v{LANE}
        v_lshrrev_b32 v{t1}, 4, v{LANE}
        v_bfe_u32 v{t2}, v{LANE}, 2, 2
        v_and_b32 v{t3}, 3, v{LANE}
        s_lshl_b32 s{sB}, s{sW}, 1
        v_and_b32 v{t4}, 1, v{t1}
        v_lshl_or_b32 v{t4}, v{t4}, 2, v{t2}
        v_lshlrev_b32 v{t4}, 1, v{t4}
        v_lshrrev_b32 v{t5}, 1, v{t3}
        v_add_u32 v{t5}, s{sB}, v{t5}
        v_xor_b32 v{t4}, v{t4}, v{t5}
        v_lshlrev_b32 v{t4}, 4, v{t4}
        v_and_b32 v{t5}, 1, v{t3}
        v_lshl_add_u32 v{t4}, v{t5}, 3, v{t4}
        v_lshl_add_u32 v{t5}, v{t1}, 3, v{t2}
        v_lshl_add_u32 v{TR0}, v{t5}, 9, v{t4}
        v_add_u32 v{TR1}, 65536, v{TR0}
        v_lshlrev_b32 v{t5}, 5, v{t5}
        v_lshl_add_u32 v{OFFV}, v{t3}, 3, v{t5}
        v_lshlrev_b32 v{t5}, 9, v{t0}
        v_add_u32 v{t5}, {XB}, v{t5}
        """)
        for k in range(4):
            a(f"""
            v_add_u32 v{t4}, {4 * k}, v{t1}
            v_xor_b32 v{t4}, v{t4}, v{t0}
            v_lshl_add_u32 v{XA + k}, v{t4}, 4, v{t5}
            """)
        a(f"""
        v_lshrrev_b32 v{t4}, 1, v{t1}
        v_add_u32 v{t4}, s{sB}, v{t4}
        v_xor_b32 v{t4}, v{t4}, v{t0}
        v_lshlrev_b32 v{t4}, 4, v{t4}
        v_and_b32 v{t6}, 1, v{t1}
        v_lshl_add_u32 v{t4}, v{t6}, 3, v{t4}
        v_lshl_add_u32 v{t4}, v{t0}, 9, v{t4}
        v_add_u32 v{STG}, {PS}, v{t4}
        v_lshlrev_b32 v{STR}, 4, v{TID}
        v_add_u32 v{STR}, {PS}, v{STR}
        v_add_u32 v{GO2}, 16384, v{GO}
        s_cmp_lt_u32 s{sW}, 4
        s_cbranch_scc1 L_go2
        v_mov_b32 v{GO2}, {OOB}
        L_go2:
        s_lshl_b32 s{sB}, s{sT}, 5
        v_mov_b32 v{t5}, {OOB}
        v_cmp_eq_u32 vcc, 0, v{LANE}
        v_mov_b32 v{t6}, s{sB}
        v_lshlrev_b32 v{POA}, 5, v{LANE}
        v_cndmask_b32 v{FA}, v{t5}, v{t6}, vcc
        s_cmp_eq_u32 s{sW}, 0
        s_cbranch_scc0 L_nobin
        s_mov_b32 s{sC}, -40
        s_mov_b32 s{sD}, {HIST}
        v_mov_b32 v116, 1
        """)
        self.binning()
        a(f"""
        s_setprio 0
        s_branch L_bin_done
        L_nobin:
        s_cmp_eq_u32 s{sW}, 1
        s_cbranch_scc0 L_bin_skip
        s_cmp_ge_u32 s{sT}, 128
        s_cbranch_scc1 L_bin_skip
        v_add_u32 v{t5}, {USC}, v{OFFV}
        s_waitcnt vmcnt(0)
        ds_read_b64_tr_b16 {vr(UQ, 2)}, v{t5}
        ds_read_b64_tr_b16 {vr(UQ + 2, 2)}, v{t5} offset:128
        s_lshl_b32 s{sD}, s{sT}, 10
        s_add_u32 s{sD}, s{sD}, {W_UT}
        v_lshlrev_b32 v{t6}, 4, v{LANE}
        s_waitcnt lgkmcnt(0)
        buffer_store_dwordx4 {vr(UQ, 4)}, v{t6}, {sr(sWS, 4)}, s{sD} offen sc1
        s_branch L_bin_done
        L_bin_skip:
        s_cmp_ge_u32 s{sW}, 8
        s_cbranch_scc1 L_bin_done
        s_waitcnt vmcnt(0)
        L_bin_done:
        """)
        self.q["N"] = []

        chunk_slot = [(0, 1, 3)[k % 3] for k in range(12)]
        issue_at = {k: k + 2 for k in range(10) if k != 3}
        k_fa = self.opt("kfa", 1)
        k_pa = self.opt("kpa", 8)
        k_rec = self.opt("krec", 10)
        k_fb = self.opt("kfb", 7)

        for k in range(12):
            acc = ACC if 4 <= k < 8 else AC2
            if k == k_fb:
                self.vmwait({"p", f"c{k}"})
            else:
                self.vmwait({f"c{k}"})
            if k == k_pa + 1:
                self.wave0(lambda: self.poll_wait(W_FA, True))
            self.barrier(f"B{k}", lgkm=False)
            if k == 0:
                self.xreads(0)
            if k == k_fb:
                def fb():
                    a(f"s_mov_b32 s{sB}, {W_FB}")
                    a(f"buffer_store_dwordx2 {vr(TAG, 2)}, v{FA}, {sr(sWS, 4)}, s{sB} offen sc1")
                self.wave0(fb)
            if k == k_pa + 1:
                lab = a.newlabel("ep")
                a(f"""
                s_or_b32 s{sB}, s{sT}, s{sW}
                s_cbranch_scc1 {lab}
                buffer_store_dwordx2 {vr(TAG, 2)}, v{FA}, {sr(sWS, 4)}, 0 offen sc1
                {lab}:
                v_lshrrev_b32 v{RBA}, 2, v{TID}
                s_lshl_b32 s{sB}, s{sT}, 2
                s_add_u32 s{sB}, s{sB}, {W_OFFS}
                v_lshlrev_b32 v{t5}, 10, v{RBA}
                v_mov_b32 v{t6}, {OOB}
                v_cmp_gt_u32 vcc, {NT}, v{RBA}
                v_lshlrev_b32 v{t7}, 1, v{LANE}
                v_cndmask_b32 v{t5}, v{t6}, v{t5}, vcc
                buffer_load_dword v{OFFV}, v{t5}, {sr(sWS, 4)}, s{sB} offen sc1
                s_mov_b32 s{sB}, {512 * 512}
                """)
                self.vm("LN", "offs")
                a(f"v_mov_b64 {vr(W3, 2)}, 0\nv_mov_b64 {vr(W3 + 2, 2)}, 0")
                for r in range(4):
                    a(f"buffer_load_short_d16_hi v{W3 + r}, v{t7}, {sr(sWM, 4)}, s{sB} offen offset:{128 * r}")
                self.vm("LN", "w3", 4)
            self.trreads(chunk_slot[k])
            self.mfmas(acc, k % 4 == 0)
            if k in issue_at:
                self.dma(issue_at[k], chunk_slot[issue_at[k]])
            if k == k_fa:
                def fa():
                    a(f"s_mov_b32 s{sB}, {W_FA}\ns_waitcnt vmcnt(0)")
                    a(f"buffer_store_dwordx2 {vr(TAG, 2)}, v{FA}, {sr(sWS, 4)}, s{sB} offen sc1")
                self.wave0(fa)
            if k == 3:
                for rb in range(3):
                    for h in range(2):
                        a(f"v_pk_mul_f32 {vr(AC2 + 4 * rb + 2 * h, 2)}, {vr(AC2 + 4 * rb + 2 * h, 2)}, {sr(sNL2E, 2)} op_sel_hi:[1,0]")
                    a(f"v_cvt_pk_bf16_f32 v{PQ + 2 * rb}, v{AC2 + 4 * rb}, v{AC2 + 4 * rb + 1}")
                    a(f"v_cvt_pk_bf16_f32 v{PQ + 2 * rb + 1}, v{AC2 + 4 * rb + 2}, v{AC2 + 4 * rb + 3}")
                    a(f"ds_write_b64 v{STG}, {vr(PQ + 2 * rb, 2)} offset:{rb * 8192}")
                self.barrier("PS")
                a(f"""
                ds_read_b128 {vr(PQ, 4)}, v{STR}
                ds_read_b128 {vr(PQ + 4, 4)}, v{STR} offset:16384
                """)
                self.xreads(0)
                a(f"""
                s_mov_b32 s{sB}, {W_P}
                s_waitcnt lgkmcnt(7)
                buffer_store_dwordx4 {vr(PQ, 4)}, v{GO}, {sr(sWS, 4)}, s{sB} offen sc1
                s_waitcnt lgkmcnt(6)
                buffer_store_dwordx4 {vr(PQ + 4, 4)}, v{GO2}, {sr(sWS, 4)}, s{sB} offen sc1
                """)
                self.vm("LN", "p", 2)
                self.dma(5, chunk_slot[5])
            elif k < 11:
                self.xreads((k + 1) % 4)
            if k == 7:
                for h in range(6):
                    a(f"v_pk_mul_f32 {vr(ACC + 2 * h, 2)}, {vr(ACC + 2 * h, 2)}, {sr(sNL2E, 2)} op_sel_hi:[1,0]")
            if k == k_pa:
                self.wave0(lambda: self.poll_issue(W_FA))
            if k == k_rec:
                self.vmwait({"offs"})
                a(f"""
                v_and_b32 v{t5}, 3, v{TID}
                v_mul_u32_u24 v{t4}, {EC * 8}, v{RBA}
                v_and_b32 v{t6}, 0xffff, v{OFFV}
                v_lshrrev_b32 v{t7}, 16, v{OFFV}
                v_add_u32 v{t6}, v{t6}, v{t5}
                v_lshl_add_u32 v{t4}, v{t6}, 3, v{t4}
                v_add_u32 v{RBA}, {W_RECS}, v{t4}
                v_sub_u32 v{CQ}, v{t7}, v{t5}
                v_cmp_lt_u32 vcc, 12, v{t7}
                s_mov_b32 s{sP0}, 0
                s_mov_b32 s{sNP}, 3
                s_mov_b32 s{sFIRST}, 1
                s_mov_b32 s{sMODE}, 0
                """)
                self.rec_issue()
                self.vm("LN", "rec", 3)
                a(f"""
                v_mov_b32 v{t4}, {MISC}
                s_and_saveexec_b64 {sr(sEX, 2)}, vcc
                s_cbranch_execz L_nomax
                ds_max_u32 v{t4}, v{t7}
                s_waitcnt lgkmcnt(0)
                L_nomax:
                s_mov_b64 exec, -1
                """)
        ZQ = 52
        a(f"""
        v_mov_b64 {vr(ZQ, 2)}, 0
        v_mov_b64 {vr(ZQ + 2, 2)}, 0
        v_add_u32 v{t0}, {(AB - PS) & 0xffffffff}, v{STR}
        """)
        self.zero_agg(t0, ZQ)
        a(f"""
        v_and_b32 v{t1}, 15, v{LANE}
        v_lshrrev_b32 v{t2}, 4, v{LANE}
        s_lshl_b32 s{sB}, s{sW}, 6
        v_mul_u32_u24 v{t3}, {QS}, v{t1}
        v_lshl_add_u32 v{t3}, v{t2}, 4, v{t3}
        v_add_u32 v{t3}, s{sB}, v{t3}
        v_cmp_gt_u32 vcc, 8, v{t1}
        """)
        for rb in range(3):
            for h in range(2):
                a(f"v_pk_mul_f32 {vr(AC2 + 4 * rb + 2 * h, 2)}, {vr(AC2 + 4 * rb + 2 * h, 2)}, {sr(sNL2E, 2)} op_sel_hi:[1,0]")
            if rb == 2:
                a("s_mov_b64 exec, vcc")
            a(f"ds_write_b128 v{t3}, {vr(AC2 + 4 * rb, 4)} offset:{QB + rb * 16 * QS}")
        a("s_mov_b64 exec, -1")
        for k in range(4):
            a(f"v_add_u32 v{XA + k}, {(AB - XB) & 0xffffffff}, v{XA + k}")
        a(f"""
        s_lshl_b32 s{sA}, s{sW}, 12
        s_add_u32 s{sSLOT}, s{sA}, {RING}
        s_add_u32 s{sSLOT + 1}, s{sA}, {RING + 1024}
        s_add_u32 s{sSLOT + 2}, s{sA}, {RING + 2048}
        s_add_u32 s{sSLOT + 3}, s{sA}, {RING + 3072}
        v_lshl_add_u32 v{RG}, v{LANE}, 1, s{sSLOT}
        v_and_b32 v{IOF}, 31, v{LANE}
        v_lshlrev_b32 v{IOF}, 4, v{IOF}
        v_lshlrev_b32 v{L4}, 2, v{LANE}
        v_lshlrev_b32 v{L8}, 3, v{LANE}
        s_waitcnt vmcnt(0)
        v_pk_mul_f32 {vr(W3, 2)}, {vr(W3, 2)}, {sr(sNL2E, 2)} op_sel_hi:[1,0]
        v_pk_mul_f32 {vr(W3 + 2, 2)}, {vr(W3 + 2, 2)}, {sr(sNL2E, 2)} op_sel_hi:[1,0]
        s_branch L_round_body
        L_round:
        """)
        self.rec_issue()
        a(f"""
        s_waitcnt vmcnt(0)
        L_round_body:
        v_mov_b32 v{SC}, 1
        """)
        for k in range(3):
            a(f"""
            v_bfe_u32 v{DL4 + k}, v{REC + 2 * k}, 16, 6
            v_lshlrev_b32 v{DL4 + k}, 2, v{DL4 + k}
            v_add_u32 v{SC + 1 + k}, {CNTN}, v{DL4 + k}
            s_mov_b64 exec, {sr(sVAL + 2 * k, 2)}
            ds_add_rtn_u32 v{RANK + k}, v{SC + 1 + k}, v{SC}
            s_mov_b64 exec, -1
            """)
        lab = a.newlabel("pb")
        a(f"s_and_b32 s{sA}, s{sFIRST}, 1\ns_lshl_b32 s{sB}, s{sW}, 1\ns_or_b32 s{sA}, s{sA}, s{sB}\ns_cmp_eq_u32 s{sA}, 1\ns_cbranch_scc0 {lab}")
        self.poll_issue(W_FB)
        a.label(lab)
        self.barrier("C1")
        a(f"""
        v_add_u32 v{SC + 3}, {CNTN}, v{L4}
        v_mov_b32 v{SC + 2}, {MISC}
        ds_read_b32 v{SC}, v{SC + 3}
        ds_read_b32 v{SC + 2}, v{SC + 2}
        v_mov_b64 {vr(SC + 4, 2)}, -1
        s_lshl_b32 s{sA}, s{sW}, 9
        s_add_u32 s{sA}, s{sA}, {SIDE}
        v_add_u32 v{SC + 6}, s{sA}, v{L8}
        ds_write_b64 v{SC + 6}, {vr(SC + 4, 2)}
        s_waitcnt lgkmcnt(1)
        v_mov_b32 v{SC + 1}, v{SC}
        v_readfirstlane_b32 s{sMAXC}, v{SC + 2}
        """)
        self.scan(SC + 1)
        a(f"""
        v_readlane_b32 s{sM}, v{SC + 1}, 63
        v_sub_u32 v{SC + 1}, v{SC + 1}, v{SC}
        s_cmp_eq_u32 s{sNP}, 3
        s_cbranch_scc0 L_lists
        s_cmp_gt_u32 s{sM}, 1024
        s_cbranch_scc1 L_generic
        s_cmp_eq_u32 s{sMAXC}, 0
        s_cbranch_scc0 L_generic
        s_cmp_lt_u32 s{sM}, 64
        s_cbranch_scc0 L_lists
        s_mov_b32 s{sMODE}, 1
        L_lists:
        """)
        for k in range(3):
            a(f"ds_bpermute_b32 v{SC + 4 + k}, v{DL4 + k}, v{SC + 1}")
        for k in range(3):
            a(f"v_lshrrev_b32 v{DL4 + k}, 2, v{DL4 + k}")
        a(f"s_mov_b32 s{sA}, {IL}\ns_mov_b32 s{sB}, {EL}\ns_waitcnt lgkmcnt(0)")
        for k in range(3):
            a(f"""
            v_add_u32 v{RANK + k}, v{RANK + k}, v{SC + 4 + k}
            v_lshl_add_u32 v{SC}, v{RANK + k}, 1, s{sA}
            v_lshl_add_u32 v{SC + 2}, v{RANK + k}, 2, s{sB}
            v_add_u32 v{RANK + k}, {DL}, v{RANK + k}
            s_mov_b64 exec, {sr(sVAL + 2 * k, 2)}
            ds_write_b16 v{SC}, v{REC + 2 * k}
            ds_write_b32 v{SC + 2}, v{REC + 2 * k + 1}
            ds_write_b8 v{RANK + k}, v{DL4 + k}
            s_mov_b64 exec, -1
            """)
        a(f"""
        s_add_u32 s{sA}, s{sM}, 1
        s_lshr_b32 s{sA}, s{sA}, 1
        s_mul_i32 s{sB}, s{sA}, s{sW}
        s_add_u32 s{sC}, s{sB}, s{sA}
        s_lshr_b32 s{sB}, s{sB}, 4
        s_lshr_b32 s{sC}, s{sC}, 4
        s_sub_u32 s{sREM}, s{sC}, s{sB}
        s_lshl_b32 s{sC}, s{sC}, 1
        s_cmp_lt_u32 s{sC}, s{sM}
        s_cselect_b32 s{sCO}, 1, 0
        s_min_u32 s{sC}, s{sC}, s{sM}
        s_lshl_b32 s{sI}, s{sB}, 1
        s_sub_u32 s{sNE}, s{sC}, s{sI}
        v_lshrrev_b32 v{TM}, 5, v{LANE}
        s_lshl_b32 s{sA}, s{sB}, 2
        s_add_u32 s{sA}, s{sA}, {IL}
        v_lshl_add_u32 v{IXA}, v{TM}, 1, s{sA}
        s_add_u32 s{sD}, s{sI}, {DL - 1}
        v_add_u32 v{INFO}, s{sD}, v{LANE}
        s_lshl_b32 s{sA}, s{sB}, 3
        s_add_u32 s{sA}, s{sA}, {EL}
        v_mov_b32 v{EA}, s{sA}
        v_mov_b32 v{IA + 1}, v{IOF}
        """)
        lab = a.newlabel("pb2")
        a(f"s_and_b32 s{sA}, s{sFIRST}, 1\ns_lshl_b32 s{sB}, s{sW}, 1\ns_or_b32 s{sA}, s{sA}, s{sB}\ns_cmp_eq_u32 s{sA}, 1\ns_cbranch_scc0 {lab}")
        self.poll_wait(W_FB, True)
        a.label(lab)
        self.barrier("C2")
        a(f"""
        s_cmp_gt_i32 s{sNE}, 0
        s_cbranch_scc0 L_empty
        """)
        for k in range(5):
            a(f"ds_read_u16 v{PA[1] + k}, v{IXA} offset:{4 * k}")
        a(f"""
        ds_read_u8 v{TM}, v{INFO}
        ds_read_u8 v{TM + 2}, v{INFO} offset:1
        ds_read_u8 v{TM + 1}, v{INFO} offset:2
        ds_read_b64 {vr(EE[0], 2)}, v{EA}
        v_mov_b32 v{TM + 3}, 0
        ds_write_b32 v{SC + 3}, v{TM + 3}
        """)
        if "noprio" not in self.opts:
            a("s_setprio 3")
        for k in range(4):
            a(f"s_waitcnt lgkmcnt({9 - k})")
            a(f"v_mov_b32 v{IA}, v{PA[1] + k}")
            self.gather(k)
        a(f"""
        s_waitcnt lgkmcnt(2)
        v_mov_b32 v{IA}, v{PA[1] + 4}
        v_cmp_ne_u32 {sr(sMASK, 2)}, v{TM + 2}, v{TM + 1}
        v_cmp_eq_u32 vcc, v{TM + 2}, v{TM}
        v_mul_u32_u24 v{INFO}, {QS}, v{TM + 2}
        v_and_b32 v{TM + 1}, 15, v{TM + 2}
        v_lshlrev_b32 v{TM + 1}, 4, v{TM + 1}
        v_lshl_add_u32 v{TM + 1}, v{TM + 2}, 9, v{TM + 1}
        v_add_u32 v{TM + 1}, {AB}, v{TM + 1}
        v_lshl_or_b32 v{INFO}, v{TM + 1}, 16, v{INFO}
        s_sub_u32 s{sA}, s{sNE}, 1
        s_bitcmp0_b64 {sr(sMASK, 2)}, s{sA}
        s_cselect_b32 s{sCO}, s{sCO}, 0
        s_bitset1_b64 {sr(sMASK, 2)}, s{sA}
        v_readfirstlane_b32 s{sB}, v{INFO}
        s_and_b32 s{sC}, vcc_lo, 1
        s_cmp_eq_u32 s{sI}, 0
        s_cselect_b32 s{sC}, 0, s{sC}
        s_cmp_eq_u32 s{sMODE}, 0
        s_cselect_b32 s{sC}, s{sC}, 0
        s_lshl_b32 s{sA}, s{sW}, 9
        s_add_u32 s{sA}, s{sA}, {SIDE}
        s_lshr_b32 s{sD}, s{sB}, 16
        s_cmp_eq_u32 s{sC}, 0
        s_cselect_b32 s{sD}, s{sD}, s{sA}
        s_and_b32 s{sC}, s{sB}, 0xffff
        v_add_u32 v{QA}, s{sC}, v{L4}
        v_xor_b32 v{AG}, s{sD}, v{L8}
        ds_read2st64_b32 {vr(Q, 2)}, v{QA} offset0:0 offset1:1
        ds_read2st64_b32 {vr(Q + 2, 2)}, v{QA} offset0:2 offset1:3
        v_mov_b64 {vr(NN, 2)}, 0
        v_mov_b64 {vr(NN + 2, 2)}, 0
        v_mov_b32 v{DD}, 1.0
        v_mov_b32 v{DD + 1}, 1.0
        v_mov_b32 v{DD + 2}, 1.0
        v_mov_b32 v{DD + 3}, 1.0
        v_mov_b64 {vr(CK2, 2)}, 0
        v_mov_b32 v{CK1}, 0
        s_mov_b32 s{sI}, 0
        s_mov_b32 s{sTRIP}, 0
        """)
        self.stamp("setup")
        a("s_waitcnt vmcnt(3)")
        self.stamp("row0")
        self.p_reads(0, 0)
        a("s_waitcnt lgkmcnt(0)")
        self.gather(0)
        self.u2_loads()
        a(f"""
        s_cmp_eq_u32 s{sMODE}, 0
        s_cbranch_scc0 L_enter_x
        """)
        self.main_loop(False, "L_main_done")
        a.reset_hist()
        a.label("L_main_done")
        a("s_setprio 0")
        self.stamp("loop")
        a(f"""
        v_add_f32 v{CK2}, v{CK2}, v{CK2 + 1}
        v_mov_b32 v{TM}, {BIG}
        v_cmp_u_f32 vcc, v{CK2}, v{CK2}
        v_cmp_nle_f32 s[40:41], v{CK1}, v{TM}
        s_nop 1
        s_or_b64 vcc, vcc, s[40:41]
        s_cbranch_scc0 L_after
        v_mov_b32 v{TM}, {MISC + 4}
        v_mov_b32 v{TM + 1}, 1
        ds_write_b32 v{TM}, v{TM + 1}
        L_after:
        s_mov_b32 s{sFIRST}, 0
        s_waitcnt vmcnt(0)
        """)
        self.barrier("M")
        a(f"""
        v_mov_b32 v{TM}, {MISC + 4}
        ds_read_b32 v{TM + 1}, v{TM}
        """)
        depth = 4

        def rd(s):
            for rb in range(3):
                a(f"ds_read_b128 {vr(XF + 12 * (s % depth) + 4 * rb, 4)}, v{XA + (s & 3)} offset:{rb * 8192 + (s >> 2) * 256}")

        for s in range(depth):
            rd(s)
        a(f"""
        s_cmp_eq_u32 s{sMODE}, 0
        s_cbranch_scc0 L_slow_next
        s_waitcnt lgkmcnt(12)
        v_readfirstlane_b32 s{sA}, v{TM + 1}
        s_nop 1
        s_cmp_eq_u32 s{sA}, 0
        s_cbranch_scc0 L_redo
        L_final:
        """)
        for s in range(8):
            ahead = min(depth - 1, 7 - s)
            a(f"s_waitcnt lgkmcnt({3 * ahead})")
            for rb in range(3):
                a(f"v_mfma_f32_16x16x32_bf16 {vr(ACC + 4 * rb, 4)}, {vr(UF + 4 * s, 4)}, {vr(XF + 12 * (s % depth) + 4 * rb, 4)}, {vr(ACC + 4 * rb, 4)}")
            if s + depth < 8:
                rd(s + depth)
        TE = 104
        for r in range(12):
            a(f"v_exp_f32 v{TE + r}, v{ACC + r}")
        for h in range(6):
            a(f"v_pk_add_f32 {vr(TE + 2 * h, 2)}, {vr(TE + 2 * h, 2)}, 1.0 op_sel_hi:[1,0]")
        for r in range(12):
            a(f"v_rcp_f32 v{TE + r}, v{TE + r}")
        for h in range(6):
            a(f"v_pk_mul_f32 {vr(ACC + 2 * h, 2)}, {vr(ACC + 2 * h, 2)}, {sr(sNLN2, 2)} op_sel_hi:[1,0]")
        for rb in range(3):
            for h in range(2):
                a(f"v_pk_mul_f32 {vr(ACC + 4 * rb + 2 * h, 2)}, {vr(ACC + 4 * rb + 2 * h, 2)}, {vr(TE + 4 * rb + 2 * h, 2)}")
            a(f"v_cvt_pk_bf16_f32 v{PQ + 2 * rb}, v{ACC + 4 * rb}, v{ACC + 4 * rb + 1}")
            a(f"v_cvt_pk_bf16_f32 v{PQ + 2 * rb + 1}, v{ACC + 4 * rb + 2}, v{ACC + 4 * rb + 3}")
            a(f"ds_write_b64 v{STG}, {vr(PQ + 2 * rb, 2)} offset:{rb * 8192}")
        self.barrier("F")
        a(f"""
        ds_read_b128 {vr(PQ + 8, 4)}, v{STR}
        ds_read_b128 {vr(PQ + 12, 4)}, v{STR} offset:16384
        s_waitcnt lgkmcnt(1)
        buffer_store_dwordx4 {vr(PQ + 8, 4)}, v{GO}, {sr(sOUT, 4)}, 0 offen
        s_waitcnt lgkmcnt(0)
        buffer_store_dwordx4 {vr(PQ + 12, 4)}, v{GO2}, {sr(sOUT, 4)}, 0 offen
        """)
        if self.stamps:
            a("s_waitcnt vmcnt(0)")
            self.stamp("end")
            a(f"""
            s_lshl_b32 s{sA}, s{sT}, 4
            s_add_u32 s{sA}, s{sA}, s{sW}
            s_lshl_b32 s{sA}, s{sA}, 8
            s_add_u32 s{sA}, s{sA}, {W_STAMP}
            v_lshlrev_b32 v{TM}, 2, v{LANE}
            buffer_store_dword v{STAMPV}, v{TM}, {sr(sWS, 4)}, s{sA} offen
            """)
        a.label("L_end")
        a("s_endpgm")
        a.reset_hist()
        a(f"""
        L_generic:
        s_waitcnt vmcnt(0) lgkmcnt(0)
        s_barrier
        v_mov_b32 v{SC}, 0
        ds_write_b32 v{SC + 3}, v{SC}
        s_mov_b32 s{sNP}, 1
        s_mov_b32 s{sMODE}, 1
        s_waitcnt lgkmcnt(0)
        s_barrier
        s_branch L_round
        L_empty:
        v_mov_b32 v{TM + 3}, 0
        ds_write_b32 v{SC + 3}, v{TM + 3}
        """)
        self.u2_loads()
        a(f"""
        s_branch L_after
        L_slow_next:
        s_cmp_eq_u32 s{sNP}, 3
        s_cbranch_scc1 L_final
        s_add_u32 s{sP0}, s{sP0}, 1
        s_max_u32 s{sA}, s{sMAXC}, 12
        s_lshl_b32 s{sB}, s{sP0}, 2
        s_cmp_lt_u32 s{sB}, s{sA}
        s_cbranch_scc0 L_final
        s_waitcnt lgkmcnt(0)
        s_branch L_round
        L_redo:
        s_waitcnt lgkmcnt(0)
        s_barrier
        s_mov_b32 s{sMODE}, 1
        v_mov_b64 {vr(XF, 2)}, 0
        v_mov_b64 {vr(XF + 2, 2)}, 0
        v_add_u32 v{XF + 4}, {(AB - PS) & 0xffffffff}, v{STR}
        """)
        self.zero_agg(XF + 4, XF)
        a("s_branch L_round")
        self.main_loop(True, "L_after")

    def text(self):
        hdr = f"""; Fused MPNN edge-MLP kernel: P = x W1 published per tile, edges binned by destination tile,
; @launch grid=({NT},1,1) block=(1024,1,1) lds={LDS_TOTAL}
.amdgcn_target "amdgcn-amd-amdhsa--gfx950"
.text
.globl {NAME}_kernel
.p2align 8
.type {NAME}_kernel,@function
{NAME}_kernel:
"""
        ftr = f""".section .rodata,"a"
.p2align 6
.amdhsa_kernel {NAME}_kernel
  .amdhsa_next_free_vgpr 128
  .amdhsa_next_free_sgpr 102
  .amdhsa_accum_offset 128
  .amdhsa_group_segment_fixed_size 0
  .amdhsa_kernarg_size 72
  .amdhsa_user_sgpr_count 2
  .amdhsa_user_sgpr_kernarg_segment_ptr 1
  .amdhsa_system_sgpr_workgroup_id_x 1
.end_amdhsa_kernel
"""
        return hdr + self.a.text() + ftr


if __name__ == "__main__":
    out = [x for x in sys.argv[1:] if not x.startswith("--")]
    g = Gen(opts=[x[2:] for x in sys.argv[1:] if x.startswith("--")])
    g.build()
    txt = g.text()
    if g.stamps:
        txt = "; stamps: " + ",".join(g.names) + "\n" + txt
    open(out[0] if out else "cdna_kernels/%s.s" % NAME, "w").write(txt)
    print("nops inserted:", g.a.nops, "lines:", len(g.a.lines), "stamps:", g.nstamp)
```

```python
import sys
import struct
from asmlib import Asm

NAME = "gather_scatter__mpnn_edge_mlp__graph"
N, E, D = 10000, 160000, 256
T, NT, EC = 40, 250, 640

SLOT = (0, 32768, 65536, 98304)
XB = 131072
SIDE = XB
HIST, BASE, SORT, USC = 151552, 152576, 153600, 158720
CNTN, MISC = 160768, 161024
IL, EL, DL = 151552, 153664, 157824
QB, QS = 0, 1040
AB = 41984
RING = 65536
PS = 65536
LDS_TOTAL = 163840

W_EPOCH, W_FA, W_FB = 0, 0x1000, 0x3000
W_OFFS, W_RECS, W_UT, W_P = 0x10000, 0x50000, 0x190000, 0x200000
W_STAMP = 0x800000
WS_SIZE = 0xA00000
OOB = 0x80000000
POLL_LIMIT = 200000


def f2u(x):
    return struct.unpack("<I", struct.pack("<f", x))[0]


NLOG2E = f2u(-1.4426950408889634)
NLN2 = f2u(-0.6931471805599453)
BIG = f2u(2.0 ** 120)


def vr(a, n=1):
    return "v%d" % a if n == 1 else "v[%d:%d]" % (a, a + n - 1)


def sr(a, n=1):
    return "s%d" % a if n == 1 else "s[%d:%d]" % (a, a + n - 1)


TID, LANE = 0, 1
XA = 2
STG, GO, GO2, STR = 6, 7, 8, 9
RBA, CQ = 10, 11
ACC = 12
UF = 24
XF, WF = 56, 80
AC2 = 88
TAG, FA, POA, POLLD = 100, 102, 103, 24
WOFF, TR0, TR1, OFFV = 104, 105, 106, 107
STAMPV = 123
W3 = 124
REC, RANK, DL4, SC = 32, 38, 41, 44
PA = (56, 64)
EE = (72, 74)
IA, Q, QE, Y, TT, NN, DD = 76, 78, 86, 90, 94, 98, 102
CK2, CK1 = 106, 108
RG, IXA, EA, QA, AG, L4, L8, INFO, TM, IOF = 109, 110, 111, 112, 113, 114, 115, 116, 117, 122

sT, sW = 2, 3
sX, sWM, sWU, sWS, sP, sOUT, sSRC, sDST, sEA = 4, 8, 12, 16, 20, 24, 28, 32, 36
sNL2E, sNLN2, s4096, sW1K = 58, 60, 62, 63
sMASK, sI, sNE, sREM, sTRIP, sSLOT = 64, 66, 67, 68, 69, 70
sM, sP0, sNP, sMAXC, sFIRST, sMODE = 74, 75, 76, 77, 78, 79
sVAL = 80
sA, sB, sC, sD = 86, 87, 88, 89
sEX = 90
sCO = 48


class Gen:
    def __init__(self, opts=()):
        self.opts = set(opts)
        self.a = Asm()
        self.stamps = "stamps" in self.opts
        self.nstamp = 0
        self.names = []
        self.q = {"L": [], "N": []}

    def opt(self, name, default):
        for o in self.opts:
            if o.startswith(name + "="):
                return int(o.split("=")[1])
        return default

    STAMP_REGS = [92, 94, 96, 98, 100, 50, 54, 28, 30, 32, 34, 36, 38]

    def stamp(self, name):
        if not self.stamps:
            return
        sel = [o[3:].split("+") for o in self.opts if o.startswith("st=")]
        if name not in ("start", "end") and sel and name not in sel[0]:
            return
        k = self.nstamp
        self.nstamp += 1
        self.names.append(name)
        if "dbg" in self.opts:
            self.a(f"s_memrealtime {sr(self.STAMP_REGS[k], 2)}")
            if name == "end":
                a = self.a
                a("s_load_dwordx2 s[40:41], s[0:1], 56\ns_waitcnt lgkmcnt(0)")
                a(f"s_not_b32 s44, s{self.STAMP_REGS[0]}\nv_writelane_b32 v{STAMPV}, s44, 15")
                for i in range(self.nstamp):
                    a(f"v_writelane_b32 v{STAMPV}, s{self.STAMP_REGS[i]}, {i}")
                a(f"""
                s_mov_b32 s42, 64
                s_mov_b32 s43, 0x20000
                v_lshlrev_b32 v{TM}, 2, v{LANE}
                s_cmp_eq_u32 s{sW}, 0
                s_cbranch_scc0 L_end
                buffer_atomic_umax v{STAMPV}, v{TM}, s[40:43], 0 offen
                s_branch L_end
                """)
            return
        if name in ("start", "end"):
            self.a(f"""
            s_memrealtime s[40:41]
            s_waitcnt lgkmcnt(0)
            v_writelane_b32 v{STAMPV}, s40, {0 if name == "start" else 1}
            """)
        self.a(f"s_memtime {sr(self.STAMP_REGS[k], 2)}")
        if name == "end":
            self.a("s_waitcnt lgkmcnt(0)")
            for i in range(self.nstamp):
                self.a(f"v_writelane_b32 v{STAMPV}, s{self.STAMP_REGS[i]}, {32 + i}")

    def vm(self, roles, tag, n=1):
        for r in roles:
            self.q[r] += [tag] * n

    def vmwait(self, tags):
        need = {}
        for r, lst in self.q.items():
            last = max((i for i, t in enumerate(lst) if t in tags), default=None)
            if last is None:
                need[r] = None
            else:
                need[r] = len(lst) - 1 - last
                self.q[r] = lst[last + 1:]
        a = self.a
        if need["L"] == need["N"]:
            if need["L"] is not None:
                a(f"s_waitcnt vmcnt({need['L']})")
            return
        lab = a.newlabel("vw")
        if need["N"] is None:
            a(f"s_cmp_lt_u32 s{sW}, 8\ns_cbranch_scc1 {lab}\ns_waitcnt vmcnt({need['L']})\n{lab}:")
        elif need["L"] is None:
            a(f"s_cmp_ge_u32 s{sW}, 8\ns_cbranch_scc1 {lab}\ns_waitcnt vmcnt({need['N']})\n{lab}:")
        elif need["L"] > need["N"]:
            a(f"s_waitcnt vmcnt({need['L']})\ns_cmp_ge_u32 s{sW}, 8\ns_cbranch_scc1 {lab}\ns_waitcnt vmcnt({need['N']})\n{lab}:")
        else:
            a(f"s_waitcnt vmcnt({need['N']})\ns_cmp_lt_u32 s{sW}, 8\ns_cbranch_scc1 {lab}\ns_waitcnt vmcnt({need['L']})\n{lab}:")

    def barrier(self, name, lgkm=True):
        if lgkm:
            self.a("s_waitcnt lgkmcnt(0)")
        self.a("s_barrier")
        self.stamp(name)

    def dma_body(self, k, slot):
        a = self.a
        srd, base = ((sWM, 0), (sWU, 0), (sWM, 131072))[k // 4]
        c = k % 4
        for m in range(4):
            a(f"""
            s_add_u32 m0, s{sW1K}, {SLOT[slot] + m * 8192}
            s_mov_b32 s{sB}, {base + c * 32768 + m * 8192}
            buffer_load_dwordx4 v{WOFF}, {sr(srd, 4)}, s{sB} offen lds
            """)
        self.vm("L", f"c{k}", 4)

    def dma(self, k, slot):
        a = self.a
        lab = a.newlabel("dma")
        a(f"s_cmp_lt_u32 s{sW}, 8\ns_cbranch_scc1 {lab}")
        self.dma_body(k, slot)
        a.label(lab)

    def xreads(self, c):
        a = self.a
        for sp in range(2):
            s = 2 * c + sp
            for rb in range(3):
                a(f"ds_read_b128 {vr(XF + 12 * sp + 4 * rb, 4)}, v{XA + (s & 3)} offset:{rb * 8192 + (s >> 2) * 256}")

    def trreads(self, slot):
        a = self.a
        base = SLOT[slot]
        tr = TR0 if base < 65536 else TR1
        for sp in range(2):
            for p in range(2):
                a(f"ds_read_b64_tr_b16 {vr(WF + 4 * sp + 2 * p, 2)}, v{tr} offset:{(base & 65535) + 16384 * sp + 2048 * p}")

    def mfmas(self, acc, first):
        a = self.a
        for sp in range(2):
            a(f"s_waitcnt lgkmcnt({2 - 2 * sp})")
            for rb in range(3):
                c = "0" if (first and sp == 0) else vr(acc + 4 * rb, 4)
                a(f"v_mfma_f32_16x16x32_bf16 {vr(acc + 4 * rb, 4)}, {vr(WF + 4 * sp, 4)}, {vr(XF + 12 * sp + 4 * rb, 4)}, {c}")

    def scan(self, v):
        a = self.a
        for sh in (1, 2, 4, 8):
            a(f"v_add_u32_dpp v{v}, v{v}, v{v} row_shr:{sh} row_mask:0xf bank_mask:0xf bound_ctrl:0")
        a(f"v_add_u32_dpp v{v}, v{v}, v{v} row_bcast:15 row_mask:0xa bank_mask:0xf")
        a(f"v_add_u32_dpp v{v}, v{v}, v{v} row_bcast:31 row_mask:0xc bank_mask:0xf")

    def poll_issue(self, base):
        a = self.a
        a(f"s_mov_b32 s{sB}, {base}\ns_mov_b32 s{sD}, {base + 4096}")
        for k in range(4):
            a(f"buffer_load_dwordx2 {vr(POLLD + 2 * k, 2)}, v{POA}, {sr(sWS, 4)}, s{sB if k < 2 else sD} offen offset:{2048 * (k & 1)} sc1")

    def poll_wait(self, base, issued):
        a = self.a
        lp, chk, done = a.newlabel("poll"), a.newlabel("pchk"), a.newlabel("pdone")
        a(f"s_mov_b32 s{sC}, 0")
        if issued:
            a(f"s_branch {chk}")
        a.label(lp)
        self.poll_issue(base)
        a.label(chk)
        m58 = (1 << (NT - 192)) - 1
        a(f"""
        s_waitcnt vmcnt(0)
        v_cmp_ne_u64 s[40:41], {vr(POLLD, 2)}, {vr(TAG, 2)}
        v_cmp_ne_u64 s[42:43], {vr(POLLD + 2, 2)}, {vr(TAG, 2)}
        v_cmp_ne_u64 s[44:45], {vr(POLLD + 4, 2)}, {vr(TAG, 2)}
        v_cmp_ne_u64 s[46:47], {vr(POLLD + 6, 2)}, {vr(TAG, 2)}
        s_nop 1
        s_and_b32 s47, s47, {m58 >> 32}
        s_or_b64 s[40:41], s[40:41], s[42:43]
        s_or_b64 s[44:45], s[44:45], s[46:47]
        s_or_b64 s[40:41], s[40:41], s[44:45]
        s_cbranch_scc0 {done}
        s_add_u32 s{sC}, s{sC}, 1
        s_cmp_lt_u32 s{sC}, {POLL_LIMIT}
        s_cbranch_scc1 {lp}
        """)
        a.label(done)

    def wave0(self, fn):
        a = self.a
        lab = a.newlabel("w0")
        a(f"s_cmp_eq_u32 s{sW}, 0\ns_cbranch_scc0 {lab}")
        fn()
        a.label(lab)

    def edge(self, pb, which, exact, first):
        a = self.a
        if "noedge" in self.opts:
            return
        p = PA[pb] + 4 * which
        sel = "op_sel:[1,0,0] op_sel_hi:[1,1,1]" if which else "op_sel:[0,0,0] op_sel_hi:[0,1,1]"
        y = NN if (first and not exact) else Y
        for h in range(2):
            a(f"v_pk_fma_f32 {vr(QE + 2 * h, 2)}, {vr(EE[pb], 2)}, {vr(W3 + 2 * h, 2)}, {vr(Q + 2 * h, 2)} {sel}")
        for h in range(2):
            a(f"v_pk_add_f32 {vr(y + 2 * h, 2)}, {vr(p + 2 * h, 2)}, {vr(QE + 2 * h, 2)}")
        for r in range(4):
            a(f"v_exp_f32 v{TT + r}, v{y + r}")
        if exact:
            for h in range(2):
                a(f"v_pk_add_f32 {vr(TT + 2 * h, 2)}, {vr(TT + 2 * h, 2)}, 1.0 op_sel_hi:[1,0]")
            for r in range(4):
                a(f"v_rcp_f32 v{TT + r}, v{TT + r}")
            for h in range(2):
                if first:
                    a(f"v_pk_mul_f32 {vr(NN + 2 * h, 2)}, {vr(Y + 2 * h, 2)}, {vr(TT + 2 * h, 2)}")
                else:
                    a(f"v_pk_fma_f32 {vr(NN + 2 * h, 2)}, {vr(Y + 2 * h, 2)}, {vr(TT + 2 * h, 2)}, {vr(NN + 2 * h, 2)}")
        elif first:
            for h in range(2):
                a(f"v_pk_add_f32 {vr(DD + 2 * h, 2)}, {vr(TT + 2 * h, 2)}, 1.0 op_sel_hi:[1,0]")
        else:
            for h in range(2):
                a(f"v_pk_fma_f32 {vr(NN + 2 * h, 2)}, {vr(NN + 2 * h, 2)}, {vr(TT + 2 * h, 2)}, {vr(NN + 2 * h, 2)}")
            for h in range(2):
                a(f"v_pk_fma_f32 {vr(NN + 2 * h, 2)}, {vr(Y + 2 * h, 2)}, {vr(DD + 2 * h, 2)}, {vr(NN + 2 * h, 2)}")
            for h in range(2):
                a(f"v_pk_fma_f32 {vr(DD + 2 * h, 2)}, {vr(DD + 2 * h, 2)}, {vr(TT + 2 * h, 2)}, {vr(DD + 2 * h, 2)}")

    def flush(self, exact, mid=None, final=False):
        a = self.a
        if exact:
            if mid:
                mid()
            a(f"v_cvt_pk_bf16_f32 v{TT}, v{NN}, v{NN + 1}")
            a(f"v_cvt_pk_bf16_f32 v{TT + 1}, v{NN + 2}, v{NN + 3}")
            a(f"ds_pk_add_bf16 v{AG}, v{TT}")
            a(f"ds_pk_add_bf16 v{AG}, v{TT + 1} offset:4")
            return 2
        for r in range(4):
            a(f"v_rcp_f32 v{TT + r}, v{DD + r}")
        if mid:
            mid()
        a(f"v_max3_f32 v{CK1}, v{CK1}, v{DD}, v{DD + 1}")
        a(f"v_max3_f32 v{CK1}, v{CK1}, v{DD + 2}, v{DD + 3}")
        for h in range(2):
            a(f"v_pk_mul_f32 {vr(Y + 2 * h, 2)}, {vr(NN + 2 * h, 2)}, {vr(TT + 2 * h, 2)}")
        for h in range(2):
            a(f"v_pk_fma_f32 {vr(CK2, 2)}, {vr(Y + 2 * h, 2)}, 0, {vr(CK2, 2)} op_sel_hi:[1,0,1]")
        if final:
            a(f"""
            s_cmp_eq_u32 s{sCO}, 0
            s_cbranch_scc1 L_noside
            s_lshl_b32 s{sA}, s{sW}, 9
            s_add_u32 s{sA}, s{sA}, {SIDE + 512}
            v_add_u32 v{QA}, s{sA}, v{L8}
            s_mov_b32 s{sC}, 0
            L_side:
            ds_read_b64 {vr(TT, 2)}, v{QA}
            s_add_u32 s{sC}, s{sC}, 1
            s_waitcnt lgkmcnt(0)
            v_cmp_eq_u64 vcc, -1, {vr(TT, 2)}
            s_cmp_gt_u32 s{sC}, 4000
            s_cbranch_scc1 L_side_go
            s_cbranch_vccnz L_side
            L_side_go:
            v_lshlrev_b32 v{QE}, 16, v{TT}
            v_and_b32 v{QE + 1}, 0xffff0000, v{TT}
            v_lshlrev_b32 v{QE + 2}, 16, v{TT + 1}
            v_and_b32 v{QE + 3}, 0xffff0000, v{TT + 1}
            v_pk_add_f32 {vr(Y, 2)}, {vr(Y, 2)}, {vr(QE, 2)}
            v_pk_add_f32 {vr(Y + 2, 2)}, {vr(Y + 2, 2)}, {vr(QE + 2, 2)}
            L_noside:
            """)
        a(f"v_cvt_pk_bf16_f32 v{TT}, v{Y}, v{Y + 1}")
        a(f"v_cvt_pk_bf16_f32 v{TT + 1}, v{Y + 2}, v{Y + 3}")
        a(f"ds_write_b64 v{AG}, {vr(TT, 2)}")
        return 1

    def p_reads(self, pb, slot):
        a = self.a
        for row in range(2):
            for r in range(4):
                a(f"ds_read_u16_d16_hi v{PA[pb] + 4 * row + r}, v{RG} offset:{slot * 1024 + row * 512 + r * 128}")

    def gather(self, slot):
        a = self.a
        if "nodma" in self.opts:
            return
        a(f"""
        s_mov_b32 m0, s{sSLOT + slot}
        s_cmp_gt_i32 s{sREM}, 0
        s_cselect_b32 s{sP + 2}, {N}, 0
        s_sub_u32 s{sREM}, s{sREM}, 1
        buffer_load_dwordx4 {vr(IA, 2)}, {sr(sP, 4)}, 0 idxen offen sc1 lds
        """)

    def head(self, jj):
        a = self.a
        pb = jj & 1
        w3l = a.newlabel("w3")
        a(f"""
        s_waitcnt vmcnt(11)
        s_cmp_eq_u32 s{sTRIP}, 0
        s_cbranch_scc1 {w3l}
        s_waitcnt vmcnt(3)
        """)
        a.label(w3l)
        self.p_reads(pb ^ 1, (jj + 1) & 3)
        a(f"ds_read_b64 {vr(EE[pb ^ 1], 2)}, v{EA} offset:{8 * (jj + 1)}")
        a(f"ds_read_u16 v{IA}, v{IXA} offset:{4 * (jj + 5)}")

    def main_loop(self, exact, exit_label):
        a = self.a
        tag = "x" if exact else "f"
        loop = f"L_loop_{tag}"
        blocks = []
        a.label(f"L_enter_{tag}")
        self.head(0)
        self.edge(0, 0, exact, False)
        a(f"s_branch L_post_{tag}")
        a.label(loop)
        for jj in range(4):
            pb = jj & 1
            self.head(jj)
            for which in range(2):
                blk, back = f"L_blk_{tag}_{jj}_{which}", f"L_back_{tag}_{jj}_{which}"
                a(f"s_bitcmp1_b32 s{sMASK}, {1 - which}")
                a(f"s_cbranch_scc1 {blk}")
                self.edge(pb, which, exact, False)
                a.label(back)
                if which == 0:
                    a(f"s_lshr_b64 {sr(sMASK, 2)}, {sr(sMASK, 2)}, 2")
                    if jj == 0:
                        a.label(f"L_post_{tag}")
                blocks.append((blk, back, pb, which))
            a("s_waitcnt lgkmcnt(0)")
            self.gather((jj + 1) & 3)
            a(f"s_add_u32 s{sI}, s{sI}, 2")
        a(f"""
        v_add_u32 v{IXA}, 16, v{IXA}
        v_add_u32 v{EA}, 32, v{EA}
        s_mov_b32 s{sTRIP}, 1
        """)
        if not exact and "noprio" not in self.opts:
            t2, t1, t0 = self.opt("p2", 9), self.opt("p1", 5), self.opt("p0", 1)
            a(f"""
            s_cmp_gt_i32 s{sREM}, {t2}
            s_cbranch_scc1 {loop}
            s_setprio 2
            s_cmp_gt_i32 s{sREM}, {t1}
            s_cbranch_scc1 {loop}
            s_setprio 1
            s_cmp_gt_i32 s{sREM}, {t0}
            s_cbranch_scc1 {loop}
            s_setprio 0
            """)
        a(f"s_branch {loop}")
        fin = f"L_fin_{tag}"
        for blk, back, pb, which in blocks:
            a.reset_hist()
            a.label(blk)
            a(f"""
            s_add_u32 s{sA}, s{sI}, {which}
            s_cmp_eq_u32 s{sA}, s{sNE}
            s_cbranch_scc1 {fin}
            v_readlane_b32 s{sB}, v{INFO}, s{sA}
            """)

            def mid():
                a(f"""
                s_and_b32 s{sC}, s{sB}, 0xffff
                s_lshr_b32 s{sD}, s{sB}, 16
                v_add_u32 v{QA}, s{sC}, v{L4}
                ds_read2st64_b32 {vr(Q, 2)}, v{QA} offset0:0 offset1:1
                ds_read2st64_b32 {vr(Q + 2, 2)}, v{QA} offset0:2 offset1:3
                """)

            n = self.flush(exact, mid)
            a(f"""
            v_xor_b32 v{AG}, s{sD}, v{L8}
            s_waitcnt lgkmcnt({n})
            """)
            self.edge(pb, which, exact, True)
            a(f"s_branch {back}")
        a.reset_hist()
        a.label(fin)
        self.flush(exact, final=True)
        a(f"s_branch {exit_label}")

    def zero_agg(self, addr, zq):
        a = self.a
        lab = a.newlabel("zagg")
        a(f"""
        ds_write_b128 v{addr}, {vr(zq, 4)}
        s_cmp_lt_u32 s{sW}, 4
        s_cbranch_scc0 {lab}
        ds_write_b128 v{addr}, {vr(zq, 4)} offset:16384
        {lab}:
        """)

    def u2_loads(self):
        a = self.a
        a(f"""
        s_lshl_b32 s{sA}, s{sW}, 13
        s_add_u32 s{sA}, s{sA}, {W_UT}
        s_add_u32 s{sB}, s{sA}, 4096
        v_lshlrev_b32 v{TM}, 4, v{LANE}
        """)
        for s in range(8):
            so = sA if s < 4 else sB
            a(f"buffer_load_dwordx4 {vr(UF + 4 * s, 4)}, v{TM}, {sr(sWS, 4)}, s{so} offen offset:{(s & 3) * 1024} sc1")

    def rec_issue(self):
        a = self.a
        a(f"""
        s_lshl_b32 s{sA}, s{sP0}, 2
        s_lshl_b32 s{sB}, s{sP0}, 5
        v_mov_b32 v{SC}, {OOB}
        """)
        for k in range(3):
            a(f"v_cmp_lt_i32 {sr(sVAL + 2 * k, 2)}, s{sA}, v{CQ}")
            if k:
                a(f"""
                s_cmp_gt_u32 s{sNP}, {k}
                s_cselect_b64 {sr(sVAL + 2 * k, 2)}, {sr(sVAL + 2 * k, 2)}, 0
                """)
            a(f"""
            s_add_u32 s{sA}, s{sA}, 4
            v_cndmask_b32 v{SC + 1 + k}, v{SC}, v{RBA}, {sr(sVAL + 2 * k, 2)}
            buffer_load_dwordx2 {vr(REC + 2 * k, 2)}, v{SC + 1 + k}, {sr(sWS, 4)}, s{sB} offen offset:{32 * k} sc1
            """)

    def binning(self):
        a = self.a
        DV, SV, EP, RV, AD, RK = 24, 34, 44, 56, 76, 88
        H0, B0, SQ, t4, t5, t6 = 50, 108, 112, 116, 117, 118
        a("s_waitcnt vmcnt(0)")
        self.stamp("edges")
        R10 = range(10)
        for i in R10:
            a(f"v_mul_u32_u24 v{AD + i}, 52429, v{DV + i}")
        for i in R10:
            a(f"v_lshrrev_b32 v{AD + i}, 21, v{AD + i}")
        for i in R10:
            a(f"v_min_u32 v{RK + i}, 255, v{AD + i}")
        for i in R10:
            a(f"v_lshl_add_u32 v{AD + i}, v{RK + i}, 2, s{sD}")
        for i in R10:
            a(f"v_mad_i32_i24 v{DV + i}, v{RK + i}, s{sC}, v{DV + i}")
            a(f"ds_add_rtn_u32 v{RK + i}, v{AD + i}, v{t4}")
        for i in R10:
            a(f"v_lshl_or_b32 v{RV + 2 * i}, v{DV + i}, 16, v{SV + i}")
            if i & 1:
                a(f"v_and_b32 v{RV + 2 * i + 1}, 0xffff0000, v{EP + i // 2}")
            else:
                a(f"v_lshlrev_b32 v{RV + 2 * i + 1}, 16, v{EP + i // 2}")
        a(f"""
        v_lshlrev_b32 v{t5}, 4, v{LANE}
        v_add_u32 v{t6}, {HIST}, v{t5}
        v_add_co_u32 v{TAG}, vcc, 1, v{TAG}
        ds_read_b128 {vr(H0, 4)}, v{t6}
        v_addc_co_u32 v{TAG + 1}, vcc, 0, v{TAG + 1}, vcc
        s_waitcnt lgkmcnt(0)
        v_add_u32 v{B0 + 1}, v{H0}, v{H0 + 1}
        v_add_u32 v{SQ}, v{H0 + 2}, v{H0 + 3}
        v_add_u32 v{SQ}, v{SQ}, v{B0 + 1}
        v_mov_b32 v{t4}, v{SQ}
        """)
        self.scan(t4)
        a(f"""
        v_sub_u32 v{B0}, v{t4}, v{SQ}
        v_add_u32 v{B0 + 2}, v{B0}, v{B0 + 1}
        v_add_u32 v{B0 + 1}, v{B0}, v{H0}
        v_add_u32 v{B0 + 3}, v{B0 + 2}, v{H0 + 2}
        ds_write_b128 v{t6}, {vr(B0, 4)} offset:{BASE - HIST}
        """)
        for i in range(10):
            a(f"ds_read_b32 v{DV + i}, v{AD + i} offset:{BASE - HIST}")
        for i in range(4):
            a(f"v_lshl_or_b32 v{SQ + i}, v{H0 + i}, 16, v{B0 + i}")
        a(f"""
        s_lshl_b32 s{sB}, s{sT}, 10
        s_add_u32 s{sB}, s{sB}, {W_OFFS}
        buffer_store_dwordx4 {vr(SQ, 4)}, v{t5}, {sr(sWS, 4)}, s{sB} offen sc1
        s_mov_b32 s{sD}, {SORT}
        """)
        a("s_waitcnt lgkmcnt(0)")
        for i in R10:
            a(f"v_add_u32 v{DV + i}, v{DV + i}, v{RK + i}")
        for i in R10:
            a(f"v_lshl_add_u32 v{DV + i}, v{DV + i}, 3, s{sD}")
        for i in R10:
            a(f"ds_write_b64 v{DV + i}, {vr(RV + 2 * i, 2)}")
        a(f"""
        v_add_u32 v{t6}, {SORT}, v{t5}
        s_mul_i32 s{sB}, s{sT}, {EC * 8}
        s_add_u32 s{sB}, s{sB}, {W_RECS}
        s_add_u32 s{sD}, s{sB}, 4096
        """)
        for i in range(5):
            a(f"ds_read_b128 {vr(SV + 4 * i, 4)}, v{t6} offset:{1024 * i}")
        for i in range(5):
            a(f"""
            s_waitcnt lgkmcnt({4 - i})
            buffer_store_dwordx4 {vr(SV + 4 * i, 4)}, v{t5}, {sr(sWS, 4)}, s{sB if i < 4 else sD} offen offset:{1024 * (i & 3)} sc1
            """)
        self.stamp("binned")

    def build(self):
        a = self.a
        t0, t1, t2, t3, t4, t5, t6, t7 = range(108, 116)
        PQ = 24
        UQ = 48

        a(f"""
        s_cmp_ge_u32 s{sT}, {NT}
        s_cbranch_scc1 L_end
        s_load_dwordx16 s[40:55], s[0:1], 0
        s_load_dwordx2 s[56:57], s[0:1], 64
        v_and_b32 v{LANE}, 63, v{TID}
        v_lshrrev_b32 v{t0}, 6, v{TID}
        v_mov_b32 v{t6}, 0
        v_lshlrev_b32 v{t7}, 2, v{TID}
        v_readfirstlane_b32 s{sW}, v{t0}
        v_add_u32 v{t7}, {HIST}, v{t7}
        s_cmp_lt_u32 s{sW}, 4
        s_cbranch_scc1 L_z1
        s_cmp_gt_u32 s{sW}, 5
        s_cbranch_scc1 L_z2
        v_add_u32 v{t7}, {CNTN - HIST - 1024}, v{t7}
        L_z1:
        ds_write_b32 v{t7}, v{t6}
        L_z2:
        v_lshrrev_b32 v{t3}, 5, v{TID}
        v_and_b32 v{t4}, 31, v{TID}
        v_and_b32 v{t5}, 15, v{t3}
        v_xor_b32 v{t6}, v{t5}, v{t4}
        v_lshlrev_b32 v{t6}, 4, v{t6}
        s_mul_i32 s{sB}, s{sT}, {T * 512}
        v_lshl_add_u32 v{t6}, v{t3}, 9, v{t6}
        v_add_u32 v{GO}, s{sB}, v{t6}
        v_and_b32 v{t6}, 3, v{t5}
        v_lshrrev_b32 v{t7}, 1, v{t5}
        v_and_b32 v{t7}, 4, v{t7}
        v_or_b32 v{t6}, v{t6}, v{t7}
        v_lshlrev_b32 v{t6}, 1, v{t6}
        v_xor_b32 v{t6}, v{t6}, v{t4}
        v_lshlrev_b32 v{t6}, 4, v{t6}
        v_lshl_add_u32 v{WOFF}, v{t5}, 9, v{t6}
        s_and_b32 s{sW1K}, s{sW}, 7
        s_lshl_b32 s{sW1K}, s{sW1K}, 10
        """)
        if self.stamps:
            a(f"v_mov_b32 v{STAMPV}, 0")
            for r in self.STAMP_REGS[:5]:
                a(f"s_mov_b32 s{r}, 0")
        a("s_waitcnt lgkmcnt(0)")

        def srd(s, p, nbytes):
            a(f"""
            s_mov_b32 s{s}, s{p}
            s_mov_b32 s{s + 1}, s{p + 1}
            s_mov_b32 s{s + 2}, {nbytes}
            s_mov_b32 s{s + 3}, 0x20000
            """)

        srd(sDST, 46, E * 4)
        srd(sSRC, 44, E * 4)
        srd(sEA, 42, E * 2)
        srd(sX, 40, N * 512)
        srd(sWM, 48, 513 * 512)
        srd(sWU, 50, 512 * 512)
        srd(sWS, 56, WS_SIZE)
        a("s_barrier")
        self.stamp("start")
        a(f"""
        s_cmp_ge_u32 s{sW}, 8
        s_cbranch_scc1 L_role_l
        s_cmp_ge_u32 s{sW}, 4
        s_cbranch_scc1 L_role_x
        s_cmp_eq_u32 s{sW}, 0
        s_cbranch_scc0 L_role_u
        s_setprio 3
        v_mul_u32_u24 v{t6}, 40, v{LANE}
        v_mul_u32_u24 v{t7}, 20, v{LANE}
        s_mul_i32 s{sA}, s{sT}, {EC * 4}
        s_mul_i32 s{sB}, s{sT}, {EC * 2}
        buffer_load_dwordx4 v[24:27], v{t6}, {sr(sDST, 4)}, s{sA} offen
        buffer_load_dwordx4 v[28:31], v{t6}, {sr(sDST, 4)}, s{sA} offen offset:16
        buffer_load_dwordx2 v[32:33], v{t6}, {sr(sDST, 4)}, s{sA} offen offset:32
        buffer_load_dwordx4 v[34:37], v{t6}, {sr(sSRC, 4)}, s{sA} offen
        buffer_load_dwordx4 v[38:41], v{t6}, {sr(sSRC, 4)}, s{sA} offen offset:16
        buffer_load_dwordx2 v[42:43], v{t6}, {sr(sSRC, 4)}, s{sA} offen offset:32
        buffer_load_dwordx4 v[44:47], v{t7}, {sr(sEA, 4)}, s{sB} offen
        buffer_load_dword v48, v{t7}, {sr(sEA, 4)}, s{sB} offen offset:16
        v_mov_b32 v{t6}, {W_EPOCH}
        buffer_load_dwordx2 {vr(TAG, 2)}, v{t6}, {sr(sWS, 4)}, 0 offen sc1
        s_branch L_role_done
        L_role_u:
        s_cmp_eq_u32 s{sW}, 1
        s_cbranch_scc0 L_role_done
        s_cmp_ge_u32 s{sT}, 128
        s_cbranch_scc1 L_role_done
        s_mov_b32 m0, {USC}
        s_and_b32 s{sA}, s{sT}, 7
        s_lshl_b32 s{sA}, s{sA}, 5
        s_lshr_b32 s{sB}, s{sT}, 3
        s_lshl_b32 s{sB}, s{sB}, 5
        v_lshrrev_b32 v{t6}, 1, v{LANE}
        v_add_u32 v{t6}, s{sA}, v{t6}
        v_and_b32 v{t7}, 3, v{t6}
        v_lshrrev_b32 v{t6}, 2, v{t6}
        v_lshl_add_u32 v{t6}, v{t7}, 6, v{t6}
        v_add_u32 v{t6}, 256, v{t6}
        v_and_b32 v{t7}, 1, v{LANE}
        v_lshlrev_b32 v{t7}, 4, v{t7}
        v_lshl_add_u32 v{t6}, v{t6}, 9, v{t7}
        buffer_load_dwordx4 v{t6}, {sr(sWU, 4)}, s{sB} offen lds
        s_branch L_role_done
        L_role_x:
        v_subrev_u32 v{t7}, 4096, v{GO}
        v_xor_b32 v{t6}, 0x80, v{t7}
        s_lshl_b32 s{sA}, s{sW}, 10
        """)
        for m in range(5):
            a(f"""
            s_add_u32 m0, s{sA}, {XB - 4096 + 4096 * m}
            s_mov_b32 s{sB}, {4096 * m}
            buffer_load_dwordx4 v{t7 if (m & 1) else t6}, {sr(sX, 4)}, s{sB} offen lds
            """)
        a(f"""
        s_branch L_role_done
        L_role_l:
        """)
        if "nowarm" not in self.opts:
            a(f"""
            s_lshr_b32 s{sA}, s{sT}, 3
            s_lshl_b32 s{sA}, s{sA}, 13
            s_add_u32 s{sA}, s{sA}, s{sW1K}
            v_lshlrev_b32 v{t6}, 4, v{LANE}
            buffer_load_dwordx4 v[24:27], v{t6}, {sr(sWM, 4)}, s{sA} offen
            s_lshr_b32 s{sA}, s{sA}, 1
            s_and_b32 s{sA}, s{sA}, 0x1fe00
            v_lshlrev_b32 v{t7}, 3, v{LANE}
            buffer_load_dwordx2 v[28:29], v{t7}, {sr(sWU, 4)}, s{sA} offen
            """)
        for k in range(2):
            self.dma_body(k, k)
        a.label("L_role_done")
        self.vm("N", "x")
        srd(sOUT, 52, N * 512)
        a(f"""
        s_add_u32 s{sP}, s56, {W_P}
        s_addc_u32 s{sP + 1}, s57, 0
        s_or_b32 s{sP + 1}, s{sP + 1}, {512 << 16}
        s_mov_b32 s{sP + 2}, {N}
        s_mov_b32 s{sP + 3}, 0x20000
        s_mov_b32 s{sNL2E}, {NLOG2E}
        s_mov_b32 s{sNL2E + 1}, {NLOG2E}
        s_mov_b32 s{sNLN2}, {NLN2}
        s_mov_b32 s{sNLN2 + 1}, {NLN2}
        v_and_b32 v{t0}, 15, v{LANE}
        v_lshrrev_b32 v{t1}, 4, v{LANE}
        v_bfe_u32 v{t2}, v{LANE}, 2, 2
        v_and_b32 v{t3}, 3, v{LANE}
        s_lshl_b32 s{sB}, s{sW}, 1
        v_and_b32 v{t4}, 1, v{t1}
        v_lshl_or_b32 v{t4}, v{t4}, 2, v{t2}
        v_lshlrev_b32 v{t4}, 1, v{t4}
        v_lshrrev_b32 v{t5}, 1, v{t3}
        v_add_u32 v{t5}, s{sB}, v{t5}
        v_xor_b32 v{t4}, v{t4}, v{t5}
        v_lshlrev_b32 v{t4}, 4, v{t4}
        v_and_b32 v{t5}, 1, v{t3}
        v_lshl_add_u32 v{t4}, v{t5}, 3, v{t4}
        v_lshl_add_u32 v{t5}, v{t1}, 3, v{t2}
        v_lshl_add_u32 v{TR0}, v{t5}, 9, v{t4}
        v_add_u32 v{TR1}, 65536, v{TR0}
        v_lshlrev_b32 v{t5}, 5, v{t5}
        v_lshl_add_u32 v{OFFV}, v{t3}, 3, v{t5}
        v_lshlrev_b32 v{t5}, 9, v{t0}
        v_add_u32 v{t5}, {XB}, v{t5}
        """)
        for k in range(4):
            a(f"""
            v_add_u32 v{t4}, {4 * k}, v{t1}
            v_xor_b32 v{t4}, v{t4}, v{t0}
            v_lshl_add_u32 v{XA + k}, v{t4}, 4, v{t5}
            """)
        a(f"""
        v_lshrrev_b32 v{t4}, 1, v{t1}
        v_add_u32 v{t4}, s{sB}, v{t4}
        v_xor_b32 v{t4}, v{t4}, v{t0}
        v_lshlrev_b32 v{t4}, 4, v{t4}
        v_and_b32 v{t6}, 1, v{t1}
        v_lshl_add_u32 v{t4}, v{t6}, 3, v{t4}
        v_lshl_add_u32 v{t4}, v{t0}, 9, v{t4}
        v_add_u32 v{STG}, {PS}, v{t4}
        v_lshlrev_b32 v{STR}, 4, v{TID}
        v_add_u32 v{STR}, {PS}, v{STR}
        v_add_u32 v{GO2}, 16384, v{GO}
        s_cmp_lt_u32 s{sW}, 4
        s_cbranch_scc1 L_go2
        v_mov_b32 v{GO2}, {OOB}
        L_go2:
        s_lshl_b32 s{sB}, s{sT}, 5
        v_mov_b32 v{t5}, {OOB}
        v_cmp_eq_u32 vcc, 0, v{LANE}
        v_mov_b32 v{t6}, s{sB}
        v_lshlrev_b32 v{POA}, 5, v{LANE}
        v_cndmask_b32 v{FA}, v{t5}, v{t6}, vcc
        s_cmp_eq_u32 s{sW}, 0
        s_cbranch_scc0 L_nobin
        s_mov_b32 s{sC}, -40
        s_mov_b32 s{sD}, {HIST}
        v_mov_b32 v116, 1
        """)
        self.binning()
        a(f"""
        s_setprio 0
        s_branch L_bin_done
        L_nobin:
        s_cmp_eq_u32 s{sW}, 1
        s_cbranch_scc0 L_bin_skip
        s_cmp_ge_u32 s{sT}, 128
        s_cbranch_scc1 L_bin_skip
        v_add_u32 v{t5}, {USC}, v{OFFV}
        s_waitcnt vmcnt(0)
        ds_read_b64_tr_b16 {vr(UQ, 2)}, v{t5}
        ds_read_b64_tr_b16 {vr(UQ + 2, 2)}, v{t5} offset:128
        s_lshl_b32 s{sD}, s{sT}, 10
        s_add_u32 s{sD}, s{sD}, {W_UT}
        v_lshlrev_b32 v{t6}, 4, v{LANE}
        s_waitcnt lgkmcnt(0)
        buffer_store_dwordx4 {vr(UQ, 4)}, v{t6}, {sr(sWS, 4)}, s{sD} offen sc1
        s_branch L_bin_done
        L_bin_skip:
        s_cmp_ge_u32 s{sW}, 8
        s_cbranch_scc1 L_bin_done
        s_waitcnt vmcnt(0)
        L_bin_done:
        """)
        self.q["N"] = []

        chunk_slot = [(0, 1, 3)[k % 3] for k in range(12)]
        issue_at = {k: k + 2 for k in range(10) if k != 3}
        k_fa = self.opt("kfa", 1)
        k_pa = self.opt("kpa", 8)
        k_rec = self.opt("krec", 10)
        k_fb = self.opt("kfb", 7)

        for k in range(12):
            acc = ACC if 4 <= k < 8 else AC2
            if k == k_fb:
                self.vmwait({"p", f"c{k}"})
            else:
                self.vmwait({f"c{k}"})
            if k == k_pa + 1:
                self.wave0(lambda: self.poll_wait(W_FA, True))
            self.barrier(f"B{k}", lgkm=False)
            if k == 0:
                self.xreads(0)
            if k == k_fb:
                def fb():
                    a(f"s_mov_b32 s{sB}, {W_FB}")
                    a(f"buffer_store_dwordx2 {vr(TAG, 2)}, v{FA}, {sr(sWS, 4)}, s{sB} offen sc1")
                self.wave0(fb)
            if k == k_pa + 1:
                lab = a.newlabel("ep")
                a(f"""
                s_or_b32 s{sB}, s{sT}, s{sW}
                s_cbranch_scc1 {lab}
                buffer_store_dwordx2 {vr(TAG, 2)}, v{FA}, {sr(sWS, 4)}, 0 offen sc1
                {lab}:
                v_lshrrev_b32 v{RBA}, 2, v{TID}
                s_lshl_b32 s{sB}, s{sT}, 2
                s_add_u32 s{sB}, s{sB}, {W_OFFS}
                v_lshlrev_b32 v{t5}, 10, v{RBA}
                v_mov_b32 v{t6}, {OOB}
                v_cmp_gt_u32 vcc, {NT}, v{RBA}
                v_lshlrev_b32 v{t7}, 1, v{LANE}
                v_cndmask_b32 v{t5}, v{t6}, v{t5}, vcc
                buffer_load_dword v{OFFV}, v{t5}, {sr(sWS, 4)}, s{sB} offen sc1
                s_mov_b32 s{sB}, {512 * 512}
                """)
                self.vm("LN", "offs")
                a(f"v_mov_b64 {vr(W3, 2)}, 0\nv_mov_b64 {vr(W3 + 2, 2)}, 0")
                for r in range(4):
                    a(f"buffer_load_short_d16_hi v{W3 + r}, v{t7}, {sr(sWM, 4)}, s{sB} offen offset:{128 * r}")
                self.vm("LN", "w3", 4)
            self.trreads(chunk_slot[k])
            self.mfmas(acc, k % 4 == 0)
            if k in issue_at:
                self.dma(issue_at[k], chunk_slot[issue_at[k]])
            if k == k_fa:
                def fa():
                    a(f"s_mov_b32 s{sB}, {W_FA}\ns_waitcnt vmcnt(0)")
                    a(f"buffer_store_dwordx2 {vr(TAG, 2)}, v{FA}, {sr(sWS, 4)}, s{sB} offen sc1")
                self.wave0(fa)
            if k == 3:
                for rb in range(3):
                    for h in range(2):
                        a(f"v_pk_mul_f32 {vr(AC2 + 4 * rb + 2 * h, 2)}, {vr(AC2 + 4 * rb + 2 * h, 2)}, {sr(sNL2E, 2)} op_sel_hi:[1,0]")
                    a(f"v_cvt_pk_bf16_f32 v{PQ + 2 * rb}, v{AC2 + 4 * rb}, v{AC2 + 4 * rb + 1}")
                    a(f"v_cvt_pk_bf16_f32 v{PQ + 2 * rb + 1}, v{AC2 + 4 * rb + 2}, v{AC2 + 4 * rb + 3}")
                    a(f"ds_write_b64 v{STG}, {vr(PQ + 2 * rb, 2)} offset:{rb * 8192}")
                self.barrier("PS")
                a(f"""
                ds_read_b128 {vr(PQ, 4)}, v{STR}
                ds_read_b128 {vr(PQ + 4, 4)}, v{STR} offset:16384
                """)
                self.xreads(0)
                a(f"""
                s_mov_b32 s{sB}, {W_P}
                s_waitcnt lgkmcnt(7)
                buffer_store_dwordx4 {vr(PQ, 4)}, v{GO}, {sr(sWS, 4)}, s{sB} offen sc1
                s_waitcnt lgkmcnt(6)
                buffer_store_dwordx4 {vr(PQ + 4, 4)}, v{GO2}, {sr(sWS, 4)}, s{sB} offen sc1
                """)
                self.vm("LN", "p", 2)
                self.dma(5, chunk_slot[5])
            elif k < 11:
                self.xreads((k + 1) % 4)
            if k == 7:
                for h in range(6):
                    a(f"v_pk_mul_f32 {vr(ACC + 2 * h, 2)}, {vr(ACC + 2 * h, 2)}, {sr(sNL2E, 2)} op_sel_hi:[1,0]")
            if k == k_pa:
                self.wave0(lambda: self.poll_issue(W_FA))
            if k == k_rec:
                self.vmwait({"offs"})
                a(f"""
                v_and_b32 v{t5}, 3, v{TID}
                v_mul_u32_u24 v{t4}, {EC * 8}, v{RBA}
                v_and_b32 v{t6}, 0xffff, v{OFFV}
                v_lshrrev_b32 v{t7}, 16, v{OFFV}
                v_add_u32 v{t6}, v{t6}, v{t5}
                v_lshl_add_u32 v{t4}, v{t6}, 3, v{t4}
                v_add_u32 v{RBA}, {W_RECS}, v{t4}
                v_sub_u32 v{CQ}, v{t7}, v{t5}
                v_cmp_lt_u32 vcc, 12, v{t7}
                s_mov_b32 s{sP0}, 0
                s_mov_b32 s{sNP}, 3
                s_mov_b32 s{sFIRST}, 1
                s_mov_b32 s{sMODE}, 0
                """)
                self.rec_issue()
                self.vm("LN", "rec", 3)
                a(f"""
                v_mov_b32 v{t4}, {MISC}
                s_and_saveexec_b64 {sr(sEX, 2)}, vcc
                s_cbranch_execz L_nomax
                ds_max_u32 v{t4}, v{t7}
                s_waitcnt lgkmcnt(0)
                L_nomax:
                s_mov_b64 exec, -1
                """)
        ZQ = 52
        a(f"""
        v_mov_b64 {vr(ZQ, 2)}, 0
        v_mov_b64 {vr(ZQ + 2, 2)}, 0
        v_add_u32 v{t0}, {(AB - PS) & 0xffffffff}, v{STR}
        """)
        self.zero_agg(t0, ZQ)
        a(f"""
        v_and_b32 v{t1}, 15, v{LANE}
        v_lshrrev_b32 v{t2}, 4, v{LANE}
        s_lshl_b32 s{sB}, s{sW}, 6
        v_mul_u32_u24 v{t3}, {QS}, v{t1}
        v_lshl_add_u32 v{t3}, v{t2}, 4, v{t3}
        v_add_u32 v{t3}, s{sB}, v{t3}
        v_cmp_gt_u32 vcc, 8, v{t1}
        """)
        for rb in range(3):
            for h in range(2):
                a(f"v_pk_mul_f32 {vr(AC2 + 4 * rb + 2 * h, 2)}, {vr(AC2 + 4 * rb + 2 * h, 2)}, {sr(sNL2E, 2)} op_sel_hi:[1,0]")
            if rb == 2:
                a("s_mov_b64 exec, vcc")
            a(f"ds_write_b128 v{t3}, {vr(AC2 + 4 * rb, 4)} offset:{QB + rb * 16 * QS}")
        a("s_mov_b64 exec, -1")
        for k in range(4):
            a(f"v_add_u32 v{XA + k}, {(AB - XB) & 0xffffffff}, v{XA + k}")
        a(f"""
        s_lshl_b32 s{sA}, s{sW}, 12
        s_add_u32 s{sSLOT}, s{sA}, {RING}
        s_add_u32 s{sSLOT + 1}, s{sA}, {RING + 1024}
        s_add_u32 s{sSLOT + 2}, s{sA}, {RING + 2048}
        s_add_u32 s{sSLOT + 3}, s{sA}, {RING + 3072}
        v_lshl_add_u32 v{RG}, v{LANE}, 1, s{sSLOT}
        v_and_b32 v{IOF}, 31, v{LANE}
        v_lshlrev_b32 v{IOF}, 4, v{IOF}
        v_lshlrev_b32 v{L4}, 2, v{LANE}
        v_lshlrev_b32 v{L8}, 3, v{LANE}
        s_waitcnt vmcnt(0)
        v_pk_mul_f32 {vr(W3, 2)}, {vr(W3, 2)}, {sr(sNL2E, 2)} op_sel_hi:[1,0]
        v_pk_mul_f32 {vr(W3 + 2, 2)}, {vr(W3 + 2, 2)}, {sr(sNL2E, 2)} op_sel_hi:[1,0]
        s_branch L_round_body
        L_round:
        """)
        self.rec_issue()
        a(f"""
        s_waitcnt vmcnt(0)
        L_round_body:
        v_mov_b32 v{SC}, 1
        """)
        for k in range(3):
            a(f"""
            v_bfe_u32 v{DL4 + k}, v{REC + 2 * k}, 16, 6
            v_lshlrev_b32 v{DL4 + k}, 2, v{DL4 + k}
            v_add_u32 v{SC + 1 + k}, {CNTN}, v{DL4 + k}
            s_mov_b64 exec, {sr(sVAL + 2 * k, 2)}
            ds_add_rtn_u32 v{RANK + k}, v{SC + 1 + k}, v{SC}
            s_mov_b64 exec, -1
            """)
        lab = a.newlabel("pb")
        a(f"s_and_b32 s{sA}, s{sFIRST}, 1\ns_lshl_b32 s{sB}, s{sW}, 1\ns_or_b32 s{sA}, s{sA}, s{sB}\ns_cmp_eq_u32 s{sA}, 1\ns_cbranch_scc0 {lab}")
        self.poll_issue(W_FB)
        a.label(lab)
        self.barrier("C1")
        a(f"""
        v_add_u32 v{SC + 3}, {CNTN}, v{L4}
        v_mov_b32 v{SC + 2}, {MISC}
        ds_read_b32 v{SC}, v{SC + 3}
        ds_read_b32 v{SC + 2}, v{SC + 2}
        v_mov_b64 {vr(SC + 4, 2)}, -1
        s_lshl_b32 s{sA}, s{sW}, 9
        s_add_u32 s{sA}, s{sA}, {SIDE}
        v_add_u32 v{SC + 6}, s{sA}, v{L8}
        ds_write_b64 v{SC + 6}, {vr(SC + 4, 2)}
        s_waitcnt lgkmcnt(1)
        v_mov_b32 v{SC + 1}, v{SC}
        v_readfirstlane_b32 s{sMAXC}, v{SC + 2}
        """)
        self.scan(SC + 1)
        a(f"""
        v_readlane_b32 s{sM}, v{SC + 1}, 63
        v_sub_u32 v{SC + 1}, v{SC + 1}, v{SC}
        s_cmp_eq_u32 s{sNP}, 3
        s_cbranch_scc0 L_lists
        s_cmp_gt_u32 s{sM}, 1024
        s_cbranch_scc1 L_generic
        s_cmp_eq_u32 s{sMAXC}, 0
        s_cbranch_scc0 L_generic
        s_cmp_lt_u32 s{sM}, 64
        s_cbranch_scc0 L_lists
        s_mov_b32 s{sMODE}, 1
        L_lists:
        """)
        for k in range(3):
            a(f"ds_bpermute_b32 v{SC + 4 + k}, v{DL4 + k}, v{SC + 1}")
        for k in range(3):
            a(f"v_lshrrev_b32 v{DL4 + k}, 2, v{DL4 + k}")
        a(f"s_mov_b32 s{sA}, {IL}\ns_mov_b32 s{sB}, {EL}\ns_waitcnt lgkmcnt(0)")
        for k in range(3):
            a(f"""
            v_add_u32 v{RANK + k}, v{RANK + k}, v{SC + 4 + k}
            v_lshl_add_u32 v{SC}, v{RANK + k}, 1, s{sA}
            v_lshl_add_u32 v{SC + 2}, v{RANK + k}, 2, s{sB}
            v_add_u32 v{RANK + k}, {DL}, v{RANK + k}
            s_mov_b64 exec, {sr(sVAL + 2 * k, 2)}
            ds_write_b16 v{SC}, v{REC + 2 * k}
            ds_write_b32 v{SC + 2}, v{REC + 2 * k + 1}
            ds_write_b8 v{RANK + k}, v{DL4 + k}
            s_mov_b64 exec, -1
            """)
        a(f"""
        s_add_u32 s{sA}, s{sM}, 1
        s_lshr_b32 s{sA}, s{sA}, 1
        s_mul_i32 s{sB}, s{sA}, s{sW}
        s_add_u32 s{sC}, s{sB}, s{sA}
        s_lshr_b32 s{sB}, s{sB}, 4
        s_lshr_b32 s{sC}, s{sC}, 4
        s_sub_u32 s{sREM}, s{sC}, s{sB}
        s_lshl_b32 s{sC}, s{sC}, 1
        s_cmp_lt_u32 s{sC}, s{sM}
        s_cselect_b32 s{sCO}, 1, 0
        s_min_u32 s{sC}, s{sC}, s{sM}
        s_lshl_b32 s{sI}, s{sB}, 1
        s_sub_u32 s{sNE}, s{sC}, s{sI}
        v_lshrrev_b32 v{TM}, 5, v{LANE}
        s_lshl_b32 s{sA}, s{sB}, 2
        s_add_u32 s{sA}, s{sA}, {IL}
        v_lshl_add_u32 v{IXA}, v{TM}, 1, s{sA}
        s_add_u32 s{sD}, s{sI}, {DL - 1}
        v_add_u32 v{INFO}, s{sD}, v{LANE}
        s_lshl_b32 s{sA}, s{sB}, 3
        s_add_u32 s{sA}, s{sA}, {EL}
        v_mov_b32 v{EA}, s{sA}
        v_mov_b32 v{IA + 1}, v{IOF}
        """)
        lab = a.newlabel("pb2")
        a(f"s_and_b32 s{sA}, s{sFIRST}, 1\ns_lshl_b32 s{sB}, s{sW}, 1\ns_or_b32 s{sA}, s{sA}, s{sB}\ns_cmp_eq_u32 s{sA}, 1\ns_cbranch_scc0 {lab}")
        self.poll_wait(W_FB, True)
        a.label(lab)
        self.barrier("C2")
        a(f"""
        s_cmp_gt_i32 s{sNE}, 0
        s_cbranch_scc0 L_empty
        """)
        for k in range(5):
            a(f"ds_read_u16 v{PA[1] + k}, v{IXA} offset:{4 * k}")
        a(f"""
        ds_read_u8 v{TM}, v{INFO}
        ds_read_u8 v{TM + 2}, v{INFO} offset:1
        ds_read_u8 v{TM + 1}, v{INFO} offset:2
        ds_read_b64 {vr(EE[0], 2)}, v{EA}
        v_mov_b32 v{TM + 3}, 0
        ds_write_b32 v{SC + 3}, v{TM + 3}
        """)
        if "noprio" not in self.opts:
            a("s_setprio 3")
        for k in range(4):
            a(f"s_waitcnt lgkmcnt({9 - k})")
            a(f"v_mov_b32 v{IA}, v{PA[1] + k}")
            self.gather(k)
        a(f"""
        s_waitcnt lgkmcnt(2)
        v_mov_b32 v{IA}, v{PA[1] + 4}
        v_cmp_ne_u32 {sr(sMASK, 2)}, v{TM + 2}, v{TM + 1}
        v_cmp_eq_u32 vcc, v{TM + 2}, v{TM}
        v_mul_u32_u24 v{INFO}, {QS}, v{TM + 2}
        v_and_b32 v{TM + 1}, 15, v{TM + 2}
        v_lshlrev_b32 v{TM + 1}, 4, v{TM + 1}
        v_lshl_add_u32 v{TM + 1}, v{TM + 2}, 9, v{TM + 1}
        v_add_u32 v{TM + 1}, {AB}, v{TM + 1}
        v_lshl_or_b32 v{INFO}, v{TM + 1}, 16, v{INFO}
        s_sub_u32 s{sA}, s{sNE}, 1
        s_bitcmp0_b64 {sr(sMASK, 2)}, s{sA}
        s_cselect_b32 s{sCO}, s{sCO}, 0
        s_bitset1_b64 {sr(sMASK, 2)}, s{sA}
        v_readfirstlane_b32 s{sB}, v{INFO}
        s_and_b32 s{sC}, vcc_lo, 1
        s_cmp_eq_u32 s{sI}, 0
        s_cselect_b32 s{sC}, 0, s{sC}
        s_cmp_eq_u32 s{sMODE}, 0
        s_cselect_b32 s{sC}, s{sC}, 0
        s_lshl_b32 s{sA}, s{sW}, 9
        s_add_u32 s{sA}, s{sA}, {SIDE}
        s_lshr_b32 s{sD}, s{sB}, 16
        s_cmp_eq_u32 s{sC}, 0
        s_cselect_b32 s{sD}, s{sD}, s{sA}
        s_and_b32 s{sC}, s{sB}, 0xffff
        v_add_u32 v{QA}, s{sC}, v{L4}
        v_xor_b32 v{AG}, s{sD}, v{L8}
        ds_read2st64_b32 {vr(Q, 2)}, v{QA} offset0:0 offset1:1
        ds_read2st64_b32 {vr(Q + 2, 2)}, v{QA} offset0:2 offset1:3
        v_mov_b64 {vr(NN, 2)}, 0
        v_mov_b64 {vr(NN + 2, 2)}, 0
        v_mov_b32 v{DD}, 1.0
        v_mov_b32 v{DD + 1}, 1.0
        v_mov_b32 v{DD + 2}, 1.0
        v_mov_b32 v{DD + 3}, 1.0
        v_mov_b64 {vr(CK2, 2)}, 0
        v_mov_b32 v{CK1}, 0
        s_mov_b32 s{sI}, 0
        s_mov_b32 s{sTRIP}, 0
        """)
        self.stamp("setup")
        a("s_waitcnt vmcnt(3)")
        self.stamp("row0")
        self.p_reads(0, 0)
        a("s_waitcnt lgkmcnt(0)")
        self.gather(0)
        self.u2_loads()
        a(f"""
        s_cmp_eq_u32 s{sMODE}, 0
        s_cbranch_scc0 L_enter_x
        """)
        self.main_loop(False, "L_main_done")
        a.reset_hist()
        a.label("L_main_done")
        a("s_setprio 0")
        self.stamp("loop")
        a(f"""
        v_add_f32 v{CK2}, v{CK2}, v{CK2 + 1}
        v_mov_b32 v{TM}, {BIG}
        v_cmp_u_f32 vcc, v{CK2}, v{CK2}
        v_cmp_nle_f32 s[40:41], v{CK1}, v{TM}
        s_nop 1
        s_or_b64 vcc, vcc, s[40:41]
        s_cbranch_scc0 L_after
        v_mov_b32 v{TM}, {MISC + 4}
        v_mov_b32 v{TM + 1}, 1
        ds_write_b32 v{TM}, v{TM + 1}
        L_after:
        s_mov_b32 s{sFIRST}, 0
        s_waitcnt vmcnt(0)
        """)
        self.barrier("M")
        a(f"""
        v_mov_b32 v{TM}, {MISC + 4}
        ds_read_b32 v{TM + 1}, v{TM}
        """)
        depth = 4

        def rd(s):
            for rb in range(3):
                a(f"ds_read_b128 {vr(XF + 12 * (s % depth) + 4 * rb, 4)}, v{XA + (s & 3)} offset:{rb * 8192 + (s >> 2) * 256}")

        for s in range(depth):
            rd(s)
        a(f"""
        s_cmp_eq_u32 s{sMODE}, 0
        s_cbranch_scc0 L_slow_next
        s_waitcnt lgkmcnt(12)
        v_readfirstlane_b32 s{sA}, v{TM + 1}
        s_nop 1
        s_cmp_eq_u32 s{sA}, 0
        s_cbranch_scc0 L_redo
        L_final:
        """)
        for s in range(8):
            ahead = min(depth - 1, 7 - s)
            a(f"s_waitcnt lgkmcnt({3 * ahead})")
            for rb in range(3):
                a(f"v_mfma_f32_16x16x32_bf16 {vr(ACC + 4 * rb, 4)}, {vr(UF + 4 * s, 4)}, {vr(XF + 12 * (s % depth) + 4 * rb, 4)}, {vr(ACC + 4 * rb, 4)}")
            if s + depth < 8:
                rd(s + depth)
        TE = 104
        for r in range(12):
            a(f"v_exp_f32 v{TE + r}, v{ACC + r}")
        for h in range(6):
            a(f"v_pk_add_f32 {vr(TE + 2 * h, 2)}, {vr(TE + 2 * h, 2)}, 1.0 op_sel_hi:[1,0]")
        for r in range(12):
            a(f"v_rcp_f32 v{TE + r}, v{TE + r}")
        for h in range(6):
            a(f"v_pk_mul_f32 {vr(ACC + 2 * h, 2)}, {vr(ACC + 2 * h, 2)}, {sr(sNLN2, 2)} op_sel_hi:[1,0]")
        for rb in range(3):
            for h in range(2):
                a(f"v_pk_mul_f32 {vr(ACC + 4 * rb + 2 * h, 2)}, {vr(ACC + 4 * rb + 2 * h, 2)}, {vr(TE + 4 * rb + 2 * h, 2)}")
            a(f"v_cvt_pk_bf16_f32 v{PQ + 2 * rb}, v{ACC + 4 * rb}, v{ACC + 4 * rb + 1}")
            a(f"v_cvt_pk_bf16_f32 v{PQ + 2 * rb + 1}, v{ACC + 4 * rb + 2}, v{ACC + 4 * rb + 3}")
            a(f"ds_write_b64 v{STG}, {vr(PQ + 2 * rb, 2)} offset:{rb * 8192}")
        self.barrier("F")
        a(f"""
        ds_read_b128 {vr(PQ + 8, 4)}, v{STR}
        ds_read_b128 {vr(PQ + 12, 4)}, v{STR} offset:16384
        s_waitcnt lgkmcnt(1)
        buffer_store_dwordx4 {vr(PQ + 8, 4)}, v{GO}, {sr(sOUT, 4)}, 0 offen
        s_waitcnt lgkmcnt(0)
        buffer_store_dwordx4 {vr(PQ + 12, 4)}, v{GO2}, {sr(sOUT, 4)}, 0 offen
        """)
        if self.stamps:
            a("s_waitcnt vmcnt(0)")
            self.stamp("end")
            a(f"""
            s_lshl_b32 s{sA}, s{sT}, 4
            s_add_u32 s{sA}, s{sA}, s{sW}
            s_lshl_b32 s{sA}, s{sA}, 8
            s_add_u32 s{sA}, s{sA}, {W_STAMP}
            v_lshlrev_b32 v{TM}, 2, v{LANE}
            buffer_store_dword v{STAMPV}, v{TM}, {sr(sWS, 4)}, s{sA} offen
            """)
        a.label("L_end")
        a("s_endpgm")
        a.reset_hist()
        a(f"""
        L_generic:
        s_waitcnt vmcnt(0) lgkmcnt(0)
        s_barrier
        v_mov_b32 v{SC}, 0
        ds_write_b32 v{SC + 3}, v{SC}
        s_mov_b32 s{sNP}, 1
        s_mov_b32 s{sMODE}, 1
        s_waitcnt lgkmcnt(0)
        s_barrier
        s_branch L_round
        L_empty:
        v_mov_b32 v{TM + 3}, 0
        ds_write_b32 v{SC + 3}, v{TM + 3}
        """)
        self.u2_loads()
        a(f"""
        s_branch L_after
        L_slow_next:
        s_cmp_eq_u32 s{sNP}, 3
        s_cbranch_scc1 L_final
        s_add_u32 s{sP0}, s{sP0}, 1
        s_max_u32 s{sA}, s{sMAXC}, 12
        s_lshl_b32 s{sB}, s{sP0}, 2
        s_cmp_lt_u32 s{sB}, s{sA}
        s_cbranch_scc0 L_final
        s_waitcnt lgkmcnt(0)
        s_branch L_round
        L_redo:
        s_waitcnt lgkmcnt(0)
        s_barrier
        s_mov_b32 s{sMODE}, 1
        v_mov_b64 {vr(XF, 2)}, 0
        v_mov_b64 {vr(XF + 2, 2)}, 0
        v_add_u32 v{XF + 4}, {(AB - PS) & 0xffffffff}, v{STR}
        """)
        self.zero_agg(XF + 4, XF)
        a("s_branch L_round")
        self.main_loop(True, "L_after")

    def text(self):
        hdr = f"""; Fused MPNN edge-MLP kernel: P = x W1 published per tile, edges binned by destination tile,
; @launch grid=({NT},1,1) block=(1024,1,1) lds={LDS_TOTAL}
.amdgcn_target "amdgcn-amd-amdhsa--gfx950"
.text
.globl {NAME}_kernel
.p2align 8
.type {NAME}_kernel,@function
{NAME}_kernel:
"""
        ftr = f""".section .rodata,"a"
.p2align 6
.amdhsa_kernel {NAME}_kernel
  .amdhsa_next_free_vgpr 128
  .amdhsa_next_free_sgpr 102
  .amdhsa_accum_offset 128
  .amdhsa_group_segment_fixed_size 0
  .amdhsa_kernarg_size 72
  .amdhsa_user_sgpr_count 2
  .amdhsa_user_sgpr_kernarg_segment_ptr 1
  .amdhsa_system_sgpr_workgroup_id_x 1
.end_amdhsa_kernel
"""
        return hdr + self.a.text() + ftr


if __name__ == "__main__":
    out = [x for x in sys.argv[1:] if not x.startswith("--")]
    g = Gen(opts=[x[2:] for x in sys.argv[1:] if x.startswith("--")])
    g.build()
    txt = g.text()
    if g.stamps:
        txt = "; stamps: " + ",".join(g.names) + "\n" + txt
    open(out[0] if out else "cdna_kernels/%s.s" % NAME, "w").write(txt)
    print("nops inserted:", g.a.nops, "lines:", len(g.a.lines), "stamps:", g.nstamp)
```

```python
import sys
import struct
from asmlib import Asm

NAME = "gather_scatter__mpnn_edge_mlp__graph"
N, E, D = 10000, 160000, 256
T, NT, EC = 40, 250, 640

SLOT = (0, 32768, 65536, 98304)
XB = 131072
SIDE = XB
HIST, BASE, SORT, USC = 151552, 152576, 153600, 158720
CNTN, MISC = 160768, 161024
IL, EL, DL = 151552, 153664, 157824
QB, QS = 0, 1040
AB = 41984
RING = 65536
PS = 65536
LDS_TOTAL = 163840

W_EPOCH, W_FA, W_FB = 0, 0x1000, 0x3000
W_OFFS, W_RECS, W_UT, W_P = 0x10000, 0x50000, 0x190000, 0x200000
W_STAMP = 0x800000
WS_SIZE = 0xA00000
OOB = 0x80000000
POLL_LIMIT = 200000


def f2u(x):
    return struct.unpack("<I", struct.pack("<f", x))[0]


NLOG2E = f2u(-1.4426950408889634)
NLN2 = f2u(-0.6931471805599453)
BIG = f2u(2.0 ** 120)


def vr(a, n=1):
    return "v%d" % a if n == 1 else "v[%d:%d]" % (a, a + n - 1)


def sr(a, n=1):
    return "s%d" % a if n == 1 else "s[%d:%d]" % (a, a + n - 1)


TID, LANE = 0, 1
XA = 2
STG, GO, GO2, STR = 6, 7, 8, 9
RBA, CQ = 10, 11
ACC = 12
UF = 24
XF, WF = 56, 80
AC2 = 88
TAG, FA, POA, POLLD = 100, 102, 103, 24
WOFF, TR0, TR1, OFFV = 104, 105, 106, 107
STAMPV = 123
W3 = 124
NPASS = 4
REC, RANK, DL4, SC = 32, 40, 44, 48
PA = (56, 64)
EE = (72, 74)
IA, Q, QE, Y, TT, NN, DD = 76, 78, 86, 90, 94, 98, 102
CK2, CK1 = 106, 108
RG, IXA, EA, QA, AG, L4, L8, INFO, TM, IOF = 109, 110, 111, 112, 113, 114, 115, 116, 117, 122

sT, sW = 2, 3
sX, sWM, sWU, sWS, sP, sOUT, sSRC, sDST, sEA = 4, 8, 12, 16, 20, 24, 28, 32, 36
sNL2E, sNLN2, s4096, sW1K = 58, 60, 62, 63
sMASK, sI, sNE, sREM, sTRIP, sSLOT = 64, 66, 67, 68, 69, 70
sM, sP0, sNP, sMAXC, sFIRST, sMODE = 74, 75, 76, 77, 78, 79
sVAL = 80
sA, sB, sC, sD = 88, 89, 90, 91
sEX = 46
sCO = 48


class Gen:
    def __init__(self, opts=()):
        self.opts = set(opts)
        self.a = Asm()
        self.stamps = "stamps" in self.opts
        self.nstamp = 0
        self.names = []
        self.q = {"L": [], "N": []}

    def opt(self, name, default):
        for o in self.opts:
            if o.startswith(name + "="):
                return int(o.split("=")[1])
        return default

    STAMP_REGS = [92, 94, 96, 98, 100, 50, 54, 28, 30, 32, 34, 36, 38]

    def stamp(self, name):
        if not self.stamps:
            return
        sel = [o[3:].split("+") for o in self.opts if o.startswith("st=")]
        if name not in ("start", "end") and sel and name not in sel[0]:
            return
        k = self.nstamp
        self.nstamp += 1
        self.names.append(name)
        if "dbg" in self.opts:
            self.a(f"s_memrealtime {sr(self.STAMP_REGS[k], 2)}")
            if name == "end":
                a = self.a
                a("s_load_dwordx2 s[40:41], s[0:1], 56\ns_waitcnt lgkmcnt(0)")
                a(f"s_not_b32 s44, s{self.STAMP_REGS[0]}\nv_writelane_b32 v{STAMPV}, s44, 15")
                for i in range(self.nstamp):
                    a(f"v_writelane_b32 v{STAMPV}, s{self.STAMP_REGS[i]}, {i}")
                a(f"""
                s_mov_b32 s42, 64
                s_mov_b32 s43, 0x20000
                v_lshlrev_b32 v{TM}, 2, v{LANE}
                s_cmp_eq_u32 s{sW}, 0
                s_cbranch_scc0 L_end
                buffer_atomic_umax v{STAMPV}, v{TM}, s[40:43], 0 offen
                s_branch L_end
                """)
            return
        if name in ("start", "end"):
            self.a(f"""
            s_memrealtime s[40:41]
            s_waitcnt lgkmcnt(0)
            v_writelane_b32 v{STAMPV}, s40, {0 if name == "start" else 1}
            """)
        self.a(f"s_memtime {sr(self.STAMP_REGS[k], 2)}")
        if name == "end":
            self.a("s_waitcnt lgkmcnt(0)")
            for i in range(self.nstamp):
                self.a(f"v_writelane_b32 v{STAMPV}, s{self.STAMP_REGS[i]}, {32 + i}")

    def vm(self, roles, tag, n=1):
        for r in roles:
            self.q[r] += [tag] * n

    def vmwait(self, tags):
        need = {}
        for r, lst in self.q.items():
            last = max((i for i, t in enumerate(lst) if t in tags), default=None)
            if last is None:
                need[r] = None
            else:
                need[r] = len(lst) - 1 - last
                self.q[r] = lst[last + 1:]
        a = self.a
        if need["L"] == need["N"]:
            if need["L"] is not None:
                a(f"s_waitcnt vmcnt({need['L']})")
            return
        lab = a.newlabel("vw")
        if need["N"] is None:
            a(f"s_cmp_lt_u32 s{sW}, 8\ns_cbranch_scc1 {lab}\ns_waitcnt vmcnt({need['L']})\n{lab}:")
        elif need["L"] is None:
            a(f"s_cmp_ge_u32 s{sW}, 8\ns_cbranch_scc1 {lab}\ns_waitcnt vmcnt({need['N']})\n{lab}:")
        elif need["L"] > need["N"]:
            a(f"s_waitcnt vmcnt({need['L']})\ns_cmp_ge_u32 s{sW}, 8\ns_cbranch_scc1 {lab}\ns_waitcnt vmcnt({need['N']})\n{lab}:")
        else:
            a(f"s_waitcnt vmcnt({need['N']})\ns_cmp_lt_u32 s{sW}, 8\ns_cbranch_scc1 {lab}\ns_waitcnt vmcnt({need['L']})\n{lab}:")

    def barrier(self, name, lgkm=True):
        if lgkm:
            self.a("s_waitcnt lgkmcnt(0)")
        self.a("s_barrier")
        self.stamp(name)

    def dma_body(self, k, slot):
        a = self.a
        srd, base = ((sWM, 0), (sWU, 0), (sWM, 131072))[k // 4]
        c = k % 4
        for m in range(4):
            a(f"""
            s_add_u32 m0, s{sW1K}, {SLOT[slot] + m * 8192}
            s_mov_b32 s{sB}, {base + c * 32768 + m * 8192}
            buffer_load_dwordx4 v{WOFF}, {sr(srd, 4)}, s{sB} offen lds
            """)
        self.vm("L", f"c{k}", 4)

    def dma(self, k, slot):
        a = self.a
        lab = a.newlabel("dma")
        a(f"s_cmp_lt_u32 s{sW}, 8\ns_cbranch_scc1 {lab}")
        self.dma_body(k, slot)
        a.label(lab)

    def xreads(self, c):
        a = self.a
        for sp in range(2):
            s = 2 * c + sp
            for rb in range(3):
                a(f"ds_read_b128 {vr(XF + 12 * sp + 4 * rb, 4)}, v{XA + (s & 3)} offset:{rb * 8192 + (s >> 2) * 256}")

    def trreads(self, slot):
        a = self.a
        base = SLOT[slot]
        tr = TR0 if base < 65536 else TR1
        for sp in range(2):
            for p in range(2):
                a(f"ds_read_b64_tr_b16 {vr(WF + 4 * sp + 2 * p, 2)}, v{tr} offset:{(base & 65535) + 16384 * sp + 2048 * p}")

    def mfmas(self, acc, first):
        a = self.a
        for sp in range(2):
            a(f"s_waitcnt lgkmcnt({2 - 2 * sp})")
            for rb in range(3):
                c = "0" if (first and sp == 0) else vr(acc + 4 * rb, 4)
                a(f"v_mfma_f32_16x16x32_bf16 {vr(acc + 4 * rb, 4)}, {vr(WF + 4 * sp, 4)}, {vr(XF + 12 * sp + 4 * rb, 4)}, {c}")

    def scan(self, v):
        a = self.a
        for sh in (1, 2, 4, 8):
            a(f"v_add_u32_dpp v{v}, v{v}, v{v} row_shr:{sh} row_mask:0xf bank_mask:0xf bound_ctrl:0")
        a(f"v_add_u32_dpp v{v}, v{v}, v{v} row_bcast:15 row_mask:0xa bank_mask:0xf")
        a(f"v_add_u32_dpp v{v}, v{v}, v{v} row_bcast:31 row_mask:0xc bank_mask:0xf")

    def poll_issue(self, base):
        a = self.a
        a(f"s_mov_b32 s{sB}, {base}\ns_mov_b32 s{sD}, {base + 4096}")
        for k in range(4):
            a(f"buffer_load_dwordx2 {vr(POLLD + 2 * k, 2)}, v{POA}, {sr(sWS, 4)}, s{sB if k < 2 else sD} offen offset:{2048 * (k & 1)} sc1")

    def poll_wait(self, base, issued):
        a = self.a
        lp, chk, done = a.newlabel("poll"), a.newlabel("pchk"), a.newlabel("pdone")
        a(f"s_mov_b32 s{sC}, 0")
        if issued:
            a(f"s_branch {chk}")
        a.label(lp)
        self.poll_issue(base)
        a.label(chk)
        m58 = (1 << (NT - 192)) - 1
        a(f"""
        s_waitcnt vmcnt(0)
        v_cmp_ne_u64 s[40:41], {vr(POLLD, 2)}, {vr(TAG, 2)}
        v_cmp_ne_u64 s[42:43], {vr(POLLD + 2, 2)}, {vr(TAG, 2)}
        v_cmp_ne_u64 s[44:45], {vr(POLLD + 4, 2)}, {vr(TAG, 2)}
        v_cmp_ne_u64 s[46:47], {vr(POLLD + 6, 2)}, {vr(TAG, 2)}
        s_nop 1
        s_and_b32 s47, s47, {m58 >> 32}
        s_or_b64 s[40:41], s[40:41], s[42:43]
        s_or_b64 s[44:45], s[44:45], s[46:47]
        s_or_b64 s[40:41], s[40:41], s[44:45]
        s_cbranch_scc0 {done}
        s_add_u32 s{sC}, s{sC}, 1
        s_cmp_lt_u32 s{sC}, {POLL_LIMIT}
        s_cbranch_scc1 {lp}
        """)
        a.label(done)

    def wave0(self, fn):
        a = self.a
        lab = a.newlabel("w0")
        a(f"s_cmp_eq_u32 s{sW}, 0\ns_cbranch_scc0 {lab}")
        fn()
        a.label(lab)

    def edge(self, pb, which, exact, first):
        a = self.a
        if "noedge" in self.opts:
            return
        p = PA[pb] + 4 * which
        sel = "op_sel:[1,0,0] op_sel_hi:[1,1,1]" if which else "op_sel:[0,0,0] op_sel_hi:[0,1,1]"
        y = NN if (first and not exact) else Y
        for h in range(2):
            a(f"v_pk_fma_f32 {vr(QE + 2 * h, 2)}, {vr(EE[pb], 2)}, {vr(W3 + 2 * h, 2)}, {vr(Q + 2 * h, 2)} {sel}")
        for h in range(2):
            a(f"v_pk_add_f32 {vr(y + 2 * h, 2)}, {vr(p + 2 * h, 2)}, {vr(QE + 2 * h, 2)}")
        for r in range(4):
            a(f"v_exp_f32 v{TT + r}, v{y + r}")
        if exact:
            for h in range(2):
                a(f"v_pk_add_f32 {vr(TT + 2 * h, 2)}, {vr(TT + 2 * h, 2)}, 1.0 op_sel_hi:[1,0]")
            for r in range(4):
                a(f"v_rcp_f32 v{TT + r}, v{TT + r}")
            for h in range(2):
                if first:
                    a(f"v_pk_mul_f32 {vr(NN + 2 * h, 2)}, {vr(Y + 2 * h, 2)}, {vr(TT + 2 * h, 2)}")
                else:
                    a(f"v_pk_fma_f32 {vr(NN + 2 * h, 2)}, {vr(Y + 2 * h, 2)}, {vr(TT + 2 * h, 2)}, {vr(NN + 2 * h, 2)}")
        elif first:
            for h in range(2):
                a(f"v_pk_add_f32 {vr(DD + 2 * h, 2)}, {vr(TT + 2 * h, 2)}, 1.0 op_sel_hi:[1,0]")
        else:
            for h in range(2):
                a(f"v_pk_fma_f32 {vr(NN + 2 * h, 2)}, {vr(NN + 2 * h, 2)}, {vr(TT + 2 * h, 2)}, {vr(NN + 2 * h, 2)}")
            for h in range(2):
                a(f"v_pk_fma_f32 {vr(NN + 2 * h, 2)}, {vr(Y + 2 * h, 2)}, {vr(DD + 2 * h, 2)}, {vr(NN + 2 * h, 2)}")
            for h in range(2):
                a(f"v_pk_fma_f32 {vr(DD + 2 * h, 2)}, {vr(DD + 2 * h, 2)}, {vr(TT + 2 * h, 2)}, {vr(DD + 2 * h, 2)}")

    def flush(self, exact, mid=None, final=False):
        a = self.a
        if exact:
            if mid:
                mid()
            a(f"v_cvt_pk_bf16_f32 v{TT}, v{NN}, v{NN + 1}")
            a(f"v_cvt_pk_bf16_f32 v{TT + 1}, v{NN + 2}, v{NN + 3}")
            a(f"ds_pk_add_bf16 v{AG}, v{TT}")
            a(f"ds_pk_add_bf16 v{AG}, v{TT + 1} offset:4")
            return 2
        for r in range(4):
            a(f"v_rcp_f32 v{TT + r}, v{DD + r}")
        if mid:
            mid()
        a(f"v_max3_f32 v{CK1}, v{CK1}, v{DD}, v{DD + 1}")
        a(f"v_max3_f32 v{CK1}, v{CK1}, v{DD + 2}, v{DD + 3}")
        for h in range(2):
            a(f"v_pk_mul_f32 {vr(Y + 2 * h, 2)}, {vr(NN + 2 * h, 2)}, {vr(TT + 2 * h, 2)}")
        for h in range(2):
            a(f"v_pk_fma_f32 {vr(CK2, 2)}, {vr(Y + 2 * h, 2)}, 0, {vr(CK2, 2)} op_sel_hi:[1,0,1]")
        if final:
            a(f"""
            s_cmp_eq_u32 s{sCO}, 0
            s_cbranch_scc1 L_noside
            s_lshl_b32 s{sA}, s{sW}, 9
            s_add_u32 s{sA}, s{sA}, {SIDE + 512}
            v_add_u32 v{QA}, s{sA}, v{L8}
            s_mov_b32 s{sC}, 0
            L_side:
            ds_read_b64 {vr(TT, 2)}, v{QA}
            s_add_u32 s{sC}, s{sC}, 1
            s_waitcnt lgkmcnt(0)
            v_cmp_eq_u64 vcc, -1, {vr(TT, 2)}
            s_cmp_gt_u32 s{sC}, 4000
            s_cbranch_scc1 L_side_go
            s_cbranch_vccnz L_side
            L_side_go:
            v_lshlrev_b32 v{QE}, 16, v{TT}
            v_and_b32 v{QE + 1}, 0xffff0000, v{TT}
            v_lshlrev_b32 v{QE + 2}, 16, v{TT + 1}
            v_and_b32 v{QE + 3}, 0xffff0000, v{TT + 1}
            v_pk_add_f32 {vr(Y, 2)}, {vr(Y, 2)}, {vr(QE, 2)}
            v_pk_add_f32 {vr(Y + 2, 2)}, {vr(Y + 2, 2)}, {vr(QE + 2, 2)}
            L_noside:
            """)
        a(f"v_cvt_pk_bf16_f32 v{TT}, v{Y}, v{Y + 1}")
        a(f"v_cvt_pk_bf16_f32 v{TT + 1}, v{Y + 2}, v{Y + 3}")
        a(f"ds_write_b64 v{AG}, {vr(TT, 2)}")
        return 1

    def p_reads(self, pb, slot):
        a = self.a
        for row in range(2):
            for r in range(4):
                a(f"ds_read_u16_d16_hi v{PA[pb] + 4 * row + r}, v{RG} offset:{slot * 1024 + row * 512 + r * 128}")

    def gather(self, slot):
        a = self.a
        if "nodma" in self.opts:
            return
        a(f"""
        s_mov_b32 m0, s{sSLOT + slot}
        s_cmp_gt_i32 s{sREM}, 0
        s_cselect_b32 s{sP + 2}, {N}, 0
        s_sub_u32 s{sREM}, s{sREM}, 1
        buffer_load_dwordx4 {vr(IA, 2)}, {sr(sP, 4)}, 0 idxen offen sc1 lds
        """)

    def head(self, jj):
        a = self.a
        pb = jj & 1
        w3l = a.newlabel("w3")
        a(f"""
        s_waitcnt vmcnt(11)
        s_cmp_eq_u32 s{sTRIP}, 0
        s_cbranch_scc1 {w3l}
        s_waitcnt vmcnt(3)
        """)
        a.label(w3l)
        self.p_reads(pb ^ 1, (jj + 1) & 3)
        a(f"ds_read_b64 {vr(EE[pb ^ 1], 2)}, v{EA} offset:{8 * (jj + 1)}")
        a(f"ds_read_u16 v{IA}, v{IXA} offset:{4 * (jj + 5)}")

    def main_loop(self, exact, exit_label):
        a = self.a
        tag = "x" if exact else "f"
        loop = f"L_loop_{tag}"
        blocks = []
        a.label(f"L_enter_{tag}")
        self.head(0)
        self.edge(0, 0, exact, False)
        a(f"s_branch L_post_{tag}")
        a.label(loop)
        for jj in range(4):
            pb = jj & 1
            self.head(jj)
            for which in range(2):
                blk, back = f"L_blk_{tag}_{jj}_{which}", f"L_back_{tag}_{jj}_{which}"
                a(f"s_bitcmp1_b32 s{sMASK}, {1 - which}")
                a(f"s_cbranch_scc1 {blk}")
                self.edge(pb, which, exact, False)
                a.label(back)
                if which == 0:
                    a(f"s_lshr_b64 {sr(sMASK, 2)}, {sr(sMASK, 2)}, 2")
                    if jj == 0:
                        a.label(f"L_post_{tag}")
                blocks.append((blk, back, pb, which))
            a("s_waitcnt lgkmcnt(0)")
            self.gather((jj + 1) & 3)
            a(f"s_add_u32 s{sI}, s{sI}, 2")
        a(f"""
        v_add_u32 v{IXA}, 16, v{IXA}
        v_add_u32 v{EA}, 32, v{EA}
        s_mov_b32 s{sTRIP}, 1
        """)
        if not exact and "noprio" not in self.opts:
            t2, t1, t0 = self.opt("p2", 9), self.opt("p1", 5), self.opt("p0", 1)
            a(f"""
            s_cmp_gt_i32 s{sREM}, {t2}
            s_cbranch_scc1 {loop}
            s_setprio 2
            s_cmp_gt_i32 s{sREM}, {t1}
            s_cbranch_scc1 {loop}
            s_setprio 1
            s_cmp_gt_i32 s{sREM}, {t0}
            s_cbranch_scc1 {loop}
            s_setprio 0
            """)
        a(f"s_branch {loop}")
        fin = f"L_fin_{tag}"
        for blk, back, pb, which in blocks:
            a.reset_hist()
            a.label(blk)
            a(f"""
            s_add_u32 s{sA}, s{sI}, {which}
            s_cmp_eq_u32 s{sA}, s{sNE}
            s_cbranch_scc1 {fin}
            v_readlane_b32 s{sB}, v{INFO}, s{sA}
            """)

            def mid():
                a(f"""
                s_and_b32 s{sC}, s{sB}, 0xffff
                s_lshr_b32 s{sD}, s{sB}, 16
                v_add_u32 v{QA}, s{sC}, v{L4}
                ds_read2st64_b32 {vr(Q, 2)}, v{QA} offset0:0 offset1:1
                ds_read2st64_b32 {vr(Q + 2, 2)}, v{QA} offset0:2 offset1:3
                """)

            n = self.flush(exact, mid)
            a(f"""
            v_xor_b32 v{AG}, s{sD}, v{L8}
            s_waitcnt lgkmcnt({n})
            """)
            self.edge(pb, which, exact, True)
            a(f"s_branch {back}")
        a.reset_hist()
        a.label(fin)
        self.flush(exact, final=True)
        a(f"s_branch {exit_label}")

    def zero_agg(self, addr, zq):
        a = self.a
        lab = a.newlabel("zagg")
        a(f"""
        ds_write_b128 v{addr}, {vr(zq, 4)}
        s_cmp_lt_u32 s{sW}, 4
        s_cbranch_scc0 {lab}
        ds_write_b128 v{addr}, {vr(zq, 4)} offset:16384
        {lab}:
        """)

    def u2_loads(self):
        a = self.a
        a(f"""
        s_lshl_b32 s{sA}, s{sW}, 13
        s_add_u32 s{sA}, s{sA}, {W_UT}
        s_add_u32 s{sB}, s{sA}, 4096
        v_lshlrev_b32 v{TM}, 4, v{LANE}
        """)
        for s in range(8):
            so = sA if s < 4 else sB
            a(f"buffer_load_dwordx4 {vr(UF + 4 * s, 4)}, v{TM}, {sr(sWS, 4)}, s{so} offen offset:{(s & 3) * 1024} sc1")

    def rec_issue(self):
        a = self.a
        a(f"""
        s_lshl_b32 s{sA}, s{sP0}, 2
        s_lshl_b32 s{sB}, s{sP0}, 5
        v_mov_b32 v{SC}, {OOB}
        """)
        for k in range(NPASS):
            a(f"v_cmp_lt_i32 {sr(sVAL + 2 * k, 2)}, s{sA}, v{CQ}")
            if k:
                a(f"""
                s_cmp_gt_u32 s{sNP}, {k}
                s_cselect_b64 {sr(sVAL + 2 * k, 2)}, {sr(sVAL + 2 * k, 2)}, 0
                """)
            a(f"""
            s_add_u32 s{sA}, s{sA}, 4
            v_cndmask_b32 v{SC + 1 + k}, v{SC}, v{RBA}, {sr(sVAL + 2 * k, 2)}
            buffer_load_dwordx2 {vr(REC + 2 * k, 2)}, v{SC + 1 + k}, {sr(sWS, 4)}, s{sB} offen offset:{32 * k} sc1
            """)

    def binning(self):
        a = self.a
        DV, SV, EP, RV, AD, RK = 24, 34, 44, 56, 76, 88
        H0, B0, SQ, t4, t5, t6 = 50, 108, 112, 116, 117, 118
        a("s_waitcnt vmcnt(0)")
        self.stamp("edges")
        R10 = range(10)
        for i in R10:
            a(f"v_mul_u32_u24 v{AD + i}, 52429, v{DV + i}")
        for i in R10:
            a(f"v_lshrrev_b32 v{AD + i}, 21, v{AD + i}")
        for i in R10:
            a(f"v_min_u32 v{RK + i}, 255, v{AD + i}")
        for i in R10:
            a(f"v_lshl_add_u32 v{AD + i}, v{RK + i}, 2, s{sD}")
        for i in R10:
            a(f"v_mad_i32_i24 v{DV + i}, v{RK + i}, s{sC}, v{DV + i}")
            a(f"ds_add_rtn_u32 v{RK + i}, v{AD + i}, v{t4}")
        for i in R10:
            a(f"v_lshl_or_b32 v{RV + 2 * i}, v{DV + i}, 16, v{SV + i}")
            if i & 1:
                a(f"v_and_b32 v{RV + 2 * i + 1}, 0xffff0000, v{EP + i // 2}")
            else:
                a(f"v_lshlrev_b32 v{RV + 2 * i + 1}, 16, v{EP + i // 2}")
        a(f"""
        v_lshlrev_b32 v{t5}, 4, v{LANE}
        v_add_u32 v{t6}, {HIST}, v{t5}
        v_add_co_u32 v{TAG}, vcc, 1, v{TAG}
        ds_read_b128 {vr(H0, 4)}, v{t6}
        v_addc_co_u32 v{TAG + 1}, vcc, 0, v{TAG + 1}, vcc
        s_waitcnt lgkmcnt(0)
        v_add_u32 v{B0 + 1}, v{H0}, v{H0 + 1}
        v_add_u32 v{SQ}, v{H0 + 2}, v{H0 + 3}
        v_add_u32 v{SQ}, v{SQ}, v{B0 + 1}
        v_mov_b32 v{t4}, v{SQ}
        """)
        self.scan(t4)
        a(f"""
        v_sub_u32 v{B0}, v{t4}, v{SQ}
        v_add_u32 v{B0 + 2}, v{B0}, v{B0 + 1}
        v_add_u32 v{B0 + 1}, v{B0}, v{H0}
        v_add_u32 v{B0 + 3}, v{B0 + 2}, v{H0 + 2}
        ds_write_b128 v{t6}, {vr(B0, 4)} offset:{BASE - HIST}
        """)
        for i in range(10):
            a(f"ds_read_b32 v{DV + i}, v{AD + i} offset:{BASE - HIST}")
        for i in range(4):
            a(f"v_lshl_or_b32 v{SQ + i}, v{H0 + i}, 16, v{B0 + i}")
        a(f"""
        s_lshl_b32 s{sB}, s{sT}, 10
        s_add_u32 s{sB}, s{sB}, {W_OFFS}
        buffer_store_dwordx4 {vr(SQ, 4)}, v{t5}, {sr(sWS, 4)}, s{sB} offen sc1
        s_mov_b32 s{sD}, {SORT}
        """)
        a("s_waitcnt lgkmcnt(0)")
        for i in R10:
            a(f"v_add_u32 v{DV + i}, v{DV + i}, v{RK + i}")
        for i in R10:
            a(f"v_lshl_add_u32 v{DV + i}, v{DV + i}, 3, s{sD}")
        for i in R10:
            a(f"ds_write_b64 v{DV + i}, {vr(RV + 2 * i, 2)}")
        a(f"""
        v_add_u32 v{t6}, {SORT}, v{t5}
        s_mul_i32 s{sB}, s{sT}, {EC * 8}
        s_add_u32 s{sB}, s{sB}, {W_RECS}
        s_add_u32 s{sD}, s{sB}, 4096
        """)
        for i in range(5):
            a(f"ds_read_b128 {vr(SV + 4 * i, 4)}, v{t6} offset:{1024 * i}")
        for i in range(5):
            a(f"""
            s_waitcnt lgkmcnt({4 - i})
            buffer_store_dwordx4 {vr(SV + 4 * i, 4)}, v{t5}, {sr(sWS, 4)}, s{sB if i < 4 else sD} offen offset:{1024 * (i & 3)} sc1
            """)
        self.stamp("binned")

    def build(self):
        a = self.a
        t0, t1, t2, t3, t4, t5, t6, t7 = range(108, 116)
        PQ = 24
        UQ = 48

        a(f"""
        s_cmp_ge_u32 s{sT}, {NT}
        s_cbranch_scc1 L_end
        s_load_dwordx16 s[40:55], s[0:1], 0
        s_load_dwordx2 s[56:57], s[0:1], 64
        v_and_b32 v{LANE}, 63, v{TID}
        v_lshrrev_b32 v{t0}, 6, v{TID}
        v_mov_b32 v{t6}, 0
        v_lshlrev_b32 v{t7}, 2, v{TID}
        v_readfirstlane_b32 s{sW}, v{t0}
        v_add_u32 v{t7}, {HIST}, v{t7}
        s_cmp_lt_u32 s{sW}, 4
        s_cbranch_scc1 L_z1
        s_cmp_gt_u32 s{sW}, 5
        s_cbranch_scc1 L_z2
        v_add_u32 v{t7}, {CNTN - HIST - 1024}, v{t7}
        L_z1:
        ds_write_b32 v{t7}, v{t6}
        L_z2:
        v_lshrrev_b32 v{t3}, 5, v{TID}
        v_and_b32 v{t4}, 31, v{TID}
        v_and_b32 v{t5}, 15, v{t3}
        v_xor_b32 v{t6}, v{t5}, v{t4}
        v_lshlrev_b32 v{t6}, 4, v{t6}
        s_mul_i32 s{sB}, s{sT}, {T * 512}
        v_lshl_add_u32 v{t6}, v{t3}, 9, v{t6}
        v_add_u32 v{GO}, s{sB}, v{t6}
        v_and_b32 v{t6}, 3, v{t5}
        v_lshrrev_b32 v{t7}, 1, v{t5}
        v_and_b32 v{t7}, 4, v{t7}
        v_or_b32 v{t6}, v{t6}, v{t7}
        v_lshlrev_b32 v{t6}, 1, v{t6}
        v_xor_b32 v{t6}, v{t6}, v{t4}
        v_lshlrev_b32 v{t6}, 4, v{t6}
        v_lshl_add_u32 v{WOFF}, v{t5}, 9, v{t6}
        s_and_b32 s{sW1K}, s{sW}, 7
        s_lshl_b32 s{sW1K}, s{sW1K}, 10
        """)
        if self.stamps:
            a(f"v_mov_b32 v{STAMPV}, 0")
            for r in self.STAMP_REGS[:5]:
                a(f"s_mov_b32 s{r}, 0")
        a("s_waitcnt lgkmcnt(0)")

        def srd(s, p, nbytes):
            a(f"""
            s_mov_b32 s{s}, s{p}
            s_mov_b32 s{s + 1}, s{p + 1}
            s_mov_b32 s{s + 2}, {nbytes}
            s_mov_b32 s{s + 3}, 0x20000
            """)

        srd(sDST, 46, E * 4)
        srd(sSRC, 44, E * 4)
        srd(sEA, 42, E * 2)
        srd(sX, 40, N * 512)
        srd(sWM, 48, 513 * 512)
        srd(sWU, 50, 512 * 512)
        srd(sWS, 56, WS_SIZE)
        a("s_barrier")
        self.stamp("start")
        a(f"""
        s_cmp_ge_u32 s{sW}, 8
        s_cbranch_scc1 L_role_l
        s_cmp_ge_u32 s{sW}, 4
        s_cbranch_scc1 L_role_x
        s_cmp_eq_u32 s{sW}, 0
        s_cbranch_scc0 L_role_u
        s_setprio 3
        v_mul_u32_u24 v{t6}, 40, v{LANE}
        v_mul_u32_u24 v{t7}, 20, v{LANE}
        s_mul_i32 s{sA}, s{sT}, {EC * 4}
        s_mul_i32 s{sB}, s{sT}, {EC * 2}
        buffer_load_dwordx4 v[24:27], v{t6}, {sr(sDST, 4)}, s{sA} offen
        buffer_load_dwordx4 v[28:31], v{t6}, {sr(sDST, 4)}, s{sA} offen offset:16
        buffer_load_dwordx2 v[32:33], v{t6}, {sr(sDST, 4)}, s{sA} offen offset:32
        buffer_load_dwordx4 v[34:37], v{t6}, {sr(sSRC, 4)}, s{sA} offen
        buffer_load_dwordx4 v[38:41], v{t6}, {sr(sSRC, 4)}, s{sA} offen offset:16
        buffer_load_dwordx2 v[42:43], v{t6}, {sr(sSRC, 4)}, s{sA} offen offset:32
        buffer_load_dwordx4 v[44:47], v{t7}, {sr(sEA, 4)}, s{sB} offen
        buffer_load_dword v48, v{t7}, {sr(sEA, 4)}, s{sB} offen offset:16
        v_mov_b32 v{t6}, {W_EPOCH}
        buffer_load_dwordx2 {vr(TAG, 2)}, v{t6}, {sr(sWS, 4)}, 0 offen sc1
        s_branch L_role_done
        L_role_u:
        s_cmp_eq_u32 s{sW}, 1
        s_cbranch_scc0 L_role_done
        s_cmp_ge_u32 s{sT}, 128
        s_cbranch_scc1 L_role_done
        s_mov_b32 m0, {USC}
        s_and_b32 s{sA}, s{sT}, 7
        s_lshl_b32 s{sA}, s{sA}, 5
        s_lshr_b32 s{sB}, s{sT}, 3
        s_lshl_b32 s{sB}, s{sB}, 5
        v_lshrrev_b32 v{t6}, 1, v{LANE}
        v_add_u32 v{t6}, s{sA}, v{t6}
        v_and_b32 v{t7}, 3, v{t6}
        v_lshrrev_b32 v{t6}, 2, v{t6}
        v_lshl_add_u32 v{t6}, v{t7}, 6, v{t6}
        v_add_u32 v{t6}, 256, v{t6}
        v_and_b32 v{t7}, 1, v{LANE}
        v_lshlrev_b32 v{t7}, 4, v{t7}
        v_lshl_add_u32 v{t6}, v{t6}, 9, v{t7}
        buffer_load_dwordx4 v{t6}, {sr(sWU, 4)}, s{sB} offen lds
        s_branch L_role_done
        L_role_x:
        v_subrev_u32 v{t7}, 4096, v{GO}
        v_xor_b32 v{t6}, 0x80, v{t7}
        s_lshl_b32 s{sA}, s{sW}, 10
        """)
        for m in range(5):
            a(f"""
            s_add_u32 m0, s{sA}, {XB - 4096 + 4096 * m}
            s_mov_b32 s{sB}, {4096 * m}
            buffer_load_dwordx4 v{t7 if (m & 1) else t6}, {sr(sX, 4)}, s{sB} offen lds
            """)
        a(f"""
        s_branch L_role_done
        L_role_l:
        """)
        if "nowarm" not in self.opts:
            a(f"""
            s_lshr_b32 s{sA}, s{sT}, 3
            s_lshl_b32 s{sA}, s{sA}, 13
            s_add_u32 s{sA}, s{sA}, s{sW1K}
            v_lshlrev_b32 v{t6}, 4, v{LANE}
            buffer_load_dwordx4 v[24:27], v{t6}, {sr(sWM, 4)}, s{sA} offen
            s_lshr_b32 s{sA}, s{sA}, 1
            s_and_b32 s{sA}, s{sA}, 0x1fe00
            v_lshlrev_b32 v{t7}, 3, v{LANE}
            buffer_load_dwordx2 v[28:29], v{t7}, {sr(sWU, 4)}, s{sA} offen
            """)
        for k in range(2):
            self.dma_body(k, k)
        a.label("L_role_done")
        self.vm("N", "x")
        srd(sOUT, 52, N * 512)
        a(f"""
        s_add_u32 s{sP}, s56, {W_P}
        s_addc_u32 s{sP + 1}, s57, 0
        s_or_b32 s{sP + 1}, s{sP + 1}, {512 << 16}
        s_mov_b32 s{sP + 2}, {N}
        s_mov_b32 s{sP + 3}, 0x20000
        s_mov_b32 s{sNL2E}, {NLOG2E}
        s_mov_b32 s{sNL2E + 1}, {NLOG2E}
        s_mov_b32 s{sNLN2}, {NLN2}
        s_mov_b32 s{sNLN2 + 1}, {NLN2}
        v_and_b32 v{t0}, 15, v{LANE}
        v_lshrrev_b32 v{t1}, 4, v{LANE}
        v_bfe_u32 v{t2}, v{LANE}, 2, 2
        v_and_b32 v{t3}, 3, v{LANE}
        s_lshl_b32 s{sB}, s{sW}, 1
        v_and_b32 v{t4}, 1, v{t1}
        v_lshl_or_b32 v{t4}, v{t4}, 2, v{t2}
        v_lshlrev_b32 v{t4}, 1, v{t4}
        v_lshrrev_b32 v{t5}, 1, v{t3}
        v_add_u32 v{t5}, s{sB}, v{t5}
        v_xor_b32 v{t4}, v{t4}, v{t5}
        v_lshlrev_b32 v{t4}, 4, v{t4}
        v_and_b32 v{t5}, 1, v{t3}
        v_lshl_add_u32 v{t4}, v{t5}, 3, v{t4}
        v_lshl_add_u32 v{t5}, v{t1}, 3, v{t2}
        v_lshl_add_u32 v{TR0}, v{t5}, 9, v{t4}
        v_add_u32 v{TR1}, 65536, v{TR0}
        v_lshlrev_b32 v{t5}, 5, v{t5}
        v_lshl_add_u32 v{OFFV}, v{t3}, 3, v{t5}
        v_lshlrev_b32 v{t5}, 9, v{t0}
        v_add_u32 v{t5}, {XB}, v{t5}
        """)
        for k in range(4):
            a(f"""
            v_add_u32 v{t4}, {4 * k}, v{t1}
            v_xor_b32 v{t4}, v{t4}, v{t0}
            v_lshl_add_u32 v{XA + k}, v{t4}, 4, v{t5}
            """)
        a(f"""
        v_lshrrev_b32 v{t4}, 1, v{t1}
        v_add_u32 v{t4}, s{sB}, v{t4}
        v_xor_b32 v{t4}, v{t4}, v{t0}
        v_lshlrev_b32 v{t4}, 4, v{t4}
        v_and_b32 v{t6}, 1, v{t1}
        v_lshl_add_u32 v{t4}, v{t6}, 3, v{t4}
        v_lshl_add_u32 v{t4}, v{t0}, 9, v{t4}
        v_add_u32 v{STG}, {PS}, v{t4}
        v_lshlrev_b32 v{STR}, 4, v{TID}
        v_add_u32 v{STR}, {PS}, v{STR}
        v_add_u32 v{GO2}, 16384, v{GO}
        s_cmp_lt_u32 s{sW}, 4
        s_cbranch_scc1 L_go2
        v_mov_b32 v{GO2}, {OOB}
        L_go2:
        s_lshl_b32 s{sB}, s{sT}, 5
        v_mov_b32 v{t5}, {OOB}
        v_cmp_eq_u32 vcc, 0, v{LANE}
        v_mov_b32 v{t6}, s{sB}
        v_lshlrev_b32 v{POA}, 5, v{LANE}
        v_cndmask_b32 v{FA}, v{t5}, v{t6}, vcc
        s_cmp_eq_u32 s{sW}, 0
        s_cbranch_scc0 L_nobin
        s_mov_b32 s{sC}, -40
        s_mov_b32 s{sD}, {HIST}
        v_mov_b32 v116, 1
        """)
        self.binning()
        a(f"""
        s_setprio 0
        s_branch L_bin_done
        L_nobin:
        s_cmp_eq_u32 s{sW}, 1
        s_cbranch_scc0 L_bin_skip
        s_cmp_ge_u32 s{sT}, 128
        s_cbranch_scc1 L_bin_skip
        v_add_u32 v{t5}, {USC}, v{OFFV}
        s_waitcnt vmcnt(0)
        ds_read_b64_tr_b16 {vr(UQ, 2)}, v{t5}
        ds_read_b64_tr_b16 {vr(UQ + 2, 2)}, v{t5} offset:128
        s_lshl_b32 s{sD}, s{sT}, 10
        s_add_u32 s{sD}, s{sD}, {W_UT}
        v_lshlrev_b32 v{t6}, 4, v{LANE}
        s_waitcnt lgkmcnt(0)
        buffer_store_dwordx4 {vr(UQ, 4)}, v{t6}, {sr(sWS, 4)}, s{sD} offen sc1
        s_branch L_bin_done
        L_bin_skip:
        s_cmp_ge_u32 s{sW}, 8
        s_cbranch_scc1 L_bin_done
        s_waitcnt vmcnt(0)
        L_bin_done:
        """)
        self.q["N"] = []

        chunk_slot = [(0, 1, 3)[k % 3] for k in range(12)]
        issue_at = {k: k + 2 for k in range(10) if k != 3}
        k_fa = self.opt("kfa", 1)
        k_pa = self.opt("kpa", 8)
        k_rec = self.opt("krec", 10)
        k_fb = self.opt("kfb", 7)

        for k in range(12):
            acc = ACC if 4 <= k < 8 else AC2
            if k == k_fb:
                self.vmwait({"p", f"c{k}"})
            else:
                self.vmwait({f"c{k}"})
            if k == k_pa + 1:
                self.wave0(lambda: self.poll_wait(W_FA, True))
            self.barrier(f"B{k}", lgkm=False)
            if k == 0:
                self.xreads(0)
            if k == k_fb:
                def fb():
                    a(f"s_mov_b32 s{sB}, {W_FB}")
                    a(f"buffer_store_dwordx2 {vr(TAG, 2)}, v{FA}, {sr(sWS, 4)}, s{sB} offen sc1")
                self.wave0(fb)
            if k == k_pa + 1:
                lab = a.newlabel("ep")
                a(f"""
                s_or_b32 s{sB}, s{sT}, s{sW}
                s_cbranch_scc1 {lab}
                buffer_store_dwordx2 {vr(TAG, 2)}, v{FA}, {sr(sWS, 4)}, 0 offen sc1
                {lab}:
                v_lshrrev_b32 v{RBA}, 2, v{TID}
                s_lshl_b32 s{sB}, s{sT}, 2
                s_add_u32 s{sB}, s{sB}, {W_OFFS}
                v_lshlrev_b32 v{t5}, 10, v{RBA}
                v_mov_b32 v{t6}, {OOB}
                v_cmp_gt_u32 vcc, {NT}, v{RBA}
                v_lshlrev_b32 v{t7}, 1, v{LANE}
                v_cndmask_b32 v{t5}, v{t6}, v{t5}, vcc
                buffer_load_dword v{OFFV}, v{t5}, {sr(sWS, 4)}, s{sB} offen sc1
                s_mov_b32 s{sB}, {512 * 512}
                """)
                self.vm("LN", "offs")
                a(f"v_mov_b64 {vr(W3, 2)}, 0\nv_mov_b64 {vr(W3 + 2, 2)}, 0")
                for r in range(4):
                    a(f"buffer_load_short_d16_hi v{W3 + r}, v{t7}, {sr(sWM, 4)}, s{sB} offen offset:{128 * r}")
                self.vm("LN", "w3", 4)
            self.trreads(chunk_slot[k])
            self.mfmas(acc, k % 4 == 0)
            if k in issue_at:
                self.dma(issue_at[k], chunk_slot[issue_at[k]])
            if k == k_fa:
                def fa():
                    a(f"s_mov_b32 s{sB}, {W_FA}\ns_waitcnt vmcnt(0)")
                    a(f"buffer_store_dwordx2 {vr(TAG, 2)}, v{FA}, {sr(sWS, 4)}, s{sB} offen sc1")
                self.wave0(fa)
            if k == 3:
                for rb in range(3):
                    for h in range(2):
                        a(f"v_pk_mul_f32 {vr(AC2 + 4 * rb + 2 * h, 2)}, {vr(AC2 + 4 * rb + 2 * h, 2)}, {sr(sNL2E, 2)} op_sel_hi:[1,0]")
                    a(f"v_cvt_pk_bf16_f32 v{PQ + 2 * rb}, v{AC2 + 4 * rb}, v{AC2 + 4 * rb + 1}")
                    a(f"v_cvt_pk_bf16_f32 v{PQ + 2 * rb + 1}, v{AC2 + 4 * rb + 2}, v{AC2 + 4 * rb + 3}")
                    a(f"ds_write_b64 v{STG}, {vr(PQ + 2 * rb, 2)} offset:{rb * 8192}")
                self.barrier("PS")
                a(f"""
                ds_read_b128 {vr(PQ, 4)}, v{STR}
                ds_read_b128 {vr(PQ + 4, 4)}, v{STR} offset:16384
                """)
                self.xreads(0)
                a(f"""
                s_mov_b32 s{sB}, {W_P}
                s_waitcnt lgkmcnt(7)
                buffer_store_dwordx4 {vr(PQ, 4)}, v{GO}, {sr(sWS, 4)}, s{sB} offen sc1
                s_waitcnt lgkmcnt(6)
                buffer_store_dwordx4 {vr(PQ + 4, 4)}, v{GO2}, {sr(sWS, 4)}, s{sB} offen sc1
                """)
                self.vm("LN", "p", 2)
                self.dma(5, chunk_slot[5])
            elif k < 11:
                self.xreads((k + 1) % 4)
            if k == 7:
                for h in range(6):
                    a(f"v_pk_mul_f32 {vr(ACC + 2 * h, 2)}, {vr(ACC + 2 * h, 2)}, {sr(sNL2E, 2)} op_sel_hi:[1,0]")
            if k == k_pa:
                self.wave0(lambda: self.poll_issue(W_FA))
            if k == k_rec:
                self.vmwait({"offs"})
                a(f"""
                v_and_b32 v{t5}, 3, v{TID}
                v_mul_u32_u24 v{t4}, {EC * 8}, v{RBA}
                v_and_b32 v{t6}, 0xffff, v{OFFV}
                v_lshrrev_b32 v{t7}, 16, v{OFFV}
                v_add_u32 v{t6}, v{t6}, v{t5}
                v_lshl_add_u32 v{t4}, v{t6}, 3, v{t4}
                v_add_u32 v{RBA}, {W_RECS}, v{t4}
                v_sub_u32 v{CQ}, v{t7}, v{t5}
                v_cmp_lt_u32 vcc, {4 * NPASS}, v{t7}
                s_mov_b32 s{sP0}, 0
                s_mov_b32 s{sNP}, {NPASS}
                s_mov_b32 s{sFIRST}, 1
                s_mov_b32 s{sMODE}, 0
                """)
                self.rec_issue()
                self.vm("LN", "rec", NPASS)
                a(f"""
                v_mov_b32 v{t4}, {MISC}
                s_and_saveexec_b64 {sr(sEX, 2)}, vcc
                s_cbranch_execz L_nomax
                ds_max_u32 v{t4}, v{t7}
                s_waitcnt lgkmcnt(0)
                L_nomax:
                s_mov_b64 exec, -1
                """)
        ZQ = 24
        a(f"""
        v_mov_b64 {vr(ZQ, 2)}, 0
        v_mov_b64 {vr(ZQ + 2, 2)}, 0
        v_add_u32 v{t0}, {(AB - PS) & 0xffffffff}, v{STR}
        """)
        self.zero_agg(t0, ZQ)
        a(f"""
        v_and_b32 v{t1}, 15, v{LANE}
        v_lshrrev_b32 v{t2}, 4, v{LANE}
        s_lshl_b32 s{sB}, s{sW}, 6
        v_mul_u32_u24 v{t3}, {QS}, v{t1}
        v_lshl_add_u32 v{t3}, v{t2}, 4, v{t3}
        v_add_u32 v{t3}, s{sB}, v{t3}
        v_cmp_gt_u32 vcc, 8, v{t1}
        """)
        for rb in range(3):
            for h in range(2):
                a(f"v_pk_mul_f32 {vr(AC2 + 4 * rb + 2 * h, 2)}, {vr(AC2 + 4 * rb + 2 * h, 2)}, {sr(sNL2E, 2)} op_sel_hi:[1,0]")
            if rb == 2:
                a("s_mov_b64 exec, vcc")
            a(f"ds_write_b128 v{t3}, {vr(AC2 + 4 * rb, 4)} offset:{QB + rb * 16 * QS}")
        a("s_mov_b64 exec, -1")
        for k in range(4):
            a(f"v_add_u32 v{XA + k}, {(AB - XB) & 0xffffffff}, v{XA + k}")
        a(f"""
        s_lshl_b32 s{sA}, s{sW}, 12
        s_add_u32 s{sSLOT}, s{sA}, {RING}
        s_add_u32 s{sSLOT + 1}, s{sA}, {RING + 1024}
        s_add_u32 s{sSLOT + 2}, s{sA}, {RING + 2048}
        s_add_u32 s{sSLOT + 3}, s{sA}, {RING + 3072}
        v_lshl_add_u32 v{RG}, v{LANE}, 1, s{sSLOT}
        v_and_b32 v{IOF}, 31, v{LANE}
        v_lshlrev_b32 v{IOF}, 4, v{IOF}
        v_lshlrev_b32 v{L4}, 2, v{LANE}
        v_lshlrev_b32 v{L8}, 3, v{LANE}
        s_waitcnt vmcnt(0)
        v_pk_mul_f32 {vr(W3, 2)}, {vr(W3, 2)}, {sr(sNL2E, 2)} op_sel_hi:[1,0]
        v_pk_mul_f32 {vr(W3 + 2, 2)}, {vr(W3 + 2, 2)}, {sr(sNL2E, 2)} op_sel_hi:[1,0]
        s_branch L_round_body
        L_round:
        """)
        self.rec_issue()
        a(f"""
        s_waitcnt vmcnt(0)
        L_round_body:
        v_mov_b32 v{SC}, 1
        """)
        for k in range(NPASS):
            a(f"""
            v_bfe_u32 v{DL4 + k}, v{REC + 2 * k}, 16, 6
            v_lshlrev_b32 v{DL4 + k}, 2, v{DL4 + k}
            v_add_u32 v{SC + 1 + k}, {CNTN}, v{DL4 + k}
            s_mov_b64 exec, {sr(sVAL + 2 * k, 2)}
            ds_add_rtn_u32 v{RANK + k}, v{SC + 1 + k}, v{SC}
            s_mov_b64 exec, -1
            """)
        lab = a.newlabel("pb")
        a(f"s_and_b32 s{sA}, s{sFIRST}, 1\ns_lshl_b32 s{sB}, s{sW}, 1\ns_or_b32 s{sA}, s{sA}, s{sB}\ns_cmp_eq_u32 s{sA}, 1\ns_cbranch_scc0 {lab}")
        self.poll_issue(W_FB)
        a.label(lab)
        self.barrier("C1")
        a(f"""
        v_add_u32 v{SC + 3}, {CNTN}, v{L4}
        v_mov_b32 v{SC + 2}, {MISC}
        ds_read_b32 v{SC}, v{SC + 3}
        ds_read_b32 v{SC + 2}, v{SC + 2}
        v_mov_b64 {vr(SC + 4, 2)}, -1
        s_lshl_b32 s{sA}, s{sW}, 9
        s_add_u32 s{sA}, s{sA}, {SIDE}
        v_add_u32 v{SC + 6}, s{sA}, v{L8}
        ds_write_b64 v{SC + 6}, {vr(SC + 4, 2)}
        s_waitcnt lgkmcnt(1)
        v_mov_b32 v{SC + 1}, v{SC}
        v_readfirstlane_b32 s{sMAXC}, v{SC + 2}
        """)
        self.scan(SC + 1)
        a(f"""
        v_readlane_b32 s{sM}, v{SC + 1}, 63
        v_sub_u32 v{SC + 1}, v{SC + 1}, v{SC}
        s_cmp_eq_u32 s{sNP}, {NPASS}
        s_cbranch_scc0 L_lists
        s_cmp_gt_u32 s{sM}, 1024
        s_cbranch_scc1 L_generic
        s_cmp_eq_u32 s{sMAXC}, 0
        s_cbranch_scc0 L_generic
        s_cmp_lt_u32 s{sM}, 64
        s_cbranch_scc0 L_lists
        s_mov_b32 s{sMODE}, 1
        L_lists:
        """)
        for k in range(NPASS):
            a(f"ds_bpermute_b32 v{SC + 4 + k}, v{DL4 + k}, v{SC + 1}")
        for k in range(NPASS):
            a(f"v_lshrrev_b32 v{DL4 + k}, 2, v{DL4 + k}")
        a(f"s_mov_b32 s{sA}, {IL}\ns_mov_b32 s{sB}, {EL}\ns_waitcnt lgkmcnt(0)")
        for k in range(NPASS):
            a(f"""
            v_add_u32 v{RANK + k}, v{RANK + k}, v{SC + 4 + k}
            v_lshl_add_u32 v{SC}, v{RANK + k}, 1, s{sA}
            v_lshl_add_u32 v{SC + 2}, v{RANK + k}, 2, s{sB}
            v_add_u32 v{RANK + k}, {DL}, v{RANK + k}
            s_mov_b64 exec, {sr(sVAL + 2 * k, 2)}
            ds_write_b16 v{SC}, v{REC + 2 * k}
            ds_write_b32 v{SC + 2}, v{REC + 2 * k + 1}
            ds_write_b8 v{RANK + k}, v{DL4 + k}
            s_mov_b64 exec, -1
            """)
        a(f"""
        s_add_u32 s{sA}, s{sM}, 1
        s_lshr_b32 s{sA}, s{sA}, 1
        s_mul_i32 s{sB}, s{sA}, s{sW}
        s_add_u32 s{sC}, s{sB}, s{sA}
        s_lshr_b32 s{sB}, s{sB}, 4
        s_lshr_b32 s{sC}, s{sC}, 4
        s_sub_u32 s{sREM}, s{sC}, s{sB}
        s_lshl_b32 s{sC}, s{sC}, 1
        s_cmp_lt_u32 s{sC}, s{sM}
        s_cselect_b32 s{sCO}, 1, 0
        s_min_u32 s{sC}, s{sC}, s{sM}
        s_lshl_b32 s{sI}, s{sB}, 1
        s_sub_u32 s{sNE}, s{sC}, s{sI}
        v_lshrrev_b32 v{TM}, 5, v{LANE}
        s_lshl_b32 s{sA}, s{sB}, 2
        s_add_u32 s{sA}, s{sA}, {IL}
        v_lshl_add_u32 v{IXA}, v{TM}, 1, s{sA}
        s_add_u32 s{sD}, s{sI}, {DL - 1}
        v_add_u32 v{INFO}, s{sD}, v{LANE}
        s_lshl_b32 s{sA}, s{sB}, 3
        s_add_u32 s{sA}, s{sA}, {EL}
        v_mov_b32 v{EA}, s{sA}
        v_mov_b32 v{IA + 1}, v{IOF}
        """)
        lab = a.newlabel("pb2")
        a(f"s_and_b32 s{sA}, s{sFIRST}, 1\ns_lshl_b32 s{sB}, s{sW}, 1\ns_or_b32 s{sA}, s{sA}, s{sB}\ns_cmp_eq_u32 s{sA}, 1\ns_cbranch_scc0 {lab}")
        self.poll_wait(W_FB, True)
        a.label(lab)
        self.barrier("C2")
        a(f"""
        s_cmp_gt_i32 s{sNE}, 0
        s_cbranch_scc0 L_empty
        """)
        for k in range(5):
            a(f"ds_read_u16 v{PA[1] + k}, v{IXA} offset:{4 * k}")
        a(f"""
        ds_read_u8 v{TM}, v{INFO}
        ds_read_u8 v{TM + 2}, v{INFO} offset:1
        ds_read_u8 v{TM + 1}, v{INFO} offset:2
        ds_read_b64 {vr(EE[0], 2)}, v{EA}
        v_mov_b32 v{TM + 3}, 0
        ds_write_b32 v{SC + 3}, v{TM + 3}
        """)
        if "noprio" not in self.opts:
            a("s_setprio 3")
        for k in range(4):
            a(f"s_waitcnt lgkmcnt({9 - k})")
            a(f"v_mov_b32 v{IA}, v{PA[1] + k}")
            self.gather(k)
        a(f"""
        s_waitcnt lgkmcnt(2)
        v_mov_b32 v{IA}, v{PA[1] + 4}
        v_cmp_ne_u32 {sr(sMASK, 2)}, v{TM + 2}, v{TM + 1}
        v_cmp_eq_u32 vcc, v{TM + 2}, v{TM}
        v_mul_u32_u24 v{INFO}, {QS}, v{TM + 2}
        v_and_b32 v{TM + 1}, 15, v{TM + 2}
        v_lshlrev_b32 v{TM + 1}, 4, v{TM + 1}
        v_lshl_add_u32 v{TM + 1}, v{TM + 2}, 9, v{TM + 1}
        v_add_u32 v{TM + 1}, {AB}, v{TM + 1}
        v_lshl_or_b32 v{INFO}, v{TM + 1}, 16, v{INFO}
        s_sub_u32 s{sA}, s{sNE}, 1
        s_bitcmp0_b64 {sr(sMASK, 2)}, s{sA}
        s_cselect_b32 s{sCO}, s{sCO}, 0
        s_bitset1_b64 {sr(sMASK, 2)}, s{sA}
        v_readfirstlane_b32 s{sB}, v{INFO}
        s_and_b32 s{sC}, vcc_lo, 1
        s_cmp_eq_u32 s{sI}, 0
        s_cselect_b32 s{sC}, 0, s{sC}
        s_cmp_eq_u32 s{sMODE}, 0
        s_cselect_b32 s{sC}, s{sC}, 0
        s_lshl_b32 s{sA}, s{sW}, 9
        s_add_u32 s{sA}, s{sA}, {SIDE}
        s_lshr_b32 s{sD}, s{sB}, 16
        s_cmp_eq_u32 s{sC}, 0
        s_cselect_b32 s{sD}, s{sD}, s{sA}
        s_and_b32 s{sC}, s{sB}, 0xffff
        v_add_u32 v{QA}, s{sC}, v{L4}
        v_xor_b32 v{AG}, s{sD}, v{L8}
        ds_read2st64_b32 {vr(Q, 2)}, v{QA} offset0:0 offset1:1
        ds_read2st64_b32 {vr(Q + 2, 2)}, v{QA} offset0:2 offset1:3
        v_mov_b64 {vr(NN, 2)}, 0
        v_mov_b64 {vr(NN + 2, 2)}, 0
        v_mov_b32 v{DD}, 1.0
        v_mov_b32 v{DD + 1}, 1.0
        v_mov_b32 v{DD + 2}, 1.0
        v_mov_b32 v{DD + 3}, 1.0
        v_mov_b64 {vr(CK2, 2)}, 0
        v_mov_b32 v{CK1}, 0
        s_mov_b32 s{sI}, 0
        s_mov_b32 s{sTRIP}, 0
        """)
        self.stamp("setup")
        a("s_waitcnt vmcnt(3)")
        self.stamp("row0")
        self.p_reads(0, 0)
        a("s_waitcnt lgkmcnt(0)")
        self.gather(0)
        self.u2_loads()
        a(f"""
        s_cmp_eq_u32 s{sMODE}, 0
        s_cbranch_scc0 L_enter_x
        """)
        self.main_loop(False, "L_main_done")
        a.reset_hist()
        a.label("L_main_done")
        a("s_setprio 0")
        self.stamp("loop")
        a(f"""
        v_add_f32 v{CK2}, v{CK2}, v{CK2 + 1}
        v_mov_b32 v{TM}, {BIG}
        v_cmp_u_f32 vcc, v{CK2}, v{CK2}
        v_cmp_nle_f32 s[40:41], v{CK1}, v{TM}
        s_nop 1
        s_or_b64 vcc, vcc, s[40:41]
        s_cbranch_scc0 L_after
        v_mov_b32 v{TM}, {MISC + 4}
        v_mov_b32 v{TM + 1}, 1
        ds_write_b32 v{TM}, v{TM + 1}
        L_after:
        s_mov_b32 s{sFIRST}, 0
        s_waitcnt vmcnt(0)
        """)
        self.barrier("M")
        a(f"""
        v_mov_b32 v{TM}, {MISC + 4}
        ds_read_b32 v{TM + 1}, v{TM}
        """)
        depth = 4

        def rd(s):
            for rb in range(3):
                a(f"ds_read_b128 {vr(XF + 12 * (s % depth) + 4 * rb, 4)}, v{XA + (s & 3)} offset:{rb * 8192 + (s >> 2) * 256}")

        for s in range(depth):
            rd(s)
        a(f"""
        s_cmp_eq_u32 s{sMODE}, 0
        s_cbranch_scc0 L_slow_next
        s_waitcnt lgkmcnt(12)
        v_readfirstlane_b32 s{sA}, v{TM + 1}
        s_nop 1
        s_cmp_eq_u32 s{sA}, 0
        s_cbranch_scc0 L_redo
        L_final:
        """)
        for s in range(8):
            ahead = min(depth - 1, 7 - s)
            a(f"s_waitcnt lgkmcnt({3 * ahead})")
            for rb in range(3):
                a(f"v_mfma_f32_16x16x32_bf16 {vr(ACC + 4 * rb, 4)}, {vr(UF + 4 * s, 4)}, {vr(XF + 12 * (s % depth) + 4 * rb, 4)}, {vr(ACC + 4 * rb, 4)}")
            if s + depth < 8:
                rd(s + depth)
        TE = 104
        for r in range(12):
            a(f"v_exp_f32 v{TE + r}, v{ACC + r}")
        for h in range(6):
            a(f"v_pk_add_f32 {vr(TE + 2 * h, 2)}, {vr(TE + 2 * h, 2)}, 1.0 op_sel_hi:[1,0]")
        for r in range(12):
            a(f"v_rcp_f32 v{TE + r}, v{TE + r}")
        for h in range(6):
            a(f"v_pk_mul_f32 {vr(ACC + 2 * h, 2)}, {vr(ACC + 2 * h, 2)}, {sr(sNLN2, 2)} op_sel_hi:[1,0]")
        for rb in range(3):
            for h in range(2):
                a(f"v_pk_mul_f32 {vr(ACC + 4 * rb + 2 * h, 2)}, {vr(ACC + 4 * rb + 2 * h, 2)}, {vr(TE + 4 * rb + 2 * h, 2)}")
            a(f"v_cvt_pk_bf16_f32 v{PQ + 2 * rb}, v{ACC + 4 * rb}, v{ACC + 4 * rb + 1}")
            a(f"v_cvt_pk_bf16_f32 v{PQ + 2 * rb + 1}, v{ACC + 4 * rb + 2}, v{ACC + 4 * rb + 3}")
            a(f"ds_write_b64 v{STG}, {vr(PQ + 2 * rb, 2)} offset:{rb * 8192}")
        self.barrier("F")
        a(f"""
        ds_read_b128 {vr(PQ + 8, 4)}, v{STR}
        ds_read_b128 {vr(PQ + 12, 4)}, v{STR} offset:16384
        s_waitcnt lgkmcnt(1)
        buffer_store_dwordx4 {vr(PQ + 8, 4)}, v{GO}, {sr(sOUT, 4)}, 0 offen
        s_waitcnt lgkmcnt(0)
        buffer_store_dwordx4 {vr(PQ + 12, 4)}, v{GO2}, {sr(sOUT, 4)}, 0 offen
        """)
        if self.stamps:
            a("s_waitcnt vmcnt(0)")
            self.stamp("end")
            a(f"""
            s_lshl_b32 s{sA}, s{sT}, 4
            s_add_u32 s{sA}, s{sA}, s{sW}
            s_lshl_b32 s{sA}, s{sA}, 8
            s_add_u32 s{sA}, s{sA}, {W_STAMP}
            v_lshlrev_b32 v{TM}, 2, v{LANE}
            buffer_store_dword v{STAMPV}, v{TM}, {sr(sWS, 4)}, s{sA} offen
            """)
        a.label("L_end")
        a("s_endpgm")
        a.reset_hist()
        a(f"""
        L_generic:
        s_waitcnt vmcnt(0) lgkmcnt(0)
        s_barrier
        v_mov_b32 v{SC}, 0
        ds_write_b32 v{SC + 3}, v{SC}
        s_mov_b32 s{sNP}, 1
        s_mov_b32 s{sMODE}, 1
        s_waitcnt lgkmcnt(0)
        s_barrier
        s_branch L_round
        L_empty:
        v_mov_b32 v{TM + 3}, 0
        ds_write_b32 v{SC + 3}, v{TM + 3}
        """)
        self.u2_loads()
        a(f"""
        s_branch L_after
        L_slow_next:
        s_cmp_eq_u32 s{sNP}, {NPASS}
        s_cbranch_scc1 L_final
        s_add_u32 s{sP0}, s{sP0}, 1
        s_max_u32 s{sA}, s{sMAXC}, {4 * NPASS}
        s_lshl_b32 s{sB}, s{sP0}, 2
        s_cmp_lt_u32 s{sB}, s{sA}
        s_cbranch_scc0 L_final
        s_waitcnt lgkmcnt(0)
        s_branch L_round
        L_redo:
        s_waitcnt lgkmcnt(0)
        s_barrier
        s_mov_b32 s{sMODE}, 1
        v_mov_b64 {vr(XF, 2)}, 0
        v_mov_b64 {vr(XF + 2, 2)}, 0
        v_add_u32 v{XF + 4}, {(AB - PS) & 0xffffffff}, v{STR}
        """)
        self.zero_agg(XF + 4, XF)
        a("s_branch L_round")
        self.main_loop(True, "L_after")

    def text(self):
        hdr = f"""; Fused MPNN edge-MLP kernel: P = x W1 published per tile, edges binned by destination tile,
; @launch grid=({NT},1,1) block=(1024,1,1) lds={LDS_TOTAL}
.amdgcn_target "amdgcn-amd-amdhsa--gfx950"
.text
.globl {NAME}_kernel
.p2align 8
.type {NAME}_kernel,@function
{NAME}_kernel:
"""
        ftr = f""".section .rodata,"a"
.p2align 6
.amdhsa_kernel {NAME}_kernel
  .amdhsa_next_free_vgpr 128
  .amdhsa_next_free_sgpr 102
  .amdhsa_accum_offset 128
  .amdhsa_group_segment_fixed_size 0
  .amdhsa_kernarg_size 72
  .amdhsa_user_sgpr_count 2
  .amdhsa_user_sgpr_kernarg_segment_ptr 1
  .amdhsa_system_sgpr_workgroup_id_x 1
.end_amdhsa_kernel
"""
        return hdr + self.a.text() + ftr


if __name__ == "__main__":
    out = [x for x in sys.argv[1:] if not x.startswith("--")]
    g = Gen(opts=[x[2:] for x in sys.argv[1:] if x.startswith("--")])
    g.build()
    txt = g.text()
    if g.stamps:
        txt = "; stamps: " + ",".join(g.names) + "\n" + txt
    open(out[0] if out else "cdna_kernels/%s.s" % NAME, "w").write(txt)
    print("nops inserted:", g.a.nops, "lines:", len(g.a.lines), "stamps:", g.nstamp)
```

```python
import sys
import struct
from asmlib import Asm

NAME = "gather_scatter__mpnn_edge_mlp__graph"
N, E, D = 10000, 160000, 256
T, NT, EC = 40, 250, 640

SLOT = (0, 32768, 65536, 98304)
XB = 131072
SIDE = XB
HIST, BASE, SORT, USC = 151552, 152576, 153600, 158720
CNTN, MISC = 160768, 161024
IL, EL, DL = 151552, 153664, 157824
QB, QS = 0, 1040
AB = 41984
RING = 65536
PS = 65536
LDS_TOTAL = 163840

W_EPOCH, W_FA, W_FB = 0, 0x1000, 0x3000
W_OFFS, W_RECS, W_UT, W_P = 0x10000, 0x50000, 0x190000, 0x200000
W_STAMP = 0x800000
WS_SIZE = 0xA00000
OOB = 0x80000000
POLL_LIMIT = 200000


def f2u(x):
    return struct.unpack("<I", struct.pack("<f", x))[0]


NLOG2E = f2u(-1.4426950408889634)
NLN2 = f2u(-0.6931471805599453)
BIG = f2u(2.0 ** 120)


def vr(a, n=1):
    return "v%d" % a if n == 1 else "v[%d:%d]" % (a, a + n - 1)


def sr(a, n=1):
    return "s%d" % a if n == 1 else "s[%d:%d]" % (a, a + n - 1)


TID, LANE = 0, 1
XA = 2
STG, GO, GO2, STR = 6, 7, 8, 9
RBA, CQ = 10, 11
ACC = 12
UF = 24
XF, WF = 56, 80
AC2 = 88
TAG, FA, POA, POLLD = 100, 102, 103, 24
WOFF, TR0, TR1, OFFV = 104, 105, 106, 107
STAMPV = 123
W3 = 124
NPASS = 4
REC, RANK, DL4, SC = 32, 40, 44, 48
PA = (56, 64)
EE = (72, 74)
IA, Q, QE, Y, TT, NN, DD = 76, 78, 86, 90, 94, 98, 102
CK2, CK1 = 106, 108
RG, IXA, EA, QA, AG, L4, L8, INFO, TM, IOF = 109, 110, 111, 112, 113, 114, 115, 116, 117, 122

sT, sW = 2, 3
sX, sWM, sWU, sWS, sP, sOUT, sSRC, sDST, sEA = 4, 8, 12, 16, 20, 24, 28, 32, 36
sNL2E, sNLN2, s4096, sW1K = 58, 60, 62, 63
sMASK, sI, sNE, sREM, sTRIP, sSLOT = 64, 66, 67, 68, 69, 70
sM, sP0, sNP, sMAXC, sFIRST, sMODE = 74, 75, 76, 77, 78, 79
sVAL = 80
sA, sB, sC, sD = 88, 89, 90, 91
sEX = 46
sCO = 48


class Gen:
    def __init__(self, opts=()):
        self.opts = set(opts)
        self.a = Asm()
        self.stamps = "stamps" in self.opts
        self.nstamp = 0
        self.names = []
        self.q = {"L": [], "N": []}

    def opt(self, name, default):
        for o in self.opts:
            if o.startswith(name + "="):
                return int(o.split("=")[1])
        return default

    STAMP_REGS = [92, 94, 96, 98, 100, 50, 54, 28, 30, 32, 34, 36, 38]

    def stamp(self, name):
        if not self.stamps:
            return
        sel = [o[3:].split("+") for o in self.opts if o.startswith("st=")]
        if name not in ("start", "end") and sel and name not in sel[0]:
            return
        k = self.nstamp
        self.nstamp += 1
        self.names.append(name)
        if "dbg" in self.opts:
            self.a(f"s_memrealtime {sr(self.STAMP_REGS[k], 2)}")
            if name == "end":
                a = self.a
                a("s_load_dwordx2 s[40:41], s[0:1], 56\ns_waitcnt lgkmcnt(0)")
                a(f"s_not_b32 s44, s{self.STAMP_REGS[0]}\nv_writelane_b32 v{STAMPV}, s44, 15")
                for i in range(self.nstamp):
                    a(f"v_writelane_b32 v{STAMPV}, s{self.STAMP_REGS[i]}, {i}")
                a(f"""
                s_mov_b32 s42, 64
                s_mov_b32 s43, 0x20000
                v_lshlrev_b32 v{TM}, 2, v{LANE}
                s_cmp_eq_u32 s{sW}, 0
                s_cbranch_scc0 L_end
                buffer_atomic_umax v{STAMPV}, v{TM}, s[40:43], 0 offen
                s_branch L_end
                """)
            return
        if name in ("start", "end"):
            self.a(f"""
            s_memrealtime s[40:41]
            s_waitcnt lgkmcnt(0)
            v_writelane_b32 v{STAMPV}, s40, {0 if name == "start" else 1}
            """)
        self.a(f"s_memtime {sr(self.STAMP_REGS[k], 2)}")
        if name == "end":
            self.a("s_waitcnt lgkmcnt(0)")
            for i in range(self.nstamp):
                self.a(f"v_writelane_b32 v{STAMPV}, s{self.STAMP_REGS[i]}, {32 + i}")

    def vm(self, roles, tag, n=1):
        for r in roles:
            self.q[r] += [tag] * n

    def vmwait(self, tags):
        need = {}
        for r, lst in self.q.items():
            last = max((i for i, t in enumerate(lst) if t in tags), default=None)
            if last is None:
                need[r] = None
            else:
                need[r] = len(lst) - 1 - last
                self.q[r] = lst[last + 1:]
        a = self.a
        if need["L"] == need["N"]:
            if need["L"] is not None:
                a(f"s_waitcnt vmcnt({need['L']})")
            return
        lab = a.newlabel("vw")
        if need["N"] is None:
            a(f"s_cmp_lt_u32 s{sW}, 8\ns_cbranch_scc1 {lab}\ns_waitcnt vmcnt({need['L']})\n{lab}:")
        elif need["L"] is None:
            a(f"s_cmp_ge_u32 s{sW}, 8\ns_cbranch_scc1 {lab}\ns_waitcnt vmcnt({need['N']})\n{lab}:")
        elif need["L"] > need["N"]:
            a(f"s_waitcnt vmcnt({need['L']})\ns_cmp_ge_u32 s{sW}, 8\ns_cbranch_scc1 {lab}\ns_waitcnt vmcnt({need['N']})\n{lab}:")
        else:
            a(f"s_waitcnt vmcnt({need['N']})\ns_cmp_lt_u32 s{sW}, 8\ns_cbranch_scc1 {lab}\ns_waitcnt vmcnt({need['L']})\n{lab}:")

    def barrier(self, name, lgkm=True):
        if lgkm:
            self.a("s_waitcnt lgkmcnt(0)")
        self.a("s_barrier")
        self.stamp(name)

    def dma_body(self, k, slot):
        a = self.a
        srd, base = ((sWM, 0), (sWU, 0), (sWM, 131072))[k // 4]
        c = k % 4
        for m in range(4):
            a(f"""
            s_add_u32 m0, s{sW1K}, {SLOT[slot] + m * 8192}
            s_mov_b32 s{sB}, {base + c * 32768 + m * 8192}
            buffer_load_dwordx4 v{WOFF}, {sr(srd, 4)}, s{sB} offen lds
            """)
        self.vm("L", f"c{k}", 4)

    def dma(self, k, slot):
        a = self.a
        lab = a.newlabel("dma")
        a(f"s_cmp_lt_u32 s{sW}, 8\ns_cbranch_scc1 {lab}")
        self.dma_body(k, slot)
        a.label(lab)

    def xreads(self, c):
        a = self.a
        for sp in range(2):
            s = 2 * c + sp
            for rb in range(3):
                a(f"ds_read_b128 {vr(XF + 12 * sp + 4 * rb, 4)}, v{XA + (s & 3)} offset:{rb * 8192 + (s >> 2) * 256}")

    def trreads(self, slot):
        a = self.a
        base = SLOT[slot]
        tr = TR0 if base < 65536 else TR1
        for sp in range(2):
            for p in range(2):
                a(f"ds_read_b64_tr_b16 {vr(WF + 4 * sp + 2 * p, 2)}, v{tr} offset:{(base & 65535) + 16384 * sp + 2048 * p}")

    def mfmas(self, acc, first):
        a = self.a
        for sp in range(2):
            a(f"s_waitcnt lgkmcnt({2 - 2 * sp})")
            for rb in range(3):
                c = "0" if (first and sp == 0) else vr(acc + 4 * rb, 4)
                a(f"v_mfma_f32_16x16x32_bf16 {vr(acc + 4 * rb, 4)}, {vr(WF + 4 * sp, 4)}, {vr(XF + 12 * sp + 4 * rb, 4)}, {c}")

    def scan(self, v):
        a = self.a
        for sh in (1, 2, 4, 8):
            a(f"v_add_u32_dpp v{v}, v{v}, v{v} row_shr:{sh} row_mask:0xf bank_mask:0xf bound_ctrl:0")
        a(f"v_add_u32_dpp v{v}, v{v}, v{v} row_bcast:15 row_mask:0xa bank_mask:0xf")
        a(f"v_add_u32_dpp v{v}, v{v}, v{v} row_bcast:31 row_mask:0xc bank_mask:0xf")

    def poll_issue(self, base):
        a = self.a
        a(f"s_mov_b32 s{sB}, {base}\ns_mov_b32 s{sD}, {base + 4096}")
        for k in range(4):
            a(f"buffer_load_dwordx2 {vr(POLLD + 2 * k, 2)}, v{POA}, {sr(sWS, 4)}, s{sB if k < 2 else sD} offen offset:{2048 * (k & 1)} sc1")

    def poll_wait(self, base, issued):
        a = self.a
        lp, chk, done = a.newlabel("poll"), a.newlabel("pchk"), a.newlabel("pdone")
        a(f"s_mov_b32 s{sC}, 0")
        if issued:
            a(f"s_branch {chk}")
        a.label(lp)
        self.poll_issue(base)
        a.label(chk)
        m58 = (1 << (NT - 192)) - 1
        a(f"""
        s_waitcnt vmcnt(0)
        v_cmp_ne_u64 s[40:41], {vr(POLLD, 2)}, {vr(TAG, 2)}
        v_cmp_ne_u64 s[42:43], {vr(POLLD + 2, 2)}, {vr(TAG, 2)}
        v_cmp_ne_u64 s[44:45], {vr(POLLD + 4, 2)}, {vr(TAG, 2)}
        v_cmp_ne_u64 s[46:47], {vr(POLLD + 6, 2)}, {vr(TAG, 2)}
        s_nop 1
        s_and_b32 s47, s47, {m58 >> 32}
        s_or_b64 s[40:41], s[40:41], s[42:43]
        s_or_b64 s[44:45], s[44:45], s[46:47]
        s_or_b64 s[40:41], s[40:41], s[44:45]
        s_cbranch_scc0 {done}
        s_add_u32 s{sC}, s{sC}, 1
        s_cmp_lt_u32 s{sC}, {POLL_LIMIT}
        s_cbranch_scc1 {lp}
        """)
        a.label(done)

    def wave0(self, fn):
        a = self.a
        lab = a.newlabel("w0")
        a(f"s_cmp_eq_u32 s{sW}, 0\ns_cbranch_scc0 {lab}")
        fn()
        a.label(lab)

    def edge(self, pb, which, exact, first):
        a = self.a
        if "noedge" in self.opts:
            return
        p = PA[pb] + 4 * which
        sel = "op_sel:[1,0,0] op_sel_hi:[1,1,1]" if which else "op_sel:[0,0,0] op_sel_hi:[0,1,1]"
        y = NN if (first and not exact) else Y
        for h in range(2):
            a(f"v_pk_fma_f32 {vr(QE + 2 * h, 2)}, {vr(EE[pb], 2)}, {vr(W3 + 2 * h, 2)}, {vr(Q + 2 * h, 2)} {sel}")
        for h in range(2):
            a(f"v_pk_add_f32 {vr(y + 2 * h, 2)}, {vr(p + 2 * h, 2)}, {vr(QE + 2 * h, 2)}")
        for r in range(4):
            a(f"v_exp_f32 v{TT + r}, v{y + r}")
        if exact:
            for h in range(2):
                a(f"v_pk_add_f32 {vr(TT + 2 * h, 2)}, {vr(TT + 2 * h, 2)}, 1.0 op_sel_hi:[1,0]")
            for r in range(4):
                a(f"v_rcp_f32 v{TT + r}, v{TT + r}")
            for h in range(2):
                if first:
                    a(f"v_pk_mul_f32 {vr(NN + 2 * h, 2)}, {vr(Y + 2 * h, 2)}, {vr(TT + 2 * h, 2)}")
                else:
                    a(f"v_pk_fma_f32 {vr(NN + 2 * h, 2)}, {vr(Y + 2 * h, 2)}, {vr(TT + 2 * h, 2)}, {vr(NN + 2 * h, 2)}")
        elif first:
            for h in range(2):
                a(f"v_pk_add_f32 {vr(DD + 2 * h, 2)}, {vr(TT + 2 * h, 2)}, 1.0 op_sel_hi:[1,0]")
        else:
            for h in range(2):
                a(f"v_pk_fma_f32 {vr(NN + 2 * h, 2)}, {vr(NN + 2 * h, 2)}, {vr(TT + 2 * h, 2)}, {vr(NN + 2 * h, 2)}")
            for h in range(2):
                a(f"v_pk_fma_f32 {vr(NN + 2 * h, 2)}, {vr(Y + 2 * h, 2)}, {vr(DD + 2 * h, 2)}, {vr(NN + 2 * h, 2)}")
            for h in range(2):
                a(f"v_pk_fma_f32 {vr(DD + 2 * h, 2)}, {vr(DD + 2 * h, 2)}, {vr(TT + 2 * h, 2)}, {vr(DD + 2 * h, 2)}")

    def flush(self, exact, mid=None, final=False):
        a = self.a
        if exact:
            if mid:
                mid()
            a(f"v_cvt_pk_bf16_f32 v{TT}, v{NN}, v{NN + 1}")
            a(f"v_cvt_pk_bf16_f32 v{TT + 1}, v{NN + 2}, v{NN + 3}")
            a(f"ds_pk_add_bf16 v{AG}, v{TT}")
            a(f"ds_pk_add_bf16 v{AG}, v{TT + 1} offset:4")
            return 2
        for r in range(4):
            a(f"v_rcp_f32 v{TT + r}, v{DD + r}")
        if mid:
            mid()
        a(f"v_max3_f32 v{CK1}, v{CK1}, v{DD}, v{DD + 1}")
        a(f"v_max3_f32 v{CK1}, v{CK1}, v{DD + 2}, v{DD + 3}")
        for h in range(2):
            a(f"v_pk_mul_f32 {vr(Y + 2 * h, 2)}, {vr(NN + 2 * h, 2)}, {vr(TT + 2 * h, 2)}")
        for h in range(2):
            a(f"v_pk_fma_f32 {vr(CK2, 2)}, {vr(Y + 2 * h, 2)}, 0, {vr(CK2, 2)} op_sel_hi:[1,0,1]")
        if final:
            a(f"""
            s_cmp_eq_u32 s{sCO}, 0
            s_cbranch_scc1 L_noside
            s_lshl_b32 s{sA}, s{sW}, 9
            s_add_u32 s{sA}, s{sA}, {SIDE + 512}
            v_add_u32 v{QA}, s{sA}, v{L8}
            s_mov_b32 s{sC}, 0
            L_side:
            ds_read_b64 {vr(TT, 2)}, v{QA}
            s_add_u32 s{sC}, s{sC}, 1
            s_waitcnt lgkmcnt(0)
            v_cmp_eq_u64 vcc, -1, {vr(TT, 2)}
            s_cmp_gt_u32 s{sC}, 4000
            s_cbranch_scc1 L_side_go
            s_cbranch_vccnz L_side
            L_side_go:
            v_lshlrev_b32 v{QE}, 16, v{TT}
            v_and_b32 v{QE + 1}, 0xffff0000, v{TT}
            v_lshlrev_b32 v{QE + 2}, 16, v{TT + 1}
            v_and_b32 v{QE + 3}, 0xffff0000, v{TT + 1}
            v_pk_add_f32 {vr(Y, 2)}, {vr(Y, 2)}, {vr(QE, 2)}
            v_pk_add_f32 {vr(Y + 2, 2)}, {vr(Y + 2, 2)}, {vr(QE + 2, 2)}
            L_noside:
            """)
        a(f"v_cvt_pk_bf16_f32 v{TT}, v{Y}, v{Y + 1}")
        a(f"v_cvt_pk_bf16_f32 v{TT + 1}, v{Y + 2}, v{Y + 3}")
        a(f"ds_write_b64 v{AG}, {vr(TT, 2)}")
        return 1

    def p_reads(self, pb, slot):
        a = self.a
        for row in range(2):
            for r in range(4):
                a(f"ds_read_u16_d16_hi v{PA[pb] + 4 * row + r}, v{RG} offset:{slot * 1024 + row * 512 + r * 128}")

    def gather(self, slot):
        a = self.a
        if "nodma" in self.opts:
            return
        a(f"""
        s_mov_b32 m0, s{sSLOT + slot}
        s_cmp_gt_i32 s{sREM}, 0
        s_cselect_b32 s{sP + 2}, {N}, 0
        s_sub_u32 s{sREM}, s{sREM}, 1
        buffer_load_dwordx4 {vr(IA, 2)}, {sr(sP, 4)}, 0 idxen offen sc1 lds
        """)

    def head(self, jj):
        a = self.a
        pb = jj & 1
        w3l = a.newlabel("w3")
        a(f"""
        s_waitcnt vmcnt(11)
        s_cmp_eq_u32 s{sTRIP}, 0
        s_cbranch_scc1 {w3l}
        s_waitcnt vmcnt(3)
        """)
        a.label(w3l)
        self.p_reads(pb ^ 1, (jj + 1) & 3)
        a(f"ds_read_b64 {vr(EE[pb ^ 1], 2)}, v{EA} offset:{8 * (jj + 1)}")
        a(f"ds_read_u16 v{IA}, v{IXA} offset:{4 * (jj + 5)}")

    def main_loop(self, exact, exit_label):
        a = self.a
        tag = "x" if exact else "f"
        loop = f"L_loop_{tag}"
        blocks = []
        a.label(f"L_enter_{tag}")
        self.head(0)
        self.edge(0, 0, exact, False)
        a(f"s_branch L_post_{tag}")
        a.label(loop)
        for jj in range(4):
            pb = jj & 1
            self.head(jj)
            for which in range(2):
                blk, back = f"L_blk_{tag}_{jj}_{which}", f"L_back_{tag}_{jj}_{which}"
                a(f"s_bitcmp1_b32 s{sMASK}, {1 - which}")
                a(f"s_cbranch_scc1 {blk}")
                self.edge(pb, which, exact, False)
                a.label(back)
                if which == 0:
                    a(f"s_lshr_b64 {sr(sMASK, 2)}, {sr(sMASK, 2)}, 2")
                    if jj == 0:
                        a.label(f"L_post_{tag}")
                blocks.append((blk, back, pb, which))
            a("s_waitcnt lgkmcnt(0)")
            self.gather((jj + 1) & 3)
            a(f"s_add_u32 s{sI}, s{sI}, 2")
        a(f"""
        v_add_u32 v{IXA}, 16, v{IXA}
        v_add_u32 v{EA}, 32, v{EA}
        s_mov_b32 s{sTRIP}, 1
        """)
        if not exact and "noprio" not in self.opts:
            t2, t1, t0 = self.opt("p2", 9), self.opt("p1", 5), self.opt("p0", 1)
            a(f"""
            s_cmp_gt_i32 s{sREM}, {t2}
            s_cbranch_scc1 {loop}
            s_setprio 2
            s_cmp_gt_i32 s{sREM}, {t1}
            s_cbranch_scc1 {loop}
            s_setprio 1
            s_cmp_gt_i32 s{sREM}, {t0}
            s_cbranch_scc1 {loop}
            s_setprio 0
            """)
        a(f"s_branch {loop}")
        fin = f"L_fin_{tag}"
        for blk, back, pb, which in blocks:
            a.reset_hist()
            a.label(blk)
            a(f"""
            s_add_u32 s{sA}, s{sI}, {which}
            s_cmp_eq_u32 s{sA}, s{sNE}
            s_cbranch_scc1 {fin}
            v_readlane_b32 s{sB}, v{INFO}, s{sA}
            """)

            def mid():
                a(f"""
                s_and_b32 s{sC}, s{sB}, 0xffff
                s_lshr_b32 s{sD}, s{sB}, 16
                v_add_u32 v{QA}, s{sC}, v{L4}
                ds_read2st64_b32 {vr(Q, 2)}, v{QA} offset0:0 offset1:1
                ds_read2st64_b32 {vr(Q + 2, 2)}, v{QA} offset0:2 offset1:3
                """)

            n = self.flush(exact, mid)
            a(f"""
            v_xor_b32 v{AG}, s{sD}, v{L8}
            s_waitcnt lgkmcnt({n})
            """)
            self.edge(pb, which, exact, True)
            a(f"s_branch {back}")
        a.reset_hist()
        a.label(fin)
        self.flush(exact, final=True)
        a(f"s_branch {exit_label}")

    def zero_agg(self, addr, zq):
        a = self.a
        lab = a.newlabel("zagg")
        a(f"""
        ds_write_b128 v{addr}, {vr(zq, 4)}
        s_cmp_lt_u32 s{sW}, 4
        s_cbranch_scc0 {lab}
        ds_write_b128 v{addr}, {vr(zq, 4)} offset:16384
        {lab}:
        """)

    def u2_loads(self):
        a = self.a
        a(f"""
        s_lshl_b32 s{sA}, s{sW}, 13
        s_add_u32 s{sA}, s{sA}, {W_UT}
        s_add_u32 s{sB}, s{sA}, 4096
        v_lshlrev_b32 v{TM}, 4, v{LANE}
        """)
        for s in range(8):
            so = sA if s < 4 else sB
            a(f"buffer_load_dwordx4 {vr(UF + 4 * s, 4)}, v{TM}, {sr(sWS, 4)}, s{so} offen offset:{(s & 3) * 1024} sc1")

    def rec_issue(self):
        a = self.a
        a(f"""
        s_lshl_b32 s{sA}, s{sP0}, 2
        s_lshl_b32 s{sB}, s{sP0}, 5
        v_mov_b32 v{SC}, {OOB}
        """)
        for k in range(NPASS):
            a(f"v_cmp_lt_i32 {sr(sVAL + 2 * k, 2)}, s{sA}, v{CQ}")
            if k:
                a(f"""
                s_cmp_gt_u32 s{sNP}, {k}
                s_cselect_b64 {sr(sVAL + 2 * k, 2)}, {sr(sVAL + 2 * k, 2)}, 0
                """)
            a(f"""
            s_add_u32 s{sA}, s{sA}, 4
            v_cndmask_b32 v{SC + 1 + k}, v{SC}, v{RBA}, {sr(sVAL + 2 * k, 2)}
            buffer_load_dwordx2 {vr(REC + 2 * k, 2)}, v{SC + 1 + k}, {sr(sWS, 4)}, s{sB} offen offset:{32 * k} sc1
            """)

    def binning(self):
        a = self.a
        DV, SV, EP, RV, AD, RK = 24, 34, 44, 56, 76, 88
        H0, B0, SQ, t4, t5, t6 = 50, 108, 112, 116, 117, 118
        a("s_waitcnt vmcnt(0)")
        self.stamp("edges")
        R10 = range(10)
        for i in R10:
            a(f"v_mul_u32_u24 v{AD + i}, 52429, v{DV + i}")
        for i in R10:
            a(f"v_lshrrev_b32 v{AD + i}, 21, v{AD + i}")
        for i in R10:
            a(f"v_min_u32 v{RK + i}, 255, v{AD + i}")
        for i in R10:
            a(f"v_lshl_add_u32 v{AD + i}, v{RK + i}, 2, s{sD}")
        for i in R10:
            a(f"v_mad_i32_i24 v{DV + i}, v{RK + i}, s{sC}, v{DV + i}")
            a(f"ds_add_rtn_u32 v{RK + i}, v{AD + i}, v{t4}")
        for i in R10:
            a(f"v_lshl_or_b32 v{RV + 2 * i}, v{DV + i}, 16, v{SV + i}")
            if i & 1:
                a(f"v_and_b32 v{RV + 2 * i + 1}, 0xffff0000, v{EP + i // 2}")
            else:
                a(f"v_lshlrev_b32 v{RV + 2 * i + 1}, 16, v{EP + i // 2}")
        a(f"""
        v_lshlrev_b32 v{t5}, 4, v{LANE}
        v_add_u32 v{t6}, {HIST}, v{t5}
        v_add_co_u32 v{TAG}, vcc, 1, v{TAG}
        ds_read_b128 {vr(H0, 4)}, v{t6}
        v_addc_co_u32 v{TAG + 1}, vcc, 0, v{TAG + 1}, vcc
        s_waitcnt lgkmcnt(0)
        v_add_u32 v{B0 + 1}, v{H0}, v{H0 + 1}
        v_add_u32 v{SQ}, v{H0 + 2}, v{H0 + 3}
        v_add_u32 v{SQ}, v{SQ}, v{B0 + 1}
        v_mov_b32 v{t4}, v{SQ}
        """)
        self.scan(t4)
        a(f"""
        v_sub_u32 v{B0}, v{t4}, v{SQ}
        v_add_u32 v{B0 + 2}, v{B0}, v{B0 + 1}
        v_add_u32 v{B0 + 1}, v{B0}, v{H0}
        v_add_u32 v{B0 + 3}, v{B0 + 2}, v{H0 + 2}
        ds_write_b128 v{t6}, {vr(B0, 4)} offset:{BASE - HIST}
        """)
        for i in range(10):
            a(f"ds_read_b32 v{DV + i}, v{AD + i} offset:{BASE - HIST}")
        for i in range(4):
            a(f"v_lshl_or_b32 v{SQ + i}, v{H0 + i}, 16, v{B0 + i}")
        a(f"""
        s_lshl_b32 s{sB}, s{sT}, 10
        s_add_u32 s{sB}, s{sB}, {W_OFFS}
        buffer_store_dwordx4 {vr(SQ, 4)}, v{t5}, {sr(sWS, 4)}, s{sB} offen sc1
        s_mov_b32 s{sD}, {SORT}
        """)
        a("s_waitcnt lgkmcnt(0)")
        for i in R10:
            a(f"v_add_u32 v{DV + i}, v{DV + i}, v{RK + i}")
        for i in R10:
            a(f"v_lshl_add_u32 v{DV + i}, v{DV + i}, 3, s{sD}")
        for i in R10:
            a(f"ds_write_b64 v{DV + i}, {vr(RV + 2 * i, 2)}")
        a(f"""
        v_add_u32 v{t6}, {SORT}, v{t5}
        s_mul_i32 s{sB}, s{sT}, {EC * 8}
        s_add_u32 s{sB}, s{sB}, {W_RECS}
        s_add_u32 s{sD}, s{sB}, 4096
        """)
        for i in range(5):
            a(f"ds_read_b128 {vr(SV + 4 * i, 4)}, v{t6} offset:{1024 * i}")
        for i in range(5):
            a(f"""
            s_waitcnt lgkmcnt({4 - i})
            buffer_store_dwordx4 {vr(SV + 4 * i, 4)}, v{t5}, {sr(sWS, 4)}, s{sB if i < 4 else sD} offen offset:{1024 * (i & 3)} sc1
            """)
        self.stamp("binned")

    def build(self):
        a = self.a
        t0, t1, t2, t3, t4, t5, t6, t7 = range(108, 116)
        PQ = 24
        UQ = 48

        a(f"""
        s_cmp_ge_u32 s{sT}, {NT}
        s_cbranch_scc1 L_end
        s_load_dwordx16 s[40:55], s[0:1], 0
        s_load_dwordx2 s[56:57], s[0:1], 64
        v_and_b32 v{LANE}, 63, v{TID}
        v_lshrrev_b32 v{t0}, 6, v{TID}
        v_mov_b32 v{t6}, 0
        v_lshlrev_b32 v{t7}, 2, v{TID}
        v_readfirstlane_b32 s{sW}, v{t0}
        v_add_u32 v{t7}, {HIST}, v{t7}
        s_cmp_lt_u32 s{sW}, 4
        s_cbranch_scc1 L_z1
        s_cmp_gt_u32 s{sW}, 5
        s_cbranch_scc1 L_z2
        v_add_u32 v{t7}, {CNTN - HIST - 1024}, v{t7}
        L_z1:
        ds_write_b32 v{t7}, v{t6}
        L_z2:
        v_lshrrev_b32 v{t3}, 5, v{TID}
        v_and_b32 v{t4}, 31, v{TID}
        v_and_b32 v{t5}, 15, v{t3}
        v_xor_b32 v{t6}, v{t5}, v{t4}
        v_lshlrev_b32 v{t6}, 4, v{t6}
        s_mul_i32 s{sB}, s{sT}, {T * 512}
        v_lshl_add_u32 v{t6}, v{t3}, 9, v{t6}
        v_add_u32 v{GO}, s{sB}, v{t6}
        v_and_b32 v{t6}, 3, v{t5}
        v_lshrrev_b32 v{t7}, 1, v{t5}
        v_and_b32 v{t7}, 4, v{t7}
        v_or_b32 v{t6}, v{t6}, v{t7}
        v_lshlrev_b32 v{t6}, 1, v{t6}
        v_xor_b32 v{t6}, v{t6}, v{t4}
        v_lshlrev_b32 v{t6}, 4, v{t6}
        v_lshl_add_u32 v{WOFF}, v{t5}, 9, v{t6}
        s_and_b32 s{sW1K}, s{sW}, 7
        s_lshl_b32 s{sW1K}, s{sW1K}, 10
        """)
        if self.stamps:
            a(f"v_mov_b32 v{STAMPV}, 0")
            for r in self.STAMP_REGS[:5]:
                a(f"s_mov_b32 s{r}, 0")
        a("s_waitcnt lgkmcnt(0)")

        def srd(s, p, nbytes):
            a(f"""
            s_mov_b32 s{s}, s{p}
            s_mov_b32 s{s + 1}, s{p + 1}
            s_mov_b32 s{s + 2}, {nbytes}
            s_mov_b32 s{s + 3}, 0x20000
            """)

        srd(sDST, 46, E * 4)
        srd(sSRC, 44, E * 4)
        srd(sEA, 42, E * 2)
        srd(sX, 40, N * 512)
        srd(sWM, 48, 513 * 512)
        srd(sWU, 50, 512 * 512)
        srd(sWS, 56, WS_SIZE)
        a("s_barrier")
        if self.opt("pad", 0):
            a("s_memrealtime s[96:97]")
        self.stamp("start")
        a(f"""
        s_cmp_ge_u32 s{sW}, 8
        s_cbranch_scc1 L_role_l
        s_cmp_ge_u32 s{sW}, 4
        s_cbranch_scc1 L_role_x
        s_cmp_eq_u32 s{sW}, 0
        s_cbranch_scc0 L_role_u
        s_setprio 3
        v_mul_u32_u24 v{t6}, 40, v{LANE}
        v_mul_u32_u24 v{t7}, 20, v{LANE}
        s_mul_i32 s{sA}, s{sT}, {EC * 4}
        s_mul_i32 s{sB}, s{sT}, {EC * 2}
        buffer_load_dwordx4 v[24:27], v{t6}, {sr(sDST, 4)}, s{sA} offen
        buffer_load_dwordx4 v[28:31], v{t6}, {sr(sDST, 4)}, s{sA} offen offset:16
        buffer_load_dwordx2 v[32:33], v{t6}, {sr(sDST, 4)}, s{sA} offen offset:32
        buffer_load_dwordx4 v[34:37], v{t6}, {sr(sSRC, 4)}, s{sA} offen
        buffer_load_dwordx4 v[38:41], v{t6}, {sr(sSRC, 4)}, s{sA} offen offset:16
        buffer_load_dwordx2 v[42:43], v{t6}, {sr(sSRC, 4)}, s{sA} offen offset:32
        buffer_load_dwordx4 v[44:47], v{t7}, {sr(sEA, 4)}, s{sB} offen
        buffer_load_dword v48, v{t7}, {sr(sEA, 4)}, s{sB} offen offset:16
        v_mov_b32 v{t6}, {W_EPOCH}
        buffer_load_dwordx2 {vr(TAG, 2)}, v{t6}, {sr(sWS, 4)}, 0 offen sc1
        s_branch L_role_done
        L_role_u:
        s_cmp_eq_u32 s{sW}, 1
        s_cbranch_scc0 L_role_done
        s_cmp_ge_u32 s{sT}, 128
        s_cbranch_scc1 L_role_done
        s_mov_b32 m0, {USC}
        s_and_b32 s{sA}, s{sT}, 7
        s_lshl_b32 s{sA}, s{sA}, 5
        s_lshr_b32 s{sB}, s{sT}, 3
        s_lshl_b32 s{sB}, s{sB}, 5
        v_lshrrev_b32 v{t6}, 1, v{LANE}
        v_add_u32 v{t6}, s{sA}, v{t6}
        v_and_b32 v{t7}, 3, v{t6}
        v_lshrrev_b32 v{t6}, 2, v{t6}
        v_lshl_add_u32 v{t6}, v{t7}, 6, v{t6}
        v_add_u32 v{t6}, 256, v{t6}
        v_and_b32 v{t7}, 1, v{LANE}
        v_lshlrev_b32 v{t7}, 4, v{t7}
        v_lshl_add_u32 v{t6}, v{t6}, 9, v{t7}
        buffer_load_dwordx4 v{t6}, {sr(sWU, 4)}, s{sB} offen lds
        s_branch L_role_done
        L_role_x:
        v_subrev_u32 v{t7}, 4096, v{GO}
        v_xor_b32 v{t6}, 0x80, v{t7}
        s_lshl_b32 s{sA}, s{sW}, 10
        """)
        for m in range(5):
            a(f"""
            s_add_u32 m0, s{sA}, {XB - 4096 + 4096 * m}
            s_mov_b32 s{sB}, {4096 * m}
            buffer_load_dwordx4 v{t7 if (m & 1) else t6}, {sr(sX, 4)}, s{sB} offen lds
            """)
        a(f"""
        s_branch L_role_done
        L_role_l:
        """)
        if "nowarm" not in self.opts:
            a(f"""
            s_lshr_b32 s{sA}, s{sT}, 3
            s_lshl_b32 s{sA}, s{sA}, 13
            s_add_u32 s{sA}, s{sA}, s{sW1K}
            v_lshlrev_b32 v{t6}, 4, v{LANE}
            buffer_load_dwordx4 v[24:27], v{t6}, {sr(sWM, 4)}, s{sA} offen
            s_lshr_b32 s{sA}, s{sA}, 1
            s_and_b32 s{sA}, s{sA}, 0x1fe00
            v_lshlrev_b32 v{t7}, 3, v{LANE}
            buffer_load_dwordx2 v[28:29], v{t7}, {sr(sWU, 4)}, s{sA} offen
            """)
        for k in range(2):
            self.dma_body(k, k)
        a.label("L_role_done")
        self.vm("N", "x")
        srd(sOUT, 52, N * 512)
        a(f"""
        s_add_u32 s{sP}, s56, {W_P}
        s_addc_u32 s{sP + 1}, s57, 0
        s_or_b32 s{sP + 1}, s{sP + 1}, {512 << 16}
        s_mov_b32 s{sP + 2}, {N}
        s_mov_b32 s{sP + 3}, 0x20000
        s_mov_b32 s{sNL2E}, {NLOG2E}
        s_mov_b32 s{sNL2E + 1}, {NLOG2E}
        s_mov_b32 s{sNLN2}, {NLN2}
        s_mov_b32 s{sNLN2 + 1}, {NLN2}
        v_and_b32 v{t0}, 15, v{LANE}
        v_lshrrev_b32 v{t1}, 4, v{LANE}
        v_bfe_u32 v{t2}, v{LANE}, 2, 2
        v_and_b32 v{t3}, 3, v{LANE}
        s_lshl_b32 s{sB}, s{sW}, 1
        v_and_b32 v{t4}, 1, v{t1}
        v_lshl_or_b32 v{t4}, v{t4}, 2, v{t2}
        v_lshlrev_b32 v{t4}, 1, v{t4}
        v_lshrrev_b32 v{t5}, 1, v{t3}
        v_add_u32 v{t5}, s{sB}, v{t5}
        v_xor_b32 v{t4}, v{t4}, v{t5}
        v_lshlrev_b32 v{t4}, 4, v{t4}
        v_and_b32 v{t5}, 1, v{t3}
        v_lshl_add_u32 v{t4}, v{t5}, 3, v{t4}
        v_lshl_add_u32 v{t5}, v{t1}, 3, v{t2}
        v_lshl_add_u32 v{TR0}, v{t5}, 9, v{t4}
        v_add_u32 v{TR1}, 65536, v{TR0}
        v_lshlrev_b32 v{t5}, 5, v{t5}
        v_lshl_add_u32 v{OFFV}, v{t3}, 3, v{t5}
        v_lshlrev_b32 v{t5}, 9, v{t0}
        v_add_u32 v{t5}, {XB}, v{t5}
        """)
        for k in range(4):
            a(f"""
            v_add_u32 v{t4}, {4 * k}, v{t1}
            v_xor_b32 v{t4}, v{t4}, v{t0}
            v_lshl_add_u32 v{XA + k}, v{t4}, 4, v{t5}
            """)
        a(f"""
        v_lshrrev_b32 v{t4}, 1, v{t1}
        v_add_u32 v{t4}, s{sB}, v{t4}
        v_xor_b32 v{t4}, v{t4}, v{t0}
        v_lshlrev_b32 v{t4}, 4, v{t4}
        v_and_b32 v{t6}, 1, v{t1}
        v_lshl_add_u32 v{t4}, v{t6}, 3, v{t4}
        v_lshl_add_u32 v{t4}, v{t0}, 9, v{t4}
        v_add_u32 v{STG}, {PS}, v{t4}
        v_lshlrev_b32 v{STR}, 4, v{TID}
        v_add_u32 v{STR}, {PS}, v{STR}
        v_add_u32 v{GO2}, 16384, v{GO}
        s_cmp_lt_u32 s{sW}, 4
        s_cbranch_scc1 L_go2
        v_mov_b32 v{GO2}, {OOB}
        L_go2:
        s_lshl_b32 s{sB}, s{sT}, 5
        v_mov_b32 v{t5}, {OOB}
        v_cmp_eq_u32 vcc, 0, v{LANE}
        v_mov_b32 v{t6}, s{sB}
        v_lshlrev_b32 v{POA}, 5, v{LANE}
        v_cndmask_b32 v{FA}, v{t5}, v{t6}, vcc
        s_cmp_eq_u32 s{sW}, 0
        s_cbranch_scc0 L_nobin
        s_mov_b32 s{sC}, -40
        s_mov_b32 s{sD}, {HIST}
        v_mov_b32 v116, 1
        """)
        self.binning()
        a(f"""
        s_setprio 0
        s_branch L_bin_done
        L_nobin:
        s_cmp_eq_u32 s{sW}, 1
        s_cbranch_scc0 L_bin_skip
        s_cmp_ge_u32 s{sT}, 128
        s_cbranch_scc1 L_bin_skip
        v_add_u32 v{t5}, {USC}, v{OFFV}
        s_waitcnt vmcnt(0)
        ds_read_b64_tr_b16 {vr(UQ, 2)}, v{t5}
        ds_read_b64_tr_b16 {vr(UQ + 2, 2)}, v{t5} offset:128
        s_lshl_b32 s{sD}, s{sT}, 10
        s_add_u32 s{sD}, s{sD}, {W_UT}
        v_lshlrev_b32 v{t6}, 4, v{LANE}
        s_waitcnt lgkmcnt(0)
        buffer_store_dwordx4 {vr(UQ, 4)}, v{t6}, {sr(sWS, 4)}, s{sD} offen sc1
        s_branch L_bin_done
        L_bin_skip:
        s_cmp_ge_u32 s{sW}, 8
        s_cbranch_scc1 L_bin_done
        s_waitcnt vmcnt(0)
        L_bin_done:
        """)
        self.q["N"] = []

        chunk_slot = [(0, 1, 3)[k % 3] for k in range(12)]
        issue_at = {k: k + 2 for k in range(10) if k != 3}
        k_fa = self.opt("kfa", 1)
        k_pa = self.opt("kpa", 8)
        k_rec = self.opt("krec", 10)
        k_fb = self.opt("kfb", 7)

        for k in range(12):
            acc = ACC if 4 <= k < 8 else AC2
            if k == k_fb:
                self.vmwait({"p", f"c{k}"})
            else:
                self.vmwait({f"c{k}"})
            if k == k_pa + 1:
                self.wave0(lambda: self.poll_wait(W_FA, True))
            self.barrier(f"B{k}", lgkm=False)
            if k == 0:
                self.xreads(0)
            if k == k_fb:
                def fb():
                    a(f"s_mov_b32 s{sB}, {W_FB}")
                    a(f"buffer_store_dwordx2 {vr(TAG, 2)}, v{FA}, {sr(sWS, 4)}, s{sB} offen sc1")
                self.wave0(fb)
            if k == k_pa + 1:
                lab = a.newlabel("ep")
                a(f"""
                s_or_b32 s{sB}, s{sT}, s{sW}
                s_cbranch_scc1 {lab}
                buffer_store_dwordx2 {vr(TAG, 2)}, v{FA}, {sr(sWS, 4)}, 0 offen sc1
                {lab}:
                v_lshrrev_b32 v{RBA}, 2, v{TID}
                s_lshl_b32 s{sB}, s{sT}, 2
                s_add_u32 s{sB}, s{sB}, {W_OFFS}
                v_lshlrev_b32 v{t5}, 10, v{RBA}
                v_mov_b32 v{t6}, {OOB}
                v_cmp_gt_u32 vcc, {NT}, v{RBA}
                v_lshlrev_b32 v{t7}, 1, v{LANE}
                v_cndmask_b32 v{t5}, v{t6}, v{t5}, vcc
                buffer_load_dword v{OFFV}, v{t5}, {sr(sWS, 4)}, s{sB} offen sc1
                s_mov_b32 s{sB}, {512 * 512}
                """)
                self.vm("LN", "offs")
                a(f"v_mov_b64 {vr(W3, 2)}, 0\nv_mov_b64 {vr(W3 + 2, 2)}, 0")
                for r in range(4):
                    a(f"buffer_load_short_d16_hi v{W3 + r}, v{t7}, {sr(sWM, 4)}, s{sB} offen offset:{128 * r}")
                self.vm("LN", "w3", 4)
            self.trreads(chunk_slot[k])
            self.mfmas(acc, k % 4 == 0)
            if k in issue_at:
                self.dma(issue_at[k], chunk_slot[issue_at[k]])
            if k == k_fa:
                def fa():
                    a(f"s_mov_b32 s{sB}, {W_FA}\ns_waitcnt vmcnt(0)")
                    a(f"buffer_store_dwordx2 {vr(TAG, 2)}, v{FA}, {sr(sWS, 4)}, s{sB} offen sc1")
                self.wave0(fa)
            if k == 3:
                for rb in range(3):
                    for h in range(2):
                        a(f"v_pk_mul_f32 {vr(AC2 + 4 * rb + 2 * h, 2)}, {vr(AC2 + 4 * rb + 2 * h, 2)}, {sr(sNL2E, 2)} op_sel_hi:[1,0]")
                    a(f"v_cvt_pk_bf16_f32 v{PQ + 2 * rb}, v{AC2 + 4 * rb}, v{AC2 + 4 * rb + 1}")
                    a(f"v_cvt_pk_bf16_f32 v{PQ + 2 * rb + 1}, v{AC2 + 4 * rb + 2}, v{AC2 + 4 * rb + 3}")
                    a(f"ds_write_b64 v{STG}, {vr(PQ + 2 * rb, 2)} offset:{rb * 8192}")
                self.barrier("PS")
                a(f"""
                ds_read_b128 {vr(PQ, 4)}, v{STR}
                ds_read_b128 {vr(PQ + 4, 4)}, v{STR} offset:16384
                """)
                self.xreads(0)
                a(f"""
                s_mov_b32 s{sB}, {W_P}
                s_waitcnt lgkmcnt(7)
                buffer_store_dwordx4 {vr(PQ, 4)}, v{GO}, {sr(sWS, 4)}, s{sB} offen sc1
                s_waitcnt lgkmcnt(6)
                buffer_store_dwordx4 {vr(PQ + 4, 4)}, v{GO2}, {sr(sWS, 4)}, s{sB} offen sc1
                """)
                self.vm("LN", "p", 2)
                self.dma(5, chunk_slot[5])
            elif k < 11:
                self.xreads((k + 1) % 4)
            if k == 7:
                for h in range(6):
                    a(f"v_pk_mul_f32 {vr(ACC + 2 * h, 2)}, {vr(ACC + 2 * h, 2)}, {sr(sNL2E, 2)} op_sel_hi:[1,0]")
            if k == k_pa:
                self.wave0(lambda: self.poll_issue(W_FA))
            if k == k_rec:
                self.vmwait({"offs"})
                a(f"""
                v_and_b32 v{t5}, 3, v{TID}
                v_mul_u32_u24 v{t4}, {EC * 8}, v{RBA}
                v_and_b32 v{t6}, 0xffff, v{OFFV}
                v_lshrrev_b32 v{t7}, 16, v{OFFV}
                v_add_u32 v{t6}, v{t6}, v{t5}
                v_lshl_add_u32 v{t4}, v{t6}, 3, v{t4}
                v_add_u32 v{RBA}, {W_RECS}, v{t4}
                v_sub_u32 v{CQ}, v{t7}, v{t5}
                v_cmp_lt_u32 vcc, {4 * NPASS}, v{t7}
                s_mov_b32 s{sP0}, 0
                s_mov_b32 s{sNP}, {NPASS}
                s_mov_b32 s{sFIRST}, 1
                s_mov_b32 s{sMODE}, 0
                """)
                self.rec_issue()
                self.vm("LN", "rec", NPASS)
                a(f"""
                v_mov_b32 v{t4}, {MISC}
                s_and_saveexec_b64 {sr(sEX, 2)}, vcc
                s_cbranch_execz L_nomax
                ds_max_u32 v{t4}, v{t7}
                s_waitcnt lgkmcnt(0)
                L_nomax:
                s_mov_b64 exec, -1
                """)
        ZQ = 24
        a(f"""
        v_mov_b64 {vr(ZQ, 2)}, 0
        v_mov_b64 {vr(ZQ + 2, 2)}, 0
        v_add_u32 v{t0}, {(AB - PS) & 0xffffffff}, v{STR}
        """)
        self.zero_agg(t0, ZQ)
        a(f"""
        v_and_b32 v{t1}, 15, v{LANE}
        v_lshrrev_b32 v{t2}, 4, v{LANE}
        s_lshl_b32 s{sB}, s{sW}, 6
        v_mul_u32_u24 v{t3}, {QS}, v{t1}
        v_lshl_add_u32 v{t3}, v{t2}, 4, v{t3}
        v_add_u32 v{t3}, s{sB}, v{t3}
        v_cmp_gt_u32 vcc, 8, v{t1}
        """)
        for rb in range(3):
            for h in range(2):
                a(f"v_pk_mul_f32 {vr(AC2 + 4 * rb + 2 * h, 2)}, {vr(AC2 + 4 * rb + 2 * h, 2)}, {sr(sNL2E, 2)} op_sel_hi:[1,0]")
            if rb == 2:
                a("s_mov_b64 exec, vcc")
            a(f"ds_write_b128 v{t3}, {vr(AC2 + 4 * rb, 4)} offset:{QB + rb * 16 * QS}")
        a("s_mov_b64 exec, -1")
        for k in range(4):
            a(f"v_add_u32 v{XA + k}, {(AB - XB) & 0xffffffff}, v{XA + k}")
        a(f"""
        s_lshl_b32 s{sA}, s{sW}, 12
        s_add_u32 s{sSLOT}, s{sA}, {RING}
        s_add_u32 s{sSLOT + 1}, s{sA}, {RING + 1024}
        s_add_u32 s{sSLOT + 2}, s{sA}, {RING + 2048}
        s_add_u32 s{sSLOT + 3}, s{sA}, {RING + 3072}
        v_lshl_add_u32 v{RG}, v{LANE}, 1, s{sSLOT}
        v_and_b32 v{IOF}, 31, v{LANE}
        v_lshlrev_b32 v{IOF}, 4, v{IOF}
        v_lshlrev_b32 v{L4}, 2, v{LANE}
        v_lshlrev_b32 v{L8}, 3, v{LANE}
        s_waitcnt vmcnt(0)
        v_pk_mul_f32 {vr(W3, 2)}, {vr(W3, 2)}, {sr(sNL2E, 2)} op_sel_hi:[1,0]
        v_pk_mul_f32 {vr(W3 + 2, 2)}, {vr(W3 + 2, 2)}, {sr(sNL2E, 2)} op_sel_hi:[1,0]
        s_branch L_round_body
        L_round:
        """)
        self.rec_issue()
        a(f"""
        s_waitcnt vmcnt(0)
        L_round_body:
        v_mov_b32 v{SC}, 1
        """)
        for k in range(NPASS):
            a(f"""
            v_bfe_u32 v{DL4 + k}, v{REC + 2 * k}, 16, 6
            v_lshlrev_b32 v{DL4 + k}, 2, v{DL4 + k}
            v_add_u32 v{SC + 1 + k}, {CNTN}, v{DL4 + k}
            s_mov_b64 exec, {sr(sVAL + 2 * k, 2)}
            ds_add_rtn_u32 v{RANK + k}, v{SC + 1 + k}, v{SC}
            s_mov_b64 exec, -1
            """)
        lab = a.newlabel("pb")
        a(f"s_and_b32 s{sA}, s{sFIRST}, 1\ns_lshl_b32 s{sB}, s{sW}, 1\ns_or_b32 s{sA}, s{sA}, s{sB}\ns_cmp_eq_u32 s{sA}, 1\ns_cbranch_scc0 {lab}")
        self.poll_issue(W_FB)
        a.label(lab)
        self.barrier("C1")
        a(f"""
        v_add_u32 v{SC + 3}, {CNTN}, v{L4}
        v_mov_b32 v{SC + 2}, {MISC}
        ds_read_b32 v{SC}, v{SC + 3}
        ds_read_b32 v{SC + 2}, v{SC + 2}
        v_mov_b64 {vr(SC + 4, 2)}, -1
        s_lshl_b32 s{sA}, s{sW}, 9
        s_add_u32 s{sA}, s{sA}, {SIDE}
        v_add_u32 v{SC + 6}, s{sA}, v{L8}
        ds_write_b64 v{SC + 6}, {vr(SC + 4, 2)}
        s_waitcnt lgkmcnt(1)
        v_mov_b32 v{SC + 1}, v{SC}
        v_readfirstlane_b32 s{sMAXC}, v{SC + 2}
        """)
        self.scan(SC + 1)
        a(f"""
        v_readlane_b32 s{sM}, v{SC + 1}, 63
        v_sub_u32 v{SC + 1}, v{SC + 1}, v{SC}
        s_cmp_eq_u32 s{sNP}, {NPASS}
        s_cbranch_scc0 L_lists
        s_cmp_gt_u32 s{sM}, 1024
        s_cbranch_scc1 L_generic
        s_cmp_eq_u32 s{sMAXC}, 0
        s_cbranch_scc0 L_generic
        s_cmp_lt_u32 s{sM}, 64
        s_cbranch_scc0 L_lists
        s_mov_b32 s{sMODE}, 1
        L_lists:
        """)
        for k in range(NPASS):
            a(f"ds_bpermute_b32 v{SC + 4 + k}, v{DL4 + k}, v{SC + 1}")
        for k in range(NPASS):
            a(f"v_lshrrev_b32 v{DL4 + k}, 2, v{DL4 + k}")
        a(f"s_mov_b32 s{sA}, {IL}\ns_mov_b32 s{sB}, {EL}\ns_waitcnt lgkmcnt(0)")
        for k in range(NPASS):
            a(f"""
            v_add_u32 v{RANK + k}, v{RANK + k}, v{SC + 4 + k}
            v_lshl_add_u32 v{SC}, v{RANK + k}, 1, s{sA}
            v_lshl_add_u32 v{SC + 2}, v{RANK + k}, 2, s{sB}
            v_add_u32 v{RANK + k}, {DL}, v{RANK + k}
            s_mov_b64 exec, {sr(sVAL + 2 * k, 2)}
            ds_write_b16 v{SC}, v{REC + 2 * k}
            ds_write_b32 v{SC + 2}, v{REC + 2 * k + 1}
            ds_write_b8 v{RANK + k}, v{DL4 + k}
            s_mov_b64 exec, -1
            """)
        a(f"""
        s_add_u32 s{sA}, s{sM}, 1
        s_lshr_b32 s{sA}, s{sA}, 1
        s_mul_i32 s{sB}, s{sA}, s{sW}
        s_add_u32 s{sC}, s{sB}, s{sA}
        s_lshr_b32 s{sB}, s{sB}, 4
        s_lshr_b32 s{sC}, s{sC}, 4
        s_sub_u32 s{sREM}, s{sC}, s{sB}
        s_lshl_b32 s{sC}, s{sC}, 1
        s_cmp_lt_u32 s{sC}, s{sM}
        s_cselect_b32 s{sCO}, 1, 0
        s_min_u32 s{sC}, s{sC}, s{sM}
        s_lshl_b32 s{sI}, s{sB}, 1
        s_sub_u32 s{sNE}, s{sC}, s{sI}
        v_lshrrev_b32 v{TM}, 5, v{LANE}
        s_lshl_b32 s{sA}, s{sB}, 2
        s_add_u32 s{sA}, s{sA}, {IL}
        v_lshl_add_u32 v{IXA}, v{TM}, 1, s{sA}
        s_add_u32 s{sD}, s{sI}, {DL - 1}
        v_add_u32 v{INFO}, s{sD}, v{LANE}
        s_lshl_b32 s{sA}, s{sB}, 3
        s_add_u32 s{sA}, s{sA}, {EL}
        v_mov_b32 v{EA}, s{sA}
        v_mov_b32 v{IA + 1}, v{IOF}
        """)
        lab = a.newlabel("pb2")
        a(f"s_and_b32 s{sA}, s{sFIRST}, 1\ns_lshl_b32 s{sB}, s{sW}, 1\ns_or_b32 s{sA}, s{sA}, s{sB}\ns_cmp_eq_u32 s{sA}, 1\ns_cbranch_scc0 {lab}")
        self.poll_wait(W_FB, True)
        a.label(lab)
        self.barrier("C2")
        a(f"""
        s_cmp_gt_i32 s{sNE}, 0
        s_cbranch_scc0 L_empty
        """)
        for k in range(5):
            a(f"ds_read_u16 v{PA[1] + k}, v{IXA} offset:{4 * k}")
        a(f"""
        ds_read_u8 v{TM}, v{INFO}
        ds_read_u8 v{TM + 2}, v{INFO} offset:1
        ds_read_u8 v{TM + 1}, v{INFO} offset:2
        ds_read_b64 {vr(EE[0], 2)}, v{EA}
        v_mov_b32 v{TM + 3}, 0
        ds_write_b32 v{SC + 3}, v{TM + 3}
        """)
        if "noprio" not in self.opts:
            a("s_setprio 3")
        for k in range(4):
            a(f"s_waitcnt lgkmcnt({9 - k})")
            a(f"v_mov_b32 v{IA}, v{PA[1] + k}")
            self.gather(k)
        a(f"""
        s_waitcnt lgkmcnt(2)
        v_mov_b32 v{IA}, v{PA[1] + 4}
        v_cmp_ne_u32 {sr(sMASK, 2)}, v{TM + 2}, v{TM + 1}
        v_cmp_eq_u32 vcc, v{TM + 2}, v{TM}
        v_mul_u32_u24 v{INFO}, {QS}, v{TM + 2}
        v_and_b32 v{TM + 1}, 15, v{TM + 2}
        v_lshlrev_b32 v{TM + 1}, 4, v{TM + 1}
        v_lshl_add_u32 v{TM + 1}, v{TM + 2}, 9, v{TM + 1}
        v_add_u32 v{TM + 1}, {AB}, v{TM + 1}
        v_lshl_or_b32 v{INFO}, v{TM + 1}, 16, v{INFO}
        s_sub_u32 s{sA}, s{sNE}, 1
        s_bitcmp0_b64 {sr(sMASK, 2)}, s{sA}
        s_cselect_b32 s{sCO}, s{sCO}, 0
        s_bitset1_b64 {sr(sMASK, 2)}, s{sA}
        v_readfirstlane_b32 s{sB}, v{INFO}
        s_and_b32 s{sC}, vcc_lo, 1
        s_cmp_eq_u32 s{sI}, 0
        s_cselect_b32 s{sC}, 0, s{sC}
        s_cmp_eq_u32 s{sMODE}, 0
        s_cselect_b32 s{sC}, s{sC}, 0
        s_lshl_b32 s{sA}, s{sW}, 9
        s_add_u32 s{sA}, s{sA}, {SIDE}
        s_lshr_b32 s{sD}, s{sB}, 16
        s_cmp_eq_u32 s{sC}, 0
        s_cselect_b32 s{sD}, s{sD}, s{sA}
        s_and_b32 s{sC}, s{sB}, 0xffff
        v_add_u32 v{QA}, s{sC}, v{L4}
        v_xor_b32 v{AG}, s{sD}, v{L8}
        ds_read2st64_b32 {vr(Q, 2)}, v{QA} offset0:0 offset1:1
        ds_read2st64_b32 {vr(Q + 2, 2)}, v{QA} offset0:2 offset1:3
        v_mov_b64 {vr(NN, 2)}, 0
        v_mov_b64 {vr(NN + 2, 2)}, 0
        v_mov_b32 v{DD}, 1.0
        v_mov_b32 v{DD + 1}, 1.0
        v_mov_b32 v{DD + 2}, 1.0
        v_mov_b32 v{DD + 3}, 1.0
        v_mov_b64 {vr(CK2, 2)}, 0
        v_mov_b32 v{CK1}, 0
        s_mov_b32 s{sI}, 0
        s_mov_b32 s{sTRIP}, 0
        """)
        self.stamp("setup")
        a("s_waitcnt vmcnt(3)")
        self.stamp("row0")
        self.p_reads(0, 0)
        a("s_waitcnt lgkmcnt(0)")
        self.gather(0)
        self.u2_loads()
        a(f"""
        s_cmp_eq_u32 s{sMODE}, 0
        s_cbranch_scc0 L_enter_x
        """)
        self.main_loop(False, "L_main_done")
        a.reset_hist()
        a.label("L_main_done")
        a("s_setprio 0")
        self.stamp("loop")
        a(f"""
        v_add_f32 v{CK2}, v{CK2}, v{CK2 + 1}
        v_mov_b32 v{TM}, {BIG}
        v_cmp_u_f32 vcc, v{CK2}, v{CK2}
        v_cmp_nle_f32 s[40:41], v{CK1}, v{TM}
        s_nop 1
        s_or_b64 vcc, vcc, s[40:41]
        s_cbranch_scc0 L_after
        v_mov_b32 v{TM}, {MISC + 4}
        v_mov_b32 v{TM + 1}, 1
        ds_write_b32 v{TM}, v{TM + 1}
        L_after:
        s_mov_b32 s{sFIRST}, 0
        s_waitcnt vmcnt(0)
        """)
        self.barrier("M")
        a(f"""
        v_mov_b32 v{TM}, {MISC + 4}
        ds_read_b32 v{TM + 1}, v{TM}
        """)
        depth = 4

        def rd(s):
            for rb in range(3):
                a(f"ds_read_b128 {vr(XF + 12 * (s % depth) + 4 * rb, 4)}, v{XA + (s & 3)} offset:{rb * 8192 + (s >> 2) * 256}")

        for s in range(depth):
            rd(s)
        a(f"""
        s_cmp_eq_u32 s{sMODE}, 0
        s_cbranch_scc0 L_slow_next
        s_waitcnt lgkmcnt(12)
        v_readfirstlane_b32 s{sA}, v{TM + 1}
        s_nop 1
        s_cmp_eq_u32 s{sA}, 0
        s_cbranch_scc0 L_redo
        L_final:
        """)
        for s in range(8):
            ahead = min(depth - 1, 7 - s)
            a(f"s_waitcnt lgkmcnt({3 * ahead})")
            for rb in range(3):
                a(f"v_mfma_f32_16x16x32_bf16 {vr(ACC + 4 * rb, 4)}, {vr(UF + 4 * s, 4)}, {vr(XF + 12 * (s % depth) + 4 * rb, 4)}, {vr(ACC + 4 * rb, 4)}")
            if s + depth < 8:
                rd(s + depth)
        TE = 104
        for r in range(12):
            a(f"v_exp_f32 v{TE + r}, v{ACC + r}")
        for h in range(6):
            a(f"v_pk_add_f32 {vr(TE + 2 * h, 2)}, {vr(TE + 2 * h, 2)}, 1.0 op_sel_hi:[1,0]")
        for r in range(12):
            a(f"v_rcp_f32 v{TE + r}, v{TE + r}")
        for h in range(6):
            a(f"v_pk_mul_f32 {vr(ACC + 2 * h, 2)}, {vr(ACC + 2 * h, 2)}, {sr(sNLN2, 2)} op_sel_hi:[1,0]")
        for rb in range(3):
            for h in range(2):
                a(f"v_pk_mul_f32 {vr(ACC + 4 * rb + 2 * h, 2)}, {vr(ACC + 4 * rb + 2 * h, 2)}, {vr(TE + 4 * rb + 2 * h, 2)}")
            a(f"v_cvt_pk_bf16_f32 v{PQ + 2 * rb}, v{ACC + 4 * rb}, v{ACC + 4 * rb + 1}")
            a(f"v_cvt_pk_bf16_f32 v{PQ + 2 * rb + 1}, v{ACC + 4 * rb + 2}, v{ACC + 4 * rb + 3}")
            a(f"ds_write_b64 v{STG}, {vr(PQ + 2 * rb, 2)} offset:{rb * 8192}")
        self.barrier("F")
        a(f"""
        ds_read_b128 {vr(PQ + 8, 4)}, v{STR}
        ds_read_b128 {vr(PQ + 12, 4)}, v{STR} offset:16384
        s_waitcnt lgkmcnt(1)
        buffer_store_dwordx4 {vr(PQ + 8, 4)}, v{GO}, {sr(sOUT, 4)}, 0 offen
        s_waitcnt lgkmcnt(0)
        buffer_store_dwordx4 {vr(PQ + 12, 4)}, v{GO2}, {sr(sOUT, 4)}, 0 offen
        """)
        if self.opt("pad", 0):
            a(f"""
            L_pad:
            s_memrealtime s[98:99]
            s_waitcnt lgkmcnt(0)
            s_sub_u32 s98, s98, s96
            s_cmp_lt_u32 s98, {self.opt("pad", 0)}
            s_cbranch_scc1 L_pad
            """)
        if self.stamps:
            a("s_waitcnt vmcnt(0)")
            self.stamp("end")
            a(f"""
            s_lshl_b32 s{sA}, s{sT}, 4
            s_add_u32 s{sA}, s{sA}, s{sW}
            s_lshl_b32 s{sA}, s{sA}, 8
            s_add_u32 s{sA}, s{sA}, {W_STAMP}
            v_lshlrev_b32 v{TM}, 2, v{LANE}
            buffer_store_dword v{STAMPV}, v{TM}, {sr(sWS, 4)}, s{sA} offen
            """)
        a.label("L_end")
        a("s_endpgm")
        a.reset_hist()
        a(f"""
        L_generic:
        s_waitcnt vmcnt(0) lgkmcnt(0)
        s_barrier
        v_mov_b32 v{SC}, 0
        ds_write_b32 v{SC + 3}, v{SC}
        s_mov_b32 s{sNP}, 1
        s_mov_b32 s{sMODE}, 1
        s_waitcnt lgkmcnt(0)
        s_barrier
        s_branch L_round
        L_empty:
        v_mov_b32 v{TM + 3}, 0
        ds_write_b32 v{SC + 3}, v{TM + 3}
        """)
        self.u2_loads()
        a(f"""
        s_branch L_after
        L_slow_next:
        s_cmp_eq_u32 s{sNP}, {NPASS}
        s_cbranch_scc1 L_final
        s_add_u32 s{sP0}, s{sP0}, 1
        s_max_u32 s{sA}, s{sMAXC}, {4 * NPASS}
        s_lshl_b32 s{sB}, s{sP0}, 2
        s_cmp_lt_u32 s{sB}, s{sA}
        s_cbranch_scc0 L_final
        s_waitcnt lgkmcnt(0)
        s_branch L_round
        L_redo:
        s_waitcnt lgkmcnt(0)
        s_barrier
        s_mov_b32 s{sMODE}, 1
        v_mov_b64 {vr(XF, 2)}, 0
        v_mov_b64 {vr(XF + 2, 2)}, 0
        v_add_u32 v{XF + 4}, {(AB - PS) & 0xffffffff}, v{STR}
        """)
        self.zero_agg(XF + 4, XF)
        a("s_branch L_round")
        self.main_loop(True, "L_after")

    def text(self):
        hdr = f"""; Fused MPNN edge-MLP kernel: P = x W1 published per tile, edges binned by destination tile,
; @launch grid=({NT},1,1) block=(1024,1,1) lds={LDS_TOTAL}
.amdgcn_target "amdgcn-amd-amdhsa--gfx950"
.text
.globl {NAME}_kernel
.p2align 8
.type {NAME}_kernel,@function
{NAME}_kernel:
"""
        ftr = f""".section .rodata,"a"
.p2align 6
.amdhsa_kernel {NAME}_kernel
  .amdhsa_next_free_vgpr 128
  .amdhsa_next_free_sgpr 102
  .amdhsa_accum_offset 128
  .amdhsa_group_segment_fixed_size 0
  .amdhsa_kernarg_size 72
  .amdhsa_user_sgpr_count 2
  .amdhsa_user_sgpr_kernarg_segment_ptr 1
  .amdhsa_system_sgpr_workgroup_id_x 1
.end_amdhsa_kernel
"""
        return hdr + self.a.text() + ftr


if __name__ == "__main__":
    out = [x for x in sys.argv[1:] if not x.startswith("--")]
    g = Gen(opts=[x[2:] for x in sys.argv[1:] if x.startswith("--")])
    g.build()
    txt = g.text()
    if g.stamps:
        txt = "; stamps: " + ",".join(g.names) + "\n" + txt
    open(out[0] if out else "cdna_kernels/%s.s" % NAME, "w").write(txt)
    print("nops inserted:", g.a.nops, "lines:", len(g.a.lines), "stamps:", g.nstamp)
```

```python
import sys
import struct
from asmlib import Asm

NAME = "gather_scatter__mpnn_edge_mlp__graph"
N, E, D = 10000, 160000, 256
T, NT, EC = 40, 250, 640

SLOT = (0, 32768, 65536, 98304)
XB = 131072
SIDE = XB
HIST, BASE, SORT, USC = 151552, 152576, 153600, 158720
CNTN, MISC = 160768, 161024
IL, EL, DL = 151552, 153664, 157824
QB, QS = 0, 1040
AB = 41984
RING = 65536
PS = 65536
LDS_TOTAL = 163840

W_EPOCH, W_FA, W_FB = 0, 0x1000, 0x3000
W_OFFS, W_RECS, W_UT, W_P = 0x10000, 0x50000, 0x190000, 0x200000
W_STAMP = 0x800000
WS_SIZE = 0xA00000
OOB = 0x80000000
POLL_LIMIT = 200000


def f2u(x):
    return struct.unpack("<I", struct.pack("<f", x))[0]


NLOG2E = f2u(-1.4426950408889634)
NLN2 = f2u(-0.6931471805599453)
BIG = f2u(2.0 ** 120)


def vr(a, n=1):
    return "v%d" % a if n == 1 else "v[%d:%d]" % (a, a + n - 1)


def sr(a, n=1):
    return "s%d" % a if n == 1 else "s[%d:%d]" % (a, a + n - 1)


TID, LANE = 0, 1
XA = 2
STG, GO, GO2, STR = 6, 7, 8, 9
RBA, CQ = 10, 11
ACC = 12
UF = 24
XF, WF = 56, 80
AC2 = 88
TAG, FA, POA, POLLD = 100, 102, 103, 24
WOFF, TR0, TR1, OFFV = 104, 105, 106, 107
STAMPV = 123
W3 = 124
NPASS = 4
REC, RANK, DL4, SC = 32, 40, 44, 48
PA = (56, 64)
EE = (72, 74)
IA, Q, QE, Y, TT, NN, DD = 76, 78, 86, 90, 94, 98, 102
CK2, CK1 = 106, 108
RG, IXA, EA, QA, AG, L4, L8, INFO, TM, IOF = 109, 110, 111, 112, 113, 114, 115, 116, 117, 122

sT, sW = 2, 3
sX, sWM, sWU, sWS, sP, sOUT, sSRC, sDST, sEA = 4, 8, 12, 16, 20, 24, 28, 32, 36
sNL2E, sNLN2, s4096, sW1K = 58, 60, 62, 63
sMASK, sI, sNE, sREM, sTRIP, sSLOT = 64, 66, 67, 68, 69, 70
sM, sP0, sNP, sMAXC, sFIRST, sMODE = 74, 75, 76, 77, 78, 79
sVAL = 80
sA, sB, sC, sD = 88, 89, 90, 91
sEX = 46
sCO = 48


class Gen:
    def __init__(self, opts=()):
        self.opts = set(opts)
        self.a = Asm()
        self.stamps = "stamps" in self.opts
        self.nstamp = 0
        self.names = []
        self.q = {"L": [], "N": []}

    def opt(self, name, default):
        for o in self.opts:
            if o.startswith(name + "="):
                return int(o.split("=")[1])
        return default

    STAMP_REGS = [92, 94, 96, 98, 100, 50, 54, 28, 30, 32, 34, 36, 38]

    def stamp(self, name):
        if not self.stamps:
            return
        sel = [o[3:].split("+") for o in self.opts if o.startswith("st=")]
        if name not in ("start", "end") and sel and name not in sel[0]:
            return
        k = self.nstamp
        self.nstamp += 1
        self.names.append(name)
        if "dbg" in self.opts:
            self.a(f"s_memrealtime {sr(self.STAMP_REGS[k], 2)}")
            if name == "end":
                a = self.a
                a("s_load_dwordx2 s[40:41], s[0:1], 56\ns_waitcnt lgkmcnt(0)")
                a(f"s_not_b32 s44, s{self.STAMP_REGS[0]}\nv_writelane_b32 v{STAMPV}, s44, 15")
                for i in range(self.nstamp):
                    a(f"v_writelane_b32 v{STAMPV}, s{self.STAMP_REGS[i]}, {i}")
                a(f"""
                s_mov_b32 s42, 64
                s_mov_b32 s43, 0x20000
                v_lshlrev_b32 v{TM}, 2, v{LANE}
                s_cmp_eq_u32 s{sW}, 0
                s_cbranch_scc0 L_end
                buffer_atomic_umax v{STAMPV}, v{TM}, s[40:43], 0 offen
                s_branch L_end
                """)
            return
        if name in ("start", "end"):
            self.a(f"""
            s_memrealtime s[40:41]
            s_waitcnt lgkmcnt(0)
            v_writelane_b32 v{STAMPV}, s40, {0 if name == "start" else 1}
            """)
        self.a(f"s_memtime {sr(self.STAMP_REGS[k], 2)}")
        if name == "end":
            self.a("s_waitcnt lgkmcnt(0)")
            for i in range(self.nstamp):
                self.a(f"v_writelane_b32 v{STAMPV}, s{self.STAMP_REGS[i]}, {32 + i}")

    def vm(self, roles, tag, n=1):
        for r in roles:
            self.q[r] += [tag] * n

    def vmwait(self, tags):
        need = {}
        for r, lst in self.q.items():
            last = max((i for i, t in enumerate(lst) if t in tags), default=None)
            if last is None:
                need[r] = None
            else:
                need[r] = len(lst) - 1 - last
                self.q[r] = lst[last + 1:]
        a = self.a
        if need["L"] == need["N"]:
            if need["L"] is not None:
                a(f"s_waitcnt vmcnt({need['L']})")
            return
        lab = a.newlabel("vw")
        if need["N"] is None:
            a(f"s_cmp_lt_u32 s{sW}, 8\ns_cbranch_scc1 {lab}\ns_waitcnt vmcnt({need['L']})\n{lab}:")
        elif need["L"] is None:
            a(f"s_cmp_ge_u32 s{sW}, 8\ns_cbranch_scc1 {lab}\ns_waitcnt vmcnt({need['N']})\n{lab}:")
        elif need["L"] > need["N"]:
            a(f"s_waitcnt vmcnt({need['L']})\ns_cmp_ge_u32 s{sW}, 8\ns_cbranch_scc1 {lab}\ns_waitcnt vmcnt({need['N']})\n{lab}:")
        else:
            a(f"s_waitcnt vmcnt({need['N']})\ns_cmp_lt_u32 s{sW}, 8\ns_cbranch_scc1 {lab}\ns_waitcnt vmcnt({need['L']})\n{lab}:")

    def barrier(self, name, lgkm=True):
        if lgkm:
            self.a("s_waitcnt lgkmcnt(0)")
        self.a("s_barrier")
        self.stamp(name)

    def dma_body(self, k, slot):
        a = self.a
        srd, base = ((sWM, 0), (sWU, 0), (sWM, 131072))[k // 4]
        c = k % 4
        for m in range(4):
            a(f"""
            s_add_u32 m0, s{sW1K}, {SLOT[slot] + m * 8192}
            s_mov_b32 s{sB}, {base + c * 32768 + m * 8192}
            buffer_load_dwordx4 v{WOFF}, {sr(srd, 4)}, s{sB} offen lds
            """)
        self.vm("L", f"c{k}", 4)

    def dma(self, k, slot):
        a = self.a
        lab = a.newlabel("dma")
        a(f"s_cmp_lt_u32 s{sW}, 8\ns_cbranch_scc1 {lab}")
        self.dma_body(k, slot)
        a.label(lab)

    def xreads(self, c):
        a = self.a
        for sp in range(2):
            s = 2 * c + sp
            for rb in range(3):
                a(f"ds_read_b128 {vr(XF + 12 * sp + 4 * rb, 4)}, v{XA + (s & 3)} offset:{rb * 8192 + (s >> 2) * 256}")

    def trreads(self, slot):
        a = self.a
        base = SLOT[slot]
        tr = TR0 if base < 65536 else TR1
        for sp in range(2):
            for p in range(2):
                a(f"ds_read_b64_tr_b16 {vr(WF + 4 * sp + 2 * p, 2)}, v{tr} offset:{(base & 65535) + 16384 * sp + 2048 * p}")

    def mfmas(self, acc, first):
        a = self.a
        for sp in range(2):
            a(f"s_waitcnt lgkmcnt({2 - 2 * sp})")
            for rb in range(3):
                c = "0" if (first and sp == 0) else vr(acc + 4 * rb, 4)
                a(f"v_mfma_f32_16x16x32_bf16 {vr(acc + 4 * rb, 4)}, {vr(WF + 4 * sp, 4)}, {vr(XF + 12 * sp + 4 * rb, 4)}, {c}")

    def scan(self, v):
        a = self.a
        for sh in (1, 2, 4, 8):
            a(f"v_add_u32_dpp v{v}, v{v}, v{v} row_shr:{sh} row_mask:0xf bank_mask:0xf bound_ctrl:0")
        a(f"v_add_u32_dpp v{v}, v{v}, v{v} row_bcast:15 row_mask:0xa bank_mask:0xf")
        a(f"v_add_u32_dpp v{v}, v{v}, v{v} row_bcast:31 row_mask:0xc bank_mask:0xf")

    def poll_issue(self, base):
        a = self.a
        a(f"s_mov_b32 s{sB}, {base}\ns_mov_b32 s{sD}, {base + 4096}")
        for k in range(4):
            a(f"buffer_load_dwordx2 {vr(POLLD + 2 * k, 2)}, v{POA}, {sr(sWS, 4)}, s{sB if k < 2 else sD} offen offset:{2048 * (k & 1)} sc1")

    def poll_wait(self, base, issued):
        a = self.a
        lp, chk, done = a.newlabel("poll"), a.newlabel("pchk"), a.newlabel("pdone")
        a(f"s_mov_b32 s{sC}, 0")
        if issued:
            a(f"s_branch {chk}")
        a.label(lp)
        self.poll_issue(base)
        a.label(chk)
        m58 = (1 << (NT - 192)) - 1
        a(f"""
        s_waitcnt vmcnt(0)
        v_cmp_ne_u64 s[40:41], {vr(POLLD, 2)}, {vr(TAG, 2)}
        v_cmp_ne_u64 s[42:43], {vr(POLLD + 2, 2)}, {vr(TAG, 2)}
        v_cmp_ne_u64 s[44:45], {vr(POLLD + 4, 2)}, {vr(TAG, 2)}
        v_cmp_ne_u64 s[46:47], {vr(POLLD + 6, 2)}, {vr(TAG, 2)}
        s_nop 1
        s_and_b32 s47, s47, {m58 >> 32}
        s_or_b64 s[40:41], s[40:41], s[42:43]
        s_or_b64 s[44:45], s[44:45], s[46:47]
        s_or_b64 s[40:41], s[40:41], s[44:45]
        s_cbranch_scc0 {done}
        s_add_u32 s{sC}, s{sC}, 1
        s_cmp_lt_u32 s{sC}, {POLL_LIMIT}
        s_cbranch_scc1 {lp}
        """)
        a.label(done)

    def wave0(self, fn):
        a = self.a
        lab = a.newlabel("w0")
        a(f"s_cmp_eq_u32 s{sW}, 0\ns_cbranch_scc0 {lab}")
        fn()
        a.label(lab)

    def edge(self, pb, which, exact, first):
        a = self.a
        if "noedge" in self.opts:
            return
        p = PA[pb] + 4 * which
        sel = "op_sel:[1,0,0] op_sel_hi:[1,1,1]" if which else "op_sel:[0,0,0] op_sel_hi:[0,1,1]"
        y = NN if (first and not exact) else Y
        for h in range(2):
            a(f"v_pk_fma_f32 {vr(QE + 2 * h, 2)}, {vr(EE[pb], 2)}, {vr(W3 + 2 * h, 2)}, {vr(Q + 2 * h, 2)} {sel}")
        for h in range(2):
            a(f"v_pk_add_f32 {vr(y + 2 * h, 2)}, {vr(p + 2 * h, 2)}, {vr(QE + 2 * h, 2)}")
        for r in range(4):
            a(f"v_exp_f32 v{TT + r}, v{y + r}")
        if exact:
            for h in range(2):
                a(f"v_pk_add_f32 {vr(TT + 2 * h, 2)}, {vr(TT + 2 * h, 2)}, 1.0 op_sel_hi:[1,0]")
            for r in range(4):
                a(f"v_rcp_f32 v{TT + r}, v{TT + r}")
            for h in range(2):
                if first:
                    a(f"v_pk_mul_f32 {vr(NN + 2 * h, 2)}, {vr(Y + 2 * h, 2)}, {vr(TT + 2 * h, 2)}")
                else:
                    a(f"v_pk_fma_f32 {vr(NN + 2 * h, 2)}, {vr(Y + 2 * h, 2)}, {vr(TT + 2 * h, 2)}, {vr(NN + 2 * h, 2)}")
        elif first:
            for h in range(2):
                a(f"v_pk_add_f32 {vr(DD + 2 * h, 2)}, {vr(TT + 2 * h, 2)}, 1.0 op_sel_hi:[1,0]")
        else:
            for h in range(2):
                a(f"v_pk_fma_f32 {vr(NN + 2 * h, 2)}, {vr(NN + 2 * h, 2)}, {vr(TT + 2 * h, 2)}, {vr(NN + 2 * h, 2)}")
            for h in range(2):
                a(f"v_pk_fma_f32 {vr(NN + 2 * h, 2)}, {vr(Y + 2 * h, 2)}, {vr(DD + 2 * h, 2)}, {vr(NN + 2 * h, 2)}")
            for h in range(2):
                a(f"v_pk_fma_f32 {vr(DD + 2 * h, 2)}, {vr(DD + 2 * h, 2)}, {vr(TT + 2 * h, 2)}, {vr(DD + 2 * h, 2)}")

    def flush(self, exact, mid=None, final=False):
        a = self.a
        if exact:
            if mid:
                mid()
            a(f"v_cvt_pk_bf16_f32 v{TT}, v{NN}, v{NN + 1}")
            a(f"v_cvt_pk_bf16_f32 v{TT + 1}, v{NN + 2}, v{NN + 3}")
            a(f"ds_pk_add_bf16 v{AG}, v{TT}")
            a(f"ds_pk_add_bf16 v{AG}, v{TT + 1} offset:4")
            return 2
        for r in range(4):
            a(f"v_rcp_f32 v{TT + r}, v{DD + r}")
        if mid:
            mid()
        a(f"v_max3_f32 v{CK1}, v{CK1}, v{DD}, v{DD + 1}")
        a(f"v_max3_f32 v{CK1}, v{CK1}, v{DD + 2}, v{DD + 3}")
        for h in range(2):
            a(f"v_pk_mul_f32 {vr(Y + 2 * h, 2)}, {vr(NN + 2 * h, 2)}, {vr(TT + 2 * h, 2)}")
        for h in range(2):
            a(f"v_pk_fma_f32 {vr(CK2, 2)}, {vr(Y + 2 * h, 2)}, 0, {vr(CK2, 2)} op_sel_hi:[1,0,1]")
        if final:
            a(f"""
            s_cmp_eq_u32 s{sCO}, 0
            s_cbranch_scc1 L_noside
            s_lshl_b32 s{sA}, s{sW}, 9
            s_add_u32 s{sA}, s{sA}, {SIDE + 512}
            v_add_u32 v{QA}, s{sA}, v{L8}
            s_mov_b32 s{sC}, 0
            L_side:
            ds_read_b64 {vr(TT, 2)}, v{QA}
            s_add_u32 s{sC}, s{sC}, 1
            s_waitcnt lgkmcnt(0)
            v_cmp_eq_u64 vcc, -1, {vr(TT, 2)}
            s_cmp_gt_u32 s{sC}, 4000
            s_cbranch_scc1 L_side_go
            s_cbranch_vccnz L_side
            L_side_go:
            v_lshlrev_b32 v{QE}, 16, v{TT}
            v_and_b32 v{QE + 1}, 0xffff0000, v{TT}
            v_lshlrev_b32 v{QE + 2}, 16, v{TT + 1}
            v_and_b32 v{QE + 3}, 0xffff0000, v{TT + 1}
            v_pk_add_f32 {vr(Y, 2)}, {vr(Y, 2)}, {vr(QE, 2)}
            v_pk_add_f32 {vr(Y + 2, 2)}, {vr(Y + 2, 2)}, {vr(QE + 2, 2)}
            L_noside:
            """)
        a(f"v_cvt_pk_bf16_f32 v{TT}, v{Y}, v{Y + 1}")
        a(f"v_cvt_pk_bf16_f32 v{TT + 1}, v{Y + 2}, v{Y + 3}")
        a(f"ds_write_b64 v{AG}, {vr(TT, 2)}")
        return 1

    def p_reads(self, pb, slot):
        a = self.a
        for row in range(2):
            for r in range(4):
                a(f"ds_read_u16_d16_hi v{PA[pb] + 4 * row + r}, v{RG} offset:{slot * 1024 + row * 512 + r * 128}")

    def gather(self, slot):
        a = self.a
        if "nodma" in self.opts:
            return
        a(f"""
        s_mov_b32 m0, s{sSLOT + slot}
        s_cmp_gt_i32 s{sREM}, 0
        s_cselect_b32 s{sP + 2}, {N}, 0
        s_sub_u32 s{sREM}, s{sREM}, 1
        buffer_load_dwordx4 {vr(IA, 2)}, {sr(sP, 4)}, 0 idxen offen sc1 lds
        """)

    def head(self, jj):
        a = self.a
        pb = jj & 1
        w3l = a.newlabel("w3")
        a(f"""
        s_waitcnt vmcnt(11)
        s_cmp_eq_u32 s{sTRIP}, 0
        s_cbranch_scc1 {w3l}
        s_waitcnt vmcnt(3)
        """)
        a.label(w3l)
        self.p_reads(pb ^ 1, (jj + 1) & 3)
        a(f"ds_read_b64 {vr(EE[pb ^ 1], 2)}, v{EA} offset:{8 * (jj + 1)}")
        a(f"ds_read_u16 v{IA}, v{IXA} offset:{4 * (jj + 5)}")

    def main_loop(self, exact, exit_label):
        a = self.a
        tag = "x" if exact else "f"
        loop = f"L_loop_{tag}"
        blocks = []
        a.label(f"L_enter_{tag}")
        self.head(0)
        self.edge(0, 0, exact, False)
        a(f"s_branch L_post_{tag}")
        a.label(loop)
        for jj in range(4):
            pb = jj & 1
            self.head(jj)
            for which in range(2):
                blk, back = f"L_blk_{tag}_{jj}_{which}", f"L_back_{tag}_{jj}_{which}"
                a(f"s_bitcmp1_b32 s{sMASK}, {1 - which}")
                a(f"s_cbranch_scc1 {blk}")
                self.edge(pb, which, exact, False)
                a.label(back)
                if which == 0:
                    a(f"s_lshr_b64 {sr(sMASK, 2)}, {sr(sMASK, 2)}, 2")
                    if jj == 0:
                        a.label(f"L_post_{tag}")
                blocks.append((blk, back, pb, which))
            a("s_waitcnt lgkmcnt(0)")
            self.gather((jj + 1) & 3)
            a(f"s_add_u32 s{sI}, s{sI}, 2")
        a(f"""
        v_add_u32 v{IXA}, 16, v{IXA}
        v_add_u32 v{EA}, 32, v{EA}
        s_mov_b32 s{sTRIP}, 1
        """)
        if not exact and "noprio" not in self.opts:
            t2, t1, t0 = self.opt("p2", 9), self.opt("p1", 5), self.opt("p0", 1)
            a(f"""
            s_cmp_gt_i32 s{sREM}, {t2}
            s_cbranch_scc1 {loop}
            s_setprio 2
            s_cmp_gt_i32 s{sREM}, {t1}
            s_cbranch_scc1 {loop}
            s_setprio 1
            s_cmp_gt_i32 s{sREM}, {t0}
            s_cbranch_scc1 {loop}
            s_setprio 0
            """)
        a(f"s_branch {loop}")
        fin = f"L_fin_{tag}"
        for blk, back, pb, which in blocks:
            a.reset_hist()
            a.label(blk)
            a(f"""
            s_add_u32 s{sA}, s{sI}, {which}
            s_cmp_eq_u32 s{sA}, s{sNE}
            s_cbranch_scc1 {fin}
            v_readlane_b32 s{sB}, v{INFO}, s{sA}
            """)

            def mid():
                a(f"""
                s_and_b32 s{sC}, s{sB}, 0xffff
                s_lshr_b32 s{sD}, s{sB}, 16
                v_add_u32 v{QA}, s{sC}, v{L4}
                ds_read2st64_b32 {vr(Q, 2)}, v{QA} offset0:0 offset1:1
                ds_read2st64_b32 {vr(Q + 2, 2)}, v{QA} offset0:2 offset1:3
                """)

            n = self.flush(exact, mid)
            a(f"""
            v_xor_b32 v{AG}, s{sD}, v{L8}
            s_waitcnt lgkmcnt({n})
            """)
            self.edge(pb, which, exact, True)
            a(f"s_branch {back}")
        a.reset_hist()
        a.label(fin)
        self.flush(exact, final=True)
        a(f"s_branch {exit_label}")

    def zero_agg(self, addr, zq):
        a = self.a
        lab = a.newlabel("zagg")
        a(f"""
        ds_write_b128 v{addr}, {vr(zq, 4)}
        s_cmp_lt_u32 s{sW}, 4
        s_cbranch_scc0 {lab}
        ds_write_b128 v{addr}, {vr(zq, 4)} offset:16384
        {lab}:
        """)

    def u2_loads(self):
        a = self.a
        a(f"""
        s_lshl_b32 s{sA}, s{sW}, 13
        s_add_u32 s{sA}, s{sA}, {W_UT}
        s_add_u32 s{sB}, s{sA}, 4096
        v_lshlrev_b32 v{TM}, 4, v{LANE}
        """)
        for s in range(8):
            so = sA if s < 4 else sB
            a(f"buffer_load_dwordx4 {vr(UF + 4 * s, 4)}, v{TM}, {sr(sWS, 4)}, s{so} offen offset:{(s & 3) * 1024} sc1")

    def rec_issue(self):
        a = self.a
        a(f"""
        s_lshl_b32 s{sA}, s{sP0}, 2
        s_lshl_b32 s{sB}, s{sP0}, 5
        v_mov_b32 v{SC}, {OOB}
        """)
        for k in range(NPASS):
            a(f"v_cmp_lt_i32 {sr(sVAL + 2 * k, 2)}, s{sA}, v{CQ}")
            if k:
                a(f"""
                s_cmp_gt_u32 s{sNP}, {k}
                s_cselect_b64 {sr(sVAL + 2 * k, 2)}, {sr(sVAL + 2 * k, 2)}, 0
                """)
            a(f"""
            s_add_u32 s{sA}, s{sA}, 4
            v_cndmask_b32 v{SC + 1 + k}, v{SC}, v{RBA}, {sr(sVAL + 2 * k, 2)}
            buffer_load_dwordx2 {vr(REC + 2 * k, 2)}, v{SC + 1 + k}, {sr(sWS, 4)}, s{sB} offen offset:{32 * k} sc1
            """)

    def binning(self):
        a = self.a
        DV, SV, EP, RV, AD, RK = 24, 34, 44, 56, 76, 88
        H0, B0, SQ, t4, t5, t6 = 50, 108, 112, 116, 117, 118
        a("s_waitcnt vmcnt(0)")
        self.stamp("edges")
        R10 = range(10)
        for i in R10:
            a(f"v_mul_u32_u24 v{AD + i}, 52429, v{DV + i}")
        for i in R10:
            a(f"v_lshrrev_b32 v{AD + i}, 21, v{AD + i}")
        for i in R10:
            a(f"v_min_u32 v{RK + i}, 255, v{AD + i}")
        for i in R10:
            a(f"v_lshl_add_u32 v{AD + i}, v{RK + i}, 2, s{sD}")
        for i in R10:
            a(f"v_mad_i32_i24 v{DV + i}, v{RK + i}, s{sC}, v{DV + i}")
            a(f"ds_add_rtn_u32 v{RK + i}, v{AD + i}, v{t4}")
        for i in R10:
            a(f"v_lshl_or_b32 v{RV + 2 * i}, v{DV + i}, 16, v{SV + i}")
            if i & 1:
                a(f"v_and_b32 v{RV + 2 * i + 1}, 0xffff0000, v{EP + i // 2}")
            else:
                a(f"v_lshlrev_b32 v{RV + 2 * i + 1}, 16, v{EP + i // 2}")
        a(f"""
        v_lshlrev_b32 v{t5}, 4, v{LANE}
        v_add_u32 v{t6}, {HIST}, v{t5}
        v_add_co_u32 v{TAG}, vcc, 1, v{TAG}
        ds_read_b128 {vr(H0, 4)}, v{t6}
        v_addc_co_u32 v{TAG + 1}, vcc, 0, v{TAG + 1}, vcc
        s_waitcnt lgkmcnt(0)
        v_add_u32 v{B0 + 1}, v{H0}, v{H0 + 1}
        v_add_u32 v{SQ}, v{H0 + 2}, v{H0 + 3}
        v_add_u32 v{SQ}, v{SQ}, v{B0 + 1}
        v_mov_b32 v{t4}, v{SQ}
        """)
        self.scan(t4)
        a(f"""
        v_sub_u32 v{B0}, v{t4}, v{SQ}
        v_add_u32 v{B0 + 2}, v{B0}, v{B0 + 1}
        v_add_u32 v{B0 + 1}, v{B0}, v{H0}
        v_add_u32 v{B0 + 3}, v{B0 + 2}, v{H0 + 2}
        ds_write_b128 v{t6}, {vr(B0, 4)} offset:{BASE - HIST}
        """)
        for i in range(10):
            a(f"ds_read_b32 v{DV + i}, v{AD + i} offset:{BASE - HIST}")
        for i in range(4):
            a(f"v_lshl_or_b32 v{SQ + i}, v{H0 + i}, 16, v{B0 + i}")
        a(f"""
        s_lshl_b32 s{sB}, s{sT}, 10
        s_add_u32 s{sB}, s{sB}, {W_OFFS}
        buffer_store_dwordx4 {vr(SQ, 4)}, v{t5}, {sr(sWS, 4)}, s{sB} offen sc1
        s_mov_b32 s{sD}, {SORT}
        """)
        a("s_waitcnt lgkmcnt(0)")
        for i in R10:
            a(f"v_add_u32 v{DV + i}, v{DV + i}, v{RK + i}")
        for i in R10:
            a(f"v_lshl_add_u32 v{DV + i}, v{DV + i}, 3, s{sD}")
        for i in R10:
            a(f"ds_write_b64 v{DV + i}, {vr(RV + 2 * i, 2)}")
        a(f"""
        v_add_u32 v{t6}, {SORT}, v{t5}
        s_mul_i32 s{sB}, s{sT}, {EC * 8}
        s_add_u32 s{sB}, s{sB}, {W_RECS}
        s_add_u32 s{sD}, s{sB}, 4096
        """)
        for i in range(5):
            a(f"ds_read_b128 {vr(SV + 4 * i, 4)}, v{t6} offset:{1024 * i}")
        for i in range(5):
            a(f"""
            s_waitcnt lgkmcnt({4 - i})
            buffer_store_dwordx4 {vr(SV + 4 * i, 4)}, v{t5}, {sr(sWS, 4)}, s{sB if i < 4 else sD} offen offset:{1024 * (i & 3)} sc1
            """)
        self.stamp("binned")

    def build(self):
        a = self.a
        t0, t1, t2, t3, t4, t5, t6, t7 = range(108, 116)
        PQ = 24
        UQ = 48

        if "pad0" in self.opts:
            a("s_memrealtime s[96:97]")
        a(f"""
        s_cmp_ge_u32 s{sT}, {NT}
        s_cbranch_scc1 L_end
        s_load_dwordx16 s[40:55], s[0:1], 0
        s_load_dwordx2 s[56:57], s[0:1], 64
        v_and_b32 v{LANE}, 63, v{TID}
        v_lshrrev_b32 v{t0}, 6, v{TID}
        v_mov_b32 v{t6}, 0
        v_lshlrev_b32 v{t7}, 2, v{TID}
        v_readfirstlane_b32 s{sW}, v{t0}
        v_add_u32 v{t7}, {HIST}, v{t7}
        s_cmp_lt_u32 s{sW}, 4
        s_cbranch_scc1 L_z1
        s_cmp_gt_u32 s{sW}, 5
        s_cbranch_scc1 L_z2
        v_add_u32 v{t7}, {CNTN - HIST - 1024}, v{t7}
        L_z1:
        ds_write_b32 v{t7}, v{t6}
        L_z2:
        v_lshrrev_b32 v{t3}, 5, v{TID}
        v_and_b32 v{t4}, 31, v{TID}
        v_and_b32 v{t5}, 15, v{t3}
        v_xor_b32 v{t6}, v{t5}, v{t4}
        v_lshlrev_b32 v{t6}, 4, v{t6}
        s_mul_i32 s{sB}, s{sT}, {T * 512}
        v_lshl_add_u32 v{t6}, v{t3}, 9, v{t6}
        v_add_u32 v{GO}, s{sB}, v{t6}
        v_and_b32 v{t6}, 3, v{t5}
        v_lshrrev_b32 v{t7}, 1, v{t5}
        v_and_b32 v{t7}, 4, v{t7}
        v_or_b32 v{t6}, v{t6}, v{t7}
        v_lshlrev_b32 v{t6}, 1, v{t6}
        v_xor_b32 v{t6}, v{t6}, v{t4}
        v_lshlrev_b32 v{t6}, 4, v{t6}
        v_lshl_add_u32 v{WOFF}, v{t5}, 9, v{t6}
        s_and_b32 s{sW1K}, s{sW}, 7
        s_lshl_b32 s{sW1K}, s{sW1K}, 10
        """)
        if self.stamps:
            a(f"v_mov_b32 v{STAMPV}, 0")
            for r in self.STAMP_REGS[:5]:
                a(f"s_mov_b32 s{r}, 0")
        a("s_waitcnt lgkmcnt(0)")

        def srd(s, p, nbytes):
            a(f"""
            s_mov_b32 s{s}, s{p}
            s_mov_b32 s{s + 1}, s{p + 1}
            s_mov_b32 s{s + 2}, {nbytes}
            s_mov_b32 s{s + 3}, 0x20000
            """)

        srd(sDST, 46, E * 4)
        srd(sSRC, 44, E * 4)
        srd(sEA, 42, E * 2)
        srd(sX, 40, N * 512)
        srd(sWM, 48, 513 * 512)
        srd(sWU, 50, 512 * 512)
        srd(sWS, 56, WS_SIZE)
        a("s_barrier")
        if self.opt("pad", 0) and "pad0" not in self.opts:
            a("s_memrealtime s[96:97]")
        self.stamp("start")
        a(f"""
        s_cmp_ge_u32 s{sW}, 8
        s_cbranch_scc1 L_role_l
        s_cmp_ge_u32 s{sW}, 4
        s_cbranch_scc1 L_role_x
        s_cmp_eq_u32 s{sW}, 0
        s_cbranch_scc0 L_role_u
        s_setprio 3
        v_mul_u32_u24 v{t6}, 40, v{LANE}
        v_mul_u32_u24 v{t7}, 20, v{LANE}
        s_mul_i32 s{sA}, s{sT}, {EC * 4}
        s_mul_i32 s{sB}, s{sT}, {EC * 2}
        buffer_load_dwordx4 v[24:27], v{t6}, {sr(sDST, 4)}, s{sA} offen
        buffer_load_dwordx4 v[28:31], v{t6}, {sr(sDST, 4)}, s{sA} offen offset:16
        buffer_load_dwordx2 v[32:33], v{t6}, {sr(sDST, 4)}, s{sA} offen offset:32
        buffer_load_dwordx4 v[34:37], v{t6}, {sr(sSRC, 4)}, s{sA} offen
        buffer_load_dwordx4 v[38:41], v{t6}, {sr(sSRC, 4)}, s{sA} offen offset:16
        buffer_load_dwordx2 v[42:43], v{t6}, {sr(sSRC, 4)}, s{sA} offen offset:32
        buffer_load_dwordx4 v[44:47], v{t7}, {sr(sEA, 4)}, s{sB} offen
        buffer_load_dword v48, v{t7}, {sr(sEA, 4)}, s{sB} offen offset:16
        v_mov_b32 v{t6}, {W_EPOCH}
        buffer_load_dwordx2 {vr(TAG, 2)}, v{t6}, {sr(sWS, 4)}, 0 offen sc1
        s_branch L_role_done
        L_role_u:
        s_cmp_eq_u32 s{sW}, 1
        s_cbranch_scc0 L_role_done
        s_cmp_ge_u32 s{sT}, 128
        s_cbranch_scc1 L_role_done
        s_mov_b32 m0, {USC}
        s_and_b32 s{sA}, s{sT}, 7
        s_lshl_b32 s{sA}, s{sA}, 5
        s_lshr_b32 s{sB}, s{sT}, 3
        s_lshl_b32 s{sB}, s{sB}, 5
        v_lshrrev_b32 v{t6}, 1, v{LANE}
        v_add_u32 v{t6}, s{sA}, v{t6}
        v_and_b32 v{t7}, 3, v{t6}
        v_lshrrev_b32 v{t6}, 2, v{t6}
        v_lshl_add_u32 v{t6}, v{t7}, 6, v{t6}
        v_add_u32 v{t6}, 256, v{t6}
        v_and_b32 v{t7}, 1, v{LANE}
        v_lshlrev_b32 v{t7}, 4, v{t7}
        v_lshl_add_u32 v{t6}, v{t6}, 9, v{t7}
        buffer_load_dwordx4 v{t6}, {sr(sWU, 4)}, s{sB} offen lds
        s_branch L_role_done
        L_role_x:
        v_subrev_u32 v{t7}, 4096, v{GO}
        v_xor_b32 v{t6}, 0x80, v{t7}
        s_lshl_b32 s{sA}, s{sW}, 10
        """)
        for m in range(5):
            a(f"""
            s_add_u32 m0, s{sA}, {XB - 4096 + 4096 * m}
            s_mov_b32 s{sB}, {4096 * m}
            buffer_load_dwordx4 v{t7 if (m & 1) else t6}, {sr(sX, 4)}, s{sB} offen lds
            """)
        a(f"""
        s_branch L_role_done
        L_role_l:
        """)
        if "nowarm" not in self.opts:
            a(f"""
            s_lshr_b32 s{sA}, s{sT}, 3
            s_lshl_b32 s{sA}, s{sA}, 13
            s_add_u32 s{sA}, s{sA}, s{sW1K}
            v_lshlrev_b32 v{t6}, 4, v{LANE}
            buffer_load_dwordx4 v[24:27], v{t6}, {sr(sWM, 4)}, s{sA} offen
            s_lshr_b32 s{sA}, s{sA}, 1
            s_and_b32 s{sA}, s{sA}, 0x1fe00
            v_lshlrev_b32 v{t7}, 3, v{LANE}
            buffer_load_dwordx2 v[28:29], v{t7}, {sr(sWU, 4)}, s{sA} offen
            """)
        for k in range(2):
            self.dma_body(k, k)
        a.label("L_role_done")
        self.vm("N", "x")
        srd(sOUT, 52, N * 512)
        a(f"""
        s_add_u32 s{sP}, s56, {W_P}
        s_addc_u32 s{sP + 1}, s57, 0
        s_or_b32 s{sP + 1}, s{sP + 1}, {512 << 16}
        s_mov_b32 s{sP + 2}, {N}
        s_mov_b32 s{sP + 3}, 0x20000
        s_mov_b32 s{sNL2E}, {NLOG2E}
        s_mov_b32 s{sNL2E + 1}, {NLOG2E}
        s_mov_b32 s{sNLN2}, {NLN2}
        s_mov_b32 s{sNLN2 + 1}, {NLN2}
        v_and_b32 v{t0}, 15, v{LANE}
        v_lshrrev_b32 v{t1}, 4, v{LANE}
        v_bfe_u32 v{t2}, v{LANE}, 2, 2
        v_and_b32 v{t3}, 3, v{LANE}
        s_lshl_b32 s{sB}, s{sW}, 1
        v_and_b32 v{t4}, 1, v{t1}
        v_lshl_or_b32 v{t4}, v{t4}, 2, v{t2}
        v_lshlrev_b32 v{t4}, 1, v{t4}
        v_lshrrev_b32 v{t5}, 1, v{t3}
        v_add_u32 v{t5}, s{sB}, v{t5}
        v_xor_b32 v{t4}, v{t4}, v{t5}
        v_lshlrev_b32 v{t4}, 4, v{t4}
        v_and_b32 v{t5}, 1, v{t3}
        v_lshl_add_u32 v{t4}, v{t5}, 3, v{t4}
        v_lshl_add_u32 v{t5}, v{t1}, 3, v{t2}
        v_lshl_add_u32 v{TR0}, v{t5}, 9, v{t4}
        v_add_u32 v{TR1}, 65536, v{TR0}
        v_lshlrev_b32 v{t5}, 5, v{t5}
        v_lshl_add_u32 v{OFFV}, v{t3}, 3, v{t5}
        v_lshlrev_b32 v{t5}, 9, v{t0}
        v_add_u32 v{t5}, {XB}, v{t5}
        """)
        for k in range(4):
            a(f"""
            v_add_u32 v{t4}, {4 * k}, v{t1}
            v_xor_b32 v{t4}, v{t4}, v{t0}
            v_lshl_add_u32 v{XA + k}, v{t4}, 4, v{t5}
            """)
        a(f"""
        v_lshrrev_b32 v{t4}, 1, v{t1}
        v_add_u32 v{t4}, s{sB}, v{t4}
        v_xor_b32 v{t4}, v{t4}, v{t0}
        v_lshlrev_b32 v{t4}, 4, v{t4}
        v_and_b32 v{t6}, 1, v{t1}
        v_lshl_add_u32 v{t4}, v{t6}, 3, v{t4}
        v_lshl_add_u32 v{t4}, v{t0}, 9, v{t4}
        v_add_u32 v{STG}, {PS}, v{t4}
        v_lshlrev_b32 v{STR}, 4, v{TID}
        v_add_u32 v{STR}, {PS}, v{STR}
        v_add_u32 v{GO2}, 16384, v{GO}
        s_cmp_lt_u32 s{sW}, 4
        s_cbranch_scc1 L_go2
        v_mov_b32 v{GO2}, {OOB}
        L_go2:
        s_lshl_b32 s{sB}, s{sT}, 5
        v_mov_b32 v{t5}, {OOB}
        v_cmp_eq_u32 vcc, 0, v{LANE}
        v_mov_b32 v{t6}, s{sB}
        v_lshlrev_b32 v{POA}, 5, v{LANE}
        v_cndmask_b32 v{FA}, v{t5}, v{t6}, vcc
        s_cmp_eq_u32 s{sW}, 0
        s_cbranch_scc0 L_nobin
        s_mov_b32 s{sC}, -40
        s_mov_b32 s{sD}, {HIST}
        v_mov_b32 v116, 1
        """)
        self.binning()
        a(f"""
        s_setprio 0
        s_branch L_bin_done
        L_nobin:
        s_cmp_eq_u32 s{sW}, 1
        s_cbranch_scc0 L_bin_skip
        s_cmp_ge_u32 s{sT}, 128
        s_cbranch_scc1 L_bin_skip
        v_add_u32 v{t5}, {USC}, v{OFFV}
        s_waitcnt vmcnt(0)
        ds_read_b64_tr_b16 {vr(UQ, 2)}, v{t5}
        ds_read_b64_tr_b16 {vr(UQ + 2, 2)}, v{t5} offset:128
        s_lshl_b32 s{sD}, s{sT}, 10
        s_add_u32 s{sD}, s{sD}, {W_UT}
        v_lshlrev_b32 v{t6}, 4, v{LANE}
        s_waitcnt lgkmcnt(0)
        buffer_store_dwordx4 {vr(UQ, 4)}, v{t6}, {sr(sWS, 4)}, s{sD} offen sc1
        s_branch L_bin_done
        L_bin_skip:
        s_cmp_ge_u32 s{sW}, 8
        s_cbranch_scc1 L_bin_done
        s_waitcnt vmcnt(0)
        L_bin_done:
        """)
        self.q["N"] = []

        chunk_slot = [(0, 1, 3)[k % 3] for k in range(12)]
        issue_at = {k: k + 2 for k in range(10) if k != 3}
        k_fa = self.opt("kfa", 1)
        k_pa = self.opt("kpa", 8)
        k_rec = self.opt("krec", 10)
        k_fb = self.opt("kfb", 7)

        for k in range(12):
            acc = ACC if 4 <= k < 8 else AC2
            if k == k_fb:
                self.vmwait({"p", f"c{k}"})
            else:
                self.vmwait({f"c{k}"})
            if k == k_pa + 1:
                self.wave0(lambda: self.poll_wait(W_FA, True))
            self.barrier(f"B{k}", lgkm=False)
            if k == 0:
                self.xreads(0)
            if k == k_fb:
                def fb():
                    a(f"s_mov_b32 s{sB}, {W_FB}")
                    a(f"buffer_store_dwordx2 {vr(TAG, 2)}, v{FA}, {sr(sWS, 4)}, s{sB} offen sc1")
                self.wave0(fb)
            if k == k_pa + 1:
                lab = a.newlabel("ep")
                a(f"""
                s_or_b32 s{sB}, s{sT}, s{sW}
                s_cbranch_scc1 {lab}
                buffer_store_dwordx2 {vr(TAG, 2)}, v{FA}, {sr(sWS, 4)}, 0 offen sc1
                {lab}:
                v_lshrrev_b32 v{RBA}, 2, v{TID}
                s_lshl_b32 s{sB}, s{sT}, 2
                s_add_u32 s{sB}, s{sB}, {W_OFFS}
                v_lshlrev_b32 v{t5}, 10, v{RBA}
                v_mov_b32 v{t6}, {OOB}
                v_cmp_gt_u32 vcc, {NT}, v{RBA}
                v_lshlrev_b32 v{t7}, 1, v{LANE}
                v_cndmask_b32 v{t5}, v{t6}, v{t5}, vcc
                buffer_load_dword v{OFFV}, v{t5}, {sr(sWS, 4)}, s{sB} offen sc1
                s_mov_b32 s{sB}, {512 * 512}
                """)
                self.vm("LN", "offs")
                a(f"v_mov_b64 {vr(W3, 2)}, 0\nv_mov_b64 {vr(W3 + 2, 2)}, 0")
                for r in range(4):
                    a(f"buffer_load_short_d16_hi v{W3 + r}, v{t7}, {sr(sWM, 4)}, s{sB} offen offset:{128 * r}")
                self.vm("LN", "w3", 4)
            self.trreads(chunk_slot[k])
            self.mfmas(acc, k % 4 == 0)
            if k in issue_at:
                self.dma(issue_at[k], chunk_slot[issue_at[k]])
            if k == k_fa:
                def fa():
                    a(f"s_mov_b32 s{sB}, {W_FA}\ns_waitcnt vmcnt(0)")
                    a(f"buffer_store_dwordx2 {vr(TAG, 2)}, v{FA}, {sr(sWS, 4)}, s{sB} offen sc1")
                self.wave0(fa)
            if k == 3:
                for rb in range(3):
                    for h in range(2):
                        a(f"v_pk_mul_f32 {vr(AC2 + 4 * rb + 2 * h, 2)}, {vr(AC2 + 4 * rb + 2 * h, 2)}, {sr(sNL2E, 2)} op_sel_hi:[1,0]")
                    a(f"v_cvt_pk_bf16_f32 v{PQ + 2 * rb}, v{AC2 + 4 * rb}, v{AC2 + 4 * rb + 1}")
                    a(f"v_cvt_pk_bf16_f32 v{PQ + 2 * rb + 1}, v{AC2 + 4 * rb + 2}, v{AC2 + 4 * rb + 3}")
                    a(f"ds_write_b64 v{STG}, {vr(PQ + 2 * rb, 2)} offset:{rb * 8192}")
                self.barrier("PS")
                a(f"""
                ds_read_b128 {vr(PQ, 4)}, v{STR}
                ds_read_b128 {vr(PQ + 4, 4)}, v{STR} offset:16384
                """)
                self.xreads(0)
                a(f"""
                s_mov_b32 s{sB}, {W_P}
                s_waitcnt lgkmcnt(7)
                buffer_store_dwordx4 {vr(PQ, 4)}, v{GO}, {sr(sWS, 4)}, s{sB} offen sc1
                s_waitcnt lgkmcnt(6)
                buffer_store_dwordx4 {vr(PQ + 4, 4)}, v{GO2}, {sr(sWS, 4)}, s{sB} offen sc1
                """)
                self.vm("LN", "p", 2)
                self.dma(5, chunk_slot[5])
            elif k < 11:
                self.xreads((k + 1) % 4)
            if k == 7:
                for h in range(6):
                    a(f"v_pk_mul_f32 {vr(ACC + 2 * h, 2)}, {vr(ACC + 2 * h, 2)}, {sr(sNL2E, 2)} op_sel_hi:[1,0]")
            if k == k_pa:
                self.wave0(lambda: self.poll_issue(W_FA))
            if k == k_rec:
                self.vmwait({"offs"})
                a(f"""
                v_and_b32 v{t5}, 3, v{TID}
                v_mul_u32_u24 v{t4}, {EC * 8}, v{RBA}
                v_and_b32 v{t6}, 0xffff, v{OFFV}
                v_lshrrev_b32 v{t7}, 16, v{OFFV}
                v_add_u32 v{t6}, v{t6}, v{t5}
                v_lshl_add_u32 v{t4}, v{t6}, 3, v{t4}
                v_add_u32 v{RBA}, {W_RECS}, v{t4}
                v_sub_u32 v{CQ}, v{t7}, v{t5}
                v_cmp_lt_u32 vcc, {4 * NPASS}, v{t7}
                s_mov_b32 s{sP0}, 0
                s_mov_b32 s{sNP}, {NPASS}
                s_mov_b32 s{sFIRST}, 1
                s_mov_b32 s{sMODE}, 0
                """)
                self.rec_issue()
                self.vm("LN", "rec", NPASS)
                a(f"""
                v_mov_b32 v{t4}, {MISC}
                s_and_saveexec_b64 {sr(sEX, 2)}, vcc
                s_cbranch_execz L_nomax
                ds_max_u32 v{t4}, v{t7}
                s_waitcnt lgkmcnt(0)
                L_nomax:
                s_mov_b64 exec, -1
                """)
        ZQ = 24
        a(f"""
        v_mov_b64 {vr(ZQ, 2)}, 0
        v_mov_b64 {vr(ZQ + 2, 2)}, 0
        v_add_u32 v{t0}, {(AB - PS) & 0xffffffff}, v{STR}
        """)
        self.zero_agg(t0, ZQ)
        a(f"""
        v_and_b32 v{t1}, 15, v{LANE}
        v_lshrrev_b32 v{t2}, 4, v{LANE}
        s_lshl_b32 s{sB}, s{sW}, 6
        v_mul_u32_u24 v{t3}, {QS}, v{t1}
        v_lshl_add_u32 v{t3}, v{t2}, 4, v{t3}
        v_add_u32 v{t3}, s{sB}, v{t3}
        v_cmp_gt_u32 vcc, 8, v{t1}
        """)
        for rb in range(3):
            for h in range(2):
                a(f"v_pk_mul_f32 {vr(AC2 + 4 * rb + 2 * h, 2)}, {vr(AC2 + 4 * rb + 2 * h, 2)}, {sr(sNL2E, 2)} op_sel_hi:[1,0]")
            if rb == 2:
                a("s_mov_b64 exec, vcc")
            a(f"ds_write_b128 v{t3}, {vr(AC2 + 4 * rb, 4)} offset:{QB + rb * 16 * QS}")
        a("s_mov_b64 exec, -1")
        for k in range(4):
            a(f"v_add_u32 v{XA + k}, {(AB - XB) & 0xffffffff}, v{XA + k}")
        a(f"""
        s_lshl_b32 s{sA}, s{sW}, 12
        s_add_u32 s{sSLOT}, s{sA}, {RING}
        s_add_u32 s{sSLOT + 1}, s{sA}, {RING + 1024}
        s_add_u32 s{sSLOT + 2}, s{sA}, {RING + 2048}
        s_add_u32 s{sSLOT + 3}, s{sA}, {RING + 3072}
        v_lshl_add_u32 v{RG}, v{LANE}, 1, s{sSLOT}
        v_and_b32 v{IOF}, 31, v{LANE}
        v_lshlrev_b32 v{IOF}, 4, v{IOF}
        v_lshlrev_b32 v{L4}, 2, v{LANE}
        v_lshlrev_b32 v{L8}, 3, v{LANE}
        s_waitcnt vmcnt(0)
        v_pk_mul_f32 {vr(W3, 2)}, {vr(W3, 2)}, {sr(sNL2E, 2)} op_sel_hi:[1,0]
        v_pk_mul_f32 {vr(W3 + 2, 2)}, {vr(W3 + 2, 2)}, {sr(sNL2E, 2)} op_sel_hi:[1,0]
        s_branch L_round_body
        L_round:
        """)
        self.rec_issue()
        a(f"""
        s_waitcnt vmcnt(0)
        L_round_body:
        v_mov_b32 v{SC}, 1
        """)
        for k in range(NPASS):
            a(f"""
            v_bfe_u32 v{DL4 + k}, v{REC + 2 * k}, 16, 6
            v_lshlrev_b32 v{DL4 + k}, 2, v{DL4 + k}
            v_add_u32 v{SC + 1 + k}, {CNTN}, v{DL4 + k}
            s_mov_b64 exec, {sr(sVAL + 2 * k, 2)}
            ds_add_rtn_u32 v{RANK + k}, v{SC + 1 + k}, v{SC}
            s_mov_b64 exec, -1
            """)
        lab = a.newlabel("pb")
        a(f"s_and_b32 s{sA}, s{sFIRST}, 1\ns_lshl_b32 s{sB}, s{sW}, 1\ns_or_b32 s{sA}, s{sA}, s{sB}\ns_cmp_eq_u32 s{sA}, 1\ns_cbranch_scc0 {lab}")
        self.poll_issue(W_FB)
        a.label(lab)
        self.barrier("C1")
        a(f"""
        v_add_u32 v{SC + 3}, {CNTN}, v{L4}
        v_mov_b32 v{SC + 2}, {MISC}
        ds_read_b32 v{SC}, v{SC + 3}
        ds_read_b32 v{SC + 2}, v{SC + 2}
        v_mov_b64 {vr(SC + 4, 2)}, -1
        s_lshl_b32 s{sA}, s{sW}, 9
        s_add_u32 s{sA}, s{sA}, {SIDE}
        v_add_u32 v{SC + 6}, s{sA}, v{L8}
        ds_write_b64 v{SC + 6}, {vr(SC + 4, 2)}
        s_waitcnt lgkmcnt(1)
        v_mov_b32 v{SC + 1}, v{SC}
        v_readfirstlane_b32 s{sMAXC}, v{SC + 2}
        """)
        self.scan(SC + 1)
        a(f"""
        v_readlane_b32 s{sM}, v{SC + 1}, 63
        v_sub_u32 v{SC + 1}, v{SC + 1}, v{SC}
        s_cmp_eq_u32 s{sNP}, {NPASS}
        s_cbranch_scc0 L_lists
        s_cmp_gt_u32 s{sM}, 1024
        s_cbranch_scc1 L_generic
        s_cmp_eq_u32 s{sMAXC}, 0
        s_cbranch_scc0 L_generic
        s_cmp_lt_u32 s{sM}, 64
        s_cbranch_scc0 L_lists
        s_mov_b32 s{sMODE}, 1
        L_lists:
        """)
        for k in range(NPASS):
            a(f"ds_bpermute_b32 v{SC + 4 + k}, v{DL4 + k}, v{SC + 1}")
        for k in range(NPASS):
            a(f"v_lshrrev_b32 v{DL4 + k}, 2, v{DL4 + k}")
        a(f"s_mov_b32 s{sA}, {IL}\ns_mov_b32 s{sB}, {EL}\ns_waitcnt lgkmcnt(0)")
        for k in range(NPASS):
            a(f"""
            v_add_u32 v{RANK + k}, v{RANK + k}, v{SC + 4 + k}
            v_lshl_add_u32 v{SC}, v{RANK + k}, 1, s{sA}
            v_lshl_add_u32 v{SC + 2}, v{RANK + k}, 2, s{sB}
            v_add_u32 v{RANK + k}, {DL}, v{RANK + k}
            s_mov_b64 exec, {sr(sVAL + 2 * k, 2)}
            ds_write_b16 v{SC}, v{REC + 2 * k}
            ds_write_b32 v{SC + 2}, v{REC + 2 * k + 1}
            ds_write_b8 v{RANK + k}, v{DL4 + k}
            s_mov_b64 exec, -1
            """)
        a(f"""
        s_add_u32 s{sA}, s{sM}, 1
        s_lshr_b32 s{sA}, s{sA}, 1
        s_mul_i32 s{sB}, s{sA}, s{sW}
        s_add_u32 s{sC}, s{sB}, s{sA}
        s_lshr_b32 s{sB}, s{sB}, 4
        s_lshr_b32 s{sC}, s{sC}, 4
        s_sub_u32 s{sREM}, s{sC}, s{sB}
        s_lshl_b32 s{sC}, s{sC}, 1
        s_cmp_lt_u32 s{sC}, s{sM}
        s_cselect_b32 s{sCO}, 1, 0
        s_min_u32 s{sC}, s{sC}, s{sM}
        s_lshl_b32 s{sI}, s{sB}, 1
        s_sub_u32 s{sNE}, s{sC}, s{sI}
        v_lshrrev_b32 v{TM}, 5, v{LANE}
        s_lshl_b32 s{sA}, s{sB}, 2
        s_add_u32 s{sA}, s{sA}, {IL}
        v_lshl_add_u32 v{IXA}, v{TM}, 1, s{sA}
        s_add_u32 s{sD}, s{sI}, {DL - 1}
        v_add_u32 v{INFO}, s{sD}, v{LANE}
        s_lshl_b32 s{sA}, s{sB}, 3
        s_add_u32 s{sA}, s{sA}, {EL}
        v_mov_b32 v{EA}, s{sA}
        v_mov_b32 v{IA + 1}, v{IOF}
        """)
        lab = a.newlabel("pb2")
        a(f"s_and_b32 s{sA}, s{sFIRST}, 1\ns_lshl_b32 s{sB}, s{sW}, 1\ns_or_b32 s{sA}, s{sA}, s{sB}\ns_cmp_eq_u32 s{sA}, 1\ns_cbranch_scc0 {lab}")
        self.poll_wait(W_FB, True)
        a.label(lab)
        self.barrier("C2")
        a(f"""
        s_cmp_gt_i32 s{sNE}, 0
        s_cbranch_scc0 L_empty
        """)
        for k in range(5):
            a(f"ds_read_u16 v{PA[1] + k}, v{IXA} offset:{4 * k}")
        a(f"""
        ds_read_u8 v{TM}, v{INFO}
        ds_read_u8 v{TM + 2}, v{INFO} offset:1
        ds_read_u8 v{TM + 1}, v{INFO} offset:2
        ds_read_b64 {vr(EE[0], 2)}, v{EA}
        v_mov_b32 v{TM + 3}, 0
        ds_write_b32 v{SC + 3}, v{TM + 3}
        """)
        if "noprio" not in self.opts:
            a("s_setprio 3")
        for k in range(4):
            a(f"s_waitcnt lgkmcnt({9 - k})")
            a(f"v_mov_b32 v{IA}, v{PA[1] + k}")
            self.gather(k)
        a(f"""
        s_waitcnt lgkmcnt(2)
        v_mov_b32 v{IA}, v{PA[1] + 4}
        v_cmp_ne_u32 {sr(sMASK, 2)}, v{TM + 2}, v{TM + 1}
        v_cmp_eq_u32 vcc, v{TM + 2}, v{TM}
        v_mul_u32_u24 v{INFO}, {QS}, v{TM + 2}
        v_and_b32 v{TM + 1}, 15, v{TM + 2}
        v_lshlrev_b32 v{TM + 1}, 4, v{TM + 1}
        v_lshl_add_u32 v{TM + 1}, v{TM + 2}, 9, v{TM + 1}
        v_add_u32 v{TM + 1}, {AB}, v{TM + 1}
        v_lshl_or_b32 v{INFO}, v{TM + 1}, 16, v{INFO}
        s_sub_u32 s{sA}, s{sNE}, 1
        s_bitcmp0_b64 {sr(sMASK, 2)}, s{sA}
        s_cselect_b32 s{sCO}, s{sCO}, 0
        s_bitset1_b64 {sr(sMASK, 2)}, s{sA}
        v_readfirstlane_b32 s{sB}, v{INFO}
        s_and_b32 s{sC}, vcc_lo, 1
        s_cmp_eq_u32 s{sI}, 0
        s_cselect_b32 s{sC}, 0, s{sC}
        s_cmp_eq_u32 s{sMODE}, 0
        s_cselect_b32 s{sC}, s{sC}, 0
        s_lshl_b32 s{sA}, s{sW}, 9
        s_add_u32 s{sA}, s{sA}, {SIDE}
        s_lshr_b32 s{sD}, s{sB}, 16
        s_cmp_eq_u32 s{sC}, 0
        s_cselect_b32 s{sD}, s{sD}, s{sA}
        s_and_b32 s{sC}, s{sB}, 0xffff
        v_add_u32 v{QA}, s{sC}, v{L4}
        v_xor_b32 v{AG}, s{sD}, v{L8}
        ds_read2st64_b32 {vr(Q, 2)}, v{QA} offset0:0 offset1:1
        ds_read2st64_b32 {vr(Q + 2, 2)}, v{QA} offset0:2 offset1:3
        v_mov_b64 {vr(NN, 2)}, 0
        v_mov_b64 {vr(NN + 2, 2)}, 0
        v_mov_b32 v{DD}, 1.0
        v_mov_b32 v{DD + 1}, 1.0
        v_mov_b32 v{DD + 2}, 1.0
        v_mov_b32 v{DD + 3}, 1.0
        v_mov_b64 {vr(CK2, 2)}, 0
        v_mov_b32 v{CK1}, 0
        s_mov_b32 s{sI}, 0
        s_mov_b32 s{sTRIP}, 0
        """)
        self.stamp("setup")
        a("s_waitcnt vmcnt(3)")
        self.stamp("row0")
        self.p_reads(0, 0)
        a("s_waitcnt lgkmcnt(0)")
        self.gather(0)
        self.u2_loads()
        a(f"""
        s_cmp_eq_u32 s{sMODE}, 0
        s_cbranch_scc0 L_enter_x
        """)
        self.main_loop(False, "L_main_done")
        a.reset_hist()
        a.label("L_main_done")
        a("s_setprio 0")
        self.stamp("loop")
        a(f"""
        v_add_f32 v{CK2}, v{CK2}, v{CK2 + 1}
        v_mov_b32 v{TM}, {BIG}
        v_cmp_u_f32 vcc, v{CK2}, v{CK2}
        v_cmp_nle_f32 s[40:41], v{CK1}, v{TM}
        s_nop 1
        s_or_b64 vcc, vcc, s[40:41]
        s_cbranch_scc0 L_after
        v_mov_b32 v{TM}, {MISC + 4}
        v_mov_b32 v{TM + 1}, 1
        ds_write_b32 v{TM}, v{TM + 1}
        L_after:
        s_mov_b32 s{sFIRST}, 0
        s_waitcnt vmcnt(0)
        """)
        self.barrier("M")
        a(f"""
        v_mov_b32 v{TM}, {MISC + 4}
        ds_read_b32 v{TM + 1}, v{TM}
        """)
        depth = 4

        def rd(s):
            for rb in range(3):
                a(f"ds_read_b128 {vr(XF + 12 * (s % depth) + 4 * rb, 4)}, v{XA + (s & 3)} offset:{rb * 8192 + (s >> 2) * 256}")

        for s in range(depth):
            rd(s)
        a(f"""
        s_cmp_eq_u32 s{sMODE}, 0
        s_cbranch_scc0 L_slow_next
        s_waitcnt lgkmcnt(12)
        v_readfirstlane_b32 s{sA}, v{TM + 1}
        s_nop 1
        s_cmp_eq_u32 s{sA}, 0
        s_cbranch_scc0 L_redo
        L_final:
        """)
        for s in range(8):
            ahead = min(depth - 1, 7 - s)
            a(f"s_waitcnt lgkmcnt({3 * ahead})")
            for rb in range(3):
                a(f"v_mfma_f32_16x16x32_bf16 {vr(ACC + 4 * rb, 4)}, {vr(UF + 4 * s, 4)}, {vr(XF + 12 * (s % depth) + 4 * rb, 4)}, {vr(ACC + 4 * rb, 4)}")
            if s + depth < 8:
                rd(s + depth)
        TE = 104
        for r in range(12):
            a(f"v_exp_f32 v{TE + r}, v{ACC + r}")
        for h in range(6):
            a(f"v_pk_add_f32 {vr(TE + 2 * h, 2)}, {vr(TE + 2 * h, 2)}, 1.0 op_sel_hi:[1,0]")
        for r in range(12):
            a(f"v_rcp_f32 v{TE + r}, v{TE + r}")
        for h in range(6):
            a(f"v_pk_mul_f32 {vr(ACC + 2 * h, 2)}, {vr(ACC + 2 * h, 2)}, {sr(sNLN2, 2)} op_sel_hi:[1,0]")
        for rb in range(3):
            for h in range(2):
                a(f"v_pk_mul_f32 {vr(ACC + 4 * rb + 2 * h, 2)}, {vr(ACC + 4 * rb + 2 * h, 2)}, {vr(TE + 4 * rb + 2 * h, 2)}")
            a(f"v_cvt_pk_bf16_f32 v{PQ + 2 * rb}, v{ACC + 4 * rb}, v{ACC + 4 * rb + 1}")
            a(f"v_cvt_pk_bf16_f32 v{PQ + 2 * rb + 1}, v{ACC + 4 * rb + 2}, v{ACC + 4 * rb + 3}")
            a(f"ds_write_b64 v{STG}, {vr(PQ + 2 * rb, 2)} offset:{rb * 8192}")
        self.barrier("F")
        a(f"""
        ds_read_b128 {vr(PQ + 8, 4)}, v{STR}
        ds_read_b128 {vr(PQ + 12, 4)}, v{STR} offset:16384
        s_waitcnt lgkmcnt(1)
        buffer_store_dwordx4 {vr(PQ + 8, 4)}, v{GO}, {sr(sOUT, 4)}, 0 offen {"sc1" if "outsc" in self.opts else ""}
        s_waitcnt lgkmcnt(0)
        buffer_store_dwordx4 {vr(PQ + 12, 4)}, v{GO2}, {sr(sOUT, 4)}, 0 offen {"sc1" if "outsc" in self.opts else ""}
        """)
        if self.opt("pad", 0):
            a(f"""
            L_pad:
            s_memrealtime s[98:99]
            s_waitcnt lgkmcnt(0)
            s_sub_u32 s98, s98, s96
            s_cmp_lt_u32 s98, {self.opt("pad", 0)}
            s_cbranch_scc1 L_pad
            """)
        if self.stamps:
            a("s_waitcnt vmcnt(0)")
            self.stamp("end")
            a(f"""
            s_lshl_b32 s{sA}, s{sT}, 4
            s_add_u32 s{sA}, s{sA}, s{sW}
            s_lshl_b32 s{sA}, s{sA}, 8
            s_add_u32 s{sA}, s{sA}, {W_STAMP}
            v_lshlrev_b32 v{TM}, 2, v{LANE}
            buffer_store_dword v{STAMPV}, v{TM}, {sr(sWS, 4)}, s{sA} offen
            """)
        a.label("L_end")
        a("s_endpgm")
        a.reset_hist()
        a(f"""
        L_generic:
        s_waitcnt vmcnt(0) lgkmcnt(0)
        s_barrier
        v_mov_b32 v{SC}, 0
        ds_write_b32 v{SC + 3}, v{SC}
        s_mov_b32 s{sNP}, 1
        s_mov_b32 s{sMODE}, 1
        s_waitcnt lgkmcnt(0)
        s_barrier
        s_branch L_round
        L_empty:
        v_mov_b32 v{TM + 3}, 0
        ds_write_b32 v{SC + 3}, v{TM + 3}
        """)
        self.u2_loads()
        a(f"""
        s_branch L_after
        L_slow_next:
        s_cmp_eq_u32 s{sNP}, {NPASS}
        s_cbranch_scc1 L_final
        s_add_u32 s{sP0}, s{sP0}, 1
        s_max_u32 s{sA}, s{sMAXC}, {4 * NPASS}
        s_lshl_b32 s{sB}, s{sP0}, 2
        s_cmp_lt_u32 s{sB}, s{sA}
        s_cbranch_scc0 L_final
        s_waitcnt lgkmcnt(0)
        s_branch L_round
        L_redo:
        s_waitcnt lgkmcnt(0)
        s_barrier
        s_mov_b32 s{sMODE}, 1
        v_mov_b64 {vr(XF, 2)}, 0
        v_mov_b64 {vr(XF + 2, 2)}, 0
        v_add_u32 v{XF + 4}, {(AB - PS) & 0xffffffff}, v{STR}
        """)
        self.zero_agg(XF + 4, XF)
        a("s_branch L_round")
        self.main_loop(True, "L_after")

    def text(self):
        hdr = f"""; Fused MPNN edge-MLP kernel: P = x W1 published per tile, edges binned by destination tile,
; @launch grid=({NT},1,1) block=(1024,1,1) lds={LDS_TOTAL}
.amdgcn_target "amdgcn-amd-amdhsa--gfx950"
.text
.globl {NAME}_kernel
.p2align 8
.type {NAME}_kernel,@function
{NAME}_kernel:
"""
        ftr = f""".section .rodata,"a"
.p2align 6
.amdhsa_kernel {NAME}_kernel
  .amdhsa_next_free_vgpr 128
  .amdhsa_next_free_sgpr 102
  .amdhsa_accum_offset 128
  .amdhsa_group_segment_fixed_size 0
  .amdhsa_kernarg_size 72
  .amdhsa_user_sgpr_count 2
  .amdhsa_user_sgpr_kernarg_segment_ptr 1
  .amdhsa_system_sgpr_workgroup_id_x 1
.end_amdhsa_kernel
"""
        return hdr + self.a.text() + ftr


if __name__ == "__main__":
    out = [x for x in sys.argv[1:] if not x.startswith("--")]
    g = Gen(opts=[x[2:] for x in sys.argv[1:] if x.startswith("--")])
    g.build()
    txt = g.text()
    if g.stamps:
        txt = "; stamps: " + ",".join(g.names) + "\n" + txt
    open(out[0] if out else "cdna_kernels/%s.s" % NAME, "w").write(txt)
    print("nops inserted:", g.a.nops, "lines:", len(g.a.lines), "stamps:", g.nstamp)
```

```python
import sys
import struct
from asmlib import Asm

NAME = "gather_scatter__mpnn_edge_mlp__graph"
N, E, D = 10000, 160000, 256
T, NT, EC = 40, 250, 640

SLOT = (0, 32768, 65536, 98304)
XB = 131072
SIDE = 41984
HIST, BASE, SORT, USC = 151552, 152576, 153600, 158720
CNTN, MISC = 160768, 161024
IL, EL, DL = 151552, 153664, 157824
QB, QS = 0, 1040
AB = XB
RING = 65536
PS = 65536
LDS_TOTAL = 163840

W_EPOCH, W_FA, W_FB = 0, 0x1000, 0x3000
W_OFFS, W_RECS, W_UT, W_P = 0x10000, 0x90000, 0x1D0000, 0x200000
W_STAMP = 0x800000
WS_SIZE = 0xA00000
OOB = 0x80000000
POLL_LIMIT = 200000


def f2u(x):
    return struct.unpack("<I", struct.pack("<f", x))[0]


NLOG2E = f2u(-1.4426950408889634)
NLN2 = f2u(-0.6931471805599453)
BIG = f2u(2.0 ** 120)


def vr(a, n=1):
    return "v%d" % a if n == 1 else "v[%d:%d]" % (a, a + n - 1)


def sr(a, n=1):
    return "s%d" % a if n == 1 else "s[%d:%d]" % (a, a + n - 1)


TID, LANE = 0, 1
XA = 2
STG, GO, GO2, STR = 6, 7, 8, 9
RBA, CQ = 10, 11
ACC = 12
UF = 24
XR = 24
XF2, WF = 88, 96
AC2 = 104
XF = 56
WOFF, TR0, TR1 = 120, 121, 122
STAMPV = 123
W3 = 124
NPASS = 4
POLLB = 48
XCNT, S1C, S2C, ACKC = MISC + 8, MISC + 12, MISC + 16, MISC + 20


class Scratch:
    def __init__(self, rec, adr, rank, tmp):
        self.rec, self.adr, self.rank, self.tmp = rec, adr, rank, tmp


REC1 = [116, 118, 124, 126]
SCRA = Scratch(REC1, AC2, AC2 + 4, AC2 + 8)
SCRX = Scratch(REC1, 24, 28, 56)
SCR2 = Scratch([24, 26, 28, 30], 32, 36, 40)
CNA = 109
PA = (56, 64)
EE = (72, 74)
IA, Q, QE, Y, TT, NN, DD = 76, 78, 86, 90, 94, 98, 102
CK2, CK1 = 106, 108
RG, IXA, EA, QA, AG, L4, L8, INFO, TM, IOF = 82, 116, 117, 112, 113, 83, 84, 118, 120, 85
TZ = 115
IX0 = 56

sT, sW = 2, 3
sX, sWM, sWU, sWS, sP, sOUT, sSRC, sDST, sEA = 4, 8, 12, 16, 20, 24, 28, 32, 36
sNL2E, sNLN2, sWK, sW1K = 58, 60, 62, 63
sMASK, sI, sNE, sREM, sTRIP, sSLOT = 64, 66, 67, 68, 69, 70
sM, sP0, sNP, sMAXC, sFIRST, sMODE = 74, 75, 76, 77, 78, 79
sVAL = 80
sA, sB, sC, sD = 88, 89, 90, 91
sEX = 30
sCO = 48
sHI, sTAG, sTLO, sGEN = 49, 52, 56, 57
sQ0, sAG0 = 44, 45


class Gen:
    def __init__(self, opts=()):
        self.opts = set(opts)
        self.a = Asm()
        self.stamps = "stamps" in self.opts
        self.nstamp = 0
        self.names = []
        self.q = {"L": [], "N": []}

    def opt(self, name, default):
        for o in self.opts:
            if o.startswith(name + "="):
                return int(o.split("=")[1])
        return default

    STAMP_REGS = [92, 94, 96, 98, 100, 50, 54, 4, 6, 32, 34, 36, 38]

    def stamp(self, name):
        if not self.stamps:
            return
        sel = [o[3:].split("+") for o in self.opts if o.startswith("st=")]
        if name not in ("start", "end") and sel and name not in sel[0]:
            return
        k = self.nstamp
        self.nstamp += 1
        self.names.append(name)
        if "dbg" in self.opts:
            self.a(f"s_memrealtime {sr(self.STAMP_REGS[k], 2)}")
            if name == "end":
                a = self.a
                a("s_load_dwordx2 s[40:41], s[0:1], 56\ns_waitcnt lgkmcnt(0)")
                a(f"s_not_b32 s44, s{self.STAMP_REGS[0]}\nv_writelane_b32 v{STAMPV}, s44, 15")
                for i in range(self.nstamp):
                    a(f"v_writelane_b32 v{STAMPV}, s{self.STAMP_REGS[i]}, {i}")
                a(f"""
                s_mov_b32 s42, 64
                s_mov_b32 s43, 0x20000
                v_lshlrev_b32 v{TM}, 2, v{LANE}
                s_cmp_eq_u32 s{sW}, 0
                s_cbranch_scc0 L_end
                buffer_atomic_umax v{STAMPV}, v{TM}, s[40:43], 0 offen
                s_branch L_end
                """)
            return
        if name in ("start", "end"):
            self.a(f"""
            s_memrealtime s[40:41]
            s_waitcnt lgkmcnt(0)
            v_writelane_b32 v{STAMPV}, s40, {0 if name == "start" else 1}
            """)
        self.a(f"s_memtime {sr(self.STAMP_REGS[k], 2)}")
        if name == "end":
            self.a("s_waitcnt lgkmcnt(0)")
            for i in range(self.nstamp):
                self.a(f"v_writelane_b32 v{STAMPV}, s{self.STAMP_REGS[i]}, {32 + i}")

    def vm(self, roles, tag, n=1):
        for r in roles:
            self.q[r] += [tag] * n

    def vmwait(self, tags):
        need = {}
        for r, lst in self.q.items():
            last = max((i for i, t in enumerate(lst) if t in tags), default=None)
            if last is None:
                need[r] = None
            else:
                need[r] = len(lst) - 1 - last
                self.q[r] = lst[last + 1:]
        a = self.a
        if need["L"] == need["N"]:
            if need["L"] is not None:
                a(f"s_waitcnt vmcnt({need['L']})")
            return
        lab = a.newlabel("vw")
        if need["N"] is None:
            a(f"s_cmp_lt_u32 s{sW}, 8\ns_cbranch_scc1 {lab}\ns_waitcnt vmcnt({need['L']})\n{lab}:")
        elif need["L"] is None:
            a(f"s_cmp_ge_u32 s{sW}, 8\ns_cbranch_scc1 {lab}\ns_waitcnt vmcnt({need['N']})\n{lab}:")
        elif need["L"] > need["N"]:
            a(f"s_waitcnt vmcnt({need['L']})\ns_cmp_ge_u32 s{sW}, 8\ns_cbranch_scc1 {lab}\ns_waitcnt vmcnt({need['N']})\n{lab}:")
        else:
            a(f"s_waitcnt vmcnt({need['N']})\ns_cmp_lt_u32 s{sW}, 8\ns_cbranch_scc1 {lab}\ns_waitcnt vmcnt({need['L']})\n{lab}:")

    def barrier(self, name, lgkm=True):
        if lgkm:
            self.a("s_waitcnt lgkmcnt(0)")
        self.a("s_barrier")
        self.stamp(name)

    def dma_body(self, k, slot, role="L"):
        a = self.a
        if f"noc{k}" in self.opts:
            for m in range(4):
                a(f"s_mov_b32 m0, {USC + 1024}\ns_mov_b32 s{sB}, {OOB}\nbuffer_load_dwordx4 v{WOFF}, {sr(sWM, 4)}, s{sB} offen lds")
            self.vm(role, f"c{k}", 4)
            return
        srd, base = ((sWM, 0), (sWU, 0), (sWM, 131072))[k // 4]
        c = k % 4
        for m in range(4):
            a(f"""
            s_add_u32 m0, s{sW1K}, {SLOT[slot] + m * 8192}
            s_mov_b32 s{sB}, {base + c * 32768 + m * 8192}
            buffer_load_dwordx4 v{WOFF}, {sr(srd, 4)}, s{sB} offen lds
            """)
        self.vm(role, f"c{k}", 4)

    def dma_all(self, k, slot, m):
        a = self.a
        srd, base = ((sWM, 0), (sWU, 0), (sWM, 131072))[k // 4]
        a(f"""
        s_add_u32 m0, s{sWK}, {SLOT[slot] + m * 16384}
        s_add_u32 s{sB}, s{sHI}, {base + (k % 4) * 32768 + m * 16384}
        buffer_load_dwordx4 v{WOFF}, {sr(srd, 4)}, s{sB} offen lds
        """)
        self.vm("LN", f"c{k}")

    def spin(self, ctr, target, tmp, extra=None):
        a = self.a
        lab = a.newlabel("spin")
        a(f"v_mov_b32 v{tmp}, {ctr}")
        a.label(lab)
        a(f"ds_read_b32 v{tmp + 1}, v{tmp}")
        if extra:
            a(extra)
        a(f"""
        s_waitcnt lgkmcnt(0)
        v_readfirstlane_b32 s{sA}, v{tmp + 1}
        s_nop 0
        s_cmp_lt_u32 s{sA}, {target}
        s_cbranch_scc1 {lab}
        """)

    def xspin(self, shift):
        a = self.a
        lab = a.newlabel("xs")
        a(f"""
        {lab}:
        ds_read_b32 v{WF + 1}, v{WF}
        s_waitcnt lgkmcnt(0)
        v_readfirstlane_b32 s{sA}, v{WF + 1}
        s_nop 0
        s_bfe_u32 s{sA}, s{sA}, {shift | (4 << 16)}
        s_cmp_lt_u32 s{sA}, 3
        s_cbranch_scc0 {lab}_ok
        s_sleep 1
        s_branch {lab}
        {lab}_ok:
        """)

    def touch(self):
        a = self.a
        l2, done = a.newlabel("tw2"), a.newlabel("tdone")
        a(f"""
        s_lshr_b32 s{sA}, s{sT}, 3
        s_lshl_b32 s{sA}, s{sA}, 12
        s_mov_b32 m0, {USC + 1024}
        v_lshlrev_b32 v{W3 + 2}, 4, v{LANE}
        s_cmp_eq_u32 s{sW}, 5
        s_cbranch_scc0 {l2}
        """)
        for m in range(4):
            a(f"s_add_u32 s{sB}, s{sA}, {1024 * m}\nbuffer_load_dwordx4 v{W3 + 2}, {sr(sWU, 4)}, s{sB} offen lds")
        a(f"s_branch {done}\n{l2}:\ns_cmp_eq_u32 s{sW}, 6\ns_cbranch_scc0 {done}")
        for m in range(4):
            a(f"s_add_u32 s{sB}, s{sA}, {131072 + 1024 * m}\nbuffer_load_dwordx4 v{W3 + 2}, {sr(sWM, 4)}, s{sB} offen lds")
        a.label(done)

    def xpreload(self, ua):
        a = self.a
        a(f"v_mov_b32 v{WF}, {XCNT}")
        self.xspin(0)
        self.stamp("xa")
        for s in range(8):
            a(f"ds_read_b128 {vr(XR + 4 * s, 4)}, v{XA + (s & 3)} offset:{(s >> 2) * 256}")
        a(f"""
        s_cmp_lt_u32 s{sW}, 5
        s_cbranch_scc1 L_xp_go
        s_cmp_ge_u32 s{sW}, 8
        s_cbranch_scc1 L_xp_go
        v_mov_b32 v{W3 + 3}, 16
        s_cmp_eq_u32 s{sW}, 7
        s_cbranch_scc1 L_xp_u
        s_mov_b64 exec, 1
        s_waitcnt vmcnt({4 if "toucha" in self.opts else 0})
        ds_add_u32 v{WF}, v{W3 + 3}
        s_mov_b64 exec, -1
        """)
        if "touchb" in self.opts:
            self.touch()
        a(f"""
        s_branch L_xp_go
        L_xp_u:
        s_mov_b64 exec, 1
        s_waitcnt vmcnt(1)
        ds_add_u32 v{WF}, v{W3 + 3}
        s_mov_b64 exec, -1
        s_cmp_ge_u32 s{sT}, 128
        s_cbranch_scc1 L_xp_go
        v_add_u32 v{ua}, {USC}, v{ua}
        s_lshl_b32 s{sD}, s{sT}, 10
        s_add_u32 s{sD}, s{sD}, {W_UT}
        v_lshlrev_b32 v{W3 + 2}, 4, v{LANE}
        s_waitcnt vmcnt(0)
        ds_read_b64_tr_b16 {vr(AC2 + 4, 2)}, v{ua}
        ds_read_b64_tr_b16 {vr(AC2 + 6, 2)}, v{ua} offset:128
        s_waitcnt lgkmcnt(0)
        buffer_store_dwordx4 {vr(AC2 + 4, 4)}, v{W3 + 2}, {sr(sWS, 4)}, s{sD} offen sc1
        """)
        a.label("L_xp_go")
        self.xspin(4)
        self.stamp("xb")
        for s in range(8):
            a(f"ds_read_b128 {vr(XR + 32 + 4 * s, 4)}, v{XA + (s & 3)} offset:{8192 + (s >> 2) * 256}")
        self.xreads(0)
        a(f"s_cmp_lt_u32 s{sW}, 8\ns_cbranch_scc1 L_xp_c2")
        self.dma_body(1, 1)
        a("s_branch L_xp_done\nL_xp_c2:")
        self.dma_body(2, 2, "N")
        a.label("L_xp_done")

    def xreads(self, c):
        a = self.a
        for sp in range(2):
            s = 2 * c + sp
            a(f"ds_read_b128 {vr(XF2 + 4 * sp, 4)}, v{XA + (s & 3)} offset:{2 * 8192 + (s >> 2) * 256}")

    def trreads(self, slot):
        a = self.a
        base = SLOT[slot]
        tr = TR0 if base < 65536 else TR1
        for sp in range(2):
            for p in range(2):
                a(f"ds_read_b64_tr_b16 {vr(WF + 4 * sp + 2 * p, 2)}, v{tr} offset:{(base & 65535) + 16384 * sp + 2048 * p}")

    def mfmas(self, acc, c, between=None):
        a = self.a
        for sp in range(2):
            if between:
                between(sp)
            a(f"s_waitcnt lgkmcnt({2 - 2 * sp})")
            for rb in range(3):
                cin = "0" if (c == 0 and sp == 0) else vr(acc + 4 * rb, 4)
                b = XR + 32 * rb + 4 * (2 * c + sp) if rb < 2 else XF2 + 4 * sp
                a(f"v_mfma_f32_16x16x32_bf16 {vr(acc + 4 * rb, 4)}, {vr(WF + 4 * sp, 4)}, {vr(b, 4)}, {cin}")

    def scan(self, v):
        a = self.a
        for sh in (1, 2, 4, 8):
            a(f"v_add_u32_dpp v{v}, v{v}, v{v} row_shr:{sh} row_mask:0xf bank_mask:0xf bound_ctrl:0")
        a(f"v_add_u32_dpp v{v}, v{v}, v{v} row_bcast:15 row_mask:0xa bank_mask:0xf")
        a(f"v_add_u32_dpp v{v}, v{v}, v{v} row_bcast:31 row_mask:0xc bank_mask:0xf")

    def poll_issue(self):
        a = self.a
        a(f"v_lshlrev_b32 v{TM}, 5, v{LANE}\ns_mov_b32 s{sB}, {W_FB}\ns_mov_b32 s{sD}, {W_FB + 4096}")
        for k in range(4):
            a(f"buffer_load_dwordx2 {vr(POLLB + 2 * k, 2)}, v{TM}, {sr(sWS, 4)}, s{sB if k < 2 else sD} offen offset:{2048 * (k & 1)} sc1")

    def poll_wait(self):
        a = self.a
        lp, chk, done = a.newlabel("poll"), a.newlabel("pchk"), a.newlabel("pdone")
        a(f"s_mov_b32 s{sC}, 0\ns_branch {chk}")
        a.label(lp)
        self.poll_issue()
        a.label(chk)
        m58 = (1 << (NT - 192)) - 1
        a(f"""
        s_waitcnt vmcnt(0)
        v_cmp_ne_u64 s[40:41], {sr(sTAG, 2)}, {vr(POLLB, 2)}
        v_cmp_ne_u64 s[42:43], {sr(sTAG, 2)}, {vr(POLLB + 2, 2)}
        v_cmp_ne_u64 s[28:29], {sr(sTAG, 2)}, {vr(POLLB + 4, 2)}
        v_cmp_ne_u64 s[46:47], {sr(sTAG, 2)}, {vr(POLLB + 6, 2)}
        s_nop 1
        s_and_b32 s47, s47, {m58 >> 32}
        s_or_b64 s[40:41], s[40:41], s[42:43]
        s_or_b64 s[46:47], s[28:29], s[46:47]
        s_or_b64 s[40:41], s[40:41], s[46:47]
        s_cbranch_scc0 {done}
        s_add_u32 s{sC}, s{sC}, 1
        s_cmp_lt_u32 s{sC}, {POLL_LIMIT}
        s_cbranch_scc1 {lp}
        """)
        a.label(done)

    def tag_store(self, soff, tmp):
        a = self.a
        a(f"""
        v_mov_b32 v{tmp}, s{sTAG}
        v_mov_b32 v{tmp + 1}, s{sTAG + 1}
        v_lshlrev_b32 v{tmp + 2}, 24, v{LANE}
        buffer_store_dwordx2 {vr(tmp, 2)}, v{tmp + 2}, {sr(sWS, 4)}, s{soff} offen sc1
        """)

    def wave0(self, fn):
        a = self.a
        lab = a.newlabel("w0")
        a(f"s_cmp_eq_u32 s{sW}, 0\ns_cbranch_scc0 {lab}")
        fn()
        a.label(lab)

    def edge(self, pb, which, exact, first):
        a = self.a
        if "noedge" in self.opts:
            return
        p = PA[pb] + 4 * which
        sel = "op_sel:[1,0,0] op_sel_hi:[1,1,1]" if which else "op_sel:[0,0,0] op_sel_hi:[0,1,1]"
        y = NN if (first and not exact) else Y
        for h in range(2):
            a(f"v_pk_fma_f32 {vr(QE + 2 * h, 2)}, {vr(EE[pb], 2)}, {vr(W3 + 2 * h, 2)}, {vr(Q + 2 * h, 2)} {sel}")
        for h in range(2):
            a(f"v_pk_add_f32 {vr(y + 2 * h, 2)}, {vr(p + 2 * h, 2)}, {vr(QE + 2 * h, 2)}")
        for r in range(4):
            a(f"v_exp_f32 v{TT + r}, v{y + r}")
        if exact:
            for h in range(2):
                a(f"v_pk_add_f32 {vr(TT + 2 * h, 2)}, {vr(TT + 2 * h, 2)}, 1.0 op_sel_hi:[1,0]")
            for r in range(4):
                a(f"v_rcp_f32 v{TT + r}, v{TT + r}")
            for h in range(2):
                if first:
                    a(f"v_pk_mul_f32 {vr(NN + 2 * h, 2)}, {vr(Y + 2 * h, 2)}, {vr(TT + 2 * h, 2)}")
                else:
                    a(f"v_pk_fma_f32 {vr(NN + 2 * h, 2)}, {vr(Y + 2 * h, 2)}, {vr(TT + 2 * h, 2)}, {vr(NN + 2 * h, 2)}")
        elif first:
            for h in range(2):
                a(f"v_pk_add_f32 {vr(DD + 2 * h, 2)}, {vr(TT + 2 * h, 2)}, 1.0 op_sel_hi:[1,0]")
        else:
            for h in range(2):
                a(f"v_pk_fma_f32 {vr(NN + 2 * h, 2)}, {vr(NN + 2 * h, 2)}, {vr(TT + 2 * h, 2)}, {vr(NN + 2 * h, 2)}")
            for h in range(2):
                a(f"v_pk_fma_f32 {vr(NN + 2 * h, 2)}, {vr(Y + 2 * h, 2)}, {vr(DD + 2 * h, 2)}, {vr(NN + 2 * h, 2)}")
            for h in range(2):
                a(f"v_pk_fma_f32 {vr(DD + 2 * h, 2)}, {vr(DD + 2 * h, 2)}, {vr(TT + 2 * h, 2)}, {vr(DD + 2 * h, 2)}")

    def flush(self, exact, mid=None, final=False):
        a = self.a
        if exact:
            if mid:
                mid()
            a(f"v_cvt_pk_bf16_f32 v{TT}, v{NN}, v{NN + 1}")
            a(f"v_cvt_pk_bf16_f32 v{TT + 1}, v{NN + 2}, v{NN + 3}")
            a(f"ds_pk_add_bf16 v{AG}, v{TT}")
            a(f"ds_pk_add_bf16 v{AG}, v{TT + 1} offset:4")
            return 2
        for r in range(4):
            a(f"v_rcp_f32 v{TT + r}, v{DD + r}")
        if mid:
            mid()
        a(f"v_max3_f32 v{CK1}, v{CK1}, v{DD}, v{DD + 1}")
        a(f"v_max3_f32 v{CK1}, v{CK1}, v{DD + 2}, v{DD + 3}")
        for h in range(2):
            a(f"v_pk_mul_f32 {vr(Y + 2 * h, 2)}, {vr(NN + 2 * h, 2)}, {vr(TT + 2 * h, 2)}")
        for h in range(2):
            a(f"v_pk_fma_f32 {vr(CK2, 2)}, {vr(Y + 2 * h, 2)}, 0, {vr(CK2, 2)} op_sel_hi:[1,0,1]")
        if final:
            a(f"""
            s_cmp_eq_u32 s{sCO}, 0
            s_cbranch_scc1 L_noside
            s_lshl_b32 s{sA}, s{sW}, 9
            s_add_u32 s{sA}, s{sA}, {(SIDE + 512) ^ AB}
            v_xor_b32 v{QA}, s{sA}, v{L8}
            s_mov_b32 s{sC}, 0
            L_side:
            ds_read_b64 {vr(TT, 2)}, v{QA}
            s_add_u32 s{sC}, s{sC}, 1
            s_waitcnt lgkmcnt(0)
            v_cmp_eq_u64 vcc, -1, {vr(TT, 2)}
            s_cmp_gt_u32 s{sC}, 4000
            s_cbranch_scc1 L_side_go
            s_cbranch_vccnz L_side
            L_side_go:
            v_lshlrev_b32 v{QE}, 16, v{TT}
            v_and_b32 v{QE + 1}, 0xffff0000, v{TT}
            v_lshlrev_b32 v{QE + 2}, 16, v{TT + 1}
            v_and_b32 v{QE + 3}, 0xffff0000, v{TT + 1}
            v_pk_add_f32 {vr(Y, 2)}, {vr(Y, 2)}, {vr(QE, 2)}
            v_pk_add_f32 {vr(Y + 2, 2)}, {vr(Y + 2, 2)}, {vr(QE + 2, 2)}
            L_noside:
            """)
        a(f"v_cvt_pk_bf16_f32 v{TT}, v{Y}, v{Y + 1}")
        a(f"v_cvt_pk_bf16_f32 v{TT + 1}, v{Y + 2}, v{Y + 3}")
        a(f"ds_write_b64 v{AG}, {vr(TT, 2)}")
        return 1

    def p_reads(self, pb, slot):
        a = self.a
        for row in range(2):
            for r in range(4):
                a(f"ds_read_u16_d16_hi v{PA[pb] + 4 * row + r}, v{RG} offset:{slot * 1024 + row * 512 + r * 128}")

    def gather(self, slot):
        a = self.a
        if "nodma" in self.opts:
            return
        a(f"""
        s_mov_b32 m0, s{sSLOT + slot}
        s_cmp_gt_i32 s{sREM}, 0
        s_cselect_b32 s{sP + 2}, {N}, 0
        s_sub_u32 s{sREM}, s{sREM}, 1
        buffer_load_dwordx4 {vr(IA, 2)}, {sr(sP, 4)}, 0 idxen offen sc1 lds
        """)

    def head(self, jj):
        a = self.a
        pb = jj & 1
        w3l = a.newlabel("w3")
        a(f"""
        s_waitcnt vmcnt(11)
        s_cmp_eq_u32 s{sTRIP}, 0
        s_cbranch_scc1 {w3l}
        s_waitcnt vmcnt(3)
        """)
        a.label(w3l)
        self.p_reads(pb ^ 1, (jj + 1) & 3)
        a(f"ds_read_b64 {vr(EE[pb ^ 1], 2)}, v{EA} offset:{8 * (jj + 1)}")
        a(f"ds_read_u16 v{IA}, v{IXA} offset:{4 * (jj + 5)}")

    def main_loop(self, exact, exit_label):
        a = self.a
        tag = "x" if exact else "f"
        loop = f"L_loop_{tag}"
        blocks = []
        a.label(f"L_enter_{tag}")
        self.head(0)
        self.edge(0, 0, exact, False)
        a(f"s_branch L_post_{tag}")
        a.label(loop)
        for jj in range(4):
            pb = jj & 1
            self.head(jj)
            for which in range(2):
                blk, back = f"L_blk_{tag}_{jj}_{which}", f"L_back_{tag}_{jj}_{which}"
                a(f"s_bitcmp1_b32 s{sMASK}, {1 - which}")
                a(f"s_cbranch_scc1 {blk}")
                self.edge(pb, which, exact, False)
                a.label(back)
                if which == 0:
                    a(f"s_lshr_b64 {sr(sMASK, 2)}, {sr(sMASK, 2)}, 2")
                    if jj == 0:
                        a.label(f"L_post_{tag}")
                blocks.append((blk, back, pb, which))
            a("s_waitcnt lgkmcnt(0)")
            self.gather((jj + 1) & 3)
            a(f"s_add_u32 s{sI}, s{sI}, 2")
        a(f"""
        v_add_u32 v{IXA}, 16, v{IXA}
        v_add_u32 v{EA}, 32, v{EA}
        s_mov_b32 s{sTRIP}, 1
        """)
        if not exact and "noprio" not in self.opts:
            t2, t1, t0 = self.opt("p2", 9), self.opt("p1", 5), self.opt("p0", 1)
            a(f"""
            s_cmp_gt_i32 s{sREM}, {t2}
            s_cbranch_scc1 {loop}
            s_setprio 2
            s_cmp_gt_i32 s{sREM}, {t1}
            s_cbranch_scc1 {loop}
            s_setprio 1
            s_cmp_gt_i32 s{sREM}, {t0}
            s_cbranch_scc1 {loop}
            s_setprio 0
            """)
        a(f"s_branch {loop}")
        fin = f"L_fin_{tag}"
        for blk, back, pb, which in blocks:
            a.reset_hist()
            a.label(blk)
            a(f"""
            s_add_u32 s{sA}, s{sI}, {which}
            s_cmp_eq_u32 s{sA}, s{sNE}
            s_cbranch_scc1 {fin}
            v_readlane_b32 s{sB}, v{INFO}, s{sA}
            """)

            def mid():
                a(f"""
                s_and_b32 s{sC}, s{sB}, 0xffff
                s_lshr_b32 s{sD}, s{sB}, 16
                v_add_u32 v{QA}, s{sC}, v{L4}
                ds_read2st64_b32 {vr(Q, 2)}, v{QA} offset0:0 offset1:1
                ds_read2st64_b32 {vr(Q + 2, 2)}, v{QA} offset0:2 offset1:3
                """)

            n = self.flush(exact, mid)
            a(f"""
            v_xor_b32 v{AG}, s{sD}, v{L8}
            s_waitcnt lgkmcnt({n})
            """)
            self.edge(pb, which, exact, True)
            a(f"s_branch {back}")
        a.reset_hist()
        a.label(fin)
        self.flush(exact, final=True)
        a(f"s_branch {exit_label}")

    def zero_agg(self, addr, zq):
        a = self.a
        lab = a.newlabel("zagg")
        a(f"""
        ds_write_b128 v{addr}, {vr(zq, 4)}
        s_cmp_lt_u32 s{sW}, 4
        s_cbranch_scc0 {lab}
        ds_write_b128 v{addr}, {vr(zq, 4)} offset:16384
        {lab}:
        """)

    def u2_loads(self):
        a = self.a
        a(f"""
        s_lshl_b32 s{sA}, s{sW}, 13
        s_add_u32 s{sA}, s{sA}, {W_UT}
        s_add_u32 s{sB}, s{sA}, 4096
        v_lshlrev_b32 v{TM}, 4, v{LANE}
        """)
        for s in range(8):
            so = sA if s < 4 else sB
            a(f"buffer_load_dwordx4 {vr(UF + 4 * s, 4)}, v{TM}, {sr(sWS, 4)}, s{so} offen offset:{(s & 3) * 1024} sc1")

    def hi_passes(self, fn):
        a = self.a
        fn(0)
        fn(1)
        lab = a.newlabel("hp")
        a(f"s_cmp_eq_u64 {sr(sVAL + 4, 2)}, 0\ns_cbranch_scc1 {lab}")
        fn(2)
        fn(3)
        a.label(lab)

    def rec_issue(self, S):
        a = self.a
        a(f"""
        s_lshl_b32 s{sA}, s{sP0}, 2
        s_lshl_b32 s{sB}, s{sP0}, 5
        v_mov_b32 v{S.tmp}, {OOB}
        s_add_u32 s{sC}, s{sA}, 4
        s_add_u32 s{sD}, s{sA}, 8
        v_cmp_lt_i32 {sr(sVAL, 2)}, s{sA}, v{CQ}
        s_add_u32 s{sA}, s{sA}, 12
        v_cmp_lt_i32 {sr(sVAL + 2, 2)}, s{sC}, v{CQ}
        v_cmp_lt_i32 {sr(sVAL + 4, 2)}, s{sD}, v{CQ}
        v_cmp_lt_i32 {sr(sVAL + 6, 2)}, s{sA}, v{CQ}
        s_cmp_gt_u32 s{sNP}, 1
        s_cselect_b64 {sr(sVAL + 2, 2)}, {sr(sVAL + 2, 2)}, 0
        s_cselect_b64 {sr(sVAL + 4, 2)}, {sr(sVAL + 4, 2)}, 0
        s_cselect_b64 {sr(sVAL + 6, 2)}, {sr(sVAL + 6, 2)}, 0
        """)
        lab = a.newlabel("hp")
        a(f"s_cmp_eq_u64 {sr(sVAL + 4, 2)}, 0\ns_cbranch_scc1 {lab}")
        for k in (2, 3, 0, 1):
            if k == 0:
                a.label(lab)
            a(f"""
            v_cndmask_b32 v{S.adr + k}, v{S.tmp}, v{RBA}, {sr(sVAL + 2 * k, 2)}
            buffer_load_dwordx2 {vr(S.rec[k], 2)}, v{S.adr + k}, {sr(sWS, 4)}, s{sB} offen offset:{32 * k} sc1
            """)

    def count(self, S):
        a = self.a
        a(f"v_mov_b32 v{S.tmp}, 1\ns_mov_b32 s{sA}, {CNTN}")

        def one(k):
            a(f"""
            s_mov_b64 exec, {sr(sVAL + 2 * k, 2)}
            v_bfe_u32 v{S.adr + k}, v{S.rec[k]}, 16, 6
            v_lshl_add_u32 v{S.adr + k}, v{S.adr + k}, 2, s{sA}
            ds_add_rtn_u32 v{S.rank + k}, v{S.adr + k}, v{S.tmp}
            """)
        self.hi_passes(one)
        a("s_mov_b64 exec, -1")

    def lists(self, S, generic_label):
        a = self.a
        sc = S.tmp
        done = a.newlabel("lists")
        a(f"""
        s_mov_b32 s{sA}, {CNTN}
        v_lshl_add_u32 v{sc + 3}, v{LANE}, 2, s{sA}
        v_mov_b32 v{sc + 2}, {MISC}
        ds_read_b32 v{sc}, v{sc + 3}
        ds_read_b32 v{sc + 2}, v{sc + 2}
        s_waitcnt lgkmcnt(0)
        v_mov_b32 v{sc + 1}, v{sc}
        v_readfirstlane_b32 s{sMAXC}, v{sc + 2}
        v_subrev_u32 v{sc}, {DL}, v{sc}
        """)
        self.scan(sc + 1)
        a(f"""
        v_readlane_b32 s{sM}, v{sc + 1}, 63
        v_sub_u32 v{sc + 1}, v{sc + 1}, v{sc}
        s_cmp_eq_u32 s{sNP}, {NPASS}
        s_cbranch_scc0 {done}
        s_cmp_gt_u32 s{sM}, 1024
        s_cbranch_scc1 {generic_label}
        s_cmp_eq_u32 s{sMAXC}, 0
        s_cbranch_scc0 {generic_label}
        s_cmp_lt_u32 s{sM}, 64
        s_cbranch_scc0 {done}
        s_mov_b32 s{sMODE}, 1
        {done}:
        """)
        self.hi_passes(lambda k: a(f"ds_bpermute_b32 v{S.adr + k}, v{S.adr + k}, v{sc + 1}"))
        a(f"""
        s_add_u32 s{sA}, s{sM}, 1
        s_lshr_b32 s{sA}, s{sA}, 1
        s_mul_i32 s{sB}, s{sA}, s{sW}
        s_add_u32 s{sC}, s{sB}, s{sA}
        s_lshr_b32 s{sI}, s{sB}, 4
        s_lshr_b32 s{sC}, s{sC}, 4
        s_sub_u32 s{sREM}, s{sC}, s{sI}
        s_lshl_b32 s{sC}, s{sC}, 1
        s_cmp_lt_u32 s{sC}, s{sM}
        s_cselect_b32 s{sCO}, 1, 0
        s_min_u32 s{sC}, s{sC}, s{sM}
        s_lshl_b32 s{sI}, s{sI}, 1
        s_sub_u32 s{sNE}, s{sC}, s{sI}
        s_mov_b32 s{sA}, {(IL - 2 * DL) & 0xffffffff}
        s_mov_b32 s{sB}, {(EL - 4 * DL) & 0xffffffff}
        s_waitcnt lgkmcnt(0)
        """)

        def one(k):
            a(f"""
            s_mov_b64 exec, {sr(sVAL + 2 * k, 2)}
            v_add_u32 v{S.rank + k}, v{S.rank + k}, v{S.adr + k}
            v_lshl_add_u32 v{S.adr + k}, v{S.rank + k}, 1, s{sA}
            v_lshl_add_u32 v{sc + (k & 1)}, v{S.rank + k}, 2, s{sB}
            ds_write_b8_d16_hi v{S.rank + k}, v{S.rec[k]}
            ds_write_b16 v{S.adr + k}, v{S.rec[k]}
            ds_write_b32 v{sc + (k & 1)}, v{S.rec[k] + 1}
            """)
        self.hi_passes(one)
        a("s_mov_b64 exec, -1")

    def setup(self, tm):
        a = self.a
        a(f"""
        v_lshrrev_b32 v{tm}, 5, v{LANE}
        s_lshl_b32 s{sA}, s{sI}, 1
        s_add_u32 s{sA}, s{sA}, {IL}
        v_lshl_add_u32 v{IXA}, v{tm}, 1, s{sA}
        s_add_u32 s{sD}, s{sI}, {DL - 1}
        v_add_u32 v{INFO}, s{sD}, v{LANE}
        s_lshl_b32 s{sA}, s{sI}, 2
        s_add_u32 s{sA}, s{sA}, {EL}
        v_mov_b32 v{EA}, s{sA}
        ds_read_u8 v{tm}, v{INFO}
        ds_read_u8 v{tm + 2}, v{INFO} offset:1
        ds_read_u8 v{tm + 1}, v{INFO} offset:2
        """)
        for k in range(5):
            a(f"ds_read_u16 v{IX0 + k}, v{IXA} offset:{4 * k}")
        a(f"""
        s_waitcnt lgkmcnt(5)
        v_cmp_ne_u32 {sr(sMASK, 2)}, v{tm + 2}, v{tm + 1}
        v_cmp_eq_u32 vcc, v{tm + 2}, v{tm}
        v_mul_u32_u24 v{INFO}, {QS}, v{tm + 2}
        v_and_b32 v{tm + 1}, 15, v{tm + 2}
        v_lshlrev_b32 v{tm + 1}, 4, v{tm + 1}
        v_lshl_add_u32 v{tm + 1}, v{tm + 2}, 9, v{tm + 1}
        v_lshl_or_b32 v{INFO}, v{tm + 1}, 16, v{INFO}
        s_sub_u32 s{sA}, s{sNE}, 1
        s_bitcmp0_b64 {sr(sMASK, 2)}, s{sA}
        s_cselect_b32 s{sCO}, s{sCO}, 0
        s_bitset1_b64 {sr(sMASK, 2)}, s{sA}
        v_readfirstlane_b32 s{sB}, v{INFO}
        s_and_b32 s{sC}, vcc_lo, 1
        s_cmp_eq_u32 s{sI}, 0
        s_cselect_b32 s{sC}, 0, s{sC}
        s_cmp_eq_u32 s{sMODE}, 0
        s_cselect_b32 s{sC}, s{sC}, 0
        s_lshl_b32 s{sA}, s{sW}, 9
        s_add_u32 s{sA}, s{sA}, {SIDE ^ AB}
        s_lshr_b32 s{sD}, s{sB}, 16
        s_cmp_eq_u32 s{sC}, 0
        s_cselect_b32 s{sAG0}, s{sD}, s{sA}
        s_and_b32 s{sQ0}, s{sB}, 0xffff
        """)

    def lane_consts(self):
        a = self.a
        a(f"""
        s_lshl_b32 s{sA}, s{sW}, 12
        s_add_u32 s{sSLOT}, s{sA}, {RING}
        s_add_u32 s{sSLOT + 1}, s{sA}, {RING + 1024}
        s_add_u32 s{sSLOT + 2}, s{sA}, {RING + 2048}
        s_add_u32 s{sSLOT + 3}, s{sA}, {RING + 3072}
        v_lshl_add_u32 v{RG}, v{LANE}, 1, s{sSLOT}
        v_lshlrev_b32 v{L4}, 2, v{LANE}
        v_lshlrev_b32 v{L8}, 3, v{LANE}
        v_or_b32 v{L8}, {AB}, v{L8}
        v_and_b32 v{IA + 1}, 31, v{LANE}
        v_lshlrev_b32 v{IA + 1}, 4, v{IA + 1}
        """)

    def side_fill(self, tmp):
        self.a(f"""
        v_mov_b64 {vr(tmp, 2)}, -1
        s_lshl_b32 s{sA}, s{sW}, 9
        s_add_u32 s{sA}, s{sA}, {SIDE}
        v_lshl_add_u32 v{tmp + 2}, v{LANE}, 3, s{sA}
        ds_write_b64 v{tmp + 2}, {vr(tmp, 2)}
        """)

    def binning(self):
        a = self.a
        DV, SV, EP, AD, RK, RV, H0, B0, SQ, t4, t5, t6, t7 = 24, 26, 28, 30, 32, 34, 40, 44, 48, 52, 53, 54, 56
        a(f"""
        s_mov_b32 s{sC}, -40
        s_mov_b32 s{sD}, {HIST}
        v_mov_b32 v{t4}, 1
        v_mov_b32 v{t7}, {S1C}
        v_lshlrev_b32 v{t5}, 4, v{LANE}
        v_add_u32 v{t6}, {HIST}, v{t5}
        s_waitcnt vmcnt(0)
        """)
        self.stamp("edges")
        R2 = range(2)
        for i in R2:
            a(f"v_mul_u32_u24 v{AD + i}, 52429, v{DV + i}")
        for i in R2:
            a(f"v_lshrrev_b32 v{AD + i}, 21, v{AD + i}")
        for i in R2:
            a(f"v_min_u32 v{RK + i}, 255, v{AD + i}")
        for i in R2:
            a(f"v_lshl_add_u32 v{AD + i}, v{RK + i}, 2, s{sD}")
        for i in R2:
            a(f"v_mad_i32_i24 v{DV + i}, v{RK + i}, s{sC}, v{DV + i}")
            a(f"ds_add_rtn_u32 v{RK + i}, v{AD + i}, v{t4}")
        a(f"s_mov_b64 exec, 1\nds_add_u32 v{t7}, v{t4}\ns_mov_b64 exec, -1")
        for i in R2:
            a(f"v_lshl_or_b32 v{RV + 2 * i}, v{DV + i}, 16, v{SV + i}")
        a(f"v_lshlrev_b32 v{RV + 1}, 16, v{EP}\nv_and_b32 v{RV + 3}, 0xffff0000, v{EP}")
        self.spin(S1C, 5, t7, f"ds_read_b128 {vr(H0, 4)}, v{t6}")
        a(f"""
        v_add_u32 v{B0 + 1}, v{H0}, v{H0 + 1}
        v_add_u32 v{SQ}, v{H0 + 2}, v{H0 + 3}
        v_add_u32 v{SQ}, v{SQ}, v{B0 + 1}
        v_mov_b32 v{SQ + 1}, v{SQ}
        """)
        self.scan(SQ + 1)
        a(f"""
        v_sub_u32 v{B0}, v{SQ + 1}, v{SQ}
        v_add_u32 v{B0 + 2}, v{B0}, v{B0 + 1}
        v_add_u32 v{B0 + 1}, v{B0}, v{H0}
        v_add_u32 v{B0 + 3}, v{B0 + 2}, v{H0 + 2}
        ds_write_b128 v{t6}, {vr(B0, 4)} offset:{BASE - HIST}
        ds_read_b32 v{DV}, v{AD} offset:{BASE - HIST}
        ds_read_b32 v{DV + 1}, v{AD + 1} offset:{BASE - HIST}
        s_mov_b32 s{sD}, {SORT}
        v_mov_b32 v{t7}, {S2C}
        v_lshlrev_b32 v{t5}, 4, v{TID}
        v_add_u32 v{t6}, {SORT}, v{t5}
        s_mul_i32 s{sB}, s{sT}, {EC * 8}
        s_add_u32 s{sB}, s{sB}, {W_RECS}
        s_waitcnt lgkmcnt(0)
        v_add_u32 v{DV}, v{DV}, v{RK}
        v_add_u32 v{DV + 1}, v{DV + 1}, v{RK + 1}
        v_lshl_add_u32 v{DV}, v{DV}, 3, s{sD}
        v_lshl_add_u32 v{DV + 1}, v{DV + 1}, 3, s{sD}
        ds_write_b64 v{DV}, {vr(RV, 2)}
        ds_write_b64 v{DV + 1}, {vr(RV + 2, 2)}
        s_mov_b64 exec, 1
        ds_add_u32 v{t7}, v{t4}
        s_mov_b64 exec, -1
        """)
        self.spin(S2C, 5, t7, f"ds_read_b128 {vr(SQ, 4)}, v{t6}")
        a(f"buffer_store_dwordx4 {vr(SQ, 4)}, v{t5}, {sr(sWS, 4)}, s{sB} offen sc1")
        self.stamp("binned")

    def build(self):
        a = self.a
        t0, t1, t2, t3, t4, t5, t6, t7 = range(58, 66)
        PQ = 24
        UQ = 108
        u0, u1, u2, u3 = 57, 58, 59, 60

        if "pad0" in self.opts:
            a("s_memrealtime s[96:97]")
        a(f"""
        s_cmp_ge_u32 s{sT}, {NT}
        s_cbranch_scc1 L_end
        s_load_dwordx16 s[40:55], s[0:1], 0
        s_load_dwordx2 s[56:57], s[0:1], 64
        v_and_b32 v{LANE}, 63, v{TID}
        """)
        if "nocodepf" not in self.opts:
            a(f"""
            s_getpc_b64 s[4:5]
            L_pc:
            """)
            if "fullpf" in self.opts:
                a(f"""
                v_lshlrev_b32 v{t0}, 4, v{TID}
                v_min_u32 v{t0}, L_code_end-L_pc-16, v{t0}
                global_load_dwordx4 {vr(AC2 + 8, 4)}, v{t0}, s[4:5]
                """)
            else:
                a(f"""
                s_lshr_b32 s6, s{sT}, 3
                s_and_b32 s6, s6, 15
                s_lshl_b32 s6, s6, 10
                v_lshl_add_u32 v{t0}, v{TID}, 4, s6
                v_min_u32 v{t0}, L_code_end-L_pc-16, v{t0}
                v_cmp_gt_u32 vcc, 64, v{TID}
                s_cbranch_vccz L_nopf
                global_load_dwordx4 {vr(AC2 + 8, 4)}, v{t0}, s[4:5]
                L_nopf:
                """)
        a(f"""
        v_lshrrev_b32 v{t0}, 6, v{TID}
        v_mov_b32 v{t6}, 0
        v_lshlrev_b32 v{t7}, 2, v{TID}
        v_readfirstlane_b32 s{sW}, v{t0}
        v_add_u32 v{t7}, {HIST}, v{t7}
        s_cmp_lt_u32 s{sW}, 4
        s_cbranch_scc1 L_z1
        s_cmp_gt_u32 s{sW}, 5
        s_cbranch_scc1 L_z2
        v_add_u32 v{t7}, {CNTN - HIST - 1024}, v{t7}
        L_z1:
        ds_write_b32 v{t7}, v{t6}
        L_z2:
        v_lshrrev_b32 v{t3}, 5, v{TID}
        v_and_b32 v{t4}, 31, v{TID}
        v_and_b32 v{t5}, 15, v{t3}
        v_xor_b32 v{t6}, v{t5}, v{t4}
        v_lshlrev_b32 v{t6}, 4, v{t6}
        s_mul_i32 s{sB}, s{sT}, {T * 512}
        v_lshl_add_u32 v{t6}, v{t3}, 9, v{t6}
        v_add_u32 v{GO}, s{sB}, v{t6}
        v_and_b32 v{t6}, 3, v{t5}
        v_lshrrev_b32 v{t7}, 1, v{t5}
        v_and_b32 v{t7}, 4, v{t7}
        v_or_b32 v{t6}, v{t6}, v{t7}
        v_lshlrev_b32 v{t6}, 1, v{t6}
        v_xor_b32 v{t6}, v{t6}, v{t4}
        v_lshlrev_b32 v{t6}, 4, v{t6}
        v_lshl_add_u32 v{WOFF}, v{t5}, 9, v{t6}
        s_and_b32 s{sW1K}, s{sW}, 7
        s_lshl_b32 s{sW1K}, s{sW1K}, 10
        """)
        if self.stamps:
            a(f"v_mov_b32 v{STAMPV}, 0")
            for r in self.STAMP_REGS[:5]:
                a(f"s_mov_b32 s{r}, 0")
        a("s_waitcnt lgkmcnt(0)")

        def srd(s, p, nbytes):
            a(f"""
            s_mov_b32 s{s}, s{p}
            s_mov_b32 s{s + 1}, s{p + 1}
            s_mov_b32 s{s + 2}, {nbytes}
            s_mov_b32 s{s + 3}, 0x20000
            """)

        srd(sDST, 46, E * 4)
        srd(sSRC, 44, E * 4)
        srd(sEA, 42, E * 2)
        srd(sX, 40, N * 512)
        srd(sWM, 48, 513 * 512)
        srd(sWU, 50, 512 * 512)
        srd(sWS, 56, WS_SIZE)
        a("s_barrier")
        if self.opt("pad", 0) and "pad0" not in self.opts:
            a("s_memrealtime s[96:97]")
        self.stamp("start")
        EPV = W3
        a(f"""
        v_mov_b32 v{t0}, {W_EPOCH}
        s_cmp_ge_u32 s{sW}, 8
        s_cbranch_scc1 L_role_l
        s_cmp_ge_u32 s{sW}, 5
        s_cbranch_scc1 L_role_u
        s_setprio 3
        v_lshlrev_b32 v{t6}, 3, v{TID}
        v_lshlrev_b32 v{t7}, 2, v{TID}
        s_mul_i32 s{sA}, s{sT}, {EC * 4}
        s_mul_i32 s{sB}, s{sT}, {EC * 2}
        buffer_load_dwordx2 v[24:25], v{t6}, {sr(sDST, 4)}, s{sA} offen
        buffer_load_dwordx2 v[26:27], v{t6}, {sr(sSRC, 4)}, s{sA} offen
        buffer_load_dword v28, v{t7}, {sr(sEA, 4)}, s{sB} offen
        buffer_load_dwordx2 {vr(EPV, 2)}, v{t0}, {sr(sWS, 4)}, 0 offen
        s_branch L_role_done
        L_role_u:
        buffer_load_dwordx2 {vr(EPV, 2)}, v{t0}, {sr(sWS, 4)}, 0 offen
        v_subrev_u32 v{t3}, 10, v{t3}
        s_mul_i32 s{sB}, s{sT}, {T * 512}
        s_lshl_b32 s{sA}, s{sW}, 10
        """)
        for i in range(7):
            if i == 6:
                a(f"s_cmp_eq_u32 s{sW}, 7\ns_cbranch_scc1 L_role_u2")
            a(f"""
            v_and_b32 v{t6}, 15, v{t3}
            v_xor_b32 v{t6}, v{t6}, v{t4}
            v_lshlrev_b32 v{t6}, 4, v{t6}
            s_add_u32 m0, s{sA}, {XB - 5120 + 3072 * i}
            v_lshl_add_u32 v{t6}, v{t3}, 9, v{t6}
            v_add_u32 v{t3}, 6, v{t3}
            buffer_load_dwordx4 v{t6}, {sr(sX, 4)}, s{sB} offen lds
            """)
        a(f"""
        s_branch L_role_done
        L_role_u2:
        s_mov_b32 m0, {USC}
        s_and_b32 s{sA}, s{sT}, 7
        s_lshl_b32 s{sA}, s{sA}, 5
        s_lshr_b32 s{sB}, s{sT}, 3
        s_lshl_b32 s{sB}, s{sB}, 5
        s_cmp_lt_u32 s{sT}, 128
        s_cselect_b32 s{sB}, s{sB}, {OOB}
        v_lshrrev_b32 v{t6}, 1, v{LANE}
        v_add_u32 v{t6}, s{sA}, v{t6}
        v_and_b32 v{t7}, 3, v{t6}
        v_lshrrev_b32 v{t6}, 2, v{t6}
        v_lshl_add_u32 v{t6}, v{t7}, 6, v{t6}
        v_add_u32 v{t6}, 256, v{t6}
        v_and_b32 v{t7}, 1, v{LANE}
        v_lshlrev_b32 v{t7}, 4, v{t7}
        v_lshl_add_u32 v{t6}, v{t6}, 9, v{t7}
        buffer_load_dwordx4 v{t6}, {sr(sWU, 4)}, s{sB} offen lds
        s_branch L_role_done
        L_role_l:
        buffer_load_dwordx2 {vr(EPV, 2)}, v{t0}, {sr(sWS, 4)}, 0 offen
        s_lshr_b32 s{sA}, s{sT}, 3
        s_lshl_b32 s{sA}, s{sA}, 13
        s_add_u32 s{sA}, s{sA}, s{sW1K}
        s_lshr_b32 s{sC}, s{sA}, 1
        v_lshlrev_b32 v{t7}, 3, v{LANE}
        buffer_load_dwordx2 {vr(AC2, 2)}, v{t7}, {sr(sWM, 4)}, s{sC} offen
        L_role_done:
        """)
        UA = W3 - 9 - 5
        srd(sOUT, 52, N * 512)
        a(f"""
        s_add_u32 s{sP}, s56, {W_P}
        s_addc_u32 s{sP + 1}, s57, 0
        s_or_b32 s{sP + 1}, s{sP + 1}, {512 << 16}
        s_mov_b32 s{sP + 2}, {N}
        s_mov_b32 s{sP + 3}, 0x20000
        s_mov_b32 s{sNL2E}, {NLOG2E}
        s_mov_b32 s{sNL2E + 1}, {NLOG2E}
        s_mov_b32 s{sNLN2}, {NLN2}
        s_mov_b32 s{sNLN2 + 1}, {NLN2}
        s_lshl_b32 s{sWK}, s{sW}, 10
        s_lshr_b32 s{sHI}, s{sW}, 3
        s_lshl_b32 s{sHI}, s{sHI}, 13
        s_mov_b32 s{sGEN}, 0
        v_and_b32 v{t0}, 15, v{LANE}
        v_lshrrev_b32 v{t1}, 4, v{LANE}
        v_bfe_u32 v{t2}, v{LANE}, 2, 2
        v_and_b32 v{t3}, 3, v{LANE}
        s_lshl_b32 s{sB}, s{sW}, 1
        v_and_b32 v{t4}, 1, v{t1}
        v_lshl_or_b32 v{t4}, v{t4}, 2, v{t2}
        v_lshlrev_b32 v{t4}, 1, v{t4}
        v_lshrrev_b32 v{t5}, 1, v{t3}
        v_add_u32 v{t5}, s{sB}, v{t5}
        v_xor_b32 v{t4}, v{t4}, v{t5}
        v_lshlrev_b32 v{t4}, 4, v{t4}
        v_and_b32 v{t5}, 1, v{t3}
        v_lshl_add_u32 v{t4}, v{t5}, 3, v{t4}
        v_lshl_add_u32 v{t5}, v{t1}, 3, v{t2}
        v_lshl_add_u32 v{TR0}, v{t5}, 9, v{t4}
        v_add_u32 v{TR1}, 65536, v{TR0}
        v_lshlrev_b32 v{t5}, 5, v{t5}
        v_lshl_add_u32 v{UA + 9}, v{t3}, 3, v{t5}
        v_lshlrev_b32 v{t5}, 9, v{t0}
        v_add_u32 v{t5}, {XB}, v{t5}
        """)
        for k in range(4):
            a(f"""
            v_add_u32 v{t4}, {4 * k}, v{t1}
            v_xor_b32 v{t4}, v{t4}, v{t0}
            v_lshl_add_u32 v{XA + k}, v{t4}, 4, v{t5}
            """)
        a(f"""
        v_lshrrev_b32 v{t4}, 1, v{t1}
        v_add_u32 v{t4}, s{sB}, v{t4}
        v_xor_b32 v{t4}, v{t4}, v{t0}
        v_lshlrev_b32 v{t4}, 4, v{t4}
        v_and_b32 v{t6}, 1, v{t1}
        v_lshl_add_u32 v{t4}, v{t6}, 3, v{t4}
        v_lshl_add_u32 v{t4}, v{t0}, 9, v{t4}
        v_add_u32 v{STG}, {PS}, v{t4}
        v_lshlrev_b32 v{STR}, 4, v{TID}
        v_add_u32 v{STR}, {PS}, v{STR}
        v_add_u32 v{GO2}, 16384, v{GO}
        s_cmp_lt_u32 s{sW}, 4
        s_cbranch_scc1 L_go2
        v_mov_b32 v{GO2}, {OOB}
        L_go2:
        s_cmp_lt_u32 s{sW}, 5
        s_cbranch_scc0 L_nobin
        """)
        self.binning()
        a(f"""
        s_setprio 0
        s_branch L_bin_done
        L_nobin:
        s_cmp_ge_u32 s{sW}, 8
        s_cbranch_scc1 L_bin_ld
        v_mov_b32 v{W3 + 2}, {XCNT}
        v_mov_b32 v{W3 + 3}, 1
        s_mov_b64 exec, 1
        s_waitcnt vmcnt(4)
        ds_add_u32 v{W3 + 2}, v{W3 + 3}
        s_mov_b64 exec, -1
        """)
        if "toucha" in self.opts:
            self.touch()
        a("""
        s_branch L_bin_done
        L_bin_ld:
        """)
        self.dma_body(0, 0)
        a(f"""
        s_waitcnt vmcnt(5)
        L_bin_done:
        v_readfirstlane_b32 s{sTAG}, v{EPV}
        v_readfirstlane_b32 s{sTAG + 1}, v{EPV + 1}
        s_add_u32 s{sTAG}, s{sTAG}, 1
        s_addc_u32 s{sTAG + 1}, s{sTAG + 1}, 0
        s_lshl_b32 s{sTLO}, s{sTAG + 1}, 20
        """)
        self.vm("N", "bin")

        def offs_prep():
            a(f"""
            v_lshlrev_b32 v{t0}, 3, v{LANE}
            v_add_u32 v{t0}, {HIST}, v{t0}
            ds_read_b64 {vr(66, 2)}, v{t0}
            ds_read_b64 {vr(68, 2)}, v{t0} offset:{BASE - HIST}
            ds_read_b64 {vr(70, 2)}, v{t0} offset:512
            ds_read_b64 {vr(72, 2)}, v{t0} offset:{BASE - HIST + 512}
            s_waitcnt lgkmcnt(0)
            """)
            for i in range(4):
                h, b = 66 + 4 * (i >> 1) + (i & 1), 68 + 4 * (i >> 1) + (i & 1)
                a(f"""
                v_lshl_or_b32 v{ACC + 2 * i}, v{h}, 10, v{b}
                v_mov_b32 v{ACC + 2 * i + 1}, s{sTAG}
                v_or_b32 v{ACC + 2 * i}, s{sTLO}, v{ACC + 2 * i}
                """)
        self.wave0(offs_prep)
        self.xpreload(UA + 9)
        self.stamp("xpre")

        chunk_slot = [0, 1, 2, 3, 0, 1, 3, 2, 0, 1, 3, 2]
        issue_at = {0: 3, 4: 7, 5: 8, 6: 9, 7: 10, 8: 11}
        after_p = [4, 5, 6]
        for c in range(4, 4 + self.opt("early", 1)):
            issue_at[c - 3 + self.opt("edel", 0)] = c
            after_p.remove(c)
        k_off = self.opt("koff", 4)
        k_fb = self.opt("kfb", 6)
        S1 = SCRA if k_off == 4 else SCRX
        OV, o0, o1, o2, o3, o4 = SCRA.rank, SCRA.rank + 2, SCRA.rank + 3, SCRA.tmp + 1, SCRA.tmp + 2, SCRA.tmp + 3

        def offs_issue():
            a(f"buffer_load_dwordx2 {vr(OV, 2)}, v{o0}, {sr(sWS, 4)}, s{sC} offen sc1")

        for k in range(12):
            acc = ACC if 4 <= k < 8 else AC2
            self.vmwait({"p", f"c{k}"} if k == k_fb else {f"c{k}"})
            self.barrier(f"B{k}", lgkm=(k in (k_off + 3, k_off + 4, 11)))
            if k == 0 and "exitB0" in self.opts:
                a("s_branch L_diag_end")
            if k == k_fb:
                def fb():
                    a(f"s_lshl_b32 s{sB}, s{sT}, 5\ns_add_u32 s{sB}, s{sB}, {W_FB}")
                    self.tag_store(sB, AC2 + 8)
                self.wave0(fb)
            if k == 2:
                def fa():
                    a(f"""
                    v_lshlrev_b32 v{W3 + 2}, 4, v{LANE}
                    s_lshl_b32 s{sB}, s{sT}, 11
                    s_add_u32 s{sB}, s{sB}, {W_OFFS}
                    buffer_store_dwordx4 {vr(ACC, 4)}, v{W3 + 2}, {sr(sWS, 4)}, s{sB} offen sc1
                    buffer_store_dwordx4 {vr(ACC + 4, 4)}, v{W3 + 2}, {sr(sWS, 4)}, s{sB} offen offset:1024 sc1
                    """)
                self.wave0(fa)
            self.trreads(chunk_slot[k])
            c = issue_at.get(k)
            self.mfmas(acc, k % 4, (lambda sp: self.dma_all(c, chunk_slot[c], sp)) if c else None)
            if k == 1:
                a(f"""
                v_mov_b64 {vr(W3, 2)}, 0
                v_mov_b64 {vr(W3 + 2, 2)}, 0
                v_add_u32 v116, {AB - PS}, v{STR}
                ds_write_b128 v116, {vr(W3, 4)}
                """)
                if "touchc" in self.opts:
                    self.touch()
            if k == 3:
                for rb in range(3):
                    for h in range(2):
                        a(f"v_pk_mul_f32 {vr(AC2 + 4 * rb + 2 * h, 2)}, {vr(AC2 + 4 * rb + 2 * h, 2)}, {sr(sNL2E, 2)} op_sel_hi:[1,0]")
                    a(f"v_cvt_pk_bf16_f32 v{AC2 + 4 * rb}, v{AC2 + 4 * rb}, v{AC2 + 4 * rb + 1}")
                    a(f"v_cvt_pk_bf16_f32 v{AC2 + 4 * rb + 1}, v{AC2 + 4 * rb + 2}, v{AC2 + 4 * rb + 3}")
                    a(f"ds_write_b64 v{STG}, {vr(AC2 + 4 * rb, 2)} offset:{rb * 8192}")
                self.barrier("PS")
                a(f"""
                ds_read_b128 {vr(AC2, 4)}, v{STR}
                ds_read_b128 {vr(AC2 + 4, 4)}, v{STR} offset:16384
                """)
                self.xreads(0)
                a(f"""
                s_mov_b32 s{sB}, {W_P}
                s_waitcnt lgkmcnt(3)
                buffer_store_dwordx4 {vr(AC2, 4)}, v{GO}, {sr(sWS, 4)}, s{sB} offen sc1
                """)
                self.vm("LN", "p")
                self.stamp("pst")
                pieces = [(c, m) for c in after_p for m in range(2)]
                nmix = self.opt("pmix", 0)
                for c, m in pieces[:nmix]:
                    self.dma_all(c, chunk_slot[c], m)
                a(f"""
                s_mov_b32 s{sB}, {W_P}
                s_waitcnt lgkmcnt(2)
                buffer_store_dwordx4 {vr(AC2 + 4, 4)}, v{GO2}, {sr(sWS, 4)}, s{sB} offen sc1
                """)
                self.vm("LN", "p")
                for c, m in pieces[nmix:]:
                    self.dma_all(c, chunk_slot[c], m)
            elif k < 11:
                self.xreads((k + 1) % 4)
            if k == k_off:
                a(f"""
                v_lshrrev_b32 v{RBA}, 2, v{TID}
                v_lshlrev_b32 v{o0}, 11, v{RBA}
                v_mov_b32 v{o1}, {OOB}
                s_movk_i32 s{sA}, {NT}
                v_cmp_gt_u32 {sr(sVAL, 2)}, s{sA}, v{RBA}
                s_lshl_b32 s{sC}, s{sT}, 3
                s_add_u32 s{sC}, s{sC}, {W_OFFS}
                v_cndmask_b32 v{o0}, v{o1}, v{o0}, {sr(sVAL, 2)}
                """)
                offs_issue()
                self.vm("LN", "offs")
            if k == k_off + 1:
                a(f"""
                s_lshl_b32 s{sC}, s{sT}, 3
                s_add_u32 s{sC}, s{sC}, {W_OFFS}
                s_mov_b32 s{sD}, 0
                s_mov_b32 s{sB}, 0x100000
                """)
                self.vmwait({"offs"})
                a(f"""
                L_offs_chk:
                v_xor_b32 v{OV}, s{sTLO}, v{OV}
                v_cmp_ne_u32 vcc, s{sTAG}, v{OV + 1}
                v_cmp_le_u32 s[40:41], s{sB}, v{OV}
                s_nop 1
                s_or_b64 vcc, vcc, s[40:41]
                s_and_b64 vcc, vcc, {sr(sVAL, 2)}
                s_cbranch_scc0 L_offs_ok
                s_add_u32 s{sD}, s{sD}, 1
                s_cmp_gt_u32 s{sD}, {POLL_LIMIT}
                s_cbranch_scc1 L_offs_ok
                """)
                offs_issue()
                a(f"""
                s_waitcnt vmcnt(0)
                s_branch L_offs_chk
                L_offs_ok:
                """)
                self.stamp("offs")
                a(f"""
                v_cndmask_b32 v{OV}, 0, v{OV}, {sr(sVAL, 2)}
                v_and_b32 v{o1}, 3, v{TID}
                v_mul_u32_u24 v{o0}, {EC * 8}, v{RBA}
                v_and_b32 v{o2}, 0x3ff, v{OV}
                v_bfe_u32 v{o3}, v{OV}, 10, 10
                v_add_u32 v{o2}, v{o2}, v{o1}
                v_lshl_add_u32 v{o0}, v{o2}, 3, v{o0}
                v_add_u32 v{RBA}, {W_RECS}, v{o0}
                v_sub_u32 v{CQ}, v{o3}, v{o1}
                v_cmp_lt_u32 vcc, {4 * NPASS}, v{o3}
                s_mov_b32 s{sP0}, 0
                s_mov_b32 s{sNP}, {NPASS}
                s_mov_b32 s{sMODE}, 0
                """)
                self.rec_issue(SCRA)
                self.vm("LN", "rec", 2)
                a(f"""
                s_cbranch_vccz L_nomax
                v_mov_b32 v{o4}, {MISC}
                s_mov_b64 exec, vcc
                ds_max_u32 v{o4}, v{o3}
                s_mov_b64 exec, -1
                s_waitcnt lgkmcnt(0)
                L_nomax:
                """)
            if k == k_off + 2:
                self.vmwait({"rec"})
                self.stamp("rec")
                self.count(S1)
            if k == k_off + 3:
                self.lists(S1, "L_gen1")
                a(f"""
                L_gen1_back:
                v_lshlrev_b32 v{S1.tmp + 3}, 1, v{LANE}
                s_mov_b32 s{sB}, {512 * 512}
                s_waitcnt lgkmcnt(0)
                v_mov_b64 {vr(W3, 2)}, 0
                v_mov_b64 {vr(W3 + 2, 2)}, 0
                """)
                for r in range(4):
                    a(f"buffer_load_short_d16_hi v{W3 + r}, v{S1.tmp + 3}, {sr(sWM, 4)}, s{sB} offen offset:{128 * r}")
                self.vm("LN", "w3", 4)
            if k == 7:
                for h in range(6):
                    a(f"v_pk_mul_f32 {vr(ACC + 2 * h, 2)}, {vr(ACC + 2 * h, 2)}, {sr(sNL2E, 2)} op_sel_hi:[1,0]")
            if k == k_off + 4:
                self.setup(24)
            if k == 10:
                self.side_fill(28)
                self.vmwait({"w3"})
                a(f"""
                v_mul_f32 v{W3}, s{sNL2E}, v{W3}
                v_mul_f32 v{W3 + 1}, s{sNL2E}, v{W3 + 1}
                v_mul_f32 v{W3 + 2}, s{sNL2E}, v{W3 + 2}
                v_mul_f32 v{W3 + 3}, s{sNL2E}, v{W3 + 3}
                v_and_b32 v32, 15, v{LANE}
                v_lshrrev_b32 v33, 4, v{LANE}
                s_lshl_b32 s{sB}, s{sW}, 6
                v_mul_u32_u24 v34, {QS}, v32
                v_lshl_add_u32 v34, v33, 4, v34
                v_add_u32 v34, s{sB}, v34
                v_cmp_gt_u32 {sr(sEX, 2)}, 8, v32
                v_mov_b64 {vr(36, 2)}, 0
                v_mov_b64 {vr(38, 2)}, 0
                v_add_u32 v35, {AB - PS + 16384}, v{STR}
                """)
        self.wave0(self.poll_issue)
        a(f"""
        s_cmp_lt_u32 s{sW}, 4
        s_cbranch_scc0 L_z3
        ds_write_b128 v35, {vr(36, 4)}
        L_z3:
        """)
        self.lane_consts()
        for rb in range(3):
            for h in range(2):
                a(f"v_pk_mul_f32 {vr(AC2 + 4 * rb + 2 * h, 2)}, {vr(AC2 + 4 * rb + 2 * h, 2)}, {sr(sNL2E, 2)} op_sel_hi:[1,0]")
            if rb == 2:
                a(f"s_mov_b64 exec, {sr(sEX, 2)}")
            a(f"ds_write_b128 v34, {vr(AC2 + 4 * rb, 4)} offset:{QB + rb * 16 * QS}")
        a("s_mov_b64 exec, -1")
        self.stamp("qepi")

        def pw():
            self.poll_wait()
            a(f"s_cmp_eq_u32 s{sT}, 0\ns_cbranch_scc0 L_noep\ns_mov_b32 s{sB}, {W_EPOCH}")
            self.tag_store(sB, POLLB)
            a.label("L_noep")
        self.wave0(pw)
        a(f"""
        s_cmp_eq_u32 s{sGEN}, 0
        s_cbranch_scc0 L_generic
        """)
        self.barrier("C2")
        a.label("L_go")
        a(f"""
        s_cmp_gt_i32 s{sNE}, 0
        s_cbranch_scc0 L_empty
        """)
        a(f"v_mov_b32 v{IA}, v{IX0}")
        if "noprio" not in self.opts:
            a("s_setprio 3")
        self.gather(0)
        a(f"""
        ds_read_b64 {vr(EE[0], 2)}, v{EA}
        v_add_u32 v{QA}, s{sQ0}, v{L4}
        v_mov_b32 v{IA}, v{IX0 + 1}
        ds_read2st64_b32 {vr(Q, 2)}, v{QA} offset0:0 offset1:1
        ds_read2st64_b32 {vr(Q + 2, 2)}, v{QA} offset0:2 offset1:3
        v_xor_b32 v{AG}, s{sAG0}, v{L8}
        v_add_u32 v{CNA}, {CNTN}, v{L4}
        v_mov_b32 v{TZ}, 0
        ds_write_b32 v{CNA}, v{TZ}
        v_mov_b64 {vr(NN, 2)}, 0
        v_mov_b64 {vr(NN + 2, 2)}, 0
        v_mov_b32 v{DD}, 1.0
        v_mov_b32 v{DD + 1}, 1.0
        """)
        self.gather(1)
        a(f"""
        v_mov_b32 v{IA}, v{IX0 + 2}
        v_mov_b32 v{DD + 2}, 1.0
        v_mov_b32 v{DD + 3}, 1.0
        v_mov_b64 {vr(CK2, 2)}, 0
        v_mov_b32 v{CK1}, 0
        """)
        self.gather(2)
        a(f"v_mov_b32 v{IA}, v{IX0 + 3}")
        self.gather(3)
        a(f"""
        v_mov_b32 v{IA}, v{IX0 + 4}
        s_mov_b32 s{sI}, 0
        s_mov_b32 s{sTRIP}, 0
        """)
        self.stamp("setup")
        a("s_waitcnt vmcnt(3)")
        self.stamp("row0")
        self.p_reads(0, 0)
        a("s_waitcnt lgkmcnt(0)")
        self.gather(0)
        self.u2_loads()
        a(f"""
        s_cmp_eq_u32 s{sMODE}, 0
        s_cbranch_scc0 L_enter_x
        """)
        self.main_loop(False, "L_main_done")
        a.reset_hist()
        a.label("L_main_done")
        a("s_setprio 0")
        self.stamp("loop")
        a(f"""
        v_add_f32 v{CK2}, v{CK2}, v{CK2 + 1}
        v_mov_b32 v{TM}, {BIG}
        v_cmp_u_f32 vcc, v{CK2}, v{CK2}
        v_cmp_nle_f32 s[40:41], v{CK1}, v{TM}
        s_nop 1
        s_or_b64 vcc, vcc, s[40:41]
        s_cbranch_scc0 L_after
        v_mov_b32 v{TM}, {MISC + 4}
        v_mov_b32 v{TM + 1}, 1
        ds_write_b32 v{TM}, v{TM + 1}
        L_after:
        s_waitcnt vmcnt(0)
        """)
        self.barrier("M")
        a(f"""
        v_mov_b32 v{TM}, {MISC + 4}
        ds_read_b32 v{TM + 1}, v{TM}
        """)
        depth = 4

        def rd(s):
            for rb in range(3):
                a(f"ds_read_b128 {vr(XF + 12 * (s % depth) + 4 * rb, 4)}, v{XA + (s & 3)} offset:{rb * 8192 + (s >> 2) * 256}")

        for s in range(depth):
            rd(s)
        a(f"""
        s_cmp_eq_u32 s{sMODE}, 0
        s_cbranch_scc0 L_slow_next
        s_waitcnt lgkmcnt(12)
        v_readfirstlane_b32 s{sA}, v{TM + 1}
        s_nop 1
        s_cmp_eq_u32 s{sA}, 0
        s_cbranch_scc0 L_redo
        L_final:
        """)
        for s in range(8):
            ahead = min(depth - 1, 7 - s)
            a(f"s_waitcnt lgkmcnt({3 * ahead})")
            for rb in range(3):
                a(f"v_mfma_f32_16x16x32_bf16 {vr(ACC + 4 * rb, 4)}, {vr(UF + 4 * s, 4)}, {vr(XF + 12 * (s % depth) + 4 * rb, 4)}, {vr(ACC + 4 * rb, 4)}")
            if s + depth < 8:
                rd(s + depth)
        TE = 104
        for r in range(12):
            a(f"v_exp_f32 v{TE + r}, v{ACC + r}")
        for h in range(6):
            a(f"v_pk_add_f32 {vr(TE + 2 * h, 2)}, {vr(TE + 2 * h, 2)}, 1.0 op_sel_hi:[1,0]")
        for r in range(12):
            a(f"v_rcp_f32 v{TE + r}, v{TE + r}")
        for h in range(6):
            a(f"v_pk_mul_f32 {vr(ACC + 2 * h, 2)}, {vr(ACC + 2 * h, 2)}, {sr(sNLN2, 2)} op_sel_hi:[1,0]")
        for rb in range(3):
            for h in range(2):
                a(f"v_pk_mul_f32 {vr(ACC + 4 * rb + 2 * h, 2)}, {vr(ACC + 4 * rb + 2 * h, 2)}, {vr(TE + 4 * rb + 2 * h, 2)}")
            a(f"v_cvt_pk_bf16_f32 v{PQ + 2 * rb}, v{ACC + 4 * rb}, v{ACC + 4 * rb + 1}")
            a(f"v_cvt_pk_bf16_f32 v{PQ + 2 * rb + 1}, v{ACC + 4 * rb + 2}, v{ACC + 4 * rb + 3}")
            a(f"ds_write_b64 v{STG}, {vr(PQ + 2 * rb, 2)} offset:{rb * 8192}")
        self.barrier("F")
        a(f"""
        ds_read_b128 {vr(PQ + 8, 4)}, v{STR}
        ds_read_b128 {vr(PQ + 12, 4)}, v{STR} offset:16384
        s_waitcnt lgkmcnt(1)
        buffer_store_dwordx4 {vr(PQ + 8, 4)}, v{GO}, {sr(sOUT, 4)}, 0 offen sc1
        s_waitcnt lgkmcnt(0)
        buffer_store_dwordx4 {vr(PQ + 12, 4)}, v{GO2}, {sr(sOUT, 4)}, 0 offen sc1
        """)
        if self.opt("pad", 0):
            a(f"""
            L_pad:
            s_memrealtime s[98:99]
            s_waitcnt lgkmcnt(0)
            s_sub_u32 s98, s98, s96
            s_cmp_lt_u32 s98, {self.opt("pad", 0)}
            s_cbranch_scc1 L_pad
            """)
        if self.stamps:
            a.label("L_diag_end")
            a("s_waitcnt vmcnt(0)")
            self.stamp("end")
            a(f"""
            s_lshl_b32 s{sA}, s{sT}, 4
            s_add_u32 s{sA}, s{sA}, s{sW}
            s_lshl_b32 s{sA}, s{sA}, 8
            s_add_u32 s{sA}, s{sA}, {W_STAMP}
            v_lshlrev_b32 v{TM}, 2, v{LANE}
            buffer_store_dword v{STAMPV}, v{TM}, {sr(sWS, 4)}, s{sA} offen
            """)
        a.label("L_end")
        a("s_endpgm")
        a.reset_hist()
        a(f"""
        L_gen1:
        s_mov_b32 s{sGEN}, 1
        s_branch L_gen1_back
        L_generic:
        s_waitcnt vmcnt(0) lgkmcnt(0)
        s_barrier
        v_add_u32 v{CNA}, {CNTN}, v{L4}
        v_mov_b32 v{TZ}, 0
        ds_write_b32 v{CNA}, v{TZ}
        s_mov_b32 s{sNP}, 1
        s_mov_b32 s{sMODE}, 1
        s_waitcnt lgkmcnt(0)
        s_barrier
        L_round:
        """)
        self.lane_consts()
        self.rec_issue(SCR2)
        a("s_waitcnt vmcnt(0)")
        self.count(SCR2)
        a("s_waitcnt lgkmcnt(0)\ns_barrier")
        self.lists(SCR2, "L_generic")
        a("s_waitcnt lgkmcnt(0)\ns_barrier")
        self.setup(SCR2.tmp)
        a(f"""
        s_waitcnt lgkmcnt(0)
        s_branch L_go
        L_empty:
        v_add_u32 v{CNA}, {CNTN}, v{L4}
        v_mov_b32 v{TZ}, 0
        ds_write_b32 v{CNA}, v{TZ}
        """)
        self.u2_loads()
        a(f"""
        s_branch L_after
        L_slow_next:
        s_cmp_eq_u32 s{sNP}, {NPASS}
        s_cbranch_scc1 L_final
        s_add_u32 s{sP0}, s{sP0}, 1
        s_max_u32 s{sA}, s{sMAXC}, {4 * NPASS}
        s_lshl_b32 s{sB}, s{sP0}, 2
        s_cmp_lt_u32 s{sB}, s{sA}
        s_cbranch_scc0 L_final
        s_waitcnt lgkmcnt(0)
        s_branch L_round
        L_redo:
        s_waitcnt lgkmcnt(0)
        s_barrier
        s_mov_b32 s{sMODE}, 1
        v_mov_b64 {vr(XF, 2)}, 0
        v_mov_b64 {vr(XF + 2, 2)}, 0
        v_add_u32 v{XF + 4}, {AB - PS}, v{STR}
        """)
        self.zero_agg(XF + 4, XF)
        a("s_branch L_round")
        self.main_loop(True, "L_after")
        a.label("L_code_end")

    def text(self):
        hdr = f"""; Fused MPNN edge-MLP kernel: P = x W1 published per tile, edges binned by destination tile,
; @launch grid=({NT},1,1) block=(1024,1,1) lds={LDS_TOTAL}
.amdgcn_target "amdgcn-amd-amdhsa--gfx950"
.text
.globl {NAME}_kernel
.p2align 8
.type {NAME}_kernel,@function
{NAME}_kernel:
"""
        ftr = f""".section .rodata,"a"
.p2align 6
.amdhsa_kernel {NAME}_kernel
  .amdhsa_next_free_vgpr 128
  .amdhsa_next_free_sgpr 102
  .amdhsa_accum_offset 128
  .amdhsa_group_segment_fixed_size 0
  .amdhsa_kernarg_size 72
  .amdhsa_user_sgpr_count 2
  .amdhsa_user_sgpr_kernarg_segment_ptr 1
  .amdhsa_system_sgpr_workgroup_id_x 1
.end_amdhsa_kernel
"""
        return hdr + self.a.text() + ftr


if __name__ == "__main__":
    out = [x for x in sys.argv[1:] if not x.startswith("--")]
    g = Gen(opts=[x[2:] for x in sys.argv[1:] if x.startswith("--")])
    g.build()
    txt = g.text()
    if g.stamps:
        txt = "; stamps: " + ",".join(g.names) + "\n" + txt
    open(out[0] if out else "cdna_kernels/%s.s" % NAME, "w").write(txt)
    print("nops inserted:", g.a.nops, "lines:", len(g.a.lines), "stamps:", g.nstamp)
```

```python
import sys
import struct
from asmlib import Asm

NAME = "gather_scatter__mpnn_edge_mlp__graph"
N, E, D = 10000, 160000, 256
T, NT, EC = 40, 250, 640

SLOT = (0, 32768, 65536, 98304)
XB = 131072
SIDE = 41984
HIST, BASE, SORT, USC = 151552, 152576, 153600, 158720
CNTN, MISC = 160768, 161024
IL, EL, DL = 151552, 153664, 157824
QB, QS = 0, 1040
AB = XB
RING = 65536
PS = 65536
LDS_TOTAL = 163840

W_EPOCH, W_FA, W_FB = 0, 0x1000, 0x3000
W_OFFS, W_RECS, W_UT, W_P = 0x10000, 0x90000, 0x700000, 0x200000
W_UTAG = 0x6000
W_STAMP = 0x800000
WS_SIZE = 0xA00000
OOB = 0x80000000
POLL_LIMIT = 200000


def f2u(x):
    return struct.unpack("<I", struct.pack("<f", x))[0]


NLOG2E = f2u(-1.4426950408889634)
NLN2 = f2u(-0.6931471805599453)
BIG = f2u(2.0 ** 120)


def vr(a, n=1):
    return "v%d" % a if n == 1 else "v[%d:%d]" % (a, a + n - 1)


def sr(a, n=1):
    return "s%d" % a if n == 1 else "s[%d:%d]" % (a, a + n - 1)


TID, LANE = 0, 1
XA = 2
STG, GO, GO2, STR = 6, 7, 8, 9
RBA, CQ = 10, 11
ACC = 12
UF = 24
XR = 24
XF2, WF = 88, 96
AC2 = 104
XF = 56
WOFF, TR0, TR1 = 120, 121, 122
STAMPV = 123
W3 = 124
NPASS = 4
POLLB = 56
FO = 120
W3L = MISC + 64
XCNT, S1C, S2C, ACKC, BACK = MISC + 8, MISC + 12, MISC + 16, MISC + 20, MISC + 24


class Scratch:
    def __init__(self, rec, adr, rank, tmp):
        self.rec, self.adr, self.rank, self.tmp = rec, adr, rank, tmp


REC1 = [116, 118, 124, 126]
SCRP = Scratch(REC1, 12, None, 18)
SCRX = Scratch(REC1, ACC, ACC + 4, ACC + 8)
SCR2 = Scratch([24, 26, 28, 30], 40, 44, 48)
CNA = 109
PA = (56, 64)
EE = (72, 74)
IA, Q, QE, Y, TT, NN, DD = 76, 78, 86, 90, 94, 98, 102
CK2, CK1 = 106, 108
RG, IXA, EA, QA, AG, L4, L8, INFO, TM, IOF = 82, 116, 117, 112, 113, 83, 84, 118, 120, 85
TZ = 115
IX0 = 64

sT, sW = 2, 3
sX, sWM, sWU, sWS, sP, sOUT, sSRC, sDST, sEA = 4, 8, 12, 16, 20, 24, 28, 32, 36
sNL2E, sNLN2, sWK, sW1K = 58, 60, 62, 63
sMASK, sI, sNE, sREM, sTRIP, sSLOT = 64, 66, 67, 68, 69, 70
sM, sP0, sNP, sMAXC, sFIRST, sMODE = 74, 75, 76, 77, 78, 79
sVAL = 80
sA, sB, sC, sD = 88, 89, 90, 91
sEX = 46
sCO = 48
sHI, sTAG, sTLO, sGEN = 49, 52, 56, 57
sQ0, sAG0 = 44, 45
sUO, sUG, sUB, sE = 64, 65, 38, 39
sZ, sR = 6, 31


class Gen:
    def __init__(self, opts=()):
        self.opts = set(opts)
        self.a = Asm()
        self.stamps = "stamps" in self.opts
        self.nstamp = 0
        self.names = []
        self.lq = []
        self.q = {"L": [], "N": []}

    def opt(self, name, default):
        for o in self.opts:
            if o.startswith(name + "="):
                return int(o.split("=")[1])
        return default

    STAMP_REGS = [92, 94, 96, 98, 100, 50, 54, 4, 12, 14, 32, 34, 36]

    def stampval(self, name, sreg):
        sel = [o[3:].split("+") for o in self.opts if o.startswith("st=")]
        if not self.stamps or not sel or name not in sel[0]:
            return
        k = self.nstamp
        self.nstamp += 1
        self.names.append("=" + name)
        self.a(f"s_add_u32 s{self.STAMP_REGS[k]}, s{sreg}, 1")

    def stamp(self, name):
        if not self.stamps:
            return
        sel = [o[3:].split("+") for o in self.opts if o.startswith("st=")]
        if name not in ("start", "end") and sel and name not in sel[0]:
            return
        k = self.nstamp
        self.nstamp += 1
        self.names.append(name)
        if "dbg" in self.opts:
            self.a(f"s_memrealtime {sr(self.STAMP_REGS[k], 2)}")
            if name == "end":
                a = self.a
                a("s_load_dwordx2 s[40:41], s[0:1], 56\ns_waitcnt lgkmcnt(0)")
                a(f"s_not_b32 s44, s{self.STAMP_REGS[0]}\nv_writelane_b32 v{STAMPV}, s44, 15")
                for i in range(self.nstamp):
                    a(f"v_writelane_b32 v{STAMPV}, s{self.STAMP_REGS[i]}, {i}")
                a(f"""
                s_mov_b32 s42, 64
                s_mov_b32 s43, 0x20000
                v_lshlrev_b32 v{TM}, 2, v{LANE}
                s_cmp_eq_u32 s{sW}, 0
                s_cbranch_scc0 L_end
                buffer_atomic_umax v{STAMPV}, v{TM}, s[40:43], 0 offen
                s_branch L_end
                """)
            return
        if name in ("start", "end"):
            self.a(f"""
            s_memrealtime s[40:41]
            s_waitcnt lgkmcnt(0)
            v_writelane_b32 v{STAMPV}, s40, {0 if name == "start" else 1}
            """)
        self.a(f"s_memtime {sr(self.STAMP_REGS[k], 2)}")
        if name == "end":
            self.a("s_waitcnt lgkmcnt(0)")
            for i in range(self.nstamp):
                self.a(f"v_writelane_b32 v{STAMPV}, s{self.STAMP_REGS[i]}, {32 + i}")

    def vm(self, roles, tag, n=1):
        for r in roles:
            self.q[r] += [tag] * n

    def vmwait(self, tags):
        need = {}
        for r, lst in self.q.items():
            last = max((i for i, t in enumerate(lst) if t in tags), default=None)
            if last is None:
                need[r] = None
            else:
                need[r] = len(lst) - 1 - last
                self.q[r] = lst[last + 1:]
        a = self.a
        if need["L"] == need["N"]:
            if need["L"] is not None:
                a(f"s_waitcnt vmcnt({need['L']})")
            return
        lab = a.newlabel("vw")
        if need["N"] is None:
            a(f"s_cmp_lt_u32 s{sW}, 8\ns_cbranch_scc1 {lab}\ns_waitcnt vmcnt({need['L']})\n{lab}:")
        elif need["L"] is None:
            a(f"s_cmp_ge_u32 s{sW}, 8\ns_cbranch_scc1 {lab}\ns_waitcnt vmcnt({need['N']})\n{lab}:")
        elif need["L"] > need["N"]:
            a(f"s_waitcnt vmcnt({need['L']})\ns_cmp_ge_u32 s{sW}, 8\ns_cbranch_scc1 {lab}\ns_waitcnt vmcnt({need['N']})\n{lab}:")
        else:
            a(f"s_waitcnt vmcnt({need['N']})\ns_cmp_lt_u32 s{sW}, 8\ns_cbranch_scc1 {lab}\ns_waitcnt vmcnt({need['L']})\n{lab}:")

    def lwait(self, tag):
        last = max(i for i, t in enumerate(self.lq) if t == tag)
        self.a(f"s_waitcnt lgkmcnt({len(self.lq) - 1 - last})")
        self.lq = self.lq[last + 1:]

    def barrier(self, name, lgkm=True):
        if lgkm:
            self.a("s_waitcnt lgkmcnt(0)")
        self.a("s_barrier")
        self.stamp(name)

    def dma_body(self, k, slot, role="L"):
        a = self.a
        if f"noc{k}" in self.opts:
            for m in range(4):
                a(f"s_mov_b32 m0, {USC + 1024}\ns_mov_b32 s{sB}, {OOB}\nbuffer_load_dwordx4 v{WOFF}, {sr(sWM, 4)}, s{sB} offen lds")
            self.vm(role, f"c{k}", 4)
            return
        srd, base = ((sWM, 0), (sWU, 0), (sWM, 131072))[k // 4]
        c = k % 4
        for m in range(4):
            a(f"""
            s_add_u32 m0, s{sW1K}, {SLOT[slot] + m * 8192}
            s_mov_b32 s{sB}, {base + c * 32768 + m * 8192}
            buffer_load_dwordx4 v{WOFF}, {sr(srd, 4)}, s{sB} offen lds
            """)
        self.vm(role, f"c{k}", 4)

    def dma_all(self, k, slot, m):
        a = self.a
        srd, base = ((sWM, 0), (sWU, 0), (sWM, 131072))[k // 4]
        a(f"""
        s_add_u32 m0, s{sWK}, {SLOT[slot] + m * 16384}
        s_add_u32 s{sB}, s{sHI}, {base + (k % 4) * 32768 + m * 16384}
        buffer_load_dwordx4 v{WOFF}, {sr(srd, 4)}, s{sB} offen lds
        """)
        self.vm("LN", f"c{k}")

    def spin(self, ctr, target, tmp, extra=None):
        a = self.a
        lab = a.newlabel("spin")
        a(f"v_mov_b32 v{tmp}, {ctr}")
        a.label(lab)
        a(f"ds_read_b32 v{tmp + 1}, v{tmp}")
        if extra:
            a(extra)
        a(f"""
        s_waitcnt lgkmcnt(0)
        v_readfirstlane_b32 s{sA}, v{tmp + 1}
        s_nop 0
        s_cmp_lt_u32 s{sA}, {target}
        s_cbranch_scc1 {lab}
        """)

    def xspin(self, shift):
        a = self.a
        lab = a.newlabel("xs")
        a(f"""
        {lab}:
        ds_read_b32 v{WF + 1}, v{WF}
        s_waitcnt lgkmcnt(0)
        v_readfirstlane_b32 s{sA}, v{WF + 1}
        s_nop 0
        s_bfe_u32 s{sA}, s{sA}, {shift | (4 << 16)}
        s_cmp_lt_u32 s{sA}, 3
        s_cbranch_scc0 {lab}_ok
        s_sleep 1
        s_branch {lab}
        {lab}_ok:
        """)

    def touch(self):
        a = self.a
        l2, done = a.newlabel("tw2"), a.newlabel("tdone")
        a(f"""
        s_lshr_b32 s{sA}, s{sT}, 3
        s_lshl_b32 s{sA}, s{sA}, 12
        s_mov_b32 m0, {USC + 1024}
        v_lshlrev_b32 v{W3 + 2}, 4, v{LANE}
        s_cmp_eq_u32 s{sW}, 5
        s_cbranch_scc0 {l2}
        """)
        for m in range(4):
            a(f"s_add_u32 s{sB}, s{sA}, {1024 * m}\nbuffer_load_dwordx4 v{W3 + 2}, {sr(sWU, 4)}, s{sB} offen lds")
        a(f"s_branch {done}\n{l2}:\ns_cmp_eq_u32 s{sW}, 6\ns_cbranch_scc0 {done}")
        for m in range(4):
            a(f"s_add_u32 s{sB}, s{sA}, {131072 + 1024 * m}\nbuffer_load_dwordx4 v{W3 + 2}, {sr(sWM, 4)}, s{sB} offen lds")
        a.label(done)

    def xpreload(self, ua):
        a = self.a
        a(f"v_mov_b32 v{WF}, {XCNT}")
        self.xspin(0)
        self.stamp("xa")
        for s in range(8):
            a(f"ds_read_b128 {vr(XR + 4 * s, 4)}, v{XA + (s & 3)} offset:{(s >> 2) * 256}")
        a(f"""
        s_cmp_lt_u32 s{sW}, 5
        s_cbranch_scc1 L_xp_go
        s_cmp_ge_u32 s{sW}, 8
        s_cbranch_scc1 L_xp_go
        v_mov_b32 v{W3 + 3}, 16
        s_mov_b64 exec, 1
        s_waitcnt vmcnt(0)
        ds_add_u32 v{WF}, v{W3 + 3}
        s_mov_b64 exec, -1
        """)
        a.label("L_xp_go")
        self.xspin(4)
        self.stamp("xb")
        for s in range(8):
            a(f"ds_read_b128 {vr(XR + 32 + 4 * s, 4)}, v{XA + (s & 3)} offset:{8192 + (s >> 2) * 256}")
        self.xreads(0)
        a(f"s_cmp_lt_u32 s{sW}, 8\ns_cbranch_scc1 L_xp_c2")
        self.dma_body(1, 1)
        a("s_branch L_xp_done\nL_xp_c2:")
        self.dma_body(2, 2, "N")
        a.label("L_xp_done")

    def xreads(self, c):
        a = self.a
        for sp in range(2):
            s = 2 * c + sp
            a(f"ds_read_b128 {vr(XF2 + 4 * sp, 4)}, v{XA + (s & 3)} offset:{2 * 8192 + (s >> 2) * 256}")

    def trreads(self, slot):
        a = self.a
        base = SLOT[slot]
        tr = TR0 if base < 65536 else TR1
        for sp in range(2):
            for p in range(2):
                a(f"ds_read_b64_tr_b16 {vr(WF + 4 * sp + 2 * p, 2)}, v{tr} offset:{(base & 65535) + 16384 * sp + 2048 * p}")

    def mfmas(self, acc, c, between=None):
        a = self.a
        for sp in range(2):
            if between:
                between(sp)
            a(f"s_waitcnt lgkmcnt({2 - 2 * sp})")
            for rb in range(3):
                cin = "0" if (c == 0 and sp == 0) else vr(acc + 4 * rb, 4)
                b = XR + 32 * rb + 4 * (2 * c + sp) if rb < 2 else XF2 + 4 * sp
                a(f"v_mfma_f32_16x16x32_bf16 {vr(acc + 4 * rb, 4)}, {vr(WF + 4 * sp, 4)}, {vr(b, 4)}, {cin}")

    def scan(self, v):
        a = self.a
        for sh in (1, 2, 4, 8):
            a(f"v_add_u32_dpp v{v}, v{v}, v{v} row_shr:{sh} row_mask:0xf bank_mask:0xf bound_ctrl:0")
        a(f"v_add_u32_dpp v{v}, v{v}, v{v} row_bcast:15 row_mask:0xa bank_mask:0xf")
        a(f"v_add_u32_dpp v{v}, v{v}, v{v} row_bcast:31 row_mask:0xc bank_mask:0xf")

    def poll_issue(self):
        a = self.a
        a(f"v_lshlrev_b32 v{TM + 1}, 5, v{LANE}\ns_mov_b32 s{sB}, {W_FB}\ns_mov_b32 s{sD}, {W_FB + 4096}")
        for k in range(4):
            a(f"buffer_load_dwordx2 {vr(POLLB + 2 * k, 2)}, v{TM + 1}, {sr(sWS, 4)}, s{sB if k < 2 else sD} offen offset:{2048 * (k & 1)} sc1")

    def poll_wait(self):
        a = self.a
        lp, chk, done = a.newlabel("poll"), a.newlabel("pchk"), a.newlabel("pdone")
        a(f"s_mov_b32 s{sC}, 0\ns_branch {chk}")
        a.label(lp)
        self.poll_issue()
        a.label(chk)
        m58 = (1 << (NT - 192)) - 1
        a(f"""
        s_waitcnt vmcnt(0)
        v_cmp_ne_u64 s[40:41], {sr(sTAG, 2)}, {vr(POLLB, 2)}
        v_cmp_ne_u64 s[42:43], {sr(sTAG, 2)}, {vr(POLLB + 2, 2)}
        v_cmp_ne_u64 s[28:29], {sr(sTAG, 2)}, {vr(POLLB + 4, 2)}
        v_cmp_ne_u64 s[46:47], {sr(sTAG, 2)}, {vr(POLLB + 6, 2)}
        s_nop 1
        s_and_b32 s47, s47, {m58 >> 32}
        s_or_b64 s[40:41], s[40:41], s[42:43]
        s_or_b64 s[46:47], s[28:29], s[46:47]
        s_or_b64 s[40:41], s[40:41], s[46:47]
        s_cbranch_scc0 {done}
        s_add_u32 s{sC}, s{sC}, 1
        s_cmp_lt_u32 s{sC}, {POLL_LIMIT}
        s_cbranch_scc1 {lp}
        """)
        a.label(done)

    def tag_store(self, soff, tmp):
        a = self.a
        a(f"""
        v_mov_b32 v{tmp}, s{sTAG}
        v_mov_b32 v{tmp + 1}, s{sTAG + 1}
        v_lshlrev_b32 v{tmp + 2}, 24, v{LANE}
        buffer_store_dwordx2 {vr(tmp, 2)}, v{tmp + 2}, {sr(sWS, 4)}, s{soff} offen sc1
        """)

    def wave0(self, fn):
        a = self.a
        lab = a.newlabel("w0")
        a(f"s_cmp_eq_u32 s{sW}, 0\ns_cbranch_scc0 {lab}")
        fn()
        a.label(lab)

    def edge(self, pb, which, exact, first):
        a = self.a
        if "noedge" in self.opts:
            return
        p = PA[pb] + 4 * which
        sel = "op_sel:[1,0,0] op_sel_hi:[1,1,1]" if which else "op_sel:[0,0,0] op_sel_hi:[0,1,1]"
        y = NN if (first and not exact) else Y
        for h in range(2):
            a(f"v_pk_fma_f32 {vr(QE + 2 * h, 2)}, {vr(EE[pb], 2)}, {vr(W3 + 2 * h, 2)}, {vr(Q + 2 * h, 2)} {sel}")
        for h in range(2):
            a(f"v_pk_add_f32 {vr(y + 2 * h, 2)}, {vr(p + 2 * h, 2)}, {vr(QE + 2 * h, 2)}")
        for r in range(4):
            a(f"v_exp_f32 v{TT + r}, v{y + r}")
        if exact:
            for h in range(2):
                a(f"v_pk_add_f32 {vr(TT + 2 * h, 2)}, {vr(TT + 2 * h, 2)}, 1.0 op_sel_hi:[1,0]")
            for r in range(4):
                a(f"v_rcp_f32 v{TT + r}, v{TT + r}")
            for h in range(2):
                if first:
                    a(f"v_pk_mul_f32 {vr(NN + 2 * h, 2)}, {vr(Y + 2 * h, 2)}, {vr(TT + 2 * h, 2)}")
                else:
                    a(f"v_pk_fma_f32 {vr(NN + 2 * h, 2)}, {vr(Y + 2 * h, 2)}, {vr(TT + 2 * h, 2)}, {vr(NN + 2 * h, 2)}")
        elif first:
            for h in range(2):
                a(f"v_pk_add_f32 {vr(DD + 2 * h, 2)}, {vr(TT + 2 * h, 2)}, 1.0 op_sel_hi:[1,0]")
        else:
            for h in range(2):
                a(f"v_pk_fma_f32 {vr(NN + 2 * h, 2)}, {vr(NN + 2 * h, 2)}, {vr(TT + 2 * h, 2)}, {vr(NN + 2 * h, 2)}")
            for h in range(2):
                a(f"v_pk_fma_f32 {vr(NN + 2 * h, 2)}, {vr(Y + 2 * h, 2)}, {vr(DD + 2 * h, 2)}, {vr(NN + 2 * h, 2)}")
            for h in range(2):
                a(f"v_pk_fma_f32 {vr(DD + 2 * h, 2)}, {vr(DD + 2 * h, 2)}, {vr(TT + 2 * h, 2)}, {vr(DD + 2 * h, 2)}")

    def flush(self, exact, mid=None, final=False):
        a = self.a
        if exact:
            if mid:
                mid()
            a(f"v_cvt_pk_bf16_f32 v{TT}, v{NN}, v{NN + 1}")
            a(f"v_cvt_pk_bf16_f32 v{TT + 1}, v{NN + 2}, v{NN + 3}")
            a(f"ds_pk_add_bf16 v{AG}, v{TT}")
            a(f"ds_pk_add_bf16 v{AG}, v{TT + 1} offset:4")
            return 2
        for r in range(4):
            a(f"v_rcp_f32 v{TT + r}, v{DD + r}")
        if mid:
            mid()
        a(f"v_max3_f32 v{CK1}, v{CK1}, v{DD}, v{DD + 1}")
        a(f"v_max3_f32 v{CK1}, v{CK1}, v{DD + 2}, v{DD + 3}")
        for h in range(2):
            a(f"v_pk_mul_f32 {vr(Y + 2 * h, 2)}, {vr(NN + 2 * h, 2)}, {vr(TT + 2 * h, 2)}")
        for h in range(2):
            a(f"v_pk_fma_f32 {vr(CK2, 2)}, {vr(Y + 2 * h, 2)}, 0, {vr(CK2, 2)} op_sel_hi:[1,0,1]")
        if final:
            a(f"""
            s_cmp_eq_u32 s{sCO}, 0
            s_cbranch_scc1 L_noside
            s_lshl_b32 s{sA}, s{sW}, 9
            s_add_u32 s{sA}, s{sA}, {(SIDE + 512) ^ AB}
            v_xor_b32 v{QA}, s{sA}, v{L8}
            s_mov_b32 s{sC}, 0
            L_side:
            ds_read_b64 {vr(TT, 2)}, v{QA}
            s_add_u32 s{sC}, s{sC}, 1
            s_waitcnt lgkmcnt(0)
            v_cmp_eq_u64 vcc, -1, {vr(TT, 2)}
            s_cmp_gt_u32 s{sC}, 4000
            s_cbranch_scc1 L_side_go
            s_cbranch_vccnz L_side
            L_side_go:
            v_lshlrev_b32 v{QE}, 16, v{TT}
            v_and_b32 v{QE + 1}, 0xffff0000, v{TT}
            v_lshlrev_b32 v{QE + 2}, 16, v{TT + 1}
            v_and_b32 v{QE + 3}, 0xffff0000, v{TT + 1}
            v_pk_add_f32 {vr(Y, 2)}, {vr(Y, 2)}, {vr(QE, 2)}
            v_pk_add_f32 {vr(Y + 2, 2)}, {vr(Y + 2, 2)}, {vr(QE + 2, 2)}
            L_noside:
            """)
        a(f"v_cvt_pk_bf16_f32 v{TT}, v{Y}, v{Y + 1}")
        a(f"v_cvt_pk_bf16_f32 v{TT + 1}, v{Y + 2}, v{Y + 3}")
        a(f"ds_write_b64 v{AG}, {vr(TT, 2)}")
        return 1

    def p_reads(self, pb, slot):
        a = self.a
        for row in range(2):
            for r in range(4):
                a(f"ds_read_u16_d16_hi v{PA[pb] + 4 * row + r}, v{RG} offset:{slot * 1024 + row * 512 + r * 128}")

    def gather(self, slot):
        a = self.a
        if "nodma" in self.opts:
            return
        a(f"""
        s_mov_b32 m0, s{sSLOT + slot}
        s_cmp_gt_i32 s{sREM}, 0
        s_cselect_b32 s{sP + 2}, {N}, 0
        s_sub_u32 s{sREM}, s{sREM}, 1
        buffer_load_dwordx4 {vr(IA, 2)}, {sr(sP, 4)}, 0 idxen offen sc1 lds
        """)

    def head(self, jj):
        a = self.a
        pb = jj & 1
        w3l = a.newlabel("w3")
        a(f"""
        s_waitcnt vmcnt(11)
        s_cmp_eq_u32 s{sTRIP}, 0
        s_cbranch_scc1 {w3l}
        s_waitcnt vmcnt(3)
        """)
        a.label(w3l)
        self.p_reads(pb ^ 1, (jj + 1) & 3)
        a(f"ds_read_b64 {vr(EE[pb ^ 1], 2)}, v{EA} offset:{8 * (jj + 1)}")
        a(f"ds_read_u16 v{IA}, v{IXA} offset:{4 * (jj + 5)}")

    def main_loop(self, exact, exit_label):
        a = self.a
        tag = "x" if exact else "f"
        loop = f"L_loop_{tag}"
        blocks = []
        a.label(f"L_enter_{tag}")
        self.head(0)
        self.edge(0, 0, exact, False)
        a(f"s_branch L_post_{tag}")
        a.label(loop)
        for jj in range(4):
            pb = jj & 1
            self.head(jj)
            for which in range(2):
                blk, back = f"L_blk_{tag}_{jj}_{which}", f"L_back_{tag}_{jj}_{which}"
                a(f"s_bitcmp1_b32 s{sMASK}, {1 - which}")
                a(f"s_cbranch_scc1 {blk}")
                self.edge(pb, which, exact, False)
                a.label(back)
                if which == 0:
                    a(f"s_lshr_b64 {sr(sMASK, 2)}, {sr(sMASK, 2)}, 2")
                    if jj == 0:
                        a.label(f"L_post_{tag}")
                blocks.append((blk, back, pb, which))
            a("s_waitcnt lgkmcnt(0)")
            self.gather((jj + 1) & 3)
            a(f"s_add_u32 s{sI}, s{sI}, 2")
        a(f"""
        v_add_u32 v{IXA}, 16, v{IXA}
        v_add_u32 v{EA}, 32, v{EA}
        s_mov_b32 s{sTRIP}, 1
        """)
        if not exact and "noprio" not in self.opts:
            t2, t1, t0 = self.opt("p2", 9), self.opt("p1", 5), self.opt("p0", 1)
            a(f"""
            s_cmp_gt_i32 s{sREM}, {t2}
            s_cbranch_scc1 {loop}
            s_setprio 2
            s_cmp_gt_i32 s{sREM}, {t1}
            s_cbranch_scc1 {loop}
            s_setprio 1
            s_cmp_gt_i32 s{sREM}, {t0}
            s_cbranch_scc1 {loop}
            s_setprio 0
            """)
        a(f"s_branch {loop}")
        fin = f"L_fin_{tag}"
        for blk, back, pb, which in blocks:
            a.reset_hist()
            a.label(blk)
            a(f"""
            s_add_u32 s{sA}, s{sI}, {which}
            s_cmp_eq_u32 s{sA}, s{sNE}
            s_cbranch_scc1 {fin}
            v_readlane_b32 s{sB}, v{INFO}, s{sA}
            """)

            def mid():
                a(f"""
                s_and_b32 s{sC}, s{sB}, 0xffff
                s_lshr_b32 s{sD}, s{sB}, 16
                v_add_u32 v{QA}, s{sC}, v{L4}
                ds_read2st64_b32 {vr(Q, 2)}, v{QA} offset0:0 offset1:1
                ds_read2st64_b32 {vr(Q + 2, 2)}, v{QA} offset0:2 offset1:3
                """)

            n = self.flush(exact, mid)
            a(f"""
            v_xor_b32 v{AG}, s{sD}, v{L8}
            s_waitcnt lgkmcnt({n})
            """)
            self.edge(pb, which, exact, True)
            a(f"s_branch {back}")
        a.reset_hist()
        a.label(fin)
        self.flush(exact, final=True)
        a(f"s_branch {exit_label}")

    def zero_agg(self, addr, zq):
        a = self.a
        lab = a.newlabel("zagg")
        a(f"""
        ds_write_b128 v{addr}, {vr(zq, 4)}
        s_cmp_lt_u32 s{sW}, 4
        s_cbranch_scc0 {lab}
        ds_write_b128 v{addr}, {vr(zq, 4)} offset:16384
        {lab}:
        """)

    def u2_loads(self):
        a = self.a
        a(f"""
        s_mul_i32 s{sA}, s{sW}, 24576
        s_add_u32 s{sA}, s{sA}, {W_UT + 16384}
        s_add_u32 s{sB}, s{sA}, 4096
        v_lshlrev_b32 v{TM}, 4, v{LANE}
        """)
        for s in range(8):
            so = sA if s < 4 else sB
            a(f"buffer_load_dwordx4 {vr(UF + 4 * s, 4)}, v{TM}, {sr(sWS, 4)}, s{so} offen offset:{(s & 3) * 1024} sc1")

    def hi_passes(self, fn):
        a = self.a
        fn(0)
        fn(1)
        lab = a.newlabel("hp")
        a(f"s_cmp_eq_u64 {sr(sVAL + 4, 2)}, 0\ns_cbranch_scc1 {lab}")
        fn(2)
        fn(3)
        a.label(lab)

    def rec_issue(self, S):
        a = self.a
        a(f"""
        s_lshl_b32 s{sA}, s{sP0}, 2
        s_lshl_b32 s{sB}, s{sP0}, 5
        v_mov_b32 v{S.tmp}, {OOB}
        s_add_u32 s{sC}, s{sA}, 4
        s_add_u32 s{sD}, s{sA}, 8
        v_cmp_lt_i32 {sr(sVAL, 2)}, s{sA}, v{CQ}
        s_add_u32 s{sA}, s{sA}, 12
        v_cmp_lt_i32 {sr(sVAL + 2, 2)}, s{sC}, v{CQ}
        v_cmp_lt_i32 {sr(sVAL + 4, 2)}, s{sD}, v{CQ}
        v_cmp_lt_i32 {sr(sVAL + 6, 2)}, s{sA}, v{CQ}
        s_cmp_gt_u32 s{sNP}, 1
        s_cselect_b64 {sr(sVAL + 2, 2)}, {sr(sVAL + 2, 2)}, 0
        s_cselect_b64 {sr(sVAL + 4, 2)}, {sr(sVAL + 4, 2)}, 0
        s_cselect_b64 {sr(sVAL + 6, 2)}, {sr(sVAL + 6, 2)}, 0
        """)
        lab = a.newlabel("hp")
        a(f"s_cmp_eq_u64 {sr(sVAL + 4, 2)}, 0\ns_cbranch_scc1 {lab}")
        for k in (2, 3, 0, 1):
            if k == 0:
                a.label(lab)
            a(f"""
            v_cndmask_b32 v{S.adr + k}, v{S.tmp}, v{RBA}, {sr(sVAL + 2 * k, 2)}
            buffer_load_dwordx2 {vr(S.rec[k], 2)}, v{S.adr + k}, {sr(sWS, 4)}, s{sB} offen offset:{32 * k} sc1
            """)

    def count(self, S):
        a = self.a
        a(f"v_mov_b32 v{S.tmp}, 1\ns_mov_b32 s{sA}, {CNTN}")

        def one(k):
            a(f"""
            s_mov_b64 exec, {sr(sVAL + 2 * k, 2)}
            v_bfe_u32 v{S.adr + k}, v{S.rec[k]}, 16, 6
            v_lshl_add_u32 v{S.adr + k}, v{S.adr + k}, 2, s{sA}
            ds_add_rtn_u32 v{S.rank + k}, v{S.adr + k}, v{S.tmp}
            """)
        self.hi_passes(one)
        a("s_mov_b64 exec, -1")

    def lists(self, S, generic_label):
        a = self.a
        sc = S.tmp
        done = a.newlabel("lists")
        a(f"""
        s_mov_b32 s{sA}, {CNTN}
        v_lshl_add_u32 v{sc + 3}, v{LANE}, 2, s{sA}
        v_mov_b32 v{sc + 2}, {MISC}
        ds_read_b32 v{sc}, v{sc + 3}
        ds_read_b32 v{sc + 2}, v{sc + 2}
        s_waitcnt lgkmcnt(0)
        v_mov_b32 v{sc + 1}, v{sc}
        v_readfirstlane_b32 s{sMAXC}, v{sc + 2}
        v_cmp_eq_u32 {sr(sZ, 2)}, 0, v{sc}
        v_subrev_u32 v{sc}, {DL}, v{sc}
        """)
        self.scan(sc + 1)
        a(f"""
        v_readlane_b32 s{sM}, v{sc + 1}, 63
        v_sub_u32 v{sc + 1}, v{sc + 1}, v{sc}
        s_cmp_eq_u32 s{sNP}, {NPASS}
        s_cbranch_scc0 {done}
        s_cmp_gt_u32 s{sM}, 1024
        s_cbranch_scc1 {generic_label}
        s_cmp_eq_u32 s{sMAXC}, 0
        s_cbranch_scc0 {generic_label}
        s_cmp_lt_u32 s{sM}, 64
        s_cbranch_scc0 {done}
        s_mov_b32 s{sMODE}, 1
        {done}:
        """)
        self.hi_passes(lambda k: a(f"ds_bpermute_b32 v{S.adr + k}, v{S.adr + k}, v{sc + 1}"))
        a(f"""
        s_add_u32 s{sA}, s{sM}, 1
        s_lshr_b32 s{sA}, s{sA}, 1
        s_mul_i32 s{sB}, s{sA}, s{sW}
        s_add_u32 s{sC}, s{sB}, s{sA}
        s_lshr_b32 s{sI}, s{sB}, 4
        s_lshr_b32 s{sC}, s{sC}, 4
        s_sub_u32 s{sREM}, s{sC}, s{sI}
        s_lshl_b32 s{sC}, s{sC}, 1
        s_cmp_lt_u32 s{sC}, s{sM}
        s_cselect_b32 s{sCO}, 1, 0
        s_min_u32 s{sC}, s{sC}, s{sM}
        s_lshl_b32 s{sI}, s{sI}, 1
        s_sub_u32 s{sNE}, s{sC}, s{sI}
        s_mov_b32 s{sA}, {(IL - 2 * DL) & 0xffffffff}
        s_mov_b32 s{sB}, {(EL - 4 * DL) & 0xffffffff}
        s_waitcnt lgkmcnt(0)
        """)

        def one(k):
            a(f"""
            s_mov_b64 exec, {sr(sVAL + 2 * k, 2)}
            v_add_u32 v{S.rank + k}, v{S.rank + k}, v{S.adr + k}
            v_lshl_add_u32 v{S.adr + k}, v{S.rank + k}, 1, s{sA}
            v_lshl_add_u32 v{sc + (k & 1)}, v{S.rank + k}, 2, s{sB}
            ds_write_b8_d16_hi v{S.rank + k}, v{S.rec[k]}
            ds_write_b16 v{S.adr + k}, v{S.rec[k]}
            ds_write_b32 v{sc + (k & 1)}, v{S.rec[k] + 1}
            """)
        self.hi_passes(one)
        a("s_mov_b64 exec, -1")

    def setup(self, tm):
        a = self.a
        a(f"""
        v_lshrrev_b32 v{tm}, 5, v{LANE}
        s_lshl_b32 s{sA}, s{sI}, 1
        s_add_u32 s{sA}, s{sA}, {IL}
        v_lshl_add_u32 v{IXA}, v{tm}, 1, s{sA}
        s_add_u32 s{sD}, s{sI}, {DL - 1}
        v_add_u32 v{INFO}, s{sD}, v{LANE}
        s_lshl_b32 s{sA}, s{sI}, 2
        s_add_u32 s{sA}, s{sA}, {EL}
        v_mov_b32 v{EA}, s{sA}
        ds_read_u8 v{tm}, v{INFO}
        ds_read_u8 v{tm + 2}, v{INFO} offset:1
        ds_read_u8 v{tm + 1}, v{INFO} offset:2
        """)
        for k in range(5):
            a(f"ds_read_u16 v{IX0 + k}, v{IXA} offset:{4 * k}")
        a(f"""
        s_waitcnt lgkmcnt(5)
        v_cmp_ne_u32 {sr(sMASK, 2)}, v{tm + 2}, v{tm + 1}
        v_cmp_eq_u32 vcc, v{tm + 2}, v{tm}
        v_mul_u32_u24 v{INFO}, {QS}, v{tm + 2}
        v_and_b32 v{tm + 1}, 15, v{tm + 2}
        v_lshlrev_b32 v{tm + 1}, 4, v{tm + 1}
        v_lshl_add_u32 v{tm + 1}, v{tm + 2}, 9, v{tm + 1}
        v_lshl_or_b32 v{INFO}, v{tm + 1}, 16, v{INFO}
        s_sub_u32 s{sA}, s{sNE}, 1
        s_bitcmp0_b64 {sr(sMASK, 2)}, s{sA}
        s_cselect_b32 s{sCO}, s{sCO}, 0
        s_bitset1_b64 {sr(sMASK, 2)}, s{sA}
        v_readfirstlane_b32 s{sB}, v{INFO}
        s_and_b32 s{sC}, vcc_lo, 1
        s_cmp_eq_u32 s{sI}, 0
        s_cselect_b32 s{sC}, 0, s{sC}
        s_cmp_eq_u32 s{sMODE}, 0
        s_cselect_b32 s{sC}, s{sC}, 0
        s_lshl_b32 s{sA}, s{sW}, 9
        s_add_u32 s{sA}, s{sA}, {SIDE ^ AB}
        s_lshr_b32 s{sD}, s{sB}, 16
        s_cmp_eq_u32 s{sC}, 0
        s_cselect_b32 s{sAG0}, s{sD}, s{sA}
        s_and_b32 s{sQ0}, s{sB}, 0xffff
        """)

    def slot_consts(self):
        self.a(f"""
        s_lshl_b32 s{sA}, s{sW}, 12
        s_add_u32 s{sSLOT}, s{sA}, {RING}
        s_add_u32 s{sSLOT + 1}, s{sA}, {RING + 1024}
        s_add_u32 s{sSLOT + 2}, s{sA}, {RING + 2048}
        s_add_u32 s{sSLOT + 3}, s{sA}, {RING + 3072}
        v_and_b32 v{IA + 1}, 31, v{LANE}
        v_lshlrev_b32 v{IA + 1}, 4, v{IA + 1}
        """)

    def lane_consts(self):
        self.a(f"""
        v_lshl_add_u32 v{RG}, v{LANE}, 1, s{sSLOT}
        v_lshlrev_b32 v{L4}, 2, v{LANE}
        v_lshlrev_b32 v{L8}, 3, v{LANE}
        v_or_b32 v{L8}, {AB}, v{L8}
        """)

    def side_fill(self, tmp, adr):
        self.a(f"""
        v_mov_b64 {vr(tmp, 2)}, -1
        s_lshl_b32 s{sA}, s{sW}, 9
        s_add_u32 s{sA}, s{sA}, {SIDE}
        v_lshl_add_u32 v{adr}, v{LANE}, 3, s{sA}
        ds_write_b64 v{adr}, {vr(tmp, 2)}
        """)

    def binning(self):
        a = self.a
        DV, SV, EP, AD, RK, RV, H0, B0, SQ, t4, t5, t6, t7 = 24, 26, 28, 30, 32, 34, 40, 44, 48, 52, 53, 54, 56
        a(f"""
        s_mov_b32 s{sC}, -40
        s_mov_b32 s{sD}, {HIST}
        v_mov_b32 v{t4}, 1
        v_mov_b32 v{t7}, {S1C}
        v_lshlrev_b32 v{t5}, 4, v{LANE}
        v_add_u32 v{t6}, {HIST}, v{t5}
        s_waitcnt vmcnt(1)
        """)
        self.stamp("edges")
        R2 = range(2)
        for i in R2:
            a(f"v_mul_u32_u24 v{AD + i}, 52429, v{DV + i}")
        for i in R2:
            a(f"v_lshrrev_b32 v{AD + i}, 21, v{AD + i}")
        for i in R2:
            a(f"v_min_u32 v{RK + i}, 255, v{AD + i}")
        for i in R2:
            a(f"v_lshl_add_u32 v{AD + i}, v{RK + i}, 2, s{sD}")
        for i in R2:
            a(f"v_mad_i32_i24 v{DV + i}, v{RK + i}, s{sC}, v{DV + i}")
            a(f"ds_add_rtn_u32 v{RK + i}, v{AD + i}, v{t4}")
        a(f"s_mov_b64 exec, 1\nds_add_u32 v{t7}, v{t4}\ns_mov_b64 exec, -1")
        for i in R2:
            a(f"v_lshl_or_b32 v{RV + 2 * i}, v{DV + i}, 16, v{SV + i}")
        a(f"v_lshlrev_b32 v{RV + 1}, 16, v{EP}\nv_and_b32 v{RV + 3}, 0xffff0000, v{EP}")
        self.spin(S1C, 5, t7, f"ds_read_b128 {vr(H0, 4)}, v{t6}")
        a(f"""
        v_add_u32 v{B0 + 1}, v{H0}, v{H0 + 1}
        v_add_u32 v{SQ}, v{H0 + 2}, v{H0 + 3}
        v_add_u32 v{SQ}, v{SQ}, v{B0 + 1}
        v_mov_b32 v{SQ + 1}, v{SQ}
        """)
        self.scan(SQ + 1)
        a(f"""
        v_sub_u32 v{B0}, v{SQ + 1}, v{SQ}
        v_add_u32 v{B0 + 2}, v{B0}, v{B0 + 1}
        v_add_u32 v{B0 + 1}, v{B0}, v{H0}
        v_add_u32 v{B0 + 3}, v{B0 + 2}, v{H0 + 2}
        ds_write_b128 v{t6}, {vr(B0, 4)} offset:{BASE - HIST}
        ds_read_b32 v{DV}, v{AD} offset:{BASE - HIST}
        ds_read_b32 v{DV + 1}, v{AD + 1} offset:{BASE - HIST}
        s_mov_b32 s{sD}, {SORT}
        v_mov_b32 v{t7}, {S2C}
        v_lshlrev_b32 v{t5}, 4, v{TID}
        v_add_u32 v{t6}, {SORT}, v{t5}
        s_mul_i32 s{sB}, s{sT}, {EC * 8}
        s_add_u32 s{sB}, s{sB}, {W_RECS}
        s_waitcnt lgkmcnt(0)
        v_add_u32 v{DV}, v{DV}, v{RK}
        v_add_u32 v{DV + 1}, v{DV + 1}, v{RK + 1}
        v_lshl_add_u32 v{DV}, v{DV}, 3, s{sD}
        v_lshl_add_u32 v{DV + 1}, v{DV + 1}, 3, s{sD}
        ds_write_b64 v{DV}, {vr(RV, 2)}
        ds_write_b64 v{DV + 1}, {vr(RV + 2, 2)}
        s_mov_b64 exec, 1
        ds_add_u32 v{t7}, v{t4}
        s_mov_b64 exec, -1
        """)
        self.spin(S2C, 5, t7, f"ds_read_b128 {vr(SQ, 4)}, v{t6}")
        a(f"buffer_store_dwordx4 {vr(SQ, 4)}, v{t5}, {sr(sWS, 4)}, s{sB} offen sc1")
        self.stamp("binned")

    def build(self):
        a = self.a
        t0, t1, t2, t3, t4, t5, t6, t7 = range(58, 66)
        PQ = 24
        UQ = 108
        u0, u1, u2, u3 = 57, 58, 59, 60

        if "pad0" in self.opts:
            a("s_memrealtime s[96:97]")
        a(f"""
        s_cmp_ge_u32 s{sT}, {NT}
        s_cbranch_scc1 L_end
        s_load_dwordx16 s[40:55], s[0:1], 0
        s_load_dwordx2 s[56:57], s[0:1], 64
        v_and_b32 v{LANE}, 63, v{TID}
        """)
        if "nocodepf" not in self.opts:
            a(f"""
            s_getpc_b64 s[4:5]
            L_pc:
            """)
            if "fullpf" in self.opts:
                a(f"""
                v_lshlrev_b32 v{t0}, 4, v{TID}
                v_min_u32 v{t0}, L_code_end-L_pc-16, v{t0}
                global_load_dwordx4 {vr(AC2 + 8, 4)}, v{t0}, s[4:5]
                """)
            else:
                a(f"""
                s_lshr_b32 s6, s{sT}, 3
                s_and_b32 s6, s6, 15
                s_lshl_b32 s6, s6, 10
                v_lshl_add_u32 v{t0}, v{TID}, 4, s6
                v_min_u32 v{t0}, L_code_end-L_pc-16, v{t0}
                v_cmp_gt_u32 vcc, 64, v{TID}
                s_cbranch_vccz L_nopf
                global_load_dwordx4 {vr(AC2 + 8, 4)}, v{t0}, s[4:5]
                L_nopf:
                """)
        a(f"""
        v_lshrrev_b32 v{t0}, 6, v{TID}
        v_mov_b32 v{t6}, 0
        v_lshlrev_b32 v{t7}, 2, v{TID}
        v_readfirstlane_b32 s{sW}, v{t0}
        v_add_u32 v{t7}, {HIST}, v{t7}
        s_cmp_lt_u32 s{sW}, 4
        s_cbranch_scc1 L_z1
        s_cmp_gt_u32 s{sW}, 5
        s_cbranch_scc1 L_z2
        v_add_u32 v{t7}, {CNTN - HIST - 1024}, v{t7}
        L_z1:
        ds_write_b32 v{t7}, v{t6}
        L_z2:
        v_lshrrev_b32 v{t3}, 5, v{TID}
        v_and_b32 v{t4}, 31, v{TID}
        v_and_b32 v{t5}, 15, v{t3}
        v_xor_b32 v{t6}, v{t5}, v{t4}
        v_lshlrev_b32 v{t6}, 4, v{t6}
        s_mul_i32 s{sB}, s{sT}, {T * 512}
        v_lshl_add_u32 v{t6}, v{t3}, 9, v{t6}
        v_add_u32 v{GO}, s{sB}, v{t6}
        v_and_b32 v{t6}, 3, v{t5}
        v_lshrrev_b32 v{t7}, 1, v{t5}
        v_and_b32 v{t7}, 4, v{t7}
        v_or_b32 v{t6}, v{t6}, v{t7}
        v_lshlrev_b32 v{t6}, 1, v{t6}
        v_xor_b32 v{t6}, v{t6}, v{t4}
        v_lshlrev_b32 v{t6}, 4, v{t6}
        v_lshl_add_u32 v{WOFF}, v{t5}, 9, v{t6}
        s_and_b32 s{sW1K}, s{sW}, 7
        s_lshl_b32 s{sW1K}, s{sW1K}, 10
        """)
        if self.stamps:
            a(f"v_mov_b32 v{STAMPV}, 0")
            for r in self.STAMP_REGS[:5]:
                a(f"s_mov_b32 s{r}, 0")
        a("s_waitcnt lgkmcnt(0)")

        def srd(s, p, nbytes):
            a(f"""
            s_mov_b32 s{s}, s{p}
            s_mov_b32 s{s + 1}, s{p + 1}
            s_mov_b32 s{s + 2}, {nbytes}
            s_mov_b32 s{s + 3}, 0x20000
            """)

        srd(sDST, 46, E * 4)
        srd(sSRC, 44, E * 4)
        srd(sEA, 42, E * 2)
        srd(sX, 40, N * 512)
        srd(sWM, 48, 513 * 512)
        srd(sWU, 50, 512 * 512)
        srd(sWS, 56, WS_SIZE)
        a("s_barrier")
        if self.opt("pad", 0) and "pad0" not in self.opts:
            a("s_memrealtime s[96:97]")
        self.stamp("start")
        EPV = W3
        a(f"""
        v_mov_b32 v{t0}, {W_EPOCH}
        s_cmp_ge_u32 s{sW}, 8
        s_cbranch_scc1 L_role_l
        s_cmp_ge_u32 s{sW}, 5
        s_cbranch_scc1 L_role_u
        s_setprio 3
        v_lshlrev_b32 v{t6}, 3, v{TID}
        v_lshlrev_b32 v{t7}, 2, v{TID}
        s_mul_i32 s{sA}, s{sT}, {EC * 4}
        s_mul_i32 s{sB}, s{sT}, {EC * 2}
        buffer_load_dwordx2 v[24:25], v{t6}, {sr(sDST, 4)}, s{sA} offen
        buffer_load_dwordx2 v[26:27], v{t6}, {sr(sSRC, 4)}, s{sA} offen
        buffer_load_dword v28, v{t7}, {sr(sEA, 4)}, s{sB} offen
        buffer_load_dwordx2 {vr(EPV, 2)}, v{t0}, {sr(sWS, 4)}, 0 offen
        s_sub_u32 s{sA}, s{sW}, 1
        s_and_b32 s{sA}, s{sA}, 7
        s_mul_i32 s{sD}, s{sA}, {NT}
        s_add_u32 s{sD}, s{sD}, s{sT}
        s_lshl_b32 s{sA}, s{sA}, 10
        s_add_u32 m0, s{sA}, {SLOT[3]}
        s_and_b32 s{sA}, s{sD}, 7
        s_bfe_u32 s{sB}, s{sD}, 0x40003
        s_lshr_b32 s{sC}, s{sD}, 7
        s_mul_i32 s{sUO}, s{sB}, 24
        s_lshl_b32 s{sUG}, s{sC}, 3
        s_add_u32 s{sUO}, s{sUO}, s{sUG}
        s_add_u32 s{sUO}, s{sUO}, s{sA}
        s_lshl_b32 s{sUG}, s{sUO}, 5
        s_add_u32 s{sUG}, s{sUG}, {W_UTAG}
        s_lshl_b32 s{sUO}, s{sUO}, 10
        s_add_u32 s{sUO}, s{sUO}, {W_UT}
        s_lshl_b32 s{sA}, s{sA}, 5
        s_lshl_b32 s{sB}, s{sB}, 5
        s_cmp_lt_u32 s{sD}, 384
        s_cselect_b32 s{sB}, s{sB}, {OOB}
        s_cselect_b32 s{sUO}, s{sUO}, {OOB}
        s_cselect_b32 s{sUG}, s{sUG}, {OOB}
        v_lshrrev_b32 v{t6}, 1, v{LANE}
        v_add_u32 v{t6}, s{sA}, v{t6}
        v_and_b32 v{t5}, 1, v{LANE}
        v_lshlrev_b32 v{t5}, 4, v{t5}
        s_cmp_eq_u32 s{sC}, 0
        s_cbranch_scc0 L_pc_u
        v_add_u32 v{t6}, 256, v{t6}
        v_lshl_add_u32 v{t6}, v{t6}, 9, v{t5}
        buffer_load_dwordx4 v{t6}, {sr(sWM, 4)}, s{sB} offen lds
        s_branch L_pc_done
        L_pc_u:
        s_cmp_eq_u32 s{sC}, 1
        s_cbranch_scc1 L_pc_u1
        v_and_b32 v{t7}, 3, v{t6}
        v_lshrrev_b32 v{t6}, 2, v{t6}
        v_lshl_add_u32 v{t6}, v{t7}, 6, v{t6}
        v_add_u32 v{t6}, 256, v{t6}
        L_pc_u1:
        v_lshl_add_u32 v{t6}, v{t6}, 9, v{t5}
        buffer_load_dwordx4 v{t6}, {sr(sWU, 4)}, s{sB} offen lds
        L_pc_done:
        s_branch L_role_done
        L_role_u:
        buffer_load_dwordx2 {vr(EPV, 2)}, v{t0}, {sr(sWS, 4)}, 0 offen
        v_subrev_u32 v{t3}, 10, v{t3}
        s_mul_i32 s{sB}, s{sT}, {T * 512}
        s_lshl_b32 s{sA}, s{sW}, 10
        """)
        for i in range(7):
            if i == 6:
                a(f"""
                s_cmp_eq_u32 s{sW}, 7
                s_cselect_b32 s{sC}, 2, 0
                v_subrev_u32 v{t3}, s{sC}, v{t3}
                s_lshl_b32 s{sC}, s{sC}, 9
                s_sub_u32 s{sA}, s{sA}, s{sC}
                """)
            a(f"""
            v_and_b32 v{t6}, 15, v{t3}
            v_xor_b32 v{t6}, v{t6}, v{t4}
            v_lshlrev_b32 v{t6}, 4, v{t6}
            s_add_u32 m0, s{sA}, {XB - 5120 + 3072 * i}
            v_lshl_add_u32 v{t6}, v{t3}, 9, v{t6}
            v_add_u32 v{t3}, 6, v{t3}
            buffer_load_dwordx4 v{t6}, {sr(sX, 4)}, s{sB} offen lds
            """)
        a(f"""
        s_branch L_role_done
        L_role_l:
        buffer_load_dwordx2 {vr(EPV, 2)}, v{t0}, {sr(sWS, 4)}, 0 offen
        ; touch 1/32 of W1 so that each L2 holds it after one memory latency
        s_lshr_b32 s{sA}, s{sT}, 3
        s_lshl_b32 s{sA}, s{sA}, 13
        s_add_u32 s{sA}, s{sA}, s{sW1K}
        s_lshr_b32 s{sC}, s{sA}, 1
        v_lshlrev_b32 v{t7}, 3, v{LANE}
        buffer_load_dwordx2 {vr(AC2, 2)}, v{t7}, {sr(sWM, 4)}, s{sC} offen
        s_cmp_eq_u32 s{sW}, 15
        s_cbranch_scc0 L_role_done
        s_mov_b32 m0, {W3L}
        v_lshlrev_b32 v{t7}, 4, v{LANE}
        s_mov_b32 s{sB}, {512 * 512}
        buffer_load_dwordx4 v{t7}, {sr(sWM, 4)}, s{sB} offen lds
        L_role_done:
        """)
        UA = W3 - 9 - 5
        srd(sOUT, 52, N * 512)
        a(f"""
        s_add_u32 s{sP}, s56, {W_P}
        s_addc_u32 s{sP + 1}, s57, 0
        s_or_b32 s{sP + 1}, s{sP + 1}, {512 << 16}
        s_mov_b32 s{sP + 2}, {N}
        s_mov_b32 s{sP + 3}, 0x20000
        s_mov_b32 s{sNL2E}, {NLOG2E}
        s_mov_b32 s{sNL2E + 1}, {NLOG2E}
        s_mov_b32 s{sNLN2}, {NLN2}
        s_mov_b32 s{sNLN2 + 1}, {NLN2}
        s_lshl_b32 s{sWK}, s{sW}, 10
        s_lshr_b32 s{sHI}, s{sW}, 3
        s_lshl_b32 s{sHI}, s{sHI}, 13
        s_mov_b32 s{sGEN}, 0
        v_and_b32 v{t0}, 15, v{LANE}
        v_lshrrev_b32 v{t1}, 4, v{LANE}
        v_bfe_u32 v{t2}, v{LANE}, 2, 2
        v_and_b32 v{t3}, 3, v{LANE}
        s_lshl_b32 s{sB}, s{sW}, 1
        v_and_b32 v{t4}, 1, v{t1}
        v_lshl_or_b32 v{t4}, v{t4}, 2, v{t2}
        v_lshlrev_b32 v{t4}, 1, v{t4}
        v_lshrrev_b32 v{t5}, 1, v{t3}
        v_add_u32 v{t5}, s{sB}, v{t5}
        v_xor_b32 v{t4}, v{t4}, v{t5}
        v_lshlrev_b32 v{t4}, 4, v{t4}
        v_and_b32 v{t5}, 1, v{t3}
        v_lshl_add_u32 v{t4}, v{t5}, 3, v{t4}
        v_lshl_add_u32 v{t5}, v{t1}, 3, v{t2}
        v_lshl_add_u32 v{TR0}, v{t5}, 9, v{t4}
        v_add_u32 v{TR1}, 65536, v{TR0}
        v_lshlrev_b32 v{t5}, 5, v{t5}
        v_lshl_add_u32 v{UA + 9}, v{t3}, 3, v{t5}
        v_lshlrev_b32 v{t5}, 9, v{t0}
        v_add_u32 v{t5}, {XB}, v{t5}
        """)
        for k in range(4):
            a(f"""
            v_add_u32 v{t4}, {4 * k}, v{t1}
            v_xor_b32 v{t4}, v{t4}, v{t0}
            v_lshl_add_u32 v{XA + k}, v{t4}, 4, v{t5}
            """)
        a(f"""
        v_lshrrev_b32 v{t4}, 1, v{t1}
        v_add_u32 v{t4}, s{sB}, v{t4}
        v_xor_b32 v{t4}, v{t4}, v{t0}
        v_lshlrev_b32 v{t4}, 4, v{t4}
        v_and_b32 v{t6}, 1, v{t1}
        v_lshl_add_u32 v{t4}, v{t6}, 3, v{t4}
        v_lshl_add_u32 v{t4}, v{t0}, 9, v{t4}
        v_add_u32 v{STG}, {PS}, v{t4}
        v_lshlrev_b32 v{STR}, 4, v{TID}
        v_add_u32 v{STR}, {PS}, v{STR}
        v_add_u32 v{GO2}, 16384, v{GO}
        s_cmp_lt_u32 s{sW}, 4
        s_cbranch_scc1 L_go2
        v_mov_b32 v{GO2}, {OOB}
        L_go2:
        s_cmp_lt_u32 s{sW}, 5
        s_cbranch_scc0 L_nobin
        """)
        self.binning()
        a(f"""
        s_setprio 0
        s_sub_u32 s{sA}, s{sW}, 1
        s_and_b32 s{sA}, s{sA}, 7
        s_lshl_b32 s{sA}, s{sA}, 10
        s_add_u32 s{sA}, s{sA}, {SLOT[3]}
        v_add_u32 v{UA + 9}, s{sA}, v{UA + 9}
        v_lshlrev_b32 v{W3 + 2}, 4, v{LANE}
        s_waitcnt vmcnt(1)
        ds_read_b64_tr_b16 {vr(AC2 + 4, 2)}, v{UA + 9}
        ds_read_b64_tr_b16 {vr(AC2 + 6, 2)}, v{UA + 9} offset:128
        s_waitcnt lgkmcnt(0)
        buffer_store_dwordx4 {vr(AC2 + 4, 4)}, v{W3 + 2}, {sr(sWS, 4)}, s{sUO} offen sc1
        s_branch L_bin_done
        L_nobin:
        s_cmp_ge_u32 s{sW}, 8
        s_cbranch_scc1 L_bin_ld
        v_mov_b32 v{W3 + 2}, {XCNT}
        v_mov_b32 v{W3 + 3}, 1
        s_mov_b64 exec, 1
        s_waitcnt vmcnt(4)
        ds_add_u32 v{W3 + 2}, v{W3 + 3}
        s_mov_b64 exec, -1
        s_branch L_bin_done
        L_bin_ld:
        """)
        self.dma_body(0, 0)
        a(f"""
        s_waitcnt vmcnt(5)
        L_bin_done:
        v_readfirstlane_b32 s{sTAG}, v{EPV}
        v_readfirstlane_b32 s{sTAG + 1}, v{EPV + 1}
        s_add_u32 s{sTAG}, s{sTAG}, 1
        s_addc_u32 s{sTAG + 1}, s{sTAG + 1}, 0
        s_lshl_b32 s{sTLO}, s{sTAG + 1}, 20
        """)
        self.vm("N", "bin")

        def offs_prep():
            a(f"""
            v_lshlrev_b32 v{t0}, 3, v{LANE}
            v_add_u32 v{t0}, {HIST}, v{t0}
            ds_read_b64 {vr(66, 2)}, v{t0}
            ds_read_b64 {vr(68, 2)}, v{t0} offset:{BASE - HIST}
            ds_read_b64 {vr(70, 2)}, v{t0} offset:512
            ds_read_b64 {vr(72, 2)}, v{t0} offset:{BASE - HIST + 512}
            s_waitcnt lgkmcnt(0)
            """)
            for i in range(4):
                h, b = 66 + 4 * (i >> 1) + (i & 1), 68 + 4 * (i >> 1) + (i & 1)
                a(f"""
                v_lshl_or_b32 v{ACC + 2 * i}, v{h}, 10, v{b}
                v_mov_b32 v{ACC + 2 * i + 1}, s{sTAG}
                v_or_b32 v{ACC + 2 * i}, s{sTLO}, v{ACC + 2 * i}
                """)
        a(f"""
        s_cmp_lt_u32 s{sW}, 5
        s_cbranch_scc0 L_nooffs
        v_mov_b32 v{t1}, {BACK}
        v_mov_b32 v{t2}, 1
        """)
        self.wave0(offs_prep)
        a(f"""
        s_mov_b64 exec, 1
        s_waitcnt vmcnt(0)
        ds_add_u32 v{t1}, v{t2}
        s_mov_b64 exec, -1
        s_cmp_eq_u32 s{sW}, 0
        s_cbranch_scc1 L_w0offs
        """)
        self.tag_store(sUG, AC2 + 8)
        a("s_branch L_nooffs\nL_w0offs:")
        self.spin(BACK, 5, t1)
        a(f"""
        v_lshlrev_b32 v{t1}, 4, v{LANE}
        s_lshl_b32 s{sB}, s{sT}, 11
        s_add_u32 s{sB}, s{sB}, {W_OFFS}
        buffer_store_dwordx4 {vr(ACC, 4)}, v{t1}, {sr(sWS, 4)}, s{sB} offen sc1
        buffer_store_dwordx4 {vr(ACC + 4, 4)}, v{t1}, {sr(sWS, 4)}, s{sB} offen offset:1024 sc1
        L_nooffs:
        """)
        self.stamp("opub")
        self.xpreload(UA + 9)
        self.stamp("xpre")

        R0 = 116
        fbuf = [56, 60, 64, 68, 72, 76, 56, 60] + [24 + 4 * i for i in range(8)]
        XBUF = (80, 92)
        OV, o0, o1, o2, o3 = 20, 22, 23, 16, 17

        def frag(i, track=True):
            a(f"""
            s_add_u32 s{sB}, s{sUB}, {1024 * i}
            buffer_load_dwordx4 {vr(fbuf[i], 4)}, v{FO}, {sr(sWS, 4)}, s{sB} offen sc1
            """)
            if track:
                self.vm("LN", f"f{i}")

        def x3(i):
            s_ = i & 7
            for rb in range(3):
                a(f"ds_read_b128 {vr(XBUF[i & 1] + 4 * rb, 4)}, v{XA + (s_ & 3)} offset:{rb * 8192 + (s_ >> 2) * 256}")
                self.lq.append(f"x{i}")

        def consume(i):
            acc = AC2 if i < 8 else ACC
            self.vmwait({f"f{i}"})
            if f"x{i}" in self.lq:
                self.lwait(f"x{i}")
            for rb in range(3):
                cin = "0" if (i & 7) == 0 else vr(acc + 4 * rb, 4)
                a(f"v_mfma_f32_16x16x32_bf16 {vr(acc + 4 * rb, 4)}, {vr(fbuf[i], 4)}, {vr(XBUF[i & 1] + 4 * rb, 4)}, {cin}")
            if i + 2 < 16:
                x3(i + 2)

        def utag_issue():
            a(f"buffer_load_dwordx2 {vr(R0, 2)}, v{R0 + 2}, {sr(sWS, 4)}, s{sC} offen sc1")

        def utag_check():
            a(f"""
            v_cmp_ne_u64 vcc, {sr(sTAG, 2)}, {vr(R0, 2)}
            s_nop 1
            s_and_b32 s{sA}, vcc_lo, 0xffffff
            """)

        def offs_issue():
            a(f"buffer_load_dwordx2 {vr(OV, 2)}, v{o0}, {sr(sWS, 4)}, s{sC} offen sc1")

        def touch():
            if "touch" in self.opts:
                a(f"""
                s_lshr_b32 s{sB}, s{sT}, 3
                s_mul_i32 s{sB}, s{sB}, 768
                s_add_u32 s{sB}, s{sB}, s{sUB}
                v_lshlrev_b32 v{R0}, 7, v{LANE}
                s_mov_b64 exec, 63
                buffer_load_dword v{R0 + 3}, v{R0}, {sr(sWS, 4)}, s{sB} offen sc1
                s_mov_b64 exec, -1
                """)

        nearly = self.opt("nearly", 0)

        def early(lst):
            lst = [i for i in lst if i < nearly]
            if not lst:
                return
            lab = a.newlabel("early")
            a(f"s_cmp_eq_u32 s{sE}, 0\ns_cbranch_scc1 {lab}")
            for i in lst:
                frag(i, False)
            a.label(lab)

        def offs_check():
            a(f"""
            s_mov_b32 s{sD}, 0
            s_mov_b32 s{sB}, 0x100000
            L_offs_chk:
            v_xor_b32 v{OV}, s{sTLO}, v{OV}
            v_cmp_ne_u32 vcc, s{sTAG}, v{OV + 1}
            v_cmp_le_u32 s[40:41], s{sB}, v{OV}
            s_nop 1
            s_or_b64 vcc, vcc, s[40:41]
            s_and_b64 vcc, vcc, {sr(sVAL, 2)}
            """)

        def parse():
            a(f"""
            v_cndmask_b32 v{OV}, 0, v{OV}, {sr(sVAL, 2)}
            v_and_b32 v{o1}, 3, v{TID}
            v_mul_u32_u24 v{o0}, {EC * 8}, v{RBA}
            v_and_b32 v{o2}, 0x3ff, v{OV}
            v_bfe_u32 v{o3}, v{OV}, 10, 10
            v_add_u32 v{o2}, v{o2}, v{o1}
            v_lshl_add_u32 v{o0}, v{o2}, 3, v{o0}
            v_add_u32 v{RBA}, {W_RECS}, v{o0}
            v_sub_u32 v{CQ}, v{o3}, v{o1}
            v_cmp_lt_u32 vcc, {4 * NPASS}, v{o3}
            """)
            lab = a.newlabel("nomax")
            a(f"""
            s_cbranch_vccz {lab}
            v_mov_b32 v{o2}, {MISC}
            s_mov_b64 exec, vcc
            ds_max_u32 v{o2}, v{o3}
            s_mov_b64 exec, -1
            s_waitcnt lgkmcnt(0)
            {lab}:
            """)
            self.rec_issue(SCRP)

        for k in range(4):
            self.vmwait({f"c{k}"})
            self.barrier(f"B{k}", lgkm=False)
            if k == 0 and "exitB0" in self.opts:
                a("s_branch L_diag_end")
            self.trreads(k)
            btw = {0: (lambda sp: self.dma_all(3, 3, sp))}.get(k)
            self.mfmas(AC2, k, btw)
            if k < 3:
                self.xreads(k + 1)
            if k == self.opt("kis", 2):
                a(f"""
                v_lshlrev_b32 v{FO}, 4, v{LANE}
                v_lshlrev_b32 v{R0 + 2}, 5, v{LANE}
                v_mov_b32 v{R0 + 3}, {OOB}
                v_cmp_gt_u32 vcc, 24, v{LANE}
                s_mul_i32 s{sUB}, s{sW}, 24576
                s_add_u32 s{sUB}, s{sUB}, {W_UT}
                s_mul_i32 s{sC}, s{sW}, 768
                s_add_u32 s{sC}, s{sC}, {W_UTAG}
                v_cndmask_b32 v{R0 + 2}, v{R0 + 3}, v{R0 + 2}, vcc
                v_lshrrev_b32 v{RBA}, 2, v{TID}
                v_lshlrev_b32 v{o0}, 11, v{RBA}
                s_movk_i32 s{sA}, {NT}
                v_cmp_gt_u32 {sr(sVAL, 2)}, s{sA}, v{RBA}
                s_mov_b32 s{sP0}, 0
                s_mov_b32 s{sNP}, {NPASS}
                s_mov_b32 s{sMODE}, 0
                v_cndmask_b32 v{o0}, v{R0 + 3}, v{o0}, {sr(sVAL, 2)}
                """)
                utag_issue()
                a(f"""
                s_lshl_b32 s{sD}, s{sT}, 3
                s_add_u32 s{sD}, s{sD}, {W_OFFS}
                buffer_load_dwordx2 {vr(OV, 2)}, v{o0}, {sr(sWS, 4)}, s{sD} offen sc1
                """)
                self.vm("LN", "utag", 2)
        for rb in range(3):
            for h in range(2):
                a(f"v_pk_mul_f32 {vr(AC2 + 4 * rb + 2 * h, 2)}, {vr(AC2 + 4 * rb + 2 * h, 2)}, {sr(sNL2E, 2)} op_sel_hi:[1,0]")
            a(f"v_cvt_pk_bf16_f32 v{AC2 + 4 * rb}, v{AC2 + 4 * rb}, v{AC2 + 4 * rb + 1}")
            a(f"v_cvt_pk_bf16_f32 v{AC2 + 4 * rb + 1}, v{AC2 + 4 * rb + 2}, v{AC2 + 4 * rb + 3}")
            a(f"ds_write_b64 v{STG}, {vr(AC2 + 4 * rb, 2)} offset:{rb * 8192}")
        self.vmwait({"utag"})
        self.stamp("chk")
        utag_check()
        a(f"""
        s_mov_b32 s{sE}, 0
        s_cbranch_scc1 L_late
        """)
        touch()
        for i in range(nearly):
            frag(i, False)
        a(f"""
        s_mov_b32 s{sE}, 2
        v_xor_b32 v{o1}, s{sTLO}, v{OV}
        v_cmp_ne_u32 vcc, s{sTAG}, v{OV + 1}
        s_mov_b32 s{sB}, 0x100000
        v_cmp_le_u32 s[40:41], s{sB}, v{o1}
        s_nop 1
        s_or_b64 vcc, vcc, s[40:41]
        s_and_b64 vcc, vcc, {sr(sVAL, 2)}
        s_cbranch_scc1 L_late
        v_mov_b32 v{OV}, v{o1}
        """)
        parse()
        a(f"""
        s_mov_b32 s{sE}, 1
        s_branch L_intime
        L_late:
        s_lshl_b32 s{sD}, s{sT}, 3
        s_add_u32 s{sD}, s{sD}, {W_OFFS}
        buffer_load_dwordx2 {vr(OV, 2)}, v{o0}, {sr(sWS, 4)}, s{sD} offen sc1
        L_intime:
        s_setprio 3
        """)
        self.barrier("PS")
        a(f"""
        ds_read_b128 {vr(AC2, 4)}, v{STR}
        ds_read_b128 {vr(AC2 + 4, 4)}, v{STR} offset:16384
        """)
        x3(0)
        x3(1)
        a(f"""
        s_mov_b32 s{sB}, {W_P}
        s_waitcnt lgkmcnt(7)
        buffer_store_dwordx4 {vr(AC2, 4)}, v{GO}, {sr(sWS, 4)}, s{sB} offen sc1
        s_waitcnt lgkmcnt(6)
        buffer_store_dwordx4 {vr(AC2 + 4, 4)}, v{GO2}, {sr(sWS, 4)}, s{sB} offen sc1
        s_setprio 2
        """)
        self.stamp("pst")
        self.stampval("E", sE)
        a(f"""
        s_cmp_eq_u32 s{sE}, 1
        s_cbranch_scc1 L_tags_ok
        s_cmp_eq_u32 s{sE}, 2
        s_cbranch_scc1 L_tags_2
        s_mov_b32 s{sD}, 0
        L_tags:
        """)
        utag_issue()
        a(f"s_add_u32 s{sD}, s{sD}, 1\ns_cmp_gt_u32 s{sD}, {POLL_LIMIT}\ns_cbranch_scc1 L_tags_go\ns_waitcnt vmcnt(0)")
        utag_check()
        a("s_cbranch_scc1 L_tags\nL_tags_go:")
        touch()
        for i in range(nearly):
            frag(i, False)
        a(f"s_waitcnt vmcnt(0)\nL_tags_2:\ns_lshl_b32 s{sC}, s{sT}, 3\ns_add_u32 s{sC}, s{sC}, {W_OFFS}\ns_waitcnt vmcnt(2)")
        offs_check()
        a(f"""
        s_cbranch_scc0 L_offs_ok
        s_add_u32 s{sD}, s{sD}, 1
        s_cmp_gt_u32 s{sD}, {POLL_LIMIT}
        s_cbranch_scc1 L_offs_ok
        """)
        offs_issue()
        a("s_waitcnt vmcnt(0)\ns_branch L_offs_chk\nL_offs_ok:")
        parse()
        a("s_waitcnt vmcnt(0)")
        a.label("L_tags_ok")
        self.stamp("tok")
        self.q = {r: [f"f{i}" for i in range(nearly)] + ["rec", "rec"] + ["p", "p"] for r in "LN"}
        nxt = nearly
        for i in range(self.opt("npost", 2)):
            frag(nxt)
            nxt += 1
        done = 0

        def upto(n):
            nonlocal done
            while done < n:
                consume(done)
                done += 1

        win = self.opt("win", 4)

        def step(limit=16):
            nonlocal nxt
            while nxt < min(limit, done + win) and (nxt not in (6, 7) or done > nxt - 6):
                if nxt == 8:
                    a("s_setprio 0")
                frag(nxt)
                nxt += 1

        self.vmwait({"rec"})
        self.stamp("rec")
        self.count(SCRX)
        self.side_fill(ACC + 10, 121)
        upto(min(nearly, 1))
        self.vmwait({"p"})
        self.stamp("ack")
        self.barrier("C1")
        self.lq = []

        def fb():
            a(f"s_lshl_b32 s{sB}, s{sT}, 5\ns_add_u32 s{sB}, s{sB}, {W_FB}")
            self.tag_store(sB, ACC + 8)
        self.wave0(fb)
        step()
        upto(1)
        step()
        self.lists(SCRX, "L_gen1")
        a.label("L_gen1_back")
        upto(2)
        step()
        a(f"s_mov_b32 s{sB}, {W3L}\nv_lshl_add_u32 v{ACC + 3}, v{LANE}, 1, s{sB}\ns_waitcnt lgkmcnt(0)")
        self.lq = []
        for r in range(4):
            a(f"ds_read_u16_d16_hi v{W3 + r}, v{ACC + 3} offset:{128 * r}")
            self.lq.append("w3")
        self.barrier("CL", lgkm=False)
        while done < 8:
            upto(done + 1)
            step()
            if done == 4:
                self.setup(ACC + 4)
                self.lq += ["ix"] * 5
        a(f"""
        v_and_b32 v122, 15, v{LANE}
        v_cmp_gt_u32 {sr(sEX, 2)}, 8, v122
        v_mul_u32_u24 v121, {QS}, v122
        v_and_b32 v122, 48, v{LANE}
        s_lshl_b32 s{sB}, s{sW}, 6
        v_add3_u32 v121, v121, v122, s{sB}
        """)
        nr = self.opt("nr", 0)
        if nr:
            upto(9)
            step()
        for rb in range(3):
            for h in range(2):
                a(f"v_pk_mul_f32 {vr(AC2 + 4 * rb + 2 * h, 2)}, {vr(AC2 + 4 * rb + 2 * h, 2)}, {sr(sNL2E, 2)} op_sel_hi:[1,0]")
            if rb == 2:
                a(f"s_mov_b64 exec, {sr(sEX, 2)}")
            a(f"ds_write_b128 v121, {vr(AC2 + 4 * rb, 4)} offset:{QB + rb * 16 * QS}")
            self.lq.append("q")
        a("s_mov_b64 exec, -1")
        self.stamp("q")
        while done < 8 + nr:
            upto(done + 1)
            step()
        while nxt < 16:
            frag(nxt)
            nxt += 1
        self.slot_consts()
        a(f"""
        s_cmp_eq_u32 s{sGEN}, 0
        s_cselect_b32 s{sREM}, s{sREM}, 0
        s_mov_b32 s{sR}, 0
        """)
        self.stamp("pre")

        def pw():
            self.poll_issue()
            self.poll_wait()
            a(f"s_cmp_eq_u32 s{sT}, 0\ns_cbranch_scc0 L_noep\ns_mov_b32 s{sB}, {W_EPOCH}")
            self.tag_store(sB, POLLB)
            a.label("L_noep")
        self.wave0(pw)
        self.barrier("C2")
        self.lq = []
        a.label("L_go")
        for k in range(4):
            a(f"v_mov_b32 v{IA}, v{IX0 + k}")
            self.gather(k)
        self.vm("LN", "g", 4)
        a(f"""
        v_mov_b32 v{IA}, v{IX0 + 4}
        s_cmp_eq_u32 s{sR}, 0
        s_cbranch_scc0 L_r_done
        """)
        upto(16)
        for r in range(4):
            a(f"v_mul_f32 v{W3 + r}, s{sNL2E}, v{W3 + r}")
        for h in range(6):
            a(f"v_pk_mul_f32 {vr(ACC + 2 * h, 2)}, {vr(ACC + 2 * h, 2)}, {sr(sNL2E, 2)} op_sel_hi:[1,0]")
        self.lane_consts()
        a(f"s_mov_b32 s{sR}, 1")
        self.barrier("R", lgkm=False)
        a(f"""
        s_cmp_eq_u32 s{sGEN}, 0
        s_cbranch_scc0 L_generic
        s_and_b32 s{sZ + 1}, s{sZ + 1}, 0xff
        s_or_b32 s{sA}, s{sZ}, s{sZ + 1}
        s_or_b32 s{sA}, s{sA}, s{sMODE}
        s_cbranch_scc1 L_clear
        L_r_done:
        s_cmp_gt_i32 s{sNE}, 0
        s_cbranch_scc0 L_empty
        """)
        if "noprio" not in self.opts:
            a("s_setprio 3")
        a(f"""
        ds_read_b64 {vr(EE[0], 2)}, v{EA}
        v_add_u32 v{QA}, s{sQ0}, v{L4}
        ds_read2st64_b32 {vr(Q, 2)}, v{QA} offset0:0 offset1:1
        ds_read2st64_b32 {vr(Q + 2, 2)}, v{QA} offset0:2 offset1:3
        v_xor_b32 v{AG}, s{sAG0}, v{L8}
        v_add_u32 v{CNA}, {CNTN}, v{L4}
        v_mov_b32 v{TZ}, 0
        ds_write_b32 v{CNA}, v{TZ}
        v_mov_b64 {vr(NN, 2)}, 0
        v_mov_b64 {vr(NN + 2, 2)}, 0
        v_mov_b32 v{DD}, 1.0
        v_mov_b32 v{DD + 1}, 1.0
        v_mov_b32 v{DD + 2}, 1.0
        v_mov_b32 v{DD + 3}, 1.0
        v_mov_b64 {vr(CK2, 2)}, 0
        v_mov_b32 v{CK1}, 0
        s_mov_b32 s{sI}, 0
        s_mov_b32 s{sTRIP}, 0
        """)
        self.stamp("setup")
        a("s_waitcnt vmcnt(3)")
        self.stamp("row0")
        self.p_reads(0, 0)
        a("s_waitcnt lgkmcnt(0)")
        self.gather(0)
        self.u2_loads()
        a(f"""
        s_cmp_eq_u32 s{sMODE}, 0
        s_cbranch_scc0 L_enter_x
        """)
        self.main_loop(False, "L_main_done")
        a.reset_hist()
        a.label("L_main_done")
        a("s_setprio 0")
        self.stamp("loop")
        a(f"""
        v_add_f32 v{CK2}, v{CK2}, v{CK2 + 1}
        v_mov_b32 v{TM}, {BIG}
        v_cmp_u_f32 vcc, v{CK2}, v{CK2}
        v_cmp_nle_f32 s[40:41], v{CK1}, v{TM}
        s_nop 1
        s_or_b64 vcc, vcc, s[40:41]
        s_cbranch_scc0 L_after
        v_mov_b32 v{TM}, {MISC + 4}
        v_mov_b32 v{TM + 1}, 1
        ds_write_b32 v{TM}, v{TM + 1}
        L_after:
        s_waitcnt vmcnt(0)
        """)
        self.barrier("M")
        a(f"""
        v_mov_b32 v{TM}, {MISC + 4}
        ds_read_b32 v{TM + 1}, v{TM}
        """)
        depth = 4

        def rd(s):
            for rb in range(3):
                a(f"ds_read_b128 {vr(XF + 12 * (s % depth) + 4 * rb, 4)}, v{XA + (s & 3)} offset:{rb * 8192 + (s >> 2) * 256}")

        for s in range(depth):
            rd(s)
        a(f"""
        s_cmp_eq_u32 s{sMODE}, 0
        s_cbranch_scc0 L_slow_next
        s_waitcnt lgkmcnt(12)
        v_readfirstlane_b32 s{sA}, v{TM + 1}
        s_nop 1
        s_cmp_eq_u32 s{sA}, 0
        s_cbranch_scc0 L_redo
        L_final:
        """)
        for s in range(8):
            ahead = min(depth - 1, 7 - s)
            a(f"s_waitcnt lgkmcnt({3 * ahead})")
            for rb in range(3):
                a(f"v_mfma_f32_16x16x32_bf16 {vr(ACC + 4 * rb, 4)}, {vr(UF + 4 * s, 4)}, {vr(XF + 12 * (s % depth) + 4 * rb, 4)}, {vr(ACC + 4 * rb, 4)}")
            if s + depth < 8:
                rd(s + depth)
        TE = 104
        for r in range(12):
            a(f"v_exp_f32 v{TE + r}, v{ACC + r}")
        for h in range(6):
            a(f"v_pk_add_f32 {vr(TE + 2 * h, 2)}, {vr(TE + 2 * h, 2)}, 1.0 op_sel_hi:[1,0]")
        for r in range(12):
            a(f"v_rcp_f32 v{TE + r}, v{TE + r}")
        for h in range(6):
            a(f"v_pk_mul_f32 {vr(ACC + 2 * h, 2)}, {vr(ACC + 2 * h, 2)}, {sr(sNLN2, 2)} op_sel_hi:[1,0]")
        for rb in range(3):
            for h in range(2):
                a(f"v_pk_mul_f32 {vr(ACC + 4 * rb + 2 * h, 2)}, {vr(ACC + 4 * rb + 2 * h, 2)}, {vr(TE + 4 * rb + 2 * h, 2)}")
            a(f"v_cvt_pk_bf16_f32 v{PQ + 2 * rb}, v{ACC + 4 * rb}, v{ACC + 4 * rb + 1}")
            a(f"v_cvt_pk_bf16_f32 v{PQ + 2 * rb + 1}, v{ACC + 4 * rb + 2}, v{ACC + 4 * rb + 3}")
            a(f"ds_write_b64 v{STG}, {vr(PQ + 2 * rb, 2)} offset:{rb * 8192}")
        self.barrier("F")
        a(f"""
        ds_read_b128 {vr(PQ + 8, 4)}, v{STR}
        ds_read_b128 {vr(PQ + 12, 4)}, v{STR} offset:16384
        s_waitcnt lgkmcnt(1)
        buffer_store_dwordx4 {vr(PQ + 8, 4)}, v{GO}, {sr(sOUT, 4)}, 0 offen sc1
        s_waitcnt lgkmcnt(0)
        buffer_store_dwordx4 {vr(PQ + 12, 4)}, v{GO2}, {sr(sOUT, 4)}, 0 offen sc1
        """)
        if self.opt("pad", 0):
            a(f"""
            L_pad:
            s_memrealtime s[98:99]
            s_waitcnt lgkmcnt(0)
            s_sub_u32 s98, s98, s96
            s_cmp_lt_u32 s98, {self.opt("pad", 0)}
            s_cbranch_scc1 L_pad
            """)
        if self.stamps:
            a.label("L_diag_end")
            a("s_waitcnt vmcnt(0)")
            self.stamp("end")
            a(f"""
            s_lshl_b32 s{sA}, s{sT}, 4
            s_add_u32 s{sA}, s{sA}, s{sW}
            s_lshl_b32 s{sA}, s{sA}, 8
            s_add_u32 s{sA}, s{sA}, {W_STAMP}
            v_lshlrev_b32 v{TM}, 2, v{LANE}
            buffer_store_dword v{STAMPV}, v{TM}, {sr(sWS, 4)}, s{sA} offen
            """)
        a.label("L_end")
        a("s_endpgm")
        a.reset_hist()
        a(f"""
        L_gen1:
        s_mov_b32 s{sGEN}, 1
        s_branch L_gen1_back
        L_clear:
        v_mov_b64 {vr(XF, 2)}, 0
        v_mov_b64 {vr(XF + 2, 2)}, 0
        v_add_u32 v{XF + 4}, {AB - PS}, v{STR}
        """)
        self.zero_agg(XF + 4, XF)
        a(f"""
        s_waitcnt lgkmcnt(0)
        s_barrier
        s_branch L_r_done
        L_generic:
        s_waitcnt vmcnt(0) lgkmcnt(0)
        s_barrier
        v_mov_b64 {vr(XF, 2)}, 0
        v_mov_b64 {vr(XF + 2, 2)}, 0
        v_add_u32 v{XF + 4}, {AB - PS}, v{STR}
        """)
        self.zero_agg(XF + 4, XF)
        a(f"""
        v_add_u32 v{CNA}, {CNTN}, v{L4}
        v_mov_b32 v{TZ}, 0
        ds_write_b32 v{CNA}, v{TZ}
        s_mov_b32 s{sNP}, 1
        s_mov_b32 s{sMODE}, 1
        s_waitcnt lgkmcnt(0)
        s_barrier
        L_round:
        """)
        self.slot_consts()
        self.lane_consts()
        self.rec_issue(SCR2)
        a("s_waitcnt vmcnt(0)")
        self.count(SCR2)
        a("s_waitcnt lgkmcnt(0)\ns_barrier")
        self.lists(SCR2, "L_generic")
        a("s_waitcnt lgkmcnt(0)\ns_barrier")
        self.setup(SCR2.tmp)
        a(f"""
        s_waitcnt lgkmcnt(0)
        s_branch L_go
        L_empty:
        v_add_u32 v{CNA}, {CNTN}, v{L4}
        v_mov_b32 v{TZ}, 0
        ds_write_b32 v{CNA}, v{TZ}
        """)
        self.u2_loads()
        a(f"""
        s_branch L_after
        L_slow_next:
        s_cmp_eq_u32 s{sNP}, {NPASS}
        s_cbranch_scc1 L_final
        s_add_u32 s{sP0}, s{sP0}, 1
        s_max_u32 s{sA}, s{sMAXC}, {4 * NPASS}
        s_lshl_b32 s{sB}, s{sP0}, 2
        s_cmp_lt_u32 s{sB}, s{sA}
        s_cbranch_scc0 L_final
        s_waitcnt lgkmcnt(0)
        s_branch L_round
        L_redo:
        s_waitcnt lgkmcnt(0)
        s_barrier
        s_mov_b32 s{sMODE}, 1
        v_mov_b64 {vr(XF, 2)}, 0
        v_mov_b64 {vr(XF + 2, 2)}, 0
        v_add_u32 v{XF + 4}, {AB - PS}, v{STR}
        """)
        self.zero_agg(XF + 4, XF)
        a("s_branch L_round")
        self.main_loop(True, "L_after")
        a.label("L_code_end")

    def text(self):
        hdr = f"""; Fused MPNN edge-MLP kernel: P = x W1 published per tile, edges binned by destination tile,
; @launch grid=({NT},1,1) block=(1024,1,1) lds={LDS_TOTAL}
.amdgcn_target "amdgcn-amd-amdhsa--gfx950"
.text
.globl {NAME}_kernel
.p2align 8
.type {NAME}_kernel,@function
{NAME}_kernel:
"""
        ftr = f""".section .rodata,"a"
.p2align 6
.amdhsa_kernel {NAME}_kernel
  .amdhsa_next_free_vgpr 128
  .amdhsa_next_free_sgpr 102
  .amdhsa_accum_offset 128
  .amdhsa_group_segment_fixed_size 0
  .amdhsa_kernarg_size 72
  .amdhsa_user_sgpr_count 2
  .amdhsa_user_sgpr_kernarg_segment_ptr 1
  .amdhsa_system_sgpr_workgroup_id_x 1
.end_amdhsa_kernel
"""
        return hdr + self.a.text() + ftr


if __name__ == "__main__":
    out = [x for x in sys.argv[1:] if not x.startswith("--")]
    g = Gen(opts=[x[2:] for x in sys.argv[1:] if x.startswith("--")])
    g.build()
    txt = g.text()
    if g.stamps:
        txt = "; stamps: " + ",".join(g.names) + "\n" + txt
    open(out[0] if out else "cdna_kernels/%s.s" % NAME, "w").write(txt)
    print("nops inserted:", g.a.nops, "lines:", len(g.a.lines), "stamps:", g.nstamp)
```

```python
import re

TRANS = ("v_exp_f32", "v_rcp_f32", "v_log_f32", "v_rsq_f32", "v_sqrt_f32")
REG_RE = re.compile(r"^(-|\|)?([vsa])(?:(\d+)|\[(\d+):(\d+)\])\|?$")


def regs_of(op):
    op = op.strip()
    if op == "vcc":
        return {("s", 106), ("s", 107)}
    if op == "exec":
        return {("s", 126), ("s", 127)}
    if op == "exec_hi":
        return {("s", 127)}
    if op == "vcc_lo":
        return {("s", 106)}
    if op == "m0":
        return {("s", 124)}
    m = REG_RE.match(op)
    if not m:
        return set()
    f = m.group(2)
    if m.group(3) is not None:
        return {(f, int(m.group(3)))}
    return {(f, i) for i in range(int(m.group(4)), int(m.group(5)) + 1)}


class Ins:
    def __init__(self, text):
        self.text = text
        t = text.split(";")[0].strip()
        parts = t.split(None, 1)
        self.op = parts[0]
        rest = parts[1] if len(parts) > 1 else ""
        toks = [x.strip() for x in rest.split(",")]
        ops = []
        for tk in toks:
            if not tk:
                continue
            ops.append(tk.split()[0])
        self.ops = ops
        self.mods = rest
        op = self.op
        self.is_valu = op.startswith("v_")
        self.is_mfma = op.startswith("v_mfma")
        self.is_trans = any(op.startswith(x) for x in TRANS)
        self.is_dot = op.startswith("v_dot")
        self.is_dpp = "_dpp" in op
        self.is_vmem = op.startswith("buffer_") or op.startswith("global_")
        self.is_ds = op.startswith("ds_")
        self.is_salu = op.startswith("s_")
        self.is_lds_dma = self.is_vmem and re.search(r"\blds\b", rest) is not None
        self.dst = set()
        self.src = set()
        R = [regs_of(o) for o in ops]
        if self.is_valu:
            if op.startswith("v_cmp"):
                self.dst = R[0]
                for r in R[1:]:
                    self.src |= r
            elif op.startswith(("v_add_co", "v_sub_co", "v_addc_co", "v_subb_co")):
                self.dst = R[0] | R[1]
                for r in R[2:]:
                    self.src |= r
            elif op.startswith("v_permlane"):
                self.dst = R[0] | R[1]
                self.src = R[0] | R[1]
            else:
                self.dst = R[0]
                for r in R[1:]:
                    self.src |= r
                if op.startswith(("v_fmac", "v_writelane")) or self.is_dpp:
                    self.src |= R[0]
                if op.startswith("v_cndmask") and len(ops) == 3:
                    self.src |= regs_of("vcc")
        elif self.is_vmem:
            if "store" in op or self.is_lds_dma:
                for r in R:
                    self.src |= r
            else:
                self.dst = R[0]
                for r in R[1:]:
                    self.src |= r
        elif self.is_ds:
            if op.startswith(("ds_read", "ds_bpermute", "ds_permute")) or "_rtn" in op:
                self.dst = R[0]
                for r in R[1:]:
                    self.src |= r
            else:
                for r in R:
                    self.src |= r
        elif self.is_salu:
            if op.startswith(("s_cmp", "s_bitcmp", "s_cbranch", "s_branch", "s_waitcnt", "s_nop", "s_barrier", "s_endpgm", "s_sleep", "s_setprio")):
                for r in R:
                    self.src |= r
            elif R:
                self.dst = R[0]
                for r in R[1:]:
                    self.src |= r
                if "saveexec" in op:
                    self.dst |= regs_of("exec")
        self.states = 1
        if op == "s_nop":
            self.states = int(ops[0], 0) + 1

    def wide_store_data(self):
        if self.is_vmem and "store" in self.op and ("x4" in self.op or "x3" in self.op):
            return regs_of(self.ops[0])
        return set()


def need(prod, cons):
    n = 0
    vd = {r for r in prod.dst if r[0] == "v"}
    sd = {r for r in prod.dst if r[0] == "s"}
    if prod.is_valu and not prod.is_mfma:
        if sd:
            if cons.is_valu and (sd & cons.src):
                n = max(n, 4 if cons.op.startswith(("v_readlane", "v_writelane")) else 2)
            if cons.is_vmem and (sd & cons.src):
                n = max(n, 5)
        if vd & cons.src:
            if cons.op.startswith(("v_readlane", "v_readfirstlane")):
                n = max(n, 1)
            if cons.is_dpp or cons.op.startswith("v_permlane"):
                n = max(n, 2)
            if cons.is_mfma:
                n = max(n, 2)
            if prod.is_trans and cons.is_valu and not cons.is_trans:
                n = max(n, 1)
        if prod.is_dot and cons.op != prod.op and (vd & (cons.src | cons.dst)):
            n = max(n, 3)
    if prod.is_mfma:
        passes8 = "32x32" in prod.op
        if cons.is_mfma:
            c = regs_of(cons.ops[3]) if len(cons.ops) > 3 else set()
            ab = regs_of(cons.ops[1]) | regs_of(cons.ops[2])
            if vd & ab:
                n = max(n, 12 if passes8 else 8)
            if (vd & c) and vd != c:
                n = max(n, 10 if passes8 else 6)
        elif vd & (cons.src | cons.dst):
            n = max(n, 12 if passes8 else 8)
        c = regs_of(prod.ops[3]) if len(prod.ops) > 3 else set()
        if cons.is_valu and not cons.is_mfma and (c & cons.dst):
            n = max(n, 7 if passes8 else 3)
    if prod.is_salu and ("s", 124) in prod.dst and cons.is_lds_dma:
        n = max(n, 1)
    ws = prod.wide_store_data()
    if ws and (ws & cons.dst):
        n = max(n, 2)
    return n


class Asm:
    def __init__(self):
        self.lines = []
        self.hist = []
        self.nops = 0
        self.uid = 0

    def raw(self, s):
        self.lines.append(s)

    def comment(self, s):
        self.lines.append("    ; " + s)

    def label(self, name):
        self.lines.append(name + ":")

    def newlabel(self, base):
        self.uid += 1
        return "L_%s_%d" % (base, self.uid)

    def reset_hist(self):
        self.hist = []

    def __call__(self, text):
        for line in text.strip().split("\n"):
            line = line.strip()
            if not line:
                continue
            if line.endswith(":"):
                self.lines.append(line)
                continue
            if line.startswith(";"):
                self.lines.append("    " + line)
                continue
            ins = Ins(line)
            dist = 0
            pad = 0
            for p in reversed(self.hist):
                nn = need(p, ins)
                if nn > dist:
                    pad = max(pad, nn - dist)
                dist += p.states
                if dist >= 20:
                    break
            if pad:
                nop = Ins("s_nop %d" % (pad - 1))
                self.lines.append("    " + nop.text)
                self.hist.append(nop)
                self.nops += pad
            self.lines.append("    " + line)
            self.hist.append(ins)
            if len(self.hist) > 40:
                self.hist = self.hist[-30:]

    def text(self):
        return "\n".join(self.lines) + "\n"
```

```python
import sys
import struct
from asmlib import Asm

NAME = "gather_scatter__mpnn_edge_mlp__graph"
N, E, D = 10000, 160000, 256
T, NT, EC = 40, 250, 640

SLOT = (0, 32768, 65536, 98304)
XB = 131072
SIDE = 41984
PILA, PILB = 158880, 162112 - 9 * 192
HIST, BASE, SORT, USC = 151552, 152576, 153600, 158720
CNTN, MISC = 160768, 161024
IL, EL, DL = 151552, 153664, 157824
QB, QS = 0, 1040
AB = XB
RING = 65536
ROFF = (0, 1024, 32768, 33792)
PS = 65536
LDS_TOTAL = 163840

W_EPOCH, W_FA, W_FB = 0, 0x1000, 0x3000
W_OFFS, W_RECS, W_UT, W_P = 0x10000, 0x90000, 0x700000, 0x200000
W_UTAG = 0x6000
W_STAMP = 0x800000
WS_SIZE = 0xA00000
OOB = 0x80000000
POLL_LIMIT = 200000


def f2u(x):
    return struct.unpack("<I", struct.pack("<f", x))[0]


NLOG2E = f2u(-1.4426950408889634)
NLN2 = f2u(-0.6931471805599453)
BIG = f2u(2.0 ** 120)


def vr(a, n=1):
    return "v%d" % a if n == 1 else "v[%d:%d]" % (a, a + n - 1)


def sr(a, n=1):
    return "s%d" % a if n == 1 else "s[%d:%d]" % (a, a + n - 1)


TID, LANE = 0, 1
XA = 2
STG, GO, GO2, STR = 6, 7, 8, 9
RBA, CQ = 10, 11
ACC = 12
UF = 24
XR = 24
XF2, WF = 88, 96
AC2 = 104
XF = 56
WOFF, TR0, TR1 = 120, 121, 122
STAMPV = 123
W3 = 124
NPASS = 4
POLLB = 16
FO = 120
W3L = MISC + 64
XCNT, S1C, S2C, ACKC, BACK = MISC + 8, MISC + 12, MISC + 16, MISC + 20, MISC + 24


class Scratch:
    def __init__(self, rec, adr, rank, tmp):
        self.rec, self.adr, self.rank, self.tmp = rec, adr, rank, tmp


REC1 = [116, 118, 124, 126]
SCRP = Scratch(REC1, 12, None, 18)
SCRX = Scratch(REC1, ACC, ACC + 4, ACC + 8)
SCR2 = Scratch([24, 26, 28, 30], 40, 44, 48)
CNA = 109
PA = (56, 64)
EE = (72, 74)
IA, Q, QE, Y, TT, NN, DD = 76, 78, 86, 90, 94, 98, 102
CK2, CK1 = 106, 108
RG, IXA, EA, QA, AG, L4, L8, INFO, TM, IOF = 82, 116, 117, 112, 113, 83, 84, 118, 120, 85
TZ = 115
IX0 = 64

sT, sW = 2, 3
sX, sWM, sWU, sWS, sP, sOUT, sSRC, sDST, sEA = 4, 8, 12, 16, 20, 24, 28, 32, 36
sNL2E, sNLN2, sWK, sW1K = 58, 60, 62, 63
sMASK, sI, sNE, sREM, sTRIP, sSLOT = 64, 66, 67, 68, 69, 70
sM, sP0, sNP, sMAXC, sFIRST, sMODE = 74, 75, 76, 77, 78, 79
sVAL = 80
sA, sB, sC, sD = 88, 89, 90, 91
sEX = 42
sCO = 48
sHI, sTAG, sTLO, sGEN = 49, 52, 56, 57
sQ0, sAG0 = 44, 45
sUO, sUG, sUB, sE = 64, 65, 38, 39
sZ, sU, sRA, sRB = 6, 30, 29, 31
sTM, sHB = 28, 69
sHB2 = sHB


class Gen:
    def __init__(self, opts=()):
        self.opts = set(opts)
        self.a = Asm()
        self.stamps = "stamps" in self.opts
        self.nstamp = 0
        self.names = []
        self.lq = []
        self.q = {"L": [], "N": []}

    def opt(self, name, default):
        for o in self.opts:
            if o.startswith(name + "="):
                return int(o.split("=")[1])
        return default

    STAMP_REGS = [92, 94, 96, 98, 100, 50, 54, 4, 12, 14, 32, 34, 36]

    def stampval(self, name, sreg):
        sel = [o[3:].split("+") for o in self.opts if o.startswith("st=")]
        if not self.stamps or not sel or name not in sel[0]:
            return
        k = self.nstamp
        self.nstamp += 1
        self.names.append("=" + name)
        self.a(f"s_add_u32 s{self.STAMP_REGS[k]}, s{sreg}, 1")

    def stamp(self, name):
        if not self.stamps:
            return
        sel = [o[3:].split("+") for o in self.opts if o.startswith("st=")]
        if name not in ("start", "end") and sel and name not in sel[0]:
            return
        k = self.nstamp
        self.nstamp += 1
        self.names.append(name)
        if "dbg" in self.opts:
            self.a(f"s_memrealtime {sr(self.STAMP_REGS[k], 2)}")
            if name == "end":
                a = self.a
                a("s_load_dwordx2 s[40:41], s[0:1], 56\ns_waitcnt lgkmcnt(0)")
                a(f"s_not_b32 s44, s{self.STAMP_REGS[0]}\nv_writelane_b32 v{STAMPV}, s44, 15")
                for i in range(self.nstamp):
                    a(f"v_writelane_b32 v{STAMPV}, s{self.STAMP_REGS[i]}, {i}")
                a(f"""
                s_mov_b32 s42, 64
                s_mov_b32 s43, 0x20000
                v_lshlrev_b32 v{TM}, 2, v{LANE}
                s_cmp_eq_u32 s{sW}, 0
                s_cbranch_scc0 L_end
                buffer_atomic_umax v{STAMPV}, v{TM}, s[40:43], 0 offen
                s_branch L_end
                """)
            return
        if name in ("start", "end"):
            self.a(f"""
            s_memrealtime s[40:41]
            s_waitcnt lgkmcnt(0)
            v_writelane_b32 v{STAMPV}, s40, {0 if name == "start" else 1}
            """)
        self.a(f"s_memtime {sr(self.STAMP_REGS[k], 2)}")
        if name == "end":
            self.a("s_waitcnt lgkmcnt(0)")
            for i in range(self.nstamp):
                self.a(f"v_writelane_b32 v{STAMPV}, s{self.STAMP_REGS[i]}, {32 + i}")

    def vm(self, roles, tag, n=1):
        for r in roles:
            self.q[r] += [tag] * n

    def vmwait(self, tags):
        need = {}
        for r, lst in self.q.items():
            last = max((i for i, t in enumerate(lst) if t in tags), default=None)
            if last is None:
                need[r] = None
            else:
                need[r] = len(lst) - 1 - last
                self.q[r] = lst[last + 1:]
        a = self.a
        if need["L"] == need["N"]:
            if need["L"] is not None:
                a(f"s_waitcnt vmcnt({need['L']})")
            return
        lab = a.newlabel("vw")
        if need["N"] is None:
            a(f"s_cmp_lt_u32 s{sW}, 8\ns_cbranch_scc1 {lab}\ns_waitcnt vmcnt({need['L']})\n{lab}:")
        elif need["L"] is None:
            a(f"s_cmp_ge_u32 s{sW}, 8\ns_cbranch_scc1 {lab}\ns_waitcnt vmcnt({need['N']})\n{lab}:")
        elif need["L"] > need["N"]:
            a(f"s_waitcnt vmcnt({need['L']})\ns_cmp_ge_u32 s{sW}, 8\ns_cbranch_scc1 {lab}\ns_waitcnt vmcnt({need['N']})\n{lab}:")
        else:
            a(f"s_waitcnt vmcnt({need['N']})\ns_cmp_lt_u32 s{sW}, 8\ns_cbranch_scc1 {lab}\ns_waitcnt vmcnt({need['L']})\n{lab}:")

    def lwait(self, tag):
        last = max(i for i, t in enumerate(self.lq) if t == tag)
        self.a(f"s_waitcnt lgkmcnt({len(self.lq) - 1 - last})")
        self.lq = self.lq[last + 1:]

    def barrier(self, name, lgkm=True):
        if lgkm:
            self.a("s_waitcnt lgkmcnt(0)")
        self.a("s_barrier")
        self.stamp(name)

    def dma_body(self, k, slot, role="L"):
        a = self.a
        if f"noc{k}" in self.opts:
            for m in range(4):
                a(f"s_mov_b32 m0, {USC + 1024}\ns_mov_b32 s{sB}, {OOB}\nbuffer_load_dwordx4 v{WOFF}, {sr(sWM, 4)}, s{sB} offen lds")
            self.vm(role, f"c{k}", 4)
            return
        srd, base = ((sWM, 0), (sWM, 131072))[k // 4]
        c = k % 4
        for m in range(4):
            a(f"""
            s_add_u32 m0, s{sW1K}, {SLOT[slot] + m * 8192}
            s_mov_b32 s{sB}, {base + c * 32768 + m * 8192}
            buffer_load_dwordx4 v{WOFF}, {sr(srd, 4)}, s{sB} offen lds
            """)
        self.vm(role, f"c{k}", 4)

    def dma_all(self, k, slot, m):
        a = self.a
        srd, base = ((sWM, 0), (sWM, 131072))[k // 4]
        a(f"""
        s_add_u32 m0, s{sWK}, {SLOT[slot] + m * 16384}
        s_add_u32 s{sB}, s{sHI}, {base + (k % 4) * 32768 + m * 16384}
        buffer_load_dwordx4 v{WOFF}, {sr(srd, 4)}, s{sB} offen lds
        """)
        self.vm("LN", f"c{k}")

    def spin(self, ctr, target, tmp, extra=None):
        a = self.a
        lab = a.newlabel("spin")
        a(f"v_mov_b32 v{tmp}, {ctr}")
        a.label(lab)
        a(f"ds_read_b32 v{tmp + 1}, v{tmp}")
        if extra:
            a(extra)
        a(f"""
        s_waitcnt lgkmcnt(0)
        v_readfirstlane_b32 s{sA}, v{tmp + 1}
        s_nop 0
        s_cmp_lt_u32 s{sA}, {target}
        s_cbranch_scc1 {lab}
        """)

    def xspin(self, shift):
        a = self.a
        lab = a.newlabel("xs")
        a(f"""
        {lab}:
        ds_read_b32 v{WF + 1}, v{WF}
        s_waitcnt lgkmcnt(0)
        v_readfirstlane_b32 s{sA}, v{WF + 1}
        s_nop 0
        s_bfe_u32 s{sA}, s{sA}, {shift | (4 << 16)}
        s_cmp_lt_u32 s{sA}, 3
        s_cbranch_scc0 {lab}_ok
        s_sleep 1
        s_branch {lab}
        {lab}_ok:
        """)

    def touch(self):
        a = self.a
        l2, done = a.newlabel("tw2"), a.newlabel("tdone")
        a(f"""
        s_lshr_b32 s{sA}, s{sT}, 3
        s_lshl_b32 s{sA}, s{sA}, 12
        s_mov_b32 m0, {USC + 1024}
        v_lshlrev_b32 v{W3 + 2}, 4, v{LANE}
        s_cmp_eq_u32 s{sW}, 5
        s_cbranch_scc0 {l2}
        """)
        for m in range(4):
            a(f"s_add_u32 s{sB}, s{sA}, {1024 * m}\nbuffer_load_dwordx4 v{W3 + 2}, {sr(sWU, 4)}, s{sB} offen lds")
        a(f"s_branch {done}\n{l2}:\ns_cmp_eq_u32 s{sW}, 6\ns_cbranch_scc0 {done}")
        for m in range(4):
            a(f"s_add_u32 s{sB}, s{sA}, {131072 + 1024 * m}\nbuffer_load_dwordx4 v{W3 + 2}, {sr(sWM, 4)}, s{sB} offen lds")
        a.label(done)

    def xpreload(self, ua):
        a = self.a
        a(f"v_mov_b32 v{WF}, {XCNT}")
        self.xspin(0)
        self.stamp("xa")
        for s in range(8):
            a(f"ds_read_b128 {vr(XR + 4 * s, 4)}, v{XA + (s & 3)} offset:{(s >> 2) * 256}")
        a(f"""
        s_cmp_lt_u32 s{sW}, 5
        s_cbranch_scc1 L_xp_go
        s_cmp_ge_u32 s{sW}, 8
        s_cbranch_scc1 L_xp_go
        v_mov_b32 v{W3 + 3}, 16
        s_mov_b64 exec, 1
        s_waitcnt vmcnt(0)
        ds_add_u32 v{WF}, v{W3 + 3}
        s_mov_b64 exec, -1
        """)
        a.label("L_xp_go")
        self.xspin(4)
        self.stamp("xb")
        for s in range(8):
            a(f"ds_read_b128 {vr(XR + 32 + 4 * s, 4)}, v{XA + (s & 3)} offset:{8192 + (s >> 2) * 256}")
        self.xreads(0)
        a(f"s_cmp_lt_u32 s{sW}, 8\ns_cbranch_scc1 L_xp_c2")
        self.dma_body(1, 1)
        a("s_branch L_xp_done\nL_xp_c2:")
        self.dma_body(2, 2, "N")
        a.label("L_xp_done")

    def xreads(self, c):
        a = self.a
        for sp in range(2):
            s = 2 * c + sp
            a(f"ds_read_b128 {vr(XF2 + 4 * sp, 4)}, v{XA + (s & 3)} offset:{2 * 8192 + (s >> 2) * 256}")

    def trreads(self, slot):
        a = self.a
        base = SLOT[slot]
        tr = TR0 if base < 65536 else TR1
        for sp in range(2):
            for p in range(2):
                a(f"ds_read_b64_tr_b16 {vr(WF + 4 * sp + 2 * p, 2)}, v{tr} offset:{(base & 65535) + 16384 * sp + 2048 * p}")

    def mfmas(self, acc, c, between=None):
        a = self.a
        for sp in range(2):
            if between:
                between(sp)
            a(f"s_waitcnt lgkmcnt({2 - 2 * sp})")
            for rb in range(3):
                cin = "0" if (c == 0 and sp == 0) else vr(acc + 4 * rb, 4)
                b = XR + 32 * rb + 4 * (2 * c + sp) if rb < 2 else XF2 + 4 * sp
                a(f"v_mfma_f32_16x16x32_bf16 {vr(acc + 4 * rb, 4)}, {vr(WF + 4 * sp, 4)}, {vr(b, 4)}, {cin}")

    def scan(self, v):
        a = self.a
        for sh in (1, 2, 4, 8):
            a(f"v_add_u32_dpp v{v}, v{v}, v{v} row_shr:{sh} row_mask:0xf bank_mask:0xf bound_ctrl:0")
        a(f"v_add_u32_dpp v{v}, v{v}, v{v} row_bcast:15 row_mask:0xa bank_mask:0xf")
        a(f"v_add_u32_dpp v{v}, v{v}, v{v} row_bcast:31 row_mask:0xc bank_mask:0xf")

    def poll_issue(self):
        a = self.a
        a(f"v_lshlrev_b32 v14, 5, v{LANE}\ns_mov_b32 s{sB}, {W_FB}\ns_mov_b32 s{sD}, {W_FB + 4096}")
        for k in range(4):
            a(f"buffer_load_dwordx2 {vr(POLLB + 2 * k, 2)}, v14, {sr(sWS, 4)}, s{sB if k < 2 else sD} offen offset:{2048 * (k & 1)} sc1")

    def poll_wait(self):
        a = self.a
        lp, chk, done = a.newlabel("poll"), a.newlabel("pchk"), a.newlabel("pdone")
        a(f"s_mov_b32 s{sC}, 0\ns_branch {chk}")
        a.label(lp)
        self.poll_issue()
        a.label(chk)
        m58 = (1 << (NT - 192)) - 1
        a(f"""
        s_waitcnt vmcnt(0)
        v_cmp_ne_u64 s[40:41], {sr(sTAG, 2)}, {vr(POLLB, 2)}
        v_cmp_ne_u64 vcc, {sr(sTAG, 2)}, {vr(POLLB + 2, 2)}
        v_cmp_ne_u64 s[88:89], {sr(sTAG, 2)}, {vr(POLLB + 4, 2)}
        v_cmp_ne_u64 s[46:47], {sr(sTAG, 2)}, {vr(POLLB + 6, 2)}
        s_nop 1
        s_and_b32 s47, s47, {m58 >> 32}
        s_or_b64 s[40:41], s[40:41], vcc
        s_or_b64 s[46:47], s[88:89], s[46:47]
        s_or_b64 s[40:41], s[40:41], s[46:47]
        s_cbranch_scc0 {done}
        s_add_u32 s{sC}, s{sC}, 1
        s_cmp_lt_u32 s{sC}, {POLL_LIMIT}
        s_cbranch_scc1 {lp}
        """)
        a.label(done)

    def tag_store(self, soff, tmp):
        a = self.a
        a(f"""
        v_mov_b32 v{tmp}, s{sTAG}
        v_mov_b32 v{tmp + 1}, s{sTAG + 1}
        v_lshlrev_b32 v{tmp + 2}, 24, v{LANE}
        buffer_store_dwordx2 {vr(tmp, 2)}, v{tmp + 2}, {sr(sWS, 4)}, s{soff} offen sc1
        """)

    def wave0(self, fn):
        a = self.a
        lab = a.newlabel("w0")
        a(f"s_cmp_eq_u32 s{sW}, 0\ns_cbranch_scc0 {lab}")
        fn()
        a.label(lab)

    def edge(self, pb, which, exact, first):
        a = self.a
        if "noedge" in self.opts:
            return
        p = PA[pb] + 4 * which
        sel = "op_sel:[1,0,0] op_sel_hi:[1,1,1]" if which else "op_sel:[0,0,0] op_sel_hi:[0,1,1]"
        y = NN if (first and not exact) else Y
        for h in range(2):
            a(f"v_pk_fma_f32 {vr(QE + 2 * h, 2)}, {vr(EE[pb], 2)}, {vr(W3 + 2 * h, 2)}, {vr(Q + 2 * h, 2)} {sel}")
        for h in range(2):
            a(f"v_pk_add_f32 {vr(y + 2 * h, 2)}, {vr(p + 2 * h, 2)}, {vr(QE + 2 * h, 2)}")
        for r in range(4):
            a(f"v_exp_f32 v{TT + r}, v{y + r}")
        if exact:
            for h in range(2):
                a(f"v_pk_add_f32 {vr(TT + 2 * h, 2)}, {vr(TT + 2 * h, 2)}, 1.0 op_sel_hi:[1,0]")
            for r in range(4):
                a(f"v_rcp_f32 v{TT + r}, v{TT + r}")
            for h in range(2):
                if first:
                    a(f"v_pk_mul_f32 {vr(NN + 2 * h, 2)}, {vr(Y + 2 * h, 2)}, {vr(TT + 2 * h, 2)}")
                else:
                    a(f"v_pk_fma_f32 {vr(NN + 2 * h, 2)}, {vr(Y + 2 * h, 2)}, {vr(TT + 2 * h, 2)}, {vr(NN + 2 * h, 2)}")
        elif first:
            for h in range(2):
                a(f"v_pk_add_f32 {vr(DD + 2 * h, 2)}, {vr(TT + 2 * h, 2)}, 1.0 op_sel_hi:[1,0]")
        else:
            for h in range(2):
                a(f"v_pk_fma_f32 {vr(NN + 2 * h, 2)}, {vr(NN + 2 * h, 2)}, {vr(TT + 2 * h, 2)}, {vr(NN + 2 * h, 2)}")
            for h in range(2):
                a(f"v_pk_fma_f32 {vr(NN + 2 * h, 2)}, {vr(Y + 2 * h, 2)}, {vr(DD + 2 * h, 2)}, {vr(NN + 2 * h, 2)}")
            for h in range(2):
                a(f"v_pk_fma_f32 {vr(DD + 2 * h, 2)}, {vr(DD + 2 * h, 2)}, {vr(TT + 2 * h, 2)}, {vr(DD + 2 * h, 2)}")

    def flush(self, exact, mid=None, final=False):
        a = self.a
        if exact:
            if mid:
                mid()
            a(f"v_cvt_pk_bf16_f32 v{TT}, v{NN}, v{NN + 1}")
            a(f"v_cvt_pk_bf16_f32 v{TT + 1}, v{NN + 2}, v{NN + 3}")
            a(f"ds_pk_add_bf16 v{AG}, v{TT}")
            a(f"ds_pk_add_bf16 v{AG}, v{TT + 1} offset:4")
            return 2
        for r in range(4):
            a(f"v_rcp_f32 v{TT + r}, v{DD + r}")
        if mid:
            mid()
        a(f"v_max3_f32 v{CK1}, v{CK1}, v{DD}, v{DD + 1}")
        a(f"v_max3_f32 v{CK1}, v{CK1}, v{DD + 2}, v{DD + 3}")
        for h in range(2):
            a(f"v_pk_mul_f32 {vr(Y + 2 * h, 2)}, {vr(NN + 2 * h, 2)}, {vr(TT + 2 * h, 2)}")
        for h in range(2):
            a(f"v_pk_fma_f32 {vr(CK2, 2)}, {vr(Y + 2 * h, 2)}, 0, {vr(CK2, 2)} op_sel_hi:[1,0,1]")
        if final:
            a(f"""
            s_cmp_eq_u32 s{sCO}, 0
            s_cbranch_scc1 L_noside
            s_lshl_b32 s{sA}, s{sW}, 9
            s_add_u32 s{sA}, s{sA}, {(SIDE + 512) ^ AB}
            v_xor_b32 v{QA}, s{sA}, v{L8}
            s_mov_b32 s{sC}, 0
            L_side:
            ds_read_b64 {vr(TT, 2)}, v{QA}
            s_add_u32 s{sC}, s{sC}, 1
            s_waitcnt lgkmcnt(0)
            v_cmp_eq_u64 vcc, -1, {vr(TT, 2)}
            s_cmp_gt_u32 s{sC}, 4000
            s_cbranch_scc1 L_side_go
            s_cbranch_vccnz L_side
            L_side_go:
            v_lshlrev_b32 v{QE}, 16, v{TT}
            v_and_b32 v{QE + 1}, 0xffff0000, v{TT}
            v_lshlrev_b32 v{QE + 2}, 16, v{TT + 1}
            v_and_b32 v{QE + 3}, 0xffff0000, v{TT + 1}
            v_pk_add_f32 {vr(Y, 2)}, {vr(Y, 2)}, {vr(QE, 2)}
            v_pk_add_f32 {vr(Y + 2, 2)}, {vr(Y + 2, 2)}, {vr(QE + 2, 2)}
            L_noside:
            """)
        a(f"v_cvt_pk_bf16_f32 v{TT}, v{Y}, v{Y + 1}")
        a(f"v_cvt_pk_bf16_f32 v{TT + 1}, v{Y + 2}, v{Y + 3}")
        a(f"ds_write_b64 v{AG}, {vr(TT, 2)}")
        return 1

    def p_reads(self, pb, slot):
        a = self.a
        for row in range(2):
            for r in range(4):
                a(f"ds_read_u16_d16_hi v{PA[pb] + 4 * row + r}, v{RG} offset:{ROFF[slot] + row * 512 + r * 128}")

    def gather(self, slot):
        if "nodma" in self.opts:
            return
        self.a(f"""
        s_mov_b32 m0, s{sSLOT + slot}
        buffer_load_dwordx4 {vr(IA, 2)}, {sr(sP, 4)}, 0 idxen offen sc1 lds
        """)

    def reads(self, jj):
        a = self.a
        pb = jj & 1
        self.p_reads(pb ^ 1, (jj + 1) & 3)
        a(f"ds_read_b64 {vr(EE[pb ^ 1], 2)}, v{EA} offset:{8 * (jj + 1)}")
        a(f"ds_read_u16 v{IA}, v{IXA} offset:{4 * (jj + 5)}")

    def main_loop(self, exact, exit_label):
        a = self.a
        tag = "x" if exact else "f"
        loop, fin = f"L_loop_{tag}", f"L_fin_{tag}"
        prio = not exact and "noprio" not in self.opts
        a.label(loop)
        for jj in range(4):
            a(f"s_and_b32 s{sA}, s{sTM}, {3 << (2 * jj)}\ns_cbranch_scc1 L_blk_{tag}_{jj}\ns_waitcnt vmcnt(3)")
            self.reads(jj)
            self.edge(jj & 1, 0, exact, False)
            self.edge(jj & 1, 1, exact, False)
            a.label(f"L_back_{tag}_{jj}")
            a(f"s_mov_b32 m0, s{sSLOT + ((jj + 1) & 3)}\ns_waitcnt lgkmcnt(0)")
            if "nodma" not in self.opts:
                a(f"buffer_load_dwordx4 {vr(IA, 2)}, {sr(sP, 4)}, 0 idxen offen sc1 lds")
        a(f"""
        v_add_u32 v{IXA}, 16, v{IXA}
        v_add_u32 v{EA}, 32, v{EA}
        s_lshr_b64 {sr(sMASK, 2)}, {sr(sMASK, 2)}, 8
        s_or_b32 s{sMASK + 1}, s{sMASK + 1}, s{sHB}
        s_mov_b32 s{sHB}, 0
        s_mov_b32 s{sTM}, s{sMASK}
        s_add_u32 s{sI}, s{sI}, 8
        """)
        if prio:
            t2, t1, t0 = self.opt("p2", 12), self.opt("p1", 8), self.opt("p0", 4)
            a(f"""
            s_sub_u32 s{sREM}, s{sREM}, 4
            s_cmp_gt_i32 s{sREM}, {t2}
            s_cbranch_scc1 {loop}
            s_setprio 2
            s_cmp_gt_i32 s{sREM}, {t1}
            s_cbranch_scc1 {loop}
            s_setprio 1
            s_cmp_gt_i32 s{sREM}, {t0}
            s_cbranch_scc1 {loop}
            s_setprio 0
            """)
        a(f"s_branch {loop}")
        for jj in range(4):
            pb = jj & 1
            b = f"L_blk_{tag}_{jj}"
            a.reset_hist()
            a(f"""
            {b}:
            s_waitcnt vmcnt(11)
            s_cmp_eq_u32 s{sI}, 0
            s_cbranch_scc1 {b}_w
            s_waitcnt vmcnt(3)
            {b}_w:
            """)
            self.reads(jj)
            a(f"s_bitcmp1_b32 s{sMASK}, {2 * jj}\ns_cbranch_scc1 {b}_f0")
            self.edge(pb, 0, exact, False)
            a(f"{b}_a:\ns_bitcmp1_b32 s{sMASK}, {2 * jj + 1}\ns_cbranch_scc1 {b}_f1")
            self.edge(pb, 1, exact, False)
            a(f"s_branch L_back_{tag}_{jj}")
            for which in range(2):
                a.reset_hist()
                a(f"""
                {b}_f{which}:
                s_add_u32 s{sA}, s{sI}, {2 * jj + which}
                s_cmp_eq_u32 s{sA}, s{sNE}
                s_cbranch_scc1 {fin}
                v_readlane_b32 s{sB}, v{INFO}, s{sA}
                """)

                def mid():
                    a(f"""
                    s_and_b32 s{sC}, s{sB}, 0xffff
                    s_lshr_b32 s{sD}, s{sB}, 16
                    v_add_u32 v{QA}, s{sC}, v{L4}
                    ds_read2st64_b32 {vr(Q, 2)}, v{QA} offset0:0 offset1:1
                    ds_read2st64_b32 {vr(Q + 2, 2)}, v{QA} offset0:2 offset1:3
                    """)

                n = self.flush(exact, mid)
                a(f"""
                v_xor_b32 v{AG}, s{sD}, v{L8}
                s_waitcnt lgkmcnt({n})
                """)
                self.edge(pb, which, exact, True)
                a(f"s_branch {b + '_a' if which == 0 else f'L_back_{tag}_{jj}'}")
        a.reset_hist()
        a.label(fin)
        self.flush(exact, final=True)
        a(f"s_branch {exit_label}")

    def zero_agg(self, addr, zq):
        a = self.a
        lab = a.newlabel("zagg")
        a(f"""
        ds_write_b128 v{addr}, {vr(zq, 4)}
        s_cmp_lt_u32 s{sW}, 4
        s_cbranch_scc0 {lab}
        ds_write_b128 v{addr}, {vr(zq, 4)} offset:16384
        {lab}:
        """)

    def u2_loads(self):
        a = self.a
        a(f"""
        s_lshl_b32 s{sA}, s{sW}, 14
        s_add_u32 s{sA}, s{sA}, {W_UT + 8192}
        s_add_u32 s{sB}, s{sA}, 4096
        v_lshlrev_b32 v{TM}, 4, v{LANE}
        """)
        for s in range(8):
            so = sA if s < 4 else sB
            a(f"buffer_load_dwordx4 {vr(UF + 4 * s, 4)}, v{TM}, {sr(sWS, 4)}, s{so} offen offset:{(s & 3) * 1024} sc1")

    def hi_passes(self, fn):
        a = self.a
        fn(0)
        fn(1)
        lab = a.newlabel("hp")
        a(f"s_cmp_eq_u64 {sr(sVAL + 4, 2)}, 0\ns_cbranch_scc1 {lab}")
        fn(2)
        fn(3)
        a.label(lab)

    def rec_issue(self, S):
        a = self.a
        a(f"""
        s_lshl_b32 s{sA}, s{sP0}, 2
        s_lshl_b32 s{sB}, s{sP0}, 5
        v_mov_b32 v{S.tmp}, {OOB}
        s_add_u32 s{sC}, s{sA}, 4
        s_add_u32 s{sD}, s{sA}, 8
        v_cmp_lt_i32 {sr(sVAL, 2)}, s{sA}, v{CQ}
        s_add_u32 s{sA}, s{sA}, 12
        v_cmp_lt_i32 {sr(sVAL + 2, 2)}, s{sC}, v{CQ}
        v_cmp_lt_i32 {sr(sVAL + 4, 2)}, s{sD}, v{CQ}
        v_cmp_lt_i32 {sr(sVAL + 6, 2)}, s{sA}, v{CQ}
        s_cmp_gt_u32 s{sNP}, 1
        s_cselect_b64 {sr(sVAL + 2, 2)}, {sr(sVAL + 2, 2)}, 0
        s_cselect_b64 {sr(sVAL + 4, 2)}, {sr(sVAL + 4, 2)}, 0
        s_cselect_b64 {sr(sVAL + 6, 2)}, {sr(sVAL + 6, 2)}, 0
        """)
        lab = a.newlabel("hp")
        a(f"s_cmp_eq_u64 {sr(sVAL + 4, 2)}, 0\ns_cbranch_scc1 {lab}")
        for k in (2, 3, 0, 1):
            if k == 0:
                a.label(lab)
            a(f"""
            v_cndmask_b32 v{S.adr + k}, v{S.tmp}, v{RBA}, {sr(sVAL + 2 * k, 2)}
            buffer_load_dwordx2 {vr(S.rec[k], 2)}, v{S.adr + k}, {sr(sWS, 4)}, s{sB} offen offset:{32 * k} sc1
            """)

    def count(self, S):
        a = self.a
        a(f"v_mov_b32 v{S.tmp}, 1\ns_mov_b32 s{sA}, {CNTN}")

        def one(k):
            a(f"""
            s_mov_b64 exec, {sr(sVAL + 2 * k, 2)}
            v_bfe_u32 v{S.adr + k}, v{S.rec[k]}, 16, 6
            v_lshl_add_u32 v{S.adr + k}, v{S.adr + k}, 2, s{sA}
            ds_add_rtn_u32 v{S.rank + k}, v{S.adr + k}, v{S.tmp}
            """)
        self.hi_passes(one)
        a("s_mov_b64 exec, -1")

    def lists(self, S, generic_label):
        a = self.a
        sc = S.tmp
        done = a.newlabel("lists")
        a(f"""
        s_mov_b32 s{sA}, {CNTN}
        v_lshl_add_u32 v{sc + 3}, v{LANE}, 2, s{sA}
        v_mov_b32 v{sc + 2}, {MISC}
        ds_read_b32 v{sc}, v{sc + 3}
        ds_read_b32 v{sc + 2}, v{sc + 2}
        s_waitcnt lgkmcnt(0)
        v_mov_b32 v{sc + 1}, v{sc}
        v_readfirstlane_b32 s{sMAXC}, v{sc + 2}
        v_cmp_eq_u32 {sr(sZ, 2)}, 0, v{sc}
        v_subrev_u32 v{sc}, {DL}, v{sc}
        """)
        self.scan(sc + 1)
        a(f"""
        v_readlane_b32 s{sM}, v{sc + 1}, 63
        v_sub_u32 v{sc + 1}, v{sc + 1}, v{sc}
        s_cmp_eq_u32 s{sNP}, {NPASS}
        s_cbranch_scc0 {done}
        s_cmp_gt_u32 s{sM}, 1024
        s_cbranch_scc1 {generic_label}
        s_cmp_eq_u32 s{sMAXC}, 0
        s_cbranch_scc0 {generic_label}
        s_cmp_lt_u32 s{sM}, 64
        s_cbranch_scc0 {done}
        s_mov_b32 s{sMODE}, 1
        {done}:
        """)
        self.hi_passes(lambda k: a(f"ds_bpermute_b32 v{S.adr + k}, v{S.adr + k}, v{sc + 1}"))
        a(f"""
        s_add_u32 s{sA}, s{sM}, 1
        s_lshr_b32 s{sA}, s{sA}, 1
        s_mul_i32 s{sB}, s{sA}, s{sW}
        s_add_u32 s{sC}, s{sB}, s{sA}
        s_lshr_b32 s{sI}, s{sB}, 4
        s_lshr_b32 s{sC}, s{sC}, 4
        s_sub_u32 s{sREM}, s{sC}, s{sI}
        s_lshl_b32 s{sC}, s{sC}, 1
        s_cmp_lt_u32 s{sC}, s{sM}
        s_cselect_b32 s{sCO}, 1, 0
        s_min_u32 s{sC}, s{sC}, s{sM}
        s_lshl_b32 s{sI}, s{sI}, 1
        s_sub_u32 s{sNE}, s{sC}, s{sI}
        s_mov_b32 s{sA}, {(IL - 2 * DL) & 0xffffffff}
        s_mov_b32 s{sB}, {(EL - 4 * DL) & 0xffffffff}
        s_waitcnt lgkmcnt(0)
        """)

        def one(k):
            a(f"""
            s_mov_b64 exec, {sr(sVAL + 2 * k, 2)}
            v_add_u32 v{S.rank + k}, v{S.rank + k}, v{S.adr + k}
            v_lshl_add_u32 v{S.adr + k}, v{S.rank + k}, 1, s{sA}
            v_lshl_add_u32 v{sc + (k & 1)}, v{S.rank + k}, 2, s{sB}
            ds_write_b8_d16_hi v{S.rank + k}, v{S.rec[k]}
            ds_write_b16 v{S.adr + k}, v{S.rec[k]}
            ds_write_b32 v{sc + (k & 1)}, v{S.rec[k] + 1}
            """)
        self.hi_passes(one)
        a("s_mov_b64 exec, -1")

    def setup(self, tm):
        a = self.a
        a(f"""
        s_add_u32 s{sD}, s{sI}, {DL - 1}
        v_add_u32 v{INFO}, s{sD}, v{LANE}
        s_lshl_b32 s{sA}, s{sI}, 1
        s_add_u32 s{sA}, s{sA}, {IL}
        v_lshl_add_u32 v{EA}, v{LANE}, 1, s{sA}
        ds_read_u16 v{tm + 3}, v{EA}
        ds_read_u8 v{tm}, v{INFO}
        ds_read_u8 v{tm + 2}, v{INFO} offset:1
        ds_read_u8 v{tm + 1}, v{INFO} offset:2
        s_cmp_lt_u32 s{sW}, 9
        s_mov_b32 s{sC}, {PILB}
        s_cselect_b32 s{sC}, {PILA}, s{sC}
        s_mul_i32 s{sB}, s{sW}, 192
        s_add_u32 s{sB}, s{sB}, s{sC}
        v_lshl_add_u32 v{INFO}, v{LANE}, 1, s{sB}
        v_mov_b32 v{tm + 4}, 0xffff
        v_cmp_gt_i32 vcc, s{sNE}, v{LANE}
        s_mov_b32 exec_hi, 0
        ds_write_b16 v{INFO}, v{tm + 4} offset:128
        s_mov_b64 exec, -1
        v_lshrrev_b32 v{IXA}, 5, v{LANE}
        v_lshl_add_u32 v{IXA}, v{IXA}, 1, s{sB}
        s_lshl_b32 s{sA}, s{sI}, 2
        s_add_u32 s{sA}, s{sA}, {EL}
        v_mov_b32 v{EA}, s{sA}
        s_waitcnt lgkmcnt(4)
        v_cndmask_b32 v{tm + 3}, v{tm + 4}, v{tm + 3}, vcc
        ds_write_b16 v{INFO}, v{tm + 3}
        """)
        for k in range(5):
            a(f"ds_read_u16 v{IX0 + k}, v{IXA} offset:{4 * k}")
        a(f"""
        s_waitcnt lgkmcnt(7)
        v_cmp_ne_u32 {sr(sMASK, 2)}, v{tm + 2}, v{tm + 1}
        v_cmp_eq_u32 vcc, v{tm + 2}, v{tm}
        v_mul_u32_u24 v{INFO}, {QS}, v{tm + 2}
        v_and_b32 v{tm + 1}, 15, v{tm + 2}
        v_lshlrev_b32 v{tm + 1}, 4, v{tm + 1}
        v_lshl_add_u32 v{tm + 1}, v{tm + 2}, 9, v{tm + 1}
        v_lshl_or_b32 v{INFO}, v{tm + 1}, 16, v{INFO}
        s_sub_u32 s{sA}, s{sNE}, 1
        s_bitcmp0_b64 {sr(sMASK, 2)}, s{sA}
        s_cselect_b32 s{sCO}, s{sCO}, 0
        s_bitset1_b64 {sr(sMASK, 2)}, s{sA}
        v_readfirstlane_b32 s{sB}, v{INFO}
        ; end-of-segment bits become start-of-segment bits; bit 64 is carried separately
        s_lshr_b32 s{sHB2}, s{sMASK + 1}, 31
        s_lshl_b32 s{sHB2}, s{sHB2}, 24
        s_lshl_b64 {sr(sMASK, 2)}, {sr(sMASK, 2)}, 1
        s_and_b32 s{sC}, vcc_lo, 1
        s_cmp_eq_u32 s{sI}, 0
        s_cselect_b32 s{sC}, 0, s{sC}
        s_cmp_eq_u32 s{sMODE}, 0
        s_cselect_b32 s{sC}, s{sC}, 0
        s_lshl_b32 s{sA}, s{sW}, 9
        s_add_u32 s{sA}, s{sA}, {SIDE ^ AB}
        s_lshr_b32 s{sD}, s{sB}, 16
        s_cmp_eq_u32 s{sC}, 0
        s_cselect_b32 s{sAG0}, s{sD}, s{sA}
        s_and_b32 s{sQ0}, s{sB}, 0xffff
        """)

    def slot_consts(self):
        self.a(f"""
        s_lshl_b32 s{sA}, s{sW}, 11
        s_add_u32 s{sSLOT}, s{sA}, {RING + ROFF[0]}
        s_add_u32 s{sSLOT + 1}, s{sA}, {RING + ROFF[1]}
        s_add_u32 s{sSLOT + 2}, s{sA}, {RING + ROFF[2]}
        s_add_u32 s{sSLOT + 3}, s{sA}, {RING + ROFF[3]}
        v_and_b32 v{IA + 1}, 31, v{LANE}
        v_lshlrev_b32 v{IA + 1}, 4, v{IA + 1}
        """)

    def lane_consts(self):
        self.a(f"""
        v_lshl_add_u32 v{RG}, v{LANE}, 1, s{sSLOT}
        v_lshlrev_b32 v{L4}, 2, v{LANE}
        v_lshlrev_b32 v{L8}, 3, v{LANE}
        v_or_b32 v{L8}, {AB}, v{L8}
        """)

    def side_fill(self, tmp, adr):
        self.a(f"""
        v_mov_b64 {vr(tmp, 2)}, -1
        s_lshl_b32 s{sA}, s{sW}, 9
        s_add_u32 s{sA}, s{sA}, {SIDE}
        v_lshl_add_u32 v{adr}, v{LANE}, 3, s{sA}
        ds_write_b64 v{adr}, {vr(tmp, 2)}
        """)

    def tag_calc(self):
        self.a(f"""
        v_readfirstlane_b32 s{sTAG}, v{W3}
        v_readfirstlane_b32 s{sTAG + 1}, v{W3 + 1}
        s_add_u32 s{sTAG}, s{sTAG}, 1
        s_addc_u32 s{sTAG + 1}, s{sTAG + 1}, 0
        s_lshl_b32 s{sTLO}, s{sTAG + 1}, 20
        s_lshl_b32 s{sRA}, s{sTAG}, 24
        s_bfe_u32 s{sRB}, s{sTAG}, 0x100008
        """)

    def clean(self, S):
        a = self.a
        lp, ok = a.newlabel("clean"), a.newlabel("cleanok")
        a(f"s_mov_b32 s{sM}, 0\n{lp}:\ns_mov_b64 s[40:41], 0")

        def one(k):
            a(f"""
            s_mov_b64 exec, {sr(sVAL + 2 * k, 2)}
            v_xor_b32 v{S.rec[k]}, s{sRA}, v{S.rec[k]}
            v_xor_b32 v{S.rec[k] + 1}, s{sRB}, v{S.rec[k] + 1}
            v_lshrrev_b32 v{S.adr + k}, 24, v{S.rec[k]}
            v_lshl_or_b32 v{S.adr + k}, v{S.rec[k] + 1}, 16, v{S.adr + k}
            v_cmp_ne_u32 vcc, 0, v{S.adr + k}
            s_or_b64 s[40:41], s[40:41], vcc
            """)
        self.hi_passes(one)
        a(f"""
        s_mov_b64 exec, -1
        s_cmp_eq_u64 s[40:41], 0
        s_cbranch_scc1 {ok}
        s_add_u32 s{sM}, s{sM}, 1
        s_cmp_gt_u32 s{sM}, {POLL_LIMIT}
        s_cbranch_scc1 {ok}
        """)
        self.rec_issue(S)
        a(f"s_waitcnt vmcnt(0)\ns_branch {lp}\n{ok}:")

    def binning(self):
        a = self.a
        DV, SV, EP, AD, RK, RV, H0, B0, SQ, t4, t5, t6, t7 = 24, 26, 28, 30, 32, 34, 40, 44, 48, 52, 53, 54, 56
        a(f"""
        s_mov_b32 s{sC}, -40
        s_mov_b32 s{sD}, {HIST}
        v_mov_b32 v{t4}, 1
        v_mov_b32 v{t7}, {S1C}
        v_lshlrev_b32 v{t5}, 4, v{LANE}
        v_add_u32 v{t6}, {HIST}, v{t5}
        s_waitcnt vmcnt(1)
        """)
        self.stamp("edges")
        self.tag_calc()
        R2 = range(2)
        for i in R2:
            a(f"v_mul_u32_u24 v{AD + i}, 52429, v{DV + i}")
        for i in R2:
            a(f"v_lshrrev_b32 v{AD + i}, 21, v{AD + i}")
        for i in R2:
            a(f"v_min_u32 v{RK + i}, 255, v{AD + i}")
        for i in R2:
            a(f"v_and_b32 v{AD + i}, 7, v{RK + i}\nv_lshrrev_b32 v{H0 + i}, 3, v{RK + i}")
        for i in R2:
            a(f"v_lshl_or_b32 v{AD + i}, v{AD + i}, 5, v{H0 + i}")
        for i in R2:
            a(f"v_lshl_add_u32 v{AD + i}, v{AD + i}, 2, s{sD}")
        for i in R2:
            a(f"v_mad_i32_i24 v{DV + i}, v{RK + i}, s{sC}, v{DV + i}")
            a(f"ds_add_rtn_u32 v{RK + i}, v{AD + i}, v{t4}")
        a(f"s_mov_b64 exec, 1\nds_add_u32 v{t7}, v{t4}\ns_mov_b64 exec, -1")
        for i in R2:
            a(f"v_lshl_or_b32 v{RV + 2 * i}, v{DV + i}, 16, v{SV + i}")
        a(f"""
        v_mov_b32 v{RV + 3}, 0xffff0000
        v_lshl_or_b32 v{RV + 1}, v{EP}, 16, s{sRB}
        v_and_or_b32 v{RV + 3}, v{EP}, v{RV + 3}, s{sRB}
        v_or_b32 v{RV}, s{sRA}, v{RV}
        v_or_b32 v{RV + 2}, s{sRA}, v{RV + 2}
        """)
        self.spin(S1C, 5, t7, f"ds_read_b128 {vr(H0, 4)}, v{t6}")
        a(f"""
        v_add_u32 v{B0 + 1}, v{H0}, v{H0 + 1}
        v_add_u32 v{SQ}, v{H0 + 2}, v{H0 + 3}
        v_add_u32 v{SQ}, v{SQ}, v{B0 + 1}
        v_mov_b32 v{SQ + 1}, v{SQ}
        """)
        self.scan(SQ + 1)
        a(f"""
        v_sub_u32 v{B0}, v{SQ + 1}, v{SQ}
        v_add_u32 v{B0 + 2}, v{B0}, v{B0 + 1}
        v_add_u32 v{B0 + 1}, v{B0}, v{H0}
        v_add_u32 v{B0 + 3}, v{B0 + 2}, v{H0 + 2}
        ds_write_b128 v{t6}, {vr(B0, 4)} offset:{BASE - HIST}
        ds_read_b32 v{DV}, v{AD} offset:{BASE - HIST}
        ds_read_b32 v{DV + 1}, v{AD + 1} offset:{BASE - HIST}
        s_mov_b32 s{sD}, {SORT}
        v_mov_b32 v{t7}, {S2C}
        v_lshlrev_b32 v{t5}, 4, v{TID}
        v_add_u32 v{t6}, {SORT}, v{t5}
        s_mul_i32 s{sB}, s{sT}, {EC * 8}
        s_add_u32 s{sB}, s{sB}, {W_RECS}
        s_waitcnt lgkmcnt(0)
        v_add_u32 v{DV}, v{DV}, v{RK}
        v_add_u32 v{DV + 1}, v{DV + 1}, v{RK + 1}
        v_lshl_add_u32 v{DV}, v{DV}, 3, s{sD}
        v_lshl_add_u32 v{DV + 1}, v{DV + 1}, 3, s{sD}
        ds_write_b64 v{DV}, {vr(RV, 2)}
        ds_write_b64 v{DV + 1}, {vr(RV + 2, 2)}
        s_mov_b64 exec, 1
        ds_add_u32 v{t7}, v{t4}
        s_mov_b64 exec, -1
        """)
        self.spin(S2C, 5, t7, f"ds_read_b128 {vr(SQ, 4)}, v{t6}")
        a(f"buffer_store_dwordx4 {vr(SQ, 4)}, v{t5}, {sr(sWS, 4)}, s{sB} offen sc1")
        self.stamp("binned")

    def build(self):
        a = self.a
        t0, t1, t2, t3, t4, t5, t6, t7 = range(58, 66)
        PQ = 24
        UQ = 108
        u0, u1, u2, u3 = 57, 58, 59, 60

        if "pad0" in self.opts:
            a("s_memrealtime s[96:97]")
        a(f"""
        s_cmp_ge_u32 s{sT}, {NT}
        s_cbranch_scc1 L_end
        s_load_dwordx16 s[40:55], s[0:1], 0
        s_load_dwordx2 s[56:57], s[0:1], 64
        v_and_b32 v{LANE}, 63, v{TID}
        """)
        if "nocodepf" not in self.opts:
            a(f"""
            s_getpc_b64 s[4:5]
            L_pc:
            """)
            if "fullpf" in self.opts:
                a(f"""
                v_lshlrev_b32 v{t0}, 4, v{TID}
                v_min_u32 v{t0}, L_code_end-L_pc-16, v{t0}
                global_load_dwordx4 {vr(AC2 + 8, 4)}, v{t0}, s[4:5]
                """)
            else:
                a(f"""
                s_lshr_b32 s6, s{sT}, 3
                s_and_b32 s6, s6, 15
                s_lshl_b32 s6, s6, 10
                v_lshl_add_u32 v{t0}, v{TID}, 4, s6
                v_min_u32 v{t0}, L_code_end-L_pc-16, v{t0}
                v_cmp_gt_u32 vcc, 64, v{TID}
                s_cbranch_vccz L_nopf
                global_load_dwordx4 {vr(AC2 + 8, 4)}, v{t0}, s[4:5]
                L_nopf:
                """)
        a(f"""
        v_lshrrev_b32 v{t0}, 6, v{TID}
        v_mov_b32 v{t6}, 0
        v_lshlrev_b32 v{t7}, 2, v{TID}
        v_readfirstlane_b32 s{sW}, v{t0}
        v_add_u32 v{t7}, {HIST}, v{t7}
        s_cmp_lt_u32 s{sW}, 4
        s_cbranch_scc1 L_z1
        s_cmp_gt_u32 s{sW}, 5
        s_cbranch_scc1 L_z2
        v_add_u32 v{t7}, {CNTN - HIST - 1024}, v{t7}
        L_z1:
        ds_write_b32 v{t7}, v{t6}
        L_z2:
        v_lshrrev_b32 v{t3}, 5, v{TID}
        v_and_b32 v{t4}, 31, v{TID}
        v_and_b32 v{t5}, 15, v{t3}
        v_xor_b32 v{t6}, v{t5}, v{t4}
        v_lshlrev_b32 v{t6}, 4, v{t6}
        s_mul_i32 s{sB}, s{sT}, {T * 512}
        v_lshl_add_u32 v{t6}, v{t3}, 9, v{t6}
        v_add_u32 v{GO}, s{sB}, v{t6}
        v_and_b32 v{t6}, 3, v{t5}
        v_lshrrev_b32 v{t7}, 1, v{t5}
        v_and_b32 v{t7}, 4, v{t7}
        v_or_b32 v{t6}, v{t6}, v{t7}
        v_lshlrev_b32 v{t6}, 1, v{t6}
        v_xor_b32 v{t6}, v{t6}, v{t4}
        v_lshlrev_b32 v{t6}, 4, v{t6}
        v_lshl_add_u32 v{WOFF}, v{t5}, 9, v{t6}
        s_and_b32 s{sW1K}, s{sW}, 7
        s_lshl_b32 s{sW1K}, s{sW1K}, 10
        """)
        if self.stamps:
            a(f"v_mov_b32 v{STAMPV}, 0")
            for r in self.STAMP_REGS[:5]:
                a(f"s_mov_b32 s{r}, 0")
        a("s_waitcnt lgkmcnt(0)")

        def srd(s, p, nbytes):
            a(f"""
            s_mov_b32 s{s}, s{p}
            s_mov_b32 s{s + 1}, s{p + 1}
            s_mov_b32 s{s + 2}, {nbytes}
            s_mov_b32 s{s + 3}, 0x20000
            """)

        srd(sDST, 46, E * 4)
        srd(sSRC, 44, E * 4)
        srd(sEA, 42, E * 2)
        srd(sX, 40, N * 512)
        srd(sWM, 48, 513 * 512)
        srd(sWU, 50, 512 * 512)
        srd(sWS, 56, WS_SIZE)
        a("s_barrier")
        if self.opt("pad", 0) and "pad0" not in self.opts:
            a("s_memrealtime s[96:97]")
        self.stamp("start")
        EPV = W3
        a(f"""
        v_mov_b32 v{t0}, {W_EPOCH}
        s_cmp_ge_u32 s{sW}, 8
        s_cbranch_scc1 L_role_l
        s_cmp_ge_u32 s{sW}, 5
        s_cbranch_scc1 L_role_u
        s_setprio 3
        v_lshlrev_b32 v{t6}, 3, v{TID}
        v_lshlrev_b32 v{t7}, 2, v{TID}
        s_mul_i32 s{sA}, s{sT}, {EC * 4}
        s_mul_i32 s{sB}, s{sT}, {EC * 2}
        buffer_load_dwordx2 v[24:25], v{t6}, {sr(sDST, 4)}, s{sA} offen
        buffer_load_dwordx2 v[26:27], v{t6}, {sr(sSRC, 4)}, s{sA} offen
        buffer_load_dword v28, v{t7}, {sr(sEA, 4)}, s{sB} offen
        buffer_load_dwordx2 {vr(EPV, 2)}, v{t0}, {sr(sWS, 4)}, 0 offen
        s_sub_u32 s{sA}, s{sW}, 1
        s_and_b32 s{sA}, s{sA}, 7
        s_mul_i32 s{sD}, s{sA}, {NT}
        s_add_u32 s{sD}, s{sD}, s{sT}
        s_lshl_b32 s{sA}, s{sA}, 10
        s_add_u32 m0, s{sA}, {SLOT[3]}
        s_and_b32 s{sA}, s{sD}, 7
        s_bfe_u32 s{sB}, s{sD}, 0x40003
        s_lshr_b32 s{sC}, s{sD}, 7
        s_lshl_b32 s{sUO}, s{sB}, 4
        s_lshl_b32 s{sUG}, s{sC}, 3
        s_add_u32 s{sUO}, s{sUO}, s{sUG}
        s_add_u32 s{sUO}, s{sUO}, s{sA}
        s_lshl_b32 s{sUG}, s{sUO}, 5
        s_add_u32 s{sUG}, s{sUG}, {W_UTAG}
        s_lshl_b32 s{sUO}, s{sUO}, 10
        s_add_u32 s{sUO}, s{sUO}, {W_UT}
        s_lshl_b32 s{sA}, s{sA}, 5
        s_lshl_b32 s{sB}, s{sB}, 5
        s_cmp_lt_u32 s{sD}, 256
        s_cselect_b32 s{sB}, s{sB}, {OOB}
        s_cselect_b32 s{sUO}, s{sUO}, {OOB}
        s_cselect_b32 s{sUG}, s{sUG}, {OOB}
        v_lshrrev_b32 v{t6}, 1, v{LANE}
        v_add_u32 v{t6}, s{sA}, v{t6}
        v_and_b32 v{t5}, 1, v{LANE}
        v_lshlrev_b32 v{t5}, 4, v{t5}
        s_cmp_eq_u32 s{sC}, 0
        s_cbranch_scc1 L_pc_u1
        v_and_b32 v{t7}, 3, v{t6}
        v_lshrrev_b32 v{t6}, 2, v{t6}
        v_lshl_add_u32 v{t6}, v{t7}, 6, v{t6}
        v_add_u32 v{t6}, 256, v{t6}
        L_pc_u1:
        v_lshl_add_u32 v{t6}, v{t6}, 9, v{t5}
        buffer_load_dwordx4 v{t6}, {sr(sWU, 4)}, s{sB} offen lds
        s_branch L_role_done
        L_role_u:
        buffer_load_dwordx2 {vr(EPV, 2)}, v{t0}, {sr(sWS, 4)}, 0 offen
        v_subrev_u32 v{t3}, 10, v{t3}
        s_mul_i32 s{sB}, s{sT}, {T * 512}
        s_lshl_b32 s{sA}, s{sW}, 10
        """)
        for i in range(7):
            if i == 6:
                a(f"""
                s_cmp_eq_u32 s{sW}, 7
                s_cselect_b32 s{sC}, 2, 0
                v_subrev_u32 v{t3}, s{sC}, v{t3}
                s_lshl_b32 s{sC}, s{sC}, 9
                s_sub_u32 s{sA}, s{sA}, s{sC}
                """)
            a(f"""
            v_and_b32 v{t6}, 15, v{t3}
            v_xor_b32 v{t6}, v{t6}, v{t4}
            v_lshlrev_b32 v{t6}, 4, v{t6}
            s_add_u32 m0, s{sA}, {XB - 5120 + 3072 * i}
            v_lshl_add_u32 v{t6}, v{t3}, 9, v{t6}
            v_add_u32 v{t3}, 6, v{t3}
            buffer_load_dwordx4 v{t6}, {sr(sX, 4)}, s{sB} offen lds
            """)
        a(f"""
        s_branch L_role_done
        L_role_l:
        buffer_load_dwordx2 {vr(EPV, 2)}, v{t0}, {sr(sWS, 4)}, 0 offen
        s_lshr_b32 s{sA}, s{sT}, 3
        s_lshl_b32 s{sA}, s{sA}, 13
        s_add_u32 s{sA}, s{sA}, s{sW1K}
        s_lshr_b32 s{sC}, s{sA}, 1
        v_lshlrev_b32 v{t7}, 3, v{LANE}
        buffer_load_dwordx2 {vr(AC2, 2)}, v{t7}, {sr(sWM, 4)}, s{sC} offen
        s_add_u32 s{sC}, s{sC}, 131072
        buffer_load_dwordx2 {vr(AC2 + 2, 2)}, v{t7}, {sr(sWM, 4)}, s{sC} offen
        s_cmp_eq_u32 s{sW}, 15
        s_cbranch_scc0 L_role_done
        s_mov_b32 m0, {W3L}
        v_lshlrev_b32 v{t7}, 4, v{LANE}
        s_mov_b32 s{sB}, {512 * 512}
        buffer_load_dwordx4 v{t7}, {sr(sWM, 4)}, s{sB} offen lds
        L_role_done:
        """)
        UA = W3 - 9 - 5
        srd(sOUT, 52, N * 512)
        a(f"""
        s_add_u32 s{sP}, s56, {W_P}
        s_addc_u32 s{sP + 1}, s57, 0
        s_or_b32 s{sP + 1}, s{sP + 1}, {512 << 16}
        s_mov_b32 s{sP + 2}, {N}
        s_mov_b32 s{sP + 3}, 0x20000
        s_mov_b32 s{sNL2E}, {NLOG2E}
        s_mov_b32 s{sNL2E + 1}, {NLOG2E}
        s_mov_b32 s{sNLN2}, {NLN2}
        s_mov_b32 s{sNLN2 + 1}, {NLN2}
        s_lshl_b32 s{sWK}, s{sW}, 10
        s_lshr_b32 s{sHI}, s{sW}, 3
        s_lshl_b32 s{sHI}, s{sHI}, 13
        s_mov_b32 s{sGEN}, 0
        v_and_b32 v{t0}, 15, v{LANE}
        v_lshrrev_b32 v{t1}, 4, v{LANE}
        v_bfe_u32 v{t2}, v{LANE}, 2, 2
        v_and_b32 v{t3}, 3, v{LANE}
        s_lshl_b32 s{sB}, s{sW}, 1
        v_and_b32 v{t4}, 1, v{t1}
        v_lshl_or_b32 v{t4}, v{t4}, 2, v{t2}
        v_lshlrev_b32 v{t4}, 1, v{t4}
        v_lshrrev_b32 v{t5}, 1, v{t3}
        v_add_u32 v{t5}, s{sB}, v{t5}
        v_xor_b32 v{t4}, v{t4}, v{t5}
        v_lshlrev_b32 v{t4}, 4, v{t4}
        v_and_b32 v{t5}, 1, v{t3}
        v_lshl_add_u32 v{t4}, v{t5}, 3, v{t4}
        v_lshl_add_u32 v{t5}, v{t1}, 3, v{t2}
        v_lshl_add_u32 v{TR0}, v{t5}, 9, v{t4}
        v_add_u32 v{TR1}, 65536, v{TR0}
        v_lshlrev_b32 v{t5}, 5, v{t5}
        v_lshl_add_u32 v{UA + 9}, v{t3}, 3, v{t5}
        v_lshlrev_b32 v{t5}, 9, v{t0}
        v_add_u32 v{t5}, {XB}, v{t5}
        """)
        for k in range(4):
            a(f"""
            v_add_u32 v{t4}, {4 * k}, v{t1}
            v_xor_b32 v{t4}, v{t4}, v{t0}
            v_lshl_add_u32 v{XA + k}, v{t4}, 4, v{t5}
            """)
        a(f"""
        v_lshrrev_b32 v{t4}, 1, v{t1}
        v_add_u32 v{t4}, s{sB}, v{t4}
        v_xor_b32 v{t4}, v{t4}, v{t0}
        v_lshlrev_b32 v{t4}, 4, v{t4}
        v_and_b32 v{t6}, 1, v{t1}
        v_lshl_add_u32 v{t4}, v{t6}, 3, v{t4}
        v_lshl_add_u32 v{t4}, v{t0}, 9, v{t4}
        v_add_u32 v{STG}, {PS}, v{t4}
        v_lshlrev_b32 v{STR}, 4, v{TID}
        v_add_u32 v{STR}, {PS}, v{STR}
        v_add_u32 v{GO2}, 16384, v{GO}
        s_cmp_lt_u32 s{sW}, 4
        s_cbranch_scc1 L_go2
        v_mov_b32 v{GO2}, {OOB}
        L_go2:
        s_cmp_lt_u32 s{sW}, 5
        s_cbranch_scc0 L_nobin
        """)
        self.binning()
        a(f"""
        s_cmp_eq_u32 s{sW}, 0
        s_cbranch_scc0 L_piece
        v_lshlrev_b32 v{t0}, 3, v{LANE}
        v_add_u32 v{t0}, {HIST}, v{t0}
        ds_read_b64 {vr(66, 2)}, v{t0}
        ds_read_b64 {vr(68, 2)}, v{t0} offset:{BASE - HIST}
        ds_read_b64 {vr(70, 2)}, v{t0} offset:512
        ds_read_b64 {vr(72, 2)}, v{t0} offset:{BASE - HIST + 512}
        v_lshlrev_b32 v{t1}, 4, v{LANE}
        s_lshl_b32 s{sB}, s{sT}, 11
        s_add_u32 s{sB}, s{sB}, {W_OFFS}
        s_waitcnt lgkmcnt(0)
        """)
        for i in range(4):
            h, b = 66 + 4 * (i >> 1) + (i & 1), 68 + 4 * (i >> 1) + (i & 1)
            a(f"""
            v_lshl_or_b32 v{ACC + 2 * i}, v{h}, 10, v{b}
            v_mov_b32 v{ACC + 2 * i + 1}, s{sTAG}
            v_or_b32 v{ACC + 2 * i}, s{sTLO}, v{ACC + 2 * i}
            """)
        a(f"""
        buffer_store_dwordx4 {vr(ACC, 4)}, v{t1}, {sr(sWS, 4)}, s{sB} offen sc1
        buffer_store_dwordx4 {vr(ACC + 4, 4)}, v{t1}, {sr(sWS, 4)}, s{sB} offen offset:1024 sc1
        s_setprio 0
        s_branch L_bin_done
        L_piece:
        s_setprio 0
        s_cmp_lt_u32 s{sW}, 3
        s_cbranch_scc0 L_bin_done
        s_lshl_b32 s{sA}, s{sW}, 10
        s_add_u32 s{sA}, s{sA}, {SLOT[3] - 1024}
        v_add_u32 v{UA + 9}, s{sA}, v{UA + 9}
        v_lshlrev_b32 v{W3 + 2}, 4, v{LANE}
        s_waitcnt vmcnt(1)
        ds_read_b64_tr_b16 {vr(AC2 + 4, 2)}, v{UA + 9}
        ds_read_b64_tr_b16 {vr(AC2 + 6, 2)}, v{UA + 9} offset:128
        s_waitcnt lgkmcnt(0)
        buffer_store_dwordx4 {vr(AC2 + 4, 4)}, v{W3 + 2}, {sr(sWS, 4)}, s{sUO} offen sc1
        s_branch L_bin_done
        L_nobin:
        s_cmp_ge_u32 s{sW}, 8
        s_cbranch_scc1 L_bin_ld
        v_mov_b32 v{W3 + 2}, {XCNT}
        v_mov_b32 v{W3 + 3}, 1
        s_mov_b64 exec, 1
        s_waitcnt vmcnt(4)
        ds_add_u32 v{W3 + 2}, v{W3 + 3}
        s_mov_b64 exec, -1
        s_branch L_bin_done
        L_bin_ld:
        """)
        self.dma_body(0, 0)
        a(f"""
        s_waitcnt vmcnt(6)
        L_bin_done:
        """)
        self.tag_calc()
        self.xpreload(UA + 9)
        self.stamp("xpre")

        R0 = 116
        XBUF = (80, 92)
        fbuf = [UF + 4 * i for i in range(6)] + [56, 60]
        OV, o0, o1, o2, o3, UV = 20, 22, 23, 16, 17, 116

        def frag(i):
            a(f"""
            s_add_u32 s{sB}, s{sUB}, {1024 * i}
            buffer_load_dwordx4 {vr(fbuf[i], 4)}, v{FO}, {sr(sWS, 4)}, s{sB} offen sc1
            """)
            self.vm("LN", f"f{i}")

        def x3(i):
            for rb in range(3):
                a(f"ds_read_b128 {vr(XBUF[i & 1] + 4 * rb, 4)}, v{XA + (i & 3)} offset:{rb * 8192 + (i >> 2) * 256}")
                self.lq.append(f"x{i}")

        def consume(i):
            self.vmwait({f"f{i}"})
            if f"x{i}" in self.lq:
                self.lwait(f"x{i}")
            for rb in range(3):
                cin = "0" if i == 0 else vr(ACC + 4 * rb, 4)
                a(f"v_mfma_f32_16x16x32_bf16 {vr(ACC + 4 * rb, 4)}, {vr(fbuf[i], 4)}, {vr(XBUF[i & 1] + 4 * rb, 4)}, {cin}")
            if i + 2 < 8:
                x3(i + 2)

        def utag_issue(dst, adr):
            a(f"""
            v_lshlrev_b32 v{adr}, 5, v{LANE}
            s_lshl_b32 s{sC}, s{sW}, 9
            s_add_u32 s{sC}, s{sC}, {W_UTAG}
            s_mov_b64 exec, 0xffff
            buffer_load_dwordx2 {vr(dst, 2)}, v{adr}, {sr(sWS, 4)}, s{sC} offen sc1
            s_mov_b64 exec, -1
            """)

        def utag_check(dst):
            a(f"""
            v_cmp_ne_u64 vcc, {sr(sTAG, 2)}, {vr(dst, 2)}
            s_nop 1
            s_and_b32 s{sU}, vcc_lo, 0xffff
            """)

        def offs_issue():
            a(f"""
            s_and_b32 s{sC}, s{sT}, 7
            s_lshl_b32 s{sC}, s{sC}, 8
            s_and_b32 s{sB}, s{sT}, 0xf8
            s_add_u32 s{sC}, s{sC}, s{sB}
            s_add_u32 s{sC}, s{sC}, {W_OFFS}
            buffer_load_dwordx2 {vr(OV, 2)}, v{o0}, {sr(sWS, 4)}, s{sC} offen sc1
            """)

        def offs_check():
            a(f"""
            v_xor_b32 v{o1}, s{sTLO}, v{OV}
            v_cmp_ne_u32 vcc, s{sTAG}, v{OV + 1}
            s_mov_b32 s{sB}, 0x100000
            v_cmp_le_u32 s[40:41], s{sB}, v{o1}
            s_nop 1
            s_or_b64 vcc, vcc, s[40:41]
            s_and_b64 vcc, vcc, {sr(sVAL, 2)}
            """)

        def parse():
            a(f"""
            v_cndmask_b32 v{OV}, 0, v{o1}, {sr(sVAL, 2)}
            v_and_b32 v{o1}, 3, v{TID}
            v_mul_u32_u24 v{o0}, {EC * 8}, v{RBA}
            v_and_b32 v{o2}, 0x3ff, v{OV}
            v_bfe_u32 v{o3}, v{OV}, 10, 10
            v_add_u32 v{o2}, v{o2}, v{o1}
            v_lshl_add_u32 v{o0}, v{o2}, 3, v{o0}
            v_add_u32 v{RBA}, {W_RECS}, v{o0}
            v_sub_u32 v{CQ}, v{o3}, v{o1}
            v_cmp_lt_u32 vcc, {4 * NPASS}, v{o3}
            """)
            lab = a.newlabel("nomax")
            a(f"""
            s_cbranch_vccz {lab}
            v_mov_b32 v{o2}, {MISC}
            s_mov_b64 exec, vcc
            ds_max_u32 v{o2}, v{o3}
            s_mov_b64 exec, -1
            s_waitcnt lgkmcnt(0)
            {lab}:
            """)
            self.rec_issue(SCRP)

        slot = [0, 1, 2, 3, 0, 1, 0, 3]
        nearly = self.opt("early", 2)
        edel = self.opt("edel", 0)
        issue_at = {0: 3}
        for c in range(4, 4 + nearly):
            issue_at[c - 3 + edel] = c

        def gstep(k, lgkm=False, post=None):
            self.vmwait({f"c{k}"})
            self.barrier(f"B{k}", lgkm=lgkm)
            if post:
                post()
            self.trreads(slot[k])
            c = issue_at.get(k)
            self.mfmas(AC2, k & 3, (lambda sp: self.dma_all(c, slot[c], sp)) if c else None)
            if k not in (3, 7):
                self.xreads((k + 1) & 3)

        def look():
            a(f"""
            v_mov_b32 v{o1}, {OOB}
            v_lshrrev_b32 v{RBA}, 2, v{TID}
            v_lshlrev_b32 v{o0}, 11, v{RBA}
            s_movk_i32 s{sA}, {NT}
            v_cmp_gt_u32 {sr(sVAL, 2)}, s{sA}, v{RBA}
            s_mov_b32 s{sP0}, 0
            s_mov_b32 s{sNP}, {NPASS}
            s_mov_b32 s{sMODE}, 0
            v_cndmask_b32 v{o0}, v{o1}, v{o0}, {sr(sVAL, 2)}
            """)
            offs_issue()
            utag_issue(UV, UV + 2)
            self.vm("LN", "offs", 2)

        def piece_tag():
            a(f"s_sub_u32 s{sA}, s{sW}, 1\ns_cmp_lt_u32 s{sA}, 2\ns_cbranch_scc0 L_notag\ns_waitcnt vmcnt(4)")
            self.tag_store(sUG, 116)
            a.label("L_notag")

        kis = self.opt("kis", 2)
        recpos = self.opt("recpos", 0)

        def try_records():
            self.vmwait({"offs"})
            utag_check(UV)
            offs_check()
            a(f"s_mov_b32 s{sE}, 0\ns_cbranch_scc1 L_late")
            parse()
            a(f"s_mov_b32 s{sE}, 1\ns_branch L_intime\nL_late:")
            offs_issue()
            offs_issue()
            a.label("L_intime")
            self.vm("LN", "rec", 2)

        for k in range(4):
            gstep(k, post=piece_tag if k == self.opt('kpt', 0) else None)
            if k == kis:
                look()
            if k == 2 and recpos == -1:
                try_records()
        for rb in range(3):
            for h in range(2):
                a(f"v_pk_mul_f32 {vr(AC2 + 4 * rb + 2 * h, 2)}, {vr(AC2 + 4 * rb + 2 * h, 2)}, {sr(sNL2E, 2)} op_sel_hi:[1,0]")
            a(f"v_cvt_pk_bf16_f32 v{AC2 + 4 * rb}, v{AC2 + 4 * rb}, v{AC2 + 4 * rb + 1}")
            a(f"v_cvt_pk_bf16_f32 v{AC2 + 4 * rb + 1}, v{AC2 + 4 * rb + 2}, v{AC2 + 4 * rb + 3}")
            a(f"ds_write_b64 v{STG}, {vr(AC2 + 4 * rb, 2)} offset:{rb * 8192}")
        if recpos == 0:
            try_records()
        a("s_setprio 3")
        self.barrier("PS")
        a(f"""
        ds_read_b128 {vr(AC2, 4)}, v{STR}
        ds_read_b128 {vr(AC2 + 4, 4)}, v{STR} offset:16384
        """)
        self.xreads(0)
        a(f"""
        s_mov_b32 s{sB}, {W_P}
        s_waitcnt lgkmcnt(3)
        buffer_store_dwordx4 {vr(AC2, 4)}, v{GO}, {sr(sWS, 4)}, s{sB} offen sc1
        s_waitcnt lgkmcnt(2)
        buffer_store_dwordx4 {vr(AC2 + 4, 4)}, v{GO2}, {sr(sWS, 4)}, s{sB} offen sc1
        s_setprio 0
        """)
        self.vm("LN", "p", 2)
        self.stamp("pst")
        if recpos == 2:
            try_records()
        self.stampval("E", sE)
        self.stampval("U", sU)

        def fb():
            a(f"s_lshl_b32 s{sB}, s{sT}, 5\ns_add_u32 s{sB}, s{sB}, {W_FB}")
            self.tag_store(sB, ACC + 8 if kfb == 6 else ACC)

        todo = [(c, m) for c in range(4 + nearly, 8) for m in range(2)]
        kfb = self.opt("kfb", 6)

        def issue(n):
            nonlocal todo
            for c, m in todo[:n]:
                self.dma_all(c, slot[c], m)
            todo = todo[n:]

        if nearly < 2:
            issue(self.opt("npre", 2))
        for k in (4, 5):
            if k == kfb:
                self.vmwait({"p"})
                self.stamp("ack")
            while todo and todo[0][0] <= k:
                issue(1)
            gstep(k, post=(lambda: self.wave0(fb)) if k == kfb else None)
            if k >= kfb and k == 4 and nearly < 2:
                issue(2)
        a(f"""
        s_lshl_b32 s{sUB}, s{sW}, 14
        s_add_u32 s{sUB}, s{sUB}, {W_UT}
        """)
        self.vmwait({"rec"})
        a(f"""
        s_cmp_eq_u32 s{sE}, 1
        s_cbranch_scc1 L_recs_ok
        s_mov_b32 s{sD}, 0
        L_offs_chk:
        """)
        offs_check()
        a(f"""
        s_cbranch_scc0 L_offs_ok
        s_add_u32 s{sD}, s{sD}, 1
        s_cmp_gt_u32 s{sD}, {POLL_LIMIT}
        s_cbranch_scc1 L_offs_ok
        """)
        offs_issue()
        a("s_waitcnt vmcnt(0)\ns_branch L_offs_chk\nL_offs_ok:")
        parse()
        a("s_waitcnt vmcnt(0)\nL_recs_ok:")
        self.stamp("rec")
        self.clean(SCRX)
        self.count(SCRX)
        issue(8)
        if kfb == 6:
            self.vmwait({"p"})
            self.stamp("ack")
        self.barrier("C1")
        if kfb == 6:
            self.wave0(fb)
        a(f"""
        v_lshlrev_b32 v{FO}, 4, v{LANE}
        s_cmp_eq_u32 s{sU}, 0
        s_cbranch_scc1 L_tags_ok
        s_mov_b32 s{sD}, 0
        L_tags:
        """)
        utag_issue(24, 26)
        a(f"s_add_u32 s{sD}, s{sD}, 1\ns_cmp_gt_u32 s{sD}, {POLL_LIMIT}\ns_waitcnt vmcnt(0)\ns_cbranch_scc1 L_tags_ok")
        utag_check(24)
        a("s_cbranch_scc1 L_tags\nL_tags_ok:")
        frag(0)
        frag(1)
        self.lists(SCRX, "L_gen1")
        a.label("L_gen1_back")
        self.side_fill(ACC + 10, ACC + 3)
        frag(2)
        frag(3)
        gstep(6, lgkm=True)
        a(f"s_mov_b32 s{sB}, {W3L}\nv_lshl_add_u32 v{ACC + 3}, v{LANE}, 1, s{sB}")
        for r in range(4):
            a(f"ds_read_u16_d16_hi v{W3 + r}, v{ACC + 3} offset:{128 * r}")
        frag(4)
        frag(5)
        self.setup(ACC + 4)
        frag(6)
        frag(7)
        a(f"""
        v_and_b32 v75, 15, v{LANE}
        v_cmp_gt_u32 {sr(sEX, 2)}, 8, v75
        v_mul_u32_u24 v74, {QS}, v75
        v_and_b32 v75, 48, v{LANE}
        s_lshl_b32 s{sB}, s{sW}, 6
        v_add3_u32 v74, v74, v75, s{sB}
        """)
        self.slot_consts()
        self.stamp("pre")

        def pw():
            self.poll_issue()
            self.poll_wait()
            a(f"s_cmp_eq_u32 s{sT}, 0\ns_cbranch_scc0 L_noep\ns_mov_b32 s{sB}, {W_EPOCH}")
            self.tag_store(sB, POLLB)
            a.label("L_noep")
        self.wave0(pw)
        self.vmwait({"c7"})
        self.barrier("C2")
        self.trreads(slot[7])
        for k in range(2):
            a(f"v_mov_b32 v{IA}, v{IX0 + k}")
            self.gather(k)
            self.vm("LN", "g")
        self.mfmas(AC2, 3)
        x3(0)
        x3(1)
        for rb in range(3):
            for h in range(2):
                a(f"v_pk_mul_f32 {vr(AC2 + 4 * rb + 2 * h, 2)}, {vr(AC2 + 4 * rb + 2 * h, 2)}, {sr(sNL2E, 2)} op_sel_hi:[1,0]")
            if rb == 2:
                a(f"s_mov_b64 exec, {sr(sEX, 2)}")
            a(f"ds_write_b128 v74, {vr(AC2 + 4 * rb, 4)} offset:{QB + rb * 16 * QS}")
            self.lq.append("q")
        a("s_mov_b64 exec, -1")
        self.stamp("q")
        g2, g3 = self.opt("g2", 3), self.opt("g3", 7)
        for i in range(8):
            consume(i)
            if i == 1:
                a("s_barrier")
            for k, g in ((2, g2), (3, g3)):
                if i == g:
                    a(f"v_mov_b32 v{IA}, v{IX0 + k}")
                    self.gather(k)
                    self.vm("LN", "g")
        a(f"v_mov_b32 v{IA}, v{IX0 + 4}")
        for r in range(4):
            a(f"v_mul_f32 v{W3 + r}, s{sNL2E}, v{W3 + r}")
        for h in range(6):
            a(f"v_pk_mul_f32 {vr(ACC + 2 * h, 2)}, {vr(ACC + 2 * h, 2)}, {sr(sNL2E, 2)} op_sel_hi:[1,0]")
        self.lane_consts()
        self.barrier("R")
        a(f"""
        s_cmp_eq_u32 s{sGEN}, 0
        s_cbranch_scc0 L_generic
        s_and_b32 s{sZ + 1}, s{sZ + 1}, 0xff
        s_or_b32 s{sA}, s{sZ}, s{sZ + 1}
        s_or_b32 s{sA}, s{sA}, s{sMODE}
        s_cbranch_scc1 L_clear
        L_r_done:
        s_cmp_gt_i32 s{sNE}, 0
        s_cbranch_scc0 L_empty
        """)
        if "noprio" not in self.opts:
            a("s_setprio 3")
        a(f"""
        ds_read_b64 {vr(EE[0], 2)}, v{EA}
        v_add_u32 v{QA}, s{sQ0}, v{L4}
        ds_read2st64_b32 {vr(Q, 2)}, v{QA} offset0:0 offset1:1
        ds_read2st64_b32 {vr(Q + 2, 2)}, v{QA} offset0:2 offset1:3
        v_xor_b32 v{AG}, s{sAG0}, v{L8}
        v_add_u32 v{CNA}, {CNTN}, v{L4}
        v_mov_b32 v{TZ}, 0
        ds_write_b32 v{CNA}, v{TZ}
        v_mov_b64 {vr(NN, 2)}, 0
        v_mov_b64 {vr(NN + 2, 2)}, 0
        v_mov_b32 v{DD}, 1.0
        v_mov_b32 v{DD + 1}, 1.0
        v_mov_b32 v{DD + 2}, 1.0
        v_mov_b32 v{DD + 3}, 1.0
        v_mov_b64 {vr(CK2, 2)}, 0
        v_mov_b32 v{CK1}, 0
        s_mov_b32 s{sI}, 0
        s_or_b32 s{sTM}, s{sMASK}, 0xff
        """)
        self.stamp("setup")
        a("s_waitcnt vmcnt(3)")
        self.stamp("row0")
        self.p_reads(0, 0)
        a("s_waitcnt lgkmcnt(0)")
        self.gather(0)
        self.u2_loads()
        a(f"""
        s_cmp_eq_u32 s{sMODE}, 0
        s_cbranch_scc0 L_loop_x
        """)
        self.main_loop(False, "L_main_done")
        a.reset_hist()
        a.label("L_main_done")
        a("s_setprio 0")
        self.stamp("loop")
        a(f"""
        v_add_f32 v{CK2}, v{CK2}, v{CK2 + 1}
        v_mov_b32 v{TM}, {BIG}
        v_cmp_u_f32 vcc, v{CK2}, v{CK2}
        v_cmp_nle_f32 s[40:41], v{CK1}, v{TM}
        s_nop 1
        s_or_b64 vcc, vcc, s[40:41]
        s_cbranch_scc0 L_after
        v_mov_b32 v{TM}, {MISC + 4}
        v_mov_b32 v{TM + 1}, 1
        ds_write_b32 v{TM}, v{TM + 1}
        L_after:
        s_waitcnt vmcnt(0)
        """)
        self.barrier("M")
        a(f"""
        v_mov_b32 v{TM}, {MISC + 4}
        ds_read_b32 v{TM + 1}, v{TM}
        """)
        if "oldfin" in self.opts:
            order = [(s_, rb) for s_ in range(8) for rb in range(3)]
        else:
            order = [(s_, rb) for rb in range(3) for s_ in range(8)]
        NB = 12

        def rd(n):
            s_, rb = order[n]
            a(f"ds_read_b128 {vr(XF + 4 * (n % NB), 4)}, v{XA + (s_ & 3)} offset:{rb * 8192 + (s_ >> 2) * 256}")

        for n in range(NB):
            rd(n)
        a(f"""
        s_cmp_eq_u32 s{sMODE}, 0
        s_cbranch_scc0 L_slow_next
        s_waitcnt lgkmcnt(12)
        v_readfirstlane_b32 s{sA}, v{TM + 1}
        s_nop 1
        s_cmp_eq_u32 s{sA}, 0
        s_cbranch_scc0 L_redo
        L_final:
        """)
        TE = 104

        def act(rb):
            ops = []
            for r in range(4):
                ops.append(f"v_exp_f32 v{TE + 4 * rb + r}, v{ACC + 4 * rb + r}")
            for r in range(4):
                ops.append(f"v_add_f32 v{TE + 4 * rb + r}, 1.0, v{TE + 4 * rb + r}")
            for r in range(4):
                ops.append(f"v_rcp_f32 v{TE + 4 * rb + r}, v{TE + 4 * rb + r}")
            for r in range(4):
                ops.append(f"v_mul_f32 v{ACC + 4 * rb + r}, s{sNLN2}, v{ACC + 4 * rb + r}")
            for r in range(4):
                ops.append(f"v_mul_f32 v{ACC + 4 * rb + r}, v{ACC + 4 * rb + r}, v{TE + 4 * rb + r}")
            ops.append(f"v_cvt_pk_bf16_f32 v{TE + 4 * rb}, v{ACC + 4 * rb}, v{ACC + 4 * rb + 1}")
            ops.append(f"v_cvt_pk_bf16_f32 v{TE + 4 * rb + 1}, v{ACC + 4 * rb + 2}, v{ACC + 4 * rb + 3}")
            ops.append(f"ds_write_b64 v{STG}, {vr(TE + 4 * rb, 2)} offset:{rb * 8192}")
            return ops

        pend = []
        lq = [f"r{n}" for n in range(NB)]
        for n in range(24):
            s_, rb = order[n]
            last = lq.index(f"r{n}")
            a(f"s_waitcnt lgkmcnt({len(lq) - 1 - last})")
            lq = lq[last + 1:]
            a(f"v_mfma_f32_16x16x32_bf16 {vr(ACC + 4 * rb, 4)}, {vr(UF + 4 * s_, 4)}, {vr(XF + 4 * (n % NB), 4)}, {vr(ACC + 4 * rb, 4)}")
            if n + NB < 24:
                rd(n + NB)
                lq.append(f"r{n + NB}")
            if "oldfin" not in self.opts:
                if n in (9, 17):
                    pend += act(n // 8 - 1)
                for op in pend[:4]:
                    a(op)
                    if op.startswith("ds_"):
                        lq.append("w")
                pend = pend[4:]
        for op in pend:
            a(op)
        for rb in ([2] if "oldfin" not in self.opts else [0, 1, 2]):
            for op in act(rb):
                a(op)
        self.barrier("F")
        a(f"""
        ds_read_b128 {vr(PQ + 8, 4)}, v{STR}
        ds_read_b128 {vr(PQ + 12, 4)}, v{STR} offset:16384
        s_waitcnt lgkmcnt(1)
        buffer_store_dwordx4 {vr(PQ + 8, 4)}, v{GO}, {sr(sOUT, 4)}, 0 offen sc1
        s_waitcnt lgkmcnt(0)
        buffer_store_dwordx4 {vr(PQ + 12, 4)}, v{GO2}, {sr(sOUT, 4)}, 0 offen sc1
        """)
        if self.opt("pad", 0):
            a(f"""
            L_pad:
            s_memrealtime s[98:99]
            s_waitcnt lgkmcnt(0)
            s_sub_u32 s98, s98, s96
            s_cmp_lt_u32 s98, {self.opt("pad", 0)}
            s_cbranch_scc1 L_pad
            """)
        if self.stamps:
            a.label("L_diag_end")
            a("s_waitcnt vmcnt(0)")
            self.stamp("end")
            a(f"""
            s_lshl_b32 s{sA}, s{sT}, 4
            s_add_u32 s{sA}, s{sA}, s{sW}
            s_lshl_b32 s{sA}, s{sA}, 8
            s_add_u32 s{sA}, s{sA}, {W_STAMP}
            v_lshlrev_b32 v{TM}, 2, v{LANE}
            buffer_store_dword v{STAMPV}, v{TM}, {sr(sWS, 4)}, s{sA} offen
            """)
        a.label("L_end")
        a("s_endpgm")
        a.reset_hist()
        a(f"""
        L_gen1:
        s_mov_b32 s{sGEN}, 1
        s_mov_b32 s{sI}, 0
        s_mov_b32 s{sNE}, 0
        s_branch L_gen1_back
        L_clear:
        v_mov_b64 {vr(XF, 2)}, 0
        v_mov_b64 {vr(XF + 2, 2)}, 0
        v_add_u32 v{XF + 4}, {AB - PS}, v{STR}
        """)
        self.zero_agg(XF + 4, XF)
        a(f"""
        s_waitcnt lgkmcnt(0)
        s_barrier
        s_branch L_r_done
        L_generic:
        s_waitcnt vmcnt(0) lgkmcnt(0)
        s_barrier
        v_mov_b64 {vr(XF, 2)}, 0
        v_mov_b64 {vr(XF + 2, 2)}, 0
        v_add_u32 v{XF + 4}, {AB - PS}, v{STR}
        """)
        self.zero_agg(XF + 4, XF)
        a(f"""
        v_add_u32 v{CNA}, {CNTN}, v{L4}
        v_mov_b32 v{TZ}, 0
        ds_write_b32 v{CNA}, v{TZ}
        s_mov_b32 s{sNP}, 1
        s_mov_b32 s{sMODE}, 1
        s_waitcnt lgkmcnt(0)
        s_barrier
        L_round:
        """)
        self.slot_consts()
        self.lane_consts()
        self.rec_issue(SCR2)
        a("s_waitcnt vmcnt(0)")
        self.clean(SCR2)
        self.count(SCR2)
        a("s_waitcnt lgkmcnt(0)\ns_barrier")
        self.lists(SCR2, "L_generic")
        a("s_waitcnt lgkmcnt(0)\ns_barrier")
        self.setup(SCR2.tmp)
        a(f"""
        s_waitcnt lgkmcnt(0)
        """)
        for k in range(4):
            a(f"v_mov_b32 v{IA}, v{IX0 + k}")
            self.gather(k)
        a(f"""
        v_mov_b32 v{IA}, v{IX0 + 4}
        s_branch L_r_done
        L_empty:
        v_add_u32 v{CNA}, {CNTN}, v{L4}
        v_mov_b32 v{TZ}, 0
        ds_write_b32 v{CNA}, v{TZ}
        """)
        self.u2_loads()
        a(f"""
        s_branch L_after
        L_slow_next:
        s_cmp_eq_u32 s{sNP}, {NPASS}
        s_cbranch_scc1 L_final
        s_add_u32 s{sP0}, s{sP0}, 1
        s_max_u32 s{sA}, s{sMAXC}, {4 * NPASS}
        s_lshl_b32 s{sB}, s{sP0}, 2
        s_cmp_lt_u32 s{sB}, s{sA}
        s_cbranch_scc0 L_final
        s_waitcnt lgkmcnt(0)
        s_branch L_round
        L_redo:
        s_waitcnt lgkmcnt(0)
        s_barrier
        s_mov_b32 s{sMODE}, 1
        v_mov_b64 {vr(XF, 2)}, 0
        v_mov_b64 {vr(XF + 2, 2)}, 0
        v_add_u32 v{XF + 4}, {AB - PS}, v{STR}
        """)
        self.zero_agg(XF + 4, XF)
        a("s_branch L_round")
        self.main_loop(True, "L_after")
        a.label("L_code_end")

    def text(self):
        hdr = f"""; Fused MPNN edge-MLP kernel: P = x W1 published per tile, edges binned by destination tile,
; @launch grid=({NT},1,1) block=(1024,1,1) lds={LDS_TOTAL}
.amdgcn_target "amdgcn-amd-amdhsa--gfx950"
.text
.globl {NAME}_kernel
.p2align 8
.type {NAME}_kernel,@function
{NAME}_kernel:
"""
        ftr = f""".section .rodata,"a"
.p2align 6
.amdhsa_kernel {NAME}_kernel
  .amdhsa_next_free_vgpr 128
  .amdhsa_next_free_sgpr 102
  .amdhsa_accum_offset 128
  .amdhsa_group_segment_fixed_size 0
  .amdhsa_kernarg_size 72
  .amdhsa_user_sgpr_count 2
  .amdhsa_user_sgpr_kernarg_segment_ptr 1
  .amdhsa_system_sgpr_workgroup_id_x 1
.end_amdhsa_kernel
"""
        return hdr + self.a.text() + ftr


if __name__ == "__main__":
    out = [x for x in sys.argv[1:] if not x.startswith("--")]
    g = Gen(opts=[x[2:] for x in sys.argv[1:] if x.startswith("--")])
    g.build()
    txt = g.text()
    if g.stamps:
        txt = "; stamps: " + ",".join(g.names) + "\n" + txt
    open(out[0] if out else "cdna_kernels/%s.s" % NAME, "w").write(txt)
    print("nops inserted:", g.a.nops, "lines:", len(g.a.lines), "stamps:", g.nstamp)
```

```python
import sys
import struct
from asmlib import Asm

NAME = "gather_scatter__mpnn_edge_mlp__graph"
N, E, D = 10000, 160000, 256
T, NT, EC = 40, 250, 640

SLOT = (0, 32768, 65536, 98304)
XB = 131072
SIDE = 41984
PILA, PILB = 158880, 162112 - 9 * 192
HIST, BASE, SORT, USC = 151552, 152576, 153600, 158720
CNTN, MISC = 160768, 161024
IL, EL, DL = 151552, 153664, 157824
QB, QS = 0, 1040
AB = XB
RING = 65536
ROFF = (0, 1024, 32768, 33792)
PS = 65536
LDS_TOTAL = 163840

W_EPOCH, W_FA, W_FB = 0, 0x1000, 0x3000
W_OFFS, W_RECS, W_UT, W_P = 0x10000, 0x90000, 0x700000, 0x200000
W_UTAG = 0x6000
W_STAMP = 0x800000
WS_SIZE = 0xA00000
OOB = 0x80000000
POLL_LIMIT = 200000


def f2u(x):
    return struct.unpack("<I", struct.pack("<f", x))[0]


NLOG2E = f2u(-1.4426950408889634)
NLN2 = f2u(-0.6931471805599453)
BIG = f2u(2.0 ** 120)


def vr(a, n=1):
    return "v%d" % a if n == 1 else "v[%d:%d]" % (a, a + n - 1)


def sr(a, n=1):
    return "s%d" % a if n == 1 else "s[%d:%d]" % (a, a + n - 1)


TID, LANE = 0, 1
XA = 2
STG, GO, GO2, STR = 6, 7, 8, 9
RBA, CQ = 10, 11
ACC = 12
UF = 24
XR = 24
XF2, WF = 88, 96
AC2 = 104
XF = 56
WOFF, TR0, TR1 = 120, 121, 122
STAMPV = 123
W3 = 124
NPASS = 4
POLLB = 16
FO = 120
W3L = MISC + 64
XCNT, S1C, S2C, ACKC, BACK = MISC + 8, MISC + 12, MISC + 16, MISC + 20, MISC + 24


class Scratch:
    def __init__(self, rec, adr, rank, tmp):
        self.rec, self.adr, self.rank, self.tmp = rec, adr, rank, tmp


REC1 = [116, 118, 124, 126]
SCRP = Scratch(REC1, 12, None, 18)
SCRX = Scratch(REC1, ACC, ACC + 4, ACC + 8)
SCR2 = Scratch([24, 26, 28, 30], 40, 44, 48)
CNA = 109
PA = (56, 64)
EE = (72, 74)
IA, Q, QE, Y, TT, NN, DD = 76, 78, 86, 90, 94, 98, 102
CK2, CK1 = 106, 108
RG, IXA, EA, QA, AG, L4, L8, INFO, TM, IOF = 82, 116, 117, 112, 113, 83, 84, 118, 120, 85
TZ = 115
IX0 = 64

sT, sW = 2, 3
sX, sWM, sWU, sWS, sP, sOUT, sSRC, sDST, sEA = 4, 8, 12, 16, 20, 24, 28, 32, 36
sNL2E, sNLN2, sWK, sW1K = 58, 60, 62, 63
sMASK, sI, sNE, sREM, sTRIP, sSLOT = 64, 66, 67, 68, 69, 70
sM, sP0, sNP, sMAXC, sFIRST, sMODE = 74, 75, 76, 77, 78, 79
sVAL = 80
sA, sB, sC, sD = 88, 89, 90, 91
sEX = 42
sCO = 48
sHI, sTAG, sTLO, sGEN = 49, 52, 56, 57
sQ0, sAG0 = 44, 45
sUO, sUG, sUB, sE = 64, 65, 38, 39
sZ, sU, sRA, sRB = 6, 30, 29, 31
sTM, sHB = 28, 69
sHB2 = sHB


class Gen:
    def __init__(self, opts=()):
        self.opts = set(opts)
        self.a = Asm()
        self.stamps = "stamps" in self.opts
        self.nstamp = 0
        self.names = []
        self.lq = []
        self.q = {"L": [], "N": []}

    def opt(self, name, default):
        for o in self.opts:
            if o.startswith(name + "="):
                return int(o.split("=")[1])
        return default

    STAMP_REGS = [92, 94, 96, 98, 100, 50, 54, 4, 12, 14, 32, 34, 36]

    def stampval(self, name, sreg):
        sel = [o[3:].split("+") for o in self.opts if o.startswith("st=")]
        if not self.stamps or not sel or name not in sel[0]:
            return
        k = self.nstamp
        self.nstamp += 1
        self.names.append("=" + name)
        self.a(f"s_add_u32 s{self.STAMP_REGS[k]}, s{sreg}, 1")

    def stamp(self, name):
        if not self.stamps:
            return
        sel = [o[3:].split("+") for o in self.opts if o.startswith("st=")]
        if name not in ("start", "end") and sel and name not in sel[0]:
            return
        k = self.nstamp
        self.nstamp += 1
        self.names.append(name)
        if "dbg" in self.opts:
            self.a(f"s_memrealtime {sr(self.STAMP_REGS[k], 2)}")
            if name == "end":
                a = self.a
                a("s_load_dwordx2 s[40:41], s[0:1], 56\ns_waitcnt lgkmcnt(0)")
                a(f"s_not_b32 s44, s{self.STAMP_REGS[0]}\nv_writelane_b32 v{STAMPV}, s44, 15")
                for i in range(self.nstamp):
                    a(f"v_writelane_b32 v{STAMPV}, s{self.STAMP_REGS[i]}, {i}")
                a(f"""
                s_mov_b32 s42, 64
                s_mov_b32 s43, 0x20000
                v_lshlrev_b32 v{TM}, 2, v{LANE}
                s_cmp_eq_u32 s{sW}, 0
                s_cbranch_scc0 L_end
                buffer_atomic_umax v{STAMPV}, v{TM}, s[40:43], 0 offen
                s_branch L_end
                """)
            return
        if name in ("start", "end"):
            self.a(f"""
            s_memrealtime s[40:41]
            s_waitcnt lgkmcnt(0)
            v_writelane_b32 v{STAMPV}, s40, {0 if name == "start" else 1}
            """)
        self.a(f"s_memtime {sr(self.STAMP_REGS[k], 2)}")
        if name == "end":
            self.a("s_waitcnt lgkmcnt(0)")
            for i in range(self.nstamp):
                self.a(f"v_writelane_b32 v{STAMPV}, s{self.STAMP_REGS[i]}, {32 + i}")

    def vm(self, roles, tag, n=1):
        for r in roles:
            self.q[r] += [tag] * n

    def vmwait(self, tags):
        need = {}
        for r, lst in self.q.items():
            last = max((i for i, t in enumerate(lst) if t in tags), default=None)
            if last is None:
                need[r] = None
            else:
                need[r] = len(lst) - 1 - last
                self.q[r] = lst[last + 1:]
        a = self.a
        if need["L"] == need["N"]:
            if need["L"] is not None:
                a(f"s_waitcnt vmcnt({need['L']})")
            return
        lab = a.newlabel("vw")
        if need["N"] is None:
            a(f"s_cmp_lt_u32 s{sW}, 8\ns_cbranch_scc1 {lab}\ns_waitcnt vmcnt({need['L']})\n{lab}:")
        elif need["L"] is None:
            a(f"s_cmp_ge_u32 s{sW}, 8\ns_cbranch_scc1 {lab}\ns_waitcnt vmcnt({need['N']})\n{lab}:")
        elif need["L"] > need["N"]:
            a(f"s_waitcnt vmcnt({need['L']})\ns_cmp_ge_u32 s{sW}, 8\ns_cbranch_scc1 {lab}\ns_waitcnt vmcnt({need['N']})\n{lab}:")
        else:
            a(f"s_waitcnt vmcnt({need['N']})\ns_cmp_lt_u32 s{sW}, 8\ns_cbranch_scc1 {lab}\ns_waitcnt vmcnt({need['L']})\n{lab}:")

    def lwait(self, tag):
        last = max(i for i, t in enumerate(self.lq) if t == tag)
        self.a(f"s_waitcnt lgkmcnt({len(self.lq) - 1 - last})")
        self.lq = self.lq[last + 1:]

    def barrier(self, name, lgkm=True):
        for o in self.opts:
            if o.startswith("padat=") and o.split("=")[1].split(":")[0] == name:
                self.a(f"""
                L_padat:
                s_memrealtime s[98:99]
                s_waitcnt lgkmcnt(0)
                s_sub_u32 s98, s98, s96
                s_cmp_lt_u32 s98, {o.split(":")[1]}
                s_cbranch_scc1 L_padat
                """)
        if lgkm:
            self.a("s_waitcnt lgkmcnt(0)")
        self.a("s_barrier")
        self.stamp(name)

    def dma_body(self, k, slot, role="L"):
        a = self.a
        if f"noc{k}" in self.opts:
            for m in range(4):
                a(f"s_mov_b32 m0, {USC + 1024}\ns_mov_b32 s{sB}, {OOB}\nbuffer_load_dwordx4 v{WOFF}, {sr(sWM, 4)}, s{sB} offen lds")
            self.vm(role, f"c{k}", 4)
            return
        srd, base = ((sWM, 0), (sWM, 131072))[k // 4]
        c = k % 4
        for m in range(4):
            a(f"""
            s_add_u32 m0, s{sW1K}, {SLOT[slot] + m * 8192}
            s_mov_b32 s{sB}, {base + c * 32768 + m * 8192}
            buffer_load_dwordx4 v{WOFF}, {sr(srd, 4)}, s{sB} offen lds
            """)
        self.vm(role, f"c{k}", 4)

    def dma_all(self, k, slot, m):
        a = self.a
        srd, base = ((sWM, 0), (sWM, 131072))[k // 4]
        a(f"""
        s_add_u32 m0, s{sWK}, {SLOT[slot] + m * 16384}
        s_add_u32 s{sB}, s{sHI}, {base + (k % 4) * 32768 + m * 16384}
        buffer_load_dwordx4 v{WOFF}, {sr(srd, 4)}, s{sB} offen lds
        """)
        self.vm("LN", f"c{k}")

    def spin(self, ctr, target, tmp, extra=None):
        a = self.a
        lab = a.newlabel("spin")
        a(f"v_mov_b32 v{tmp}, {ctr}")
        a.label(lab)
        a(f"ds_read_b32 v{tmp + 1}, v{tmp}")
        if extra:
            a(extra)
        a(f"""
        s_waitcnt lgkmcnt(0)
        v_readfirstlane_b32 s{sA}, v{tmp + 1}
        s_nop 0
        s_cmp_lt_u32 s{sA}, {target}
        s_cbranch_scc1 {lab}
        """)

    def xspin(self, shift):
        a = self.a
        lab = a.newlabel("xs")
        a(f"""
        {lab}:
        ds_read_b32 v{WF + 1}, v{WF}
        s_waitcnt lgkmcnt(0)
        v_readfirstlane_b32 s{sA}, v{WF + 1}
        s_nop 0
        s_bfe_u32 s{sA}, s{sA}, {shift | (4 << 16)}
        s_cmp_lt_u32 s{sA}, 3
        s_cbranch_scc0 {lab}_ok
        s_sleep 1
        s_branch {lab}
        {lab}_ok:
        """)

    def touch(self):
        a = self.a
        l2, done = a.newlabel("tw2"), a.newlabel("tdone")
        a(f"""
        s_lshr_b32 s{sA}, s{sT}, 3
        s_lshl_b32 s{sA}, s{sA}, 12
        s_mov_b32 m0, {USC + 1024}
        v_lshlrev_b32 v{W3 + 2}, 4, v{LANE}
        s_cmp_eq_u32 s{sW}, 5
        s_cbranch_scc0 {l2}
        """)
        for m in range(4):
            a(f"s_add_u32 s{sB}, s{sA}, {1024 * m}\nbuffer_load_dwordx4 v{W3 + 2}, {sr(sWU, 4)}, s{sB} offen lds")
        a(f"s_branch {done}\n{l2}:\ns_cmp_eq_u32 s{sW}, 6\ns_cbranch_scc0 {done}")
        for m in range(4):
            a(f"s_add_u32 s{sB}, s{sA}, {131072 + 1024 * m}\nbuffer_load_dwordx4 v{W3 + 2}, {sr(sWM, 4)}, s{sB} offen lds")
        a.label(done)

    def xpreload(self, ua):
        a = self.a
        a(f"v_mov_b32 v{WF}, {XCNT}")
        self.xspin(0)
        self.stamp("xa")
        for s in range(8):
            a(f"ds_read_b128 {vr(XR + 4 * s, 4)}, v{XA + (s & 3)} offset:{(s >> 2) * 256}")
        a(f"""
        s_cmp_lt_u32 s{sW}, 5
        s_cbranch_scc1 L_xp_go
        s_cmp_ge_u32 s{sW}, 8
        s_cbranch_scc1 L_xp_go
        v_mov_b32 v{W3 + 3}, 16
        s_mov_b64 exec, 1
        s_waitcnt vmcnt(0)
        ds_add_u32 v{WF}, v{W3 + 3}
        s_mov_b64 exec, -1
        """)
        a.label("L_xp_go")
        self.xspin(4)
        self.stamp("xb")
        for s in range(8):
            a(f"ds_read_b128 {vr(XR + 32 + 4 * s, 4)}, v{XA + (s & 3)} offset:{8192 + (s >> 2) * 256}")
        self.xreads(0)
        a(f"s_cmp_lt_u32 s{sW}, 8\ns_cbranch_scc1 L_xp_c2")
        self.dma_body(1, 1)
        a("s_branch L_xp_done\nL_xp_c2:")
        self.dma_body(2, 2, "N")
        a.label("L_xp_done")

    def xreads(self, c):
        a = self.a
        for sp in range(2):
            s = 2 * c + sp
            a(f"ds_read_b128 {vr(XF2 + 4 * sp, 4)}, v{XA + (s & 3)} offset:{2 * 8192 + (s >> 2) * 256}")

    def trreads(self, slot):
        a = self.a
        base = SLOT[slot]
        tr = TR0 if base < 65536 else TR1
        for sp in range(2):
            for p in range(2):
                a(f"ds_read_b64_tr_b16 {vr(WF + 4 * sp + 2 * p, 2)}, v{tr} offset:{(base & 65535) + 16384 * sp + 2048 * p}")

    def mfmas(self, acc, c, between=None):
        a = self.a
        for sp in range(2):
            if between:
                between(sp)
            a(f"s_waitcnt lgkmcnt({2 - 2 * sp})")
            for rb in range(3):
                cin = "0" if (c == 0 and sp == 0) else vr(acc + 4 * rb, 4)
                b = XR + 32 * rb + 4 * (2 * c + sp) if rb < 2 else XF2 + 4 * sp
                a(f"v_mfma_f32_16x16x32_bf16 {vr(acc + 4 * rb, 4)}, {vr(WF + 4 * sp, 4)}, {vr(b, 4)}, {cin}")

    def scan(self, v):
        a = self.a
        for sh in (1, 2, 4, 8):
            a(f"v_add_u32_dpp v{v}, v{v}, v{v} row_shr:{sh} row_mask:0xf bank_mask:0xf bound_ctrl:0")
        a(f"v_add_u32_dpp v{v}, v{v}, v{v} row_bcast:15 row_mask:0xa bank_mask:0xf")
        a(f"v_add_u32_dpp v{v}, v{v}, v{v} row_bcast:31 row_mask:0xc bank_mask:0xf")

    def poll_issue(self):
        a = self.a
        a(f"v_lshlrev_b32 v14, 5, v{LANE}\ns_mov_b32 s{sB}, {W_FB}\ns_mov_b32 s{sD}, {W_FB + 4096}")
        for k in range(4):
            a(f"buffer_load_dwordx2 {vr(POLLB + 2 * k, 2)}, v14, {sr(sWS, 4)}, s{sB if k < 2 else sD} offen offset:{2048 * (k & 1)} sc1")

    def poll_wait(self):
        a = self.a
        lp, chk, done = a.newlabel("poll"), a.newlabel("pchk"), a.newlabel("pdone")
        a(f"s_mov_b32 s{sC}, 0\ns_branch {chk}")
        a.label(lp)
        self.poll_issue()
        a.label(chk)
        m58 = (1 << (NT - 192)) - 1
        a(f"""
        s_waitcnt vmcnt(0)
        v_cmp_ne_u64 s[40:41], {sr(sTAG, 2)}, {vr(POLLB, 2)}
        v_cmp_ne_u64 vcc, {sr(sTAG, 2)}, {vr(POLLB + 2, 2)}
        v_cmp_ne_u64 s[88:89], {sr(sTAG, 2)}, {vr(POLLB + 4, 2)}
        v_cmp_ne_u64 s[46:47], {sr(sTAG, 2)}, {vr(POLLB + 6, 2)}
        s_nop 1
        s_and_b32 s47, s47, {m58 >> 32}
        s_or_b64 s[40:41], s[40:41], vcc
        s_or_b64 s[46:47], s[88:89], s[46:47]
        s_or_b64 s[40:41], s[40:41], s[46:47]
        s_cbranch_scc0 {done}
        s_add_u32 s{sC}, s{sC}, 1
        s_cmp_lt_u32 s{sC}, {POLL_LIMIT}
        s_cbranch_scc1 {lp}
        """)
        a.label(done)

    def tag_store(self, soff, tmp):
        a = self.a
        a(f"""
        v_mov_b32 v{tmp}, s{sTAG}
        v_mov_b32 v{tmp + 1}, s{sTAG + 1}
        v_lshlrev_b32 v{tmp + 2}, 24, v{LANE}
        buffer_store_dwordx2 {vr(tmp, 2)}, v{tmp + 2}, {sr(sWS, 4)}, s{soff} offen sc1
        """)

    def wave0(self, fn):
        a = self.a
        lab = a.newlabel("w0")
        a(f"s_cmp_eq_u32 s{sW}, 0\ns_cbranch_scc0 {lab}")
        fn()
        a.label(lab)

    def edge(self, pb, which, exact, first):
        a = self.a
        if "noedge" in self.opts:
            return
        p = PA[pb] + 4 * which
        sel = "op_sel:[1,0,0] op_sel_hi:[1,1,1]" if which else "op_sel:[0,0,0] op_sel_hi:[0,1,1]"
        y = NN if (first and not exact) else Y
        for h in range(2):
            a(f"v_pk_fma_f32 {vr(QE + 2 * h, 2)}, {vr(EE[pb], 2)}, {vr(W3 + 2 * h, 2)}, {vr(Q + 2 * h, 2)} {sel}")
        for h in range(2):
            a(f"v_pk_add_f32 {vr(y + 2 * h, 2)}, {vr(p + 2 * h, 2)}, {vr(QE + 2 * h, 2)}")
        for r in range(4):
            a(f"v_exp_f32 v{TT + r}, v{y + r}")
        if exact:
            for h in range(2):
                a(f"v_pk_add_f32 {vr(TT + 2 * h, 2)}, {vr(TT + 2 * h, 2)}, 1.0 op_sel_hi:[1,0]")
            for r in range(4):
                a(f"v_rcp_f32 v{TT + r}, v{TT + r}")
            for h in range(2):
                if first:
                    a(f"v_pk_mul_f32 {vr(NN + 2 * h, 2)}, {vr(Y + 2 * h, 2)}, {vr(TT + 2 * h, 2)}")
                else:
                    a(f"v_pk_fma_f32 {vr(NN + 2 * h, 2)}, {vr(Y + 2 * h, 2)}, {vr(TT + 2 * h, 2)}, {vr(NN + 2 * h, 2)}")
        elif first:
            for h in range(2):
                a(f"v_pk_add_f32 {vr(DD + 2 * h, 2)}, {vr(TT + 2 * h, 2)}, 1.0 op_sel_hi:[1,0]")
        else:
            for h in range(2):
                a(f"v_pk_fma_f32 {vr(NN + 2 * h, 2)}, {vr(NN + 2 * h, 2)}, {vr(TT + 2 * h, 2)}, {vr(NN + 2 * h, 2)}")
            for h in range(2):
                a(f"v_pk_fma_f32 {vr(NN + 2 * h, 2)}, {vr(Y + 2 * h, 2)}, {vr(DD + 2 * h, 2)}, {vr(NN + 2 * h, 2)}")
            for h in range(2):
                a(f"v_pk_fma_f32 {vr(DD + 2 * h, 2)}, {vr(DD + 2 * h, 2)}, {vr(TT + 2 * h, 2)}, {vr(DD + 2 * h, 2)}")

    def flush(self, exact, mid=None, final=False):
        a = self.a
        if exact:
            if mid:
                mid()
            a(f"v_cvt_pk_bf16_f32 v{TT}, v{NN}, v{NN + 1}")
            a(f"v_cvt_pk_bf16_f32 v{TT + 1}, v{NN + 2}, v{NN + 3}")
            a(f"ds_pk_add_bf16 v{AG}, v{TT}")
            a(f"ds_pk_add_bf16 v{AG}, v{TT + 1} offset:4")
            return 2
        for r in range(4):
            a(f"v_rcp_f32 v{TT + r}, v{DD + r}")
        if mid:
            mid()
        a(f"v_max3_f32 v{CK1}, v{CK1}, v{DD}, v{DD + 1}")
        a(f"v_max3_f32 v{CK1}, v{CK1}, v{DD + 2}, v{DD + 3}")
        for h in range(2):
            a(f"v_pk_mul_f32 {vr(Y + 2 * h, 2)}, {vr(NN + 2 * h, 2)}, {vr(TT + 2 * h, 2)}")
        for h in range(2):
            a(f"v_pk_fma_f32 {vr(CK2, 2)}, {vr(Y + 2 * h, 2)}, 0, {vr(CK2, 2)} op_sel_hi:[1,0,1]")
        if final:
            a(f"""
            s_cmp_eq_u32 s{sCO}, 0
            s_cbranch_scc1 L_noside
            s_lshl_b32 s{sA}, s{sW}, 9
            s_add_u32 s{sA}, s{sA}, {(SIDE + 512) ^ AB}
            v_xor_b32 v{QA}, s{sA}, v{L8}
            s_mov_b32 s{sC}, 0
            L_side:
            ds_read_b64 {vr(TT, 2)}, v{QA}
            s_add_u32 s{sC}, s{sC}, 1
            s_waitcnt lgkmcnt(0)
            v_cmp_eq_u64 vcc, -1, {vr(TT, 2)}
            s_cmp_gt_u32 s{sC}, 4000
            s_cbranch_scc1 L_side_go
            s_cbranch_vccnz L_side
            L_side_go:
            v_lshlrev_b32 v{QE}, 16, v{TT}
            v_and_b32 v{QE + 1}, 0xffff0000, v{TT}
            v_lshlrev_b32 v{QE + 2}, 16, v{TT + 1}
            v_and_b32 v{QE + 3}, 0xffff0000, v{TT + 1}
            v_pk_add_f32 {vr(Y, 2)}, {vr(Y, 2)}, {vr(QE, 2)}
            v_pk_add_f32 {vr(Y + 2, 2)}, {vr(Y + 2, 2)}, {vr(QE + 2, 2)}
            L_noside:
            """)
        a(f"v_cvt_pk_bf16_f32 v{TT}, v{Y}, v{Y + 1}")
        a(f"v_cvt_pk_bf16_f32 v{TT + 1}, v{Y + 2}, v{Y + 3}")
        a(f"ds_write_b64 v{AG}, {vr(TT, 2)}")
        return 1

    def p_reads(self, pb, slot):
        a = self.a
        for row in range(2):
            for r in range(4):
                a(f"ds_read_u16_d16_hi v{PA[pb] + 4 * row + r}, v{RG} offset:{ROFF[slot] + row * 512 + r * 128}")

    def gather(self, slot):
        if "nodma" in self.opts:
            return
        self.a(f"""
        s_mov_b32 m0, s{sSLOT + slot}
        buffer_load_dwordx4 {vr(IA, 2)}, {sr(sP, 4)}, 0 idxen offen sc1 lds
        """)

    def reads(self, jj):
        a = self.a
        pb = jj & 1
        self.p_reads(pb ^ 1, (jj + 1) & 3)
        a(f"ds_read_b64 {vr(EE[pb ^ 1], 2)}, v{EA} offset:{8 * (jj + 1)}")
        a(f"ds_read_u16 v{IA}, v{IXA} offset:{4 * (jj + 5)}")

    def main_loop(self, exact, exit_label):
        a = self.a
        tag = "x" if exact else "f"
        loop, fin = f"L_loop_{tag}", f"L_fin_{tag}"
        prio = not exact and "noprio" not in self.opts
        a.label(loop)
        for jj in range(4):
            a(f"s_and_b32 s{sA}, s{sTM}, {3 << (2 * jj)}\ns_cbranch_scc1 L_blk_{tag}_{jj}\ns_waitcnt vmcnt(3)")
            self.reads(jj)
            self.edge(jj & 1, 0, exact, False)
            self.edge(jj & 1, 1, exact, False)
            a.label(f"L_back_{tag}_{jj}")
            a(f"s_mov_b32 m0, s{sSLOT + ((jj + 1) & 3)}\ns_waitcnt lgkmcnt(0)")
            if "nodma" not in self.opts:
                a(f"buffer_load_dwordx4 {vr(IA, 2)}, {sr(sP, 4)}, 0 idxen offen sc1 lds")
        a(f"""
        v_add_u32 v{IXA}, 16, v{IXA}
        v_add_u32 v{EA}, 32, v{EA}
        s_lshr_b64 {sr(sMASK, 2)}, {sr(sMASK, 2)}, 8
        s_or_b32 s{sMASK + 1}, s{sMASK + 1}, s{sHB}
        s_mov_b32 s{sHB}, 0
        s_mov_b32 s{sTM}, s{sMASK}
        s_add_u32 s{sI}, s{sI}, 8
        """)
        if prio:
            t2, t1, t0 = self.opt("p2", 12), self.opt("p1", 8), self.opt("p0", 4)
            a(f"""
            s_sub_u32 s{sREM}, s{sREM}, 4
            s_cmp_gt_i32 s{sREM}, {t2}
            s_cbranch_scc1 {loop}
            s_setprio 2
            s_cmp_gt_i32 s{sREM}, {t1}
            s_cbranch_scc1 {loop}
            s_setprio 1
            s_cmp_gt_i32 s{sREM}, {t0}
            s_cbranch_scc1 {loop}
            s_setprio 0
            """)
        a(f"s_branch {loop}")
        for jj in range(4):
            pb = jj & 1
            b = f"L_blk_{tag}_{jj}"
            a.reset_hist()
            a(f"""
            {b}:
            s_waitcnt vmcnt(11)
            s_cmp_eq_u32 s{sI}, 0
            s_cbranch_scc1 {b}_w
            s_waitcnt vmcnt(3)
            {b}_w:
            """)
            self.reads(jj)
            a(f"s_bitcmp1_b32 s{sMASK}, {2 * jj}\ns_cbranch_scc1 {b}_f0")
            self.edge(pb, 0, exact, False)
            a(f"{b}_a:\ns_bitcmp1_b32 s{sMASK}, {2 * jj + 1}\ns_cbranch_scc1 {b}_f1")
            self.edge(pb, 1, exact, False)
            a(f"s_branch L_back_{tag}_{jj}")
            for which in range(2):
                a.reset_hist()
                a(f"""
                {b}_f{which}:
                s_add_u32 s{sA}, s{sI}, {2 * jj + which}
                s_cmp_eq_u32 s{sA}, s{sNE}
                s_cbranch_scc1 {fin}
                v_readlane_b32 s{sB}, v{INFO}, s{sA}
                """)

                def mid():
                    a(f"""
                    s_and_b32 s{sC}, s{sB}, 0xffff
                    s_lshr_b32 s{sD}, s{sB}, 16
                    v_add_u32 v{QA}, s{sC}, v{L4}
                    ds_read2st64_b32 {vr(Q, 2)}, v{QA} offset0:0 offset1:1
                    ds_read2st64_b32 {vr(Q + 2, 2)}, v{QA} offset0:2 offset1:3
                    """)

                n = self.flush(exact, mid)
                a(f"""
                v_xor_b32 v{AG}, s{sD}, v{L8}
                s_waitcnt lgkmcnt({n})
                """)
                self.edge(pb, which, exact, True)
                a(f"s_branch {b + '_a' if which == 0 else f'L_back_{tag}_{jj}'}")
        a.reset_hist()
        a.label(fin)
        self.flush(exact, final=True)
        a(f"s_branch {exit_label}")

    def zero_agg(self, addr, zq):
        a = self.a
        lab = a.newlabel("zagg")
        a(f"""
        ds_write_b128 v{addr}, {vr(zq, 4)}
        s_cmp_lt_u32 s{sW}, 4
        s_cbranch_scc0 {lab}
        ds_write_b128 v{addr}, {vr(zq, 4)} offset:16384
        {lab}:
        """)

    def u2_loads(self):
        a = self.a
        a(f"""
        s_lshl_b32 s{sA}, s{sW}, 14
        s_add_u32 s{sA}, s{sA}, {W_UT + 8192}
        s_add_u32 s{sB}, s{sA}, 4096
        v_lshlrev_b32 v{TM}, 4, v{LANE}
        """)
        for s in range(8):
            so = sA if s < 4 else sB
            a(f"buffer_load_dwordx4 {vr(UF + 4 * s, 4)}, v{TM}, {sr(sWS, 4)}, s{so} offen offset:{(s & 3) * 1024} sc1")

    def hi_passes(self, fn):
        a = self.a
        fn(0)
        fn(1)
        lab = a.newlabel("hp")
        a(f"s_cmp_eq_u64 {sr(sVAL + 4, 2)}, 0\ns_cbranch_scc1 {lab}")
        fn(2)
        fn(3)
        a.label(lab)

    def rec_issue(self, S):
        a = self.a
        a(f"""
        s_lshl_b32 s{sA}, s{sP0}, 2
        s_lshl_b32 s{sB}, s{sP0}, 5
        v_mov_b32 v{S.tmp}, {OOB}
        s_add_u32 s{sC}, s{sA}, 4
        s_add_u32 s{sD}, s{sA}, 8
        v_cmp_lt_i32 {sr(sVAL, 2)}, s{sA}, v{CQ}
        s_add_u32 s{sA}, s{sA}, 12
        v_cmp_lt_i32 {sr(sVAL + 2, 2)}, s{sC}, v{CQ}
        v_cmp_lt_i32 {sr(sVAL + 4, 2)}, s{sD}, v{CQ}
        v_cmp_lt_i32 {sr(sVAL + 6, 2)}, s{sA}, v{CQ}
        s_cmp_gt_u32 s{sNP}, 1
        s_cselect_b64 {sr(sVAL + 2, 2)}, {sr(sVAL + 2, 2)}, 0
        s_cselect_b64 {sr(sVAL + 4, 2)}, {sr(sVAL + 4, 2)}, 0
        s_cselect_b64 {sr(sVAL + 6, 2)}, {sr(sVAL + 6, 2)}, 0
        """)
        lab = a.newlabel("hp")
        a(f"s_cmp_eq_u64 {sr(sVAL + 4, 2)}, 0\ns_cbranch_scc1 {lab}")
        for k in (2, 3, 0, 1):
            if k == 0:
                a.label(lab)
            a(f"""
            v_cndmask_b32 v{S.adr + k}, v{S.tmp}, v{RBA}, {sr(sVAL + 2 * k, 2)}
            buffer_load_dwordx2 {vr(S.rec[k], 2)}, v{S.adr + k}, {sr(sWS, 4)}, s{sB} offen offset:{32 * k} sc1
            """)

    def count(self, S):
        a = self.a
        a(f"v_mov_b32 v{S.tmp}, 1\ns_mov_b32 s{sA}, {CNTN}")

        def one(k):
            a(f"""
            s_mov_b64 exec, {sr(sVAL + 2 * k, 2)}
            v_bfe_u32 v{S.adr + k}, v{S.rec[k]}, 16, 6
            v_lshl_add_u32 v{S.adr + k}, v{S.adr + k}, 2, s{sA}
            ds_add_rtn_u32 v{S.rank + k}, v{S.adr + k}, v{S.tmp}
            """)
        self.hi_passes(one)
        a("s_mov_b64 exec, -1")

    def lists(self, S, generic_label):
        a = self.a
        sc = S.tmp
        done = a.newlabel("lists")
        a(f"""
        s_mov_b32 s{sA}, {CNTN}
        v_lshl_add_u32 v{sc + 3}, v{LANE}, 2, s{sA}
        v_mov_b32 v{sc + 2}, {MISC}
        ds_read_b32 v{sc}, v{sc + 3}
        ds_read_b32 v{sc + 2}, v{sc + 2}
        s_waitcnt lgkmcnt(0)
        v_mov_b32 v{sc + 1}, v{sc}
        v_readfirstlane_b32 s{sMAXC}, v{sc + 2}
        v_cmp_eq_u32 {sr(sZ, 2)}, 0, v{sc}
        v_subrev_u32 v{sc}, {DL}, v{sc}
        """)
        self.scan(sc + 1)
        a(f"""
        v_readlane_b32 s{sM}, v{sc + 1}, 63
        v_sub_u32 v{sc + 1}, v{sc + 1}, v{sc}
        s_cmp_eq_u32 s{sNP}, {NPASS}
        s_cbranch_scc0 {done}
        s_cmp_gt_u32 s{sM}, 1024
        s_cbranch_scc1 {generic_label}
        s_cmp_eq_u32 s{sMAXC}, 0
        s_cbranch_scc0 {generic_label}
        s_cmp_lt_u32 s{sM}, 64
        s_cbranch_scc0 {done}
        s_mov_b32 s{sMODE}, 1
        {done}:
        """)
        self.hi_passes(lambda k: a(f"ds_bpermute_b32 v{S.adr + k}, v{S.adr + k}, v{sc + 1}"))
        a(f"""
        s_add_u32 s{sA}, s{sM}, 1
        s_lshr_b32 s{sA}, s{sA}, 1
        s_mul_i32 s{sB}, s{sA}, s{sW}
        s_add_u32 s{sC}, s{sB}, s{sA}
        s_lshr_b32 s{sI}, s{sB}, 4
        s_lshr_b32 s{sC}, s{sC}, 4
        s_sub_u32 s{sREM}, s{sC}, s{sI}
        s_lshl_b32 s{sC}, s{sC}, 1
        s_cmp_lt_u32 s{sC}, s{sM}
        s_cselect_b32 s{sCO}, 1, 0
        s_min_u32 s{sC}, s{sC}, s{sM}
        s_lshl_b32 s{sI}, s{sI}, 1
        s_sub_u32 s{sNE}, s{sC}, s{sI}
        s_mov_b32 s{sA}, {(IL - 2 * DL) & 0xffffffff}
        s_mov_b32 s{sB}, {(EL - 4 * DL) & 0xffffffff}
        s_waitcnt lgkmcnt(0)
        """)

        def one(k):
            a(f"""
            s_mov_b64 exec, {sr(sVAL + 2 * k, 2)}
            v_add_u32 v{S.rank + k}, v{S.rank + k}, v{S.adr + k}
            v_lshl_add_u32 v{S.adr + k}, v{S.rank + k}, 1, s{sA}
            v_lshl_add_u32 v{sc + (k & 1)}, v{S.rank + k}, 2, s{sB}
            ds_write_b8_d16_hi v{S.rank + k}, v{S.rec[k]}
            ds_write_b16 v{S.adr + k}, v{S.rec[k]}
            ds_write_b32 v{sc + (k & 1)}, v{S.rec[k] + 1}
            """)
        self.hi_passes(one)
        a("s_mov_b64 exec, -1")

    def setup(self, tm):
        a = self.a
        a(f"""
        s_add_u32 s{sD}, s{sI}, {DL - 1}
        v_add_u32 v{INFO}, s{sD}, v{LANE}
        s_lshl_b32 s{sA}, s{sI}, 1
        s_add_u32 s{sA}, s{sA}, {IL}
        v_lshl_add_u32 v{EA}, v{LANE}, 1, s{sA}
        ds_read_u16 v{tm + 3}, v{EA}
        ds_read_u8 v{tm}, v{INFO}
        ds_read_u8 v{tm + 2}, v{INFO} offset:1
        ds_read_u8 v{tm + 1}, v{INFO} offset:2
        s_cmp_lt_u32 s{sW}, 9
        s_mov_b32 s{sC}, {PILB}
        s_cselect_b32 s{sC}, {PILA}, s{sC}
        s_mul_i32 s{sB}, s{sW}, 192
        s_add_u32 s{sB}, s{sB}, s{sC}
        v_lshl_add_u32 v{INFO}, v{LANE}, 1, s{sB}
        v_mov_b32 v{tm + 4}, 0xffff
        v_cmp_gt_i32 vcc, s{sNE}, v{LANE}
        s_mov_b32 exec_hi, 0
        ds_write_b16 v{INFO}, v{tm + 4} offset:128
        s_mov_b64 exec, -1
        v_lshrrev_b32 v{IXA}, 5, v{LANE}
        v_lshl_add_u32 v{IXA}, v{IXA}, 1, s{sB}
        s_lshl_b32 s{sA}, s{sI}, 2
        s_add_u32 s{sA}, s{sA}, {EL}
        v_mov_b32 v{EA}, s{sA}
        s_waitcnt lgkmcnt(4)
        v_cndmask_b32 v{tm + 3}, v{tm + 4}, v{tm + 3}, vcc
        ds_write_b16 v{INFO}, v{tm + 3}
        """)
        for k in range(5):
            a(f"ds_read_u16 v{IX0 + k}, v{IXA} offset:{4 * k}")
        a(f"""
        s_waitcnt lgkmcnt(7)
        v_cmp_ne_u32 {sr(sMASK, 2)}, v{tm + 2}, v{tm + 1}
        v_cmp_eq_u32 vcc, v{tm + 2}, v{tm}
        v_mul_u32_u24 v{INFO}, {QS}, v{tm + 2}
        v_and_b32 v{tm + 1}, 15, v{tm + 2}
        v_lshlrev_b32 v{tm + 1}, 4, v{tm + 1}
        v_lshl_add_u32 v{tm + 1}, v{tm + 2}, 9, v{tm + 1}
        v_lshl_or_b32 v{INFO}, v{tm + 1}, 16, v{INFO}
        s_sub_u32 s{sA}, s{sNE}, 1
        s_bitcmp0_b64 {sr(sMASK, 2)}, s{sA}
        s_cselect_b32 s{sCO}, s{sCO}, 0
        s_bitset1_b64 {sr(sMASK, 2)}, s{sA}
        v_readfirstlane_b32 s{sB}, v{INFO}
        ; end-of-segment bits become start-of-segment bits; bit 64 is carried separately
        s_lshr_b32 s{sHB2}, s{sMASK + 1}, 31
        s_lshl_b32 s{sHB2}, s{sHB2}, 24
        s_lshl_b64 {sr(sMASK, 2)}, {sr(sMASK, 2)}, 1
        s_and_b32 s{sC}, vcc_lo, 1
        s_cmp_eq_u32 s{sI}, 0
        s_cselect_b32 s{sC}, 0, s{sC}
        s_cmp_eq_u32 s{sMODE}, 0
        s_cselect_b32 s{sC}, s{sC}, 0
        s_lshl_b32 s{sA}, s{sW}, 9
        s_add_u32 s{sA}, s{sA}, {SIDE ^ AB}
        s_lshr_b32 s{sD}, s{sB}, 16
        s_cmp_eq_u32 s{sC}, 0
        s_cselect_b32 s{sAG0}, s{sD}, s{sA}
        s_and_b32 s{sQ0}, s{sB}, 0xffff
        """)

    def slot_consts(self):
        self.a(f"""
        s_lshl_b32 s{sA}, s{sW}, 11
        s_add_u32 s{sSLOT}, s{sA}, {RING + ROFF[0]}
        s_add_u32 s{sSLOT + 1}, s{sA}, {RING + ROFF[1]}
        s_add_u32 s{sSLOT + 2}, s{sA}, {RING + ROFF[2]}
        s_add_u32 s{sSLOT + 3}, s{sA}, {RING + ROFF[3]}
        v_and_b32 v{IA + 1}, 31, v{LANE}
        v_lshlrev_b32 v{IA + 1}, 4, v{IA + 1}
        """)

    def lane_consts(self):
        self.a(f"""
        v_lshl_add_u32 v{RG}, v{LANE}, 1, s{sSLOT}
        v_lshlrev_b32 v{L4}, 2, v{LANE}
        v_lshlrev_b32 v{L8}, 3, v{LANE}
        v_or_b32 v{L8}, {AB}, v{L8}
        """)

    def side_fill(self, tmp, adr):
        self.a(f"""
        v_mov_b64 {vr(tmp, 2)}, -1
        s_lshl_b32 s{sA}, s{sW}, 9
        s_add_u32 s{sA}, s{sA}, {SIDE}
        v_lshl_add_u32 v{adr}, v{LANE}, 3, s{sA}
        ds_write_b64 v{adr}, {vr(tmp, 2)}
        """)

    def tag_calc(self):
        self.a(f"""
        v_readfirstlane_b32 s{sTAG}, v{W3}
        v_readfirstlane_b32 s{sTAG + 1}, v{W3 + 1}
        s_add_u32 s{sTAG}, s{sTAG}, 1
        s_addc_u32 s{sTAG + 1}, s{sTAG + 1}, 0
        s_lshl_b32 s{sTLO}, s{sTAG + 1}, 20
        s_lshl_b32 s{sRA}, s{sTAG}, 24
        s_bfe_u32 s{sRB}, s{sTAG}, 0x100008
        """)

    def clean(self, S):
        a = self.a
        lp, ok = a.newlabel("clean"), a.newlabel("cleanok")
        a(f"s_mov_b32 s{sM}, 0\n{lp}:\ns_mov_b64 s[40:41], 0")

        def one(k):
            a(f"""
            s_mov_b64 exec, {sr(sVAL + 2 * k, 2)}
            v_xor_b32 v{S.rec[k]}, s{sRA}, v{S.rec[k]}
            v_xor_b32 v{S.rec[k] + 1}, s{sRB}, v{S.rec[k] + 1}
            v_lshrrev_b32 v{S.adr + k}, 24, v{S.rec[k]}
            v_lshl_or_b32 v{S.adr + k}, v{S.rec[k] + 1}, 16, v{S.adr + k}
            v_cmp_ne_u32 vcc, 0, v{S.adr + k}
            s_or_b64 s[40:41], s[40:41], vcc
            """)
        self.hi_passes(one)
        a(f"""
        s_mov_b64 exec, -1
        s_cmp_eq_u64 s[40:41], 0
        s_cbranch_scc1 {ok}
        s_add_u32 s{sM}, s{sM}, 1
        s_cmp_gt_u32 s{sM}, {POLL_LIMIT}
        s_cbranch_scc1 {ok}
        """)
        self.rec_issue(S)
        a(f"s_waitcnt vmcnt(0)\ns_branch {lp}\n{ok}:")

    def binning(self):
        a = self.a
        DV, SV, EP, AD, RK, RV, H0, B0, SQ, t4, t5, t6, t7 = 24, 26, 28, 30, 32, 34, 40, 44, 48, 52, 53, 54, 56
        a(f"""
        s_mov_b32 s{sC}, -40
        s_mov_b32 s{sD}, {HIST}
        v_mov_b32 v{t4}, 1
        v_mov_b32 v{t7}, {S1C}
        v_lshlrev_b32 v{t5}, 4, v{LANE}
        v_add_u32 v{t6}, {HIST}, v{t5}
        s_waitcnt vmcnt(1)
        """)
        self.stamp("edges")
        self.tag_calc()
        R2 = range(2)
        for i in R2:
            a(f"v_mul_u32_u24 v{AD + i}, 52429, v{DV + i}")
        for i in R2:
            a(f"v_lshrrev_b32 v{AD + i}, 21, v{AD + i}")
        for i in R2:
            a(f"v_min_u32 v{RK + i}, 255, v{AD + i}")
        for i in R2:
            a(f"v_and_b32 v{AD + i}, 7, v{RK + i}\nv_lshrrev_b32 v{H0 + i}, 3, v{RK + i}")
        for i in R2:
            a(f"v_lshl_or_b32 v{AD + i}, v{AD + i}, 5, v{H0 + i}")
        for i in R2:
            a(f"v_lshl_add_u32 v{AD + i}, v{AD + i}, 2, s{sD}")
        for i in R2:
            a(f"v_mad_i32_i24 v{DV + i}, v{RK + i}, s{sC}, v{DV + i}")
            a(f"ds_add_rtn_u32 v{RK + i}, v{AD + i}, v{t4}")
        a(f"s_mov_b64 exec, 1\nds_add_u32 v{t7}, v{t4}\ns_mov_b64 exec, -1")
        for i in R2:
            a(f"v_lshl_or_b32 v{RV + 2 * i}, v{DV + i}, 16, v{SV + i}")
        a(f"""
        v_mov_b32 v{RV + 3}, 0xffff0000
        v_lshl_or_b32 v{RV + 1}, v{EP}, 16, s{sRB}
        v_and_or_b32 v{RV + 3}, v{EP}, v{RV + 3}, s{sRB}
        v_or_b32 v{RV}, s{sRA}, v{RV}
        v_or_b32 v{RV + 2}, s{sRA}, v{RV + 2}
        """)
        self.spin(S1C, 5, t7, f"ds_read_b128 {vr(H0, 4)}, v{t6}")
        a(f"""
        v_add_u32 v{B0 + 1}, v{H0}, v{H0 + 1}
        v_add_u32 v{SQ}, v{H0 + 2}, v{H0 + 3}
        v_add_u32 v{SQ}, v{SQ}, v{B0 + 1}
        v_mov_b32 v{SQ + 1}, v{SQ}
        """)
        self.scan(SQ + 1)
        a(f"""
        v_sub_u32 v{B0}, v{SQ + 1}, v{SQ}
        v_add_u32 v{B0 + 2}, v{B0}, v{B0 + 1}
        v_add_u32 v{B0 + 1}, v{B0}, v{H0}
        v_add_u32 v{B0 + 3}, v{B0 + 2}, v{H0 + 2}
        ds_write_b128 v{t6}, {vr(B0, 4)} offset:{BASE - HIST}
        ds_read_b32 v{DV}, v{AD} offset:{BASE - HIST}
        ds_read_b32 v{DV + 1}, v{AD + 1} offset:{BASE - HIST}
        s_mov_b32 s{sD}, {SORT}
        v_mov_b32 v{t7}, {S2C}
        v_lshlrev_b32 v{t5}, 4, v{TID}
        v_add_u32 v{t6}, {SORT}, v{t5}
        s_mul_i32 s{sB}, s{sT}, {EC * 8}
        s_add_u32 s{sB}, s{sB}, {W_RECS}
        s_waitcnt lgkmcnt(0)
        v_add_u32 v{DV}, v{DV}, v{RK}
        v_add_u32 v{DV + 1}, v{DV + 1}, v{RK + 1}
        v_lshl_add_u32 v{DV}, v{DV}, 3, s{sD}
        v_lshl_add_u32 v{DV + 1}, v{DV + 1}, 3, s{sD}
        ds_write_b64 v{DV}, {vr(RV, 2)}
        ds_write_b64 v{DV + 1}, {vr(RV + 2, 2)}
        s_mov_b64 exec, 1
        ds_add_u32 v{t7}, v{t4}
        s_mov_b64 exec, -1
        """)
        self.spin(S2C, 5, t7, f"ds_read_b128 {vr(SQ, 4)}, v{t6}")
        a(f"buffer_store_dwordx4 {vr(SQ, 4)}, v{t5}, {sr(sWS, 4)}, s{sB} offen sc1")
        self.stamp("binned")

    def build(self):
        a = self.a
        t0, t1, t2, t3, t4, t5, t6, t7 = range(58, 66)
        PQ = 24
        UQ = 108
        u0, u1, u2, u3 = 57, 58, 59, 60

        if "pad0" in self.opts or any(o.startswith("padat=") for o in self.opts):
            a("s_memrealtime s[96:97]")
        a(f"""
        s_cmp_ge_u32 s{sT}, {NT}
        s_cbranch_scc1 L_end
        s_load_dwordx16 s[40:55], s[0:1], 0
        s_load_dwordx2 s[56:57], s[0:1], 64
        v_and_b32 v{LANE}, 63, v{TID}
        """)
        if "nocodepf" not in self.opts:
            a(f"""
            s_getpc_b64 s[4:5]
            L_pc:
            """)
            if "fullpf" in self.opts:
                a(f"""
                v_lshlrev_b32 v{t0}, 4, v{TID}
                v_min_u32 v{t0}, L_code_end-L_pc-16, v{t0}
                global_load_dwordx4 {vr(AC2 + 8, 4)}, v{t0}, s[4:5]
                """)
            else:
                a(f"""
                s_lshr_b32 s6, s{sT}, 3
                s_and_b32 s6, s6, 15
                s_lshl_b32 s6, s6, 10
                v_lshl_add_u32 v{t0}, v{TID}, 4, s6
                v_min_u32 v{t0}, L_code_end-L_pc-16, v{t0}
                v_cmp_gt_u32 vcc, 64, v{TID}
                s_cbranch_vccz L_nopf
                global_load_dwordx4 {vr(AC2 + 8, 4)}, v{t0}, s[4:5]
                L_nopf:
                """)
        a(f"""
        v_lshrrev_b32 v{t0}, 6, v{TID}
        v_mov_b32 v{t6}, 0
        v_lshlrev_b32 v{t7}, 2, v{TID}
        v_readfirstlane_b32 s{sW}, v{t0}
        v_add_u32 v{t7}, {HIST}, v{t7}
        s_cmp_lt_u32 s{sW}, 4
        s_cbranch_scc1 L_z1
        s_cmp_gt_u32 s{sW}, 5
        s_cbranch_scc1 L_z2
        v_add_u32 v{t7}, {CNTN - HIST - 1024}, v{t7}
        L_z1:
        ds_write_b32 v{t7}, v{t6}
        L_z2:
        v_lshrrev_b32 v{t3}, 5, v{TID}
        v_and_b32 v{t4}, 31, v{TID}
        v_and_b32 v{t5}, 15, v{t3}
        v_xor_b32 v{t6}, v{t5}, v{t4}
        v_lshlrev_b32 v{t6}, 4, v{t6}
        s_mul_i32 s{sB}, s{sT}, {T * 512}
        v_lshl_add_u32 v{t6}, v{t3}, 9, v{t6}
        v_add_u32 v{GO}, s{sB}, v{t6}
        v_and_b32 v{t6}, 3, v{t5}
        v_lshrrev_b32 v{t7}, 1, v{t5}
        v_and_b32 v{t7}, 4, v{t7}
        v_or_b32 v{t6}, v{t6}, v{t7}
        v_lshlrev_b32 v{t6}, 1, v{t6}
        v_xor_b32 v{t6}, v{t6}, v{t4}
        v_lshlrev_b32 v{t6}, 4, v{t6}
        v_lshl_add_u32 v{WOFF}, v{t5}, 9, v{t6}
        s_and_b32 s{sW1K}, s{sW}, 7
        s_lshl_b32 s{sW1K}, s{sW1K}, 10
        """)
        if self.stamps:
            a(f"v_mov_b32 v{STAMPV}, 0")
            for r in self.STAMP_REGS[:5]:
                a(f"s_mov_b32 s{r}, 0")
        a("s_waitcnt lgkmcnt(0)")

        def srd(s, p, nbytes):
            a(f"""
            s_mov_b32 s{s}, s{p}
            s_mov_b32 s{s + 1}, s{p + 1}
            s_mov_b32 s{s + 2}, {nbytes}
            s_mov_b32 s{s + 3}, 0x20000
            """)

        srd(sDST, 46, E * 4)
        srd(sSRC, 44, E * 4)
        srd(sEA, 42, E * 2)
        srd(sX, 40, N * 512)
        srd(sWM, 48, 513 * 512)
        srd(sWU, 50, 512 * 512)
        srd(sWS, 56, WS_SIZE)
        a("s_barrier")
        if self.opt("pad", 0) and "pad0" not in self.opts:
            a("s_memrealtime s[96:97]")
        self.stamp("start")
        EPV = W3
        a(f"""
        v_mov_b32 v{t0}, {W_EPOCH}
        s_cmp_ge_u32 s{sW}, 8
        s_cbranch_scc1 L_role_l
        s_cmp_ge_u32 s{sW}, 5
        s_cbranch_scc1 L_role_u
        s_setprio 3
        v_lshlrev_b32 v{t6}, 3, v{TID}
        v_lshlrev_b32 v{t7}, 2, v{TID}
        s_mul_i32 s{sA}, s{sT}, {EC * 4}
        s_mul_i32 s{sB}, s{sT}, {EC * 2}
        buffer_load_dwordx2 v[24:25], v{t6}, {sr(sDST, 4)}, s{sA} offen
        buffer_load_dwordx2 v[26:27], v{t6}, {sr(sSRC, 4)}, s{sA} offen
        buffer_load_dword v28, v{t7}, {sr(sEA, 4)}, s{sB} offen
        buffer_load_dwordx2 {vr(EPV, 2)}, v{t0}, {sr(sWS, 4)}, 0 offen
        s_sub_u32 s{sA}, s{sW}, 1
        s_and_b32 s{sA}, s{sA}, 7
        s_mul_i32 s{sD}, s{sA}, {NT}
        s_add_u32 s{sD}, s{sD}, s{sT}
        s_lshl_b32 s{sA}, s{sA}, 10
        s_add_u32 m0, s{sA}, {SLOT[3]}
        s_and_b32 s{sA}, s{sD}, 7
        s_bfe_u32 s{sB}, s{sD}, 0x40003
        s_lshr_b32 s{sC}, s{sD}, 7
        s_lshl_b32 s{sUO}, s{sB}, 4
        s_lshl_b32 s{sUG}, s{sC}, 3
        s_add_u32 s{sUO}, s{sUO}, s{sUG}
        s_add_u32 s{sUO}, s{sUO}, s{sA}
        s_lshl_b32 s{sUG}, s{sUO}, 5
        s_add_u32 s{sUG}, s{sUG}, {W_UTAG}
        s_lshl_b32 s{sUO}, s{sUO}, 10
        s_add_u32 s{sUO}, s{sUO}, {W_UT}
        s_lshl_b32 s{sA}, s{sA}, 5
        s_lshl_b32 s{sB}, s{sB}, 5
        s_cmp_lt_u32 s{sD}, 256
        s_cselect_b32 s{sB}, s{sB}, {OOB}
        s_cselect_b32 s{sUO}, s{sUO}, {OOB}
        s_cselect_b32 s{sUG}, s{sUG}, {OOB}
        v_lshrrev_b32 v{t6}, 1, v{LANE}
        v_add_u32 v{t6}, s{sA}, v{t6}
        v_and_b32 v{t5}, 1, v{LANE}
        v_lshlrev_b32 v{t5}, 4, v{t5}
        s_cmp_eq_u32 s{sC}, 0
        s_cbranch_scc1 L_pc_u1
        v_and_b32 v{t7}, 3, v{t6}
        v_lshrrev_b32 v{t6}, 2, v{t6}
        v_lshl_add_u32 v{t6}, v{t7}, 6, v{t6}
        v_add_u32 v{t6}, 256, v{t6}
        L_pc_u1:
        v_lshl_add_u32 v{t6}, v{t6}, 9, v{t5}
        buffer_load_dwordx4 v{t6}, {sr(sWU, 4)}, s{sB} offen lds
        s_branch L_role_done
        L_role_u:
        buffer_load_dwordx2 {vr(EPV, 2)}, v{t0}, {sr(sWS, 4)}, 0 offen
        v_subrev_u32 v{t3}, 10, v{t3}
        s_mul_i32 s{sB}, s{sT}, {T * 512}
        s_lshl_b32 s{sA}, s{sW}, 10
        """)
        for i in range(7):
            if i == 6:
                a(f"""
                s_cmp_eq_u32 s{sW}, 7
                s_cselect_b32 s{sC}, 2, 0
                v_subrev_u32 v{t3}, s{sC}, v{t3}
                s_lshl_b32 s{sC}, s{sC}, 9
                s_sub_u32 s{sA}, s{sA}, s{sC}
                """)
            a(f"""
            v_and_b32 v{t6}, 15, v{t3}
            v_xor_b32 v{t6}, v{t6}, v{t4}
            v_lshlrev_b32 v{t6}, 4, v{t6}
            s_add_u32 m0, s{sA}, {XB - 5120 + 3072 * i}
            v_lshl_add_u32 v{t6}, v{t3}, 9, v{t6}
            v_add_u32 v{t3}, 6, v{t3}
            buffer_load_dwordx4 v{t6}, {sr(sX, 4)}, s{sB} offen lds
            """)
        a(f"""
        s_branch L_role_done
        L_role_l:
        buffer_load_dwordx2 {vr(EPV, 2)}, v{t0}, {sr(sWS, 4)}, 0 offen
        s_lshr_b32 s{sA}, s{sT}, 3
        s_lshl_b32 s{sA}, s{sA}, 13
        s_add_u32 s{sA}, s{sA}, s{sW1K}
        s_lshr_b32 s{sC}, s{sA}, 1
        v_lshlrev_b32 v{t7}, 3, v{LANE}
        buffer_load_dwordx2 {vr(AC2, 2)}, v{t7}, {sr(sWM, 4)}, s{sC} offen
        s_add_u32 s{sC}, s{sC}, 131072
        buffer_load_dwordx2 {vr(AC2 + 2, 2)}, v{t7}, {sr(sWM, 4)}, s{sC} offen
        s_cmp_eq_u32 s{sW}, 15
        s_cbranch_scc0 L_role_done
        s_mov_b32 m0, {W3L}
        v_lshlrev_b32 v{t7}, 4, v{LANE}
        s_mov_b32 s{sB}, {512 * 512}
        buffer_load_dwordx4 v{t7}, {sr(sWM, 4)}, s{sB} offen lds
        L_role_done:
        """)
        UA = W3 - 9 - 5
        srd(sOUT, 52, N * 512)
        a(f"""
        s_add_u32 s{sP}, s56, {W_P}
        s_addc_u32 s{sP + 1}, s57, 0
        s_or_b32 s{sP + 1}, s{sP + 1}, {512 << 16}
        s_mov_b32 s{sP + 2}, {N}
        s_mov_b32 s{sP + 3}, 0x20000
        s_mov_b32 s{sNL2E}, {NLOG2E}
        s_mov_b32 s{sNL2E + 1}, {NLOG2E}
        s_mov_b32 s{sNLN2}, {NLN2}
        s_mov_b32 s{sNLN2 + 1}, {NLN2}
        s_lshl_b32 s{sWK}, s{sW}, 10
        s_lshr_b32 s{sHI}, s{sW}, 3
        s_lshl_b32 s{sHI}, s{sHI}, 13
        s_mov_b32 s{sGEN}, 0
        v_and_b32 v{t0}, 15, v{LANE}
        v_lshrrev_b32 v{t1}, 4, v{LANE}
        v_bfe_u32 v{t2}, v{LANE}, 2, 2
        v_and_b32 v{t3}, 3, v{LANE}
        s_lshl_b32 s{sB}, s{sW}, 1
        v_and_b32 v{t4}, 1, v{t1}
        v_lshl_or_b32 v{t4}, v{t4}, 2, v{t2}
        v_lshlrev_b32 v{t4}, 1, v{t4}
        v_lshrrev_b32 v{t5}, 1, v{t3}
        v_add_u32 v{t5}, s{sB}, v{t5}
        v_xor_b32 v{t4}, v{t4}, v{t5}
        v_lshlrev_b32 v{t4}, 4, v{t4}
        v_and_b32 v{t5}, 1, v{t3}
        v_lshl_add_u32 v{t4}, v{t5}, 3, v{t4}
        v_lshl_add_u32 v{t5}, v{t1}, 3, v{t2}
        v_lshl_add_u32 v{TR0}, v{t5}, 9, v{t4}
        v_add_u32 v{TR1}, 65536, v{TR0}
        v_lshlrev_b32 v{t5}, 5, v{t5}
        v_lshl_add_u32 v{UA + 9}, v{t3}, 3, v{t5}
        v_lshlrev_b32 v{t5}, 9, v{t0}
        v_add_u32 v{t5}, {XB}, v{t5}
        """)
        for k in range(4):
            a(f"""
            v_add_u32 v{t4}, {4 * k}, v{t1}
            v_xor_b32 v{t4}, v{t4}, v{t0}
            v_lshl_add_u32 v{XA + k}, v{t4}, 4, v{t5}
            """)
        a(f"""
        v_lshrrev_b32 v{t4}, 1, v{t1}
        v_add_u32 v{t4}, s{sB}, v{t4}
        v_xor_b32 v{t4}, v{t4}, v{t0}
        v_lshlrev_b32 v{t4}, 4, v{t4}
        v_and_b32 v{t6}, 1, v{t1}
        v_lshl_add_u32 v{t4}, v{t6}, 3, v{t4}
        v_lshl_add_u32 v{t4}, v{t0}, 9, v{t4}
        v_add_u32 v{STG}, {PS}, v{t4}
        v_lshlrev_b32 v{STR}, 4, v{TID}
        v_add_u32 v{STR}, {PS}, v{STR}
        v_add_u32 v{GO2}, 16384, v{GO}
        s_cmp_lt_u32 s{sW}, 4
        s_cbranch_scc1 L_go2
        v_mov_b32 v{GO2}, {OOB}
        L_go2:
        s_cmp_lt_u32 s{sW}, 5
        s_cbranch_scc0 L_nobin
        """)
        self.binning()
        a(f"""
        s_cmp_eq_u32 s{sW}, 0
        s_cbranch_scc0 L_piece
        v_lshlrev_b32 v{t0}, 3, v{LANE}
        v_add_u32 v{t0}, {HIST}, v{t0}
        ds_read_b64 {vr(66, 2)}, v{t0}
        ds_read_b64 {vr(68, 2)}, v{t0} offset:{BASE - HIST}
        ds_read_b64 {vr(70, 2)}, v{t0} offset:512
        ds_read_b64 {vr(72, 2)}, v{t0} offset:{BASE - HIST + 512}
        v_lshlrev_b32 v{t1}, 4, v{LANE}
        s_lshl_b32 s{sB}, s{sT}, 11
        s_add_u32 s{sB}, s{sB}, {W_OFFS}
        s_waitcnt lgkmcnt(0)
        """)
        for i in range(4):
            h, b = 66 + 4 * (i >> 1) + (i & 1), 68 + 4 * (i >> 1) + (i & 1)
            a(f"""
            v_lshl_or_b32 v{ACC + 2 * i}, v{h}, 10, v{b}
            v_mov_b32 v{ACC + 2 * i + 1}, s{sTAG}
            v_or_b32 v{ACC + 2 * i}, s{sTLO}, v{ACC + 2 * i}
            """)
        a(f"""
        buffer_store_dwordx4 {vr(ACC, 4)}, v{t1}, {sr(sWS, 4)}, s{sB} offen sc1
        buffer_store_dwordx4 {vr(ACC + 4, 4)}, v{t1}, {sr(sWS, 4)}, s{sB} offen offset:1024 sc1
        s_setprio 0
        s_branch L_bin_done
        L_piece:
        s_setprio 0
        s_cmp_lt_u32 s{sW}, 3
        s_cbranch_scc0 L_bin_done
        s_lshl_b32 s{sA}, s{sW}, 10
        s_add_u32 s{sA}, s{sA}, {SLOT[3] - 1024}
        v_add_u32 v{UA + 9}, s{sA}, v{UA + 9}
        v_lshlrev_b32 v{W3 + 2}, 4, v{LANE}
        s_waitcnt vmcnt(1)
        ds_read_b64_tr_b16 {vr(AC2 + 4, 2)}, v{UA + 9}
        ds_read_b64_tr_b16 {vr(AC2 + 6, 2)}, v{UA + 9} offset:128
        s_waitcnt lgkmcnt(0)
        buffer_store_dwordx4 {vr(AC2 + 4, 4)}, v{W3 + 2}, {sr(sWS, 4)}, s{sUO} offen sc1
        s_branch L_bin_done
        L_nobin:
        s_cmp_ge_u32 s{sW}, 8
        s_cbranch_scc1 L_bin_ld
        v_mov_b32 v{W3 + 2}, {XCNT}
        v_mov_b32 v{W3 + 3}, 1
        s_mov_b64 exec, 1
        s_waitcnt vmcnt(4)
        ds_add_u32 v{W3 + 2}, v{W3 + 3}
        s_mov_b64 exec, -1
        s_branch L_bin_done
        L_bin_ld:
        """)
        self.dma_body(0, 0)
        a(f"""
        s_waitcnt vmcnt(6)
        L_bin_done:
        """)
        self.tag_calc()
        self.xpreload(UA + 9)
        self.stamp("xpre")

        R0 = 116
        XBUF = (80, 92)
        fbuf = [UF + 4 * i for i in range(6)] + [56, 60]
        OV, o0, o1, o2, o3, UV = 20, 22, 23, 16, 17, 116

        def frag(i):
            a(f"""
            s_add_u32 s{sB}, s{sUB}, {1024 * i}
            buffer_load_dwordx4 {vr(fbuf[i], 4)}, v{FO}, {sr(sWS, 4)}, s{sB} offen sc1
            """)
            self.vm("LN", f"f{i}")

        def x3(i):
            for rb in range(3):
                a(f"ds_read_b128 {vr(XBUF[i & 1] + 4 * rb, 4)}, v{XA + (i & 3)} offset:{rb * 8192 + (i >> 2) * 256}")
                self.lq.append(f"x{i}")

        def consume(i):
            self.vmwait({f"f{i}"})
            if f"x{i}" in self.lq:
                self.lwait(f"x{i}")
            for rb in range(3):
                cin = "0" if i == 0 else vr(ACC + 4 * rb, 4)
                a(f"v_mfma_f32_16x16x32_bf16 {vr(ACC + 4 * rb, 4)}, {vr(fbuf[i], 4)}, {vr(XBUF[i & 1] + 4 * rb, 4)}, {cin}")
            if i + 2 < 8:
                x3(i + 2)

        def utag_issue(dst, adr):
            a(f"""
            v_lshlrev_b32 v{adr}, 5, v{LANE}
            s_lshl_b32 s{sC}, s{sW}, 9
            s_add_u32 s{sC}, s{sC}, {W_UTAG}
            s_mov_b64 exec, 0xffff
            buffer_load_dwordx2 {vr(dst, 2)}, v{adr}, {sr(sWS, 4)}, s{sC} offen sc1
            s_mov_b64 exec, -1
            """)

        def utag_check(dst):
            a(f"""
            v_cmp_ne_u64 vcc, {sr(sTAG, 2)}, {vr(dst, 2)}
            s_nop 1
            s_and_b32 s{sU}, vcc_lo, 0xffff
            """)

        def offs_issue():
            a(f"""
            s_and_b32 s{sC}, s{sT}, 7
            s_lshl_b32 s{sC}, s{sC}, 8
            s_and_b32 s{sB}, s{sT}, 0xf8
            s_add_u32 s{sC}, s{sC}, s{sB}
            s_add_u32 s{sC}, s{sC}, {W_OFFS}
            buffer_load_dwordx2 {vr(OV, 2)}, v{o0}, {sr(sWS, 4)}, s{sC} offen sc1
            """)

        def offs_check():
            a(f"""
            v_xor_b32 v{o1}, s{sTLO}, v{OV}
            v_cmp_ne_u32 vcc, s{sTAG}, v{OV + 1}
            s_mov_b32 s{sB}, 0x100000
            v_cmp_le_u32 s[40:41], s{sB}, v{o1}
            s_nop 1
            s_or_b64 vcc, vcc, s[40:41]
            s_and_b64 vcc, vcc, {sr(sVAL, 2)}
            """)

        def parse():
            a(f"""
            v_cndmask_b32 v{OV}, 0, v{o1}, {sr(sVAL, 2)}
            v_and_b32 v{o1}, 3, v{TID}
            v_mul_u32_u24 v{o0}, {EC * 8}, v{RBA}
            v_and_b32 v{o2}, 0x3ff, v{OV}
            v_bfe_u32 v{o3}, v{OV}, 10, 10
            v_add_u32 v{o2}, v{o2}, v{o1}
            v_lshl_add_u32 v{o0}, v{o2}, 3, v{o0}
            v_add_u32 v{RBA}, {W_RECS}, v{o0}
            v_sub_u32 v{CQ}, v{o3}, v{o1}
            v_cmp_lt_u32 vcc, {4 * NPASS}, v{o3}
            """)
            lab = a.newlabel("nomax")
            a(f"""
            s_cbranch_vccz {lab}
            v_mov_b32 v{o2}, {MISC}
            s_mov_b64 exec, vcc
            ds_max_u32 v{o2}, v{o3}
            s_mov_b64 exec, -1
            s_waitcnt lgkmcnt(0)
            {lab}:
            """)
            self.rec_issue(SCRP)

        slot = [0, 1, 2, 3, 0, 1, 0, 3]
        nearly = self.opt("early", 2)
        edel = self.opt("edel", 0)
        issue_at = {0: 3}
        for c in range(4, 4 + nearly):
            issue_at[c - 3 + edel] = c

        def gstep(k, lgkm=False, post=None):
            self.vmwait({f"c{k}"})
            self.barrier(f"B{k}", lgkm=lgkm)
            if post:
                post()
            self.trreads(slot[k])
            c = issue_at.get(k)
            self.mfmas(AC2, k & 3, (lambda sp: self.dma_all(c, slot[c], sp)) if c else None)
            if k not in (3, 7):
                self.xreads((k + 1) & 3)

        def look():
            a(f"""
            v_mov_b32 v{o1}, {OOB}
            v_lshrrev_b32 v{RBA}, 2, v{TID}
            v_lshlrev_b32 v{o0}, 11, v{RBA}
            s_movk_i32 s{sA}, {NT}
            v_cmp_gt_u32 {sr(sVAL, 2)}, s{sA}, v{RBA}
            s_mov_b32 s{sP0}, 0
            s_mov_b32 s{sNP}, {NPASS}
            s_mov_b32 s{sMODE}, 0
            v_cndmask_b32 v{o0}, v{o1}, v{o0}, {sr(sVAL, 2)}
            """)
            offs_issue()
            utag_issue(UV, UV + 2)
            self.vm("LN", "offs", 2)

        def piece_tag():
            a(f"s_sub_u32 s{sA}, s{sW}, 1\ns_cmp_lt_u32 s{sA}, 2\ns_cbranch_scc0 L_notag\ns_waitcnt vmcnt(4)")
            self.tag_store(sUG, 116)
            a.label("L_notag")

        kis = self.opt("kis", 2)
        recpos = self.opt("recpos", 0)

        def try_records():
            self.vmwait({"offs"})
            utag_check(UV)
            offs_check()
            a(f"s_mov_b32 s{sE}, 0\ns_cbranch_scc1 L_late")
            parse()
            a(f"s_mov_b32 s{sE}, 1\ns_branch L_intime\nL_late:")
            offs_issue()
            offs_issue()
            a.label("L_intime")
            self.vm("LN", "rec", 2)

        for k in range(4):
            gstep(k, post=piece_tag if k == self.opt('kpt', 0) else None)
            if k == kis:
                look()
            if k == 2 and recpos == -1:
                try_records()
        for rb in range(3):
            for h in range(2):
                a(f"v_pk_mul_f32 {vr(AC2 + 4 * rb + 2 * h, 2)}, {vr(AC2 + 4 * rb + 2 * h, 2)}, {sr(sNL2E, 2)} op_sel_hi:[1,0]")
            a(f"v_cvt_pk_bf16_f32 v{AC2 + 4 * rb}, v{AC2 + 4 * rb}, v{AC2 + 4 * rb + 1}")
            a(f"v_cvt_pk_bf16_f32 v{AC2 + 4 * rb + 1}, v{AC2 + 4 * rb + 2}, v{AC2 + 4 * rb + 3}")
            a(f"ds_write_b64 v{STG}, {vr(AC2 + 4 * rb, 2)} offset:{rb * 8192}")
        if recpos == 0:
            try_records()
        a("s_setprio 3")
        self.barrier("PS")
        a(f"""
        ds_read_b128 {vr(AC2, 4)}, v{STR}
        ds_read_b128 {vr(AC2 + 4, 4)}, v{STR} offset:16384
        """)
        self.xreads(0)
        a(f"""
        s_mov_b32 s{sB}, {W_P}
        s_waitcnt lgkmcnt(3)
        buffer_store_dwordx4 {vr(AC2, 4)}, v{GO}, {sr(sWS, 4)}, s{sB} offen sc1
        s_waitcnt lgkmcnt(2)
        buffer_store_dwordx4 {vr(AC2 + 4, 4)}, v{GO2}, {sr(sWS, 4)}, s{sB} offen sc1
        s_setprio 0
        """)
        self.vm("LN", "p", 2)
        self.stamp("pst")
        if recpos == 2:
            try_records()
        self.stampval("E", sE)
        self.stampval("U", sU)

        def fb():
            a(f"s_lshl_b32 s{sB}, s{sT}, 5\ns_add_u32 s{sB}, s{sB}, {W_FB}")
            self.tag_store(sB, ACC + 8 if kfb == 6 else ACC)

        todo = [(c, m) for c in range(4 + nearly, 8) for m in range(2)]
        kfb = self.opt("kfb", 6)

        def issue(n):
            nonlocal todo
            for c, m in todo[:n]:
                self.dma_all(c, slot[c], m)
            todo = todo[n:]

        if nearly < 2:
            issue(self.opt("npre", 2))
        for k in (4, 5):
            if k == kfb:
                self.vmwait({"p"})
                self.stamp("ack")
            while todo and todo[0][0] <= k:
                issue(1)
            gstep(k, post=(lambda: self.wave0(fb)) if k == kfb else None)
            if k >= kfb and k == 4 and nearly < 2:
                issue(2)
        a(f"""
        s_lshl_b32 s{sUB}, s{sW}, 14
        s_add_u32 s{sUB}, s{sUB}, {W_UT}
        """)
        self.vmwait({"rec"})
        a(f"""
        s_cmp_eq_u32 s{sE}, 1
        s_cbranch_scc1 L_recs_ok
        s_mov_b32 s{sD}, 0
        L_offs_chk:
        """)
        offs_check()
        a(f"""
        s_cbranch_scc0 L_offs_ok
        s_add_u32 s{sD}, s{sD}, 1
        s_cmp_gt_u32 s{sD}, {POLL_LIMIT}
        s_cbranch_scc1 L_offs_ok
        """)
        offs_issue()
        a("s_waitcnt vmcnt(0)\ns_branch L_offs_chk\nL_offs_ok:")
        parse()
        a("s_waitcnt vmcnt(0)\nL_recs_ok:")
        self.stamp("rec")
        self.clean(SCRX)
        self.count(SCRX)
        issue(8)
        if kfb == 6:
            self.vmwait({"p"})
            self.stamp("ack")
        self.barrier("C1")
        if kfb == 6:
            self.wave0(fb)
        a(f"""
        v_lshlrev_b32 v{FO}, 4, v{LANE}
        s_cmp_eq_u32 s{sU}, 0
        s_cbranch_scc1 L_tags_ok
        s_mov_b32 s{sD}, 0
        L_tags:
        """)
        utag_issue(24, 26)
        a(f"s_add_u32 s{sD}, s{sD}, 1\ns_cmp_gt_u32 s{sD}, {POLL_LIMIT}\ns_waitcnt vmcnt(0)\ns_cbranch_scc1 L_tags_ok")
        utag_check(24)
        a("s_cbranch_scc1 L_tags\nL_tags_ok:")
        frag(0)
        frag(1)
        self.lists(SCRX, "L_gen1")
        a.label("L_gen1_back")
        self.side_fill(ACC + 10, ACC + 3)
        frag(2)
        frag(3)
        gstep(6, lgkm=True)
        a(f"s_mov_b32 s{sB}, {W3L}\nv_lshl_add_u32 v{ACC + 3}, v{LANE}, 1, s{sB}")
        for r in range(4):
            a(f"ds_read_u16_d16_hi v{W3 + r}, v{ACC + 3} offset:{128 * r}")
        frag(4)
        frag(5)
        self.setup(ACC + 4)
        frag(6)
        frag(7)
        a(f"""
        v_and_b32 v75, 15, v{LANE}
        v_cmp_gt_u32 {sr(sEX, 2)}, 8, v75
        v_mul_u32_u24 v74, {QS}, v75
        v_and_b32 v75, 48, v{LANE}
        s_lshl_b32 s{sB}, s{sW}, 6
        v_add3_u32 v74, v74, v75, s{sB}
        """)
        self.slot_consts()
        self.stamp("pre")

        def pw():
            self.poll_issue()
            self.poll_wait()
            a(f"s_cmp_eq_u32 s{sT}, 0\ns_cbranch_scc0 L_noep\ns_mov_b32 s{sB}, {W_EPOCH}")
            self.tag_store(sB, POLLB)
            a.label("L_noep")
        self.wave0(pw)
        self.vmwait({"c7"})
        self.barrier("C2")
        self.trreads(slot[7])
        for k in range(2):
            a(f"v_mov_b32 v{IA}, v{IX0 + k}")
            self.gather(k)
            self.vm("LN", "g")
        self.mfmas(AC2, 3)
        x3(0)
        x3(1)
        for rb in range(3):
            for h in range(2):
                a(f"v_pk_mul_f32 {vr(AC2 + 4 * rb + 2 * h, 2)}, {vr(AC2 + 4 * rb + 2 * h, 2)}, {sr(sNL2E, 2)} op_sel_hi:[1,0]")
            if rb == 2:
                a(f"s_mov_b64 exec, {sr(sEX, 2)}")
            a(f"ds_write_b128 v74, {vr(AC2 + 4 * rb, 4)} offset:{QB + rb * 16 * QS}")
            self.lq.append("q")
        a("s_mov_b64 exec, -1")
        self.stamp("q")
        g2, g3 = self.opt("g2", 3), self.opt("g3", 7)
        for i in range(8):
            consume(i)
            if i == 1:
                a("s_barrier")
            for k, g in ((2, g2), (3, g3)):
                if i == g:
                    a(f"v_mov_b32 v{IA}, v{IX0 + k}")
                    self.gather(k)
                    self.vm("LN", "g")
        a(f"v_mov_b32 v{IA}, v{IX0 + 4}")
        for r in range(4):
            a(f"v_mul_f32 v{W3 + r}, s{sNL2E}, v{W3 + r}")
        for h in range(6):
            a(f"v_pk_mul_f32 {vr(ACC + 2 * h, 2)}, {vr(ACC + 2 * h, 2)}, {sr(sNL2E, 2)} op_sel_hi:[1,0]")
        self.lane_consts()
        self.barrier("R")
        a(f"""
        s_cmp_eq_u32 s{sGEN}, 0
        s_cbranch_scc0 L_generic
        s_and_b32 s{sZ + 1}, s{sZ + 1}, 0xff
        s_or_b32 s{sA}, s{sZ}, s{sZ + 1}
        s_or_b32 s{sA}, s{sA}, s{sMODE}
        s_cbranch_scc1 L_clear
        L_r_done:
        s_cmp_gt_i32 s{sNE}, 0
        s_cbranch_scc0 L_empty
        """)
        if "noprio" not in self.opts:
            a("s_setprio 3")
        a(f"""
        ds_read_b64 {vr(EE[0], 2)}, v{EA}
        v_add_u32 v{QA}, s{sQ0}, v{L4}
        ds_read2st64_b32 {vr(Q, 2)}, v{QA} offset0:0 offset1:1
        ds_read2st64_b32 {vr(Q + 2, 2)}, v{QA} offset0:2 offset1:3
        v_xor_b32 v{AG}, s{sAG0}, v{L8}
        v_add_u32 v{CNA}, {CNTN}, v{L4}
        v_mov_b32 v{TZ}, 0
        ds_write_b32 v{CNA}, v{TZ}
        v_mov_b64 {vr(NN, 2)}, 0
        v_mov_b64 {vr(NN + 2, 2)}, 0
        v_mov_b32 v{DD}, 1.0
        v_mov_b32 v{DD + 1}, 1.0
        v_mov_b32 v{DD + 2}, 1.0
        v_mov_b32 v{DD + 3}, 1.0
        v_mov_b64 {vr(CK2, 2)}, 0
        v_mov_b32 v{CK1}, 0
        s_mov_b32 s{sI}, 0
        s_or_b32 s{sTM}, s{sMASK}, 0xff
        """)
        self.stamp("setup")
        a("s_waitcnt vmcnt(3)")
        self.stamp("row0")
        self.p_reads(0, 0)
        a("s_waitcnt lgkmcnt(0)")
        self.gather(0)
        self.u2_loads()
        a(f"""
        s_cmp_eq_u32 s{sMODE}, 0
        s_cbranch_scc0 L_loop_x
        """)
        self.main_loop(False, "L_main_done")
        a.reset_hist()
        a.label("L_main_done")
        a("s_setprio 0")
        self.stamp("loop")
        a(f"""
        v_add_f32 v{CK2}, v{CK2}, v{CK2 + 1}
        v_mov_b32 v{TM}, {BIG}
        v_cmp_u_f32 vcc, v{CK2}, v{CK2}
        v_cmp_nle_f32 s[40:41], v{CK1}, v{TM}
        s_nop 1
        s_or_b64 vcc, vcc, s[40:41]
        s_cbranch_scc0 L_after
        v_mov_b32 v{TM}, {MISC + 4}
        v_mov_b32 v{TM + 1}, 1
        ds_write_b32 v{TM}, v{TM + 1}
        L_after:
        s_waitcnt vmcnt(0)
        """)
        self.barrier("M")
        a(f"""
        v_mov_b32 v{TM}, {MISC + 4}
        ds_read_b32 v{TM + 1}, v{TM}
        """)
        if "oldfin" in self.opts:
            order = [(s_, rb) for s_ in range(8) for rb in range(3)]
        else:
            order = [(s_, rb) for rb in range(3) for s_ in range(8)]
        NB = 12

        def rd(n):
            s_, rb = order[n]
            a(f"ds_read_b128 {vr(XF + 4 * (n % NB), 4)}, v{XA + (s_ & 3)} offset:{rb * 8192 + (s_ >> 2) * 256}")

        for n in range(NB):
            rd(n)
        a(f"""
        s_cmp_eq_u32 s{sMODE}, 0
        s_cbranch_scc0 L_slow_next
        s_waitcnt lgkmcnt(12)
        v_readfirstlane_b32 s{sA}, v{TM + 1}
        s_nop 1
        s_cmp_eq_u32 s{sA}, 0
        s_cbranch_scc0 L_redo
        L_final:
        """)
        TE = 104

        def act(rb):
            ops = []
            for r in range(4):
                ops.append(f"v_exp_f32 v{TE + 4 * rb + r}, v{ACC + 4 * rb + r}")
            for r in range(4):
                ops.append(f"v_add_f32 v{TE + 4 * rb + r}, 1.0, v{TE + 4 * rb + r}")
            for r in range(4):
                ops.append(f"v_rcp_f32 v{TE + 4 * rb + r}, v{TE + 4 * rb + r}")
            for r in range(4):
                ops.append(f"v_mul_f32 v{ACC + 4 * rb + r}, s{sNLN2}, v{ACC + 4 * rb + r}")
            for r in range(4):
                ops.append(f"v_mul_f32 v{ACC + 4 * rb + r}, v{ACC + 4 * rb + r}, v{TE + 4 * rb + r}")
            ops.append(f"v_cvt_pk_bf16_f32 v{TE + 4 * rb}, v{ACC + 4 * rb}, v{ACC + 4 * rb + 1}")
            ops.append(f"v_cvt_pk_bf16_f32 v{TE + 4 * rb + 1}, v{ACC + 4 * rb + 2}, v{ACC + 4 * rb + 3}")
            ops.append(f"ds_write_b64 v{STG}, {vr(TE + 4 * rb, 2)} offset:{rb * 8192}")
            return ops

        pend = []
        lq = [f"r{n}" for n in range(NB)]
        for n in range(24):
            s_, rb = order[n]
            last = lq.index(f"r{n}")
            a(f"s_waitcnt lgkmcnt({len(lq) - 1 - last})")
            lq = lq[last + 1:]
            a(f"v_mfma_f32_16x16x32_bf16 {vr(ACC + 4 * rb, 4)}, {vr(UF + 4 * s_, 4)}, {vr(XF + 4 * (n % NB), 4)}, {vr(ACC + 4 * rb, 4)}")
            if n + NB < 24:
                rd(n + NB)
                lq.append(f"r{n + NB}")
            if "oldfin" not in self.opts:
                if n in (9, 17):
                    pend += act(n // 8 - 1)
                for op in pend[:4]:
                    a(op)
                    if op.startswith("ds_"):
                        lq.append("w")
                pend = pend[4:]
        for op in pend:
            a(op)
        for rb in ([2] if "oldfin" not in self.opts else [0, 1, 2]):
            for op in act(rb):
                a(op)
        self.barrier("F")
        a(f"""
        ds_read_b128 {vr(PQ + 8, 4)}, v{STR}
        ds_read_b128 {vr(PQ + 12, 4)}, v{STR} offset:16384
        s_waitcnt lgkmcnt(1)
        buffer_store_dwordx4 {vr(PQ + 8, 4)}, v{GO}, {sr(sOUT, 4)}, 0 offen sc1
        s_waitcnt lgkmcnt(0)
        buffer_store_dwordx4 {vr(PQ + 12, 4)}, v{GO2}, {sr(sOUT, 4)}, 0 offen sc1
        """)
        if self.opt("pad", 0):
            a(f"""
            L_pad:
            s_memrealtime s[98:99]
            s_waitcnt lgkmcnt(0)
            s_sub_u32 s98, s98, s96
            s_cmp_lt_u32 s98, {self.opt("pad", 0)}
            s_cbranch_scc1 L_pad
            """)
        if self.stamps:
            a.label("L_diag_end")
            a("s_waitcnt vmcnt(0)")
            self.stamp("end")
            a(f"""
            s_lshl_b32 s{sA}, s{sT}, 4
            s_add_u32 s{sA}, s{sA}, s{sW}
            s_lshl_b32 s{sA}, s{sA}, 8
            s_add_u32 s{sA}, s{sA}, {W_STAMP}
            v_lshlrev_b32 v{TM}, 2, v{LANE}
            buffer_store_dword v{STAMPV}, v{TM}, {sr(sWS, 4)}, s{sA} offen
            """)
        a.label("L_end")
        a("s_endpgm")
        a.reset_hist()
        a(f"""
        L_gen1:
        s_mov_b32 s{sGEN}, 1
        s_mov_b32 s{sI}, 0
        s_mov_b32 s{sNE}, 0
        s_branch L_gen1_back
        L_clear:
        v_mov_b64 {vr(XF, 2)}, 0
        v_mov_b64 {vr(XF + 2, 2)}, 0
        v_add_u32 v{XF + 4}, {AB - PS}, v{STR}
        """)
        self.zero_agg(XF + 4, XF)
        a(f"""
        s_waitcnt lgkmcnt(0)
        s_barrier
        s_branch L_r_done
        L_generic:
        s_waitcnt vmcnt(0) lgkmcnt(0)
        s_barrier
        v_mov_b64 {vr(XF, 2)}, 0
        v_mov_b64 {vr(XF + 2, 2)}, 0
        v_add_u32 v{XF + 4}, {AB - PS}, v{STR}
        """)
        self.zero_agg(XF + 4, XF)
        a(f"""
        v_add_u32 v{CNA}, {CNTN}, v{L4}
        v_mov_b32 v{TZ}, 0
        ds_write_b32 v{CNA}, v{TZ}
        s_mov_b32 s{sNP}, 1
        s_mov_b32 s{sMODE}, 1
        s_waitcnt lgkmcnt(0)
        s_barrier
        L_round:
        """)
        self.slot_consts()
        self.lane_consts()
        self.rec_issue(SCR2)
        a("s_waitcnt vmcnt(0)")
        self.clean(SCR2)
        self.count(SCR2)
        a("s_waitcnt lgkmcnt(0)\ns_barrier")
        self.lists(SCR2, "L_generic")
        a("s_waitcnt lgkmcnt(0)\ns_barrier")
        self.setup(SCR2.tmp)
        a(f"""
        s_waitcnt lgkmcnt(0)
        """)
        for k in range(4):
            a(f"v_mov_b32 v{IA}, v{IX0 + k}")
            self.gather(k)
        a(f"""
        v_mov_b32 v{IA}, v{IX0 + 4}
        s_branch L_r_done
        L_empty:
        v_add_u32 v{CNA}, {CNTN}, v{L4}
        v_mov_b32 v{TZ}, 0
        ds_write_b32 v{CNA}, v{TZ}
        """)
        self.u2_loads()
        a(f"""
        s_branch L_after
        L_slow_next:
        s_cmp_eq_u32 s{sNP}, {NPASS}
        s_cbranch_scc1 L_final
        s_add_u32 s{sP0}, s{sP0}, 1
        s_max_u32 s{sA}, s{sMAXC}, {4 * NPASS}
        s_lshl_b32 s{sB}, s{sP0}, 2
        s_cmp_lt_u32 s{sB}, s{sA}
        s_cbranch_scc0 L_final
        s_waitcnt lgkmcnt(0)
        s_branch L_round
        L_redo:
        s_waitcnt lgkmcnt(0)
        s_barrier
        s_mov_b32 s{sMODE}, 1
        v_mov_b64 {vr(XF, 2)}, 0
        v_mov_b64 {vr(XF + 2, 2)}, 0
        v_add_u32 v{XF + 4}, {AB - PS}, v{STR}
        """)
        self.zero_agg(XF + 4, XF)
        a("s_branch L_round")
        self.main_loop(True, "L_after")
        a.label("L_code_end")

    def text(self):
        hdr = f"""; Fused MPNN edge-MLP kernel: P = x W1 published per tile, edges binned by destination tile,
; @launch grid=({NT},1,1) block=(1024,1,1) lds={LDS_TOTAL}
.amdgcn_target "amdgcn-amd-amdhsa--gfx950"
.text
.globl {NAME}_kernel
.p2align 8
.type {NAME}_kernel,@function
{NAME}_kernel:
"""
        ftr = f""".section .rodata,"a"
.p2align 6
.amdhsa_kernel {NAME}_kernel
  .amdhsa_next_free_vgpr 128
  .amdhsa_next_free_sgpr 102
  .amdhsa_accum_offset 128
  .amdhsa_group_segment_fixed_size 0
  .amdhsa_kernarg_size 72
  .amdhsa_user_sgpr_count 2
  .amdhsa_user_sgpr_kernarg_segment_ptr 1
  .amdhsa_system_sgpr_workgroup_id_x 1
.end_amdhsa_kernel
"""
        return hdr + self.a.text() + ftr


if __name__ == "__main__":
    out = [x for x in sys.argv[1:] if not x.startswith("--")]
    g = Gen(opts=[x[2:] for x in sys.argv[1:] if x.startswith("--")])
    g.build()
    txt = g.text()
    if g.stamps:
        txt = "; stamps: " + ",".join(g.names) + "\n" + txt
    open(out[0] if out else "cdna_kernels/%s.s" % NAME, "w").write(txt)
    print("nops inserted:", g.a.nops, "lines:", len(g.a.lines), "stamps:", g.nstamp)
```

```python
import sys
import struct
from asmlib import Asm

NAME = "gather_scatter__mpnn_edge_mlp__graph"
N, E, D = 10000, 160000, 256
T, NT, EC = 40, 250, 640

SLOT = (0, 32768, 65536, 98304)
XB = 131072
SIDE = 41984
PILA, PILB = 158880, 162112 - 9 * 192
HIST, BASE, SORT, USC = 151552, 152576, 153600, 158720
CNTN, MISC = 160768, 161024
IL, EL, DL = 151552, 153664, 157824
QB, QS = 0, 1040
AB = XB
RING = 65536
ROFF = (0, 1024, 32768, 33792)
PS = 65536
LDS_TOTAL = 163840

W_EPOCH, W_FA, W_FB = 0, 0x1000, 0x3000
W_OFFS, W_RECS, W_UT, W_P = 0x10000, 0x90000, 0x700000, 0x200000
W_UTAG = 0x6000
W_STAMP = 0x800000
WS_SIZE = 0xA00000
OOB = 0x80000000
POLL_LIMIT = 200000


def f2u(x):
    return struct.unpack("<I", struct.pack("<f", x))[0]


NLOG2E = f2u(-1.4426950408889634)
NLN2 = f2u(-0.6931471805599453)
BIG = f2u(2.0 ** 120)


def vr(a, n=1):
    return "v%d" % a if n == 1 else "v[%d:%d]" % (a, a + n - 1)


def sr(a, n=1):
    return "s%d" % a if n == 1 else "s[%d:%d]" % (a, a + n - 1)


TID, LANE = 0, 1
XA = 2
STG, GO, GO2, STR = 6, 7, 8, 9
RBA, CQ = 10, 11
ACC = 12
UF = 24
XR = 24
XF2, WF = 88, 96
AC2 = 104
XF = 56
WOFF, TR0, TR1 = 120, 121, 122
STAMPV = 123
W3 = 124
NPASS = 4
POLLB = 16
FO = 120
W3L = MISC + 64
XCNT, S1C, S2C, ACKC, BACK = MISC + 8, MISC + 12, MISC + 16, MISC + 20, MISC + 24


class Scratch:
    def __init__(self, rec, adr, rank, tmp):
        self.rec, self.adr, self.rank, self.tmp = rec, adr, rank, tmp


REC1 = [116, 118, 124, 126]
SCRP = Scratch(REC1, 12, None, 18)
SCRX = Scratch(REC1, ACC, ACC + 4, ACC + 8)
SCR2 = Scratch([24, 26, 28, 30], 40, 44, 48)
CNA = 109
PA = (56, 64)
EE = (72, 74)
IA, Q, QE, Y, TT, NN, DD = 76, 78, 86, 90, 94, 98, 102
CK2, CK1 = 106, 108
RG, IXA, EA, QA, AG, L4, L8, INFO, TM, IOF = 82, 116, 117, 112, 113, 83, 84, 118, 120, 85
TZ = 115
IX0 = 64

sT, sW = 2, 3
sX, sWM, sWU, sWS, sP, sOUT, sSRC, sDST, sEA = 4, 8, 12, 16, 20, 24, 28, 32, 36
sNL2E, sNLN2, sWK, sW1K = 58, 60, 62, 63
sMASK, sI, sNE, sREM, sTRIP, sSLOT = 64, 66, 67, 68, 69, 70
sM, sP0, sNP, sMAXC, sFIRST, sMODE = 74, 75, 76, 77, 78, 79
sVAL = 80
sA, sB, sC, sD = 88, 89, 90, 91
sEX = 42
sCO = 48
sHI, sTAG, sTLO, sGEN = 49, 52, 56, 57
sQ0, sAG0 = 44, 45
sUO, sUG, sUB, sE = 64, 65, 38, 39
sZ, sU, sRA, sRB = 6, 30, 29, 31
sTM, sHB = 28, 69
sHB2 = sHB


class Gen:
    def __init__(self, opts=()):
        self.opts = set(opts)
        self.a = Asm()
        self.stamps = "stamps" in self.opts
        self.nstamp = 0
        self.names = []
        self.lq = []
        self.q = {"L": [], "N": []}

    def opt(self, name, default):
        for o in self.opts:
            if o.startswith(name + "="):
                return int(o.split("=")[1])
        return default

    STAMP_REGS = [92, 94, 96, 98, 100, 50, 54, 4, 12, 14, 32, 34, 36]

    def stampval(self, name, sreg):
        sel = [o[3:].split("+") for o in self.opts if o.startswith("st=")]
        if not self.stamps or not sel or name not in sel[0]:
            return
        k = self.nstamp
        self.nstamp += 1
        self.names.append("=" + name)
        self.a(f"s_add_u32 s{self.STAMP_REGS[k]}, s{sreg}, 1")

    def stamp(self, name):
        if not self.stamps:
            return
        sel = [o[3:].split("+") for o in self.opts if o.startswith("st=")]
        if name not in ("start", "end") and sel and name not in sel[0]:
            return
        k = self.nstamp
        self.nstamp += 1
        self.names.append(name)
        if "dbg" in self.opts:
            self.a(f"s_memrealtime {sr(self.STAMP_REGS[k], 2)}")
            if name == "end":
                a = self.a
                a("s_load_dwordx2 s[40:41], s[0:1], 56\ns_waitcnt lgkmcnt(0)")
                a(f"s_not_b32 s44, s{self.STAMP_REGS[0]}\nv_writelane_b32 v{STAMPV}, s44, 15")
                for i in range(self.nstamp):
                    a(f"v_writelane_b32 v{STAMPV}, s{self.STAMP_REGS[i]}, {i}")
                a(f"""
                s_mov_b32 s42, 64
                s_mov_b32 s43, 0x20000
                v_lshlrev_b32 v{TM}, 2, v{LANE}
                s_cmp_eq_u32 s{sW}, 0
                s_cbranch_scc0 L_end
                buffer_atomic_umax v{STAMPV}, v{TM}, s[40:43], 0 offen
                s_branch L_end
                """)
            return
        if name == "start":
            self.a(f"v_writelane_b32 v{STAMPV}, s86, 0")
            return
        if name in ("start", "end"):
            self.a(f"""
            s_memrealtime s[40:41]
            s_waitcnt lgkmcnt(0)
            v_writelane_b32 v{STAMPV}, s40, {0 if name == "start" else 1}
            """)
        self.a(f"s_memtime {sr(self.STAMP_REGS[k], 2)}")
        if name == "end":
            self.a("s_waitcnt lgkmcnt(0)")
            for i in range(self.nstamp):
                self.a(f"v_writelane_b32 v{STAMPV}, s{self.STAMP_REGS[i]}, {32 + i}")

    def vm(self, roles, tag, n=1):
        for r in roles:
            self.q[r] += [tag] * n

    def vmwait(self, tags):
        need = {}
        for r, lst in self.q.items():
            last = max((i for i, t in enumerate(lst) if t in tags), default=None)
            if last is None:
                need[r] = None
            else:
                need[r] = len(lst) - 1 - last
                self.q[r] = lst[last + 1:]
        a = self.a
        if need["L"] == need["N"]:
            if need["L"] is not None:
                a(f"s_waitcnt vmcnt({need['L']})")
            return
        lab = a.newlabel("vw")
        if need["N"] is None:
            a(f"s_cmp_lt_u32 s{sW}, 8\ns_cbranch_scc1 {lab}\ns_waitcnt vmcnt({need['L']})\n{lab}:")
        elif need["L"] is None:
            a(f"s_cmp_ge_u32 s{sW}, 8\ns_cbranch_scc1 {lab}\ns_waitcnt vmcnt({need['N']})\n{lab}:")
        elif need["L"] > need["N"]:
            a(f"s_waitcnt vmcnt({need['L']})\ns_cmp_ge_u32 s{sW}, 8\ns_cbranch_scc1 {lab}\ns_waitcnt vmcnt({need['N']})\n{lab}:")
        else:
            a(f"s_waitcnt vmcnt({need['N']})\ns_cmp_lt_u32 s{sW}, 8\ns_cbranch_scc1 {lab}\ns_waitcnt vmcnt({need['L']})\n{lab}:")

    def lwait(self, tag):
        last = max(i for i, t in enumerate(self.lq) if t == tag)
        self.a(f"s_waitcnt lgkmcnt({len(self.lq) - 1 - last})")
        self.lq = self.lq[last + 1:]

    def barrier(self, name, lgkm=True):
        for o in self.opts:
            if o.startswith("padat=") and o.split("=")[1].split(":")[0] == name:
                self.a(f"""
                L_padat:
                s_memrealtime s[98:99]
                s_waitcnt lgkmcnt(0)
                s_sub_u32 s98, s98, s96
                s_cmp_lt_u32 s98, {o.split(":")[1]}
                s_cbranch_scc1 L_padat
                """)
        if lgkm:
            self.a("s_waitcnt lgkmcnt(0)")
        self.a("s_barrier")
        self.stamp(name)

    def dma_body(self, k, slot, role="L"):
        a = self.a
        if f"noc{k}" in self.opts:
            for m in range(4):
                a(f"s_mov_b32 m0, {USC + 1024}\ns_mov_b32 s{sB}, {OOB}\nbuffer_load_dwordx4 v{WOFF}, {sr(sWM, 4)}, s{sB} offen lds")
            self.vm(role, f"c{k}", 4)
            return
        srd, base = ((sWM, 0), (sWM, 131072))[k // 4]
        c = k % 4
        for m in range(4):
            a(f"""
            s_add_u32 m0, s{sW1K}, {SLOT[slot] + m * 8192}
            s_mov_b32 s{sB}, {base + c * 32768 + m * 8192}
            buffer_load_dwordx4 v{WOFF}, {sr(srd, 4)}, s{sB} offen lds
            """)
        self.vm(role, f"c{k}", 4)

    def dma_all(self, k, slot, m):
        a = self.a
        srd, base = ((sWM, 0), (sWM, 131072))[k // 4]
        a(f"""
        s_add_u32 m0, s{sWK}, {SLOT[slot] + m * 16384}
        s_add_u32 s{sB}, s{sHI}, {base + (k % 4) * 32768 + m * 16384}
        buffer_load_dwordx4 v{WOFF}, {sr(srd, 4)}, s{sB} offen lds
        """)
        self.vm("LN", f"c{k}")

    def spin(self, ctr, target, tmp, extra=None):
        a = self.a
        lab = a.newlabel("spin")
        a(f"v_mov_b32 v{tmp}, {ctr}")
        a.label(lab)
        a(f"ds_read_b32 v{tmp + 1}, v{tmp}")
        if extra:
            a(extra)
        a(f"""
        s_waitcnt lgkmcnt(0)
        v_readfirstlane_b32 s{sA}, v{tmp + 1}
        s_nop 0
        s_cmp_lt_u32 s{sA}, {target}
        s_cbranch_scc1 {lab}
        """)

    def xspin(self, shift):
        a = self.a
        lab = a.newlabel("xs")
        a(f"""
        {lab}:
        ds_read_b32 v{WF + 1}, v{WF}
        s_waitcnt lgkmcnt(0)
        v_readfirstlane_b32 s{sA}, v{WF + 1}
        s_nop 0
        s_bfe_u32 s{sA}, s{sA}, {shift | (4 << 16)}
        s_cmp_lt_u32 s{sA}, 3
        s_cbranch_scc0 {lab}_ok
        s_sleep 1
        s_branch {lab}
        {lab}_ok:
        """)

    def touch(self):
        a = self.a
        l2, done = a.newlabel("tw2"), a.newlabel("tdone")
        a(f"""
        s_lshr_b32 s{sA}, s{sT}, 3
        s_lshl_b32 s{sA}, s{sA}, 12
        s_mov_b32 m0, {USC + 1024}
        v_lshlrev_b32 v{W3 + 2}, 4, v{LANE}
        s_cmp_eq_u32 s{sW}, 5
        s_cbranch_scc0 {l2}
        """)
        for m in range(4):
            a(f"s_add_u32 s{sB}, s{sA}, {1024 * m}\nbuffer_load_dwordx4 v{W3 + 2}, {sr(sWU, 4)}, s{sB} offen lds")
        a(f"s_branch {done}\n{l2}:\ns_cmp_eq_u32 s{sW}, 6\ns_cbranch_scc0 {done}")
        for m in range(4):
            a(f"s_add_u32 s{sB}, s{sA}, {131072 + 1024 * m}\nbuffer_load_dwordx4 v{W3 + 2}, {sr(sWM, 4)}, s{sB} offen lds")
        a.label(done)

    def xpreload(self, ua):
        a = self.a
        a(f"v_mov_b32 v{WF}, {XCNT}")
        self.xspin(0)
        self.stamp("xa")
        for s in range(8):
            a(f"ds_read_b128 {vr(XR + 4 * s, 4)}, v{XA + (s & 3)} offset:{(s >> 2) * 256}")
        a(f"""
        s_cmp_lt_u32 s{sW}, 5
        s_cbranch_scc1 L_xp_go
        s_cmp_ge_u32 s{sW}, 8
        s_cbranch_scc1 L_xp_go
        v_mov_b32 v{W3 + 3}, 16
        s_mov_b64 exec, 1
        s_waitcnt vmcnt(0)
        ds_add_u32 v{WF}, v{W3 + 3}
        s_mov_b64 exec, -1
        """)
        a.label("L_xp_go")
        self.xspin(4)
        self.stamp("xb")
        for s in range(8):
            a(f"ds_read_b128 {vr(XR + 32 + 4 * s, 4)}, v{XA + (s & 3)} offset:{8192 + (s >> 2) * 256}")
        self.xreads(0)
        a(f"s_cmp_lt_u32 s{sW}, 8\ns_cbranch_scc1 L_xp_c2")
        self.dma_body(1, 1)
        a("s_branch L_xp_done\nL_xp_c2:")
        self.dma_body(2, 2, "N")
        a.label("L_xp_done")

    def xreads(self, c):
        a = self.a
        for sp in range(2):
            s = 2 * c + sp
            a(f"ds_read_b128 {vr(XF2 + 4 * sp, 4)}, v{XA + (s & 3)} offset:{2 * 8192 + (s >> 2) * 256}")

    def trreads(self, slot):
        a = self.a
        base = SLOT[slot]
        tr = TR0 if base < 65536 else TR1
        for sp in range(2):
            for p in range(2):
                a(f"ds_read_b64_tr_b16 {vr(WF + 4 * sp + 2 * p, 2)}, v{tr} offset:{(base & 65535) + 16384 * sp + 2048 * p}")

    def mfmas(self, acc, c, between=None):
        a = self.a
        for sp in range(2):
            if between:
                between(sp)
            a(f"s_waitcnt lgkmcnt({2 - 2 * sp})")
            for rb in range(3):
                cin = "0" if (c == 0 and sp == 0) else vr(acc + 4 * rb, 4)
                b = XR + 32 * rb + 4 * (2 * c + sp) if rb < 2 else XF2 + 4 * sp
                a(f"v_mfma_f32_16x16x32_bf16 {vr(acc + 4 * rb, 4)}, {vr(WF + 4 * sp, 4)}, {vr(b, 4)}, {cin}")

    def scan(self, v):
        a = self.a
        for sh in (1, 2, 4, 8):
            a(f"v_add_u32_dpp v{v}, v{v}, v{v} row_shr:{sh} row_mask:0xf bank_mask:0xf bound_ctrl:0")
        a(f"v_add_u32_dpp v{v}, v{v}, v{v} row_bcast:15 row_mask:0xa bank_mask:0xf")
        a(f"v_add_u32_dpp v{v}, v{v}, v{v} row_bcast:31 row_mask:0xc bank_mask:0xf")

    def poll_issue(self):
        a = self.a
        a(f"v_lshlrev_b32 v14, 5, v{LANE}\ns_mov_b32 s{sB}, {W_FB}\ns_mov_b32 s{sD}, {W_FB + 4096}")
        for k in range(4):
            a(f"buffer_load_dwordx2 {vr(POLLB + 2 * k, 2)}, v14, {sr(sWS, 4)}, s{sB if k < 2 else sD} offen offset:{2048 * (k & 1)} sc1")

    def poll_wait(self):
        a = self.a
        lp, chk, done = a.newlabel("poll"), a.newlabel("pchk"), a.newlabel("pdone")
        a(f"s_mov_b32 s{sC}, 0\ns_branch {chk}")
        a.label(lp)
        self.poll_issue()
        a.label(chk)
        m58 = (1 << (NT - 192)) - 1
        a(f"""
        s_waitcnt vmcnt(0)
        v_cmp_ne_u64 s[40:41], {sr(sTAG, 2)}, {vr(POLLB, 2)}
        v_cmp_ne_u64 vcc, {sr(sTAG, 2)}, {vr(POLLB + 2, 2)}
        v_cmp_ne_u64 s[88:89], {sr(sTAG, 2)}, {vr(POLLB + 4, 2)}
        v_cmp_ne_u64 s[46:47], {sr(sTAG, 2)}, {vr(POLLB + 6, 2)}
        s_nop 1
        s_and_b32 s47, s47, {m58 >> 32}
        s_or_b64 s[40:41], s[40:41], vcc
        s_or_b64 s[46:47], s[88:89], s[46:47]
        s_or_b64 s[40:41], s[40:41], s[46:47]
        s_cbranch_scc0 {done}
        s_add_u32 s{sC}, s{sC}, 1
        s_cmp_lt_u32 s{sC}, {POLL_LIMIT}
        s_cbranch_scc1 {lp}
        """)
        a.label(done)

    def tag_store(self, soff, tmp):
        a = self.a
        a(f"""
        v_mov_b32 v{tmp}, s{sTAG}
        v_mov_b32 v{tmp + 1}, s{sTAG + 1}
        v_lshlrev_b32 v{tmp + 2}, 24, v{LANE}
        buffer_store_dwordx2 {vr(tmp, 2)}, v{tmp + 2}, {sr(sWS, 4)}, s{soff} offen sc1
        """)

    def wave0(self, fn):
        a = self.a
        lab = a.newlabel("w0")
        a(f"s_cmp_eq_u32 s{sW}, 0\ns_cbranch_scc0 {lab}")
        fn()
        a.label(lab)

    def edge(self, pb, which, exact, first):
        a = self.a
        if "noedge" in self.opts:
            return
        p = PA[pb] + 4 * which
        sel = "op_sel:[1,0,0] op_sel_hi:[1,1,1]" if which else "op_sel:[0,0,0] op_sel_hi:[0,1,1]"
        y = NN if (first and not exact) else Y
        for h in range(2):
            a(f"v_pk_fma_f32 {vr(QE + 2 * h, 2)}, {vr(EE[pb], 2)}, {vr(W3 + 2 * h, 2)}, {vr(Q + 2 * h, 2)} {sel}")
        for h in range(2):
            a(f"v_pk_add_f32 {vr(y + 2 * h, 2)}, {vr(p + 2 * h, 2)}, {vr(QE + 2 * h, 2)}")
        for r in range(4):
            a(f"v_exp_f32 v{TT + r}, v{y + r}")
        if exact:
            for h in range(2):
                a(f"v_pk_add_f32 {vr(TT + 2 * h, 2)}, {vr(TT + 2 * h, 2)}, 1.0 op_sel_hi:[1,0]")
            for r in range(4):
                a(f"v_rcp_f32 v{TT + r}, v{TT + r}")
            for h in range(2):
                if first:
                    a(f"v_pk_mul_f32 {vr(NN + 2 * h, 2)}, {vr(Y + 2 * h, 2)}, {vr(TT + 2 * h, 2)}")
                else:
                    a(f"v_pk_fma_f32 {vr(NN + 2 * h, 2)}, {vr(Y + 2 * h, 2)}, {vr(TT + 2 * h, 2)}, {vr(NN + 2 * h, 2)}")
        elif first:
            for h in range(2):
                a(f"v_pk_add_f32 {vr(DD + 2 * h, 2)}, {vr(TT + 2 * h, 2)}, 1.0 op_sel_hi:[1,0]")
        else:
            for h in range(2):
                a(f"v_pk_fma_f32 {vr(NN + 2 * h, 2)}, {vr(NN + 2 * h, 2)}, {vr(TT + 2 * h, 2)}, {vr(NN + 2 * h, 2)}")
            for h in range(2):
                a(f"v_pk_fma_f32 {vr(NN + 2 * h, 2)}, {vr(Y + 2 * h, 2)}, {vr(DD + 2 * h, 2)}, {vr(NN + 2 * h, 2)}")
            for h in range(2):
                a(f"v_pk_fma_f32 {vr(DD + 2 * h, 2)}, {vr(DD + 2 * h, 2)}, {vr(TT + 2 * h, 2)}, {vr(DD + 2 * h, 2)}")

    def flush(self, exact, mid=None, final=False):
        a = self.a
        if exact:
            if mid:
                mid()
            a(f"v_cvt_pk_bf16_f32 v{TT}, v{NN}, v{NN + 1}")
            a(f"v_cvt_pk_bf16_f32 v{TT + 1}, v{NN + 2}, v{NN + 3}")
            a(f"ds_pk_add_bf16 v{AG}, v{TT}")
            a(f"ds_pk_add_bf16 v{AG}, v{TT + 1} offset:4")
            return 2
        for r in range(4):
            a(f"v_rcp_f32 v{TT + r}, v{DD + r}")
        if mid:
            mid()
        a(f"v_max3_f32 v{CK1}, v{CK1}, v{DD}, v{DD + 1}")
        a(f"v_max3_f32 v{CK1}, v{CK1}, v{DD + 2}, v{DD + 3}")
        for h in range(2):
            a(f"v_pk_mul_f32 {vr(Y + 2 * h, 2)}, {vr(NN + 2 * h, 2)}, {vr(TT + 2 * h, 2)}")
        for h in range(2):
            a(f"v_pk_fma_f32 {vr(CK2, 2)}, {vr(Y + 2 * h, 2)}, 0, {vr(CK2, 2)} op_sel_hi:[1,0,1]")
        if final:
            a(f"""
            s_cmp_eq_u32 s{sCO}, 0
            s_cbranch_scc1 L_noside
            s_lshl_b32 s{sA}, s{sW}, 9
            s_add_u32 s{sA}, s{sA}, {(SIDE + 512) ^ AB}
            v_xor_b32 v{QA}, s{sA}, v{L8}
            s_mov_b32 s{sC}, 0
            L_side:
            ds_read_b64 {vr(TT, 2)}, v{QA}
            s_add_u32 s{sC}, s{sC}, 1
            s_waitcnt lgkmcnt(0)
            v_cmp_eq_u64 vcc, -1, {vr(TT, 2)}
            s_cmp_gt_u32 s{sC}, 4000
            s_cbranch_scc1 L_side_go
            s_cbranch_vccnz L_side
            L_side_go:
            v_lshlrev_b32 v{QE}, 16, v{TT}
            v_and_b32 v{QE + 1}, 0xffff0000, v{TT}
            v_lshlrev_b32 v{QE + 2}, 16, v{TT + 1}
            v_and_b32 v{QE + 3}, 0xffff0000, v{TT + 1}
            v_pk_add_f32 {vr(Y, 2)}, {vr(Y, 2)}, {vr(QE, 2)}
            v_pk_add_f32 {vr(Y + 2, 2)}, {vr(Y + 2, 2)}, {vr(QE + 2, 2)}
            L_noside:
            """)
        a(f"v_cvt_pk_bf16_f32 v{TT}, v{Y}, v{Y + 1}")
        a(f"v_cvt_pk_bf16_f32 v{TT + 1}, v{Y + 2}, v{Y + 3}")
        a(f"ds_write_b64 v{AG}, {vr(TT, 2)}")
        return 1

    def p_reads(self, pb, slot):
        a = self.a
        for row in range(2):
            for r in range(4):
                a(f"ds_read_u16_d16_hi v{PA[pb] + 4 * row + r}, v{RG} offset:{ROFF[slot] + row * 512 + r * 128}")

    def gather(self, slot):
        if "nodma" in self.opts:
            return
        self.a(f"""
        s_mov_b32 m0, s{sSLOT + slot}
        buffer_load_dwordx4 {vr(IA, 2)}, {sr(sP, 4)}, 0 idxen offen sc1 lds
        """)

    def reads(self, jj):
        a = self.a
        pb = jj & 1
        self.p_reads(pb ^ 1, (jj + 1) & 3)
        a(f"ds_read_b64 {vr(EE[pb ^ 1], 2)}, v{EA} offset:{8 * (jj + 1)}")
        a(f"ds_read_u16 v{IA}, v{IXA} offset:{4 * (jj + 5)}")

    def main_loop(self, exact, exit_label):
        a = self.a
        tag = "x" if exact else "f"
        loop, fin = f"L_loop_{tag}", f"L_fin_{tag}"
        prio = not exact and "noprio" not in self.opts
        a.label(loop)
        for jj in range(4):
            a(f"s_and_b32 s{sA}, s{sTM}, {3 << (2 * jj)}\ns_cbranch_scc1 L_blk_{tag}_{jj}\ns_waitcnt vmcnt(3)")
            self.reads(jj)
            self.edge(jj & 1, 0, exact, False)
            self.edge(jj & 1, 1, exact, False)
            a.label(f"L_back_{tag}_{jj}")
            a(f"s_mov_b32 m0, s{sSLOT + ((jj + 1) & 3)}\ns_waitcnt lgkmcnt(0)")
            if "nodma" not in self.opts:
                a(f"buffer_load_dwordx4 {vr(IA, 2)}, {sr(sP, 4)}, 0 idxen offen sc1 lds")
        a(f"""
        v_add_u32 v{IXA}, 16, v{IXA}
        v_add_u32 v{EA}, 32, v{EA}
        s_lshr_b64 {sr(sMASK, 2)}, {sr(sMASK, 2)}, 8
        s_or_b32 s{sMASK + 1}, s{sMASK + 1}, s{sHB}
        s_mov_b32 s{sHB}, 0
        s_mov_b32 s{sTM}, s{sMASK}
        s_add_u32 s{sI}, s{sI}, 8
        """)
        if prio:
            t2, t1, t0 = self.opt("p2", 12), self.opt("p1", 8), self.opt("p0", 4)
            a(f"""
            s_sub_u32 s{sREM}, s{sREM}, 4
            s_cmp_gt_i32 s{sREM}, {t2}
            s_cbranch_scc1 {loop}
            s_setprio 2
            s_cmp_gt_i32 s{sREM}, {t1}
            s_cbranch_scc1 {loop}
            s_setprio 1
            s_cmp_gt_i32 s{sREM}, {t0}
            s_cbranch_scc1 {loop}
            s_setprio 0
            """)
        a(f"s_branch {loop}")
        for jj in range(4):
            pb = jj & 1
            b = f"L_blk_{tag}_{jj}"
            a.reset_hist()
            a(f"""
            {b}:
            s_waitcnt vmcnt(11)
            s_cmp_eq_u32 s{sI}, 0
            s_cbranch_scc1 {b}_w
            s_waitcnt vmcnt(3)
            {b}_w:
            """)
            self.reads(jj)
            a(f"s_bitcmp1_b32 s{sMASK}, {2 * jj}\ns_cbranch_scc1 {b}_f0")
            self.edge(pb, 0, exact, False)
            a(f"{b}_a:\ns_bitcmp1_b32 s{sMASK}, {2 * jj + 1}\ns_cbranch_scc1 {b}_f1")
            self.edge(pb, 1, exact, False)
            a(f"s_branch L_back_{tag}_{jj}")
            for which in range(2):
                a.reset_hist()
                a(f"""
                {b}_f{which}:
                s_add_u32 s{sA}, s{sI}, {2 * jj + which}
                s_cmp_eq_u32 s{sA}, s{sNE}
                s_cbranch_scc1 {fin}
                v_readlane_b32 s{sB}, v{INFO}, s{sA}
                """)

                def mid():
                    a(f"""
                    s_and_b32 s{sC}, s{sB}, 0xffff
                    s_lshr_b32 s{sD}, s{sB}, 16
                    v_add_u32 v{QA}, s{sC}, v{L4}
                    ds_read2st64_b32 {vr(Q, 2)}, v{QA} offset0:0 offset1:1
                    ds_read2st64_b32 {vr(Q + 2, 2)}, v{QA} offset0:2 offset1:3
                    """)

                n = self.flush(exact, mid)
                a(f"""
                v_xor_b32 v{AG}, s{sD}, v{L8}
                s_waitcnt lgkmcnt({n})
                """)
                self.edge(pb, which, exact, True)
                a(f"s_branch {b + '_a' if which == 0 else f'L_back_{tag}_{jj}'}")
        a.reset_hist()
        a.label(fin)
        self.flush(exact, final=True)
        a(f"s_branch {exit_label}")

    def zero_agg(self, addr, zq):
        a = self.a
        lab = a.newlabel("zagg")
        a(f"""
        ds_write_b128 v{addr}, {vr(zq, 4)}
        s_cmp_lt_u32 s{sW}, 4
        s_cbranch_scc0 {lab}
        ds_write_b128 v{addr}, {vr(zq, 4)} offset:16384
        {lab}:
        """)

    def u2_loads(self):
        a = self.a
        a(f"""
        s_lshl_b32 s{sA}, s{sW}, 14
        s_add_u32 s{sA}, s{sA}, {W_UT + 8192}
        s_add_u32 s{sB}, s{sA}, 4096
        v_lshlrev_b32 v{TM}, 4, v{LANE}
        """)
        for s in range(8):
            so = sA if s < 4 else sB
            a(f"buffer_load_dwordx4 {vr(UF + 4 * s, 4)}, v{TM}, {sr(sWS, 4)}, s{so} offen offset:{(s & 3) * 1024} sc1")

    def hi_passes(self, fn):
        a = self.a
        fn(0)
        fn(1)
        lab = a.newlabel("hp")
        a(f"s_cmp_eq_u64 {sr(sVAL + 4, 2)}, 0\ns_cbranch_scc1 {lab}")
        fn(2)
        fn(3)
        a.label(lab)

    def rec_issue(self, S):
        a = self.a
        a(f"""
        s_lshl_b32 s{sA}, s{sP0}, 2
        s_lshl_b32 s{sB}, s{sP0}, 5
        v_mov_b32 v{S.tmp}, {OOB}
        s_add_u32 s{sC}, s{sA}, 4
        s_add_u32 s{sD}, s{sA}, 8
        v_cmp_lt_i32 {sr(sVAL, 2)}, s{sA}, v{CQ}
        s_add_u32 s{sA}, s{sA}, 12
        v_cmp_lt_i32 {sr(sVAL + 2, 2)}, s{sC}, v{CQ}
        v_cmp_lt_i32 {sr(sVAL + 4, 2)}, s{sD}, v{CQ}
        v_cmp_lt_i32 {sr(sVAL + 6, 2)}, s{sA}, v{CQ}
        s_cmp_gt_u32 s{sNP}, 1
        s_cselect_b64 {sr(sVAL + 2, 2)}, {sr(sVAL + 2, 2)}, 0
        s_cselect_b64 {sr(sVAL + 4, 2)}, {sr(sVAL + 4, 2)}, 0
        s_cselect_b64 {sr(sVAL + 6, 2)}, {sr(sVAL + 6, 2)}, 0
        """)
        lab = a.newlabel("hp")
        a(f"s_cmp_eq_u64 {sr(sVAL + 4, 2)}, 0\ns_cbranch_scc1 {lab}")
        for k in (2, 3, 0, 1):
            if k == 0:
                a.label(lab)
            a(f"""
            v_cndmask_b32 v{S.adr + k}, v{S.tmp}, v{RBA}, {sr(sVAL + 2 * k, 2)}
            buffer_load_dwordx2 {vr(S.rec[k], 2)}, v{S.adr + k}, {sr(sWS, 4)}, s{sB} offen offset:{32 * k} sc1
            """)

    def count(self, S):
        a = self.a
        a(f"v_mov_b32 v{S.tmp}, 1\ns_mov_b32 s{sA}, {CNTN}")

        def one(k):
            a(f"""
            s_mov_b64 exec, {sr(sVAL + 2 * k, 2)}
            v_bfe_u32 v{S.adr + k}, v{S.rec[k]}, 16, 6
            v_lshl_add_u32 v{S.adr + k}, v{S.adr + k}, 2, s{sA}
            ds_add_rtn_u32 v{S.rank + k}, v{S.adr + k}, v{S.tmp}
            """)
        self.hi_passes(one)
        a("s_mov_b64 exec, -1")

    def lists(self, S, generic_label):
        a = self.a
        sc = S.tmp
        done = a.newlabel("lists")
        a(f"""
        s_mov_b32 s{sA}, {CNTN}
        v_lshl_add_u32 v{sc + 3}, v{LANE}, 2, s{sA}
        v_mov_b32 v{sc + 2}, {MISC}
        ds_read_b32 v{sc}, v{sc + 3}
        ds_read_b32 v{sc + 2}, v{sc + 2}
        s_waitcnt lgkmcnt(0)
        v_mov_b32 v{sc + 1}, v{sc}
        v_readfirstlane_b32 s{sMAXC}, v{sc + 2}
        v_cmp_eq_u32 {sr(sZ, 2)}, 0, v{sc}
        v_subrev_u32 v{sc}, {DL}, v{sc}
        """)
        self.scan(sc + 1)
        a(f"""
        v_readlane_b32 s{sM}, v{sc + 1}, 63
        v_sub_u32 v{sc + 1}, v{sc + 1}, v{sc}
        s_cmp_eq_u32 s{sNP}, {NPASS}
        s_cbranch_scc0 {done}
        s_cmp_gt_u32 s{sM}, 1024
        s_cbranch_scc1 {generic_label}
        s_cmp_eq_u32 s{sMAXC}, 0
        s_cbranch_scc0 {generic_label}
        s_cmp_lt_u32 s{sM}, 64
        s_cbranch_scc0 {done}
        s_mov_b32 s{sMODE}, 1
        {done}:
        """)
        self.hi_passes(lambda k: a(f"ds_bpermute_b32 v{S.adr + k}, v{S.adr + k}, v{sc + 1}"))
        a(f"""
        s_add_u32 s{sA}, s{sM}, 1
        s_lshr_b32 s{sA}, s{sA}, 1
        s_mul_i32 s{sB}, s{sA}, s{sW}
        s_add_u32 s{sC}, s{sB}, s{sA}
        s_lshr_b32 s{sI}, s{sB}, 4
        s_lshr_b32 s{sC}, s{sC}, 4
        s_sub_u32 s{sREM}, s{sC}, s{sI}
        s_lshl_b32 s{sC}, s{sC}, 1
        s_cmp_lt_u32 s{sC}, s{sM}
        s_cselect_b32 s{sCO}, 1, 0
        s_min_u32 s{sC}, s{sC}, s{sM}
        s_lshl_b32 s{sI}, s{sI}, 1
        s_sub_u32 s{sNE}, s{sC}, s{sI}
        s_mov_b32 s{sA}, {(IL - 2 * DL) & 0xffffffff}
        s_mov_b32 s{sB}, {(EL - 4 * DL) & 0xffffffff}
        s_waitcnt lgkmcnt(0)
        """)

        def one(k):
            a(f"""
            s_mov_b64 exec, {sr(sVAL + 2 * k, 2)}
            v_add_u32 v{S.rank + k}, v{S.rank + k}, v{S.adr + k}
            v_lshl_add_u32 v{S.adr + k}, v{S.rank + k}, 1, s{sA}
            v_lshl_add_u32 v{sc + (k & 1)}, v{S.rank + k}, 2, s{sB}
            ds_write_b8_d16_hi v{S.rank + k}, v{S.rec[k]}
            ds_write_b16 v{S.adr + k}, v{S.rec[k]}
            ds_write_b32 v{sc + (k & 1)}, v{S.rec[k] + 1}
            """)
        self.hi_passes(one)
        a("s_mov_b64 exec, -1")

    def setup(self, tm):
        a = self.a
        a(f"""
        s_add_u32 s{sD}, s{sI}, {DL - 1}
        v_add_u32 v{INFO}, s{sD}, v{LANE}
        s_lshl_b32 s{sA}, s{sI}, 1
        s_add_u32 s{sA}, s{sA}, {IL}
        v_lshl_add_u32 v{EA}, v{LANE}, 1, s{sA}
        ds_read_u16 v{tm + 3}, v{EA}
        ds_read_u8 v{tm}, v{INFO}
        ds_read_u8 v{tm + 2}, v{INFO} offset:1
        ds_read_u8 v{tm + 1}, v{INFO} offset:2
        s_cmp_lt_u32 s{sW}, 9
        s_mov_b32 s{sC}, {PILB}
        s_cselect_b32 s{sC}, {PILA}, s{sC}
        s_mul_i32 s{sB}, s{sW}, 192
        s_add_u32 s{sB}, s{sB}, s{sC}
        v_lshl_add_u32 v{INFO}, v{LANE}, 1, s{sB}
        v_mov_b32 v{tm + 4}, 0xffff
        v_cmp_gt_i32 vcc, s{sNE}, v{LANE}
        s_mov_b32 exec_hi, 0
        ds_write_b16 v{INFO}, v{tm + 4} offset:128
        s_mov_b64 exec, -1
        v_lshrrev_b32 v{IXA}, 5, v{LANE}
        v_lshl_add_u32 v{IXA}, v{IXA}, 1, s{sB}
        s_lshl_b32 s{sA}, s{sI}, 2
        s_add_u32 s{sA}, s{sA}, {EL}
        v_mov_b32 v{EA}, s{sA}
        s_waitcnt lgkmcnt(4)
        v_cndmask_b32 v{tm + 3}, v{tm + 4}, v{tm + 3}, vcc
        ds_write_b16 v{INFO}, v{tm + 3}
        """)
        for k in range(5):
            a(f"ds_read_u16 v{IX0 + k}, v{IXA} offset:{4 * k}")
        a(f"""
        s_waitcnt lgkmcnt(7)
        v_cmp_ne_u32 {sr(sMASK, 2)}, v{tm + 2}, v{tm + 1}
        v_cmp_eq_u32 vcc, v{tm + 2}, v{tm}
        v_mul_u32_u24 v{INFO}, {QS}, v{tm + 2}
        v_and_b32 v{tm + 1}, 15, v{tm + 2}
        v_lshlrev_b32 v{tm + 1}, 4, v{tm + 1}
        v_lshl_add_u32 v{tm + 1}, v{tm + 2}, 9, v{tm + 1}
        v_lshl_or_b32 v{INFO}, v{tm + 1}, 16, v{INFO}
        s_sub_u32 s{sA}, s{sNE}, 1
        s_bitcmp0_b64 {sr(sMASK, 2)}, s{sA}
        s_cselect_b32 s{sCO}, s{sCO}, 0
        s_bitset1_b64 {sr(sMASK, 2)}, s{sA}
        v_readfirstlane_b32 s{sB}, v{INFO}
        ; end-of-segment bits become start-of-segment bits; bit 64 is carried separately
        s_lshr_b32 s{sHB2}, s{sMASK + 1}, 31
        s_lshl_b32 s{sHB2}, s{sHB2}, 24
        s_lshl_b64 {sr(sMASK, 2)}, {sr(sMASK, 2)}, 1
        s_and_b32 s{sC}, vcc_lo, 1
        s_cmp_eq_u32 s{sI}, 0
        s_cselect_b32 s{sC}, 0, s{sC}
        s_cmp_eq_u32 s{sMODE}, 0
        s_cselect_b32 s{sC}, s{sC}, 0
        s_lshl_b32 s{sA}, s{sW}, 9
        s_add_u32 s{sA}, s{sA}, {SIDE ^ AB}
        s_lshr_b32 s{sD}, s{sB}, 16
        s_cmp_eq_u32 s{sC}, 0
        s_cselect_b32 s{sAG0}, s{sD}, s{sA}
        s_and_b32 s{sQ0}, s{sB}, 0xffff
        """)

    def slot_consts(self):
        self.a(f"""
        s_lshl_b32 s{sA}, s{sW}, 11
        s_add_u32 s{sSLOT}, s{sA}, {RING + ROFF[0]}
        s_add_u32 s{sSLOT + 1}, s{sA}, {RING + ROFF[1]}
        s_add_u32 s{sSLOT + 2}, s{sA}, {RING + ROFF[2]}
        s_add_u32 s{sSLOT + 3}, s{sA}, {RING + ROFF[3]}
        v_and_b32 v{IA + 1}, 31, v{LANE}
        v_lshlrev_b32 v{IA + 1}, 4, v{IA + 1}
        """)

    def lane_consts(self):
        self.a(f"""
        v_lshl_add_u32 v{RG}, v{LANE}, 1, s{sSLOT}
        v_lshlrev_b32 v{L4}, 2, v{LANE}
        v_lshlrev_b32 v{L8}, 3, v{LANE}
        v_or_b32 v{L8}, {AB}, v{L8}
        """)

    def side_fill(self, tmp, adr):
        self.a(f"""
        v_mov_b64 {vr(tmp, 2)}, -1
        s_lshl_b32 s{sA}, s{sW}, 9
        s_add_u32 s{sA}, s{sA}, {SIDE}
        v_lshl_add_u32 v{adr}, v{LANE}, 3, s{sA}
        ds_write_b64 v{adr}, {vr(tmp, 2)}
        """)

    def tag_calc(self):
        self.a(f"""
        v_readfirstlane_b32 s{sTAG}, v{W3}
        v_readfirstlane_b32 s{sTAG + 1}, v{W3 + 1}
        s_add_u32 s{sTAG}, s{sTAG}, 1
        s_addc_u32 s{sTAG + 1}, s{sTAG + 1}, 0
        s_lshl_b32 s{sTLO}, s{sTAG + 1}, 20
        s_lshl_b32 s{sRA}, s{sTAG}, 24
        s_bfe_u32 s{sRB}, s{sTAG}, 0x100008
        """)

    def clean(self, S):
        a = self.a
        lp, ok = a.newlabel("clean"), a.newlabel("cleanok")
        a(f"s_mov_b32 s{sM}, 0\n{lp}:\ns_mov_b64 s[40:41], 0")

        def one(k):
            a(f"""
            s_mov_b64 exec, {sr(sVAL + 2 * k, 2)}
            v_xor_b32 v{S.rec[k]}, s{sRA}, v{S.rec[k]}
            v_xor_b32 v{S.rec[k] + 1}, s{sRB}, v{S.rec[k] + 1}
            v_lshrrev_b32 v{S.adr + k}, 24, v{S.rec[k]}
            v_lshl_or_b32 v{S.adr + k}, v{S.rec[k] + 1}, 16, v{S.adr + k}
            v_cmp_ne_u32 vcc, 0, v{S.adr + k}
            s_or_b64 s[40:41], s[40:41], vcc
            """)
        self.hi_passes(one)
        a(f"""
        s_mov_b64 exec, -1
        s_cmp_eq_u64 s[40:41], 0
        s_cbranch_scc1 {ok}
        s_add_u32 s{sM}, s{sM}, 1
        s_cmp_gt_u32 s{sM}, {POLL_LIMIT}
        s_cbranch_scc1 {ok}
        """)
        self.rec_issue(S)
        a(f"s_waitcnt vmcnt(0)\ns_branch {lp}\n{ok}:")

    def binning(self):
        a = self.a
        DV, SV, EP, AD, RK, RV, H0, B0, SQ, t4, t5, t6, t7 = 24, 26, 28, 30, 32, 34, 40, 44, 48, 52, 53, 54, 56
        a(f"""
        s_mov_b32 s{sC}, -40
        s_mov_b32 s{sD}, {HIST}
        v_mov_b32 v{t4}, 1
        v_mov_b32 v{t7}, {S1C}
        v_lshlrev_b32 v{t5}, 4, v{LANE}
        v_add_u32 v{t6}, {HIST}, v{t5}
        s_waitcnt vmcnt(1)
        """)
        self.stamp("edges")
        self.tag_calc()
        R2 = range(2)
        for i in R2:
            a(f"v_mul_u32_u24 v{AD + i}, 52429, v{DV + i}")
        for i in R2:
            a(f"v_lshrrev_b32 v{AD + i}, 21, v{AD + i}")
        for i in R2:
            a(f"v_min_u32 v{RK + i}, 255, v{AD + i}")
        for i in R2:
            a(f"v_and_b32 v{AD + i}, 7, v{RK + i}\nv_lshrrev_b32 v{H0 + i}, 3, v{RK + i}")
        for i in R2:
            a(f"v_lshl_or_b32 v{AD + i}, v{AD + i}, 5, v{H0 + i}")
        for i in R2:
            a(f"v_lshl_add_u32 v{AD + i}, v{AD + i}, 2, s{sD}")
        for i in R2:
            a(f"v_mad_i32_i24 v{DV + i}, v{RK + i}, s{sC}, v{DV + i}")
            a(f"ds_add_rtn_u32 v{RK + i}, v{AD + i}, v{t4}")
        a(f"s_mov_b64 exec, 1\nds_add_u32 v{t7}, v{t4}\ns_mov_b64 exec, -1")
        for i in R2:
            a(f"v_lshl_or_b32 v{RV + 2 * i}, v{DV + i}, 16, v{SV + i}")
        a(f"""
        v_mov_b32 v{RV + 3}, 0xffff0000
        v_lshl_or_b32 v{RV + 1}, v{EP}, 16, s{sRB}
        v_and_or_b32 v{RV + 3}, v{EP}, v{RV + 3}, s{sRB}
        v_or_b32 v{RV}, s{sRA}, v{RV}
        v_or_b32 v{RV + 2}, s{sRA}, v{RV + 2}
        """)
        self.spin(S1C, 5, t7, f"ds_read_b128 {vr(H0, 4)}, v{t6}")
        a(f"""
        v_add_u32 v{B0 + 1}, v{H0}, v{H0 + 1}
        v_add_u32 v{SQ}, v{H0 + 2}, v{H0 + 3}
        v_add_u32 v{SQ}, v{SQ}, v{B0 + 1}
        v_mov_b32 v{SQ + 1}, v{SQ}
        """)
        self.scan(SQ + 1)
        a(f"""
        v_sub_u32 v{B0}, v{SQ + 1}, v{SQ}
        v_add_u32 v{B0 + 2}, v{B0}, v{B0 + 1}
        v_add_u32 v{B0 + 1}, v{B0}, v{H0}
        v_add_u32 v{B0 + 3}, v{B0 + 2}, v{H0 + 2}
        ds_write_b128 v{t6}, {vr(B0, 4)} offset:{BASE - HIST}
        ds_read_b32 v{DV}, v{AD} offset:{BASE - HIST}
        ds_read_b32 v{DV + 1}, v{AD + 1} offset:{BASE - HIST}
        s_mov_b32 s{sD}, {SORT}
        v_mov_b32 v{t7}, {S2C}
        v_lshlrev_b32 v{t5}, 4, v{TID}
        v_add_u32 v{t6}, {SORT}, v{t5}
        s_mul_i32 s{sB}, s{sT}, {EC * 8}
        s_add_u32 s{sB}, s{sB}, {W_RECS}
        s_waitcnt lgkmcnt(0)
        v_add_u32 v{DV}, v{DV}, v{RK}
        v_add_u32 v{DV + 1}, v{DV + 1}, v{RK + 1}
        v_lshl_add_u32 v{DV}, v{DV}, 3, s{sD}
        v_lshl_add_u32 v{DV + 1}, v{DV + 1}, 3, s{sD}
        ds_write_b64 v{DV}, {vr(RV, 2)}
        ds_write_b64 v{DV + 1}, {vr(RV + 2, 2)}
        s_mov_b64 exec, 1
        ds_add_u32 v{t7}, v{t4}
        s_mov_b64 exec, -1
        """)
        self.spin(S2C, 5, t7, f"ds_read_b128 {vr(SQ, 4)}, v{t6}")
        a(f"buffer_store_dwordx4 {vr(SQ, 4)}, v{t5}, {sr(sWS, 4)}, s{sB} offen sc1")
        self.stamp("binned")

    def build(self):
        a = self.a
        t0, t1, t2, t3, t4, t5, t6, t7 = range(58, 66)
        PQ = 24
        UQ = 108
        u0, u1, u2, u3 = 57, 58, 59, 60

        if self.stamps and "dbg" not in self.opts:
            a(f"s_memrealtime s[86:87]\ns_memtime {sr(self.STAMP_REGS[0], 2)}")
        if "pad0" in self.opts or any(o.startswith("padat=") for o in self.opts):
            a("s_memrealtime s[96:97]")
        a(f"""
        s_cmp_ge_u32 s{sT}, {NT}
        s_cbranch_scc1 L_end
        s_load_dwordx16 s[40:55], s[0:1], 0
        s_load_dwordx2 s[56:57], s[0:1], 64
        v_and_b32 v{LANE}, 63, v{TID}
        """)
        if "nocodepf" not in self.opts:
            a(f"""
            s_getpc_b64 s[4:5]
            L_pc:
            """)
            if "fullpf" in self.opts:
                a(f"""
                v_lshlrev_b32 v{t0}, 4, v{TID}
                v_min_u32 v{t0}, L_code_end-L_pc-16, v{t0}
                global_load_dwordx4 {vr(AC2 + 8, 4)}, v{t0}, s[4:5]
                """)
            else:
                a(f"""
                s_lshr_b32 s6, s{sT}, 3
                s_and_b32 s6, s6, 15
                s_lshl_b32 s6, s6, 10
                v_lshl_add_u32 v{t0}, v{TID}, 4, s6
                v_min_u32 v{t0}, L_code_end-L_pc-16, v{t0}
                v_cmp_gt_u32 vcc, 64, v{TID}
                s_cbranch_vccz L_nopf
                global_load_dwordx4 {vr(AC2 + 8, 4)}, v{t0}, s[4:5]
                L_nopf:
                """)
        a(f"""
        v_lshrrev_b32 v{t0}, 6, v{TID}
        v_mov_b32 v{t6}, 0
        v_lshlrev_b32 v{t7}, 2, v{TID}
        v_readfirstlane_b32 s{sW}, v{t0}
        v_add_u32 v{t7}, {HIST}, v{t7}
        s_cmp_lt_u32 s{sW}, 4
        s_cbranch_scc1 L_z1
        s_cmp_gt_u32 s{sW}, 5
        s_cbranch_scc1 L_z2
        v_add_u32 v{t7}, {CNTN - HIST - 1024}, v{t7}
        L_z1:
        ds_write_b32 v{t7}, v{t6}
        L_z2:
        v_lshrrev_b32 v{t3}, 5, v{TID}
        v_and_b32 v{t4}, 31, v{TID}
        v_and_b32 v{t5}, 15, v{t3}
        v_xor_b32 v{t6}, v{t5}, v{t4}
        v_lshlrev_b32 v{t6}, 4, v{t6}
        s_mul_i32 s{sB}, s{sT}, {T * 512}
        v_lshl_add_u32 v{t6}, v{t3}, 9, v{t6}
        v_add_u32 v{GO}, s{sB}, v{t6}
        v_and_b32 v{t6}, 3, v{t5}
        v_lshrrev_b32 v{t7}, 1, v{t5}
        v_and_b32 v{t7}, 4, v{t7}
        v_or_b32 v{t6}, v{t6}, v{t7}
        v_lshlrev_b32 v{t6}, 1, v{t6}
        v_xor_b32 v{t6}, v{t6}, v{t4}
        v_lshlrev_b32 v{t6}, 4, v{t6}
        v_lshl_add_u32 v{WOFF}, v{t5}, 9, v{t6}
        s_and_b32 s{sW1K}, s{sW}, 7
        s_lshl_b32 s{sW1K}, s{sW1K}, 10
        """)
        if self.stamps:
            a(f"v_mov_b32 v{STAMPV}, 0")
            for r in self.STAMP_REGS[1:5]:
                a(f"s_mov_b32 s{r}, 0")
        a("s_waitcnt lgkmcnt(0)")

        def srd(s, p, nbytes):
            a(f"""
            s_mov_b32 s{s}, s{p}
            s_mov_b32 s{s + 1}, s{p + 1}
            s_mov_b32 s{s + 2}, {nbytes}
            s_mov_b32 s{s + 3}, 0x20000
            """)

        srd(sDST, 46, E * 4)
        srd(sSRC, 44, E * 4)
        srd(sEA, 42, E * 2)
        srd(sX, 40, N * 512)
        srd(sWM, 48, 513 * 512)
        srd(sWU, 50, 512 * 512)
        srd(sWS, 56, WS_SIZE)
        a("s_barrier")
        if self.opt("pad", 0) and "pad0" not in self.opts:
            a("s_memrealtime s[96:97]")
        self.stamp("start")
        self.stamp("bar0")
        EPV = W3
        a(f"""
        v_mov_b32 v{t0}, {W_EPOCH}
        s_cmp_ge_u32 s{sW}, 8
        s_cbranch_scc1 L_role_l
        s_cmp_ge_u32 s{sW}, 5
        s_cbranch_scc1 L_role_u
        s_setprio 3
        v_lshlrev_b32 v{t6}, 3, v{TID}
        v_lshlrev_b32 v{t7}, 2, v{TID}
        s_mul_i32 s{sA}, s{sT}, {EC * 4}
        s_mul_i32 s{sB}, s{sT}, {EC * 2}
        buffer_load_dwordx2 v[24:25], v{t6}, {sr(sDST, 4)}, s{sA} offen
        buffer_load_dwordx2 v[26:27], v{t6}, {sr(sSRC, 4)}, s{sA} offen
        buffer_load_dword v28, v{t7}, {sr(sEA, 4)}, s{sB} offen
        buffer_load_dwordx2 {vr(EPV, 2)}, v{t0}, {sr(sWS, 4)}, 0 offen
        s_sub_u32 s{sA}, s{sW}, 1
        s_and_b32 s{sA}, s{sA}, 7
        s_mul_i32 s{sD}, s{sA}, {NT}
        s_add_u32 s{sD}, s{sD}, s{sT}
        s_lshl_b32 s{sA}, s{sA}, 10
        s_add_u32 m0, s{sA}, {SLOT[3]}
        s_and_b32 s{sA}, s{sD}, 7
        s_bfe_u32 s{sB}, s{sD}, 0x40003
        s_lshr_b32 s{sC}, s{sD}, 7
        s_lshl_b32 s{sUO}, s{sB}, 4
        s_lshl_b32 s{sUG}, s{sC}, 3
        s_add_u32 s{sUO}, s{sUO}, s{sUG}
        s_add_u32 s{sUO}, s{sUO}, s{sA}
        s_lshl_b32 s{sUG}, s{sUO}, 5
        s_add_u32 s{sUG}, s{sUG}, {W_UTAG}
        s_lshl_b32 s{sUO}, s{sUO}, 10
        s_add_u32 s{sUO}, s{sUO}, {W_UT}
        s_lshl_b32 s{sA}, s{sA}, 5
        s_lshl_b32 s{sB}, s{sB}, 5
        s_cmp_lt_u32 s{sD}, 256
        s_cselect_b32 s{sB}, s{sB}, {OOB}
        s_cselect_b32 s{sUO}, s{sUO}, {OOB}
        s_cselect_b32 s{sUG}, s{sUG}, {OOB}
        v_lshrrev_b32 v{t6}, 1, v{LANE}
        v_add_u32 v{t6}, s{sA}, v{t6}
        v_and_b32 v{t5}, 1, v{LANE}
        v_lshlrev_b32 v{t5}, 4, v{t5}
        s_cmp_eq_u32 s{sC}, 0
        s_cbranch_scc1 L_pc_u1
        v_and_b32 v{t7}, 3, v{t6}
        v_lshrrev_b32 v{t6}, 2, v{t6}
        v_lshl_add_u32 v{t6}, v{t7}, 6, v{t6}
        v_add_u32 v{t6}, 256, v{t6}
        L_pc_u1:
        v_lshl_add_u32 v{t6}, v{t6}, 9, v{t5}
        buffer_load_dwordx4 v{t6}, {sr(sWU, 4)}, s{sB} offen lds
        s_branch L_role_done
        L_role_u:
        buffer_load_dwordx2 {vr(EPV, 2)}, v{t0}, {sr(sWS, 4)}, 0 offen
        v_subrev_u32 v{t3}, 10, v{t3}
        s_mul_i32 s{sB}, s{sT}, {T * 512}
        s_lshl_b32 s{sA}, s{sW}, 10
        """)
        for i in range(7):
            if i == 6:
                a(f"""
                s_cmp_eq_u32 s{sW}, 7
                s_cselect_b32 s{sC}, 2, 0
                v_subrev_u32 v{t3}, s{sC}, v{t3}
                s_lshl_b32 s{sC}, s{sC}, 9
                s_sub_u32 s{sA}, s{sA}, s{sC}
                """)
            a(f"""
            v_and_b32 v{t6}, 15, v{t3}
            v_xor_b32 v{t6}, v{t6}, v{t4}
            v_lshlrev_b32 v{t6}, 4, v{t6}
            s_add_u32 m0, s{sA}, {XB - 5120 + 3072 * i}
            v_lshl_add_u32 v{t6}, v{t3}, 9, v{t6}
            v_add_u32 v{t3}, 6, v{t3}
            buffer_load_dwordx4 v{t6}, {sr(sX, 4)}, s{sB} offen lds
            """)
        a(f"""
        s_branch L_role_done
        L_role_l:
        buffer_load_dwordx2 {vr(EPV, 2)}, v{t0}, {sr(sWS, 4)}, 0 offen
        s_lshr_b32 s{sA}, s{sT}, 3
        s_lshl_b32 s{sA}, s{sA}, 13
        s_add_u32 s{sA}, s{sA}, s{sW1K}
        s_lshr_b32 s{sC}, s{sA}, 1
        v_lshlrev_b32 v{t7}, 3, v{LANE}
        buffer_load_dwordx2 {vr(AC2, 2)}, v{t7}, {sr(sWM, 4)}, s{sC} offen
        s_add_u32 s{sC}, s{sC}, 131072
        buffer_load_dwordx2 {vr(AC2 + 2, 2)}, v{t7}, {sr(sWM, 4)}, s{sC} offen
        s_cmp_eq_u32 s{sW}, 15
        s_cbranch_scc0 L_role_done
        s_mov_b32 m0, {W3L}
        v_lshlrev_b32 v{t7}, 4, v{LANE}
        s_mov_b32 s{sB}, {512 * 512}
        buffer_load_dwordx4 v{t7}, {sr(sWM, 4)}, s{sB} offen lds
        L_role_done:
        """)
        UA = W3 - 9 - 5
        srd(sOUT, 52, N * 512)
        a(f"""
        s_add_u32 s{sP}, s56, {W_P}
        s_addc_u32 s{sP + 1}, s57, 0
        s_or_b32 s{sP + 1}, s{sP + 1}, {512 << 16}
        s_mov_b32 s{sP + 2}, {N}
        s_mov_b32 s{sP + 3}, 0x20000
        s_mov_b32 s{sNL2E}, {NLOG2E}
        s_mov_b32 s{sNL2E + 1}, {NLOG2E}
        s_mov_b32 s{sNLN2}, {NLN2}
        s_mov_b32 s{sNLN2 + 1}, {NLN2}
        s_lshl_b32 s{sWK}, s{sW}, 10
        s_lshr_b32 s{sHI}, s{sW}, 3
        s_lshl_b32 s{sHI}, s{sHI}, 13
        s_mov_b32 s{sGEN}, 0
        v_and_b32 v{t0}, 15, v{LANE}
        v_lshrrev_b32 v{t1}, 4, v{LANE}
        v_bfe_u32 v{t2}, v{LANE}, 2, 2
        v_and_b32 v{t3}, 3, v{LANE}
        s_lshl_b32 s{sB}, s{sW}, 1
        v_and_b32 v{t4}, 1, v{t1}
        v_lshl_or_b32 v{t4}, v{t4}, 2, v{t2}
        v_lshlrev_b32 v{t4}, 1, v{t4}
        v_lshrrev_b32 v{t5}, 1, v{t3}
        v_add_u32 v{t5}, s{sB}, v{t5}
        v_xor_b32 v{t4}, v{t4}, v{t5}
        v_lshlrev_b32 v{t4}, 4, v{t4}
        v_and_b32 v{t5}, 1, v{t3}
        v_lshl_add_u32 v{t4}, v{t5}, 3, v{t4}
        v_lshl_add_u32 v{t5}, v{t1}, 3, v{t2}
        v_lshl_add_u32 v{TR0}, v{t5}, 9, v{t4}
        v_add_u32 v{TR1}, 65536, v{TR0}
        v_lshlrev_b32 v{t5}, 5, v{t5}
        v_lshl_add_u32 v{UA + 9}, v{t3}, 3, v{t5}
        v_lshlrev_b32 v{t5}, 9, v{t0}
        v_add_u32 v{t5}, {XB}, v{t5}
        """)
        for k in range(4):
            a(f"""
            v_add_u32 v{t4}, {4 * k}, v{t1}
            v_xor_b32 v{t4}, v{t4}, v{t0}
            v_lshl_add_u32 v{XA + k}, v{t4}, 4, v{t5}
            """)
        a(f"""
        v_lshrrev_b32 v{t4}, 1, v{t1}
        v_add_u32 v{t4}, s{sB}, v{t4}
        v_xor_b32 v{t4}, v{t4}, v{t0}
        v_lshlrev_b32 v{t4}, 4, v{t4}
        v_and_b32 v{t6}, 1, v{t1}
        v_lshl_add_u32 v{t4}, v{t6}, 3, v{t4}
        v_lshl_add_u32 v{t4}, v{t0}, 9, v{t4}
        v_add_u32 v{STG}, {PS}, v{t4}
        v_lshlrev_b32 v{STR}, 4, v{TID}
        v_add_u32 v{STR}, {PS}, v{STR}
        v_add_u32 v{GO2}, 16384, v{GO}
        s_cmp_lt_u32 s{sW}, 4
        s_cbranch_scc1 L_go2
        v_mov_b32 v{GO2}, {OOB}
        L_go2:
        s_cmp_lt_u32 s{sW}, 5
        s_cbranch_scc0 L_nobin
        """)
        self.binning()
        a(f"""
        s_cmp_eq_u32 s{sW}, 0
        s_cbranch_scc0 L_piece
        v_lshlrev_b32 v{t0}, 3, v{LANE}
        v_add_u32 v{t0}, {HIST}, v{t0}
        ds_read_b64 {vr(66, 2)}, v{t0}
        ds_read_b64 {vr(68, 2)}, v{t0} offset:{BASE - HIST}
        ds_read_b64 {vr(70, 2)}, v{t0} offset:512
        ds_read_b64 {vr(72, 2)}, v{t0} offset:{BASE - HIST + 512}
        v_lshlrev_b32 v{t1}, 4, v{LANE}
        s_lshl_b32 s{sB}, s{sT}, 11
        s_add_u32 s{sB}, s{sB}, {W_OFFS}
        s_waitcnt lgkmcnt(0)
        """)
        for i in range(4):
            h, b = 66 + 4 * (i >> 1) + (i & 1), 68 + 4 * (i >> 1) + (i & 1)
            a(f"""
            v_lshl_or_b32 v{ACC + 2 * i}, v{h}, 10, v{b}
            v_mov_b32 v{ACC + 2 * i + 1}, s{sTAG}
            v_or_b32 v{ACC + 2 * i}, s{sTLO}, v{ACC + 2 * i}
            """)
        a(f"""
        buffer_store_dwordx4 {vr(ACC, 4)}, v{t1}, {sr(sWS, 4)}, s{sB} offen sc1
        buffer_store_dwordx4 {vr(ACC + 4, 4)}, v{t1}, {sr(sWS, 4)}, s{sB} offen offset:1024 sc1
        s_setprio 0
        s_branch L_bin_done
        L_piece:
        s_setprio 0
        s_cmp_lt_u32 s{sW}, 3
        s_cbranch_scc0 L_bin_done
        s_lshl_b32 s{sA}, s{sW}, 10
        s_add_u32 s{sA}, s{sA}, {SLOT[3] - 1024}
        v_add_u32 v{UA + 9}, s{sA}, v{UA + 9}
        v_lshlrev_b32 v{W3 + 2}, 4, v{LANE}
        s_waitcnt vmcnt(1)
        ds_read_b64_tr_b16 {vr(AC2 + 4, 2)}, v{UA + 9}
        ds_read_b64_tr_b16 {vr(AC2 + 6, 2)}, v{UA + 9} offset:128
        s_waitcnt lgkmcnt(0)
        buffer_store_dwordx4 {vr(AC2 + 4, 4)}, v{W3 + 2}, {sr(sWS, 4)}, s{sUO} offen sc1
        s_branch L_bin_done
        L_nobin:
        s_cmp_ge_u32 s{sW}, 8
        s_cbranch_scc1 L_bin_ld
        v_mov_b32 v{W3 + 2}, {XCNT}
        v_mov_b32 v{W3 + 3}, 1
        s_mov_b64 exec, 1
        s_waitcnt vmcnt(4)
        ds_add_u32 v{W3 + 2}, v{W3 + 3}
        s_mov_b64 exec, -1
        s_branch L_bin_done
        L_bin_ld:
        """)
        self.dma_body(0, 0)
        a(f"""
        s_waitcnt vmcnt(6)
        L_bin_done:
        """)
        self.tag_calc()
        self.xpreload(UA + 9)
        self.stamp("xpre")

        R0 = 116
        XBUF = (80, 92)
        fbuf = [UF + 4 * i for i in range(6)] + [56, 60]
        OV, o0, o1, o2, o3, UV = 20, 22, 23, 16, 17, 116

        def frag(i):
            a(f"""
            s_add_u32 s{sB}, s{sUB}, {1024 * i}
            buffer_load_dwordx4 {vr(fbuf[i], 4)}, v{FO}, {sr(sWS, 4)}, s{sB} offen sc1
            """)
            self.vm("LN", f"f{i}")

        def x3(i):
            for rb in range(3):
                a(f"ds_read_b128 {vr(XBUF[i & 1] + 4 * rb, 4)}, v{XA + (i & 3)} offset:{rb * 8192 + (i >> 2) * 256}")
                self.lq.append(f"x{i}")

        def consume(i):
            self.vmwait({f"f{i}"})
            if f"x{i}" in self.lq:
                self.lwait(f"x{i}")
            for rb in range(3):
                cin = "0" if i == 0 else vr(ACC + 4 * rb, 4)
                a(f"v_mfma_f32_16x16x32_bf16 {vr(ACC + 4 * rb, 4)}, {vr(fbuf[i], 4)}, {vr(XBUF[i & 1] + 4 * rb, 4)}, {cin}")
            if i + 2 < 8:
                x3(i + 2)

        def utag_issue(dst, adr):
            a(f"""
            v_lshlrev_b32 v{adr}, 5, v{LANE}
            s_lshl_b32 s{sC}, s{sW}, 9
            s_add_u32 s{sC}, s{sC}, {W_UTAG}
            s_mov_b64 exec, 0xffff
            buffer_load_dwordx2 {vr(dst, 2)}, v{adr}, {sr(sWS, 4)}, s{sC} offen sc1
            s_mov_b64 exec, -1
            """)

        def utag_check(dst):
            a(f"""
            v_cmp_ne_u64 vcc, {sr(sTAG, 2)}, {vr(dst, 2)}
            s_nop 1
            s_and_b32 s{sU}, vcc_lo, 0xffff
            """)

        def offs_issue():
            a(f"""
            s_and_b32 s{sC}, s{sT}, 7
            s_lshl_b32 s{sC}, s{sC}, 8
            s_and_b32 s{sB}, s{sT}, 0xf8
            s_add_u32 s{sC}, s{sC}, s{sB}
            s_add_u32 s{sC}, s{sC}, {W_OFFS}
            buffer_load_dwordx2 {vr(OV, 2)}, v{o0}, {sr(sWS, 4)}, s{sC} offen sc1
            """)

        def offs_check():
            a(f"""
            v_xor_b32 v{o1}, s{sTLO}, v{OV}
            v_cmp_ne_u32 vcc, s{sTAG}, v{OV + 1}
            s_mov_b32 s{sB}, 0x100000
            v_cmp_le_u32 s[40:41], s{sB}, v{o1}
            s_nop 1
            s_or_b64 vcc, vcc, s[40:41]
            s_and_b64 vcc, vcc, {sr(sVAL, 2)}
            """)

        def parse():
            a(f"""
            v_cndmask_b32 v{OV}, 0, v{o1}, {sr(sVAL, 2)}
            v_and_b32 v{o1}, 3, v{TID}
            v_mul_u32_u24 v{o0}, {EC * 8}, v{RBA}
            v_and_b32 v{o2}, 0x3ff, v{OV}
            v_bfe_u32 v{o3}, v{OV}, 10, 10
            v_add_u32 v{o2}, v{o2}, v{o1}
            v_lshl_add_u32 v{o0}, v{o2}, 3, v{o0}
            v_add_u32 v{RBA}, {W_RECS}, v{o0}
            v_sub_u32 v{CQ}, v{o3}, v{o1}
            v_cmp_lt_u32 vcc, {4 * NPASS}, v{o3}
            """)
            lab = a.newlabel("nomax")
            a(f"""
            s_cbranch_vccz {lab}
            v_mov_b32 v{o2}, {MISC}
            s_mov_b64 exec, vcc
            ds_max_u32 v{o2}, v{o3}
            s_mov_b64 exec, -1
            s_waitcnt lgkmcnt(0)
            {lab}:
            """)
            self.rec_issue(SCRP)

        slot = [0, 1, 2, 3, 0, 1, 0, 3]
        nearly = self.opt("early", 2)
        edel = self.opt("edel", 0)
        issue_at = {0: 3}
        for c in range(4, 4 + nearly):
            issue_at[c - 3 + edel] = c

        def gstep(k, lgkm=False, post=None):
            self.vmwait({f"c{k}"})
            self.barrier(f"B{k}", lgkm=lgkm)
            if post:
                post()
            self.trreads(slot[k])
            c = issue_at.get(k)
            self.mfmas(AC2, k & 3, (lambda sp: self.dma_all(c, slot[c], sp)) if c else None)
            if k not in (3, 7):
                self.xreads((k + 1) & 3)

        def look():
            a(f"""
            v_mov_b32 v{o1}, {OOB}
            v_lshrrev_b32 v{RBA}, 2, v{TID}
            v_lshlrev_b32 v{o0}, 11, v{RBA}
            s_movk_i32 s{sA}, {NT}
            v_cmp_gt_u32 {sr(sVAL, 2)}, s{sA}, v{RBA}
            s_mov_b32 s{sP0}, 0
            s_mov_b32 s{sNP}, {NPASS}
            s_mov_b32 s{sMODE}, 0
            v_cndmask_b32 v{o0}, v{o1}, v{o0}, {sr(sVAL, 2)}
            """)
            offs_issue()
            utag_issue(UV, UV + 2)
            self.vm("LN", "offs", 2)

        def piece_tag():
            a(f"s_sub_u32 s{sA}, s{sW}, 1\ns_cmp_lt_u32 s{sA}, 2\ns_cbranch_scc0 L_notag\ns_waitcnt vmcnt(4)")
            self.tag_store(sUG, 116)
            a.label("L_notag")

        kis = self.opt("kis", 2)
        recpos = self.opt("recpos", 0)

        def try_records():
            self.vmwait({"offs"})
            utag_check(UV)
            offs_check()
            a(f"s_mov_b32 s{sE}, 0\ns_cbranch_scc1 L_late")
            parse()
            a(f"s_mov_b32 s{sE}, 1\ns_branch L_intime\nL_late:")
            offs_issue()
            offs_issue()
            a.label("L_intime")
            self.vm("LN", "rec", 2)

        for k in range(4):
            gstep(k, post=piece_tag if k == self.opt('kpt', 0) else None)
            if k == kis:
                look()
            if k == 2 and recpos == -1:
                try_records()
        for rb in range(3):
            for h in range(2):
                a(f"v_pk_mul_f32 {vr(AC2 + 4 * rb + 2 * h, 2)}, {vr(AC2 + 4 * rb + 2 * h, 2)}, {sr(sNL2E, 2)} op_sel_hi:[1,0]")
            a(f"v_cvt_pk_bf16_f32 v{AC2 + 4 * rb}, v{AC2 + 4 * rb}, v{AC2 + 4 * rb + 1}")
            a(f"v_cvt_pk_bf16_f32 v{AC2 + 4 * rb + 1}, v{AC2 + 4 * rb + 2}, v{AC2 + 4 * rb + 3}")
            a(f"ds_write_b64 v{STG}, {vr(AC2 + 4 * rb, 2)} offset:{rb * 8192}")
        if recpos == 0:
            try_records()
        a("s_setprio 3")
        self.barrier("PS")
        a(f"""
        ds_read_b128 {vr(AC2, 4)}, v{STR}
        ds_read_b128 {vr(AC2 + 4, 4)}, v{STR} offset:16384
        """)
        self.xreads(0)
        a(f"""
        s_mov_b32 s{sB}, {W_P}
        s_waitcnt lgkmcnt(3)
        buffer_store_dwordx4 {vr(AC2, 4)}, v{GO}, {sr(sWS, 4)}, s{sB} offen sc1
        s_waitcnt lgkmcnt(2)
        buffer_store_dwordx4 {vr(AC2 + 4, 4)}, v{GO2}, {sr(sWS, 4)}, s{sB} offen sc1
        s_setprio 0
        """)
        self.vm("LN", "p", 2)
        self.stamp("pst")
        if recpos == 2:
            try_records()
        self.stampval("E", sE)
        self.stampval("U", sU)

        def fb():
            a(f"s_lshl_b32 s{sB}, s{sT}, 5\ns_add_u32 s{sB}, s{sB}, {W_FB}")
            self.tag_store(sB, ACC + 8 if kfb == 6 else ACC)

        todo = [(c, m) for c in range(4 + nearly, 8) for m in range(2)]
        kfb = self.opt("kfb", 5)

        def issue(n):
            nonlocal todo
            for c, m in todo[:n]:
                self.dma_all(c, slot[c], m)
            todo = todo[n:]

        if nearly < 2:
            issue(self.opt("npre", 2))
        for k in (4, 5):
            if k == kfb:
                self.vmwait({"p"})
                self.stamp("ack")
            while todo and todo[0][0] <= k:
                issue(1)
            gstep(k, post=(lambda: self.wave0(fb)) if k == kfb else None)
            if k >= kfb and k == 4 and nearly < 2:
                issue(2)
        a(f"""
        s_lshl_b32 s{sUB}, s{sW}, 14
        s_add_u32 s{sUB}, s{sUB}, {W_UT}
        """)
        self.vmwait({"rec"})
        a(f"""
        s_cmp_eq_u32 s{sE}, 1
        s_cbranch_scc1 L_recs_ok
        s_mov_b32 s{sD}, 0
        L_offs_chk:
        """)
        offs_check()
        a(f"""
        s_cbranch_scc0 L_offs_ok
        s_add_u32 s{sD}, s{sD}, 1
        s_cmp_gt_u32 s{sD}, {POLL_LIMIT}
        s_cbranch_scc1 L_offs_ok
        """)
        offs_issue()
        a("s_waitcnt vmcnt(0)\ns_branch L_offs_chk\nL_offs_ok:")
        parse()
        a("s_waitcnt vmcnt(0)\nL_recs_ok:")
        self.stamp("rec")
        self.clean(SCRX)
        self.count(SCRX)
        issue(8)
        if kfb == 6:
            self.vmwait({"p"})
            self.stamp("ack")
        self.barrier("C1")
        if kfb == 6:
            self.wave0(fb)
        a(f"""
        v_lshlrev_b32 v{FO}, 4, v{LANE}
        s_cmp_eq_u32 s{sU}, 0
        s_cbranch_scc1 L_tags_ok
        s_mov_b32 s{sD}, 0
        L_tags:
        """)
        utag_issue(24, 26)
        a(f"s_add_u32 s{sD}, s{sD}, 1\ns_cmp_gt_u32 s{sD}, {POLL_LIMIT}\ns_waitcnt vmcnt(0)\ns_cbranch_scc1 L_tags_ok")
        utag_check(24)
        a("s_cbranch_scc1 L_tags\nL_tags_ok:")
        frag(0)
        frag(1)
        self.lists(SCRX, "L_gen1")
        a.label("L_gen1_back")
        self.side_fill(ACC + 10, ACC + 3)
        frag(2)
        frag(3)
        gstep(6, lgkm=True)
        a(f"s_mov_b32 s{sB}, {W3L}\nv_lshl_add_u32 v{ACC + 3}, v{LANE}, 1, s{sB}")
        for r in range(4):
            a(f"ds_read_u16_d16_hi v{W3 + r}, v{ACC + 3} offset:{128 * r}")
        frag(4)
        frag(5)
        self.setup(ACC + 4)
        frag(6)
        frag(7)
        a(f"""
        v_and_b32 v75, 15, v{LANE}
        v_cmp_gt_u32 {sr(sEX, 2)}, 8, v75
        v_mul_u32_u24 v74, {QS}, v75
        v_and_b32 v75, 48, v{LANE}
        s_lshl_b32 s{sB}, s{sW}, 6
        v_add3_u32 v74, v74, v75, s{sB}
        """)
        self.slot_consts()
        self.wave0(self.poll_issue)
        gstep(7)
        x3(0)
        x3(1)
        for rb in range(3):
            for h in range(2):
                a(f"v_pk_mul_f32 {vr(AC2 + 4 * rb + 2 * h, 2)}, {vr(AC2 + 4 * rb + 2 * h, 2)}, {sr(sNL2E, 2)} op_sel_hi:[1,0]")
            if rb == 2:
                a(f"s_mov_b64 exec, {sr(sEX, 2)}")
            a(f"ds_write_b128 v74, {vr(AC2 + 4 * rb, 4)} offset:{QB + rb * 16 * QS}")
            self.lq.append("q")
        a("s_mov_b64 exec, -1")
        self.stamp("pre")

        def pw():
            self.poll_wait()
            a(f"s_cmp_eq_u32 s{sT}, 0\ns_cbranch_scc0 L_noep\ns_mov_b32 s{sB}, {W_EPOCH}")
            self.tag_store(sB, POLLB)
            a.label("L_noep")
        self.wave0(pw)
        self.barrier("C2", lgkm=False)
        gat = [-1, -1, self.opt("g2", 3), self.opt("g3", 7)]
        for i in range(-1, 8):
            if i >= 0:
                consume(i)
            for k in range(4):
                if gat[k] == i:
                    a(f"v_mov_b32 v{IA}, v{IX0 + k}")
                    self.gather(k)
                    self.vm("LN", "g")
        a(f"v_mov_b32 v{IA}, v{IX0 + 4}")
        for r in range(4):
            a(f"v_mul_f32 v{W3 + r}, s{sNL2E}, v{W3 + r}")
        for h in range(6):
            a(f"v_pk_mul_f32 {vr(ACC + 2 * h, 2)}, {vr(ACC + 2 * h, 2)}, {sr(sNL2E, 2)} op_sel_hi:[1,0]")
        self.lane_consts()
        self.barrier("R")
        a(f"""
        s_cmp_eq_u32 s{sGEN}, 0
        s_cbranch_scc0 L_generic
        s_and_b32 s{sZ + 1}, s{sZ + 1}, 0xff
        s_or_b32 s{sA}, s{sZ}, s{sZ + 1}
        s_or_b32 s{sA}, s{sA}, s{sMODE}
        s_cbranch_scc1 L_clear
        L_r_done:
        s_cmp_gt_i32 s{sNE}, 0
        s_cbranch_scc0 L_empty
        """)
        if "noprio" not in self.opts:
            a("s_setprio 3")
        a(f"""
        ds_read_b64 {vr(EE[0], 2)}, v{EA}
        v_add_u32 v{QA}, s{sQ0}, v{L4}
        ds_read2st64_b32 {vr(Q, 2)}, v{QA} offset0:0 offset1:1
        ds_read2st64_b32 {vr(Q + 2, 2)}, v{QA} offset0:2 offset1:3
        v_xor_b32 v{AG}, s{sAG0}, v{L8}
        v_add_u32 v{CNA}, {CNTN}, v{L4}
        v_mov_b32 v{TZ}, 0
        ds_write_b32 v{CNA}, v{TZ}
        v_mov_b64 {vr(NN, 2)}, 0
        v_mov_b64 {vr(NN + 2, 2)}, 0
        v_mov_b32 v{DD}, 1.0
        v_mov_b32 v{DD + 1}, 1.0
        v_mov_b32 v{DD + 2}, 1.0
        v_mov_b32 v{DD + 3}, 1.0
        v_mov_b64 {vr(CK2, 2)}, 0
        v_mov_b32 v{CK1}, 0
        s_mov_b32 s{sI}, 0
        s_or_b32 s{sTM}, s{sMASK}, 0xff
        """)
        self.stamp("setup")
        a("s_waitcnt vmcnt(3)")
        self.stamp("row0")
        self.p_reads(0, 0)
        a("s_waitcnt lgkmcnt(0)")
        self.gather(0)
        self.u2_loads()
        a(f"""
        s_cmp_eq_u32 s{sMODE}, 0
        s_cbranch_scc0 L_loop_x
        """)
        self.main_loop(False, "L_main_done")
        a.reset_hist()
        a.label("L_main_done")
        a("s_setprio 0")
        self.stamp("loop")
        a(f"""
        v_add_f32 v{CK2}, v{CK2}, v{CK2 + 1}
        v_mov_b32 v{TM}, {BIG}
        v_cmp_u_f32 vcc, v{CK2}, v{CK2}
        v_cmp_nle_f32 s[40:41], v{CK1}, v{TM}
        s_nop 1
        s_or_b64 vcc, vcc, s[40:41]
        s_cbranch_scc0 L_after
        v_mov_b32 v{TM}, {MISC + 4}
        v_mov_b32 v{TM + 1}, 1
        ds_write_b32 v{TM}, v{TM + 1}
        L_after:
        s_waitcnt vmcnt(0)
        """)
        self.barrier("M")
        a(f"""
        v_mov_b32 v{TM}, {MISC + 4}
        ds_read_b32 v{TM + 1}, v{TM}
        """)
        if "oldfin" in self.opts:
            order = [(s_, rb) for s_ in range(8) for rb in range(3)]
        else:
            order = [(s_, rb) for rb in range(3) for s_ in range(8)]
        NB = 12

        def rd(n):
            s_, rb = order[n]
            a(f"ds_read_b128 {vr(XF + 4 * (n % NB), 4)}, v{XA + (s_ & 3)} offset:{rb * 8192 + (s_ >> 2) * 256}")

        for n in range(NB):
            rd(n)
        a(f"""
        s_cmp_eq_u32 s{sMODE}, 0
        s_cbranch_scc0 L_slow_next
        s_waitcnt lgkmcnt(12)
        v_readfirstlane_b32 s{sA}, v{TM + 1}
        s_nop 1
        s_cmp_eq_u32 s{sA}, 0
        s_cbranch_scc0 L_redo
        L_final:
        """)
        TE = 104

        def act(rb):
            ops = []
            for r in range(4):
                ops.append(f"v_exp_f32 v{TE + 4 * rb + r}, v{ACC + 4 * rb + r}")
            for r in range(4):
                ops.append(f"v_add_f32 v{TE + 4 * rb + r}, 1.0, v{TE + 4 * rb + r}")
            for r in range(4):
                ops.append(f"v_rcp_f32 v{TE + 4 * rb + r}, v{TE + 4 * rb + r}")
            for r in range(4):
                ops.append(f"v_mul_f32 v{ACC + 4 * rb + r}, s{sNLN2}, v{ACC + 4 * rb + r}")
            for r in range(4):
                ops.append(f"v_mul_f32 v{ACC + 4 * rb + r}, v{ACC + 4 * rb + r}, v{TE + 4 * rb + r}")
            ops.append(f"v_cvt_pk_bf16_f32 v{TE + 4 * rb}, v{ACC + 4 * rb}, v{ACC + 4 * rb + 1}")
            ops.append(f"v_cvt_pk_bf16_f32 v{TE + 4 * rb + 1}, v{ACC + 4 * rb + 2}, v{ACC + 4 * rb + 3}")
            ops.append(f"ds_write_b64 v{STG}, {vr(TE + 4 * rb, 2)} offset:{rb * 8192}")
            return ops

        pend = []
        lq = [f"r{n}" for n in range(NB)]
        for n in range(24):
            s_, rb = order[n]
            last = lq.index(f"r{n}")
            a(f"s_waitcnt lgkmcnt({len(lq) - 1 - last})")
            lq = lq[last + 1:]
            a(f"v_mfma_f32_16x16x32_bf16 {vr(ACC + 4 * rb, 4)}, {vr(UF + 4 * s_, 4)}, {vr(XF + 4 * (n % NB), 4)}, {vr(ACC + 4 * rb, 4)}")
            if n + NB < 24:
                rd(n + NB)
                lq.append(f"r{n + NB}")
            if "oldfin" not in self.opts:
                if n in (9, 17):
                    pend += act(n // 8 - 1)
                for op in pend[:4]:
                    a(op)
                    if op.startswith("ds_"):
                        lq.append("w")
                pend = pend[4:]
        for op in pend:
            a(op)
        for rb in ([2] if "oldfin" not in self.opts else [0, 1, 2]):
            for op in act(rb):
                a(op)
        self.barrier("F")
        a(f"""
        ds_read_b128 {vr(PQ + 8, 4)}, v{STR}
        ds_read_b128 {vr(PQ + 12, 4)}, v{STR} offset:16384
        s_waitcnt lgkmcnt(1)
        buffer_store_dwordx4 {vr(PQ + 8, 4)}, v{GO}, {sr(sOUT, 4)}, 0 offen sc1
        s_waitcnt lgkmcnt(0)
        buffer_store_dwordx4 {vr(PQ + 12, 4)}, v{GO2}, {sr(sOUT, 4)}, 0 offen sc1
        """)
        if self.opt("pad", 0):
            a(f"""
            L_pad:
            s_memrealtime s[98:99]
            s_waitcnt lgkmcnt(0)
            s_sub_u32 s98, s98, s96
            s_cmp_lt_u32 s98, {self.opt("pad", 0)}
            s_cbranch_scc1 L_pad
            """)
        if self.stamps:
            a.label("L_diag_end")
            a("s_waitcnt vmcnt(0)")
            self.stamp("end")
            a(f"""
            s_lshl_b32 s{sA}, s{sT}, 4
            s_add_u32 s{sA}, s{sA}, s{sW}
            s_lshl_b32 s{sA}, s{sA}, 8
            s_add_u32 s{sA}, s{sA}, {W_STAMP}
            v_lshlrev_b32 v{TM}, 2, v{LANE}
            buffer_store_dword v{STAMPV}, v{TM}, {sr(sWS, 4)}, s{sA} offen
            """)
        a.label("L_end")
        a("s_endpgm")
        a.reset_hist()
        a(f"""
        L_gen1:
        s_mov_b32 s{sGEN}, 1
        s_mov_b32 s{sI}, 0
        s_mov_b32 s{sNE}, 0
        s_branch L_gen1_back
        L_clear:
        v_mov_b64 {vr(XF, 2)}, 0
        v_mov_b64 {vr(XF + 2, 2)}, 0
        v_add_u32 v{XF + 4}, {AB - PS}, v{STR}
        """)
        self.zero_agg(XF + 4, XF)
        a(f"""
        s_waitcnt lgkmcnt(0)
        s_barrier
        s_branch L_r_done
        L_generic:
        s_waitcnt vmcnt(0) lgkmcnt(0)
        s_barrier
        v_mov_b64 {vr(XF, 2)}, 0
        v_mov_b64 {vr(XF + 2, 2)}, 0
        v_add_u32 v{XF + 4}, {AB - PS}, v{STR}
        """)
        self.zero_agg(XF + 4, XF)
        a(f"""
        v_add_u32 v{CNA}, {CNTN}, v{L4}
        v_mov_b32 v{TZ}, 0
        ds_write_b32 v{CNA}, v{TZ}
        s_mov_b32 s{sNP}, 1
        s_mov_b32 s{sMODE}, 1
        s_waitcnt lgkmcnt(0)
        s_barrier
        L_round:
        """)
        self.slot_consts()
        self.lane_consts()
        self.rec_issue(SCR2)
        a("s_waitcnt vmcnt(0)")
        self.clean(SCR2)
        self.count(SCR2)
        a("s_waitcnt lgkmcnt(0)\ns_barrier")
        self.lists(SCR2, "L_generic")
        a("s_waitcnt lgkmcnt(0)\ns_barrier")
        self.setup(SCR2.tmp)
        a(f"""
        s_waitcnt lgkmcnt(0)
        """)
        for k in range(4):
            a(f"v_mov_b32 v{IA}, v{IX0 + k}")
            self.gather(k)
        a(f"""
        v_mov_b32 v{IA}, v{IX0 + 4}
        s_branch L_r_done
        L_empty:
        v_add_u32 v{CNA}, {CNTN}, v{L4}
        v_mov_b32 v{TZ}, 0
        ds_write_b32 v{CNA}, v{TZ}
        """)
        self.u2_loads()
        a(f"""
        s_branch L_after
        L_slow_next:
        s_cmp_eq_u32 s{sNP}, {NPASS}
        s_cbranch_scc1 L_final
        s_add_u32 s{sP0}, s{sP0}, 1
        s_max_u32 s{sA}, s{sMAXC}, {4 * NPASS}
        s_lshl_b32 s{sB}, s{sP0}, 2
        s_cmp_lt_u32 s{sB}, s{sA}
        s_cbranch_scc0 L_final
        s_waitcnt lgkmcnt(0)
        s_branch L_round
        L_redo:
        s_waitcnt lgkmcnt(0)
        s_barrier
        s_mov_b32 s{sMODE}, 1
        v_mov_b64 {vr(XF, 2)}, 0
        v_mov_b64 {vr(XF + 2, 2)}, 0
        v_add_u32 v{XF + 4}, {AB - PS}, v{STR}
        """)
        self.zero_agg(XF + 4, XF)
        a("s_branch L_round")
        self.main_loop(True, "L_after")
        a.label("L_code_end")

    def text(self):
        hdr = f"""; Fused MPNN edge-MLP kernel: P = x W1 published per tile, edges binned by destination tile,
; @launch grid=({NT},1,1) block=(1024,1,1) lds={LDS_TOTAL}
.amdgcn_target "amdgcn-amd-amdhsa--gfx950"
.text
.globl {NAME}_kernel
.p2align 8
.type {NAME}_kernel,@function
{NAME}_kernel:
"""
        ftr = f""".section .rodata,"a"
.p2align 6
.amdhsa_kernel {NAME}_kernel
  .amdhsa_next_free_vgpr 128
  .amdhsa_next_free_sgpr 102
  .amdhsa_accum_offset 128
  .amdhsa_group_segment_fixed_size 0
  .amdhsa_kernarg_size 72
  .amdhsa_user_sgpr_count 2
  .amdhsa_user_sgpr_kernarg_segment_ptr 1
  .amdhsa_system_sgpr_workgroup_id_x 1
.end_amdhsa_kernel
"""
        return hdr + self.a.text() + ftr


if __name__ == "__main__":
    out = [x for x in sys.argv[1:] if not x.startswith("--")]
    g = Gen(opts=[x[2:] for x in sys.argv[1:] if x.startswith("--")])
    g.build()
    txt = g.text()
    if g.stamps:
        txt = "; stamps: " + ",".join(g.names) + "\n" + txt
    open(out[0] if out else "cdna_kernels/%s.s" % NAME, "w").write(txt)
    print("nops inserted:", g.a.nops, "lines:", len(g.a.lines), "stamps:", g.nstamp)
```

```python
import sys
import struct
from asmlib import Asm

NAME = "gather_scatter__mpnn_edge_mlp__graph"
N, E, D = 10000, 160000, 256
T, NT, EC = 40, 250, 640

SLOT = (0, 32768, 65536, 98304)
XB = 131072
SIDE = 41984
PILA, PILB = 158880, 162112 - 9 * 192
HIST, BASE, SORT, USC = 151552, 152576, 153600, 158720
CNTN, MISC = 160768, 161024
IL, EL, DL = 151552, 153664, 157824
QB, QS = 0, 1040
AB = XB
RING = 65536
ROFF = (0, 1024, 32768, 33792)
PS = 65536
LDS_TOTAL = 163840

W_EPOCH, W_FA, W_FB = 0, 0x1000, 0x3000
W_OFFS, W_RECS, W_UT, W_P = 0x10000, 0x90000, 0x700000, 0x200000
W_UTAG = 0x6000
W_STAMP = 0x800000
WS_SIZE = 0xA00000
OOB = 0x80000000
POLL_LIMIT = 200000


def f2u(x):
    return struct.unpack("<I", struct.pack("<f", x))[0]


NLOG2E = f2u(-1.4426950408889634)
NLN2 = f2u(-0.6931471805599453)
BIG = f2u(2.0 ** 120)


def vr(a, n=1):
    return "v%d" % a if n == 1 else "v[%d:%d]" % (a, a + n - 1)


def sr(a, n=1):
    return "s%d" % a if n == 1 else "s[%d:%d]" % (a, a + n - 1)


TID, LANE = 0, 1
XA = 2
STG, GO, GO2, STR = 6, 7, 8, 9
RBA, CQ = 10, 11
ACC = 12
UF = 24
XR = 24
XF2, WF = 88, 96
AC2 = 104
XF = 56
WOFF, TR0, TR1 = 120, 121, 122
STAMPV = 123
W3 = 124
NPASS = 4
POLLB = 16
FO = 120
W3L = MISC + 64
XCNT, S1C, S2C, ACKC, BACK = MISC + 8, MISC + 12, MISC + 16, MISC + 20, MISC + 24


class Scratch:
    def __init__(self, rec, adr, rank, tmp):
        self.rec, self.adr, self.rank, self.tmp = rec, adr, rank, tmp


REC1 = [116, 118, 124, 126]
SCRP = Scratch(REC1, 12, None, 18)
SCRX = Scratch(REC1, ACC, ACC + 4, ACC + 8)
SCR2 = Scratch([24, 26, 28, 30], 40, 44, 48)
CNA = 109
PA = (56, 64)
EE = (72, 74)
IA, Q, QE, Y, TT, NN, DD = 76, 78, 86, 90, 94, 98, 102
CK2, CK1 = 106, 108
RG, IXA, EA, QA, AG, L4, L8, INFO, TM, IOF = 82, 116, 117, 112, 113, 83, 84, 118, 120, 85
TZ = 115
STG2 = 119
IX0 = 64

sT, sW = 2, 3
sX, sWM, sWU, sWS, sP, sOUT, sSRC, sDST, sEA = 4, 8, 12, 16, 20, 24, 28, 32, 36
sNL2E, sNLN2, sWK, sW1K = 58, 60, 62, 63
sMASK, sI, sNE, sREM, sTRIP, sSLOT = 64, 66, 67, 68, 69, 70
sM, sP0, sNP, sMAXC, sFIRST, sMODE = 74, 75, 76, 77, 78, 79
sVAL = 80
sA, sB, sC, sD = 88, 89, 90, 91
sEX = 42
sCO = 48
sHI, sTAG, sTLO, sGEN = 49, 52, 56, 57
sQ0, sAG0 = 44, 45
sUO, sUG, sUB, sE = 64, 65, 38, 39
sZ, sU, sRA, sRB = 6, 30, 29, 31
sTM, sHB, sW11 = 28, 69, 39
sHB2 = sHB


class Gen:
    def __init__(self, opts=()):
        self.opts = set(opts)
        self.a = Asm()
        self.stamps = "stamps" in self.opts
        self.nstamp = 0
        self.names = []
        self.lq = []
        self.q = {"L": [], "N": []}

    def opt(self, name, default):
        for o in self.opts:
            if o.startswith(name + "="):
                return int(o.split("=")[1])
        return default

    STAMP_REGS = [92, 94, 96, 98, 100, 50, 54, 4, 12, 14, 32, 34, 36]

    def stampval(self, name, sreg):
        sel = [o[3:].split("+") for o in self.opts if o.startswith("st=")]
        if not self.stamps or not sel or name not in sel[0]:
            return
        k = self.nstamp
        self.nstamp += 1
        self.names.append("=" + name)
        self.a(f"s_add_u32 s{self.STAMP_REGS[k]}, s{sreg}, 1")

    def stamp(self, name):
        if not self.stamps:
            return
        sel = [o[3:].split("+") for o in self.opts if o.startswith("st=")]
        if name not in ("start", "end") and sel and name not in sel[0]:
            return
        k = self.nstamp
        self.nstamp += 1
        self.names.append(name)
        if "dbg" in self.opts:
            self.a(f"s_memrealtime {sr(self.STAMP_REGS[k], 2)}")
            if name == "end":
                a = self.a
                a("s_load_dwordx2 s[40:41], s[0:1], 56\ns_waitcnt lgkmcnt(0)")
                a(f"s_not_b32 s44, s{self.STAMP_REGS[0]}\nv_writelane_b32 v{STAMPV}, s44, 15")
                for i in range(self.nstamp):
                    a(f"v_writelane_b32 v{STAMPV}, s{self.STAMP_REGS[i]}, {i}")
                a(f"""
                s_mov_b32 s42, 64
                s_mov_b32 s43, 0x20000
                v_lshlrev_b32 v{TM}, 2, v{LANE}
                s_cmp_eq_u32 s{sW}, 0
                s_cbranch_scc0 L_end
                buffer_atomic_umax v{STAMPV}, v{TM}, s[40:43], 0 offen
                s_branch L_end
                """)
            return
        if name == "start":
            self.a(f"v_writelane_b32 v{STAMPV}, s86, 0")
            return
        if name in ("start", "end"):
            self.a(f"""
            s_memrealtime s[40:41]
            s_waitcnt lgkmcnt(0)
            v_writelane_b32 v{STAMPV}, s40, {0 if name == "start" else 1}
            """)
        self.a(f"s_memtime {sr(self.STAMP_REGS[k], 2)}")
        if name == "end":
            self.a("s_waitcnt lgkmcnt(0)")
            for i in range(self.nstamp):
                self.a(f"v_writelane_b32 v{STAMPV}, s{self.STAMP_REGS[i]}, {32 + i}")

    def vm(self, roles, tag, n=1):
        for r in roles:
            self.q[r] += [tag] * n

    def vmwait(self, tags):
        need = {}
        for r, lst in self.q.items():
            last = max((i for i, t in enumerate(lst) if t in tags), default=None)
            if last is None:
                need[r] = None
            else:
                need[r] = len(lst) - 1 - last
                self.q[r] = lst[last + 1:]
        a = self.a
        if need["L"] == need["N"]:
            if need["L"] is not None:
                a(f"s_waitcnt vmcnt({need['L']})")
            return
        lab = a.newlabel("vw")
        if need["N"] is None:
            a(f"s_cmp_lt_u32 s{sW}, 8\ns_cbranch_scc1 {lab}\ns_waitcnt vmcnt({need['L']})\n{lab}:")
        elif need["L"] is None:
            a(f"s_cmp_ge_u32 s{sW}, 8\ns_cbranch_scc1 {lab}\ns_waitcnt vmcnt({need['N']})\n{lab}:")
        elif need["L"] > need["N"]:
            a(f"s_waitcnt vmcnt({need['L']})\ns_cmp_ge_u32 s{sW}, 8\ns_cbranch_scc1 {lab}\ns_waitcnt vmcnt({need['N']})\n{lab}:")
        else:
            a(f"s_waitcnt vmcnt({need['N']})\ns_cmp_lt_u32 s{sW}, 8\ns_cbranch_scc1 {lab}\ns_waitcnt vmcnt({need['L']})\n{lab}:")

    def lwait(self, tag):
        last = max(i for i, t in enumerate(self.lq) if t == tag)
        self.a(f"s_waitcnt lgkmcnt({len(self.lq) - 1 - last})")
        self.lq = self.lq[last + 1:]

    def barrier(self, name, lgkm=True):
        for o in self.opts:
            if o.startswith("padat=") and o.split("=")[1].split(":")[0] == name:
                self.a(f"""
                L_padat:
                s_memrealtime s[98:99]
                s_waitcnt lgkmcnt(0)
                s_sub_u32 s98, s98, s96
                s_cmp_lt_u32 s98, {o.split(":")[1]}
                s_cbranch_scc1 L_padat
                """)
        if lgkm:
            self.a("s_waitcnt lgkmcnt(0)")
        self.a("s_barrier")
        self.stamp(name)

    def dma_body(self, k, slot, role="L"):
        a = self.a
        if f"noc{k}" in self.opts:
            for m in range(4):
                a(f"s_mov_b32 m0, {USC + 1024}\ns_mov_b32 s{sB}, {OOB}\nbuffer_load_dwordx4 v{WOFF}, {sr(sWM, 4)}, s{sB} offen lds")
            self.vm(role, f"c{k}", 4)
            return
        srd, base = ((sWM, 0), (sWM, 131072))[k // 4]
        c = k % 4
        for m in range(4):
            a(f"""
            s_add_u32 m0, s{sW1K}, {SLOT[slot] + m * 8192}
            s_mov_b32 s{sB}, {base + c * 32768 + m * 8192}
            buffer_load_dwordx4 v{WOFF}, {sr(srd, 4)}, s{sB} offen lds
            """)
        self.vm(role, f"c{k}", 4)

    def dma_all(self, k, slot, m):
        a = self.a
        srd, base = ((sWM, 0), (sWM, 131072))[k // 4]
        a(f"""
        s_add_u32 m0, s{sWK}, {SLOT[slot] + m * 16384}
        s_add_u32 s{sB}, s{sHI}, {base + (k % 4) * 32768 + m * 16384}
        buffer_load_dwordx4 v{WOFF}, {sr(srd, 4)}, s{sB} offen lds
        """)
        self.vm("LN", f"c{k}")

    def spin(self, ctr, target, tmp, extra=None):
        a = self.a
        lab = a.newlabel("spin")
        a(f"v_mov_b32 v{tmp}, {ctr}")
        a.label(lab)
        a(f"ds_read_b32 v{tmp + 1}, v{tmp}")
        if extra:
            a(extra)
        a(f"""
        s_waitcnt lgkmcnt(0)
        v_readfirstlane_b32 s{sA}, v{tmp + 1}
        s_nop 0
        s_cmp_lt_u32 s{sA}, {target}
        s_cbranch_scc1 {lab}
        """)

    def xspin(self, shift):
        a = self.a
        lab = a.newlabel("xs")
        a(f"""
        {lab}:
        ds_read_b32 v{WF + 1}, v{WF}
        s_waitcnt lgkmcnt(0)
        v_readfirstlane_b32 s{sA}, v{WF + 1}
        s_nop 0
        s_bfe_u32 s{sA}, s{sA}, {shift | (4 << 16)}
        s_cmp_lt_u32 s{sA}, 3
        s_cbranch_scc0 {lab}_ok
        s_sleep 1
        s_branch {lab}
        {lab}_ok:
        """)

    def touch(self):
        a = self.a
        l2, done = a.newlabel("tw2"), a.newlabel("tdone")
        a(f"""
        s_lshr_b32 s{sA}, s{sT}, 3
        s_lshl_b32 s{sA}, s{sA}, 12
        s_mov_b32 m0, {USC + 1024}
        v_lshlrev_b32 v{W3 + 2}, 4, v{LANE}
        s_cmp_eq_u32 s{sW}, 5
        s_cbranch_scc0 {l2}
        """)
        for m in range(4):
            a(f"s_add_u32 s{sB}, s{sA}, {1024 * m}\nbuffer_load_dwordx4 v{W3 + 2}, {sr(sWU, 4)}, s{sB} offen lds")
        a(f"s_branch {done}\n{l2}:\ns_cmp_eq_u32 s{sW}, 6\ns_cbranch_scc0 {done}")
        for m in range(4):
            a(f"s_add_u32 s{sB}, s{sA}, {131072 + 1024 * m}\nbuffer_load_dwordx4 v{W3 + 2}, {sr(sWM, 4)}, s{sB} offen lds")
        a.label(done)

    def xpreload(self, ua):
        a = self.a
        a(f"v_mov_b32 v{WF}, {XCNT}")
        self.xspin(0)
        self.stamp("xa")
        for s in range(8):
            a(f"ds_read_b128 {vr(XR + 4 * s, 4)}, v{XA + (s & 3)} offset:{(s >> 2) * 256}")
        a(f"""
        s_cmp_lt_u32 s{sW}, 5
        s_cbranch_scc1 L_xp_go
        s_cmp_ge_u32 s{sW}, 8
        s_cbranch_scc1 L_xp_go
        v_mov_b32 v{W3 + 3}, 16
        s_mov_b64 exec, 1
        s_waitcnt vmcnt(0)
        ds_add_u32 v{WF}, v{W3 + 3}
        s_mov_b64 exec, -1
        """)
        a.label("L_xp_go")
        self.xspin(4)
        self.stamp("xb")
        for s in range(8):
            a(f"ds_read_b128 {vr(XR + 32 + 4 * s, 4)}, v{XA + (s & 3)} offset:{8192 + (s >> 2) * 256}")
        self.xreads(0)
        a(f"s_cmp_lt_u32 s{sW}, 8\ns_cbranch_scc1 L_xp_c2")
        self.dma_body(1, 1)
        a("s_branch L_xp_done\nL_xp_c2:")
        self.dma_body(2, 2, "N")
        a.label("L_xp_done")

    def xreads(self, c):
        a = self.a
        for sp in range(2):
            s = 2 * c + sp
            a(f"ds_read_b128 {vr(XF2 + 4 * sp, 4)}, v{XA + (s & 3)} offset:{2 * 8192 + (s >> 2) * 256}")

    def trreads(self, slot):
        a = self.a
        base = SLOT[slot]
        tr = TR0 if base < 65536 else TR1
        for sp in range(2):
            for p in range(2):
                a(f"ds_read_b64_tr_b16 {vr(WF + 4 * sp + 2 * p, 2)}, v{tr} offset:{(base & 65535) + 16384 * sp + 2048 * p}")

    def mfmas(self, acc, c, between=None):
        a = self.a
        for sp in range(2):
            if between:
                between(sp)
            a(f"s_waitcnt lgkmcnt({2 - 2 * sp})")
            for rb in range(3):
                cin = "0" if (c == 0 and sp == 0) else vr(acc + 4 * rb, 4)
                b = XR + 32 * rb + 4 * (2 * c + sp) if rb < 2 else XF2 + 4 * sp
                a(f"v_mfma_f32_16x16x32_bf16 {vr(acc + 4 * rb, 4)}, {vr(WF + 4 * sp, 4)}, {vr(b, 4)}, {cin}")

    def scan(self, v):
        a = self.a
        for sh in (1, 2, 4, 8):
            a(f"v_add_u32_dpp v{v}, v{v}, v{v} row_shr:{sh} row_mask:0xf bank_mask:0xf bound_ctrl:0")
        a(f"v_add_u32_dpp v{v}, v{v}, v{v} row_bcast:15 row_mask:0xa bank_mask:0xf")
        a(f"v_add_u32_dpp v{v}, v{v}, v{v} row_bcast:31 row_mask:0xc bank_mask:0xf")

    def poll_issue(self):
        a = self.a
        a(f"v_lshlrev_b32 v14, 5, v{LANE}\ns_mov_b32 s{sB}, {W_FB}\ns_mov_b32 s{sD}, {W_FB + 4096}")
        for k in range(4):
            a(f"buffer_load_dwordx2 {vr(POLLB + 2 * k, 2)}, v14, {sr(sWS, 4)}, s{sB if k < 2 else sD} offen offset:{2048 * (k & 1)} sc1")

    def poll_wait(self):
        a = self.a
        lp, chk, done = a.newlabel("poll"), a.newlabel("pchk"), a.newlabel("pdone")
        a(f"s_mov_b32 s{sC}, 0\ns_branch {chk}")
        a.label(lp)
        self.poll_issue()
        a.label(chk)
        m58 = (1 << (NT - 192)) - 1
        a(f"""
        s_waitcnt vmcnt(0)
        v_cmp_ne_u64 s[40:41], {sr(sTAG, 2)}, {vr(POLLB, 2)}
        v_cmp_ne_u64 vcc, {sr(sTAG, 2)}, {vr(POLLB + 2, 2)}
        v_cmp_ne_u64 s[88:89], {sr(sTAG, 2)}, {vr(POLLB + 4, 2)}
        v_cmp_ne_u64 s[46:47], {sr(sTAG, 2)}, {vr(POLLB + 6, 2)}
        s_nop 1
        s_and_b32 s47, s47, {m58 >> 32}
        s_or_b64 s[40:41], s[40:41], vcc
        s_or_b64 s[46:47], s[88:89], s[46:47]
        s_or_b64 s[40:41], s[40:41], s[46:47]
        s_cbranch_scc0 {done}
        s_add_u32 s{sC}, s{sC}, 1
        s_cmp_lt_u32 s{sC}, {POLL_LIMIT}
        s_cbranch_scc1 {lp}
        """)
        a.label(done)

    def tag_store(self, soff, tmp):
        a = self.a
        a(f"""
        v_mov_b32 v{tmp}, s{sTAG}
        v_mov_b32 v{tmp + 1}, s{sTAG + 1}
        v_lshlrev_b32 v{tmp + 2}, 24, v{LANE}
        buffer_store_dwordx2 {vr(tmp, 2)}, v{tmp + 2}, {sr(sWS, 4)}, s{soff} offen sc1
        """)

    def wave0(self, fn):
        a = self.a
        lab = a.newlabel("w0")
        a(f"s_cmp_eq_u32 s{sW}, 0\ns_cbranch_scc0 {lab}")
        fn()
        a.label(lab)

    def edge(self, pb, which, exact, first):
        a = self.a
        if "noedge" in self.opts:
            return
        p = PA[pb] + 4 * which
        sel = "op_sel:[1,0,0] op_sel_hi:[1,1,1]" if which else "op_sel:[0,0,0] op_sel_hi:[0,1,1]"
        y = NN if (first and not exact) else Y
        for h in range(2):
            a(f"v_pk_fma_f32 {vr(QE + 2 * h, 2)}, {vr(EE[pb], 2)}, {vr(W3 + 2 * h, 2)}, {vr(Q + 2 * h, 2)} {sel}")
        for h in range(2):
            a(f"v_pk_add_f32 {vr(y + 2 * h, 2)}, {vr(p + 2 * h, 2)}, {vr(QE + 2 * h, 2)}")
        for r in range(4):
            a(f"v_exp_f32 v{TT + r}, v{y + r}")
        if exact:
            for h in range(2):
                a(f"v_pk_add_f32 {vr(TT + 2 * h, 2)}, {vr(TT + 2 * h, 2)}, 1.0 op_sel_hi:[1,0]")
            for r in range(4):
                a(f"v_rcp_f32 v{TT + r}, v{TT + r}")
            for h in range(2):
                if first:
                    a(f"v_pk_mul_f32 {vr(NN + 2 * h, 2)}, {vr(Y + 2 * h, 2)}, {vr(TT + 2 * h, 2)}")
                else:
                    a(f"v_pk_fma_f32 {vr(NN + 2 * h, 2)}, {vr(Y + 2 * h, 2)}, {vr(TT + 2 * h, 2)}, {vr(NN + 2 * h, 2)}")
        elif first:
            for h in range(2):
                a(f"v_pk_add_f32 {vr(DD + 2 * h, 2)}, {vr(TT + 2 * h, 2)}, 1.0 op_sel_hi:[1,0]")
        else:
            for h in range(2):
                a(f"v_pk_fma_f32 {vr(NN + 2 * h, 2)}, {vr(NN + 2 * h, 2)}, {vr(TT + 2 * h, 2)}, {vr(NN + 2 * h, 2)}")
            for h in range(2):
                a(f"v_pk_fma_f32 {vr(NN + 2 * h, 2)}, {vr(Y + 2 * h, 2)}, {vr(DD + 2 * h, 2)}, {vr(NN + 2 * h, 2)}")
            for h in range(2):
                a(f"v_pk_fma_f32 {vr(DD + 2 * h, 2)}, {vr(DD + 2 * h, 2)}, {vr(TT + 2 * h, 2)}, {vr(DD + 2 * h, 2)}")

    def pair(self, pb):
        a = self.a
        p = PA[pb]
        lo, hi = "op_sel:[0,0,0] op_sel_hi:[0,1,1]", "op_sel:[1,0,0] op_sel_hi:[1,1,1]"

        def qe(dst, h, sel):
            return f"v_pk_fma_f32 {vr(dst + 2 * h, 2)}, {vr(EE[pb], 2)}, {vr(W3 + 2 * h, 2)}, {vr(Q + 2 * h, 2)} {sel}"

        def nt(t, h):
            return f"v_pk_fma_f32 {vr(NN + 2 * h, 2)}, {vr(NN + 2 * h, 2)}, {vr(t + 2 * h, 2)}, {vr(NN + 2 * h, 2)}"

        def yd(y, h):
            return f"v_pk_fma_f32 {vr(NN + 2 * h, 2)}, {vr(y + 2 * h, 2)}, {vr(DD + 2 * h, 2)}, {vr(NN + 2 * h, 2)}"

        def dt(t, h):
            return f"v_pk_fma_f32 {vr(DD + 2 * h, 2)}, {vr(DD + 2 * h, 2)}, {vr(t + 2 * h, 2)}, {vr(DD + 2 * h, 2)}"

        seq = [qe(Y, 0, lo), qe(Y, 1, lo), qe(QE, 0, hi), qe(QE, 1, hi)]
        seq += [f"v_pk_add_f32 {vr(Y + 2 * h, 2)}, {vr(p + 2 * h, 2)}, {vr(Y + 2 * h, 2)}" for h in range(2)]
        seq += [f"v_pk_add_f32 {vr(QE + 2 * h, 2)}, {vr(p + 4 + 2 * h, 2)}, {vr(QE + 2 * h, 2)}" for h in range(2)]
        seq += [f"v_exp_f32 v{TT + r}, v{Y + r}" for r in range(4)]
        seq += [f"v_exp_f32 v{p + r}, v{QE + r}" for r in range(2)]
        seq += [nt(TT, 0), nt(TT, 1)]
        seq += [f"v_exp_f32 v{p + 2}, v{QE + 2}", yd(Y, 0), yd(Y, 1), f"v_exp_f32 v{p + 3}, v{QE + 3}", dt(TT, 0), dt(TT, 1)]
        seq += [nt(p, 0), nt(p, 1), yd(QE, 0), yd(QE, 1), dt(p, 0), dt(p, 1)]
        for x in seq:
            a(x)

    def flush(self, exact, mid=None, final=False):
        a = self.a
        if exact:
            if mid:
                mid()
            a(f"v_cvt_pk_bf16_f32 v{TT}, v{NN}, v{NN + 1}")
            a(f"v_cvt_pk_bf16_f32 v{TT + 1}, v{NN + 2}, v{NN + 3}")
            a(f"ds_pk_add_bf16 v{AG}, v{TT}")
            a(f"ds_pk_add_bf16 v{AG}, v{TT + 1} offset:4")
            return 2
        for r in range(4):
            a(f"v_rcp_f32 v{TT + r}, v{DD + r}")
        if mid:
            mid()
        a(f"v_max3_f32 v{CK1}, v{CK1}, v{DD}, v{DD + 1}")
        a(f"v_max3_f32 v{CK1}, v{CK1}, v{DD + 2}, v{DD + 3}")
        for h in range(2):
            a(f"v_pk_mul_f32 {vr(Y + 2 * h, 2)}, {vr(NN + 2 * h, 2)}, {vr(TT + 2 * h, 2)}")
        for h in range(2):
            a(f"v_pk_fma_f32 {vr(CK2, 2)}, {vr(Y + 2 * h, 2)}, 0, {vr(CK2, 2)} op_sel_hi:[1,0,1]")
        if final:
            a(f"""
            s_cmp_eq_u32 s{sCO}, 0
            s_cbranch_scc1 L_noside
            s_lshl_b32 s{sA}, s{sW}, 9
            s_add_u32 s{sA}, s{sA}, {(SIDE + 512) ^ AB}
            v_xor_b32 v{QA}, s{sA}, v{L8}
            s_mov_b32 s{sC}, 0
            L_side:
            ds_read_b64 {vr(TT, 2)}, v{QA}
            s_add_u32 s{sC}, s{sC}, 1
            s_waitcnt lgkmcnt(0)
            v_cmp_eq_u64 vcc, -1, {vr(TT, 2)}
            s_cmp_gt_u32 s{sC}, 4000
            s_cbranch_scc1 L_side_go
            s_cbranch_vccnz L_side
            L_side_go:
            v_lshlrev_b32 v{QE}, 16, v{TT}
            v_and_b32 v{QE + 1}, 0xffff0000, v{TT}
            v_lshlrev_b32 v{QE + 2}, 16, v{TT + 1}
            v_and_b32 v{QE + 3}, 0xffff0000, v{TT + 1}
            v_pk_add_f32 {vr(Y, 2)}, {vr(Y, 2)}, {vr(QE, 2)}
            v_pk_add_f32 {vr(Y + 2, 2)}, {vr(Y + 2, 2)}, {vr(QE + 2, 2)}
            L_noside:
            """)
        a(f"v_cvt_pk_bf16_f32 v{TT}, v{Y}, v{Y + 1}")
        a(f"v_cvt_pk_bf16_f32 v{TT + 1}, v{Y + 2}, v{Y + 3}")
        a(f"ds_write_b64 v{AG}, {vr(TT, 2)}")
        return 1

    def p_reads(self, pb, slot):
        a = self.a
        for row in range(2):
            for r in range(4):
                a(f"ds_read_u16_d16_hi v{PA[pb] + 4 * row + r}, v{RG} offset:{ROFF[slot] + row * 512 + r * 128}")

    def gather(self, slot):
        if "nodma" in self.opts:
            return
        self.a(f"""
        s_mov_b32 m0, s{sSLOT + slot}
        buffer_load_dwordx4 {vr(IA, 2)}, {sr(sP, 4)}, 0 idxen offen sc1 lds
        """)

    def reads(self, jj):
        a = self.a
        pb = jj & 1
        self.p_reads(pb ^ 1, (jj + 1) & 3)
        a(f"ds_read_b64 {vr(EE[pb ^ 1], 2)}, v{EA} offset:{8 * (jj + 1)}")
        a(f"ds_read_u16 v{IA}, v{IXA} offset:{4 * (jj + 5)}")

    def main_loop(self, exact, exit_label):
        a = self.a
        tag = "x" if exact else "f"
        loop, fin = f"L_loop_{tag}", f"L_fin_{tag}"
        prio = not exact and "noprio" not in self.opts
        a.label(loop)
        for jj in range(4):
            a(f"s_and_b32 s{sA}, s{sTM}, {3 << (2 * jj)}\ns_cbranch_scc1 L_blk_{tag}_{jj}\ns_waitcnt vmcnt(3)")
            self.reads(jj)
            if exact or "noil" in self.opts or "noedge" in self.opts:
                self.edge(jj & 1, 0, exact, False)
                self.edge(jj & 1, 1, exact, False)
            else:
                self.pair(jj & 1)
            a.label(f"L_back_{tag}_{jj}")
            a(f"s_mov_b32 m0, s{sSLOT + ((jj + 1) & 3)}\ns_waitcnt lgkmcnt(0)")
            if "nodma" not in self.opts:
                a(f"buffer_load_dwordx4 {vr(IA, 2)}, {sr(sP, 4)}, 0 idxen offen sc1 lds")
        a(f"""
        v_add_u32 v{IXA}, 16, v{IXA}
        v_add_u32 v{EA}, 32, v{EA}
        s_lshr_b64 {sr(sMASK, 2)}, {sr(sMASK, 2)}, 8
        s_or_b32 s{sMASK + 1}, s{sMASK + 1}, s{sHB}
        s_mov_b32 s{sHB}, 0
        s_mov_b32 s{sTM}, s{sMASK}
        s_add_u32 s{sI}, s{sI}, 8
        """)
        t2, t1, t0 = self.opt("p2", 12), self.opt("p1", 8), self.opt("p0", 4)
        tu = self.opt("tu", 12)
        a(f"s_sub_u32 s{sREM}, s{sREM}, 4\ns_cmp_gt_i32 s{sREM}, {t2}\ns_cbranch_scc1 {loop}")
        if "u2early" not in self.opts and "nou2" not in self.opts:
            a(f"""
            s_cmp_gt_i32 s{sREM}, {tu}
            s_cbranch_scc1 L_nou2_{tag}
            s_cmp_eq_u32 s{sW11}, -1
            s_cbranch_scc0 L_nou2_{tag}
            """)
            self.u2_loads()
            a(f"s_mov_b32 s{sW11}, s{sI}\ns_or_b32 s{sTM}, s{sTM}, 0xff\nL_nou2_{tag}:")
        if prio:
            a(f"""
            s_setprio 2
            s_cmp_gt_i32 s{sREM}, {t1}
            s_cbranch_scc1 {loop}
            s_setprio 1
            s_cmp_gt_i32 s{sREM}, {t0}
            s_cbranch_scc1 {loop}
            s_setprio 0
            """)
        a(f"s_branch {loop}")
        for jj in range(4):
            pb = jj & 1
            b = f"L_blk_{tag}_{jj}"
            a.reset_hist()
            a(f"""
            {b}:
            s_waitcnt vmcnt(11)
            s_cmp_eq_u32 s{sI}, s{sW11}
            s_cbranch_scc1 {b}_w
            s_waitcnt vmcnt(3)
            {b}_w:
            """)
            self.reads(jj)
            a(f"s_bitcmp1_b32 s{sMASK}, {2 * jj}\ns_cbranch_scc1 {b}_f0")
            self.edge(pb, 0, exact, False)
            a(f"{b}_a:\ns_bitcmp1_b32 s{sMASK}, {2 * jj + 1}\ns_cbranch_scc1 {b}_f1")
            self.edge(pb, 1, exact, False)
            a(f"s_branch L_back_{tag}_{jj}")
            for which in range(2):
                a.reset_hist()
                a(f"""
                {b}_f{which}:
                s_add_u32 s{sA}, s{sI}, {2 * jj + which}
                s_cmp_eq_u32 s{sA}, s{sNE}
                s_cbranch_scc1 {fin}
                v_readlane_b32 s{sB}, v{INFO}, s{sA}
                """)

                def mid():
                    a(f"""
                    s_and_b32 s{sC}, s{sB}, 0xffff
                    s_lshr_b32 s{sD}, s{sB}, 16
                    v_add_u32 v{QA}, s{sC}, v{L4}
                    ds_read2st64_b32 {vr(Q, 2)}, v{QA} offset0:0 offset1:1
                    ds_read2st64_b32 {vr(Q + 2, 2)}, v{QA} offset0:2 offset1:3
                    """)

                n = self.flush(exact, mid)
                a(f"""
                v_xor_b32 v{AG}, s{sD}, v{L8}
                s_waitcnt lgkmcnt({n})
                """)
                self.edge(pb, which, exact, True)
                a(f"s_branch {b + '_a' if which == 0 else f'L_back_{tag}_{jj}'}")
        a.reset_hist()
        a.label(fin)
        self.flush(exact, final=True)
        if "u2early" not in self.opts:
            a(f"s_cmp_eq_u32 s{sW11}, -1\ns_cbranch_scc0 {exit_label}")
            self.u2_loads()
        a(f"s_branch {exit_label}")

    def zero_agg(self, addr, zq):
        a = self.a
        lab = a.newlabel("zagg")
        a(f"""
        ds_write_b128 v{addr}, {vr(zq, 4)}
        s_cmp_lt_u32 s{sW}, 4
        s_cbranch_scc0 {lab}
        ds_write_b128 v{addr}, {vr(zq, 4)} offset:16384
        {lab}:
        """)

    def u2_loads(self):
        a = self.a
        a(f"""
        s_lshl_b32 s{sA}, s{sW}, 14
        s_add_u32 s{sA}, s{sA}, {W_UT + 8192}
        s_add_u32 s{sB}, s{sA}, 4096
        v_lshlrev_b32 v{TM}, 4, v{LANE}
        """)
        for s in range(8):
            so = sA if s < 4 else sB
            a(f"buffer_load_dwordx4 {vr(UF + 4 * s, 4)}, v{TM}, {sr(sWS, 4)}, s{so} offen offset:{(s & 3) * 1024} sc1")

    def hi_passes(self, fn):
        a = self.a
        fn(0)
        fn(1)
        lab = a.newlabel("hp")
        a(f"s_cmp_eq_u64 {sr(sVAL + 4, 2)}, 0\ns_cbranch_scc1 {lab}")
        fn(2)
        fn(3)
        a.label(lab)

    def rec_issue(self, S):
        a = self.a
        a(f"""
        s_lshl_b32 s{sA}, s{sP0}, 2
        s_lshl_b32 s{sB}, s{sP0}, 5
        v_mov_b32 v{S.tmp}, {OOB}
        s_add_u32 s{sC}, s{sA}, 4
        s_add_u32 s{sD}, s{sA}, 8
        v_cmp_lt_i32 {sr(sVAL, 2)}, s{sA}, v{CQ}
        s_add_u32 s{sA}, s{sA}, 12
        v_cmp_lt_i32 {sr(sVAL + 2, 2)}, s{sC}, v{CQ}
        v_cmp_lt_i32 {sr(sVAL + 4, 2)}, s{sD}, v{CQ}
        v_cmp_lt_i32 {sr(sVAL + 6, 2)}, s{sA}, v{CQ}
        s_cmp_gt_u32 s{sNP}, 1
        s_cselect_b64 {sr(sVAL + 2, 2)}, {sr(sVAL + 2, 2)}, 0
        s_cselect_b64 {sr(sVAL + 4, 2)}, {sr(sVAL + 4, 2)}, 0
        s_cselect_b64 {sr(sVAL + 6, 2)}, {sr(sVAL + 6, 2)}, 0
        """)
        lab = a.newlabel("hp")
        a(f"s_cmp_eq_u64 {sr(sVAL + 4, 2)}, 0\ns_cbranch_scc1 {lab}")
        for k in (2, 3, 0, 1):
            if k == 0:
                a.label(lab)
            a(f"""
            v_cndmask_b32 v{S.adr + k}, v{S.tmp}, v{RBA}, {sr(sVAL + 2 * k, 2)}
            buffer_load_dwordx2 {vr(S.rec[k], 2)}, v{S.adr + k}, {sr(sWS, 4)}, s{sB} offen offset:{32 * k} sc1
            """)

    def count(self, S):
        a = self.a
        a(f"v_mov_b32 v{S.tmp}, 1\ns_mov_b32 s{sA}, {CNTN}")

        def one(k):
            a(f"""
            s_mov_b64 exec, {sr(sVAL + 2 * k, 2)}
            v_bfe_u32 v{S.adr + k}, v{S.rec[k]}, 16, 6
            v_lshl_add_u32 v{S.adr + k}, v{S.adr + k}, 2, s{sA}
            ds_add_rtn_u32 v{S.rank + k}, v{S.adr + k}, v{S.tmp}
            """)
        self.hi_passes(one)
        a("s_mov_b64 exec, -1")

    def lists(self, S, generic_label):
        a = self.a
        sc = S.tmp
        done = a.newlabel("lists")
        a(f"""
        s_mov_b32 s{sA}, {CNTN}
        v_lshl_add_u32 v{sc + 3}, v{LANE}, 2, s{sA}
        v_mov_b32 v{sc + 2}, {MISC}
        ds_read_b32 v{sc}, v{sc + 3}
        ds_read_b32 v{sc + 2}, v{sc + 2}
        s_waitcnt lgkmcnt(0)
        v_mov_b32 v{sc + 1}, v{sc}
        v_readfirstlane_b32 s{sMAXC}, v{sc + 2}
        v_cmp_eq_u32 {sr(sZ, 2)}, 0, v{sc}
        v_subrev_u32 v{sc}, {DL}, v{sc}
        """)
        self.scan(sc + 1)
        a(f"""
        v_readlane_b32 s{sM}, v{sc + 1}, 63
        v_sub_u32 v{sc + 1}, v{sc + 1}, v{sc}
        s_cmp_eq_u32 s{sNP}, {NPASS}
        s_cbranch_scc0 {done}
        s_cmp_gt_u32 s{sM}, 1024
        s_cbranch_scc1 {generic_label}
        s_cmp_eq_u32 s{sMAXC}, 0
        s_cbranch_scc0 {generic_label}
        s_cmp_lt_u32 s{sM}, 64
        s_cbranch_scc0 {done}
        s_mov_b32 s{sMODE}, 1
        {done}:
        """)
        self.hi_passes(lambda k: a(f"ds_bpermute_b32 v{S.adr + k}, v{S.adr + k}, v{sc + 1}"))
        a(f"""
        s_add_u32 s{sA}, s{sM}, 1
        s_lshr_b32 s{sA}, s{sA}, 1
        s_mul_i32 s{sB}, s{sA}, s{sW}
        s_add_u32 s{sC}, s{sB}, s{sA}
        s_lshr_b32 s{sI}, s{sB}, 4
        s_lshr_b32 s{sC}, s{sC}, 4
        s_sub_u32 s{sREM}, s{sC}, s{sI}
        s_lshl_b32 s{sC}, s{sC}, 1
        s_cmp_lt_u32 s{sC}, s{sM}
        s_cselect_b32 s{sCO}, 1, 0
        s_min_u32 s{sC}, s{sC}, s{sM}
        s_lshl_b32 s{sI}, s{sI}, 1
        s_sub_u32 s{sNE}, s{sC}, s{sI}
        s_mov_b32 s{sA}, {(IL - 2 * DL) & 0xffffffff}
        s_mov_b32 s{sB}, {(EL - 4 * DL) & 0xffffffff}
        s_waitcnt lgkmcnt(0)
        """)

        def one(k):
            a(f"""
            s_mov_b64 exec, {sr(sVAL + 2 * k, 2)}
            v_add_u32 v{S.rank + k}, v{S.rank + k}, v{S.adr + k}
            v_lshl_add_u32 v{S.adr + k}, v{S.rank + k}, 1, s{sA}
            v_lshl_add_u32 v{sc + (k & 1)}, v{S.rank + k}, 2, s{sB}
            ds_write_b8_d16_hi v{S.rank + k}, v{S.rec[k]}
            ds_write_b16 v{S.adr + k}, v{S.rec[k]}
            ds_write_b32 v{sc + (k & 1)}, v{S.rec[k] + 1}
            """)
        self.hi_passes(one)
        a("s_mov_b64 exec, -1")

    def setup(self, tm):
        a = self.a
        a(f"""
        s_add_u32 s{sD}, s{sI}, {DL - 1}
        v_add_u32 v{INFO}, s{sD}, v{LANE}
        s_lshl_b32 s{sA}, s{sI}, 1
        s_add_u32 s{sA}, s{sA}, {IL}
        v_lshl_add_u32 v{EA}, v{LANE}, 1, s{sA}
        ds_read_u16 v{tm + 3}, v{EA}
        ds_read_u8 v{tm}, v{INFO}
        ds_read_u8 v{tm + 2}, v{INFO} offset:1
        ds_read_u8 v{tm + 1}, v{INFO} offset:2
        s_cmp_lt_u32 s{sW}, 9
        s_mov_b32 s{sC}, {PILB}
        s_cselect_b32 s{sC}, {PILA}, s{sC}
        s_mul_i32 s{sB}, s{sW}, 192
        s_add_u32 s{sB}, s{sB}, s{sC}
        v_lshl_add_u32 v{INFO}, v{LANE}, 1, s{sB}
        v_mov_b32 v{tm + 4}, 0xffff
        v_cmp_gt_i32 vcc, s{sNE}, v{LANE}
        s_mov_b32 exec_hi, 0
        ds_write_b16 v{INFO}, v{tm + 4} offset:128
        s_mov_b64 exec, -1
        v_lshrrev_b32 v{IXA}, 5, v{LANE}
        v_lshl_add_u32 v{IXA}, v{IXA}, 1, s{sB}
        s_lshl_b32 s{sA}, s{sI}, 2
        s_add_u32 s{sA}, s{sA}, {EL}
        v_mov_b32 v{EA}, s{sA}
        s_waitcnt lgkmcnt(4)
        v_cndmask_b32 v{tm + 3}, v{tm + 4}, v{tm + 3}, vcc
        ds_write_b16 v{INFO}, v{tm + 3}
        """)
        for k in range(5):
            a(f"ds_read_u16 v{IX0 + k}, v{IXA} offset:{4 * k}")
        a(f"""
        s_waitcnt lgkmcnt(7)
        v_cmp_ne_u32 {sr(sMASK, 2)}, v{tm + 2}, v{tm + 1}
        v_cmp_eq_u32 vcc, v{tm + 2}, v{tm}
        v_mul_u32_u24 v{INFO}, {QS}, v{tm + 2}
        v_and_b32 v{tm + 1}, 15, v{tm + 2}
        v_lshlrev_b32 v{tm + 1}, 4, v{tm + 1}
        v_lshl_add_u32 v{tm + 1}, v{tm + 2}, 9, v{tm + 1}
        v_lshl_or_b32 v{INFO}, v{tm + 1}, 16, v{INFO}
        s_sub_u32 s{sA}, s{sNE}, 1
        s_bitcmp0_b64 {sr(sMASK, 2)}, s{sA}
        s_cselect_b32 s{sCO}, s{sCO}, 0
        s_bitset1_b64 {sr(sMASK, 2)}, s{sA}
        v_readfirstlane_b32 s{sB}, v{INFO}
        ; end-of-segment bits become start-of-segment bits; bit 64 is carried separately
        s_lshr_b32 s{sHB2}, s{sMASK + 1}, 31
        s_lshl_b32 s{sHB2}, s{sHB2}, 24
        s_lshl_b64 {sr(sMASK, 2)}, {sr(sMASK, 2)}, 1
        s_and_b32 s{sC}, vcc_lo, 1
        s_cmp_eq_u32 s{sI}, 0
        s_cselect_b32 s{sC}, 0, s{sC}
        s_cmp_eq_u32 s{sMODE}, 0
        s_cselect_b32 s{sC}, s{sC}, 0
        s_lshl_b32 s{sA}, s{sW}, 9
        s_add_u32 s{sA}, s{sA}, {SIDE ^ AB}
        s_lshr_b32 s{sD}, s{sB}, 16
        s_cmp_eq_u32 s{sC}, 0
        s_cselect_b32 s{sAG0}, s{sD}, s{sA}
        s_and_b32 s{sQ0}, s{sB}, 0xffff
        """)

    def slot_consts(self):
        self.a(f"""
        s_lshl_b32 s{sA}, s{sW}, 11
        s_add_u32 s{sSLOT}, s{sA}, {RING + ROFF[0]}
        s_add_u32 s{sSLOT + 1}, s{sA}, {RING + ROFF[1]}
        s_add_u32 s{sSLOT + 2}, s{sA}, {RING + ROFF[2]}
        s_add_u32 s{sSLOT + 3}, s{sA}, {RING + ROFF[3]}
        v_and_b32 v{IA + 1}, 31, v{LANE}
        v_lshlrev_b32 v{IA + 1}, 4, v{IA + 1}
        """)

    def lane_consts(self):
        self.a(f"""
        v_lshl_add_u32 v{RG}, v{LANE}, 1, s{sSLOT}
        v_lshlrev_b32 v{L4}, 2, v{LANE}
        v_lshlrev_b32 v{L8}, 3, v{LANE}
        v_or_b32 v{L8}, {AB}, v{L8}
        """)

    def side_fill(self, tmp, adr):
        self.a(f"""
        v_mov_b64 {vr(tmp, 2)}, -1
        s_lshl_b32 s{sA}, s{sW}, 9
        s_add_u32 s{sA}, s{sA}, {SIDE}
        v_lshl_add_u32 v{adr}, v{LANE}, 3, s{sA}
        ds_write_b64 v{adr}, {vr(tmp, 2)}
        """)

    def tag_calc(self):
        self.a(f"""
        v_readfirstlane_b32 s{sTAG}, v{W3}
        v_readfirstlane_b32 s{sTAG + 1}, v{W3 + 1}
        s_add_u32 s{sTAG}, s{sTAG}, 1
        s_addc_u32 s{sTAG + 1}, s{sTAG + 1}, 0
        s_lshl_b32 s{sTLO}, s{sTAG + 1}, 20
        s_lshl_b32 s{sRA}, s{sTAG}, 24
        s_bfe_u32 s{sRB}, s{sTAG}, 0x100008
        """)

    def clean(self, S):
        a = self.a
        lp, ok = a.newlabel("clean"), a.newlabel("cleanok")
        a(f"s_mov_b32 s{sM}, 0\n{lp}:\ns_mov_b64 s[40:41], 0")

        def one(k):
            a(f"""
            s_mov_b64 exec, {sr(sVAL + 2 * k, 2)}
            v_xor_b32 v{S.rec[k]}, s{sRA}, v{S.rec[k]}
            v_xor_b32 v{S.rec[k] + 1}, s{sRB}, v{S.rec[k] + 1}
            v_lshrrev_b32 v{S.adr + k}, 24, v{S.rec[k]}
            v_lshl_or_b32 v{S.adr + k}, v{S.rec[k] + 1}, 16, v{S.adr + k}
            v_cmp_ne_u32 vcc, 0, v{S.adr + k}
            s_or_b64 s[40:41], s[40:41], vcc
            """)
        self.hi_passes(one)
        a(f"""
        s_mov_b64 exec, -1
        s_cmp_eq_u64 s[40:41], 0
        s_cbranch_scc1 {ok}
        s_add_u32 s{sM}, s{sM}, 1
        s_cmp_gt_u32 s{sM}, {POLL_LIMIT}
        s_cbranch_scc1 {ok}
        """)
        self.rec_issue(S)
        a(f"s_waitcnt vmcnt(0)\ns_branch {lp}\n{ok}:")

    def binning(self):
        a = self.a
        DV, SV, EP, AD, RK, RV, H0, B0, SQ, t4, t5, t6, t7 = 24, 26, 28, 30, 32, 34, 40, 44, 48, 52, 53, 54, 56
        a(f"""
        s_mov_b32 s{sC}, -40
        s_mov_b32 s{sD}, {HIST}
        v_mov_b32 v{t4}, 1
        v_mov_b32 v{t7}, {S1C}
        v_lshlrev_b32 v{t5}, 4, v{LANE}
        v_add_u32 v{t6}, {HIST}, v{t5}
        s_waitcnt vmcnt(1)
        """)
        self.stamp("edges")
        self.tag_calc()
        R2 = range(2)
        for i in R2:
            a(f"v_mul_u32_u24 v{AD + i}, 52429, v{DV + i}")
        for i in R2:
            a(f"v_lshrrev_b32 v{AD + i}, 21, v{AD + i}")
        for i in R2:
            a(f"v_min_u32 v{RK + i}, 255, v{AD + i}")
        for i in R2:
            a(f"v_and_b32 v{AD + i}, 7, v{RK + i}\nv_lshrrev_b32 v{H0 + i}, 3, v{RK + i}")
        for i in R2:
            a(f"v_lshl_or_b32 v{AD + i}, v{AD + i}, 5, v{H0 + i}")
        for i in R2:
            a(f"v_lshl_add_u32 v{AD + i}, v{AD + i}, 2, s{sD}")
        for i in R2:
            a(f"v_mad_i32_i24 v{DV + i}, v{RK + i}, s{sC}, v{DV + i}")
            a(f"ds_add_rtn_u32 v{RK + i}, v{AD + i}, v{t4}")
        a(f"s_mov_b64 exec, 1\nds_add_u32 v{t7}, v{t4}\ns_mov_b64 exec, -1")
        for i in R2:
            a(f"v_lshl_or_b32 v{RV + 2 * i}, v{DV + i}, 16, v{SV + i}")
        a(f"""
        v_mov_b32 v{RV + 3}, 0xffff0000
        v_lshl_or_b32 v{RV + 1}, v{EP}, 16, s{sRB}
        v_and_or_b32 v{RV + 3}, v{EP}, v{RV + 3}, s{sRB}
        v_or_b32 v{RV}, s{sRA}, v{RV}
        v_or_b32 v{RV + 2}, s{sRA}, v{RV + 2}
        """)
        self.spin(S1C, 5, t7, f"ds_read_b128 {vr(H0, 4)}, v{t6}")
        a(f"""
        v_add_u32 v{B0 + 1}, v{H0}, v{H0 + 1}
        v_add_u32 v{SQ}, v{H0 + 2}, v{H0 + 3}
        v_add_u32 v{SQ}, v{SQ}, v{B0 + 1}
        v_mov_b32 v{SQ + 1}, v{SQ}
        """)
        self.scan(SQ + 1)
        a(f"""
        v_sub_u32 v{B0}, v{SQ + 1}, v{SQ}
        v_add_u32 v{B0 + 2}, v{B0}, v{B0 + 1}
        v_add_u32 v{B0 + 1}, v{B0}, v{H0}
        v_add_u32 v{B0 + 3}, v{B0 + 2}, v{H0 + 2}
        ds_write_b128 v{t6}, {vr(B0, 4)} offset:{BASE - HIST}
        ds_read_b32 v{DV}, v{AD} offset:{BASE - HIST}
        ds_read_b32 v{DV + 1}, v{AD + 1} offset:{BASE - HIST}
        s_mov_b32 s{sD}, {SORT}
        v_mov_b32 v{t7}, {S2C}
        v_lshlrev_b32 v{t5}, 4, v{TID}
        v_add_u32 v{t6}, {SORT}, v{t5}
        s_mul_i32 s{sB}, s{sT}, {EC * 8}
        s_add_u32 s{sB}, s{sB}, {W_RECS}
        s_waitcnt lgkmcnt(0)
        v_add_u32 v{DV}, v{DV}, v{RK}
        v_add_u32 v{DV + 1}, v{DV + 1}, v{RK + 1}
        v_lshl_add_u32 v{DV}, v{DV}, 3, s{sD}
        v_lshl_add_u32 v{DV + 1}, v{DV + 1}, 3, s{sD}
        ds_write_b64 v{DV}, {vr(RV, 2)}
        ds_write_b64 v{DV + 1}, {vr(RV + 2, 2)}
        s_mov_b64 exec, 1
        ds_add_u32 v{t7}, v{t4}
        s_mov_b64 exec, -1
        """)
        self.spin(S2C, 5, t7, f"ds_read_b128 {vr(SQ, 4)}, v{t6}")
        a(f"buffer_store_dwordx4 {vr(SQ, 4)}, v{t5}, {sr(sWS, 4)}, s{sB} offen sc1")
        self.stamp("binned")

    def build(self):
        a = self.a
        t0, t1, t2, t3, t4, t5, t6, t7 = range(58, 66)
        PQ = 24
        UQ = 108
        u0, u1, u2, u3 = 57, 58, 59, 60

        if self.stamps and "dbg" not in self.opts:
            a(f"s_memrealtime s[86:87]\ns_memtime {sr(self.STAMP_REGS[0], 2)}")
        if "pad0" in self.opts or any(o.startswith("padat=") for o in self.opts):
            a("s_memrealtime s[96:97]")
        a(f"""
        s_cmp_ge_u32 s{sT}, {NT}
        s_cbranch_scc1 L_end
        s_load_dwordx16 s[40:55], s[0:1], 0
        s_load_dwordx2 s[56:57], s[0:1], 64
        v_and_b32 v{LANE}, 63, v{TID}
        """)
        if "nocodepf" not in self.opts:
            a(f"""
            s_getpc_b64 s[4:5]
            L_pc:
            """)
            if "fullpf" in self.opts:
                a(f"""
                v_lshlrev_b32 v{t0}, 4, v{TID}
                v_min_u32 v{t0}, L_code_end-L_pc-16, v{t0}
                global_load_dwordx4 {vr(AC2 + 8, 4)}, v{t0}, s[4:5]
                """)
            else:
                a(f"""
                s_lshr_b32 s6, s{sT}, 3
                s_and_b32 s6, s6, 15
                s_lshl_b32 s6, s6, 10
                v_lshl_add_u32 v{t0}, v{TID}, 4, s6
                v_min_u32 v{t0}, L_code_end-L_pc-16, v{t0}
                v_cmp_gt_u32 vcc, 64, v{TID}
                s_cbranch_vccz L_nopf
                global_load_dwordx4 {vr(AC2 + 8, 4)}, v{t0}, s[4:5]
                L_nopf:
                """)
        a(f"""
        v_lshrrev_b32 v{t0}, 6, v{TID}
        v_mov_b32 v{t6}, 0
        v_lshlrev_b32 v{t7}, 2, v{TID}
        v_readfirstlane_b32 s{sW}, v{t0}
        v_add_u32 v{t7}, {HIST}, v{t7}
        s_cmp_lt_u32 s{sW}, 4
        s_cbranch_scc1 L_z1
        s_cmp_gt_u32 s{sW}, 5
        s_cbranch_scc1 L_z2
        v_add_u32 v{t7}, {CNTN - HIST - 1024}, v{t7}
        L_z1:
        ds_write_b32 v{t7}, v{t6}
        L_z2:
        v_lshrrev_b32 v{t3}, 5, v{TID}
        v_and_b32 v{t4}, 31, v{TID}
        v_and_b32 v{t5}, 15, v{t3}
        v_xor_b32 v{t6}, v{t5}, v{t4}
        v_lshlrev_b32 v{t6}, 4, v{t6}
        s_mul_i32 s{sB}, s{sT}, {T * 512}
        v_lshl_add_u32 v{t6}, v{t3}, 9, v{t6}
        v_add_u32 v{GO}, s{sB}, v{t6}
        v_and_b32 v{t6}, 3, v{t5}
        v_lshrrev_b32 v{t7}, 1, v{t5}
        v_and_b32 v{t7}, 4, v{t7}
        v_or_b32 v{t6}, v{t6}, v{t7}
        v_lshlrev_b32 v{t6}, 1, v{t6}
        v_xor_b32 v{t6}, v{t6}, v{t4}
        v_lshlrev_b32 v{t6}, 4, v{t6}
        v_lshl_add_u32 v{WOFF}, v{t5}, 9, v{t6}
        s_and_b32 s{sW1K}, s{sW}, 7
        s_lshl_b32 s{sW1K}, s{sW1K}, 10
        """)
        if self.stamps:
            a(f"v_mov_b32 v{STAMPV}, 0")
            for r in self.STAMP_REGS[1:5]:
                a(f"s_mov_b32 s{r}, 0")
        a("s_waitcnt lgkmcnt(0)")

        def srd(s, p, nbytes):
            a(f"""
            s_mov_b32 s{s}, s{p}
            s_mov_b32 s{s + 1}, s{p + 1}
            s_mov_b32 s{s + 2}, {nbytes}
            s_mov_b32 s{s + 3}, 0x20000
            """)

        srd(sDST, 46, E * 4)
        srd(sSRC, 44, E * 4)
        srd(sEA, 42, E * 2)
        srd(sX, 40, N * 512)
        srd(sWM, 48, 513 * 512)
        srd(sWU, 50, 512 * 512)
        srd(sWS, 56, WS_SIZE)
        a("s_barrier")
        if self.opt("pad", 0) and "pad0" not in self.opts:
            a("s_memrealtime s[96:97]")
        self.stamp("start")
        self.stamp("bar0")
        EPV = W3
        a(f"""
        v_mov_b32 v{t0}, {W_EPOCH}
        s_cmp_ge_u32 s{sW}, 8
        s_cbranch_scc1 L_role_l
        s_cmp_ge_u32 s{sW}, 5
        s_cbranch_scc1 L_role_u
        s_setprio 3
        v_lshlrev_b32 v{t6}, 3, v{TID}
        v_lshlrev_b32 v{t7}, 2, v{TID}
        s_mul_i32 s{sA}, s{sT}, {EC * 4}
        s_mul_i32 s{sB}, s{sT}, {EC * 2}
        buffer_load_dwordx2 v[24:25], v{t6}, {sr(sDST, 4)}, s{sA} offen
        buffer_load_dwordx2 v[26:27], v{t6}, {sr(sSRC, 4)}, s{sA} offen
        buffer_load_dword v28, v{t7}, {sr(sEA, 4)}, s{sB} offen
        buffer_load_dwordx2 {vr(EPV, 2)}, v{t0}, {sr(sWS, 4)}, 0 offen
        s_sub_u32 s{sA}, s{sW}, 1
        s_and_b32 s{sA}, s{sA}, 7
        s_mul_i32 s{sD}, s{sA}, {NT}
        s_add_u32 s{sD}, s{sD}, s{sT}
        s_lshl_b32 s{sA}, s{sA}, 10
        s_add_u32 m0, s{sA}, {SLOT[3]}
        s_and_b32 s{sA}, s{sD}, 7
        s_bfe_u32 s{sB}, s{sD}, 0x40003
        s_lshr_b32 s{sC}, s{sD}, 7
        s_lshl_b32 s{sUO}, s{sB}, 4
        s_lshl_b32 s{sUG}, s{sC}, 3
        s_add_u32 s{sUO}, s{sUO}, s{sUG}
        s_add_u32 s{sUO}, s{sUO}, s{sA}
        s_lshl_b32 s{sUG}, s{sUO}, 5
        s_add_u32 s{sUG}, s{sUG}, {W_UTAG}
        s_lshl_b32 s{sUO}, s{sUO}, 10
        s_add_u32 s{sUO}, s{sUO}, {W_UT}
        s_lshl_b32 s{sA}, s{sA}, 5
        s_lshl_b32 s{sB}, s{sB}, 5
        s_cmp_lt_u32 s{sD}, 256
        s_cselect_b32 s{sB}, s{sB}, {OOB}
        s_cselect_b32 s{sUO}, s{sUO}, {OOB}
        s_cselect_b32 s{sUG}, s{sUG}, {OOB}
        v_lshrrev_b32 v{t6}, 1, v{LANE}
        v_add_u32 v{t6}, s{sA}, v{t6}
        v_and_b32 v{t5}, 1, v{LANE}
        v_lshlrev_b32 v{t5}, 4, v{t5}
        s_cmp_eq_u32 s{sC}, 0
        s_cbranch_scc1 L_pc_u1
        v_and_b32 v{t7}, 3, v{t6}
        v_lshrrev_b32 v{t6}, 2, v{t6}
        v_lshl_add_u32 v{t6}, v{t7}, 6, v{t6}
        v_add_u32 v{t6}, 256, v{t6}
        L_pc_u1:
        v_lshl_add_u32 v{t6}, v{t6}, 9, v{t5}
        buffer_load_dwordx4 v{t6}, {sr(sWU, 4)}, s{sB} offen lds
        s_branch L_role_done
        L_role_u:
        buffer_load_dwordx2 {vr(EPV, 2)}, v{t0}, {sr(sWS, 4)}, 0 offen
        v_subrev_u32 v{t3}, 10, v{t3}
        s_mul_i32 s{sB}, s{sT}, {T * 512}
        s_lshl_b32 s{sA}, s{sW}, 10
        """)
        for i in range(7):
            if i == 6:
                a(f"""
                s_cmp_eq_u32 s{sW}, 7
                s_cselect_b32 s{sC}, 2, 0
                v_subrev_u32 v{t3}, s{sC}, v{t3}
                s_lshl_b32 s{sC}, s{sC}, 9
                s_sub_u32 s{sA}, s{sA}, s{sC}
                """)
            a(f"""
            v_and_b32 v{t6}, 15, v{t3}
            v_xor_b32 v{t6}, v{t6}, v{t4}
            v_lshlrev_b32 v{t6}, 4, v{t6}
            s_add_u32 m0, s{sA}, {XB - 5120 + 3072 * i}
            v_lshl_add_u32 v{t6}, v{t3}, 9, v{t6}
            v_add_u32 v{t3}, 6, v{t3}
            buffer_load_dwordx4 v{t6}, {sr(sX, 4)}, s{sB} offen lds
            """)
        a(f"""
        s_branch L_role_done
        L_role_l:
        buffer_load_dwordx2 {vr(EPV, 2)}, v{t0}, {sr(sWS, 4)}, 0 offen
        s_lshr_b32 s{sA}, s{sT}, 3
        s_lshl_b32 s{sA}, s{sA}, 13
        s_add_u32 s{sA}, s{sA}, s{sW1K}
        s_lshr_b32 s{sC}, s{sA}, 1
        v_lshlrev_b32 v{t7}, 3, v{LANE}
        buffer_load_dwordx2 {vr(AC2, 2)}, v{t7}, {sr(sWM, 4)}, s{sC} offen
        s_add_u32 s{sC}, s{sC}, 131072
        buffer_load_dwordx2 {vr(AC2 + 2, 2)}, v{t7}, {sr(sWM, 4)}, s{sC} offen
        s_cmp_eq_u32 s{sW}, 15
        s_cbranch_scc0 L_role_done
        s_mov_b32 m0, {W3L}
        v_lshlrev_b32 v{t7}, 4, v{LANE}
        s_mov_b32 s{sB}, {512 * 512}
        buffer_load_dwordx4 v{t7}, {sr(sWM, 4)}, s{sB} offen lds
        L_role_done:
        """)
        UA = W3 - 9 - 5
        srd(sOUT, 52, N * 512)
        a(f"""
        s_add_u32 s{sP}, s56, {W_P}
        s_addc_u32 s{sP + 1}, s57, 0
        s_or_b32 s{sP + 1}, s{sP + 1}, {512 << 16}
        s_mov_b32 s{sP + 2}, {N}
        s_mov_b32 s{sP + 3}, 0x20000
        s_mov_b32 s{sNL2E}, {NLOG2E}
        s_mov_b32 s{sNL2E + 1}, {NLOG2E}
        s_mov_b32 s{sNLN2}, {NLN2}
        s_mov_b32 s{sNLN2 + 1}, {NLN2}
        s_lshl_b32 s{sWK}, s{sW}, 10
        s_lshr_b32 s{sHI}, s{sW}, 3
        s_lshl_b32 s{sHI}, s{sHI}, 13
        s_mov_b32 s{sGEN}, 0
        v_and_b32 v{t0}, 15, v{LANE}
        v_lshrrev_b32 v{t1}, 4, v{LANE}
        v_bfe_u32 v{t2}, v{LANE}, 2, 2
        v_and_b32 v{t3}, 3, v{LANE}
        s_lshl_b32 s{sB}, s{sW}, 1
        v_and_b32 v{t4}, 1, v{t1}
        v_lshl_or_b32 v{t4}, v{t4}, 2, v{t2}
        v_lshlrev_b32 v{t4}, 1, v{t4}
        v_lshrrev_b32 v{t5}, 1, v{t3}
        v_add_u32 v{t5}, s{sB}, v{t5}
        v_xor_b32 v{t4}, v{t4}, v{t5}
        v_lshlrev_b32 v{t4}, 4, v{t4}
        v_and_b32 v{t5}, 1, v{t3}
        v_lshl_add_u32 v{t4}, v{t5}, 3, v{t4}
        v_lshl_add_u32 v{t5}, v{t1}, 3, v{t2}
        v_lshl_add_u32 v{TR0}, v{t5}, 9, v{t4}
        v_add_u32 v{TR1}, 65536, v{TR0}
        v_lshlrev_b32 v{t5}, 5, v{t5}
        v_lshl_add_u32 v{UA + 9}, v{t3}, 3, v{t5}
        v_lshlrev_b32 v{t5}, 9, v{t0}
        v_add_u32 v{t5}, {XB}, v{t5}
        """)
        for k in range(4):
            a(f"""
            v_add_u32 v{t4}, {4 * k}, v{t1}
            v_xor_b32 v{t4}, v{t4}, v{t0}
            v_lshl_add_u32 v{XA + k}, v{t4}, 4, v{t5}
            """)
        a(f"""
        v_lshrrev_b32 v{t4}, 1, v{t1}
        v_add_u32 v{t4}, s{sB}, v{t4}
        v_xor_b32 v{t4}, v{t4}, v{t0}
        v_lshlrev_b32 v{t4}, 4, v{t4}
        v_and_b32 v{t6}, 1, v{t1}
        v_lshl_add_u32 v{t4}, v{t6}, 3, v{t4}
        v_lshl_add_u32 v{t4}, v{t0}, 9, v{t4}
        v_add_u32 v{STG}, {PS}, v{t4}
        v_lshlrev_b32 v{STR}, 4, v{TID}
        v_add_u32 v{STR}, {PS}, v{STR}
        v_add_u32 v{GO2}, 16384, v{GO}
        s_cmp_lt_u32 s{sW}, 4
        s_cbranch_scc1 L_go2
        v_mov_b32 v{GO2}, {OOB}
        L_go2:
        s_cmp_lt_u32 s{sW}, 5
        s_cbranch_scc0 L_nobin
        """)
        self.binning()
        a(f"""
        s_cmp_eq_u32 s{sW}, 0
        s_cbranch_scc0 L_piece
        v_lshlrev_b32 v{t0}, 3, v{LANE}
        v_add_u32 v{t0}, {HIST}, v{t0}
        ds_read_b64 {vr(66, 2)}, v{t0}
        ds_read_b64 {vr(68, 2)}, v{t0} offset:{BASE - HIST}
        ds_read_b64 {vr(70, 2)}, v{t0} offset:512
        ds_read_b64 {vr(72, 2)}, v{t0} offset:{BASE - HIST + 512}
        v_lshlrev_b32 v{t1}, 4, v{LANE}
        s_lshl_b32 s{sB}, s{sT}, 11
        s_add_u32 s{sB}, s{sB}, {W_OFFS}
        s_waitcnt lgkmcnt(0)
        """)
        for i in range(4):
            h, b = 66 + 4 * (i >> 1) + (i & 1), 68 + 4 * (i >> 1) + (i & 1)
            a(f"""
            v_lshl_or_b32 v{ACC + 2 * i}, v{h}, 10, v{b}
            v_mov_b32 v{ACC + 2 * i + 1}, s{sTAG}
            v_or_b32 v{ACC + 2 * i}, s{sTLO}, v{ACC + 2 * i}
            """)
        a(f"""
        buffer_store_dwordx4 {vr(ACC, 4)}, v{t1}, {sr(sWS, 4)}, s{sB} offen sc1
        buffer_store_dwordx4 {vr(ACC + 4, 4)}, v{t1}, {sr(sWS, 4)}, s{sB} offen offset:1024 sc1
        s_setprio 0
        s_branch L_bin_done
        L_piece:
        s_setprio 0
        s_cmp_lt_u32 s{sW}, 3
        s_cbranch_scc0 L_bin_done
        s_lshl_b32 s{sA}, s{sW}, 10
        s_add_u32 s{sA}, s{sA}, {SLOT[3] - 1024}
        v_add_u32 v{UA + 9}, s{sA}, v{UA + 9}
        v_lshlrev_b32 v{W3 + 2}, 4, v{LANE}
        s_waitcnt vmcnt(1)
        ds_read_b64_tr_b16 {vr(AC2 + 4, 2)}, v{UA + 9}
        ds_read_b64_tr_b16 {vr(AC2 + 6, 2)}, v{UA + 9} offset:128
        s_waitcnt lgkmcnt(0)
        buffer_store_dwordx4 {vr(AC2 + 4, 4)}, v{W3 + 2}, {sr(sWS, 4)}, s{sUO} offen sc1
        s_branch L_bin_done
        L_nobin:
        s_cmp_ge_u32 s{sW}, 8
        s_cbranch_scc1 L_bin_ld
        v_mov_b32 v{W3 + 2}, {XCNT}
        v_mov_b32 v{W3 + 3}, 1
        s_mov_b64 exec, 1
        s_waitcnt vmcnt(4)
        ds_add_u32 v{W3 + 2}, v{W3 + 3}
        s_mov_b64 exec, -1
        s_branch L_bin_done
        L_bin_ld:
        """)
        self.dma_body(0, 0)
        a(f"""
        s_waitcnt vmcnt(6)
        L_bin_done:
        """)
        self.tag_calc()
        self.xpreload(UA + 9)
        self.stamp("xpre")

        R0 = 116
        XBUF = (80, 92)
        fbuf = [UF + 4 * i for i in range(6)] + [56, 60]
        OV, o0, o1, o2, o3, UV = 20, 22, 23, 16, 17, 116

        def frag(i):
            a(f"""
            s_add_u32 s{sB}, s{sUB}, {1024 * i}
            buffer_load_dwordx4 {vr(fbuf[i], 4)}, v{FO}, {sr(sWS, 4)}, s{sB} offen sc1
            """)
            self.vm("LN", f"f{i}")

        def x3(i):
            for rb in range(3):
                a(f"ds_read_b128 {vr(XBUF[i & 1] + 4 * rb, 4)}, v{XA + (i & 3)} offset:{rb * 8192 + (i >> 2) * 256}")
                self.lq.append(f"x{i}")

        def consume(i):
            self.vmwait({f"f{i}"})
            if f"x{i}" in self.lq:
                self.lwait(f"x{i}")
            for rb in range(3):
                cin = "0" if i == 0 else vr(ACC + 4 * rb, 4)
                a(f"v_mfma_f32_16x16x32_bf16 {vr(ACC + 4 * rb, 4)}, {vr(fbuf[i], 4)}, {vr(XBUF[i & 1] + 4 * rb, 4)}, {cin}")
            if i + 2 < 8:
                x3(i + 2)

        def utag_issue(dst, adr):
            a(f"""
            v_lshlrev_b32 v{adr}, 5, v{LANE}
            s_lshl_b32 s{sC}, s{sW}, 9
            s_add_u32 s{sC}, s{sC}, {W_UTAG}
            s_mov_b64 exec, 0xffff
            buffer_load_dwordx2 {vr(dst, 2)}, v{adr}, {sr(sWS, 4)}, s{sC} offen sc1
            s_mov_b64 exec, -1
            """)

        def utag_check(dst):
            a(f"""
            v_cmp_ne_u64 vcc, {sr(sTAG, 2)}, {vr(dst, 2)}
            s_nop 1
            s_and_b32 s{sU}, vcc_lo, 0xffff
            """)

        def offs_issue():
            a(f"""
            s_and_b32 s{sC}, s{sT}, 7
            s_lshl_b32 s{sC}, s{sC}, 8
            s_and_b32 s{sB}, s{sT}, 0xf8
            s_add_u32 s{sC}, s{sC}, s{sB}
            s_add_u32 s{sC}, s{sC}, {W_OFFS}
            buffer_load_dwordx2 {vr(OV, 2)}, v{o0}, {sr(sWS, 4)}, s{sC} offen sc1
            """)

        def offs_check():
            a(f"""
            v_xor_b32 v{o1}, s{sTLO}, v{OV}
            v_cmp_ne_u32 vcc, s{sTAG}, v{OV + 1}
            s_mov_b32 s{sB}, 0x100000
            v_cmp_le_u32 s[40:41], s{sB}, v{o1}
            s_nop 1
            s_or_b64 vcc, vcc, s[40:41]
            s_and_b64 vcc, vcc, {sr(sVAL, 2)}
            """)

        def parse():
            a(f"""
            v_cndmask_b32 v{OV}, 0, v{o1}, {sr(sVAL, 2)}
            v_and_b32 v{o1}, 3, v{TID}
            v_mul_u32_u24 v{o0}, {EC * 8}, v{RBA}
            v_and_b32 v{o2}, 0x3ff, v{OV}
            v_bfe_u32 v{o3}, v{OV}, 10, 10
            v_add_u32 v{o2}, v{o2}, v{o1}
            v_lshl_add_u32 v{o0}, v{o2}, 3, v{o0}
            v_add_u32 v{RBA}, {W_RECS}, v{o0}
            v_sub_u32 v{CQ}, v{o3}, v{o1}
            v_cmp_lt_u32 vcc, {4 * NPASS}, v{o3}
            """)
            lab = a.newlabel("nomax")
            a(f"""
            s_cbranch_vccz {lab}
            v_mov_b32 v{o2}, {MISC}
            s_mov_b64 exec, vcc
            ds_max_u32 v{o2}, v{o3}
            s_mov_b64 exec, -1
            s_waitcnt lgkmcnt(0)
            {lab}:
            """)
            self.rec_issue(SCRP)

        slot = [0, 1, 2, 3, 0, 1, 0, 3]
        nearly = self.opt("early", 2)
        edel = self.opt("edel", 0)
        issue_at = {0: 3}
        for c in range(4, 4 + nearly):
            issue_at[c - 3 + edel] = c

        def gstep(k, lgkm=False, post=None):
            self.vmwait({f"c{k}"})
            self.barrier(f"B{k}", lgkm=lgkm)
            if post:
                post()
            self.trreads(slot[k])
            c = issue_at.get(k)
            self.mfmas(AC2, k & 3, (lambda sp: self.dma_all(c, slot[c], sp)) if c else None)
            if k not in (3, 7):
                self.xreads((k + 1) & 3)

        def look():
            a(f"""
            v_mov_b32 v{o1}, {OOB}
            v_lshrrev_b32 v{RBA}, 2, v{TID}
            v_lshlrev_b32 v{o0}, 11, v{RBA}
            s_movk_i32 s{sA}, {NT}
            v_cmp_gt_u32 {sr(sVAL, 2)}, s{sA}, v{RBA}
            s_mov_b32 s{sP0}, 0
            s_mov_b32 s{sNP}, {NPASS}
            s_mov_b32 s{sMODE}, 0
            v_cndmask_b32 v{o0}, v{o1}, v{o0}, {sr(sVAL, 2)}
            """)
            offs_issue()
            utag_issue(UV, UV + 2)
            self.vm("LN", "offs", 2)

        def piece_tag():
            a(f"s_sub_u32 s{sA}, s{sW}, 1\ns_cmp_lt_u32 s{sA}, 2\ns_cbranch_scc0 L_notag\ns_waitcnt vmcnt(4)")
            self.tag_store(sUG, 116)
            a.label("L_notag")

        kis = self.opt("kis", 2)
        recpos = self.opt("recpos", 2)

        def try_records():
            self.vmwait({"offs"})
            utag_check(UV)
            offs_check()
            a(f"s_mov_b32 s{sE}, 0\ns_cbranch_scc1 L_late")
            parse()
            a(f"s_mov_b32 s{sE}, 1\ns_branch L_intime\nL_late:")
            offs_issue()
            offs_issue()
            a.label("L_intime")
            self.vm("LN", "rec", 2)

        for k in range(4):
            gstep(k, post=piece_tag if k == self.opt('kpt', 0) else None)
            if k == kis:
                look()
            if k == 2 and recpos == -1:
                try_records()
        for rb in range(3):
            for h in range(2):
                a(f"v_pk_mul_f32 {vr(AC2 + 4 * rb + 2 * h, 2)}, {vr(AC2 + 4 * rb + 2 * h, 2)}, {sr(sNL2E, 2)} op_sel_hi:[1,0]")
            a(f"v_cvt_pk_bf16_f32 v{AC2 + 4 * rb}, v{AC2 + 4 * rb}, v{AC2 + 4 * rb + 1}")
            a(f"v_cvt_pk_bf16_f32 v{AC2 + 4 * rb + 1}, v{AC2 + 4 * rb + 2}, v{AC2 + 4 * rb + 3}")
            a(f"ds_write_b64 v{STG}, {vr(AC2 + 4 * rb, 2)} offset:{rb * 8192}")
        if recpos == 0:
            try_records()
        a("s_setprio 3")
        self.barrier("PS")
        a(f"""
        ds_read_b128 {vr(AC2, 4)}, v{STR}
        ds_read_b128 {vr(AC2 + 4, 4)}, v{STR} offset:16384
        """)
        self.xreads(0)
        a(f"""
        s_mov_b32 s{sB}, {W_P}
        s_waitcnt lgkmcnt(3)
        buffer_store_dwordx4 {vr(AC2, 4)}, v{GO}, {sr(sWS, 4)}, s{sB} offen sc1
        s_waitcnt lgkmcnt(2)
        buffer_store_dwordx4 {vr(AC2 + 4, 4)}, v{GO2}, {sr(sWS, 4)}, s{sB} offen sc1
        s_setprio 0
        """)
        self.vm("LN", "p", 2)
        self.stamp("pst")
        if recpos == 2:
            try_records()
        self.stampval("E", sE)
        self.stampval("U", sU)

        def fb():
            a(f"s_lshl_b32 s{sB}, s{sT}, 5\ns_add_u32 s{sB}, s{sB}, {W_FB}")
            self.tag_store(sB, ACC + 8 if kfb == 6 else ACC)

        todo = [(c, m) for c in range(4 + nearly, 8) for m in range(2)]
        kfb = self.opt("kfb", 5)

        def issue(n):
            nonlocal todo
            for c, m in todo[:n]:
                self.dma_all(c, slot[c], m)
            todo = todo[n:]

        if nearly < 2:
            issue(self.opt("npre", 2))
        for k in (4, 5):
            if k == kfb:
                self.vmwait({"p"})
                self.stamp("ack")
            while todo and todo[0][0] <= k:
                issue(1)
            gstep(k, post=(lambda: self.wave0(fb)) if k == kfb else None)
            if k >= kfb and k == 4 and nearly < 2:
                issue(2)
        a(f"""
        s_lshl_b32 s{sUB}, s{sW}, 14
        s_add_u32 s{sUB}, s{sUB}, {W_UT}
        """)
        self.vmwait({"rec"})
        a(f"""
        s_cmp_eq_u32 s{sE}, 1
        s_cbranch_scc1 L_recs_ok
        s_mov_b32 s{sD}, 0
        L_offs_chk:
        """)
        offs_check()
        a(f"""
        s_cbranch_scc0 L_offs_ok
        s_add_u32 s{sD}, s{sD}, 1
        s_cmp_gt_u32 s{sD}, {POLL_LIMIT}
        s_cbranch_scc1 L_offs_ok
        """)
        offs_issue()
        a("s_waitcnt vmcnt(0)\ns_branch L_offs_chk\nL_offs_ok:")
        parse()
        a("s_waitcnt vmcnt(0)\nL_recs_ok:")
        self.stamp("rec")
        self.clean(SCRX)
        self.count(SCRX)
        issue(8)
        if kfb == 6:
            self.vmwait({"p"})
            self.stamp("ack")
        self.barrier("C1")
        if kfb == 6:
            self.wave0(fb)
        a(f"""
        v_lshlrev_b32 v{FO}, 4, v{LANE}
        s_cmp_eq_u32 s{sU}, 0
        s_cbranch_scc1 L_tags_ok
        s_mov_b32 s{sD}, 0
        L_tags:
        """)
        utag_issue(24, 26)
        a(f"s_add_u32 s{sD}, s{sD}, 1\ns_cmp_gt_u32 s{sD}, {POLL_LIMIT}\ns_waitcnt vmcnt(0)\ns_cbranch_scc1 L_tags_ok")
        utag_check(24)
        a("s_cbranch_scc1 L_tags\nL_tags_ok:")
        frag(0)
        frag(1)
        self.lists(SCRX, "L_gen1")
        a.label("L_gen1_back")
        self.side_fill(ACC + 10, ACC + 3)
        frag(2)
        frag(3)
        gstep(6, lgkm=True)
        a(f"s_mov_b32 s{sB}, {W3L}\nv_lshl_add_u32 v{ACC + 3}, v{LANE}, 1, s{sB}")
        for r in range(4):
            a(f"ds_read_u16_d16_hi v{W3 + r}, v{ACC + 3} offset:{128 * r}")
        frag(4)
        frag(5)
        self.setup(ACC + 4)
        frag(6)
        frag(7)
        a(f"""
        v_and_b32 v75, 15, v{LANE}
        v_cmp_gt_u32 {sr(sEX, 2)}, 8, v75
        v_mul_u32_u24 v74, {QS}, v75
        v_and_b32 v75, 48, v{LANE}
        s_lshl_b32 s{sB}, s{sW}, 6
        v_add3_u32 v74, v74, v75, s{sB}
        """)
        self.slot_consts()
        self.wave0(self.poll_issue)
        gstep(7)
        x3(0)
        x3(1)
        for rb in range(3):
            for h in range(2):
                a(f"v_pk_mul_f32 {vr(AC2 + 4 * rb + 2 * h, 2)}, {vr(AC2 + 4 * rb + 2 * h, 2)}, {sr(sNL2E, 2)} op_sel_hi:[1,0]")
            if rb == 2:
                a(f"s_mov_b64 exec, {sr(sEX, 2)}")
            a(f"ds_write_b128 v74, {vr(AC2 + 4 * rb, 4)} offset:{QB + rb * 16 * QS}")
            self.lq.append("q")
        a("s_mov_b64 exec, -1")
        self.stamp("pre")

        def pw():
            self.poll_wait()
            a(f"s_cmp_eq_u32 s{sT}, 0\ns_cbranch_scc0 L_noep\ns_mov_b32 s{sB}, {W_EPOCH}")
            self.tag_store(sB, POLLB)
            a.label("L_noep")
        self.wave0(pw)
        self.barrier("C2", lgkm=False)
        gat = [-1, -1, self.opt("g2", 3), self.opt("g3", 7)]
        for i in range(-1, 8):
            if i >= 0:
                consume(i)
            for k in range(4):
                if gat[k] == i:
                    a(f"v_mov_b32 v{IA}, v{IX0 + k}")
                    self.gather(k)
                    self.vm("LN", "g")
        a(f"v_mov_b32 v{IA}, v{IX0 + 4}")
        for r in range(4):
            a(f"v_mul_f32 v{W3 + r}, s{sNL2E}, v{W3 + r}")
        for h in range(6):
            a(f"v_pk_mul_f32 {vr(ACC + 2 * h, 2)}, {vr(ACC + 2 * h, 2)}, {sr(sNL2E, 2)} op_sel_hi:[1,0]")
        self.lane_consts()
        self.barrier("R")
        a(f"""
        s_cmp_eq_u32 s{sGEN}, 0
        s_cbranch_scc0 L_generic
        s_and_b32 s{sZ + 1}, s{sZ + 1}, 0xff
        s_or_b32 s{sA}, s{sZ}, s{sZ + 1}
        s_or_b32 s{sA}, s{sA}, s{sMODE}
        s_cbranch_scc1 L_clear
        L_r_done:
        s_cmp_gt_i32 s{sNE}, 0
        s_cbranch_scc0 L_empty
        """)
        if "noprio" not in self.opts:
            a("s_setprio 3")
        a(f"""
        ds_read_b64 {vr(EE[0], 2)}, v{EA}
        v_add_u32 v{QA}, s{sQ0}, v{L4}
        ds_read2st64_b32 {vr(Q, 2)}, v{QA} offset0:0 offset1:1
        ds_read2st64_b32 {vr(Q + 2, 2)}, v{QA} offset0:2 offset1:3
        v_xor_b32 v{AG}, s{sAG0}, v{L8}
        v_add_u32 v{CNA}, {CNTN}, v{L4}
        v_mov_b32 v{TZ}, 0
        ds_write_b32 v{CNA}, v{TZ}
        v_mov_b64 {vr(NN, 2)}, 0
        v_mov_b64 {vr(NN + 2, 2)}, 0
        v_mov_b32 v{DD}, 1.0
        v_mov_b32 v{DD + 1}, 1.0
        v_mov_b32 v{DD + 2}, 1.0
        v_mov_b32 v{DD + 3}, 1.0
        v_mov_b64 {vr(CK2, 2)}, 0
        v_mov_b32 v{CK1}, 0
        s_mov_b32 s{sI}, 0
        s_or_b32 s{sTM}, s{sMASK}, {0xff if "u2early" in self.opts else 0}
        s_mov_b32 s{sW11}, {0 if "u2early" in self.opts else -1}
        """)
        self.stamp("setup")
        a("s_waitcnt vmcnt(3)")
        self.stamp("row0")
        self.p_reads(0, 0)
        a("s_waitcnt lgkmcnt(0)")
        self.gather(0)
        if "u2early" in self.opts:
            self.u2_loads()
        a(f"""
        s_cmp_eq_u32 s{sMODE}, 0
        s_cbranch_scc0 L_loop_x
        """)
        self.main_loop(False, "L_main_done")
        a.reset_hist()
        a.label("L_main_done")
        a("s_setprio 0")
        self.stamp("loop")
        a(f"""
        v_add_f32 v{CK2}, v{CK2}, v{CK2 + 1}
        v_mov_b32 v{TM}, {BIG}
        v_cmp_u_f32 vcc, v{CK2}, v{CK2}
        v_cmp_nle_f32 s[40:41], v{CK1}, v{TM}
        s_nop 1
        s_or_b64 vcc, vcc, s[40:41]
        s_cbranch_scc0 L_after
        v_mov_b32 v{TM}, {MISC + 4}
        v_mov_b32 v{TM + 1}, 1
        ds_write_b32 v{TM}, v{TM + 1}
        L_after:
        v_xor_b32 v{STG2}, 0x80, v{STG}
        v_and_b32 v{TM}, 8, v{LANE}
        v_subrev_u32 v{STG2}, 4092, v{STG2}
        v_cmp_eq_u32 vcc, 0, v{TM}
        v_cndmask_b32 v{STG2}, v{STG2}, v{STG}, vcc
        s_waitcnt vmcnt(0)
        """)
        self.barrier("M")
        a(f"""
        v_mov_b32 v{TM}, {MISC + 4}
        ds_read_b32 v{TM + 1}, v{TM}
        """)
        if "oldfin" in self.opts:
            order = [(s_, rb) for s_ in range(8) for rb in range(3)]
        else:
            order = [(s_, rb) for rb in range(3) for s_ in range(8)]
        NB = 12

        def rd(n):
            s_, rb = order[n]
            a(f"ds_read_b128 {vr(XF + 4 * (n % NB), 4)}, v{XA + (s_ & 3)} offset:{rb * 8192 + (s_ >> 2) * 256}")

        for n in range(NB):
            rd(n)
        a(f"""
        s_cmp_eq_u32 s{sMODE}, 0
        s_cbranch_scc0 L_slow_next
        s_waitcnt lgkmcnt(12)
        v_readfirstlane_b32 s{sA}, v{TM + 1}
        s_nop 1
        s_cmp_eq_u32 s{sA}, 0
        s_cbranch_scc0 L_redo
        L_final:
        """)
        TE = 104

        def act(rb):
            ops = []
            for r in range(4):
                ops.append(f"v_exp_f32 v{TE + 4 * rb + r}, v{ACC + 4 * rb + r}")
            for r in range(4):
                ops.append(f"v_add_f32 v{TE + 4 * rb + r}, 1.0, v{TE + 4 * rb + r}")
            for r in range(4):
                ops.append(f"v_rcp_f32 v{TE + 4 * rb + r}, v{TE + 4 * rb + r}")
            for r in range(4):
                ops.append(f"v_mul_f32 v{ACC + 4 * rb + r}, s{sNLN2}, v{ACC + 4 * rb + r}")
            for r in range(4):
                ops.append(f"v_mul_f32 v{ACC + 4 * rb + r}, v{ACC + 4 * rb + r}, v{TE + 4 * rb + r}")
            ops.append(f"v_cvt_pk_bf16_f32 v{TE + 4 * rb}, v{ACC + 4 * rb}, v{ACC + 4 * rb + 1}")
            ops.append(f"v_cvt_pk_bf16_f32 v{TE + 4 * rb + 1}, v{ACC + 4 * rb + 2}, v{ACC + 4 * rb + 3}")
            ops.append(f"ds_write_b64 v{STG}, {vr(TE + 4 * rb, 2)} offset:{rb * 8192}")
            return ops

        pend = []
        lq = [f"r{n}" for n in range(NB)]
        for n in range(24):
            s_, rb = order[n]
            last = lq.index(f"r{n}")
            a(f"s_waitcnt lgkmcnt({len(lq) - 1 - last})")
            lq = lq[last + 1:]
            a(f"v_mfma_f32_16x16x32_bf16 {vr(ACC + 4 * rb, 4)}, {vr(UF + 4 * s_, 4)}, {vr(XF + 4 * (n % NB), 4)}, {vr(ACC + 4 * rb, 4)}")
            if n + NB < 24:
                rd(n + NB)
                lq.append(f"r{n + NB}")
            if "oldfin" not in self.opts:
                if n in (9, 17):
                    pend += act(n // 8 - 1)
                for op in pend[:4]:
                    a(op)
                    if op.startswith("ds_"):
                        lq.append("w")
                pend = pend[4:]
        for op in pend:
            a(op)
        if "oldfin" in self.opts or "nofold" in self.opts:
            for rb in ([2] if "oldfin" not in self.opts else [0, 1, 2]):
                for op in act(rb):
                    a(op)
        else:
            A2 = ACC + 8
            a(f"""
            v_mov_b32_dpp v{A2}, v{A2 + 2} row_shr:8 row_mask:0xf bank_mask:0xc
            v_mov_b32_dpp v{A2 + 1}, v{A2 + 3} row_shr:8 row_mask:0xf bank_mask:0xc
            v_exp_f32 v{TE + 8}, v{A2}
            v_exp_f32 v{TE + 9}, v{A2 + 1}
            v_pk_mul_f32 {vr(A2, 2)}, {vr(A2, 2)}, {sr(sNLN2, 2)} op_sel_hi:[1,0]
            v_pk_add_f32 {vr(TE + 8, 2)}, {vr(TE + 8, 2)}, 1.0 op_sel_hi:[1,0]
            v_rcp_f32 v{TE + 8}, v{TE + 8}
            v_rcp_f32 v{TE + 9}, v{TE + 9}
            v_pk_mul_f32 {vr(A2, 2)}, {vr(A2, 2)}, {vr(TE + 8, 2)}
            v_cvt_pk_bf16_f32 v{TE + 8}, v{A2}, v{A2 + 1}
            ds_write_b32 v{STG2}, v{TE + 8} offset:16384
            """)
        self.barrier("F")
        a(f"""
        ds_read_b128 {vr(PQ + 8, 4)}, v{STR}
        ds_read_b128 {vr(PQ + 12, 4)}, v{STR} offset:16384
        s_waitcnt lgkmcnt(1)
        buffer_store_dwordx4 {vr(PQ + 8, 4)}, v{GO}, {sr(sOUT, 4)}, 0 offen sc1
        s_waitcnt lgkmcnt(0)
        buffer_store_dwordx4 {vr(PQ + 12, 4)}, v{GO2}, {sr(sOUT, 4)}, 0 offen sc1
        """)
        if self.opt("pad", 0):
            a(f"""
            L_pad:
            s_memrealtime s[98:99]
            s_waitcnt lgkmcnt(0)
            s_sub_u32 s98, s98, s96
            s_cmp_lt_u32 s98, {self.opt("pad", 0)}
            s_cbranch_scc1 L_pad
            """)
        if self.stamps:
            a.label("L_diag_end")
            a("s_waitcnt vmcnt(0)")
            self.stamp("end")
            a(f"""
            s_lshl_b32 s{sA}, s{sT}, 4
            s_add_u32 s{sA}, s{sA}, s{sW}
            s_lshl_b32 s{sA}, s{sA}, 8
            s_add_u32 s{sA}, s{sA}, {W_STAMP}
            v_lshlrev_b32 v{TM}, 2, v{LANE}
            buffer_store_dword v{STAMPV}, v{TM}, {sr(sWS, 4)}, s{sA} offen
            """)
        a.label("L_end")
        a("s_endpgm")
        a.reset_hist()
        a(f"""
        L_gen1:
        s_mov_b32 s{sGEN}, 1
        s_mov_b32 s{sI}, 0
        s_mov_b32 s{sNE}, 0
        s_branch L_gen1_back
        L_clear:
        v_mov_b64 {vr(XF, 2)}, 0
        v_mov_b64 {vr(XF + 2, 2)}, 0
        v_add_u32 v{XF + 4}, {AB - PS}, v{STR}
        """)
        self.zero_agg(XF + 4, XF)
        a(f"""
        s_waitcnt lgkmcnt(0)
        s_barrier
        s_branch L_r_done
        L_generic:
        s_waitcnt vmcnt(0) lgkmcnt(0)
        s_barrier
        v_mov_b64 {vr(XF, 2)}, 0
        v_mov_b64 {vr(XF + 2, 2)}, 0
        v_add_u32 v{XF + 4}, {AB - PS}, v{STR}
        """)
        self.zero_agg(XF + 4, XF)
        a(f"""
        v_add_u32 v{CNA}, {CNTN}, v{L4}
        v_mov_b32 v{TZ}, 0
        ds_write_b32 v{CNA}, v{TZ}
        s_mov_b32 s{sNP}, 1
        s_mov_b32 s{sMODE}, 1
        s_waitcnt lgkmcnt(0)
        s_barrier
        L_round:
        """)
        self.slot_consts()
        self.lane_consts()
        self.rec_issue(SCR2)
        a("s_waitcnt vmcnt(0)")
        self.clean(SCR2)
        self.count(SCR2)
        a("s_waitcnt lgkmcnt(0)\ns_barrier")
        self.lists(SCR2, "L_generic")
        a("s_waitcnt lgkmcnt(0)\ns_barrier")
        self.setup(SCR2.tmp)
        a(f"""
        s_waitcnt lgkmcnt(0)
        """)
        for k in range(4):
            a(f"v_mov_b32 v{IA}, v{IX0 + k}")
            self.gather(k)
        a(f"""
        v_mov_b32 v{IA}, v{IX0 + 4}
        s_branch L_r_done
        L_empty:
        v_add_u32 v{CNA}, {CNTN}, v{L4}
        v_mov_b32 v{TZ}, 0
        ds_write_b32 v{CNA}, v{TZ}
        """)
        self.u2_loads()
        a(f"""
        s_branch L_after
        L_slow_next:
        s_cmp_eq_u32 s{sNP}, {NPASS}
        s_cbranch_scc1 L_final
        s_add_u32 s{sP0}, s{sP0}, 1
        s_max_u32 s{sA}, s{sMAXC}, {4 * NPASS}
        s_lshl_b32 s{sB}, s{sP0}, 2
        s_cmp_lt_u32 s{sB}, s{sA}
        s_cbranch_scc0 L_final
        s_waitcnt lgkmcnt(0)
        s_branch L_round
        L_redo:
        s_waitcnt lgkmcnt(0)
        s_barrier
        s_mov_b32 s{sMODE}, 1
        v_mov_b64 {vr(XF, 2)}, 0
        v_mov_b64 {vr(XF + 2, 2)}, 0
        v_add_u32 v{XF + 4}, {AB - PS}, v{STR}
        """)
        self.zero_agg(XF + 4, XF)
        a("s_branch L_round")
        self.main_loop(True, "L_after")
        a.label("L_code_end")

    def text(self):
        hdr = f"""; Fused MPNN edge-MLP kernel: P = x W1 published per tile, edges binned by destination tile,
; @launch grid=({NT},1,1) block=(1024,1,1) lds={LDS_TOTAL}
.amdgcn_target "amdgcn-amd-amdhsa--gfx950"
.text
.globl {NAME}_kernel
.p2align 8
.type {NAME}_kernel,@function
{NAME}_kernel:
"""
        ftr = f""".section .rodata,"a"
.p2align 6
.amdhsa_kernel {NAME}_kernel
  .amdhsa_next_free_vgpr 128
  .amdhsa_next_free_sgpr 102
  .amdhsa_accum_offset 128
  .amdhsa_group_segment_fixed_size 0
  .amdhsa_kernarg_size 72
  .amdhsa_user_sgpr_count 2
  .amdhsa_user_sgpr_kernarg_segment_ptr 1
  .amdhsa_system_sgpr_workgroup_id_x 1
.end_amdhsa_kernel
"""
        return hdr + self.a.text() + ftr


if __name__ == "__main__":
    out = [x for x in sys.argv[1:] if not x.startswith("--")]
    g = Gen(opts=[x[2:] for x in sys.argv[1:] if x.startswith("--")])
    g.build()
    txt = g.text()
    if g.stamps:
        txt = "; stamps: " + ",".join(g.names) + "\n" + txt
    open(out[0] if out else "cdna_kernels/%s.s" % NAME, "w").write(txt)
    print("nops inserted:", g.a.nops, "lines:", len(g.a.lines), "stamps:", g.nstamp)
```

```python
import sys
import struct
from asmlib import Asm

NAME = "gather_scatter__mpnn_edge_mlp__graph"
N, E, D = 10000, 160000, 256
T, NT, EC = 40, 250, 640

SLOT = (0, 32768, 65536, 98304)
XB = 131072
SIDE = 41984
PILA, PILB = 158880, 162112 - 9 * 192
HIST, BASE, SORT, USC = 151552, 152576, 153600, 158720
CNTN, MISC = 160768, 161024
IL, EL, DL = 151552, 153664, 157824
QB, QS = 0, 1040
AB = XB
RING = 65536
ROFF = (0, 1024, 32768, 33792)
PS = 65536
LDS_TOTAL = 163840

W_EPOCH, W_FA, W_FB = 0, 0x1000, 0x3000
W_OFFS, W_RECS, W_UT, W_P = 0x10000, 0x90000, 0x700000, 0x200000
W_UTAG = 0x6000
W_STAMP = 0x800000
WS_SIZE = 0xA00000
OOB = 0x80000000
POLL_LIMIT = 200000


def f2u(x):
    return struct.unpack("<I", struct.pack("<f", x))[0]


NLOG2E = f2u(-1.4426950408889634)
NLN2 = f2u(-0.6931471805599453)
BIG = f2u(2.0 ** 120)


def vr(a, n=1):
    return "v%d" % a if n == 1 else "v[%d:%d]" % (a, a + n - 1)


def sr(a, n=1):
    return "s%d" % a if n == 1 else "s[%d:%d]" % (a, a + n - 1)


TID, LANE = 0, 1
XA = 2
STG, GO, GO2, STR = 6, 7, 8, 9
RBA, CQ = 10, 11
ACC = 12
UF = 24
XR = 24
XF2, WF = 88, 96
AC2 = 104
XF = 56
WOFF, TR0, TR1 = 120, 121, 122
STAMPV = 123
W3 = 124
NPASS = 4
POLLB = 16
FO = 120
W3L = MISC + 64
XCNT, S1C, S2C, ACKC, BACK = MISC + 8, MISC + 12, MISC + 16, MISC + 20, MISC + 24


class Scratch:
    def __init__(self, rec, adr, rank, tmp):
        self.rec, self.adr, self.rank, self.tmp = rec, adr, rank, tmp


REC1 = [116, 118, 124, 126]
SCRP = Scratch(REC1, 12, None, 18)
SCRX = Scratch(REC1, ACC, ACC + 4, ACC + 8)
SCR2 = Scratch([24, 26, 28, 30], 40, 44, 48)
CNA = 109
PA = (56, 64)
EE = (72, 74)
IA, Q, QE, Y, TT, NN, DD = 76, 78, 86, 90, 94, 98, 102
CK2, CK1 = 106, 108
RG, IXA, EA, QA, AG, L4, L8, INFO, TM, IOF = 82, 116, 117, 112, 113, 83, 84, 118, 120, 85
TZ = 115
STG2 = 119
IX0 = 64

sT, sW = 2, 3
sX, sWM, sWU, sWS, sP, sOUT, sSRC, sDST, sEA = 4, 8, 12, 16, 20, 24, 28, 32, 36
sNL2E, sNLN2, sWK, sW1K = 58, 60, 62, 63
sMASK, sI, sNE, sREM, sTRIP, sSLOT = 64, 66, 67, 68, 69, 70
sM, sP0, sNP, sMAXC, sFIRST, sMODE = 74, 75, 76, 77, 78, 79
sVAL = 80
sA, sB, sC, sD = 88, 89, 90, 91
sEX = 42
sCO = 48
sHI, sTAG, sTLO, sGEN = 49, 52, 56, 57
sQ0, sAG0 = 44, 45
sUO, sUG, sUB, sE = 64, 65, 38, 39
sZ, sU, sRA, sRB = 6, 30, 29, 31
sTM, sHB, sW11 = 28, 69, 39
sHB2 = sHB


class Gen:
    def __init__(self, opts=()):
        self.opts = set(opts)
        self.a = Asm()
        self.stamps = "stamps" in self.opts
        self.nstamp = 0
        self.names = []
        self.lq = []
        self.q = {"L": [], "N": []}

    def opt(self, name, default):
        for o in self.opts:
            if o.startswith(name + "="):
                return int(o.split("=")[1])
        return default

    STAMP_REGS = [92, 94, 96, 98, 100, 50, 54, 4, 12, 14, 32, 34, 36]

    def stampval(self, name, sreg):
        sel = [o[3:].split("+") for o in self.opts if o.startswith("st=")]
        if not self.stamps or not sel or name not in sel[0]:
            return
        k = self.nstamp
        self.nstamp += 1
        self.names.append("=" + name)
        self.a(f"s_add_u32 s{self.STAMP_REGS[k]}, s{sreg}, 1")

    def stamp(self, name):
        if not self.stamps:
            return
        sel = [o[3:].split("+") for o in self.opts if o.startswith("st=")]
        if name not in ("start", "end") and sel and name not in sel[0]:
            return
        k = self.nstamp
        self.nstamp += 1
        self.names.append(name)
        if "dbg" in self.opts:
            self.a(f"s_memrealtime {sr(self.STAMP_REGS[k], 2)}")
            if name == "end":
                a = self.a
                a("s_load_dwordx2 s[40:41], s[0:1], 56\ns_waitcnt lgkmcnt(0)")
                a(f"s_not_b32 s44, s{self.STAMP_REGS[0]}\nv_writelane_b32 v{STAMPV}, s44, 15")
                for i in range(self.nstamp):
                    a(f"v_writelane_b32 v{STAMPV}, s{self.STAMP_REGS[i]}, {i}")
                a(f"""
                s_mov_b32 s42, 64
                s_mov_b32 s43, 0x20000
                v_lshlrev_b32 v{TM}, 2, v{LANE}
                s_cmp_eq_u32 s{sW}, 0
                s_cbranch_scc0 L_end
                buffer_atomic_umax v{STAMPV}, v{TM}, s[40:43], 0 offen
                s_branch L_end
                """)
            return
        if name == "start":
            self.a(f"v_writelane_b32 v{STAMPV}, s86, 0")
            return
        if name in ("start", "end"):
            self.a(f"""
            s_memrealtime s[40:41]
            s_waitcnt lgkmcnt(0)
            v_writelane_b32 v{STAMPV}, s40, {0 if name == "start" else 1}
            """)
        self.a(f"s_memtime {sr(self.STAMP_REGS[k], 2)}")
        if name == "end":
            self.a("s_waitcnt lgkmcnt(0)")
            for i in range(self.nstamp):
                self.a(f"v_writelane_b32 v{STAMPV}, s{self.STAMP_REGS[i]}, {32 + i}")

    def vm(self, roles, tag, n=1):
        for r in roles:
            self.q[r] += [tag] * n

    def vmwait(self, tags):
        need = {}
        for r, lst in self.q.items():
            last = max((i for i, t in enumerate(lst) if t in tags), default=None)
            if last is None:
                need[r] = None
            else:
                need[r] = len(lst) - 1 - last
                self.q[r] = lst[last + 1:]
        a = self.a
        if need["L"] == need["N"]:
            if need["L"] is not None:
                a(f"s_waitcnt vmcnt({need['L']})")
            return
        lab = a.newlabel("vw")
        if need["N"] is None:
            a(f"s_cmp_lt_u32 s{sW}, 8\ns_cbranch_scc1 {lab}\ns_waitcnt vmcnt({need['L']})\n{lab}:")
        elif need["L"] is None:
            a(f"s_cmp_ge_u32 s{sW}, 8\ns_cbranch_scc1 {lab}\ns_waitcnt vmcnt({need['N']})\n{lab}:")
        elif need["L"] > need["N"]:
            a(f"s_waitcnt vmcnt({need['L']})\ns_cmp_ge_u32 s{sW}, 8\ns_cbranch_scc1 {lab}\ns_waitcnt vmcnt({need['N']})\n{lab}:")
        else:
            a(f"s_waitcnt vmcnt({need['N']})\ns_cmp_lt_u32 s{sW}, 8\ns_cbranch_scc1 {lab}\ns_waitcnt vmcnt({need['L']})\n{lab}:")

    def lwait(self, tag):
        last = max(i for i, t in enumerate(self.lq) if t == tag)
        self.a(f"s_waitcnt lgkmcnt({len(self.lq) - 1 - last})")
        self.lq = self.lq[last + 1:]

    def barrier(self, name, lgkm=True):
        for o in self.opts:
            if o.startswith("padat=") and o.split("=")[1].split(":")[0] == name:
                self.a(f"""
                L_padat:
                s_memrealtime s[98:99]
                s_waitcnt lgkmcnt(0)
                s_sub_u32 s98, s98, s96
                s_cmp_lt_u32 s98, {o.split(":")[1]}
                s_cbranch_scc1 L_padat
                """)
        if lgkm:
            self.a("s_waitcnt lgkmcnt(0)")
        self.a("s_barrier")
        self.stamp(name)

    def dma_body(self, k, slot, role="L"):
        a = self.a
        if f"noc{k}" in self.opts:
            for m in range(4):
                a(f"s_mov_b32 m0, {USC + 1024}\ns_mov_b32 s{sB}, {OOB}\nbuffer_load_dwordx4 v{WOFF}, {sr(sWM, 4)}, s{sB} offen lds")
            self.vm(role, f"c{k}", 4)
            return
        srd, base = ((sWM, 0), (sWM, 131072))[k // 4]
        c = k % 4
        for m in range(4):
            a(f"""
            s_add_u32 m0, s{sW1K}, {SLOT[slot] + m * 8192}
            s_mov_b32 s{sB}, {base + c * 32768 + m * 8192}
            buffer_load_dwordx4 v{WOFF}, {sr(srd, 4)}, s{sB} offen lds
            """)
        self.vm(role, f"c{k}", 4)

    def dma_all(self, k, slot, m):
        a = self.a
        srd, base = ((sWM, 0), (sWM, 131072))[k // 4]
        a(f"""
        s_add_u32 m0, s{sWK}, {SLOT[slot] + m * 16384}
        s_add_u32 s{sB}, s{sHI}, {base + (k % 4) * 32768 + m * 16384}
        buffer_load_dwordx4 v{WOFF}, {sr(srd, 4)}, s{sB} offen lds
        """)
        self.vm("LN", f"c{k}")

    def spin(self, ctr, target, tmp, extra=None):
        a = self.a
        lab = a.newlabel("spin")
        a(f"v_mov_b32 v{tmp}, {ctr}")
        a.label(lab)
        a(f"ds_read_b32 v{tmp + 1}, v{tmp}")
        if extra:
            a(extra)
        a(f"""
        s_waitcnt lgkmcnt(0)
        v_readfirstlane_b32 s{sA}, v{tmp + 1}
        s_nop 0
        s_cmp_lt_u32 s{sA}, {target}
        s_cbranch_scc1 {lab}
        """)

    def xspin(self, shift):
        a = self.a
        lab = a.newlabel("xs")
        a(f"""
        {lab}:
        ds_read_b32 v{WF + 1}, v{WF}
        s_waitcnt lgkmcnt(0)
        v_readfirstlane_b32 s{sA}, v{WF + 1}
        s_nop 0
        s_bfe_u32 s{sA}, s{sA}, {shift | (4 << 16)}
        s_cmp_lt_u32 s{sA}, 3
        s_cbranch_scc0 {lab}_ok
        s_sleep 1
        s_branch {lab}
        {lab}_ok:
        """)

    def touch(self):
        a = self.a
        l2, done = a.newlabel("tw2"), a.newlabel("tdone")
        a(f"""
        s_lshr_b32 s{sA}, s{sT}, 3
        s_lshl_b32 s{sA}, s{sA}, 12
        s_mov_b32 m0, {USC + 1024}
        v_lshlrev_b32 v{W3 + 2}, 4, v{LANE}
        s_cmp_eq_u32 s{sW}, 5
        s_cbranch_scc0 {l2}
        """)
        for m in range(4):
            a(f"s_add_u32 s{sB}, s{sA}, {1024 * m}\nbuffer_load_dwordx4 v{W3 + 2}, {sr(sWU, 4)}, s{sB} offen lds")
        a(f"s_branch {done}\n{l2}:\ns_cmp_eq_u32 s{sW}, 6\ns_cbranch_scc0 {done}")
        for m in range(4):
            a(f"s_add_u32 s{sB}, s{sA}, {131072 + 1024 * m}\nbuffer_load_dwordx4 v{W3 + 2}, {sr(sWM, 4)}, s{sB} offen lds")
        a.label(done)

    def xpreload(self, ua):
        a = self.a
        a(f"v_mov_b32 v{WF}, {XCNT}")
        self.xspin(0)
        self.stamp("xa")
        for s in range(8):
            a(f"ds_read_b128 {vr(XR + 4 * s, 4)}, v{XA + (s & 3)} offset:{(s >> 2) * 256}")
        a(f"""
        s_cmp_lt_u32 s{sW}, 5
        s_cbranch_scc1 L_xp_go
        s_cmp_ge_u32 s{sW}, 8
        s_cbranch_scc1 L_xp_go
        v_mov_b32 v{W3 + 3}, 16
        s_mov_b64 exec, 1
        s_waitcnt vmcnt(0)
        ds_add_u32 v{WF}, v{W3 + 3}
        s_mov_b64 exec, -1
        """)
        a.label("L_xp_go")
        self.xspin(4)
        self.stamp("xb")
        for s in range(8):
            a(f"ds_read_b128 {vr(XR + 32 + 4 * s, 4)}, v{XA + (s & 3)} offset:{8192 + (s >> 2) * 256}")
        self.xreads(0)
        a(f"s_cmp_lt_u32 s{sW}, 8\ns_cbranch_scc1 L_xp_c2")
        self.dma_body(1, 1)
        a("s_branch L_xp_done\nL_xp_c2:")
        self.dma_body(2, 2, "N")
        a.label("L_xp_done")

    def xreads(self, c):
        a = self.a
        for sp in range(2):
            s = 2 * c + sp
            a(f"ds_read_b128 {vr(XF2 + 4 * sp, 4)}, v{XA + (s & 3)} offset:{2 * 8192 + (s >> 2) * 256}")

    def trreads(self, slot):
        a = self.a
        base = SLOT[slot]
        tr = TR0 if base < 65536 else TR1
        for sp in range(2):
            for p in range(2):
                a(f"ds_read_b64_tr_b16 {vr(WF + 4 * sp + 2 * p, 2)}, v{tr} offset:{(base & 65535) + 16384 * sp + 2048 * p}")

    def mfmas(self, acc, c, between=None):
        a = self.a
        for sp in range(2):
            if between:
                between(sp)
            a(f"s_waitcnt lgkmcnt({2 - 2 * sp})")
            for rb in range(3):
                cin = "0" if (c == 0 and sp == 0) else vr(acc + 4 * rb, 4)
                b = XR + 32 * rb + 4 * (2 * c + sp) if rb < 2 else XF2 + 4 * sp
                a(f"v_mfma_f32_16x16x32_bf16 {vr(acc + 4 * rb, 4)}, {vr(WF + 4 * sp, 4)}, {vr(b, 4)}, {cin}")

    def scan(self, v):
        a = self.a
        for sh in (1, 2, 4, 8):
            a(f"v_add_u32_dpp v{v}, v{v}, v{v} row_shr:{sh} row_mask:0xf bank_mask:0xf bound_ctrl:0")
        a(f"v_add_u32_dpp v{v}, v{v}, v{v} row_bcast:15 row_mask:0xa bank_mask:0xf")
        a(f"v_add_u32_dpp v{v}, v{v}, v{v} row_bcast:31 row_mask:0xc bank_mask:0xf")

    def poll_issue(self):
        a = self.a
        a(f"v_lshlrev_b32 v14, 5, v{LANE}\ns_mov_b32 s{sB}, {W_FB}\ns_mov_b32 s{sD}, {W_FB + 4096}")
        for k in range(4):
            a(f"buffer_load_dwordx2 {vr(POLLB + 2 * k, 2)}, v14, {sr(sWS, 4)}, s{sB if k < 2 else sD} offen offset:{2048 * (k & 1)} sc1")

    def poll_wait(self):
        a = self.a
        lp, chk, done = a.newlabel("poll"), a.newlabel("pchk"), a.newlabel("pdone")
        a(f"s_mov_b32 s{sC}, 0\ns_branch {chk}")
        a.label(lp)
        self.poll_issue()
        a.label(chk)
        m58 = (1 << (NT - 192)) - 1
        a(f"""
        s_waitcnt vmcnt(0)
        v_cmp_ne_u64 s[40:41], {sr(sTAG, 2)}, {vr(POLLB, 2)}
        v_cmp_ne_u64 vcc, {sr(sTAG, 2)}, {vr(POLLB + 2, 2)}
        v_cmp_ne_u64 s[88:89], {sr(sTAG, 2)}, {vr(POLLB + 4, 2)}
        v_cmp_ne_u64 s[46:47], {sr(sTAG, 2)}, {vr(POLLB + 6, 2)}
        s_nop 1
        s_and_b32 s47, s47, {m58 >> 32}
        s_or_b64 s[40:41], s[40:41], vcc
        s_or_b64 s[46:47], s[88:89], s[46:47]
        s_or_b64 s[40:41], s[40:41], s[46:47]
        s_cbranch_scc0 {done}
        s_add_u32 s{sC}, s{sC}, 1
        s_cmp_lt_u32 s{sC}, {POLL_LIMIT}
        s_cbranch_scc1 {lp}
        """)
        a.label(done)

    def tag_store(self, soff, tmp):
        a = self.a
        a(f"""
        v_mov_b32 v{tmp}, s{sTAG}
        v_mov_b32 v{tmp + 1}, s{sTAG + 1}
        v_lshlrev_b32 v{tmp + 2}, 24, v{LANE}
        buffer_store_dwordx2 {vr(tmp, 2)}, v{tmp + 2}, {sr(sWS, 4)}, s{soff} offen sc1
        """)

    def wave0(self, fn):
        a = self.a
        lab = a.newlabel("w0")
        a(f"s_cmp_eq_u32 s{sW}, 0\ns_cbranch_scc0 {lab}")
        fn()
        a.label(lab)

    def edge(self, pb, which, exact, first):
        a = self.a
        if "noedge" in self.opts:
            return
        p = PA[pb] + 4 * which
        sel = "op_sel:[1,0,0] op_sel_hi:[1,1,1]" if which else "op_sel:[0,0,0] op_sel_hi:[0,1,1]"
        y = NN if (first and not exact) else Y
        for h in range(2):
            a(f"v_pk_fma_f32 {vr(QE + 2 * h, 2)}, {vr(EE[pb], 2)}, {vr(W3 + 2 * h, 2)}, {vr(Q + 2 * h, 2)} {sel}")
        for h in range(2):
            a(f"v_pk_add_f32 {vr(y + 2 * h, 2)}, {vr(p + 2 * h, 2)}, {vr(QE + 2 * h, 2)}")
        for r in range(4):
            a(f"v_exp_f32 v{TT + r}, v{y + r}")
        if exact:
            for h in range(2):
                a(f"v_pk_add_f32 {vr(TT + 2 * h, 2)}, {vr(TT + 2 * h, 2)}, 1.0 op_sel_hi:[1,0]")
            for r in range(4):
                a(f"v_rcp_f32 v{TT + r}, v{TT + r}")
            for h in range(2):
                if first:
                    a(f"v_pk_mul_f32 {vr(NN + 2 * h, 2)}, {vr(Y + 2 * h, 2)}, {vr(TT + 2 * h, 2)}")
                else:
                    a(f"v_pk_fma_f32 {vr(NN + 2 * h, 2)}, {vr(Y + 2 * h, 2)}, {vr(TT + 2 * h, 2)}, {vr(NN + 2 * h, 2)}")
        elif first:
            for h in range(2):
                a(f"v_pk_add_f32 {vr(DD + 2 * h, 2)}, {vr(TT + 2 * h, 2)}, 1.0 op_sel_hi:[1,0]")
        else:
            for h in range(2):
                a(f"v_pk_fma_f32 {vr(NN + 2 * h, 2)}, {vr(NN + 2 * h, 2)}, {vr(TT + 2 * h, 2)}, {vr(NN + 2 * h, 2)}")
            for h in range(2):
                a(f"v_pk_fma_f32 {vr(NN + 2 * h, 2)}, {vr(Y + 2 * h, 2)}, {vr(DD + 2 * h, 2)}, {vr(NN + 2 * h, 2)}")
            for h in range(2):
                a(f"v_pk_fma_f32 {vr(DD + 2 * h, 2)}, {vr(DD + 2 * h, 2)}, {vr(TT + 2 * h, 2)}, {vr(DD + 2 * h, 2)}")

    def pair(self, pb):
        a = self.a
        p = PA[pb]
        lo, hi = "op_sel:[0,0,0] op_sel_hi:[0,1,1]", "op_sel:[1,0,0] op_sel_hi:[1,1,1]"

        def qe(dst, h, sel):
            return f"v_pk_fma_f32 {vr(dst + 2 * h, 2)}, {vr(EE[pb], 2)}, {vr(W3 + 2 * h, 2)}, {vr(Q + 2 * h, 2)} {sel}"

        def nt(t, h):
            return f"v_pk_fma_f32 {vr(NN + 2 * h, 2)}, {vr(NN + 2 * h, 2)}, {vr(t + 2 * h, 2)}, {vr(NN + 2 * h, 2)}"

        def yd(y, h):
            return f"v_pk_fma_f32 {vr(NN + 2 * h, 2)}, {vr(y + 2 * h, 2)}, {vr(DD + 2 * h, 2)}, {vr(NN + 2 * h, 2)}"

        def dt(t, h):
            return f"v_pk_fma_f32 {vr(DD + 2 * h, 2)}, {vr(DD + 2 * h, 2)}, {vr(t + 2 * h, 2)}, {vr(DD + 2 * h, 2)}"

        seq = [qe(Y, 0, lo), qe(Y, 1, lo), qe(QE, 0, hi), qe(QE, 1, hi)]
        seq += [f"v_pk_add_f32 {vr(Y + 2 * h, 2)}, {vr(p + 2 * h, 2)}, {vr(Y + 2 * h, 2)}" for h in range(2)]
        seq += [f"v_pk_add_f32 {vr(QE + 2 * h, 2)}, {vr(p + 4 + 2 * h, 2)}, {vr(QE + 2 * h, 2)}" for h in range(2)]
        seq += [f"v_exp_f32 v{TT + r}, v{Y + r}" for r in range(4)]
        seq += [f"v_exp_f32 v{p + r}, v{QE + r}" for r in range(2)]
        seq += [nt(TT, 0), nt(TT, 1)]
        seq += [f"v_exp_f32 v{p + 2}, v{QE + 2}", yd(Y, 0), yd(Y, 1), f"v_exp_f32 v{p + 3}, v{QE + 3}", dt(TT, 0), dt(TT, 1)]
        seq += [nt(p, 0), nt(p, 1), yd(QE, 0), yd(QE, 1), dt(p, 0), dt(p, 1)]
        for x in seq:
            a(x)

    def flush(self, exact, mid=None, final=False):
        a = self.a
        if exact:
            if mid:
                mid()
            a(f"v_cvt_pk_bf16_f32 v{TT}, v{NN}, v{NN + 1}")
            a(f"v_cvt_pk_bf16_f32 v{TT + 1}, v{NN + 2}, v{NN + 3}")
            a(f"ds_pk_add_bf16 v{AG}, v{TT}")
            a(f"ds_pk_add_bf16 v{AG}, v{TT + 1} offset:4")
            return 2
        for r in range(4):
            a(f"v_rcp_f32 v{TT + r}, v{DD + r}")
        if mid:
            mid()
        a(f"v_max3_f32 v{CK1}, v{CK1}, v{DD}, v{DD + 1}")
        a(f"v_max3_f32 v{CK1}, v{CK1}, v{DD + 2}, v{DD + 3}")
        for h in range(2):
            a(f"v_pk_mul_f32 {vr(Y + 2 * h, 2)}, {vr(NN + 2 * h, 2)}, {vr(TT + 2 * h, 2)}")
        for h in range(2):
            a(f"v_pk_fma_f32 {vr(CK2, 2)}, {vr(Y + 2 * h, 2)}, 0, {vr(CK2, 2)} op_sel_hi:[1,0,1]")
        if final:
            a(f"""
            s_cmp_eq_u32 s{sCO}, 0
            s_cbranch_scc1 L_noside
            s_lshl_b32 s{sA}, s{sW}, 9
            s_add_u32 s{sA}, s{sA}, {(SIDE + 512) ^ AB}
            v_xor_b32 v{QA}, s{sA}, v{L8}
            s_mov_b32 s{sC}, 0
            L_side:
            ds_read_b64 {vr(TT, 2)}, v{QA}
            s_add_u32 s{sC}, s{sC}, 1
            s_waitcnt lgkmcnt(0)
            v_cmp_eq_u64 vcc, -1, {vr(TT, 2)}
            s_cmp_gt_u32 s{sC}, 4000
            s_cbranch_scc1 L_side_go
            s_cbranch_vccnz L_side
            L_side_go:
            v_lshlrev_b32 v{QE}, 16, v{TT}
            v_and_b32 v{QE + 1}, 0xffff0000, v{TT}
            v_lshlrev_b32 v{QE + 2}, 16, v{TT + 1}
            v_and_b32 v{QE + 3}, 0xffff0000, v{TT + 1}
            v_pk_add_f32 {vr(Y, 2)}, {vr(Y, 2)}, {vr(QE, 2)}
            v_pk_add_f32 {vr(Y + 2, 2)}, {vr(Y + 2, 2)}, {vr(QE + 2, 2)}
            L_noside:
            """)
        a(f"v_cvt_pk_bf16_f32 v{TT}, v{Y}, v{Y + 1}")
        a(f"v_cvt_pk_bf16_f32 v{TT + 1}, v{Y + 2}, v{Y + 3}")
        a(f"ds_write_b64 v{AG}, {vr(TT, 2)}")
        return 1

    def p_reads(self, pb, slot):
        a = self.a
        for row in range(2):
            for r in range(4):
                a(f"ds_read_u16_d16_hi v{PA[pb] + 4 * row + r}, v{RG} offset:{ROFF[slot] + row * 512 + r * 128}")

    def gather(self, slot):
        if "nodma" in self.opts:
            return
        self.a(f"""
        s_mov_b32 m0, s{sSLOT + slot}
        buffer_load_dwordx4 {vr(IA, 2)}, {sr(sP, 4)}, 0 idxen offen sc1 lds
        """)

    def reads(self, jj):
        a = self.a
        pb = jj & 1
        self.p_reads(pb ^ 1, (jj + 1) & 3)
        a(f"ds_read_b64 {vr(EE[pb ^ 1], 2)}, v{EA} offset:{8 * (jj + 1)}")
        a(f"ds_read_u16 v{IA}, v{IXA} offset:{4 * (jj + 5)}")

    def main_loop(self, exact, exit_label):
        a = self.a
        tag = "x" if exact else "f"
        loop, fin = f"L_loop_{tag}", f"L_fin_{tag}"
        prio = not exact and "noprio" not in self.opts
        a.label(loop)
        for jj in range(4):
            a(f"s_and_b32 s{sA}, s{sTM}, {3 << (2 * jj)}\ns_cbranch_scc1 L_blk_{tag}_{jj}\ns_waitcnt vmcnt(3)")
            self.reads(jj)
            if exact or "noil" in self.opts or "noedge" in self.opts:
                self.edge(jj & 1, 0, exact, False)
                self.edge(jj & 1, 1, exact, False)
            else:
                self.pair(jj & 1)
            a.label(f"L_back_{tag}_{jj}")
            a(f"s_mov_b32 m0, s{sSLOT + ((jj + 1) & 3)}\ns_waitcnt lgkmcnt(0)")
            if "nodma" not in self.opts:
                a(f"buffer_load_dwordx4 {vr(IA, 2)}, {sr(sP, 4)}, 0 idxen offen sc1 lds")
        a(f"""
        v_add_u32 v{IXA}, 16, v{IXA}
        v_add_u32 v{EA}, 32, v{EA}
        s_lshr_b64 {sr(sMASK, 2)}, {sr(sMASK, 2)}, 8
        s_or_b32 s{sMASK + 1}, s{sMASK + 1}, s{sHB}
        s_mov_b32 s{sHB}, 0
        s_mov_b32 s{sTM}, s{sMASK}
        s_add_u32 s{sI}, s{sI}, 8
        """)
        t2, t1, t0 = self.opt("p2", 12), self.opt("p1", 8), self.opt("p0", 4)
        tu = self.opt("tu", 12)
        a(f"s_sub_u32 s{sREM}, s{sREM}, 4\ns_cmp_gt_i32 s{sREM}, {t2}\ns_cbranch_scc1 {loop}")
        if "u2early" not in self.opts and "nou2" not in self.opts:
            a(f"""
            s_cmp_gt_i32 s{sREM}, {tu}
            s_cbranch_scc1 L_nou2_{tag}
            s_cmp_eq_u32 s{sW11}, -1
            s_cbranch_scc0 L_nou2_{tag}
            """)
            self.u2_loads()
            a(f"s_mov_b32 s{sW11}, s{sI}\ns_or_b32 s{sTM}, s{sTM}, 0xff\nL_nou2_{tag}:")
        if prio:
            a(f"""
            s_setprio 2
            s_cmp_gt_i32 s{sREM}, {t1}
            s_cbranch_scc1 {loop}
            s_setprio 1
            s_cmp_gt_i32 s{sREM}, {t0}
            s_cbranch_scc1 {loop}
            s_setprio 0
            """)
        a(f"s_branch {loop}")
        for jj in range(4):
            pb = jj & 1
            b = f"L_blk_{tag}_{jj}"
            a.reset_hist()
            a(f"""
            {b}:
            s_waitcnt vmcnt(11)
            s_cmp_eq_u32 s{sI}, s{sW11}
            s_cbranch_scc1 {b}_w
            s_waitcnt vmcnt(3)
            {b}_w:
            """)
            self.reads(jj)
            a(f"s_bitcmp1_b32 s{sMASK}, {2 * jj}\ns_cbranch_scc1 {b}_f0")
            self.edge(pb, 0, exact, False)
            a(f"{b}_a:\ns_bitcmp1_b32 s{sMASK}, {2 * jj + 1}\ns_cbranch_scc1 {b}_f1")
            self.edge(pb, 1, exact, False)
            a(f"s_branch L_back_{tag}_{jj}")
            for which in range(2):
                a.reset_hist()
                a(f"""
                {b}_f{which}:
                s_add_u32 s{sA}, s{sI}, {2 * jj + which}
                s_cmp_eq_u32 s{sA}, s{sNE}
                s_cbranch_scc1 {fin}
                v_readlane_b32 s{sB}, v{INFO}, s{sA}
                """)

                def mid():
                    a(f"""
                    s_and_b32 s{sC}, s{sB}, 0xffff
                    s_lshr_b32 s{sD}, s{sB}, 16
                    v_add_u32 v{QA}, s{sC}, v{L4}
                    ds_read2st64_b32 {vr(Q, 2)}, v{QA} offset0:0 offset1:1
                    ds_read2st64_b32 {vr(Q + 2, 2)}, v{QA} offset0:2 offset1:3
                    """)

                n = self.flush(exact, mid)
                a(f"""
                v_xor_b32 v{AG}, s{sD}, v{L8}
                s_waitcnt lgkmcnt({n})
                """)
                self.edge(pb, which, exact, True)
                a(f"s_branch {b + '_a' if which == 0 else f'L_back_{tag}_{jj}'}")
        a.reset_hist()
        a.label(fin)
        self.flush(exact, final=True)
        if "u2early" not in self.opts:
            a(f"s_cmp_eq_u32 s{sW11}, -1\ns_cbranch_scc0 {exit_label}")
            self.u2_loads()
        a(f"s_branch {exit_label}")

    def zero_agg(self, addr, zq):
        a = self.a
        lab = a.newlabel("zagg")
        a(f"""
        ds_write_b128 v{addr}, {vr(zq, 4)}
        s_cmp_lt_u32 s{sW}, 4
        s_cbranch_scc0 {lab}
        ds_write_b128 v{addr}, {vr(zq, 4)} offset:16384
        {lab}:
        """)

    def u2_loads(self):
        a = self.a
        a(f"""
        s_lshl_b32 s{sA}, s{sW}, 14
        s_add_u32 s{sA}, s{sA}, {W_UT + 8192}
        s_add_u32 s{sB}, s{sA}, 4096
        v_lshlrev_b32 v{TM}, 4, v{LANE}
        """)
        for s in range(8):
            so = sA if s < 4 else sB
            a(f"buffer_load_dwordx4 {vr(UF + 4 * s, 4)}, v{TM}, {sr(sWS, 4)}, s{so} offen offset:{(s & 3) * 1024} sc1")

    def hi_passes(self, fn):
        a = self.a
        fn(0)
        fn(1)
        lab = a.newlabel("hp")
        a(f"s_cmp_eq_u64 {sr(sVAL + 4, 2)}, 0\ns_cbranch_scc1 {lab}")
        fn(2)
        fn(3)
        a.label(lab)

    def rec_issue(self, S):
        a = self.a
        a(f"""
        s_lshl_b32 s{sA}, s{sP0}, 2
        s_lshl_b32 s{sB}, s{sP0}, 5
        v_mov_b32 v{S.tmp}, {OOB}
        s_add_u32 s{sC}, s{sA}, 4
        s_add_u32 s{sD}, s{sA}, 8
        v_cmp_lt_i32 {sr(sVAL, 2)}, s{sA}, v{CQ}
        s_add_u32 s{sA}, s{sA}, 12
        v_cmp_lt_i32 {sr(sVAL + 2, 2)}, s{sC}, v{CQ}
        v_cmp_lt_i32 {sr(sVAL + 4, 2)}, s{sD}, v{CQ}
        v_cmp_lt_i32 {sr(sVAL + 6, 2)}, s{sA}, v{CQ}
        s_cmp_gt_u32 s{sNP}, 1
        s_cselect_b64 {sr(sVAL + 2, 2)}, {sr(sVAL + 2, 2)}, 0
        s_cselect_b64 {sr(sVAL + 4, 2)}, {sr(sVAL + 4, 2)}, 0
        s_cselect_b64 {sr(sVAL + 6, 2)}, {sr(sVAL + 6, 2)}, 0
        """)
        lab = a.newlabel("hp")
        a(f"s_cmp_eq_u64 {sr(sVAL + 4, 2)}, 0\ns_cbranch_scc1 {lab}")
        for k in (2, 3, 0, 1):
            if k == 0:
                a.label(lab)
            a(f"""
            v_cndmask_b32 v{S.adr + k}, v{S.tmp}, v{RBA}, {sr(sVAL + 2 * k, 2)}
            buffer_load_dwordx2 {vr(S.rec[k], 2)}, v{S.adr + k}, {sr(sWS, 4)}, s{sB} offen offset:{32 * k} sc1
            """)

    def count(self, S):
        a = self.a
        a(f"v_mov_b32 v{S.tmp}, 1\ns_mov_b32 s{sA}, {CNTN}")

        def one(k):
            a(f"""
            s_mov_b64 exec, {sr(sVAL + 2 * k, 2)}
            v_bfe_u32 v{S.adr + k}, v{S.rec[k]}, 16, 6
            v_lshl_add_u32 v{S.adr + k}, v{S.adr + k}, 2, s{sA}
            ds_add_rtn_u32 v{S.rank + k}, v{S.adr + k}, v{S.tmp}
            """)
        self.hi_passes(one)
        a("s_mov_b64 exec, -1")

    def lists(self, S, generic_label):
        a = self.a
        sc = S.tmp
        done = a.newlabel("lists")
        a(f"""
        s_mov_b32 s{sA}, {CNTN}
        v_lshl_add_u32 v{sc + 3}, v{LANE}, 2, s{sA}
        v_mov_b32 v{sc + 2}, {MISC}
        ds_read_b32 v{sc}, v{sc + 3}
        ds_read_b32 v{sc + 2}, v{sc + 2}
        s_waitcnt lgkmcnt(0)
        v_mov_b32 v{sc + 1}, v{sc}
        v_readfirstlane_b32 s{sMAXC}, v{sc + 2}
        v_cmp_eq_u32 {sr(sZ, 2)}, 0, v{sc}
        v_subrev_u32 v{sc}, {DL}, v{sc}
        """)
        self.scan(sc + 1)
        a(f"""
        v_readlane_b32 s{sM}, v{sc + 1}, 63
        v_sub_u32 v{sc + 1}, v{sc + 1}, v{sc}
        s_cmp_eq_u32 s{sNP}, {NPASS}
        s_cbranch_scc0 {done}
        s_cmp_gt_u32 s{sM}, 1024
        s_cbranch_scc1 {generic_label}
        s_cmp_eq_u32 s{sMAXC}, 0
        s_cbranch_scc0 {generic_label}
        s_cmp_lt_u32 s{sM}, 64
        s_cbranch_scc0 {done}
        s_mov_b32 s{sMODE}, 1
        {done}:
        """)
        self.hi_passes(lambda k: a(f"ds_bpermute_b32 v{S.adr + k}, v{S.adr + k}, v{sc + 1}"))
        a(f"""
        s_add_u32 s{sA}, s{sM}, 1
        s_lshr_b32 s{sA}, s{sA}, 1
        s_mul_i32 s{sB}, s{sA}, s{sW}
        s_add_u32 s{sC}, s{sB}, s{sA}
        s_lshr_b32 s{sI}, s{sB}, 4
        s_lshr_b32 s{sC}, s{sC}, 4
        s_sub_u32 s{sREM}, s{sC}, s{sI}
        s_lshl_b32 s{sC}, s{sC}, 1
        s_cmp_lt_u32 s{sC}, s{sM}
        s_cselect_b32 s{sCO}, 1, 0
        s_min_u32 s{sC}, s{sC}, s{sM}
        s_lshl_b32 s{sI}, s{sI}, 1
        s_sub_u32 s{sNE}, s{sC}, s{sI}
        s_mov_b32 s{sA}, {(IL - 2 * DL) & 0xffffffff}
        s_mov_b32 s{sB}, {(EL - 4 * DL) & 0xffffffff}
        s_waitcnt lgkmcnt(0)
        """)

        def one(k):
            a(f"""
            s_mov_b64 exec, {sr(sVAL + 2 * k, 2)}
            v_add_u32 v{S.rank + k}, v{S.rank + k}, v{S.adr + k}
            v_lshl_add_u32 v{S.adr + k}, v{S.rank + k}, 1, s{sA}
            v_lshl_add_u32 v{sc + (k & 1)}, v{S.rank + k}, 2, s{sB}
            ds_write_b8_d16_hi v{S.rank + k}, v{S.rec[k]}
            ds_write_b16 v{S.adr + k}, v{S.rec[k]}
            ds_write_b32 v{sc + (k & 1)}, v{S.rec[k] + 1}
            """)
        self.hi_passes(one)
        a("s_mov_b64 exec, -1")

    def setup(self, tm):
        a = self.a
        a(f"""
        s_add_u32 s{sD}, s{sI}, {DL - 1}
        v_add_u32 v{INFO}, s{sD}, v{LANE}
        s_lshl_b32 s{sA}, s{sI}, 1
        s_add_u32 s{sA}, s{sA}, {IL}
        v_lshl_add_u32 v{EA}, v{LANE}, 1, s{sA}
        ds_read_u16 v{tm + 3}, v{EA}
        ds_read_u8 v{tm}, v{INFO}
        ds_read_u8 v{tm + 2}, v{INFO} offset:1
        ds_read_u8 v{tm + 1}, v{INFO} offset:2
        s_cmp_lt_u32 s{sW}, 9
        s_mov_b32 s{sC}, {PILB}
        s_cselect_b32 s{sC}, {PILA}, s{sC}
        s_mul_i32 s{sB}, s{sW}, 192
        s_add_u32 s{sB}, s{sB}, s{sC}
        v_lshl_add_u32 v{INFO}, v{LANE}, 1, s{sB}
        v_mov_b32 v{tm + 4}, 0xffff
        v_cmp_gt_i32 vcc, s{sNE}, v{LANE}
        s_mov_b32 exec_hi, 0
        ds_write_b16 v{INFO}, v{tm + 4} offset:128
        s_mov_b64 exec, -1
        v_lshrrev_b32 v{IXA}, 5, v{LANE}
        v_lshl_add_u32 v{IXA}, v{IXA}, 1, s{sB}
        s_lshl_b32 s{sA}, s{sI}, 2
        s_add_u32 s{sA}, s{sA}, {EL}
        v_mov_b32 v{EA}, s{sA}
        s_waitcnt lgkmcnt(4)
        v_cndmask_b32 v{tm + 3}, v{tm + 4}, v{tm + 3}, vcc
        ds_write_b16 v{INFO}, v{tm + 3}
        """)
        for k in range(5):
            a(f"ds_read_u16 v{IX0 + k}, v{IXA} offset:{4 * k}")
        a(f"""
        s_waitcnt lgkmcnt(7)
        v_cmp_ne_u32 {sr(sMASK, 2)}, v{tm + 2}, v{tm + 1}
        v_cmp_eq_u32 vcc, v{tm + 2}, v{tm}
        v_mul_u32_u24 v{INFO}, {QS}, v{tm + 2}
        v_and_b32 v{tm + 1}, 15, v{tm + 2}
        v_lshlrev_b32 v{tm + 1}, 4, v{tm + 1}
        v_lshl_add_u32 v{tm + 1}, v{tm + 2}, 9, v{tm + 1}
        v_lshl_or_b32 v{INFO}, v{tm + 1}, 16, v{INFO}
        s_sub_u32 s{sA}, s{sNE}, 1
        s_bitcmp0_b64 {sr(sMASK, 2)}, s{sA}
        s_cselect_b32 s{sCO}, s{sCO}, 0
        s_bitset1_b64 {sr(sMASK, 2)}, s{sA}
        v_readfirstlane_b32 s{sB}, v{INFO}
        ; end-of-segment bits become start-of-segment bits; bit 64 is carried separately
        s_lshr_b32 s{sHB2}, s{sMASK + 1}, 31
        s_lshl_b32 s{sHB2}, s{sHB2}, 24
        s_lshl_b64 {sr(sMASK, 2)}, {sr(sMASK, 2)}, 1
        s_and_b32 s{sC}, vcc_lo, 1
        s_cmp_eq_u32 s{sI}, 0
        s_cselect_b32 s{sC}, 0, s{sC}
        s_cmp_eq_u32 s{sMODE}, 0
        s_cselect_b32 s{sC}, s{sC}, 0
        s_lshl_b32 s{sA}, s{sW}, 9
        s_add_u32 s{sA}, s{sA}, {SIDE ^ AB}
        s_lshr_b32 s{sD}, s{sB}, 16
        s_cmp_eq_u32 s{sC}, 0
        s_cselect_b32 s{sAG0}, s{sD}, s{sA}
        s_and_b32 s{sQ0}, s{sB}, 0xffff
        """)

    def slot_consts(self):
        self.a(f"""
        s_lshl_b32 s{sA}, s{sW}, 11
        s_add_u32 s{sSLOT}, s{sA}, {RING + ROFF[0]}
        s_add_u32 s{sSLOT + 1}, s{sA}, {RING + ROFF[1]}
        s_add_u32 s{sSLOT + 2}, s{sA}, {RING + ROFF[2]}
        s_add_u32 s{sSLOT + 3}, s{sA}, {RING + ROFF[3]}
        v_and_b32 v{IA + 1}, 31, v{LANE}
        v_lshlrev_b32 v{IA + 1}, 4, v{IA + 1}
        """)

    def lane_consts(self):
        self.a(f"""
        v_lshl_add_u32 v{RG}, v{LANE}, 1, s{sSLOT}
        v_lshlrev_b32 v{L4}, 2, v{LANE}
        v_lshlrev_b32 v{L8}, 3, v{LANE}
        v_or_b32 v{L8}, {AB}, v{L8}
        """)

    def side_fill(self, tmp, adr):
        self.a(f"""
        v_mov_b64 {vr(tmp, 2)}, -1
        s_lshl_b32 s{sA}, s{sW}, 9
        s_add_u32 s{sA}, s{sA}, {SIDE}
        v_lshl_add_u32 v{adr}, v{LANE}, 3, s{sA}
        ds_write_b64 v{adr}, {vr(tmp, 2)}
        """)

    def tag_calc(self):
        self.a(f"""
        v_readfirstlane_b32 s{sTAG}, v{W3}
        v_readfirstlane_b32 s{sTAG + 1}, v{W3 + 1}
        s_add_u32 s{sTAG}, s{sTAG}, 1
        s_addc_u32 s{sTAG + 1}, s{sTAG + 1}, 0
        s_lshl_b32 s{sTLO}, s{sTAG + 1}, 20
        s_lshl_b32 s{sRA}, s{sTAG}, 24
        s_bfe_u32 s{sRB}, s{sTAG}, 0x100008
        """)

    def clean(self, S):
        a = self.a
        lp, ok = a.newlabel("clean"), a.newlabel("cleanok")
        a(f"s_mov_b32 s{sM}, 0\n{lp}:\ns_mov_b64 s[40:41], 0")

        def one(k):
            a(f"""
            s_mov_b64 exec, {sr(sVAL + 2 * k, 2)}
            v_xor_b32 v{S.rec[k]}, s{sRA}, v{S.rec[k]}
            v_xor_b32 v{S.rec[k] + 1}, s{sRB}, v{S.rec[k] + 1}
            v_lshrrev_b32 v{S.adr + k}, 24, v{S.rec[k]}
            v_lshl_or_b32 v{S.adr + k}, v{S.rec[k] + 1}, 16, v{S.adr + k}
            v_cmp_ne_u32 vcc, 0, v{S.adr + k}
            s_or_b64 s[40:41], s[40:41], vcc
            """)
        self.hi_passes(one)
        a(f"""
        s_mov_b64 exec, -1
        s_cmp_eq_u64 s[40:41], 0
        s_cbranch_scc1 {ok}
        s_add_u32 s{sM}, s{sM}, 1
        s_cmp_gt_u32 s{sM}, {POLL_LIMIT}
        s_cbranch_scc1 {ok}
        """)
        self.rec_issue(S)
        a(f"s_waitcnt vmcnt(0)\ns_branch {lp}\n{ok}:")

    def binning(self):
        a = self.a
        DV, SV, EP, AD, RK, RV, H0, B0, SQ, t4, t5, t6, t7 = 24, 26, 28, 30, 32, 34, 40, 44, 48, 52, 53, 54, 56
        a(f"""
        s_mov_b32 s{sC}, -40
        s_mov_b32 s{sD}, {HIST}
        v_mov_b32 v{t4}, 1
        v_mov_b32 v{t7}, {S1C}
        v_lshlrev_b32 v{t5}, 4, v{LANE}
        v_add_u32 v{t6}, {HIST}, v{t5}
        s_waitcnt vmcnt(1)
        """)
        self.stamp("edges")
        self.tag_calc()
        R2 = range(2)
        for i in R2:
            a(f"v_mul_u32_u24 v{AD + i}, 52429, v{DV + i}")
        for i in R2:
            a(f"v_lshrrev_b32 v{AD + i}, 21, v{AD + i}")
        for i in R2:
            a(f"v_min_u32 v{RK + i}, 255, v{AD + i}")
        for i in R2:
            a(f"v_and_b32 v{AD + i}, 7, v{RK + i}\nv_lshrrev_b32 v{H0 + i}, 3, v{RK + i}")
        for i in R2:
            a(f"v_lshl_or_b32 v{AD + i}, v{AD + i}, 5, v{H0 + i}")
        for i in R2:
            a(f"v_lshl_add_u32 v{AD + i}, v{AD + i}, 2, s{sD}")
        for i in R2:
            a(f"v_mad_i32_i24 v{DV + i}, v{RK + i}, s{sC}, v{DV + i}")
            a(f"ds_add_rtn_u32 v{RK + i}, v{AD + i}, v{t4}")
        a(f"s_mov_b64 exec, 1\nds_add_u32 v{t7}, v{t4}\ns_mov_b64 exec, -1")
        for i in R2:
            a(f"v_lshl_or_b32 v{RV + 2 * i}, v{DV + i}, 16, v{SV + i}")
        a(f"""
        v_mov_b32 v{RV + 3}, 0xffff0000
        v_lshl_or_b32 v{RV + 1}, v{EP}, 16, s{sRB}
        v_and_or_b32 v{RV + 3}, v{EP}, v{RV + 3}, s{sRB}
        v_or_b32 v{RV}, s{sRA}, v{RV}
        v_or_b32 v{RV + 2}, s{sRA}, v{RV + 2}
        """)
        self.spin(S1C, 5, t7, f"ds_read_b128 {vr(H0, 4)}, v{t6}")
        a(f"""
        v_add_u32 v{B0 + 1}, v{H0}, v{H0 + 1}
        v_add_u32 v{SQ}, v{H0 + 2}, v{H0 + 3}
        v_add_u32 v{SQ}, v{SQ}, v{B0 + 1}
        v_mov_b32 v{SQ + 1}, v{SQ}
        """)
        self.scan(SQ + 1)
        a(f"""
        v_sub_u32 v{B0}, v{SQ + 1}, v{SQ}
        v_add_u32 v{B0 + 2}, v{B0}, v{B0 + 1}
        v_add_u32 v{B0 + 1}, v{B0}, v{H0}
        v_add_u32 v{B0 + 3}, v{B0 + 2}, v{H0 + 2}
        ds_write_b128 v{t6}, {vr(B0, 4)} offset:{BASE - HIST}
        ds_read_b32 v{DV}, v{AD} offset:{BASE - HIST}
        ds_read_b32 v{DV + 1}, v{AD + 1} offset:{BASE - HIST}
        s_mov_b32 s{sD}, {SORT}
        v_mov_b32 v{t7}, {S2C}
        v_lshlrev_b32 v{t5}, 4, v{TID}
        v_add_u32 v{t6}, {SORT}, v{t5}
        s_mul_i32 s{sB}, s{sT}, {EC * 8}
        s_add_u32 s{sB}, s{sB}, {W_RECS}
        s_waitcnt lgkmcnt(0)
        v_add_u32 v{DV}, v{DV}, v{RK}
        v_add_u32 v{DV + 1}, v{DV + 1}, v{RK + 1}
        v_lshl_add_u32 v{DV}, v{DV}, 3, s{sD}
        v_lshl_add_u32 v{DV + 1}, v{DV + 1}, 3, s{sD}
        ds_write_b64 v{DV}, {vr(RV, 2)}
        ds_write_b64 v{DV + 1}, {vr(RV + 2, 2)}
        s_mov_b64 exec, 1
        ds_add_u32 v{t7}, v{t4}
        s_mov_b64 exec, -1
        """)
        self.spin(S2C, 5, t7, f"ds_read_b128 {vr(SQ, 4)}, v{t6}")
        a(f"buffer_store_dwordx4 {vr(SQ, 4)}, v{t5}, {sr(sWS, 4)}, s{sB} offen sc1")
        self.stamp("binned")

    def build(self):
        a = self.a
        t0, t1, t2, t3, t4, t5, t6, t7 = range(58, 66)
        PQ = 24
        UQ = 108
        u0, u1, u2, u3 = 57, 58, 59, 60

        if self.stamps and "dbg" not in self.opts:
            a(f"s_memrealtime s[86:87]\ns_memtime {sr(self.STAMP_REGS[0], 2)}")
        if "pad0" in self.opts or any(o.startswith("padat=") for o in self.opts):
            a("s_memrealtime s[96:97]")
        a(f"""
        s_cmp_ge_u32 s{sT}, {NT}
        s_cbranch_scc1 L_end
        s_load_dwordx16 s[40:55], s[0:1], 0
        s_load_dwordx2 s[56:57], s[0:1], 64
        v_and_b32 v{LANE}, 63, v{TID}
        """)
        if "nocodepf" not in self.opts:
            a(f"""
            s_getpc_b64 s[4:5]
            L_pc:
            """)
            if "fullpf" in self.opts:
                a(f"""
                v_lshlrev_b32 v{t0}, 4, v{TID}
                v_min_u32 v{t0}, L_code_end-L_pc-16, v{t0}
                global_load_dwordx4 {vr(AC2 + 8, 4)}, v{t0}, s[4:5]
                """)
            else:
                a(f"""
                s_lshr_b32 s6, s{sT}, 3
                s_and_b32 s6, s6, 15
                s_lshl_b32 s6, s6, 10
                v_lshl_add_u32 v{t0}, v{TID}, 4, s6
                v_min_u32 v{t0}, L_code_end-L_pc-16, v{t0}
                v_cmp_gt_u32 vcc, 64, v{TID}
                s_cbranch_vccz L_nopf
                global_load_dwordx4 {vr(AC2 + 8, 4)}, v{t0}, s[4:5]
                L_nopf:
                """)
        a(f"""
        v_lshrrev_b32 v{t0}, 6, v{TID}
        v_mov_b32 v{t6}, 0
        v_lshlrev_b32 v{t7}, 2, v{TID}
        v_readfirstlane_b32 s{sW}, v{t0}
        v_add_u32 v{t7}, {HIST}, v{t7}
        s_cmp_lt_u32 s{sW}, 4
        s_cbranch_scc1 L_z1
        s_cmp_gt_u32 s{sW}, 5
        s_cbranch_scc1 L_z2
        v_add_u32 v{t7}, {CNTN - HIST - 1024}, v{t7}
        L_z1:
        ds_write_b32 v{t7}, v{t6}
        L_z2:
        v_lshrrev_b32 v{t3}, 5, v{TID}
        v_and_b32 v{t4}, 31, v{TID}
        v_and_b32 v{t5}, 15, v{t3}
        v_xor_b32 v{t6}, v{t5}, v{t4}
        v_lshlrev_b32 v{t6}, 4, v{t6}
        s_mul_i32 s{sB}, s{sT}, {T * 512}
        v_lshl_add_u32 v{t6}, v{t3}, 9, v{t6}
        v_add_u32 v{GO}, s{sB}, v{t6}
        v_and_b32 v{t6}, 3, v{t5}
        v_lshrrev_b32 v{t7}, 1, v{t5}
        v_and_b32 v{t7}, 4, v{t7}
        v_or_b32 v{t6}, v{t6}, v{t7}
        v_lshlrev_b32 v{t6}, 1, v{t6}
        v_xor_b32 v{t6}, v{t6}, v{t4}
        v_lshlrev_b32 v{t6}, 4, v{t6}
        v_lshl_add_u32 v{WOFF}, v{t5}, 9, v{t6}
        s_and_b32 s{sW1K}, s{sW}, 7
        s_lshl_b32 s{sW1K}, s{sW1K}, 10
        """)
        if self.stamps:
            a(f"v_mov_b32 v{STAMPV}, 0")
            for r in self.STAMP_REGS[1:5]:
                a(f"s_mov_b32 s{r}, 0")
        a("s_waitcnt lgkmcnt(0)")

        def srd(s, p, nbytes):
            a(f"""
            s_mov_b32 s{s}, s{p}
            s_mov_b32 s{s + 1}, s{p + 1}
            s_mov_b32 s{s + 2}, {nbytes}
            s_mov_b32 s{s + 3}, 0x20000
            """)

        srd(sDST, 46, E * 4)
        srd(sSRC, 44, E * 4)
        srd(sEA, 42, E * 2)
        srd(sX, 40, N * 512)
        srd(sWM, 48, 513 * 512)
        srd(sWU, 50, 512 * 512)
        srd(sWS, 56, WS_SIZE)
        a("s_barrier")
        if self.opt("pad", 0) and "pad0" not in self.opts:
            a("s_memrealtime s[96:97]")
        self.stamp("start")
        self.stamp("bar0")
        EPV = W3
        a(f"""
        v_mov_b32 v{t0}, {W_EPOCH}
        s_cmp_ge_u32 s{sW}, 8
        s_cbranch_scc1 L_role_l
        s_cmp_ge_u32 s{sW}, 5
        s_cbranch_scc1 L_role_u
        s_setprio 3
        v_lshlrev_b32 v{t6}, 3, v{TID}
        v_lshlrev_b32 v{t7}, 2, v{TID}
        s_mul_i32 s{sA}, s{sT}, {EC * 4}
        s_mul_i32 s{sB}, s{sT}, {EC * 2}
        buffer_load_dwordx2 v[24:25], v{t6}, {sr(sDST, 4)}, s{sA} offen
        buffer_load_dwordx2 v[26:27], v{t6}, {sr(sSRC, 4)}, s{sA} offen
        buffer_load_dword v28, v{t7}, {sr(sEA, 4)}, s{sB} offen
        buffer_load_dwordx2 {vr(EPV, 2)}, v{t0}, {sr(sWS, 4)}, 0 offen
        s_sub_u32 s{sA}, s{sW}, 1
        s_and_b32 s{sA}, s{sA}, 7
        s_mul_i32 s{sD}, s{sA}, {NT}
        s_add_u32 s{sD}, s{sD}, s{sT}
        s_lshl_b32 s{sA}, s{sA}, 10
        s_add_u32 m0, s{sA}, {SLOT[3]}
        s_and_b32 s{sA}, s{sD}, 7
        s_bfe_u32 s{sB}, s{sD}, 0x40003
        s_lshr_b32 s{sC}, s{sD}, 7
        s_lshl_b32 s{sUO}, s{sB}, 4
        s_lshl_b32 s{sUG}, s{sC}, 3
        s_add_u32 s{sUO}, s{sUO}, s{sUG}
        s_add_u32 s{sUO}, s{sUO}, s{sA}
        s_lshl_b32 s{sUG}, s{sUO}, 5
        s_add_u32 s{sUG}, s{sUG}, {W_UTAG}
        s_lshl_b32 s{sUO}, s{sUO}, 10
        s_add_u32 s{sUO}, s{sUO}, {W_UT}
        s_lshl_b32 s{sA}, s{sA}, 5
        s_lshl_b32 s{sB}, s{sB}, 5
        s_cmp_lt_u32 s{sD}, 256
        s_cselect_b32 s{sB}, s{sB}, {OOB}
        s_cselect_b32 s{sUO}, s{sUO}, {OOB}
        s_cselect_b32 s{sUG}, s{sUG}, {OOB}
        v_lshrrev_b32 v{t6}, 1, v{LANE}
        v_add_u32 v{t6}, s{sA}, v{t6}
        v_and_b32 v{t5}, 1, v{LANE}
        v_lshlrev_b32 v{t5}, 4, v{t5}
        s_cmp_eq_u32 s{sC}, 0
        s_cbranch_scc1 L_pc_u1
        v_and_b32 v{t7}, 3, v{t6}
        v_lshrrev_b32 v{t6}, 2, v{t6}
        v_lshl_add_u32 v{t6}, v{t7}, 6, v{t6}
        v_add_u32 v{t6}, 256, v{t6}
        L_pc_u1:
        v_lshl_add_u32 v{t6}, v{t6}, 9, v{t5}
        buffer_load_dwordx4 v{t6}, {sr(sWU, 4)}, s{sB} offen lds
        s_branch L_role_done
        L_role_u:
        buffer_load_dwordx2 {vr(EPV, 2)}, v{t0}, {sr(sWS, 4)}, 0 offen
        v_subrev_u32 v{t3}, 10, v{t3}
        s_mul_i32 s{sB}, s{sT}, {T * 512}
        s_lshl_b32 s{sA}, s{sW}, 10
        """)
        for i in range(7):
            if i == 6:
                a(f"""
                s_cmp_eq_u32 s{sW}, 7
                s_cselect_b32 s{sC}, 2, 0
                v_subrev_u32 v{t3}, s{sC}, v{t3}
                s_lshl_b32 s{sC}, s{sC}, 9
                s_sub_u32 s{sA}, s{sA}, s{sC}
                """)
            a(f"""
            v_and_b32 v{t6}, 15, v{t3}
            v_xor_b32 v{t6}, v{t6}, v{t4}
            v_lshlrev_b32 v{t6}, 4, v{t6}
            s_add_u32 m0, s{sA}, {XB - 5120 + 3072 * i}
            v_lshl_add_u32 v{t6}, v{t3}, 9, v{t6}
            v_add_u32 v{t3}, 6, v{t3}
            buffer_load_dwordx4 v{t6}, {sr(sX, 4)}, s{sB} offen lds
            """)
        a(f"""
        s_branch L_role_done
        L_role_l:
        buffer_load_dwordx2 {vr(EPV, 2)}, v{t0}, {sr(sWS, 4)}, 0 offen
        s_lshr_b32 s{sA}, s{sT}, 3
        s_lshl_b32 s{sA}, s{sA}, 13
        s_add_u32 s{sA}, s{sA}, s{sW1K}
        s_lshr_b32 s{sC}, s{sA}, 1
        v_lshlrev_b32 v{t7}, 3, v{LANE}
        buffer_load_dwordx2 {vr(AC2, 2)}, v{t7}, {sr(sWM, 4)}, s{sC} offen
        s_add_u32 s{sC}, s{sC}, 131072
        buffer_load_dwordx2 {vr(AC2 + 2, 2)}, v{t7}, {sr(sWM, 4)}, s{sC} offen
        s_cmp_eq_u32 s{sW}, 15
        s_cbranch_scc0 L_role_done
        s_mov_b32 m0, {W3L}
        v_lshlrev_b32 v{t7}, 4, v{LANE}
        s_mov_b32 s{sB}, {512 * 512}
        buffer_load_dwordx4 v{t7}, {sr(sWM, 4)}, s{sB} offen lds
        L_role_done:
        """)
        UA = W3 - 9 - 5
        srd(sOUT, 52, N * 512)
        a(f"""
        s_add_u32 s{sP}, s56, {W_P}
        s_addc_u32 s{sP + 1}, s57, 0
        s_or_b32 s{sP + 1}, s{sP + 1}, {512 << 16}
        s_mov_b32 s{sP + 2}, {N}
        s_mov_b32 s{sP + 3}, 0x20000
        s_mov_b32 s{sNL2E}, {NLOG2E}
        s_mov_b32 s{sNL2E + 1}, {NLOG2E}
        s_mov_b32 s{sNLN2}, {NLN2}
        s_mov_b32 s{sNLN2 + 1}, {NLN2}
        s_lshl_b32 s{sWK}, s{sW}, 10
        s_lshr_b32 s{sHI}, s{sW}, 3
        s_lshl_b32 s{sHI}, s{sHI}, 13
        s_mov_b32 s{sGEN}, 0
        v_and_b32 v{t0}, 15, v{LANE}
        v_lshrrev_b32 v{t1}, 4, v{LANE}
        v_bfe_u32 v{t2}, v{LANE}, 2, 2
        v_and_b32 v{t3}, 3, v{LANE}
        s_lshl_b32 s{sB}, s{sW}, 1
        v_and_b32 v{t4}, 1, v{t1}
        v_lshl_or_b32 v{t4}, v{t4}, 2, v{t2}
        v_lshlrev_b32 v{t4}, 1, v{t4}
        v_lshrrev_b32 v{t5}, 1, v{t3}
        v_add_u32 v{t5}, s{sB}, v{t5}
        v_xor_b32 v{t4}, v{t4}, v{t5}
        v_lshlrev_b32 v{t4}, 4, v{t4}
        v_and_b32 v{t5}, 1, v{t3}
        v_lshl_add_u32 v{t4}, v{t5}, 3, v{t4}
        v_lshl_add_u32 v{t5}, v{t1}, 3, v{t2}
        v_lshl_add_u32 v{TR0}, v{t5}, 9, v{t4}
        v_add_u32 v{TR1}, 65536, v{TR0}
        v_lshlrev_b32 v{t5}, 5, v{t5}
        v_lshl_add_u32 v{UA + 9}, v{t3}, 3, v{t5}
        v_lshlrev_b32 v{t5}, 9, v{t0}
        v_add_u32 v{t5}, {XB}, v{t5}
        """)
        for k in range(4):
            a(f"""
            v_add_u32 v{t4}, {4 * k}, v{t1}
            v_xor_b32 v{t4}, v{t4}, v{t0}
            v_lshl_add_u32 v{XA + k}, v{t4}, 4, v{t5}
            """)
        a(f"""
        v_lshrrev_b32 v{t4}, 1, v{t1}
        v_add_u32 v{t4}, s{sB}, v{t4}
        v_xor_b32 v{t4}, v{t4}, v{t0}
        v_lshlrev_b32 v{t4}, 4, v{t4}
        v_and_b32 v{t6}, 1, v{t1}
        v_lshl_add_u32 v{t4}, v{t6}, 3, v{t4}
        v_lshl_add_u32 v{t4}, v{t0}, 9, v{t4}
        v_add_u32 v{STG}, {PS}, v{t4}
        v_lshlrev_b32 v{STR}, 4, v{TID}
        v_add_u32 v{STR}, {PS}, v{STR}
        v_add_u32 v{GO2}, 16384, v{GO}
        s_cmp_lt_u32 s{sW}, 4
        s_cbranch_scc1 L_go2
        v_mov_b32 v{GO2}, {OOB}
        L_go2:
        s_cmp_lt_u32 s{sW}, 5
        s_cbranch_scc0 L_nobin
        """)
        self.binning()
        a(f"""
        s_cmp_eq_u32 s{sW}, 0
        s_cbranch_scc0 L_piece
        v_lshlrev_b32 v{t0}, 3, v{LANE}
        v_add_u32 v{t0}, {HIST}, v{t0}
        ds_read_b64 {vr(66, 2)}, v{t0}
        ds_read_b64 {vr(68, 2)}, v{t0} offset:{BASE - HIST}
        ds_read_b64 {vr(70, 2)}, v{t0} offset:512
        ds_read_b64 {vr(72, 2)}, v{t0} offset:{BASE - HIST + 512}
        v_lshlrev_b32 v{t1}, 4, v{LANE}
        s_lshl_b32 s{sB}, s{sT}, 11
        s_add_u32 s{sB}, s{sB}, {W_OFFS}
        s_waitcnt lgkmcnt(0)
        """)
        for i in range(4):
            h, b = 66 + 4 * (i >> 1) + (i & 1), 68 + 4 * (i >> 1) + (i & 1)
            a(f"""
            v_lshl_or_b32 v{ACC + 2 * i}, v{h}, 10, v{b}
            v_mov_b32 v{ACC + 2 * i + 1}, s{sTAG}
            v_or_b32 v{ACC + 2 * i}, s{sTLO}, v{ACC + 2 * i}
            """)
        a(f"""
        buffer_store_dwordx4 {vr(ACC, 4)}, v{t1}, {sr(sWS, 4)}, s{sB} offen sc1
        buffer_store_dwordx4 {vr(ACC + 4, 4)}, v{t1}, {sr(sWS, 4)}, s{sB} offen offset:1024 sc1
        s_setprio 0
        s_branch L_bin_done
        L_piece:
        s_setprio 0
        s_cmp_lt_u32 s{sW}, 3
        s_cbranch_scc0 L_bin_done
        s_lshl_b32 s{sA}, s{sW}, 10
        s_add_u32 s{sA}, s{sA}, {SLOT[3] - 1024}
        v_add_u32 v{UA + 9}, s{sA}, v{UA + 9}
        v_lshlrev_b32 v{W3 + 2}, 4, v{LANE}
        s_waitcnt vmcnt(1)
        ds_read_b64_tr_b16 {vr(AC2 + 4, 2)}, v{UA + 9}
        ds_read_b64_tr_b16 {vr(AC2 + 6, 2)}, v{UA + 9} offset:128
        s_waitcnt lgkmcnt(0)
        buffer_store_dwordx4 {vr(AC2 + 4, 4)}, v{W3 + 2}, {sr(sWS, 4)}, s{sUO} offen sc1
        s_branch L_bin_done
        L_nobin:
        s_cmp_ge_u32 s{sW}, 8
        s_cbranch_scc1 L_bin_ld
        v_mov_b32 v{W3 + 2}, {XCNT}
        v_mov_b32 v{W3 + 3}, 1
        s_mov_b64 exec, 1
        s_waitcnt vmcnt(4)
        ds_add_u32 v{W3 + 2}, v{W3 + 3}
        s_mov_b64 exec, -1
        s_branch L_bin_done
        L_bin_ld:
        """)
        self.dma_body(0, 0)
        a(f"""
        s_waitcnt vmcnt(6)
        L_bin_done:
        """)
        self.tag_calc()
        self.xpreload(UA + 9)
        self.stamp("xpre")

        R0 = 116
        XBUF = (80, 92)
        fbuf = [UF + 4 * i for i in range(6)] + [56, 60]
        OV, o0, o1, o2, o3, UV = 20, 22, 23, 16, 17, 116

        def frag(i):
            a(f"""
            s_add_u32 s{sB}, s{sUB}, {1024 * i}
            buffer_load_dwordx4 {vr(fbuf[i], 4)}, v{FO}, {sr(sWS, 4)}, s{sB} offen sc1
            """)
            self.vm("LN", f"f{i}")

        def x3(i):
            for rb in range(3):
                a(f"ds_read_b128 {vr(XBUF[i & 1] + 4 * rb, 4)}, v{XA + (i & 3)} offset:{rb * 8192 + (i >> 2) * 256}")
                self.lq.append(f"x{i}")

        def consume(i):
            self.vmwait({f"f{i}"})
            if f"x{i}" in self.lq:
                self.lwait(f"x{i}")
            for rb in range(3):
                cin = "0" if i == 0 else vr(ACC + 4 * rb, 4)
                a(f"v_mfma_f32_16x16x32_bf16 {vr(ACC + 4 * rb, 4)}, {vr(fbuf[i], 4)}, {vr(XBUF[i & 1] + 4 * rb, 4)}, {cin}")
            if i + 2 < 8:
                x3(i + 2)

        def utag_issue(dst, adr):
            a(f"""
            v_lshlrev_b32 v{adr}, 5, v{LANE}
            s_lshl_b32 s{sC}, s{sW}, 9
            s_add_u32 s{sC}, s{sC}, {W_UTAG}
            s_mov_b64 exec, 0xffff
            buffer_load_dwordx2 {vr(dst, 2)}, v{adr}, {sr(sWS, 4)}, s{sC} offen sc1
            s_mov_b64 exec, -1
            """)

        def utag_check(dst):
            a(f"""
            v_cmp_ne_u64 vcc, {sr(sTAG, 2)}, {vr(dst, 2)}
            s_nop 1
            s_and_b32 s{sU}, vcc_lo, 0xffff
            """)

        def offs_issue():
            a(f"""
            s_and_b32 s{sC}, s{sT}, 7
            s_lshl_b32 s{sC}, s{sC}, 8
            s_and_b32 s{sB}, s{sT}, 0xf8
            s_add_u32 s{sC}, s{sC}, s{sB}
            s_add_u32 s{sC}, s{sC}, {W_OFFS}
            buffer_load_dwordx2 {vr(OV, 2)}, v{o0}, {sr(sWS, 4)}, s{sC} offen sc1
            """)

        def offs_check():
            a(f"""
            v_xor_b32 v{o1}, s{sTLO}, v{OV}
            v_cmp_ne_u32 vcc, s{sTAG}, v{OV + 1}
            s_mov_b32 s{sB}, 0x100000
            v_cmp_le_u32 s[40:41], s{sB}, v{o1}
            s_nop 1
            s_or_b64 vcc, vcc, s[40:41]
            s_and_b64 vcc, vcc, {sr(sVAL, 2)}
            """)

        def parse():
            a(f"""
            v_cndmask_b32 v{OV}, 0, v{o1}, {sr(sVAL, 2)}
            v_and_b32 v{o1}, 3, v{TID}
            v_mul_u32_u24 v{o0}, {EC * 8}, v{RBA}
            v_and_b32 v{o2}, 0x3ff, v{OV}
            v_bfe_u32 v{o3}, v{OV}, 10, 10
            v_add_u32 v{o2}, v{o2}, v{o1}
            v_lshl_add_u32 v{o0}, v{o2}, 3, v{o0}
            v_add_u32 v{RBA}, {W_RECS}, v{o0}
            v_sub_u32 v{CQ}, v{o3}, v{o1}
            v_cmp_lt_u32 vcc, {4 * NPASS}, v{o3}
            """)
            lab = a.newlabel("nomax")
            a(f"""
            s_cbranch_vccz {lab}
            v_mov_b32 v{o2}, {MISC}
            s_mov_b64 exec, vcc
            ds_max_u32 v{o2}, v{o3}
            s_mov_b64 exec, -1
            s_waitcnt lgkmcnt(0)
            {lab}:
            """)
            self.rec_issue(SCRP)

        slot = [0, 1, 2, 3, 0, 1, 0, 3]
        nearly = self.opt("early", 2)
        edel = self.opt("edel", 0)
        issue_at = {0: 3}
        for c in range(4, 4 + nearly):
            issue_at[c - 3 + edel] = c

        def gstep(k, lgkm=False, post=None):
            self.vmwait({f"c{k}"})
            self.barrier(f"B{k}", lgkm=lgkm)
            if post:
                post()
            self.trreads(slot[k])
            c = issue_at.get(k)
            self.mfmas(AC2, k & 3, (lambda sp: self.dma_all(c, slot[c], sp)) if c else None)
            if k not in (3, 7):
                self.xreads((k + 1) & 3)

        def look():
            a(f"""
            v_mov_b32 v{o1}, {OOB}
            v_lshrrev_b32 v{RBA}, 2, v{TID}
            v_lshlrev_b32 v{o0}, 11, v{RBA}
            s_movk_i32 s{sA}, {NT}
            v_cmp_gt_u32 {sr(sVAL, 2)}, s{sA}, v{RBA}
            s_mov_b32 s{sP0}, 0
            s_mov_b32 s{sNP}, {NPASS}
            s_mov_b32 s{sMODE}, 0
            v_cndmask_b32 v{o0}, v{o1}, v{o0}, {sr(sVAL, 2)}
            """)
            offs_issue()
            utag_issue(UV, UV + 2)
            self.vm("LN", "offs", 2)

        def piece_tag():
            a(f"s_sub_u32 s{sA}, s{sW}, 1\ns_cmp_lt_u32 s{sA}, 2\ns_cbranch_scc0 L_notag\ns_waitcnt vmcnt(4)")
            self.tag_store(sUG, 116)
            a.label("L_notag")

        kis = self.opt("kis", 2)
        recpos = self.opt("recpos", 2)

        def try_records():
            self.vmwait({"offs"})
            utag_check(UV)
            offs_check()
            a(f"s_mov_b32 s{sE}, 0\ns_cbranch_scc1 L_late")
            parse()
            a(f"s_mov_b32 s{sE}, 1\ns_branch L_intime\nL_late:")
            offs_issue()
            offs_issue()
            a.label("L_intime")
            self.vm("LN", "rec", 2)

        for k in range(4):
            gstep(k, post=piece_tag if k == self.opt('kpt', 0) else None)
            if k == kis:
                look()
            if k == 2 and recpos == -1:
                try_records()
        for rb in range(3):
            for h in range(2):
                a(f"v_pk_mul_f32 {vr(AC2 + 4 * rb + 2 * h, 2)}, {vr(AC2 + 4 * rb + 2 * h, 2)}, {sr(sNL2E, 2)} op_sel_hi:[1,0]")
            a(f"v_cvt_pk_bf16_f32 v{AC2 + 4 * rb}, v{AC2 + 4 * rb}, v{AC2 + 4 * rb + 1}")
            a(f"v_cvt_pk_bf16_f32 v{AC2 + 4 * rb + 1}, v{AC2 + 4 * rb + 2}, v{AC2 + 4 * rb + 3}")
            a(f"ds_write_b64 v{STG}, {vr(AC2 + 4 * rb, 2)} offset:{rb * 8192}")
        if recpos == 0:
            try_records()
        a("s_setprio 3")
        self.barrier("PS")
        a(f"""
        ds_read_b128 {vr(AC2, 4)}, v{STR}
        ds_read_b128 {vr(AC2 + 4, 4)}, v{STR} offset:16384
        """)
        self.xreads(0)
        a(f"""
        s_mov_b32 s{sB}, {W_P}
        s_waitcnt lgkmcnt(3)
        buffer_store_dwordx4 {vr(AC2, 4)}, v{GO}, {sr(sWS, 4)}, s{sB} offen sc1
        s_waitcnt lgkmcnt(2)
        buffer_store_dwordx4 {vr(AC2 + 4, 4)}, v{GO2}, {sr(sWS, 4)}, s{sB} offen sc1
        s_setprio 0
        """)
        self.vm("LN", "p", 2)
        self.stamp("pst")
        if recpos == 2:
            try_records()
        self.stampval("E", sE)
        self.stampval("U", sU)

        def fb():
            a(f"s_lshl_b32 s{sB}, s{sT}, 5\ns_add_u32 s{sB}, s{sB}, {W_FB}")
            self.tag_store(sB, ACC + 8 if kfb == 6 else ACC)

        todo = [(c, m) for c in range(4 + nearly, 8) for m in range(2)]
        kfb = self.opt("kfb", 5)

        def issue(n):
            nonlocal todo
            for c, m in todo[:n]:
                self.dma_all(c, slot[c], m)
            todo = todo[n:]

        if nearly < 2:
            issue(self.opt("npre", 2))
        for k in (4, 5):
            if k == kfb:
                self.vmwait({"p"})
                self.stamp("ack")
            while todo and todo[0][0] <= k:
                issue(1)
            gstep(k, post=(lambda: self.wave0(fb)) if k == kfb else None)
            if k >= kfb and k == 4 and nearly < 2:
                issue(2)
        a(f"""
        s_lshl_b32 s{sUB}, s{sW}, 14
        s_add_u32 s{sUB}, s{sUB}, {W_UT}
        """)
        self.vmwait({"rec"})
        a(f"""
        s_cmp_eq_u32 s{sE}, 1
        s_cbranch_scc1 L_recs_ok
        s_mov_b32 s{sD}, 0
        L_offs_chk:
        """)
        offs_check()
        a(f"""
        s_cbranch_scc0 L_offs_ok
        s_add_u32 s{sD}, s{sD}, 1
        s_cmp_gt_u32 s{sD}, {POLL_LIMIT}
        s_cbranch_scc1 L_offs_ok
        """)
        offs_issue()
        a("s_waitcnt vmcnt(0)\ns_branch L_offs_chk\nL_offs_ok:")
        parse()
        a("s_waitcnt vmcnt(0)\nL_recs_ok:")
        self.stamp("rec")
        self.clean(SCRX)
        self.count(SCRX)
        issue(8)
        if kfb == 6:
            self.vmwait({"p"})
            self.stamp("ack")
        self.barrier("C1")
        if kfb == 6:
            self.wave0(fb)
        a(f"""
        v_lshlrev_b32 v{FO}, 4, v{LANE}
        s_cmp_eq_u32 s{sU}, 0
        s_cbranch_scc1 L_tags_ok
        s_mov_b32 s{sD}, 0
        L_tags:
        """)
        utag_issue(24, 26)
        a(f"s_add_u32 s{sD}, s{sD}, 1\ns_cmp_gt_u32 s{sD}, {POLL_LIMIT}\ns_waitcnt vmcnt(0)\ns_cbranch_scc1 L_tags_ok")
        utag_check(24)
        a("s_cbranch_scc1 L_tags\nL_tags_ok:")
        frag(0)
        frag(1)
        self.lists(SCRX, "L_gen1")
        a.label("L_gen1_back")
        self.side_fill(ACC + 10, ACC + 3)
        pp = self.opt("pp", 1)
        frag(2)
        frag(3)
        if pp == 0:
            self.wave0(self.poll_issue)
        gstep(6, lgkm=True)
        if pp == 1:
            self.wave0(self.poll_issue)
        a(f"s_mov_b32 s{sB}, {W3L}\nv_lshl_add_u32 v{ACC + 3}, v{LANE}, 1, s{sB}")
        for r in range(4):
            a(f"ds_read_u16_d16_hi v{W3 + r}, v{ACC + 3} offset:{128 * r}")
        frag(4)
        frag(5)
        self.setup(69)
        if pp == 2:
            self.wave0(self.poll_issue)
        frag(6)
        frag(7)
        a(f"""
        v_and_b32 v75, 15, v{LANE}
        v_cmp_gt_u32 {sr(sEX, 2)}, 8, v75
        v_mul_u32_u24 v74, {QS}, v75
        v_and_b32 v75, 48, v{LANE}
        s_lshl_b32 s{sB}, s{sW}, 6
        v_add3_u32 v74, v74, v75, s{sB}
        """)
        self.slot_consts()
        self.stamp("pre")

        def pw():
            self.poll_wait()
            a(f"s_cmp_eq_u32 s{sT}, 0\ns_cbranch_scc0 L_noep\ns_mov_b32 s{sB}, {W_EPOCH}")
            self.tag_store(sB, POLLB)
            a.label("L_noep")
        self.wave0(pw)
        self.vmwait({"c7"})
        self.barrier("C2")

        def g(k):
            a(f"v_mov_b32 v{IA}, v{IX0 + k}")
            self.gather(k)
            self.vm("LN", "g")

        self.trreads(slot[7])
        self.mfmas(AC2, 3, g if self.opt("gp", 1) == 1 else None)
        if self.opt("gp", 1) == 2:
            g(0)
            g(1)
        x3(0)
        x3(1)
        for rb in range(3):
            for h in range(2):
                a(f"v_pk_mul_f32 {vr(AC2 + 4 * rb + 2 * h, 2)}, {vr(AC2 + 4 * rb + 2 * h, 2)}, {sr(sNL2E, 2)} op_sel_hi:[1,0]")
            if rb == 2:
                a(f"s_mov_b64 exec, {sr(sEX, 2)}")
            a(f"ds_write_b128 v74, {vr(AC2 + 4 * rb, 4)} offset:{QB + rb * 16 * QS}")
            self.lq.append("q")
        a("s_mov_b64 exec, -1")
        self.stamp("q")
        g2, g3 = self.opt("g2", 2), self.opt("g3", 5)
        for i in range(8):
            consume(i)
            if i == 0:
                a("s_barrier")
            if i == g2:
                g(2)
            if i == g3:
                g(3)
        a(f"v_mov_b32 v{IA}, v{IX0 + 4}")
        for r in range(4):
            a(f"v_mul_f32 v{W3 + r}, s{sNL2E}, v{W3 + r}")
        for h in range(6):
            a(f"v_pk_mul_f32 {vr(ACC + 2 * h, 2)}, {vr(ACC + 2 * h, 2)}, {sr(sNL2E, 2)} op_sel_hi:[1,0]")
        self.lane_consts()
        self.barrier("R")
        a(f"""
        s_cmp_eq_u32 s{sGEN}, 0
        s_cbranch_scc0 L_generic
        s_and_b32 s{sZ + 1}, s{sZ + 1}, 0xff
        s_or_b32 s{sA}, s{sZ}, s{sZ + 1}
        s_or_b32 s{sA}, s{sA}, s{sMODE}
        s_cbranch_scc1 L_clear
        L_r_done:
        s_cmp_gt_i32 s{sNE}, 0
        s_cbranch_scc0 L_empty
        """)
        if "noprio" not in self.opts:
            a("s_setprio 3")
        a(f"""
        ds_read_b64 {vr(EE[0], 2)}, v{EA}
        v_add_u32 v{QA}, s{sQ0}, v{L4}
        ds_read2st64_b32 {vr(Q, 2)}, v{QA} offset0:0 offset1:1
        ds_read2st64_b32 {vr(Q + 2, 2)}, v{QA} offset0:2 offset1:3
        v_xor_b32 v{AG}, s{sAG0}, v{L8}
        v_add_u32 v{CNA}, {CNTN}, v{L4}
        v_mov_b32 v{TZ}, 0
        ds_write_b32 v{CNA}, v{TZ}
        v_mov_b64 {vr(NN, 2)}, 0
        v_mov_b64 {vr(NN + 2, 2)}, 0
        v_mov_b32 v{DD}, 1.0
        v_mov_b32 v{DD + 1}, 1.0
        v_mov_b32 v{DD + 2}, 1.0
        v_mov_b32 v{DD + 3}, 1.0
        v_mov_b64 {vr(CK2, 2)}, 0
        v_mov_b32 v{CK1}, 0
        s_mov_b32 s{sI}, 0
        s_or_b32 s{sTM}, s{sMASK}, {0xff if "u2early" in self.opts else 0}
        s_mov_b32 s{sW11}, {0 if "u2early" in self.opts else -1}
        """)
        self.stamp("setup")
        a("s_waitcnt vmcnt(3)")
        self.stamp("row0")
        self.p_reads(0, 0)
        a("s_waitcnt lgkmcnt(0)")
        self.gather(0)
        if "u2early" in self.opts:
            self.u2_loads()
        a(f"""
        s_cmp_eq_u32 s{sMODE}, 0
        s_cbranch_scc0 L_loop_x
        """)
        self.main_loop(False, "L_main_done")
        a.reset_hist()
        a.label("L_main_done")
        a("s_setprio 0")
        self.stamp("loop")
        a(f"""
        v_add_f32 v{CK2}, v{CK2}, v{CK2 + 1}
        v_mov_b32 v{TM}, {BIG}
        v_cmp_u_f32 vcc, v{CK2}, v{CK2}
        v_cmp_nle_f32 s[40:41], v{CK1}, v{TM}
        s_nop 1
        s_or_b64 vcc, vcc, s[40:41]
        s_cbranch_scc0 L_after
        v_mov_b32 v{TM}, {MISC + 4}
        v_mov_b32 v{TM + 1}, 1
        ds_write_b32 v{TM}, v{TM + 1}
        L_after:
        v_xor_b32 v{STG2}, 0x80, v{STG}
        v_and_b32 v{TM}, 8, v{LANE}
        v_subrev_u32 v{STG2}, 4092, v{STG2}
        v_cmp_eq_u32 vcc, 0, v{TM}
        v_cndmask_b32 v{STG2}, v{STG2}, v{STG}, vcc
        s_waitcnt vmcnt(0)
        """)
        self.barrier("M")
        a(f"""
        v_mov_b32 v{TM}, {MISC + 4}
        ds_read_b32 v{TM + 1}, v{TM}
        """)
        if "oldfin" in self.opts:
            order = [(s_, rb) for s_ in range(8) for rb in range(3)]
        else:
            order = [(s_, rb) for rb in range(3) for s_ in range(8)]
        NB = 12

        def rd(n):
            s_, rb = order[n]
            a(f"ds_read_b128 {vr(XF + 4 * (n % NB), 4)}, v{XA + (s_ & 3)} offset:{rb * 8192 + (s_ >> 2) * 256}")

        for n in range(NB):
            rd(n)
        a(f"""
        s_cmp_eq_u32 s{sMODE}, 0
        s_cbranch_scc0 L_slow_next
        s_waitcnt lgkmcnt(12)
        v_readfirstlane_b32 s{sA}, v{TM + 1}
        s_nop 1
        s_cmp_eq_u32 s{sA}, 0
        s_cbranch_scc0 L_redo
        L_final:
        """)
        TE = 104

        def act(rb):
            ops = []
            for r in range(4):
                ops.append(f"v_exp_f32 v{TE + 4 * rb + r}, v{ACC + 4 * rb + r}")
            for r in range(4):
                ops.append(f"v_add_f32 v{TE + 4 * rb + r}, 1.0, v{TE + 4 * rb + r}")
            for r in range(4):
                ops.append(f"v_rcp_f32 v{TE + 4 * rb + r}, v{TE + 4 * rb + r}")
            for r in range(4):
                ops.append(f"v_mul_f32 v{ACC + 4 * rb + r}, s{sNLN2}, v{ACC + 4 * rb + r}")
            for r in range(4):
                ops.append(f"v_mul_f32 v{ACC + 4 * rb + r}, v{ACC + 4 * rb + r}, v{TE + 4 * rb + r}")
            ops.append(f"v_cvt_pk_bf16_f32 v{TE + 4 * rb}, v{ACC + 4 * rb}, v{ACC + 4 * rb + 1}")
            ops.append(f"v_cvt_pk_bf16_f32 v{TE + 4 * rb + 1}, v{ACC + 4 * rb + 2}, v{ACC + 4 * rb + 3}")
            ops.append(f"ds_write_b64 v{STG}, {vr(TE + 4 * rb, 2)} offset:{rb * 8192}")
            return ops

        pend = []
        lq = [f"r{n}" for n in range(NB)]
        for n in range(24):
            s_, rb = order[n]
            last = lq.index(f"r{n}")
            a(f"s_waitcnt lgkmcnt({len(lq) - 1 - last})")
            lq = lq[last + 1:]
            a(f"v_mfma_f32_16x16x32_bf16 {vr(ACC + 4 * rb, 4)}, {vr(UF + 4 * s_, 4)}, {vr(XF + 4 * (n % NB), 4)}, {vr(ACC + 4 * rb, 4)}")
            if n + NB < 24:
                rd(n + NB)
                lq.append(f"r{n + NB}")
            if "oldfin" not in self.opts:
                if n in (9, 17):
                    pend += act(n // 8 - 1)
                for op in pend[:4]:
                    a(op)
                    if op.startswith("ds_"):
                        lq.append("w")
                pend = pend[4:]
        for op in pend:
            a(op)
        if "oldfin" in self.opts or "nofold" in self.opts:
            for rb in ([2] if "oldfin" not in self.opts else [0, 1, 2]):
                for op in act(rb):
                    a(op)
        else:
            A2 = ACC + 8
            a(f"""
            v_mov_b32_dpp v{A2}, v{A2 + 2} row_shr:8 row_mask:0xf bank_mask:0xc
            v_mov_b32_dpp v{A2 + 1}, v{A2 + 3} row_shr:8 row_mask:0xf bank_mask:0xc
            v_exp_f32 v{TE + 8}, v{A2}
            v_exp_f32 v{TE + 9}, v{A2 + 1}
            v_pk_mul_f32 {vr(A2, 2)}, {vr(A2, 2)}, {sr(sNLN2, 2)} op_sel_hi:[1,0]
            v_pk_add_f32 {vr(TE + 8, 2)}, {vr(TE + 8, 2)}, 1.0 op_sel_hi:[1,0]
            v_rcp_f32 v{TE + 8}, v{TE + 8}
            v_rcp_f32 v{TE + 9}, v{TE + 9}
            v_pk_mul_f32 {vr(A2, 2)}, {vr(A2, 2)}, {vr(TE + 8, 2)}
            v_cvt_pk_bf16_f32 v{TE + 8}, v{A2}, v{A2 + 1}
            ds_write_b32 v{STG2}, v{TE + 8} offset:16384
            """)
        self.barrier("F")
        a(f"""
        ds_read_b128 {vr(PQ + 8, 4)}, v{STR}
        ds_read_b128 {vr(PQ + 12, 4)}, v{STR} offset:16384
        s_waitcnt lgkmcnt(1)
        buffer_store_dwordx4 {vr(PQ + 8, 4)}, v{GO}, {sr(sOUT, 4)}, 0 offen sc1
        s_waitcnt lgkmcnt(0)
        buffer_store_dwordx4 {vr(PQ + 12, 4)}, v{GO2}, {sr(sOUT, 4)}, 0 offen sc1
        """)
        if self.opt("pad", 0):
            a(f"""
            L_pad:
            s_memrealtime s[98:99]
            s_waitcnt lgkmcnt(0)
            s_sub_u32 s98, s98, s96
            s_cmp_lt_u32 s98, {self.opt("pad", 0)}
            s_cbranch_scc1 L_pad
            """)
        if self.stamps:
            a.label("L_diag_end")
            a("s_waitcnt vmcnt(0)")
            self.stamp("end")
            a(f"""
            s_lshl_b32 s{sA}, s{sT}, 4
            s_add_u32 s{sA}, s{sA}, s{sW}
            s_lshl_b32 s{sA}, s{sA}, 8
            s_add_u32 s{sA}, s{sA}, {W_STAMP}
            v_lshlrev_b32 v{TM}, 2, v{LANE}
            buffer_store_dword v{STAMPV}, v{TM}, {sr(sWS, 4)}, s{sA} offen
            """)
        a.label("L_end")
        a("s_endpgm")
        a.reset_hist()
        a(f"""
        L_gen1:
        s_mov_b32 s{sGEN}, 1
        s_mov_b32 s{sI}, 0
        s_mov_b32 s{sNE}, 0
        s_branch L_gen1_back
        L_clear:
        v_mov_b64 {vr(XF, 2)}, 0
        v_mov_b64 {vr(XF + 2, 2)}, 0
        v_add_u32 v{XF + 4}, {AB - PS}, v{STR}
        """)
        self.zero_agg(XF + 4, XF)
        a(f"""
        s_waitcnt lgkmcnt(0)
        s_barrier
        s_branch L_r_done
        L_generic:
        s_waitcnt vmcnt(0) lgkmcnt(0)
        s_barrier
        v_mov_b64 {vr(XF, 2)}, 0
        v_mov_b64 {vr(XF + 2, 2)}, 0
        v_add_u32 v{XF + 4}, {AB - PS}, v{STR}
        """)
        self.zero_agg(XF + 4, XF)
        a(f"""
        v_add_u32 v{CNA}, {CNTN}, v{L4}
        v_mov_b32 v{TZ}, 0
        ds_write_b32 v{CNA}, v{TZ}
        s_mov_b32 s{sNP}, 1
        s_mov_b32 s{sMODE}, 1
        s_waitcnt lgkmcnt(0)
        s_barrier
        L_round:
        """)
        self.slot_consts()
        self.lane_consts()
        self.rec_issue(SCR2)
        a("s_waitcnt vmcnt(0)")
        self.clean(SCR2)
        self.count(SCR2)
        a("s_waitcnt lgkmcnt(0)\ns_barrier")
        self.lists(SCR2, "L_generic")
        a("s_waitcnt lgkmcnt(0)\ns_barrier")
        self.setup(SCR2.tmp)
        a(f"""
        s_waitcnt lgkmcnt(0)
        """)
        for k in range(4):
            a(f"v_mov_b32 v{IA}, v{IX0 + k}")
            self.gather(k)
        a(f"""
        v_mov_b32 v{IA}, v{IX0 + 4}
        s_branch L_r_done
        L_empty:
        v_add_u32 v{CNA}, {CNTN}, v{L4}
        v_mov_b32 v{TZ}, 0
        ds_write_b32 v{CNA}, v{TZ}
        """)
        self.u2_loads()
        a(f"""
        s_branch L_after
        L_slow_next:
        s_cmp_eq_u32 s{sNP}, {NPASS}
        s_cbranch_scc1 L_final
        s_add_u32 s{sP0}, s{sP0}, 1
        s_max_u32 s{sA}, s{sMAXC}, {4 * NPASS}
        s_lshl_b32 s{sB}, s{sP0}, 2
        s_cmp_lt_u32 s{sB}, s{sA}
        s_cbranch_scc0 L_final
        s_waitcnt lgkmcnt(0)
        s_branch L_round
        L_redo:
        s_waitcnt lgkmcnt(0)
        s_barrier
        s_mov_b32 s{sMODE}, 1
        v_mov_b64 {vr(XF, 2)}, 0
        v_mov_b64 {vr(XF + 2, 2)}, 0
        v_add_u32 v{XF + 4}, {AB - PS}, v{STR}
        """)
        self.zero_agg(XF + 4, XF)
        a("s_branch L_round")
        self.main_loop(True, "L_after")
        a.label("L_code_end")

    def text(self):
        hdr = f"""; Fused MPNN edge-MLP kernel: P = x W1 published per tile, edges binned by destination tile,
; @launch grid=({NT},1,1) block=(1024,1,1) lds={LDS_TOTAL}
.amdgcn_target "amdgcn-amd-amdhsa--gfx950"
.text
.globl {NAME}_kernel
.p2align 8
.type {NAME}_kernel,@function
{NAME}_kernel:
"""
        ftr = f""".section .rodata,"a"
.p2align 6
.amdhsa_kernel {NAME}_kernel
  .amdhsa_next_free_vgpr 128
  .amdhsa_next_free_sgpr 102
  .amdhsa_accum_offset 128
  .amdhsa_group_segment_fixed_size 0
  .amdhsa_kernarg_size 72
  .amdhsa_user_sgpr_count 2
  .amdhsa_user_sgpr_kernarg_segment_ptr 1
  .amdhsa_system_sgpr_workgroup_id_x 1
.end_amdhsa_kernel
"""
        return hdr + self.a.text() + ftr


if __name__ == "__main__":
    out = [x for x in sys.argv[1:] if not x.startswith("--")]
    g = Gen(opts=[x[2:] for x in sys.argv[1:] if x.startswith("--")])
    g.build()
    txt = g.text()
    if g.stamps:
        txt = "; stamps: " + ",".join(g.names) + "\n" + txt
    open(out[0] if out else "cdna_kernels/%s.s" % NAME, "w").write(txt)
    print("nops inserted:", g.a.nops, "lines:", len(g.a.lines), "stamps:", g.nstamp)
```

```python
import sys
import struct
from asmlib import Asm

NAME = "gather_scatter__mpnn_edge_mlp__graph"
N, E, D = 10000, 160000, 256
T, NT, EC = 40, 250, 640

SLOT = (0, 32768, 65536, 98304)
XB = 131072
SIDE = 41984
AF2 = 41984
PILA, PILB = 158880, 162112 - 9 * 192
HIST, BASE, SORT, USC = 151552, 152576, 153600, 158720
CNTN, MISC = 160768, 161024
IL, EL, DL = 151552, 153664, 157824
QB, QS = 0, 1040
AB = XB
RING = 65536
ROFF = (0, 1024, 32768, 33792)
PS = 65536
LDS_TOTAL = 163840

W_EPOCH, W_FA, W_FB = 0, 0x1000, 0x3000
W_OFFS, W_RECS, W_UT, W_P = 0x10000, 0x90000, 0x700000, 0x200000
W_UTAG = 0x1000
W_FR = 0x8000
W_STAMP = 0x800000
WS_SIZE = 0xA00000
OOB = 0x80000000
POLL_LIMIT = 200000


def f2u(x):
    return struct.unpack("<I", struct.pack("<f", x))[0]


NLOG2E = f2u(-1.4426950408889634)
NLN2 = f2u(-0.6931471805599453)
BIG = f2u(2.0 ** 120)


def vr(a, n=1):
    return "v%d" % a if n == 1 else "v[%d:%d]" % (a, a + n - 1)


def sr(a, n=1):
    return "s%d" % a if n == 1 else "s[%d:%d]" % (a, a + n - 1)


TID, LANE = 0, 1
XA = 2
STG, GO, GO2, STR = 6, 7, 8, 9
RBA, CQ = 10, 11
ACC = 12
UF = 24
XR = 24
XF2, WF = 88, 96
AC2 = 104
XF = 56
WOFF, TR0, TR1 = 120, 121, 122
STAMPV = 123
W3 = 124
NPASS = 4
POLLB = 16
FO = 120
W3L = MISC + 64
XCNT, S1C, S2C, ACKC, BACK = MISC + 8, MISC + 12, MISC + 16, MISC + 20, MISC + 24


class Scratch:
    def __init__(self, rec, adr, rank, tmp):
        self.rec, self.adr, self.rank, self.tmp = rec, adr, rank, tmp


REC1 = [116, 118, 124, 126]
SCRP = Scratch(REC1, 12, None, 18)
SCRX = Scratch(REC1, ACC, ACC + 4, ACC + 8)
SCR2 = Scratch([24, 26, 28, 30], 40, 44, 48)
CNA = 109
PA = (56, 64)
EE = (72, 74)
IA, Q, QE, Y, TT, NN, DD = 76, 78, 86, 90, 94, 98, 102
CK2, CK1 = 106, 108
RG, IXA, EA, QA, AG, L4, L8, INFO, TM, IOF = 82, 116, 117, 112, 113, 83, 84, 118, 120, 85
TZ = 115
STG2 = 119
IX0 = 64

sT, sW = 2, 3
sX, sWM, sWU, sWS, sP, sOUT, sSRC, sDST, sEA = 4, 8, 12, 16, 20, 24, 28, 32, 36
sNL2E, sNLN2, sWK, sW1K = 58, 60, 62, 63
sMASK, sI, sNE, sREM, sTRIP, sSLOT = 64, 66, 67, 68, 69, 70
sM, sP0, sNP, sMAXC, sFIRST, sMODE = 74, 75, 76, 77, 78, 79
sVAL = 80
sA, sB, sC, sD = 88, 89, 90, 91
sEX = 42
sCO = 48
sHI, sTAG, sTLO, sGEN = 49, 52, 56, 57
sQ0, sAG0 = 44, 45
sUO, sUG, sUB, sE = 64, 65, 38, 39
sZ, sU, sRA, sRB = 6, 30, 29, 31
sTM, sHB, sW11 = 28, 69, 39
sHB2 = sHB


class Gen:
    def __init__(self, opts=()):
        self.opts = set(opts)
        self.a = Asm()
        self.stamps = "stamps" in self.opts
        self.nstamp = 0
        self.names = []
        self.lq = []
        self.q = {"L": [], "N": []}

    def opt(self, name, default):
        for o in self.opts:
            if o.startswith(name + "="):
                return int(o.split("=")[1])
        return default

    STAMP_REGS = [92, 94, 96, 98, 100, 50, 54, 4, 12, 14, 32, 34, 36]

    def stampval(self, name, sreg):
        sel = [o[3:].split("+") for o in self.opts if o.startswith("st=")]
        if not self.stamps or not sel or name not in sel[0]:
            return
        k = self.nstamp
        self.nstamp += 1
        self.names.append("=" + name)
        self.a(f"s_add_u32 s{self.STAMP_REGS[k]}, s{sreg}, 1")

    def stamp(self, name):
        if not self.stamps:
            return
        sel = [o[3:].split("+") for o in self.opts if o.startswith("st=")]
        if name not in ("start", "end") and sel and name not in sel[0]:
            return
        k = self.nstamp
        self.nstamp += 1
        self.names.append(name)
        if "dbg" in self.opts:
            self.a(f"s_memrealtime {sr(self.STAMP_REGS[k], 2)}")
            if name == "end":
                a = self.a
                a("s_load_dwordx2 s[40:41], s[0:1], 56\ns_waitcnt lgkmcnt(0)")
                a(f"s_not_b32 s44, s{self.STAMP_REGS[0]}\nv_writelane_b32 v{STAMPV}, s44, 15")
                for i in range(self.nstamp):
                    a(f"v_writelane_b32 v{STAMPV}, s{self.STAMP_REGS[i]}, {i}")
                a(f"""
                s_mov_b32 s42, 64
                s_mov_b32 s43, 0x20000
                v_lshlrev_b32 v{TM}, 2, v{LANE}
                s_cmp_eq_u32 s{sW}, 0
                s_cbranch_scc0 L_end
                buffer_atomic_umax v{STAMPV}, v{TM}, s[40:43], 0 offen
                s_branch L_end
                """)
            return
        if name == "start":
            self.a(f"v_writelane_b32 v{STAMPV}, s86, 0")
            return
        if name in ("start", "end"):
            self.a(f"""
            s_memrealtime s[40:41]
            s_waitcnt lgkmcnt(0)
            v_writelane_b32 v{STAMPV}, s40, {0 if name == "start" else 1}
            """)
        self.a(f"s_memtime {sr(self.STAMP_REGS[k], 2)}")
        if name == "end":
            self.a("s_waitcnt lgkmcnt(0)")
            for i in range(self.nstamp):
                self.a(f"v_writelane_b32 v{STAMPV}, s{self.STAMP_REGS[i]}, {32 + i}")

    def vm(self, roles, tag, n=1):
        for r in roles:
            self.q[r] += [tag] * n

    def vmwait(self, tags):
        need = {}
        for r, lst in self.q.items():
            last = max((i for i, t in enumerate(lst) if t in tags), default=None)
            if last is None:
                need[r] = None
            else:
                need[r] = len(lst) - 1 - last
                self.q[r] = lst[last + 1:]
        a = self.a
        if need["L"] == need["N"]:
            if need["L"] is not None:
                a(f"s_waitcnt vmcnt({need['L']})")
            return
        lab = a.newlabel("vw")
        if need["N"] is None:
            a(f"s_cmp_lt_u32 s{sW}, 8\ns_cbranch_scc1 {lab}\ns_waitcnt vmcnt({need['L']})\n{lab}:")
        elif need["L"] is None:
            a(f"s_cmp_ge_u32 s{sW}, 8\ns_cbranch_scc1 {lab}\ns_waitcnt vmcnt({need['N']})\n{lab}:")
        elif need["L"] > need["N"]:
            a(f"s_waitcnt vmcnt({need['L']})\ns_cmp_ge_u32 s{sW}, 8\ns_cbranch_scc1 {lab}\ns_waitcnt vmcnt({need['N']})\n{lab}:")
        else:
            a(f"s_waitcnt vmcnt({need['N']})\ns_cmp_lt_u32 s{sW}, 8\ns_cbranch_scc1 {lab}\ns_waitcnt vmcnt({need['L']})\n{lab}:")

    def lwait(self, tag):
        last = max(i for i, t in enumerate(self.lq) if t == tag)
        self.a(f"s_waitcnt lgkmcnt({len(self.lq) - 1 - last})")
        self.lq = self.lq[last + 1:]

    def barrier(self, name, lgkm=True):
        for o in self.opts:
            if o.startswith("padat=") and o.split("=")[1].split(":")[0] == name:
                self.a(f"""
                L_padat:
                s_memrealtime s[98:99]
                s_waitcnt lgkmcnt(0)
                s_sub_u32 s98, s98, s96
                s_cmp_lt_u32 s98, {o.split(":")[1]}
                s_cbranch_scc1 L_padat
                """)
        if lgkm:
            self.a("s_waitcnt lgkmcnt(0)")
        self.a("s_barrier")
        self.stamp(name)

    def dma_body(self, k, slot, role="L"):
        a = self.a
        if f"noc{k}" in self.opts:
            for m in range(4):
                a(f"s_mov_b32 m0, {USC + 1024}\ns_mov_b32 s{sB}, {OOB}\nbuffer_load_dwordx4 v{WOFF}, {sr(sWM, 4)}, s{sB} offen lds")
            self.vm(role, f"c{k}", 4)
            return
        srd, base = ((sWM, 0), (sWM, 131072))[k // 4]
        c = k % 4
        for m in range(4):
            a(f"""
            s_add_u32 m0, s{sW1K}, {SLOT[slot] + m * 8192}
            s_mov_b32 s{sB}, {base + c * 32768 + m * 8192}
            buffer_load_dwordx4 v{WOFF}, {sr(srd, 4)}, s{sB} offen lds
            """)
        self.vm(role, f"c{k}", 4)

    def dma_all(self, k, slot, m):
        a = self.a
        srd, base = ((sWM, 0), (sWM, 131072))[k // 4]
        a(f"""
        s_add_u32 m0, s{sWK}, {SLOT[slot] + m * 16384}
        s_add_u32 s{sB}, s{sHI}, {base + (k % 4) * 32768 + m * 16384}
        buffer_load_dwordx4 v{WOFF}, {sr(srd, 4)}, s{sB} offen lds
        """)
        self.vm("LN", f"c{k}")

    def spin(self, ctr, target, tmp, extra=None):
        a = self.a
        lab = a.newlabel("spin")
        a(f"v_mov_b32 v{tmp}, {ctr}")
        a.label(lab)
        a(f"ds_read_b32 v{tmp + 1}, v{tmp}")
        if extra:
            a(extra)
        a(f"""
        s_waitcnt lgkmcnt(0)
        v_readfirstlane_b32 s{sA}, v{tmp + 1}
        s_nop 0
        s_cmp_lt_u32 s{sA}, {target}
        s_cbranch_scc1 {lab}
        """)

    def xspin(self, shift):
        a = self.a
        lab = a.newlabel("xs")
        a(f"""
        {lab}:
        ds_read_b32 v{WF + 1}, v{WF}
        s_waitcnt lgkmcnt(0)
        v_readfirstlane_b32 s{sA}, v{WF + 1}
        s_nop 0
        s_bfe_u32 s{sA}, s{sA}, {shift | (4 << 16)}
        s_cmp_lt_u32 s{sA}, 8
        s_cbranch_scc0 {lab}_ok
        s_sleep 1
        s_branch {lab}
        {lab}_ok:
        """)

    def touch(self):
        a = self.a
        l2, done = a.newlabel("tw2"), a.newlabel("tdone")
        a(f"""
        s_lshr_b32 s{sA}, s{sT}, 3
        s_lshl_b32 s{sA}, s{sA}, 12
        s_mov_b32 m0, {USC + 1024}
        v_lshlrev_b32 v{W3 + 2}, 4, v{LANE}
        s_cmp_eq_u32 s{sW}, 5
        s_cbranch_scc0 {l2}
        """)
        for m in range(4):
            a(f"s_add_u32 s{sB}, s{sA}, {1024 * m}\nbuffer_load_dwordx4 v{W3 + 2}, {sr(sWU, 4)}, s{sB} offen lds")
        a(f"s_branch {done}\n{l2}:\ns_cmp_eq_u32 s{sW}, 6\ns_cbranch_scc0 {done}")
        for m in range(4):
            a(f"s_add_u32 s{sB}, s{sA}, {131072 + 1024 * m}\nbuffer_load_dwordx4 v{W3 + 2}, {sr(sWM, 4)}, s{sB} offen lds")
        a.label(done)

    def xpreload(self, ua):
        a = self.a
        a(f"""
        v_mov_b32 v{WF}, {XCNT}
        s_cmp_ge_u32 s{sW}, 8
        s_cbranch_scc1 L_xp_a
        v_mov_b32 v{W3 + 3}, 1
        s_waitcnt vmcnt(3)
        s_cmp_lt_u32 s{sW}, 4
        s_cbranch_scc1 L_xp_s0
        s_waitcnt vmcnt(2)
        s_cmp_lt_u32 s{sW}, 7
        s_cbranch_scc1 L_xp_s0
        s_waitcnt vmcnt(1)
        L_xp_s0:
        s_mov_b64 exec, 1
        ds_add_u32 v{WF}, v{W3 + 3}
        s_mov_b64 exec, -1
        L_xp_a:
        """)
        self.xspin(0)
        self.stamp("xa")
        for s in range(8):
            a(f"ds_read_b128 {vr(XR + 4 * s, 4)}, v{XA + (s & 3)} offset:{(s >> 2) * 256}")
        a(f"""
        s_cmp_ge_u32 s{sW}, 8
        s_cbranch_scc1 L_xp_go
        v_mov_b32 v{W3 + 3}, 16
        s_waitcnt vmcnt(1)
        s_cmp_lt_u32 s{sW}, 7
        s_cbranch_scc1 L_xp_s1
        s_waitcnt vmcnt(0)
        L_xp_s1:
        s_mov_b64 exec, 1
        ds_add_u32 v{WF}, v{W3 + 3}
        s_mov_b64 exec, -1
        s_sub_u32 s{sA}, s{sW}, 5
        s_cmp_lt_u32 s{sA}, 2
        s_cbranch_scc0 L_xp_go
        s_lshl_b32 s{sA}, s{sA}, 10
        s_add_u32 s{sA}, s{sA}, {SLOT[3]}
        v_add_u32 v{ua}, s{sA}, v{ua}
        v_lshlrev_b32 v{W3 + 2}, 4, v{LANE}
        s_waitcnt vmcnt(0)
        ds_read_b64_tr_b16 {vr(AC2 + 4, 2)}, v{ua}
        ds_read_b64_tr_b16 {vr(AC2 + 6, 2)}, v{ua} offset:128
        s_waitcnt lgkmcnt(0)
        buffer_store_dwordx4 {vr(AC2 + 4, 4)}, v{W3 + 2}, {sr(sWS, 4)}, s{sUO} offen sc1
        L_xp_go:
        """)
        self.xspin(4)
        self.stamp("xb")
        for s in range(8):
            a(f"ds_read_b128 {vr(XR + 32 + 4 * s, 4)}, v{XA + (s & 3)} offset:{8192 + (s >> 2) * 256}")
        self.xreads(0)
        a(f"s_cmp_lt_u32 s{sW}, 8\ns_cbranch_scc1 L_xp_c2")
        self.dma_body(1, 1)
        a("s_branch L_xp_done\nL_xp_c2:")
        self.dma_body(2, 2, "N")
        a.label("L_xp_done")

    def xreads(self, c):
        a = self.a
        for sp in range(2):
            s = 2 * c + sp
            a(f"ds_read_b128 {vr(XF2 + 4 * sp, 4)}, v{XA + (s & 3)} offset:{2 * 8192 + (s >> 2) * 256}")

    def trreads(self, slot):
        a = self.a
        base = SLOT[slot]
        tr = TR0 if base < 65536 else TR1
        for sp in range(2):
            for p in range(2):
                a(f"ds_read_b64_tr_b16 {vr(WF + 4 * sp + 2 * p, 2)}, v{tr} offset:{(base & 65535) + 16384 * sp + 2048 * p}")

    def mfmas(self, acc, c, between=None):
        a = self.a
        for sp in range(2):
            if between:
                between(sp)
            a(f"s_waitcnt lgkmcnt({2 - 2 * sp})")
            for rb in range(3):
                cin = "0" if (c == 0 and sp == 0) else vr(acc + 4 * rb, 4)
                b = XR + 32 * rb + 4 * (2 * c + sp) if rb < 2 else XF2 + 4 * sp
                a(f"v_mfma_f32_16x16x32_bf16 {vr(acc + 4 * rb, 4)}, {vr(WF + 4 * sp, 4)}, {vr(b, 4)}, {cin}")

    def scan(self, v):
        a = self.a
        for sh in (1, 2, 4, 8):
            a(f"v_add_u32_dpp v{v}, v{v}, v{v} row_shr:{sh} row_mask:0xf bank_mask:0xf bound_ctrl:0")
        a(f"v_add_u32_dpp v{v}, v{v}, v{v} row_bcast:15 row_mask:0xa bank_mask:0xf")
        a(f"v_add_u32_dpp v{v}, v{v}, v{v} row_bcast:31 row_mask:0xc bank_mask:0xf")

    def poll_issue(self):
        a = self.a
        if "repl" not in self.opts:
            a(f"v_lshlrev_b32 v14, 5, v{LANE}\ns_mov_b32 s{sB}, {W_FB}\ns_mov_b32 s{sD}, {W_FB + 4096}")
            for k in range(4):
                a(f"buffer_load_dwordx2 {vr(POLLB + 2 * k, 2)}, v14, {sr(sWS, 4)}, s{sB if k < 2 else sD} offen offset:{2048 * (k & 1)} sc1")
            return
        a(f"v_lshlrev_b32 v14, 4, v{LANE}\ns_and_b32 s{sB}, s{sT}, 7\ns_lshl_b32 s{sB}, s{sB}, 12\ns_add_u32 s{sB}, s{sB}, {W_FR}")
        for k in range(4):
            a(f"buffer_load_dwordx2 {vr(POLLB + 2 * k, 2)}, v14, {sr(sWS, 4)}, s{sB} offen offset:{1024 * k} sc1")

    def poll_wait(self):
        a = self.a
        lp, chk, done = a.newlabel("poll"), a.newlabel("pchk"), a.newlabel("pdone")
        a(f"s_mov_b32 s{sC}, 0\ns_branch {chk}")
        a.label(lp)
        self.poll_issue()
        a.label(chk)
        m58 = (1 << (NT - 192)) - 1
        a(f"""
        s_waitcnt vmcnt(0)
        v_cmp_ne_u64 s[40:41], {sr(sTAG, 2)}, {vr(POLLB, 2)}
        v_cmp_ne_u64 vcc, {sr(sTAG, 2)}, {vr(POLLB + 2, 2)}
        v_cmp_ne_u64 s[88:89], {sr(sTAG, 2)}, {vr(POLLB + 4, 2)}
        v_cmp_ne_u64 s[46:47], {sr(sTAG, 2)}, {vr(POLLB + 6, 2)}
        s_nop 1
        s_and_b32 s47, s47, {m58 >> 32}
        s_or_b64 s[40:41], s[40:41], vcc
        s_or_b64 s[46:47], s[88:89], s[46:47]
        s_or_b64 s[40:41], s[40:41], s[46:47]
        s_cbranch_scc0 {done}
        s_add_u32 s{sC}, s{sC}, 1
        s_cmp_lt_u32 s{sC}, {POLL_LIMIT}
        s_cbranch_scc1 {lp}
        """)
        a.label(done)

    def tag_store(self, soff, tmp):
        a = self.a
        a(f"""
        v_mov_b32 v{tmp}, s{sTAG}
        v_mov_b32 v{tmp + 1}, s{sTAG + 1}
        v_lshlrev_b32 v{tmp + 2}, 24, v{LANE}
        buffer_store_dwordx2 {vr(tmp, 2)}, v{tmp + 2}, {sr(sWS, 4)}, s{soff} offen sc1
        """)

    def wave0(self, fn):
        a = self.a
        lab = a.newlabel("w0")
        a(f"s_cmp_eq_u32 s{sW}, 0\ns_cbranch_scc0 {lab}")
        fn()
        a.label(lab)

    def edge(self, pb, which, exact, first):
        a = self.a
        if "noedge" in self.opts:
            return
        p = PA[pb] + 4 * which
        sel = "op_sel:[1,0,0] op_sel_hi:[1,1,1]" if which else "op_sel:[0,0,0] op_sel_hi:[0,1,1]"
        y = NN if (first and not exact) else Y
        for h in range(2):
            a(f"v_pk_fma_f32 {vr(QE + 2 * h, 2)}, {vr(EE[pb], 2)}, {vr(W3 + 2 * h, 2)}, {vr(Q + 2 * h, 2)} {sel}")
        for h in range(2):
            a(f"v_pk_add_f32 {vr(y + 2 * h, 2)}, {vr(p + 2 * h, 2)}, {vr(QE + 2 * h, 2)}")
        for r in range(4):
            a(f"v_exp_f32 v{TT + r}, v{y + r}")
        if exact:
            for h in range(2):
                a(f"v_pk_add_f32 {vr(TT + 2 * h, 2)}, {vr(TT + 2 * h, 2)}, 1.0 op_sel_hi:[1,0]")
            for r in range(4):
                a(f"v_rcp_f32 v{TT + r}, v{TT + r}")
            for h in range(2):
                if first:
                    a(f"v_pk_mul_f32 {vr(NN + 2 * h, 2)}, {vr(Y + 2 * h, 2)}, {vr(TT + 2 * h, 2)}")
                else:
                    a(f"v_pk_fma_f32 {vr(NN + 2 * h, 2)}, {vr(Y + 2 * h, 2)}, {vr(TT + 2 * h, 2)}, {vr(NN + 2 * h, 2)}")
        elif first:
            for h in range(2):
                a(f"v_pk_add_f32 {vr(DD + 2 * h, 2)}, {vr(TT + 2 * h, 2)}, 1.0 op_sel_hi:[1,0]")
        else:
            for h in range(2):
                a(f"v_pk_fma_f32 {vr(NN + 2 * h, 2)}, {vr(NN + 2 * h, 2)}, {vr(TT + 2 * h, 2)}, {vr(NN + 2 * h, 2)}")
            for h in range(2):
                a(f"v_pk_fma_f32 {vr(NN + 2 * h, 2)}, {vr(Y + 2 * h, 2)}, {vr(DD + 2 * h, 2)}, {vr(NN + 2 * h, 2)}")
            for h in range(2):
                a(f"v_pk_fma_f32 {vr(DD + 2 * h, 2)}, {vr(DD + 2 * h, 2)}, {vr(TT + 2 * h, 2)}, {vr(DD + 2 * h, 2)}")

    def pair(self, pb):
        a = self.a
        p = PA[pb]
        lo, hi = "op_sel:[0,0,0] op_sel_hi:[0,1,1]", "op_sel:[1,0,0] op_sel_hi:[1,1,1]"

        def qe(dst, h, sel):
            return f"v_pk_fma_f32 {vr(dst + 2 * h, 2)}, {vr(EE[pb], 2)}, {vr(W3 + 2 * h, 2)}, {vr(Q + 2 * h, 2)} {sel}"

        def nt(t, h):
            return f"v_pk_fma_f32 {vr(NN + 2 * h, 2)}, {vr(NN + 2 * h, 2)}, {vr(t + 2 * h, 2)}, {vr(NN + 2 * h, 2)}"

        def yd(y, h):
            return f"v_pk_fma_f32 {vr(NN + 2 * h, 2)}, {vr(y + 2 * h, 2)}, {vr(DD + 2 * h, 2)}, {vr(NN + 2 * h, 2)}"

        def dt(t, h):
            return f"v_pk_fma_f32 {vr(DD + 2 * h, 2)}, {vr(DD + 2 * h, 2)}, {vr(t + 2 * h, 2)}, {vr(DD + 2 * h, 2)}"

        seq = [qe(Y, 0, lo), qe(Y, 1, lo), qe(QE, 0, hi), qe(QE, 1, hi)]
        seq += [f"v_pk_add_f32 {vr(Y + 2 * h, 2)}, {vr(p + 2 * h, 2)}, {vr(Y + 2 * h, 2)}" for h in range(2)]
        seq += [f"v_pk_add_f32 {vr(QE + 2 * h, 2)}, {vr(p + 4 + 2 * h, 2)}, {vr(QE + 2 * h, 2)}" for h in range(2)]
        seq += [f"v_exp_f32 v{TT + r}, v{Y + r}" for r in range(4)]
        seq += [f"v_exp_f32 v{p + r}, v{QE + r}" for r in range(2)]
        seq += [nt(TT, 0), nt(TT, 1)]
        seq += [f"v_exp_f32 v{p + 2}, v{QE + 2}", yd(Y, 0), yd(Y, 1), f"v_exp_f32 v{p + 3}, v{QE + 3}", dt(TT, 0), dt(TT, 1)]
        seq += [nt(p, 0), nt(p, 1), yd(QE, 0), yd(QE, 1), dt(p, 0), dt(p, 1)]
        for x in seq:
            a(x)

    def side_add(self, src, tag):
        self.a(f"""
        s_cmp_eq_u32 s{sCO}, 0
        s_cbranch_scc1 L_noside_{tag}
        s_lshl_b32 s{sA}, s{sW}, 9
        s_add_u32 s{sA}, s{sA}, {(SIDE + 512) ^ AB}
        v_xor_b32 v{QA}, s{sA}, v{L8}
        s_mov_b32 s{sC}, 0
        L_side_{tag}:
        ds_read_b64 {vr(TT, 2)}, v{QA}
        s_add_u32 s{sC}, s{sC}, 1
        s_waitcnt lgkmcnt(0)
        v_cmp_eq_u64 vcc, -1, {vr(TT, 2)}
        s_cmp_gt_u32 s{sC}, 40000
        s_cbranch_scc1 L_side_go_{tag}
        s_cbranch_vccnz L_side_{tag}
        L_side_go_{tag}:
        v_lshlrev_b32 v{QE}, 16, v{TT}
        v_and_b32 v{QE + 1}, 0xffff0000, v{TT}
        v_lshlrev_b32 v{QE + 2}, 16, v{TT + 1}
        v_and_b32 v{QE + 3}, 0xffff0000, v{TT + 1}
        v_pk_add_f32 {vr(src, 2)}, {vr(src, 2)}, {vr(QE, 2)}
        v_pk_add_f32 {vr(src + 2, 2)}, {vr(src + 2, 2)}, {vr(QE + 2, 2)}
        L_noside_{tag}:
        """)

    def f32_row(self, key, dst):
        self.a(f"""
        s_lshr_b32 s{dst}, s{key}, 9
        s_cmp_lt_u32 s{dst}, 20
        s_cselect_b32 s{sA}, {AB // 1024}, {AF2 // 1024 - 20}
        s_add_u32 s{dst}, s{dst}, s{sA}
        s_lshl_b32 s{dst}, s{dst}, 10
        """)

    def flush(self, exact, mid=None, final=False):
        a = self.a
        if exact:
            if mid:
                mid()
            acc, done = a.newlabel("facc"), a.newlabel("fdone")
            a(f"s_cmp_eq_u32 s{sMODE}, 2\ns_cbranch_scc1 {acc}")
            if final:
                self.side_add(NN, "x")
            a(f"""
            v_cvt_pk_bf16_f32 v{TT}, v{NN}, v{NN + 1}
            v_cvt_pk_bf16_f32 v{TT + 1}, v{NN + 2}, v{NN + 3}
            ds_write_b64 v{AG}, {vr(TT, 2)}
            v_xor_b32 v{AG}, s{sD}, v{L8}
            s_branch {done}
            {acc}:
            """)
            for r in range(4):
                a(f"ds_add_f32 v{AG}, v{NN + r} offset:{256 * r}")
            if not final:
                self.f32_row(sD, sD)
                a(f"v_add_u32 v{AG}, s{sD}, v{L4}")
            a(f"{done}:\ns_waitcnt lgkmcnt(0)")
            return
        for r in range(4):
            a(f"v_rcp_f32 v{TT + r}, v{DD + r}")
        if mid:
            mid()
        a(f"v_max3_f32 v{CK1}, v{CK1}, v{DD}, v{DD + 1}")
        a(f"v_max3_f32 v{CK1}, v{CK1}, v{DD + 2}, v{DD + 3}")
        for h in range(2):
            a(f"v_pk_mul_f32 {vr(Y + 2 * h, 2)}, {vr(NN + 2 * h, 2)}, {vr(TT + 2 * h, 2)}")
        for h in range(2):
            a(f"v_pk_fma_f32 {vr(CK2, 2)}, {vr(Y + 2 * h, 2)}, 0, {vr(CK2, 2)} op_sel_hi:[1,0,1]")
        if final:
            self.side_add(Y, "f")
        a(f"v_cvt_pk_bf16_f32 v{TT}, v{Y}, v{Y + 1}")
        a(f"v_cvt_pk_bf16_f32 v{TT + 1}, v{Y + 2}, v{Y + 3}")
        a(f"ds_write_b64 v{AG}, {vr(TT, 2)}")
        if not final:
            a(f"v_xor_b32 v{AG}, s{sD}, v{L8}\ns_waitcnt lgkmcnt(1)")

    def p_reads(self, pb, slot):
        a = self.a
        for row in range(2):
            for r in range(4):
                a(f"ds_read_u16_d16_hi v{PA[pb] + 4 * row + r}, v{RG} offset:{ROFF[slot] + row * 512 + r * 128}")

    def gather(self, slot):
        if "nodma" in self.opts:
            return
        self.a(f"""
        s_mov_b32 m0, s{sSLOT + slot}
        buffer_load_dwordx4 {vr(IA, 2)}, {sr(sP, 4)}, 0 idxen offen sc1 lds
        """)

    def reads(self, jj):
        a = self.a
        pb = jj & 1
        self.p_reads(pb ^ 1, (jj + 1) & 3)
        a(f"ds_read_b64 {vr(EE[pb ^ 1], 2)}, v{EA} offset:{8 * (jj + 1)}")
        a(f"ds_read_u16 v{IA}, v{IXA} offset:{4 * (jj + 5)}")

    def main_loop(self, exact, exit_label):
        a = self.a
        tag = "x" if exact else "f"
        loop, fin = f"L_loop_{tag}", f"L_fin_{tag}"
        prio = not exact and "noprio" not in self.opts
        a.label(loop)
        for jj in range(4):
            a(f"s_and_b32 s{sA}, s{sTM}, {3 << (2 * jj)}\ns_cbranch_scc1 L_blk_{tag}_{jj}\ns_waitcnt vmcnt(3)")
            self.reads(jj)
            if exact or "noil" in self.opts or "noedge" in self.opts:
                self.edge(jj & 1, 0, exact, False)
                self.edge(jj & 1, 1, exact, False)
            else:
                self.pair(jj & 1)
            a.label(f"L_back_{tag}_{jj}")
            a(f"s_mov_b32 m0, s{sSLOT + ((jj + 1) & 3)}\ns_waitcnt lgkmcnt(0)")
            if "nodma" not in self.opts:
                a(f"buffer_load_dwordx4 {vr(IA, 2)}, {sr(sP, 4)}, 0 idxen offen sc1 lds")
        a(f"""
        v_add_u32 v{IXA}, 16, v{IXA}
        v_add_u32 v{EA}, 32, v{EA}
        s_lshr_b64 {sr(sMASK, 2)}, {sr(sMASK, 2)}, 8
        s_or_b32 s{sMASK + 1}, s{sMASK + 1}, s{sHB}
        s_mov_b32 s{sHB}, 0
        s_mov_b32 s{sTM}, s{sMASK}
        s_add_u32 s{sI}, s{sI}, 8
        """)
        t2, t1, t0 = self.opt("p2", 12), self.opt("p1", 8), self.opt("p0", 4)
        tu = self.opt("tu", 12)
        a(f"s_sub_u32 s{sREM}, s{sREM}, 4\ns_cmp_gt_i32 s{sREM}, {t2}\ns_cbranch_scc1 {loop}")
        if "u2early" not in self.opts and "nou2" not in self.opts:
            a(f"""
            s_cmp_gt_i32 s{sREM}, {tu}
            s_cbranch_scc1 L_nou2_{tag}
            s_cmp_eq_u32 s{sW11}, -1
            s_cbranch_scc0 L_nou2_{tag}
            """)
            self.u2_loads()
            a(f"s_mov_b32 s{sW11}, s{sI}\ns_or_b32 s{sTM}, s{sTM}, 0xff\nL_nou2_{tag}:")
        if prio:
            a(f"""
            s_setprio 2
            s_cmp_gt_i32 s{sREM}, {t1}
            s_cbranch_scc1 {loop}
            s_setprio 1
            s_cmp_gt_i32 s{sREM}, {t0}
            s_cbranch_scc1 {loop}
            s_setprio 0
            """)
        a(f"s_branch {loop}")
        for jj in range(4):
            pb = jj & 1
            b = f"L_blk_{tag}_{jj}"
            a.reset_hist()
            a(f"""
            {b}:
            s_waitcnt vmcnt(11)
            s_cmp_eq_u32 s{sI}, s{sW11}
            s_cbranch_scc1 {b}_w
            s_waitcnt vmcnt(3)
            {b}_w:
            """)
            self.reads(jj)
            a(f"s_bitcmp1_b32 s{sMASK}, {2 * jj}\ns_cbranch_scc1 {b}_f0")
            self.edge(pb, 0, exact, False)
            a(f"{b}_a:\ns_bitcmp1_b32 s{sMASK}, {2 * jj + 1}\ns_cbranch_scc1 {b}_f1")
            self.edge(pb, 1, exact, False)
            a(f"s_branch L_back_{tag}_{jj}")
            for which in range(2):
                a.reset_hist()
                a(f"""
                {b}_f{which}:
                s_add_u32 s{sA}, s{sI}, {2 * jj + which}
                s_cmp_eq_u32 s{sA}, s{sNE}
                s_cbranch_scc1 {fin}
                v_readlane_b32 s{sB}, v{INFO}, s{sA}
                """)

                def mid():
                    a(f"""
                    s_and_b32 s{sC}, s{sB}, 0xffff
                    s_lshr_b32 s{sD}, s{sB}, 16
                    v_add_u32 v{QA}, s{sC}, v{L4}
                    ds_read2st64_b32 {vr(Q, 2)}, v{QA} offset0:0 offset1:1
                    ds_read2st64_b32 {vr(Q + 2, 2)}, v{QA} offset0:2 offset1:3
                    """)

                self.flush(exact, mid)
                self.edge(pb, which, exact, True)
                a(f"s_branch {b + '_a' if which == 0 else f'L_back_{tag}_{jj}'}")
        a.reset_hist()
        a.label(fin)
        self.flush(exact, final=True)
        if "u2early" not in self.opts:
            a(f"s_cmp_eq_u32 s{sW11}, -1\ns_cbranch_scc0 {exit_label}")
            self.u2_loads()
        a(f"s_branch {exit_label}")

    def zero_agg(self, addr, zq):
        a = self.a
        lab = a.newlabel("zagg")
        a(f"""
        ds_write_b128 v{addr}, {vr(zq, 4)}
        s_cmp_lt_u32 s{sW}, 4
        s_cbranch_scc0 {lab}
        ds_write_b128 v{addr}, {vr(zq, 4)} offset:16384
        {lab}:
        """)

    def u2_loads(self):
        a = self.a
        a(f"""
        s_lshl_b32 s{sA}, s{sW}, 14
        s_add_u32 s{sA}, s{sA}, {W_UT + 8192}
        s_add_u32 s{sB}, s{sA}, 4096
        v_lshlrev_b32 v{TM}, 4, v{LANE}
        """)
        for s in range(8):
            so = sA if s < 4 else sB
            a(f"buffer_load_dwordx4 {vr(UF + 4 * s, 4)}, v{TM}, {sr(sWS, 4)}, s{so} offen offset:{(s & 3) * 1024} sc1")

    def hi_passes(self, fn):
        a = self.a
        fn(0)
        fn(1)
        lab = a.newlabel("hp")
        a(f"s_cmp_eq_u64 {sr(sVAL + 4, 2)}, 0\ns_cbranch_scc1 {lab}")
        fn(2)
        fn(3)
        a.label(lab)

    def rec_issue(self, S):
        a = self.a
        a(f"""
        s_lshl_b32 s{sA}, s{sP0}, 2
        s_lshl_b32 s{sB}, s{sP0}, 5
        v_mov_b32 v{S.tmp}, {OOB}
        s_add_u32 s{sC}, s{sA}, 4
        s_add_u32 s{sD}, s{sA}, 8
        v_cmp_lt_i32 {sr(sVAL, 2)}, s{sA}, v{CQ}
        s_add_u32 s{sA}, s{sA}, 12
        v_cmp_lt_i32 {sr(sVAL + 2, 2)}, s{sC}, v{CQ}
        v_cmp_lt_i32 {sr(sVAL + 4, 2)}, s{sD}, v{CQ}
        v_cmp_lt_i32 {sr(sVAL + 6, 2)}, s{sA}, v{CQ}
        s_cmp_gt_u32 s{sNP}, 1
        s_cselect_b64 {sr(sVAL + 2, 2)}, {sr(sVAL + 2, 2)}, 0
        s_cselect_b64 {sr(sVAL + 4, 2)}, {sr(sVAL + 4, 2)}, 0
        s_cselect_b64 {sr(sVAL + 6, 2)}, {sr(sVAL + 6, 2)}, 0
        """)
        lab = a.newlabel("hp")
        a(f"s_cmp_eq_u64 {sr(sVAL + 4, 2)}, 0\ns_cbranch_scc1 {lab}")
        for k in (2, 3, 0, 1):
            if k == 0:
                a.label(lab)
            a(f"""
            v_cndmask_b32 v{S.adr + k}, v{S.tmp}, v{RBA}, {sr(sVAL + 2 * k, 2)}
            buffer_load_dwordx2 {vr(S.rec[k], 2)}, v{S.adr + k}, {sr(sWS, 4)}, s{sB} offen offset:{32 * k} sc1
            """)

    def count(self, S):
        a = self.a
        a(f"v_mov_b32 v{S.tmp}, 1\ns_mov_b32 s{sA}, {CNTN}")

        def one(k):
            a(f"""
            s_mov_b64 exec, {sr(sVAL + 2 * k, 2)}
            v_bfe_u32 v{S.adr + k}, v{S.rec[k]}, 16, 6
            v_lshl_add_u32 v{S.adr + k}, v{S.adr + k}, 2, s{sA}
            ds_add_rtn_u32 v{S.rank + k}, v{S.adr + k}, v{S.tmp}
            """)
        self.hi_passes(one)
        a("s_mov_b64 exec, -1")

    def lists(self, S, generic_label):
        a = self.a
        sc = S.tmp
        done = a.newlabel("lists")
        a(f"""
        s_mov_b32 s{sA}, {CNTN}
        v_lshl_add_u32 v{sc + 3}, v{LANE}, 2, s{sA}
        v_mov_b32 v{sc + 2}, {MISC}
        ds_read_b32 v{sc}, v{sc + 3}
        ds_read_b32 v{sc + 2}, v{sc + 2}
        s_waitcnt lgkmcnt(0)
        v_mov_b32 v{sc + 1}, v{sc}
        v_readfirstlane_b32 s{sMAXC}, v{sc + 2}
        v_cmp_eq_u32 {sr(sZ, 2)}, 0, v{sc}
        v_subrev_u32 v{sc}, {DL}, v{sc}
        """)
        self.scan(sc + 1)
        a(f"""
        v_readlane_b32 s{sM}, v{sc + 1}, 63
        v_sub_u32 v{sc + 1}, v{sc + 1}, v{sc}
        s_cmp_eq_u32 s{sNP}, {NPASS}
        s_cbranch_scc0 {done}
        s_cmp_gt_u32 s{sM}, 1024
        s_cbranch_scc1 {generic_label}
        s_cmp_eq_u32 s{sMAXC}, 0
        s_cbranch_scc0 {generic_label}
        s_cmp_lt_u32 s{sM}, 64
        s_cbranch_scc0 {done}
        s_mov_b32 s{sMODE}, 2
        {done}:
        """)
        self.hi_passes(lambda k: a(f"ds_bpermute_b32 v{S.adr + k}, v{S.adr + k}, v{sc + 1}"))
        a(f"""
        s_add_u32 s{sA}, s{sM}, 1
        s_lshr_b32 s{sA}, s{sA}, 1
        s_mul_i32 s{sB}, s{sA}, s{sW}
        s_add_u32 s{sC}, s{sB}, s{sA}
        s_lshr_b32 s{sI}, s{sB}, 4
        s_lshr_b32 s{sC}, s{sC}, 4
        s_sub_u32 s{sREM}, s{sC}, s{sI}
        s_lshl_b32 s{sC}, s{sC}, 1
        s_cmp_lt_u32 s{sC}, s{sM}
        s_cselect_b32 s{sCO}, 1, 0
        s_min_u32 s{sC}, s{sC}, s{sM}
        s_lshl_b32 s{sI}, s{sI}, 1
        s_sub_u32 s{sNE}, s{sC}, s{sI}
        s_mov_b32 s{sA}, {(IL - 2 * DL) & 0xffffffff}
        s_mov_b32 s{sB}, {(EL - 4 * DL) & 0xffffffff}
        s_waitcnt lgkmcnt(0)
        """)

        def one(k):
            a(f"""
            s_mov_b64 exec, {sr(sVAL + 2 * k, 2)}
            v_add_u32 v{S.rank + k}, v{S.rank + k}, v{S.adr + k}
            v_lshl_add_u32 v{S.adr + k}, v{S.rank + k}, 1, s{sA}
            v_lshl_add_u32 v{sc + (k & 1)}, v{S.rank + k}, 2, s{sB}
            ds_write_b8_d16_hi v{S.rank + k}, v{S.rec[k]}
            ds_write_b16 v{S.adr + k}, v{S.rec[k]}
            ds_write_b32 v{sc + (k & 1)}, v{S.rec[k] + 1}
            """)
        self.hi_passes(one)
        a("s_mov_b64 exec, -1")

    def setup(self, tm):
        a = self.a
        a(f"""
        s_add_u32 s{sD}, s{sI}, {DL - 1}
        v_add_u32 v{INFO}, s{sD}, v{LANE}
        s_lshl_b32 s{sA}, s{sI}, 1
        s_add_u32 s{sA}, s{sA}, {IL}
        v_lshl_add_u32 v{EA}, v{LANE}, 1, s{sA}
        ds_read_u16 v{tm + 3}, v{EA}
        ds_read_u8 v{tm}, v{INFO}
        ds_read_u8 v{tm + 2}, v{INFO} offset:1
        ds_read_u8 v{tm + 1}, v{INFO} offset:2
        s_cmp_lt_u32 s{sW}, 9
        s_mov_b32 s{sC}, {PILB}
        s_cselect_b32 s{sC}, {PILA}, s{sC}
        s_mul_i32 s{sB}, s{sW}, 192
        s_add_u32 s{sB}, s{sB}, s{sC}
        v_lshl_add_u32 v{INFO}, v{LANE}, 1, s{sB}
        v_mov_b32 v{tm + 4}, 0xffff
        v_cmp_gt_i32 vcc, s{sNE}, v{LANE}
        s_mov_b32 exec_hi, 0
        ds_write_b16 v{INFO}, v{tm + 4} offset:128
        s_mov_b64 exec, -1
        v_lshrrev_b32 v{IXA}, 5, v{LANE}
        v_lshl_add_u32 v{IXA}, v{IXA}, 1, s{sB}
        s_lshl_b32 s{sA}, s{sI}, 2
        s_add_u32 s{sA}, s{sA}, {EL}
        v_mov_b32 v{EA}, s{sA}
        s_waitcnt lgkmcnt(4)
        v_cndmask_b32 v{tm + 3}, v{tm + 4}, v{tm + 3}, vcc
        ds_write_b16 v{INFO}, v{tm + 3}
        """)
        for k in range(5):
            a(f"ds_read_u16 v{IX0 + k}, v{IXA} offset:{4 * k}")
        a(f"""
        s_waitcnt lgkmcnt(7)
        v_cmp_ne_u32 {sr(sMASK, 2)}, v{tm + 2}, v{tm + 1}
        v_cmp_eq_u32 vcc, v{tm + 2}, v{tm}
        v_mul_u32_u24 v{INFO}, {QS}, v{tm + 2}
        v_and_b32 v{tm + 1}, 15, v{tm + 2}
        v_lshlrev_b32 v{tm + 1}, 4, v{tm + 1}
        v_lshl_add_u32 v{tm + 1}, v{tm + 2}, 9, v{tm + 1}
        v_lshl_or_b32 v{INFO}, v{tm + 1}, 16, v{INFO}
        s_sub_u32 s{sA}, s{sNE}, 1
        s_bitcmp0_b64 {sr(sMASK, 2)}, s{sA}
        s_cselect_b32 s{sCO}, s{sCO}, 0
        s_bitset1_b64 {sr(sMASK, 2)}, s{sA}
        v_readfirstlane_b32 s{sB}, v{INFO}
        ; end-of-segment bits become start-of-segment bits; bit 64 is carried separately
        s_lshr_b32 s{sHB2}, s{sMASK + 1}, 31
        s_lshl_b32 s{sHB2}, s{sHB2}, 24
        s_lshl_b64 {sr(sMASK, 2)}, {sr(sMASK, 2)}, 1
        s_and_b32 s{sC}, vcc_lo, 1
        s_cmp_eq_u32 s{sI}, 0
        s_cselect_b32 s{sC}, 0, s{sC}
        s_cmp_lt_u32 s{sMODE}, 2
        s_cselect_b32 s{sC}, s{sC}, 0
        s_lshl_b32 s{sA}, s{sW}, 9
        s_add_u32 s{sA}, s{sA}, {SIDE ^ AB}
        s_lshr_b32 s{sD}, s{sB}, 16
        s_cmp_eq_u32 s{sC}, 0
        s_cselect_b32 s{sAG0}, s{sD}, s{sA}
        s_and_b32 s{sQ0}, s{sB}, 0xffff
        """)

    def slot_consts(self):
        self.a(f"""
        s_lshl_b32 s{sA}, s{sW}, 11
        s_add_u32 s{sSLOT}, s{sA}, {RING + ROFF[0]}
        s_add_u32 s{sSLOT + 1}, s{sA}, {RING + ROFF[1]}
        s_add_u32 s{sSLOT + 2}, s{sA}, {RING + ROFF[2]}
        s_add_u32 s{sSLOT + 3}, s{sA}, {RING + ROFF[3]}
        v_and_b32 v{IA + 1}, 31, v{LANE}
        v_lshlrev_b32 v{IA + 1}, 4, v{IA + 1}
        """)

    def lane_consts(self):
        self.a(f"""
        v_lshl_add_u32 v{RG}, v{LANE}, 1, s{sSLOT}
        v_lshlrev_b32 v{L4}, 2, v{LANE}
        v_lshlrev_b32 v{L8}, 3, v{LANE}
        v_or_b32 v{L8}, {AB}, v{L8}
        """)

    def side_fill(self, tmp, adr):
        self.a(f"""
        v_mov_b64 {vr(tmp, 2)}, -1
        s_lshl_b32 s{sA}, s{sW}, 9
        s_add_u32 s{sA}, s{sA}, {SIDE}
        v_lshl_add_u32 v{adr}, v{LANE}, 3, s{sA}
        ds_write_b64 v{adr}, {vr(tmp, 2)}
        """)

    def tag_calc(self):
        self.a(f"""
        s_waitcnt lgkmcnt(0)
        s_add_u32 s{sTAG}, s{sTAG}, 1
        s_addc_u32 s{sTAG + 1}, s{sTAG + 1}, 0
        s_lshl_b32 s{sTLO}, s{sTAG + 1}, 20
        s_lshl_b32 s{sRA}, s{sTAG}, 24
        s_bfe_u32 s{sRB}, s{sTAG}, 0x100008
        """)

    def clean(self, S):
        a = self.a
        lp, ok = a.newlabel("clean"), a.newlabel("cleanok")
        a(f"s_mov_b32 s{sM}, 0\n{lp}:\ns_mov_b64 s[40:41], 0")

        def one(k):
            a(f"""
            s_mov_b64 exec, {sr(sVAL + 2 * k, 2)}
            v_xor_b32 v{S.rec[k]}, s{sRA}, v{S.rec[k]}
            v_xor_b32 v{S.rec[k] + 1}, s{sRB}, v{S.rec[k] + 1}
            v_lshrrev_b32 v{S.adr + k}, 24, v{S.rec[k]}
            v_lshl_or_b32 v{S.adr + k}, v{S.rec[k] + 1}, 16, v{S.adr + k}
            v_cmp_ne_u32 vcc, 0, v{S.adr + k}
            s_or_b64 s[40:41], s[40:41], vcc
            """)
        self.hi_passes(one)
        a(f"""
        s_mov_b64 exec, -1
        s_cmp_eq_u64 s[40:41], 0
        s_cbranch_scc1 {ok}
        s_add_u32 s{sM}, s{sM}, 1
        s_cmp_gt_u32 s{sM}, {POLL_LIMIT}
        s_cbranch_scc1 {ok}
        """)
        self.rec_issue(S)
        a(f"s_waitcnt vmcnt(0)\ns_branch {lp}\n{ok}:")

    def binning(self):
        a = self.a
        DV, SV, EP, AD, RK, RV, H0, B0, SQ, t4, t5, t6, t7 = 24, 26, 28, 30, 32, 34, 40, 44, 48, 52, 53, 54, 56
        a(f"""
        s_mov_b32 s{sC}, -40
        s_mov_b32 s{sD}, {HIST}
        v_mov_b32 v{t4}, 1
        v_mov_b32 v{t7}, {S1C}
        v_lshlrev_b32 v{t5}, 4, v{LANE}
        v_add_u32 v{t6}, {HIST}, v{t5}
        s_setprio 3
        s_waitcnt vmcnt(3)
        s_cmp_lt_u32 s{sW}, 4
        s_cbranch_scc1 L_edges
        s_waitcnt vmcnt(2)
        L_edges:
        """)
        self.stamp("edges")
        self.tag_calc()
        R2 = range(2)
        for i in R2:
            a(f"v_mul_u32_u24 v{AD + i}, 52429, v{DV + i}")
        for i in R2:
            a(f"v_lshrrev_b32 v{AD + i}, 21, v{AD + i}")
        for i in R2:
            a(f"v_min_u32 v{RK + i}, 255, v{AD + i}")
        for i in R2:
            a(f"v_and_b32 v{AD + i}, 7, v{RK + i}\nv_lshrrev_b32 v{H0 + i}, 3, v{RK + i}")
        for i in R2:
            a(f"v_lshl_or_b32 v{AD + i}, v{AD + i}, 5, v{H0 + i}")
        for i in R2:
            a(f"v_lshl_add_u32 v{AD + i}, v{AD + i}, 2, s{sD}")
        for i in R2:
            a(f"v_mad_i32_i24 v{DV + i}, v{RK + i}, s{sC}, v{DV + i}")
            a(f"ds_add_rtn_u32 v{RK + i}, v{AD + i}, v{t4}")
        a(f"s_mov_b64 exec, 1\nds_add_u32 v{t7}, v{t4}\ns_mov_b64 exec, -1")
        for i in R2:
            a(f"v_lshl_or_b32 v{RV + 2 * i}, v{DV + i}, 16, v{SV + i}")
        a(f"""
        v_mov_b32 v{RV + 3}, 0xffff0000
        v_lshl_or_b32 v{RV + 1}, v{EP}, 16, s{sRB}
        v_and_or_b32 v{RV + 3}, v{EP}, v{RV + 3}, s{sRB}
        v_or_b32 v{RV}, s{sRA}, v{RV}
        v_or_b32 v{RV + 2}, s{sRA}, v{RV + 2}
        """)
        self.spin(S1C, 5, t7, f"ds_read_b128 {vr(H0, 4)}, v{t6}")
        a(f"""
        v_add_u32 v{B0 + 1}, v{H0}, v{H0 + 1}
        v_add_u32 v{SQ}, v{H0 + 2}, v{H0 + 3}
        v_add_u32 v{SQ}, v{SQ}, v{B0 + 1}
        v_mov_b32 v{SQ + 1}, v{SQ}
        """)
        self.scan(SQ + 1)
        a(f"""
        v_sub_u32 v{B0}, v{SQ + 1}, v{SQ}
        v_add_u32 v{B0 + 2}, v{B0}, v{B0 + 1}
        v_add_u32 v{B0 + 1}, v{B0}, v{H0}
        v_add_u32 v{B0 + 3}, v{B0 + 2}, v{H0 + 2}
        ds_write_b128 v{t6}, {vr(B0, 4)} offset:{BASE - HIST}
        ds_read_b32 v{DV}, v{AD} offset:{BASE - HIST}
        ds_read_b32 v{DV + 1}, v{AD + 1} offset:{BASE - HIST}
        s_mov_b32 s{sD}, {SORT}
        v_mov_b32 v{t7}, {S2C}
        v_lshlrev_b32 v{t5}, 4, v{TID}
        v_add_u32 v{t6}, {SORT}, v{t5}
        s_mul_i32 s{sB}, s{sT}, {EC * 8}
        s_add_u32 s{sB}, s{sB}, {W_RECS}
        s_waitcnt lgkmcnt(0)
        v_add_u32 v{DV}, v{DV}, v{RK}
        v_add_u32 v{DV + 1}, v{DV + 1}, v{RK + 1}
        v_lshl_add_u32 v{DV}, v{DV}, 3, s{sD}
        v_lshl_add_u32 v{DV + 1}, v{DV + 1}, 3, s{sD}
        ds_write_b64 v{DV}, {vr(RV, 2)}
        ds_write_b64 v{DV + 1}, {vr(RV + 2, 2)}
        s_mov_b64 exec, 1
        ds_add_u32 v{t7}, v{t4}
        s_mov_b64 exec, -1
        """)
        self.spin(S2C, 5, t7, f"ds_read_b128 {vr(SQ, 4)}, v{t6}")
        a(f"buffer_store_dwordx4 {vr(SQ, 4)}, v{t5}, {sr(sWS, 4)}, s{sB} offen sc1")
        self.stamp("binned")

    def build(self):
        a = self.a
        t0, t1, t2, t3, t4, t5, t6, t7 = range(58, 66)
        PQ = 24
        UQ = 108
        u0, u1, u2, u3 = 57, 58, 59, 60

        if self.stamps and "dbg" not in self.opts:
            a(f"s_memrealtime s[86:87]\ns_memtime {sr(self.STAMP_REGS[0], 2)}")
        if "pad0" in self.opts or any(o.startswith("padat=") for o in self.opts):
            a("s_memrealtime s[96:97]")
        EPV = W3

        def srdc(s_, nbytes):
            a(f"s_mov_b32 s{s_ + 2}, {nbytes}\ns_mov_b32 s{s_ + 3}, 0x20000")

        a(f"""
        s_load_dwordx2 {sr(sX, 2)}, s[0:1], 0
        s_load_dwordx2 {sr(sDST, 2)}, s[0:1], 24
        s_load_dwordx2 {sr(sSRC, 2)}, s[0:1], 16
        s_load_dwordx2 {sr(sEA, 2)}, s[0:1], 8
        s_getpc_b64 s[40:41]
        L_pc:
        s_cmp_ge_u32 s{sT}, {NT}
        s_cbranch_scc1 L_end
        v_lshlrev_b32 v{STR}, 4, v{TID}
        v_lshrrev_b32 v{t0}, 6, v{TID}
        v_min_u32 v{t1}, L_end-L_pc-12, v{STR}
        global_load_dwordx4 {vr(AC2 + 8, 4)}, v{t1}, s[40:41]
        v_lshrrev_b32 v{t3}, 5, v{TID}
        v_and_b32 v{t4}, 31, v{TID}
        v_readfirstlane_b32 s{sW}, v{t0}
        v_and_b32 v{t5}, 15, v{t3}
        v_xor_b32 v{t6}, v{t5}, v{t4}
        v_lshlrev_b32 v{t6}, 4, v{t6}
        s_mul_i32 s{sB}, s{sT}, {T * 512}
        v_lshl_add_u32 v{t6}, v{t3}, 9, v{t6}
        v_add_u32 v{GO}, s{sB}, v{t6}
        s_lshl_b32 s{sWK}, s{sW}, 10
        s_add_u32 m0, s{sWK}, {XB}
        s_mov_b32 s{sX + 3}, 0x20000
        s_mov_b32 s{sDST + 3}, 0x20000
        s_mov_b32 s{sSRC + 3}, 0x20000
        s_mov_b32 s{sEA + 3}, 0x20000
        s_mov_b32 s{sX + 2}, {N * 512}
        s_mov_b32 s{sDST + 2}, {E * 4}
        s_mov_b32 s{sSRC + 2}, {E * 4}
        s_mov_b32 s{sEA + 2}, {E * 2}
        v_lshlrev_b32 v{t6}, 3, v{TID}
        v_lshlrev_b32 v{t7}, 2, v{TID}
        s_mul_i32 s{sA}, s{sT}, {EC * 4}
        s_lshr_b32 s{sC}, s{sA}, 1
        s_cmp_lt_u32 s{sW}, 5
        s_waitcnt lgkmcnt(0)
        s_cbranch_scc0 L_noedge
        buffer_load_dwordx2 v[24:25], v{t6}, {sr(sDST, 4)}, s{sA} offen
        buffer_load_dwordx2 v[26:27], v{t6}, {sr(sSRC, 4)}, s{sA} offen
        buffer_load_dword v28, v{t7}, {sr(sEA, 4)}, s{sC} offen
        L_noedge:
        s_cmp_lt_u32 s{sW}, 8
        s_cbranch_scc0 L_nox
        buffer_load_dwordx4 v{GO}, {sr(sX, 4)}, 0 offen lds
        s_add_u32 m0, s{sWK}, {XB + 8192}
        s_movk_i32 s{sB}, 0x2000
        buffer_load_dwordx4 v{GO}, {sr(sX, 4)}, s{sB} offen lds
        s_cmp_lt_u32 s{sW}, 4
        s_cbranch_scc0 L_nox
        s_add_u32 m0, s{sWK}, {XB + 16384}
        s_movk_i32 s{sB}, 0x4000
        buffer_load_dwordx4 v{GO}, {sr(sX, 4)}, s{sB} offen lds
        L_nox:
        s_load_dwordx2 {sr(sWM, 2)}, s[0:1], 32
        s_load_dwordx2 {sr(sWS, 2)}, s[0:1], 64
        s_load_dwordx2 {sr(sWU, 2)}, s[0:1], 40
        s_load_dwordx2 {sr(sOUT, 2)}, s[0:1], 48
        v_and_b32 v{LANE}, 63, v{TID}
        v_mov_b32 v{t6}, 0
        v_add_u32 v{t7}, {HIST}, v{t7}
        s_cmp_lt_u32 s{sW}, 4
        s_cbranch_scc1 L_z1
        s_cmp_gt_u32 s{sW}, 5
        s_cbranch_scc1 L_z2
        v_add_u32 v{t7}, {CNTN - HIST - 1024}, v{t7}
        L_z1:
        ds_write_b32 v{t7}, v{t6}
        L_z2:
        v_and_b32 v{t6}, 3, v{t5}
        v_lshrrev_b32 v{t7}, 1, v{t5}
        v_and_b32 v{t7}, 4, v{t7}
        v_or_b32 v{t6}, v{t6}, v{t7}
        v_lshlrev_b32 v{t6}, 1, v{t6}
        v_xor_b32 v{t6}, v{t6}, v{t4}
        v_lshlrev_b32 v{t6}, 4, v{t6}
        v_lshl_add_u32 v{WOFF}, v{t5}, 9, v{t6}
        s_and_b32 s{sW1K}, s{sWK}, 0x1fff
        """)
        srdc(sWS, WS_SIZE)
        srdc(sWM, 513 * 512)
        srdc(sWU, 512 * 512)
        srdc(sOUT, N * 512)
        if self.stamps:
            a(f"v_mov_b32 v{STAMPV}, 0")
            for r in self.STAMP_REGS[1:5]:
                a(f"s_mov_b32 s{r}, 0")
        a(f"""
        s_waitcnt lgkmcnt(0)
        s_load_dwordx2 {sr(sTAG, 2)}, {sr(sWS, 2)}, {W_EPOCH}
        s_barrier
        """)
        self.stamp("start")
        self.stamp("bar0")
        a(f"""
        s_cmp_ge_u32 s{sW}, 8
        s_cbranch_scc1 L_role_l
        s_sub_u32 s{sA}, s{sW}, 5
        s_cmp_lt_u32 s{sA}, 2
        s_cbranch_scc0 L_role_done
        s_mul_i32 s{sD}, s{sA}, {NT}
        s_add_u32 s{sD}, s{sD}, s{sT}
        s_lshl_b32 s{sA}, s{sA}, 10
        s_add_u32 m0, s{sA}, {SLOT[3]}
        s_and_b32 s{sA}, s{sD}, 7
        s_bfe_u32 s{sB}, s{sD}, 0x40003
        s_lshr_b32 s{sC}, s{sD}, 7
        s_lshl_b32 s{sUO}, s{sB}, 4
        s_lshl_b32 s{sUG}, s{sC}, 3
        s_add_u32 s{sUO}, s{sUO}, s{sUG}
        s_add_u32 s{sUO}, s{sUO}, s{sA}
        s_lshl_b32 s{sUG}, s{sUO}, 5
        s_add_u32 s{sUG}, s{sUG}, {W_UTAG}
        s_lshl_b32 s{sUO}, s{sUO}, 10
        s_add_u32 s{sUO}, s{sUO}, {W_UT}
        s_lshl_b32 s{sA}, s{sA}, 5
        s_lshl_b32 s{sB}, s{sB}, 5
        s_cmp_lt_u32 s{sD}, 256
        s_cselect_b32 s{sB}, s{sB}, {OOB}
        s_cselect_b32 s{sUO}, s{sUO}, {OOB}
        s_cselect_b32 s{sUG}, s{sUG}, {OOB}
        v_lshrrev_b32 v{t6}, 1, v{LANE}
        v_add_u32 v{t6}, s{sA}, v{t6}
        v_and_b32 v{t5}, 1, v{LANE}
        v_lshlrev_b32 v{t5}, 4, v{t5}
        s_cmp_eq_u32 s{sC}, 0
        s_cbranch_scc1 L_pc_u1
        v_and_b32 v{t7}, 3, v{t6}
        v_lshrrev_b32 v{t6}, 2, v{t6}
        v_lshl_add_u32 v{t6}, v{t7}, 6, v{t6}
        v_add_u32 v{t6}, 256, v{t6}
        L_pc_u1:
        v_lshl_add_u32 v{t6}, v{t6}, 9, v{t5}
        buffer_load_dwordx4 v{t6}, {sr(sWU, 4)}, s{sB} offen lds
        s_branch L_role_done
        L_role_l:
        s_lshr_b32 s{sA}, s{sT}, 3
        s_lshl_b32 s{sA}, s{sA}, 13
        s_add_u32 s{sA}, s{sA}, s{sW1K}
        s_lshr_b32 s{sC}, s{sA}, 1
        v_lshlrev_b32 v{t7}, 3, v{LANE}
        buffer_load_dwordx2 {vr(AC2, 2)}, v{t7}, {sr(sWM, 4)}, s{sC} offen
        s_add_u32 s{sC}, s{sC}, 131072
        buffer_load_dwordx2 {vr(AC2 + 2, 2)}, v{t7}, {sr(sWM, 4)}, s{sC} offen
        s_cmp_eq_u32 s{sW}, 15
        s_cbranch_scc0 L_role_done
        s_mov_b32 m0, {W3L}
        v_lshlrev_b32 v{t7}, 4, v{LANE}
        s_mov_b32 s{sB}, {512 * 512}
        buffer_load_dwordx4 v{t7}, {sr(sWM, 4)}, s{sB} offen lds
        L_role_done:
        """)
        UA = W3 - 9 - 5
        a(f"""
        s_add_u32 s{sP}, s{sWS}, {W_P}
        s_addc_u32 s{sP + 1}, s{sWS + 1}, 0
        s_or_b32 s{sP + 1}, s{sP + 1}, {512 << 16}
        s_mov_b32 s{sP + 2}, {N}
        s_mov_b32 s{sP + 3}, 0x20000
        s_mov_b32 s{sNL2E}, {NLOG2E}
        s_mov_b32 s{sNL2E + 1}, {NLOG2E}
        s_mov_b32 s{sNLN2}, {NLN2}
        s_mov_b32 s{sNLN2 + 1}, {NLN2}
        s_lshr_b32 s{sHI}, s{sW}, 3
        s_lshl_b32 s{sHI}, s{sHI}, 13
        s_mov_b32 s{sGEN}, 0
        v_and_b32 v{t0}, 15, v{LANE}
        v_lshrrev_b32 v{t1}, 4, v{LANE}
        v_bfe_u32 v{t2}, v{LANE}, 2, 2
        v_and_b32 v{t3}, 3, v{LANE}
        s_lshl_b32 s{sB}, s{sW}, 1
        v_and_b32 v{t4}, 1, v{t1}
        v_lshl_or_b32 v{t4}, v{t4}, 2, v{t2}
        v_lshlrev_b32 v{t4}, 1, v{t4}
        v_lshrrev_b32 v{t5}, 1, v{t3}
        v_add_u32 v{t5}, s{sB}, v{t5}
        v_xor_b32 v{t4}, v{t4}, v{t5}
        v_lshlrev_b32 v{t4}, 4, v{t4}
        v_and_b32 v{t5}, 1, v{t3}
        v_lshl_add_u32 v{t4}, v{t5}, 3, v{t4}
        v_lshl_add_u32 v{t5}, v{t1}, 3, v{t2}
        v_lshl_add_u32 v{TR0}, v{t5}, 9, v{t4}
        v_add_u32 v{TR1}, 65536, v{TR0}
        v_lshlrev_b32 v{t5}, 5, v{t5}
        v_lshl_add_u32 v{UA + 9}, v{t3}, 3, v{t5}
        v_lshlrev_b32 v{t5}, 9, v{t0}
        v_add_u32 v{t5}, {XB}, v{t5}
        """)
        for k in range(4):
            a(f"""
            v_add_u32 v{t4}, {4 * k}, v{t1}
            v_xor_b32 v{t4}, v{t4}, v{t0}
            v_lshl_add_u32 v{XA + k}, v{t4}, 4, v{t5}
            """)
        a(f"""
        v_lshrrev_b32 v{t4}, 1, v{t1}
        v_add_u32 v{t4}, s{sB}, v{t4}
        v_xor_b32 v{t4}, v{t4}, v{t0}
        v_lshlrev_b32 v{t4}, 4, v{t4}
        v_and_b32 v{t6}, 1, v{t1}
        v_lshl_add_u32 v{t4}, v{t6}, 3, v{t4}
        v_lshl_add_u32 v{t4}, v{t0}, 9, v{t4}
        v_add_u32 v{STG}, {PS}, v{t4}
        v_add_u32 v{STR}, {PS}, v{STR}
        v_add_u32 v{GO2}, 16384, v{GO}
        s_cmp_lt_u32 s{sW}, 4
        s_cbranch_scc1 L_go2
        v_mov_b32 v{GO2}, {OOB}
        L_go2:
        s_cmp_lt_u32 s{sW}, 5
        s_cbranch_scc0 L_nobin
        """)
        self.binning()
        a(f"""
        s_cmp_eq_u32 s{sW}, 0
        s_cbranch_scc0 L_piece
        v_lshlrev_b32 v{t0}, 3, v{LANE}
        v_add_u32 v{t0}, {HIST}, v{t0}
        ds_read_b64 {vr(66, 2)}, v{t0}
        ds_read_b64 {vr(68, 2)}, v{t0} offset:{BASE - HIST}
        ds_read_b64 {vr(70, 2)}, v{t0} offset:512
        ds_read_b64 {vr(72, 2)}, v{t0} offset:{BASE - HIST + 512}
        v_lshlrev_b32 v{t1}, 4, v{LANE}
        s_lshl_b32 s{sB}, s{sT}, 11
        s_add_u32 s{sB}, s{sB}, {W_OFFS}
        s_waitcnt lgkmcnt(0)
        """)
        for i in range(4):
            h, b = 66 + 4 * (i >> 1) + (i & 1), 68 + 4 * (i >> 1) + (i & 1)
            a(f"""
            v_lshl_or_b32 v{ACC + 2 * i}, v{h}, 10, v{b}
            v_mov_b32 v{ACC + 2 * i + 1}, s{sTAG}
            v_or_b32 v{ACC + 2 * i}, s{sTLO}, v{ACC + 2 * i}
            """)
        a(f"""
        buffer_store_dwordx4 {vr(ACC, 4)}, v{t1}, {sr(sWS, 4)}, s{sB} offen sc1
        buffer_store_dwordx4 {vr(ACC + 4, 4)}, v{t1}, {sr(sWS, 4)}, s{sB} offen offset:1024 sc1
        L_piece:
        s_setprio 0
        s_branch L_bin_done
        L_nobin:
        s_cmp_lt_u32 s{sW}, 8
        s_cbranch_scc1 L_bin_tag
        """)
        self.dma_body(0, 0)
        a.label("L_bin_tag")
        self.tag_calc()
        a.label("L_bin_done")
        self.xpreload(UA + 9)
        self.stamp("xpre")

        R0 = 116
        XBUF = (80, 92)
        fbuf = [UF + 4 * i for i in range(6)] + [56, 60]
        OV, o0, o1, o2, o3, UV = 20, 22, 23, 16, 17, 116

        def frag(i):
            a(f"""
            s_add_u32 s{sB}, s{sUB}, {1024 * i}
            buffer_load_dwordx4 {vr(fbuf[i], 4)}, v{FO}, {sr(sWS, 4)}, s{sB} offen sc1
            """)
            self.vm("LN", f"f{i}")

        def x3(i):
            for rb in range(3):
                a(f"ds_read_b128 {vr(XBUF[i & 1] + 4 * rb, 4)}, v{XA + (i & 3)} offset:{rb * 8192 + (i >> 2) * 256}")
                self.lq.append(f"x{i}")

        def consume(i):
            self.vmwait({f"f{i}"})
            if f"x{i}" in self.lq:
                self.lwait(f"x{i}")
            for rb in range(3):
                cin = "0" if i == 0 else vr(ACC + 4 * rb, 4)
                a(f"v_mfma_f32_16x16x32_bf16 {vr(ACC + 4 * rb, 4)}, {vr(fbuf[i], 4)}, {vr(XBUF[i & 1] + 4 * rb, 4)}, {cin}")
            if i + 2 < 8:
                x3(i + 2)

        def utag_issue(dst, adr):
            a(f"""
            v_lshlrev_b32 v{adr}, 5, v{LANE}
            s_lshl_b32 s{sC}, s{sW}, 9
            s_add_u32 s{sC}, s{sC}, {W_UTAG}
            s_mov_b64 exec, 0xffff
            buffer_load_dwordx2 {vr(dst, 2)}, v{adr}, {sr(sWS, 4)}, s{sC} offen sc1
            s_mov_b64 exec, -1
            """)

        def utag_check(dst):
            a(f"""
            v_cmp_ne_u64 vcc, {sr(sTAG, 2)}, {vr(dst, 2)}
            s_nop 1
            s_and_b32 s{sU}, vcc_lo, 0xffff
            """)

        def offs_issue():
            a(f"""
            s_and_b32 s{sC}, s{sT}, 7
            s_lshl_b32 s{sC}, s{sC}, 8
            s_and_b32 s{sB}, s{sT}, 0xf8
            s_add_u32 s{sC}, s{sC}, s{sB}
            s_add_u32 s{sC}, s{sC}, {W_OFFS}
            buffer_load_dwordx2 {vr(OV, 2)}, v{o0}, {sr(sWS, 4)}, s{sC} offen sc1
            """)

        def offs_check():
            a(f"""
            v_xor_b32 v{o1}, s{sTLO}, v{OV}
            v_cmp_ne_u32 vcc, s{sTAG}, v{OV + 1}
            s_mov_b32 s{sB}, 0x100000
            v_cmp_le_u32 s[40:41], s{sB}, v{o1}
            s_nop 1
            s_or_b64 vcc, vcc, s[40:41]
            s_and_b64 vcc, vcc, {sr(sVAL, 2)}
            """)

        def parse():
            a(f"""
            v_cndmask_b32 v{OV}, 0, v{o1}, {sr(sVAL, 2)}
            v_and_b32 v{o1}, 3, v{TID}
            v_mul_u32_u24 v{o0}, {EC * 8}, v{RBA}
            v_and_b32 v{o2}, 0x3ff, v{OV}
            v_bfe_u32 v{o3}, v{OV}, 10, 10
            v_add_u32 v{o2}, v{o2}, v{o1}
            v_lshl_add_u32 v{o0}, v{o2}, 3, v{o0}
            v_add_u32 v{RBA}, {W_RECS}, v{o0}
            v_sub_u32 v{CQ}, v{o3}, v{o1}
            v_cmp_lt_u32 vcc, {4 * NPASS}, v{o3}
            """)
            lab = a.newlabel("nomax")
            a(f"""
            s_cbranch_vccz {lab}
            v_mov_b32 v{o2}, {MISC}
            s_mov_b64 exec, vcc
            ds_max_u32 v{o2}, v{o3}
            s_mov_b64 exec, -1
            s_waitcnt lgkmcnt(0)
            {lab}:
            """)
            self.rec_issue(SCRP)

        slot = [0, 1, 2, 3, 0, 1, 0, 3]
        nearly = self.opt("early", 2)
        edel = self.opt("edel", 0)
        issue_at = {0: 3}
        for c in range(4, 4 + nearly):
            issue_at[c - 3 + edel] = c

        def gstep(k, lgkm=False, post=None):
            self.vmwait({f"c{k}"})
            self.barrier(f"B{k}", lgkm=lgkm)
            if post:
                post()
            self.trreads(slot[k])
            c = issue_at.get(k)
            self.mfmas(AC2, k & 3, (lambda sp: self.dma_all(c, slot[c], sp)) if c else None)
            if k not in (3, 7):
                self.xreads((k + 1) & 3)

        def look():
            a(f"""
            v_mov_b32 v{o1}, {OOB}
            v_lshrrev_b32 v{RBA}, 2, v{TID}
            v_lshlrev_b32 v{o0}, 11, v{RBA}
            s_movk_i32 s{sA}, {NT}
            v_cmp_gt_u32 {sr(sVAL, 2)}, s{sA}, v{RBA}
            s_mov_b32 s{sP0}, 0
            s_mov_b32 s{sNP}, {NPASS}
            s_mov_b32 s{sMODE}, 0
            v_cndmask_b32 v{o0}, v{o1}, v{o0}, {sr(sVAL, 2)}
            """)
            offs_issue()
            if "utearly" in self.opts:
                utag_issue(UV, UV + 2)
                self.vm("LN", "offs")
            self.vm("LN", "offs")

        def piece_tag():
            a(f"s_sub_u32 s{sA}, s{sW}, 5\ns_cmp_lt_u32 s{sA}, 2\ns_cbranch_scc0 L_notag\ns_waitcnt vmcnt(6)")
            self.tag_store(sUG, 116)
            a.label("L_notag")

        kis = self.opt("kis", 2)
        recpos = self.opt("recpos", 2)

        def try_records():
            self.vmwait({"offs"})
            if "utearly" in self.opts:
                utag_check(UV)
            offs_check()
            a(f"s_mov_b32 s{sE}, 0\ns_cbranch_scc1 L_late")
            parse()
            a(f"s_mov_b32 s{sE}, 1\ns_branch L_intime\nL_late:")
            offs_issue()
            offs_issue()
            a.label("L_intime")
            self.vm("LN", "rec", 2)

        for k in range(4):
            gstep(k, post=piece_tag if k == self.opt('kpt', 1) else None)
            if k == kis:
                look()
            if k == 2 and recpos == -1:
                try_records()
        for rb in range(3):
            for h in range(2):
                a(f"v_pk_mul_f32 {vr(AC2 + 4 * rb + 2 * h, 2)}, {vr(AC2 + 4 * rb + 2 * h, 2)}, {sr(sNL2E, 2)} op_sel_hi:[1,0]")
            a(f"v_cvt_pk_bf16_f32 v{AC2 + 4 * rb}, v{AC2 + 4 * rb}, v{AC2 + 4 * rb + 1}")
            a(f"v_cvt_pk_bf16_f32 v{AC2 + 4 * rb + 1}, v{AC2 + 4 * rb + 2}, v{AC2 + 4 * rb + 3}")
            a(f"ds_write_b64 v{STG}, {vr(AC2 + 4 * rb, 2)} offset:{rb * 8192}")
        if recpos == 0:
            try_records()
        a("s_setprio 3")
        self.barrier("PS")
        a(f"""
        ds_read_b128 {vr(AC2, 4)}, v{STR}
        ds_read_b128 {vr(AC2 + 4, 4)}, v{STR} offset:16384
        """)
        self.xreads(0)
        a(f"""
        s_mov_b32 s{sB}, {W_P}
        s_waitcnt lgkmcnt(3)
        buffer_store_dwordx4 {vr(AC2, 4)}, v{GO}, {sr(sWS, 4)}, s{sB} offen sc1
        s_waitcnt lgkmcnt(2)
        buffer_store_dwordx4 {vr(AC2 + 4, 4)}, v{GO2}, {sr(sWS, 4)}, s{sB} offen sc1
        s_setprio 0
        """)
        self.vm("LN", "p", 2)
        self.stamp("pst")
        if recpos == 2:
            try_records()
        self.stampval("E", sE)

        def fb():
            tmp = ACC + 8 if kfb == 6 else ACC
            if "repl" not in self.opts:
                a(f"s_lshl_b32 s{sB}, s{sT}, 5\ns_add_u32 s{sB}, s{sB}, {W_FB}")
                self.tag_store(sB, tmp)
                return
            a(f"""
            s_lshl_b32 s{sB}, s{sT}, 4
            s_add_u32 s{sB}, s{sB}, {W_FR}
            v_mov_b32 v{tmp}, s{sTAG}
            v_mov_b32 v{tmp + 1}, s{sTAG + 1}
            v_lshlrev_b32 v{tmp + 2}, 12, v{LANE}
            s_mov_b64 exec, 0xff
            buffer_store_dwordx2 {vr(tmp, 2)}, v{tmp + 2}, {sr(sWS, 4)}, s{sB} offen sc1
            s_mov_b64 exec, -1
            """)

        todo = [(c, m) for c in range(4 + nearly, 8) for m in range(2)]
        kfb = self.opt("kfb", 5)

        def issue(n):
            nonlocal todo
            for c, m in todo[:n]:
                self.dma_all(c, slot[c], m)
            todo = todo[n:]

        if nearly < 2:
            issue(self.opt("npre", 2))
        for k in (4, 5):
            if k == kfb:
                self.vmwait({"p"})
                self.stamp("ack")
            while todo and todo[0][0] <= k:
                issue(1)
            gstep(k, post=(lambda: self.wave0(fb)) if k == kfb else None)
            if k == 4 and "utearly" not in self.opts:
                utag_issue(24, 26)
                self.vm("LN", "utag")
            if k >= kfb and k == 4 and nearly < 2:
                issue(2)
        a(f"""
        s_lshl_b32 s{sUB}, s{sW}, 14
        s_add_u32 s{sUB}, s{sUB}, {W_UT}
        """)
        self.vmwait({"rec"})
        a(f"""
        s_cmp_eq_u32 s{sE}, 1
        s_cbranch_scc1 L_recs_ok
        s_mov_b32 s{sD}, 0
        L_offs_chk:
        """)
        offs_check()
        a(f"""
        s_cbranch_scc0 L_offs_ok
        s_add_u32 s{sD}, s{sD}, 1
        s_cmp_gt_u32 s{sD}, {POLL_LIMIT}
        s_cbranch_scc1 L_offs_ok
        """)
        offs_issue()
        a("s_waitcnt vmcnt(0)\ns_branch L_offs_chk\nL_offs_ok:")
        parse()
        a("s_waitcnt vmcnt(0)\nL_recs_ok:")
        self.stamp("rec")
        self.clean(SCRX)
        self.count(SCRX)
        issue(8)
        if kfb == 6:
            self.vmwait({"p"})
            self.stamp("ack")
        self.barrier("C1")
        if kfb == 6:
            self.wave0(fb)
        if "utearly" not in self.opts:
            self.vmwait({"utag"})
            utag_check(24)
        a(f"""
        v_lshlrev_b32 v{FO}, 4, v{LANE}
        s_cmp_eq_u32 s{sU}, 0
        s_cbranch_scc1 L_tags_ok
        s_mov_b32 s{sD}, 0
        L_tags:
        """)
        utag_issue(24, 26)
        a(f"s_add_u32 s{sD}, s{sD}, 1\ns_cmp_gt_u32 s{sD}, {POLL_LIMIT}\ns_waitcnt vmcnt(0)\ns_cbranch_scc1 L_tags_ok")
        utag_check(24)
        a("s_cbranch_scc1 L_tags\nL_tags_ok:")
        frag(0)
        frag(1)
        self.lists(SCRX, "L_gen1")
        a.label("L_gen1_back")
        self.side_fill(ACC + 10, ACC + 3)
        pp = self.opt("pp", 1)
        frag(2)
        frag(3)
        if pp == 0:
            self.wave0(self.poll_issue)
        gstep(6, lgkm=True)
        if pp == 1:
            self.wave0(self.poll_issue)
        a(f"s_mov_b32 s{sB}, {W3L}\nv_lshl_add_u32 v{ACC + 3}, v{LANE}, 1, s{sB}")
        for r in range(4):
            a(f"ds_read_u16_d16_hi v{W3 + r}, v{ACC + 3} offset:{128 * r}")
        frag(4)
        frag(5)
        self.setup(69)
        if pp == 2:
            self.wave0(self.poll_issue)
        frag(6)
        frag(7)
        a(f"""
        v_and_b32 v75, 15, v{LANE}
        v_cmp_gt_u32 {sr(sEX, 2)}, 8, v75
        v_mul_u32_u24 v74, {QS}, v75
        v_and_b32 v75, 48, v{LANE}
        s_lshl_b32 s{sB}, s{sW}, 6
        v_add3_u32 v74, v74, v75, s{sB}
        """)
        self.slot_consts()
        self.stamp("pre")

        def pw():
            self.poll_wait()
            a(f"s_cmp_eq_u32 s{sT}, 0\ns_cbranch_scc0 L_noep\ns_mov_b32 s{sB}, {W_EPOCH}")
            self.tag_store(sB, POLLB)
            a.label("L_noep")
        self.wave0(pw)
        self.vmwait({"c7"})
        self.barrier("C2")

        def g(k):
            a(f"v_mov_b32 v{IA}, v{IX0 + k}")
            self.gather(k)
            self.vm("LN", "g")

        self.trreads(slot[7])
        self.mfmas(AC2, 3, g if self.opt("gp", 1) == 1 else None)
        if self.opt("gp", 1) == 2:
            g(0)
            g(1)
        x3(0)
        x3(1)
        for rb in range(3):
            for h in range(2):
                a(f"v_pk_mul_f32 {vr(AC2 + 4 * rb + 2 * h, 2)}, {vr(AC2 + 4 * rb + 2 * h, 2)}, {sr(sNL2E, 2)} op_sel_hi:[1,0]")
            if rb == 2:
                a(f"s_mov_b64 exec, {sr(sEX, 2)}")
            a(f"ds_write_b128 v74, {vr(AC2 + 4 * rb, 4)} offset:{QB + rb * 16 * QS}")
            self.lq.append("q")
        a("s_mov_b64 exec, -1")
        self.stamp("q")
        g2, g3 = self.opt("g2", 2), self.opt("g3", 5)
        for i in range(8):
            consume(i)
            if i == 0:
                a("s_barrier")
            if i == g2:
                g(2)
            if i == g3:
                g(3)
        a(f"v_mov_b32 v{IA}, v{IX0 + 4}")
        for r in range(4):
            a(f"v_mul_f32 v{W3 + r}, s{sNL2E}, v{W3 + r}")
        for h in range(6):
            a(f"v_pk_mul_f32 {vr(ACC + 2 * h, 2)}, {vr(ACC + 2 * h, 2)}, {sr(sNL2E, 2)} op_sel_hi:[1,0]")
        self.lane_consts()
        self.barrier("R")
        a(f"""
        s_cmp_eq_u32 s{sGEN}, 0
        s_cbranch_scc0 L_generic
        s_and_b32 s{sZ + 1}, s{sZ + 1}, 0xff
        s_or_b32 s{sA}, s{sZ}, s{sZ + 1}
        s_or_b32 s{sA}, s{sA}, s{sMODE}
        s_cbranch_scc1 L_clear
        L_r_done:
        s_cmp_gt_i32 s{sNE}, 0
        s_cbranch_scc0 L_empty
        """)
        if "noprio" not in self.opts:
            a("s_setprio 3")
        a(f"""
        ds_read_b64 {vr(EE[0], 2)}, v{EA}
        v_add_u32 v{QA}, s{sQ0}, v{L4}
        ds_read2st64_b32 {vr(Q, 2)}, v{QA} offset0:0 offset1:1
        ds_read2st64_b32 {vr(Q + 2, 2)}, v{QA} offset0:2 offset1:3
        v_xor_b32 v{AG}, s{sAG0}, v{L8}
        v_add_u32 v{CNA}, {CNTN}, v{L4}
        v_mov_b32 v{TZ}, 0
        ds_write_b32 v{CNA}, v{TZ}
        v_mov_b64 {vr(NN, 2)}, 0
        v_mov_b64 {vr(NN + 2, 2)}, 0
        v_mov_b32 v{DD}, 1.0
        v_mov_b32 v{DD + 1}, 1.0
        v_mov_b32 v{DD + 2}, 1.0
        v_mov_b32 v{DD + 3}, 1.0
        v_mov_b64 {vr(CK2, 2)}, 0
        v_mov_b32 v{CK1}, 0
        s_mov_b32 s{sI}, 0
        s_or_b32 s{sTM}, s{sMASK}, {0xff if "u2early" in self.opts else 0}
        s_mov_b32 s{sW11}, {0 if "u2early" in self.opts else -1}
        """)
        self.stamp("setup")
        a("s_waitcnt vmcnt(3)")
        self.stamp("row0")
        self.p_reads(0, 0)
        a("s_waitcnt lgkmcnt(0)")
        self.gather(0)
        if "u2early" in self.opts:
            self.u2_loads()
        a(f"""
        s_cmp_eq_u32 s{sMODE}, 0
        s_cbranch_scc0 L_enter_x
        """)
        self.main_loop(False, "L_main_done")
        a.reset_hist()
        a.label("L_main_done")
        a("s_setprio 0")
        self.stamp("loop")
        a(f"""
        v_add_f32 v{CK2}, v{CK2}, v{CK2 + 1}
        v_mov_b32 v{TM}, {BIG}
        v_cmp_u_f32 vcc, v{CK2}, v{CK2}
        v_cmp_nle_f32 s[40:41], v{CK1}, v{TM}
        s_nop 1
        s_or_b64 vcc, vcc, s[40:41]
        s_cbranch_scc0 L_after
        v_mov_b32 v{TM}, {MISC + 4}
        v_mov_b32 v{TM + 1}, 1
        ds_write_b32 v{TM}, v{TM + 1}
        L_after:
        v_xor_b32 v{STG2}, 0x80, v{STG}
        v_and_b32 v{TM}, 8, v{LANE}
        v_subrev_u32 v{STG2}, 4092, v{STG2}
        v_cmp_eq_u32 vcc, 0, v{TM}
        v_cndmask_b32 v{STG2}, v{STG2}, v{STG}, vcc
        s_waitcnt vmcnt(0)
        """)
        self.barrier("M")
        a(f"""
        v_mov_b32 v{TM}, {MISC + 4}
        ds_read_b32 v{TM + 1}, v{TM}
        """)
        if "oldfin" in self.opts:
            order = [(s_, rb) for s_ in range(8) for rb in range(3)]
        else:
            order = [(s_, rb) for rb in range(3) for s_ in range(8)]
        NB = 12

        def rd(n):
            s_, rb = order[n]
            a(f"ds_read_b128 {vr(XF + 4 * (n % NB), 4)}, v{XA + (s_ & 3)} offset:{rb * 8192 + (s_ >> 2) * 256}")

        for n in range(NB):
            rd(n)
        a(f"""
        s_cmp_eq_u32 s{sMODE}, 0
        s_cbranch_scc0 L_slow_next
        s_waitcnt lgkmcnt(12)
        v_readfirstlane_b32 s{sA}, v{TM + 1}
        s_nop 1
        s_cmp_eq_u32 s{sA}, 0
        s_cbranch_scc0 L_redo
        L_final:
        """)
        TE = 104

        def act(rb):
            ops = []
            for r in range(4):
                ops.append(f"v_exp_f32 v{TE + 4 * rb + r}, v{ACC + 4 * rb + r}")
            for r in range(4):
                ops.append(f"v_add_f32 v{TE + 4 * rb + r}, 1.0, v{TE + 4 * rb + r}")
            for r in range(4):
                ops.append(f"v_rcp_f32 v{TE + 4 * rb + r}, v{TE + 4 * rb + r}")
            for r in range(4):
                ops.append(f"v_mul_f32 v{ACC + 4 * rb + r}, s{sNLN2}, v{ACC + 4 * rb + r}")
            for r in range(4):
                ops.append(f"v_mul_f32 v{ACC + 4 * rb + r}, v{ACC + 4 * rb + r}, v{TE + 4 * rb + r}")
            ops.append(f"v_cvt_pk_bf16_f32 v{TE + 4 * rb}, v{ACC + 4 * rb}, v{ACC + 4 * rb + 1}")
            ops.append(f"v_cvt_pk_bf16_f32 v{TE + 4 * rb + 1}, v{ACC + 4 * rb + 2}, v{ACC + 4 * rb + 3}")
            ops.append(f"ds_write_b64 v{STG}, {vr(TE + 4 * rb, 2)} offset:{rb * 8192}")
            return ops

        pend = []
        lq = [f"r{n}" for n in range(NB)]
        for n in range(24):
            s_, rb = order[n]
            last = lq.index(f"r{n}")
            a(f"s_waitcnt lgkmcnt({len(lq) - 1 - last})")
            lq = lq[last + 1:]
            a(f"v_mfma_f32_16x16x32_bf16 {vr(ACC + 4 * rb, 4)}, {vr(UF + 4 * s_, 4)}, {vr(XF + 4 * (n % NB), 4)}, {vr(ACC + 4 * rb, 4)}")
            if n + NB < 24:
                rd(n + NB)
                lq.append(f"r{n + NB}")
            if "oldfin" not in self.opts:
                if n in (9, 17):
                    pend += act(n // 8 - 1)
                for op in pend[:4]:
                    a(op)
                    if op.startswith("ds_"):
                        lq.append("w")
                pend = pend[4:]
        for op in pend:
            a(op)
        if "oldfin" in self.opts or "nofold" in self.opts:
            for rb in ([2] if "oldfin" not in self.opts else [0, 1, 2]):
                for op in act(rb):
                    a(op)
        else:
            A2 = ACC + 8
            a(f"""
            v_mov_b32_dpp v{A2}, v{A2 + 2} row_shr:8 row_mask:0xf bank_mask:0xc
            v_mov_b32_dpp v{A2 + 1}, v{A2 + 3} row_shr:8 row_mask:0xf bank_mask:0xc
            v_exp_f32 v{TE + 8}, v{A2}
            v_exp_f32 v{TE + 9}, v{A2 + 1}
            v_pk_mul_f32 {vr(A2, 2)}, {vr(A2, 2)}, {sr(sNLN2, 2)} op_sel_hi:[1,0]
            v_pk_add_f32 {vr(TE + 8, 2)}, {vr(TE + 8, 2)}, 1.0 op_sel_hi:[1,0]
            v_rcp_f32 v{TE + 8}, v{TE + 8}
            v_rcp_f32 v{TE + 9}, v{TE + 9}
            v_pk_mul_f32 {vr(A2, 2)}, {vr(A2, 2)}, {vr(TE + 8, 2)}
            v_cvt_pk_bf16_f32 v{TE + 8}, v{A2}, v{A2 + 1}
            ds_write_b32 v{STG2}, v{TE + 8} offset:16384
            """)
        self.barrier("F")
        a(f"""
        ds_read_b128 {vr(PQ + 8, 4)}, v{STR}
        ds_read_b128 {vr(PQ + 12, 4)}, v{STR} offset:16384
        s_waitcnt lgkmcnt(1)
        buffer_store_dwordx4 {vr(PQ + 8, 4)}, v{GO}, {sr(sOUT, 4)}, 0 offen sc1
        s_waitcnt lgkmcnt(0)
        buffer_store_dwordx4 {vr(PQ + 12, 4)}, v{GO2}, {sr(sOUT, 4)}, 0 offen sc1
        """)
        if self.opt("pad", 0):
            a(f"""
            L_pad:
            s_memrealtime s[98:99]
            s_waitcnt lgkmcnt(0)
            s_sub_u32 s98, s98, s96
            s_cmp_lt_u32 s98, {self.opt("pad", 0)}
            s_cbranch_scc1 L_pad
            """)
        if self.stamps:
            a.label("L_diag_end")
            a("s_waitcnt vmcnt(0)")
            self.stamp("end")
            a(f"""
            s_lshl_b32 s{sA}, s{sT}, 4
            s_add_u32 s{sA}, s{sA}, s{sW}
            s_lshl_b32 s{sA}, s{sA}, 8
            s_add_u32 s{sA}, s{sA}, {W_STAMP}
            v_lshlrev_b32 v{TM}, 2, v{LANE}
            buffer_store_dword v{STAMPV}, v{TM}, {sr(sWS, 4)}, s{sA} offen
            """)
        a.label("L_end")
        a("s_endpgm")
        a.reset_hist()
        a(f"""
        L_gen1:
        s_mov_b32 s{sGEN}, 1
        s_mov_b32 s{sI}, 0
        s_mov_b32 s{sNE}, 0
        s_branch L_gen1_back
        L_clear:
        v_mov_b64 {vr(XF, 2)}, 0
        v_mov_b64 {vr(XF + 2, 2)}, 0
        v_add_u32 v{XF + 4}, {AB - PS}, v{STR}
        """)
        self.zero_agg(XF + 4, XF)
        a(f"""
        s_cmp_eq_u32 s{sMODE}, 2
        s_cbranch_scc0 L_clear2
        v_add_u32 v{XF + 4}, {(AF2 - AB) & 0xffffffff}, v{XF + 4}
        """)
        self.zero_agg(XF + 4, XF)
        a(f"""
        L_clear2:
        s_waitcnt lgkmcnt(0)
        s_barrier
        s_branch L_r_done
        L_generic:
        s_waitcnt vmcnt(0) lgkmcnt(0)
        s_barrier
        s_mov_b32 s{sMODE}, 2
        v_mov_b64 {vr(XF, 2)}, 0
        v_mov_b64 {vr(XF + 2, 2)}, 0
        v_add_u32 v{XF + 4}, {AB - PS}, v{STR}
        """)
        self.zero_agg(XF + 4, XF)
        a(f"""
        s_cmp_eq_u32 s{sMODE}, 2
        s_cbranch_scc0 L_gen2
        v_add_u32 v{XF + 4}, {(AF2 - AB) & 0xffffffff}, v{XF + 4}
        """)
        self.zero_agg(XF + 4, XF)
        a(f"""
        L_gen2:
        v_add_u32 v{CNA}, {CNTN}, v{L4}
        v_mov_b32 v{TZ}, 0
        ds_write_b32 v{CNA}, v{TZ}
        s_mov_b32 s{sNP}, 1
        s_mov_b32 s{sMODE}, 2
        s_waitcnt lgkmcnt(0)
        s_barrier
        L_round:
        """)
        self.slot_consts()
        self.lane_consts()
        self.rec_issue(SCR2)
        a("s_waitcnt vmcnt(0)")
        self.clean(SCR2)
        self.count(SCR2)
        a("s_waitcnt lgkmcnt(0)\ns_barrier")
        self.lists(SCR2, "L_generic")
        a("s_waitcnt lgkmcnt(0)\ns_barrier")
        self.setup(SCR2.tmp)
        a(f"""
        s_waitcnt lgkmcnt(0)
        """)
        for k in range(4):
            a(f"v_mov_b32 v{IA}, v{IX0 + k}")
            self.gather(k)
        a(f"""
        v_mov_b32 v{IA}, v{IX0 + 4}
        s_branch L_r_done
        L_empty:
        v_add_u32 v{CNA}, {CNTN}, v{L4}
        v_mov_b32 v{TZ}, 0
        ds_write_b32 v{CNA}, v{TZ}
        """)
        self.u2_loads()
        a(f"""
        s_branch L_after
        L_slow_next:
        s_cmp_eq_u32 s{sMODE}, 1
        s_cbranch_scc1 L_final
        s_waitcnt lgkmcnt(0)
        s_cmp_eq_u32 s{sNP}, {NPASS}
        s_cbranch_scc1 L_convert
        s_add_u32 s{sP0}, s{sP0}, 1
        s_max_u32 s{sA}, s{sMAXC}, {4 * NPASS}
        s_lshl_b32 s{sB}, s{sP0}, 2
        s_cmp_lt_u32 s{sB}, s{sA}
        s_cbranch_scc1 L_round
        L_convert:
        """)
        self.lane_consts()
        for i in range(3):
            a(f"s_add_u32 s{sC}, s{sW}, {16 * i}\ns_min_u32 s{sC}, s{sC}, 39\ns_lshl_b32 s{sC}, s{sC}, 9")
            self.f32_row(sC, sD)
            a(f"""
            v_add_u32 v{TM}, s{sD}, v{L4}
            ds_read2st64_b32 {vr(56 + 4 * i, 2)}, v{TM} offset0:0 offset1:1
            ds_read2st64_b32 {vr(58 + 4 * i, 2)}, v{TM} offset0:2 offset1:3
            s_bfe_u32 s{sD}, s{sC}, 0x40009
            s_lshl_b32 s{sD}, s{sD}, 4
            s_or_b32 s{sD}, s{sD}, s{sC}
            v_xor_b32 v{68 + i}, s{sD}, v{L8}
            """)
        a("s_waitcnt lgkmcnt(0)\ns_barrier")
        for i in range(3):
            a(f"""
            v_cvt_pk_bf16_f32 v{56 + 4 * i}, v{56 + 4 * i}, v{57 + 4 * i}
            v_cvt_pk_bf16_f32 v{57 + 4 * i}, v{58 + 4 * i}, v{59 + 4 * i}
            ds_write_b64 v{68 + i}, {vr(56 + 4 * i, 2)}
            """)
        a("s_waitcnt lgkmcnt(0)\ns_barrier")
        for n in range(NB):
            rd(n)
        a(f"""
        s_branch L_final
        L_redo:
        s_waitcnt lgkmcnt(0)
        s_barrier
        s_mov_b32 s{sMODE}, 1
        """)
        self.side_fill(XF, XF + 2)
        a(f"""
        s_branch L_round
        L_enter_x:
        s_cmp_eq_u32 s{sMODE}, 2
        s_cbranch_scc0 L_loop_x
        """)
        self.f32_row(sAG0, sD)
        a(f"v_add_u32 v{AG}, s{sD}, v{L4}")
        self.main_loop(True, "L_after")
        a.label("L_code_end")

    def text(self):
        hdr = f"""; Fused MPNN edge-MLP kernel: P = x W1 published per tile, edges binned by destination tile,
; @launch grid=({NT},1,1) block=(1024,1,1) lds={LDS_TOTAL}
.amdgcn_target "amdgcn-amd-amdhsa--gfx950"
.text
.globl {NAME}_kernel
.p2align 8
.type {NAME}_kernel,@function
{NAME}_kernel:
"""
        ftr = f""".section .rodata,"a"
.p2align 6
.amdhsa_kernel {NAME}_kernel
  .amdhsa_next_free_vgpr 128
  .amdhsa_next_free_sgpr 102
  .amdhsa_accum_offset 128
  .amdhsa_group_segment_fixed_size 0
  .amdhsa_kernarg_size 72
  .amdhsa_user_sgpr_count 2
  .amdhsa_user_sgpr_kernarg_segment_ptr 1
  .amdhsa_system_sgpr_workgroup_id_x 1
.end_amdhsa_kernel
"""
        return hdr + self.a.text() + ftr


if __name__ == "__main__":
    out = [x for x in sys.argv[1:] if not x.startswith("--")]
    g = Gen(opts=[x[2:] for x in sys.argv[1:] if x.startswith("--")])
    g.build()
    txt = g.text()
    if g.stamps:
        txt = "; stamps: " + ",".join(g.names) + "\n" + txt
    open(out[0] if out else "cdna_kernels/%s.s" % NAME, "w").write(txt)
    print("nops inserted:", g.a.nops, "lines:", len(g.a.lines), "stamps:", g.nstamp)
```

```python
import sys
import struct
from asmlib import Asm

NAME = "gather_scatter__mpnn_edge_mlp__graph"
N, E, D = 10000, 160000, 256
T, NT, EC = 40, 250, 640

SLOT = (0, 32768, 65536, 98304)
XB = 131072
SIDE = 41984
AF2 = 41984
PILA, PILB = 158880, 162112 - 9 * 192
HIST, BASE, SORT, USC = 151552, 152576, 153600, 158720
CNTN, MISC = 160768, 161024
IL, EL, DL = 151552, 153664, 157824
QB, QS = 0, 1040
AB = XB
RING = 65536
ROFF = (0, 1024, 32768, 33792)
PS = 65536
LDS_TOTAL = 163840

W_EPOCH, W_FA, W_FB = 0, 0x1000, 0x3000
W_OFFS, W_RECS, W_UT, W_P = 0x10000, 0x90000, 0x700000, 0x200000
W_UTAG = 0x1000
W_FR = 0x8000
W_STAMP = 0x800000
WS_SIZE = 0xA00000
OOB = 0x80000000
POLL_LIMIT = 200000


def f2u(x):
    return struct.unpack("<I", struct.pack("<f", x))[0]


NLOG2E = f2u(-1.4426950408889634)
NLN2 = f2u(-0.6931471805599453)
BIG = f2u(2.0 ** 120)


def vr(a, n=1):
    return "v%d" % a if n == 1 else "v[%d:%d]" % (a, a + n - 1)


def sr(a, n=1):
    return "s%d" % a if n == 1 else "s[%d:%d]" % (a, a + n - 1)


TID, LANE = 0, 1
XA = 2
STG, GO, GO2, STR = 6, 7, 8, 9
RBA, CQ = 10, 11
ACC = 12
UF = 24
XR = 24
XF2, WF = 88, 96
AC2 = 104
XF = 56
WOFF, TR0, TR1 = 120, 121, 122
STAMPV = 123
W3 = 124
NPASS = 4
POLLB = 16
FO = 120
W3L = MISC + 64
XCNT, S1C, S2C, ACKC, BACK = MISC + 8, MISC + 12, MISC + 16, MISC + 20, MISC + 24


class Scratch:
    def __init__(self, rec, adr, rank, tmp):
        self.rec, self.adr, self.rank, self.tmp = rec, adr, rank, tmp


REC1 = [116, 118, 124, 126]
SCRP = Scratch(REC1, 12, None, 18)
SCRX = Scratch(REC1, ACC, ACC + 4, ACC + 8)
SCR2 = Scratch([24, 26, 28, 30], 40, 44, 48)
CNA = 109
PA = (56, 64)
EE = (72, 74)
IA, Q, QE, Y, TT, NN, DD = 76, 78, 86, 90, 94, 98, 102
CK2, CK1 = 106, 108
RG, IXA, EA, QA, AG, L4, L8, INFO, TM, IOF = 82, 116, 117, 112, 113, 83, 84, 118, 120, 85
TZ = 115
STG2 = 119
IX0 = 64

sT, sW = 2, 3
sX, sWM, sWU, sWS, sP, sOUT, sSRC, sDST, sEA = 4, 8, 12, 16, 20, 24, 28, 32, 36
sNL2E, sNLN2, sWK, sW1K = 58, 60, 62, 63
sMASK, sI, sNE, sREM, sTRIP, sSLOT = 64, 66, 67, 68, 69, 70
sM, sP0, sNP, sMAXC, sFIRST, sMODE = 74, 75, 76, 77, 78, 79
sVAL = 80
sA, sB, sC, sD = 88, 89, 90, 91
sEX = 42
sCO = 48
sHI, sTAG, sTLO, sGEN = 49, 52, 56, 57
sQ0, sAG0 = 44, 45
sUO, sUG, sUB, sE = 64, 65, 38, 39
sZ, sU, sRA, sRB = 6, 30, 29, 31
sTM, sHB, sW11 = 28, 69, 39
sHB2 = sHB


class Gen:
    def __init__(self, opts=()):
        self.opts = set(opts)
        self.a = Asm()
        self.stamps = "stamps" in self.opts
        self.nstamp = 0
        self.names = []
        self.lq = []
        self.q = {"L": [], "N": []}

    def opt(self, name, default):
        for o in self.opts:
            if o.startswith(name + "="):
                return int(o.split("=")[1])
        return default

    STAMP_REGS = [92, 94, 96, 98, 100, 50, 54, 4, 12, 14, 32, 34, 36]

    def stampval(self, name, sreg):
        sel = [o[3:].split("+") for o in self.opts if o.startswith("st=")]
        if not self.stamps or not sel or name not in sel[0]:
            return
        k = self.nstamp
        self.nstamp += 1
        self.names.append("=" + name)
        self.a(f"s_add_u32 s{self.STAMP_REGS[k]}, s{sreg}, 1")

    def stamp(self, name):
        if not self.stamps:
            return
        sel = [o[3:].split("+") for o in self.opts if o.startswith("st=")]
        if name not in ("start", "end") and sel and name not in sel[0]:
            return
        k = self.nstamp
        self.nstamp += 1
        self.names.append(name)
        if "dbg" in self.opts:
            self.a(f"s_memrealtime {sr(self.STAMP_REGS[k], 2)}")
            if name == "end":
                a = self.a
                a("s_load_dwordx2 s[40:41], s[0:1], 56\ns_waitcnt lgkmcnt(0)")
                a(f"s_not_b32 s44, s{self.STAMP_REGS[0]}\nv_writelane_b32 v{STAMPV}, s44, 15")
                for i in range(self.nstamp):
                    a(f"v_writelane_b32 v{STAMPV}, s{self.STAMP_REGS[i]}, {i}")
                a(f"""
                s_mov_b32 s42, 64
                s_mov_b32 s43, 0x20000
                v_lshlrev_b32 v{TM}, 2, v{LANE}
                s_cmp_eq_u32 s{sW}, 0
                s_cbranch_scc0 L_end
                buffer_atomic_umax v{STAMPV}, v{TM}, s[40:43], 0 offen
                s_branch L_end
                """)
            return
        if name == "start":
            self.a(f"v_writelane_b32 v{STAMPV}, s86, 0")
            return
        if name in ("start", "end"):
            self.a(f"""
            s_memrealtime s[40:41]
            s_waitcnt lgkmcnt(0)
            v_writelane_b32 v{STAMPV}, s40, {0 if name == "start" else 1}
            """)
        self.a(f"s_memtime {sr(self.STAMP_REGS[k], 2)}")
        if name == "end":
            self.a("s_waitcnt lgkmcnt(0)")
            for i in range(self.nstamp):
                self.a(f"v_writelane_b32 v{STAMPV}, s{self.STAMP_REGS[i]}, {32 + i}")

    def vm(self, roles, tag, n=1):
        for r in roles:
            self.q[r] += [tag] * n

    def vmwait(self, tags):
        need = {}
        for r, lst in self.q.items():
            last = max((i for i, t in enumerate(lst) if t in tags), default=None)
            if last is None:
                need[r] = None
            else:
                need[r] = len(lst) - 1 - last
                self.q[r] = lst[last + 1:]
        a = self.a
        if need["L"] == need["N"]:
            if need["L"] is not None:
                a(f"s_waitcnt vmcnt({need['L']})")
            return
        lab = a.newlabel("vw")
        if need["N"] is None:
            a(f"s_cmp_lt_u32 s{sW}, 8\ns_cbranch_scc1 {lab}\ns_waitcnt vmcnt({need['L']})\n{lab}:")
        elif need["L"] is None:
            a(f"s_cmp_ge_u32 s{sW}, 8\ns_cbranch_scc1 {lab}\ns_waitcnt vmcnt({need['N']})\n{lab}:")
        elif need["L"] > need["N"]:
            a(f"s_waitcnt vmcnt({need['L']})\ns_cmp_ge_u32 s{sW}, 8\ns_cbranch_scc1 {lab}\ns_waitcnt vmcnt({need['N']})\n{lab}:")
        else:
            a(f"s_waitcnt vmcnt({need['N']})\ns_cmp_lt_u32 s{sW}, 8\ns_cbranch_scc1 {lab}\ns_waitcnt vmcnt({need['L']})\n{lab}:")

    def lwait(self, tag):
        last = max(i for i, t in enumerate(self.lq) if t == tag)
        self.a(f"s_waitcnt lgkmcnt({len(self.lq) - 1 - last})")
        self.lq = self.lq[last + 1:]

    def barrier(self, name, lgkm=True):
        for o in self.opts:
            if o.startswith("padat=") and o.split("=")[1].split(":")[0] == name:
                self.a(f"""
                L_padat:
                s_memrealtime s[98:99]
                s_waitcnt lgkmcnt(0)
                s_sub_u32 s98, s98, s96
                s_cmp_lt_u32 s98, {o.split(":")[1]}
                s_cbranch_scc1 L_padat
                """)
        if lgkm:
            self.a("s_waitcnt lgkmcnt(0)")
        self.a("s_barrier")
        self.stamp(name)

    def dma_body(self, k, slot, role="L"):
        a = self.a
        if f"noc{k}" in self.opts:
            for m in range(4):
                a(f"s_mov_b32 m0, {USC + 1024}\ns_mov_b32 s{sB}, {OOB}\nbuffer_load_dwordx4 v{WOFF}, {sr(sWM, 4)}, s{sB} offen lds")
            self.vm(role, f"c{k}", 4)
            return
        srd, base = ((sWM, 0), (sWM, 131072))[k // 4]
        c = k % 4
        for m in range(4):
            a(f"""
            s_add_u32 m0, s{sW1K}, {SLOT[slot] + m * 8192}
            s_mov_b32 s{sB}, {base + c * 32768 + m * 8192}
            buffer_load_dwordx4 v{WOFF}, {sr(srd, 4)}, s{sB} offen lds
            """)
        self.vm(role, f"c{k}", 4)

    def dma_all(self, k, slot, m):
        a = self.a
        srd, base = ((sWM, 0), (sWM, 131072))[k // 4]
        a(f"""
        s_add_u32 m0, s{sWK}, {SLOT[slot] + m * 16384}
        s_add_u32 s{sB}, s{sHI}, {base + (k % 4) * 32768 + m * 16384}
        buffer_load_dwordx4 v{WOFF}, {sr(srd, 4)}, s{sB} offen lds
        """)
        self.vm("LN", f"c{k}")

    def spin(self, ctr, target, tmp, extra=None):
        a = self.a
        lab = a.newlabel("spin")
        a(f"v_mov_b32 v{tmp}, {ctr}")
        a.label(lab)
        a(f"ds_read_b32 v{tmp + 1}, v{tmp}")
        if extra:
            a(extra)
        a(f"""
        s_waitcnt lgkmcnt(0)
        v_readfirstlane_b32 s{sA}, v{tmp + 1}
        s_nop 0
        s_cmp_lt_u32 s{sA}, {target}
        s_cbranch_scc1 {lab}
        """)

    def xspin(self, shift):
        a = self.a
        lab = a.newlabel("xs")
        a(f"""
        {lab}:
        ds_read_b32 v{WF + 1}, v{WF}
        s_waitcnt lgkmcnt(0)
        v_readfirstlane_b32 s{sA}, v{WF + 1}
        s_nop 0
        s_bfe_u32 s{sA}, s{sA}, {shift | (4 << 16)}
        s_cmp_lt_u32 s{sA}, 3
        s_cbranch_scc0 {lab}_ok
        s_sleep 1
        s_branch {lab}
        {lab}_ok:
        """)

    def touch(self):
        a = self.a
        l2, done = a.newlabel("tw2"), a.newlabel("tdone")
        a(f"""
        s_lshr_b32 s{sA}, s{sT}, 3
        s_lshl_b32 s{sA}, s{sA}, 12
        s_mov_b32 m0, {USC + 1024}
        v_lshlrev_b32 v{W3 + 2}, 4, v{LANE}
        s_cmp_eq_u32 s{sW}, 5
        s_cbranch_scc0 {l2}
        """)
        for m in range(4):
            a(f"s_add_u32 s{sB}, s{sA}, {1024 * m}\nbuffer_load_dwordx4 v{W3 + 2}, {sr(sWU, 4)}, s{sB} offen lds")
        a(f"s_branch {done}\n{l2}:\ns_cmp_eq_u32 s{sW}, 6\ns_cbranch_scc0 {done}")
        for m in range(4):
            a(f"s_add_u32 s{sB}, s{sA}, {131072 + 1024 * m}\nbuffer_load_dwordx4 v{W3 + 2}, {sr(sWM, 4)}, s{sB} offen lds")
        a.label(done)

    def xpreload(self, ua):
        a = self.a
        a(f"v_mov_b32 v{WF}, {XCNT}")
        self.xspin(0)
        self.stamp("xa")
        for s in range(8):
            a(f"ds_read_b128 {vr(XR + 4 * s, 4)}, v{XA + (s & 3)} offset:{(s >> 2) * 256}")
        a(f"""
        s_cmp_lt_u32 s{sW}, 5
        s_cbranch_scc1 L_xp_go
        s_cmp_ge_u32 s{sW}, 8
        s_cbranch_scc1 L_xp_go
        v_mov_b32 v{W3 + 3}, 16
        s_mov_b64 exec, 1
        s_waitcnt vmcnt(0)
        ds_add_u32 v{WF}, v{W3 + 3}
        s_mov_b64 exec, -1
        """)
        a.label("L_xp_go")
        self.xspin(4)
        self.stamp("xb")
        for s in range(8):
            a(f"ds_read_b128 {vr(XR + 32 + 4 * s, 4)}, v{XA + (s & 3)} offset:{8192 + (s >> 2) * 256}")
        self.xreads(0)
        a(f"s_cmp_lt_u32 s{sW}, 8\ns_cbranch_scc1 L_xp_c2")
        self.dma_body(1, 1)
        a("s_branch L_xp_done\nL_xp_c2:")
        self.dma_body(2, 2, "N")
        a.label("L_xp_done")

    def xreads(self, c):
        a = self.a
        for sp in range(2):
            s = 2 * c + sp
            a(f"ds_read_b128 {vr(XF2 + 4 * sp, 4)}, v{XA + (s & 3)} offset:{2 * 8192 + (s >> 2) * 256}")

    def trreads(self, slot):
        a = self.a
        base = SLOT[slot]
        tr = TR0 if base < 65536 else TR1
        for sp in range(2):
            for p in range(2):
                a(f"ds_read_b64_tr_b16 {vr(WF + 4 * sp + 2 * p, 2)}, v{tr} offset:{(base & 65535) + 16384 * sp + 2048 * p}")

    def mfmas(self, acc, c, between=None):
        a = self.a
        for sp in range(2):
            if between:
                between(sp)
            a(f"s_waitcnt lgkmcnt({2 - 2 * sp})")
            for rb in range(3):
                cin = "0" if (c == 0 and sp == 0) else vr(acc + 4 * rb, 4)
                b = XR + 32 * rb + 4 * (2 * c + sp) if rb < 2 else XF2 + 4 * sp
                a(f"v_mfma_f32_16x16x32_bf16 {vr(acc + 4 * rb, 4)}, {vr(WF + 4 * sp, 4)}, {vr(b, 4)}, {cin}")

    def scan(self, v):
        a = self.a
        for sh in (1, 2, 4, 8):
            a(f"v_add_u32_dpp v{v}, v{v}, v{v} row_shr:{sh} row_mask:0xf bank_mask:0xf bound_ctrl:0")
        a(f"v_add_u32_dpp v{v}, v{v}, v{v} row_bcast:15 row_mask:0xa bank_mask:0xf")
        a(f"v_add_u32_dpp v{v}, v{v}, v{v} row_bcast:31 row_mask:0xc bank_mask:0xf")

    def poll_issue(self):
        a = self.a
        if "repl" not in self.opts:
            a(f"v_lshlrev_b32 v14, 5, v{LANE}\ns_mov_b32 s{sB}, {W_FB}\ns_mov_b32 s{sD}, {W_FB + 4096}")
            for k in range(4):
                a(f"buffer_load_dwordx2 {vr(POLLB + 2 * k, 2)}, v14, {sr(sWS, 4)}, s{sB if k < 2 else sD} offen offset:{2048 * (k & 1)} sc1")
            return
        a(f"v_lshlrev_b32 v14, 4, v{LANE}\ns_and_b32 s{sB}, s{sT}, 7\ns_lshl_b32 s{sB}, s{sB}, 12\ns_add_u32 s{sB}, s{sB}, {W_FR}")
        for k in range(4):
            a(f"buffer_load_dwordx2 {vr(POLLB + 2 * k, 2)}, v14, {sr(sWS, 4)}, s{sB} offen offset:{1024 * k} sc1")

    def poll_wait(self):
        a = self.a
        lp, chk, done = a.newlabel("poll"), a.newlabel("pchk"), a.newlabel("pdone")
        a(f"s_mov_b32 s{sC}, 0\ns_branch {chk}")
        a.label(lp)
        self.poll_issue()
        a.label(chk)
        m58 = (1 << (NT - 192)) - 1
        a(f"""
        s_waitcnt vmcnt(0)
        v_cmp_ne_u64 s[40:41], {sr(sTAG, 2)}, {vr(POLLB, 2)}
        v_cmp_ne_u64 vcc, {sr(sTAG, 2)}, {vr(POLLB + 2, 2)}
        v_cmp_ne_u64 s[88:89], {sr(sTAG, 2)}, {vr(POLLB + 4, 2)}
        v_cmp_ne_u64 s[46:47], {sr(sTAG, 2)}, {vr(POLLB + 6, 2)}
        s_nop 1
        s_and_b32 s47, s47, {m58 >> 32}
        s_or_b64 s[40:41], s[40:41], vcc
        s_or_b64 s[46:47], s[88:89], s[46:47]
        s_or_b64 s[40:41], s[40:41], s[46:47]
        s_cbranch_scc0 {done}
        s_add_u32 s{sC}, s{sC}, 1
        s_cmp_lt_u32 s{sC}, {POLL_LIMIT}
        s_cbranch_scc1 {lp}
        """)
        a.label(done)

    def tag_store(self, soff, tmp):
        a = self.a
        a(f"""
        v_mov_b32 v{tmp}, s{sTAG}
        v_mov_b32 v{tmp + 1}, s{sTAG + 1}
        v_lshlrev_b32 v{tmp + 2}, 24, v{LANE}
        buffer_store_dwordx2 {vr(tmp, 2)}, v{tmp + 2}, {sr(sWS, 4)}, s{soff} offen sc1
        """)

    def wave0(self, fn):
        a = self.a
        lab = a.newlabel("w0")
        a(f"s_cmp_eq_u32 s{sW}, 0\ns_cbranch_scc0 {lab}")
        fn()
        a.label(lab)

    def edge(self, pb, which, exact, first):
        a = self.a
        if "noedge" in self.opts:
            return
        p = PA[pb] + 4 * which
        sel = "op_sel:[1,0,0] op_sel_hi:[1,1,1]" if which else "op_sel:[0,0,0] op_sel_hi:[0,1,1]"
        y = NN if (first and not exact) else Y
        for h in range(2):
            a(f"v_pk_fma_f32 {vr(QE + 2 * h, 2)}, {vr(EE[pb], 2)}, {vr(W3 + 2 * h, 2)}, {vr(Q + 2 * h, 2)} {sel}")
        for h in range(2):
            a(f"v_pk_add_f32 {vr(y + 2 * h, 2)}, {vr(p + 2 * h, 2)}, {vr(QE + 2 * h, 2)}")
        for r in range(4):
            a(f"v_exp_f32 v{TT + r}, v{y + r}")
        if exact:
            for h in range(2):
                a(f"v_pk_add_f32 {vr(TT + 2 * h, 2)}, {vr(TT + 2 * h, 2)}, 1.0 op_sel_hi:[1,0]")
            for r in range(4):
                a(f"v_rcp_f32 v{TT + r}, v{TT + r}")
            for h in range(2):
                if first:
                    a(f"v_pk_mul_f32 {vr(NN + 2 * h, 2)}, {vr(Y + 2 * h, 2)}, {vr(TT + 2 * h, 2)}")
                else:
                    a(f"v_pk_fma_f32 {vr(NN + 2 * h, 2)}, {vr(Y + 2 * h, 2)}, {vr(TT + 2 * h, 2)}, {vr(NN + 2 * h, 2)}")
        elif first:
            for h in range(2):
                a(f"v_pk_add_f32 {vr(DD + 2 * h, 2)}, {vr(TT + 2 * h, 2)}, 1.0 op_sel_hi:[1,0]")
        else:
            for h in range(2):
                a(f"v_pk_fma_f32 {vr(NN + 2 * h, 2)}, {vr(NN + 2 * h, 2)}, {vr(TT + 2 * h, 2)}, {vr(NN + 2 * h, 2)}")
            for h in range(2):
                a(f"v_pk_fma_f32 {vr(NN + 2 * h, 2)}, {vr(Y + 2 * h, 2)}, {vr(DD + 2 * h, 2)}, {vr(NN + 2 * h, 2)}")
            for h in range(2):
                a(f"v_pk_fma_f32 {vr(DD + 2 * h, 2)}, {vr(DD + 2 * h, 2)}, {vr(TT + 2 * h, 2)}, {vr(DD + 2 * h, 2)}")

    def pair(self, pb):
        a = self.a
        p = PA[pb]
        lo, hi = "op_sel:[0,0,0] op_sel_hi:[0,1,1]", "op_sel:[1,0,0] op_sel_hi:[1,1,1]"

        def qe(dst, h, sel):
            return f"v_pk_fma_f32 {vr(dst + 2 * h, 2)}, {vr(EE[pb], 2)}, {vr(W3 + 2 * h, 2)}, {vr(Q + 2 * h, 2)} {sel}"

        def nt(t, h):
            return f"v_pk_fma_f32 {vr(NN + 2 * h, 2)}, {vr(NN + 2 * h, 2)}, {vr(t + 2 * h, 2)}, {vr(NN + 2 * h, 2)}"

        def yd(y, h):
            return f"v_pk_fma_f32 {vr(NN + 2 * h, 2)}, {vr(y + 2 * h, 2)}, {vr(DD + 2 * h, 2)}, {vr(NN + 2 * h, 2)}"

        def dt(t, h):
            return f"v_pk_fma_f32 {vr(DD + 2 * h, 2)}, {vr(DD + 2 * h, 2)}, {vr(t + 2 * h, 2)}, {vr(DD + 2 * h, 2)}"

        seq = [qe(Y, 0, lo), qe(Y, 1, lo), qe(QE, 0, hi), qe(QE, 1, hi)]
        seq += [f"v_pk_add_f32 {vr(Y + 2 * h, 2)}, {vr(p + 2 * h, 2)}, {vr(Y + 2 * h, 2)}" for h in range(2)]
        seq += [f"v_pk_add_f32 {vr(QE + 2 * h, 2)}, {vr(p + 4 + 2 * h, 2)}, {vr(QE + 2 * h, 2)}" for h in range(2)]
        seq += [f"v_exp_f32 v{TT + r}, v{Y + r}" for r in range(4)]
        seq += [f"v_exp_f32 v{p + r}, v{QE + r}" for r in range(2)]
        seq += [nt(TT, 0), nt(TT, 1)]
        seq += [f"v_exp_f32 v{p + 2}, v{QE + 2}", yd(Y, 0), yd(Y, 1), f"v_exp_f32 v{p + 3}, v{QE + 3}", dt(TT, 0), dt(TT, 1)]
        seq += [nt(p, 0), nt(p, 1), yd(QE, 0), yd(QE, 1), dt(p, 0), dt(p, 1)]
        for x in seq:
            a(x)

    def side_add(self, src, tag):
        self.a(f"""
        s_cmp_eq_u32 s{sCO}, 0
        s_cbranch_scc1 L_noside_{tag}
        s_lshl_b32 s{sA}, s{sW}, 9
        s_add_u32 s{sA}, s{sA}, {(SIDE + 512) ^ AB}
        v_xor_b32 v{QA}, s{sA}, v{L8}
        s_mov_b32 s{sC}, 0
        L_side_{tag}:
        ds_read_b64 {vr(TT, 2)}, v{QA}
        s_add_u32 s{sC}, s{sC}, 1
        s_waitcnt lgkmcnt(0)
        v_cmp_eq_u64 vcc, -1, {vr(TT, 2)}
        s_cmp_gt_u32 s{sC}, 40000
        s_cbranch_scc1 L_side_go_{tag}
        s_cbranch_vccnz L_side_{tag}
        L_side_go_{tag}:
        v_lshlrev_b32 v{QE}, 16, v{TT}
        v_and_b32 v{QE + 1}, 0xffff0000, v{TT}
        v_lshlrev_b32 v{QE + 2}, 16, v{TT + 1}
        v_and_b32 v{QE + 3}, 0xffff0000, v{TT + 1}
        v_pk_add_f32 {vr(src, 2)}, {vr(src, 2)}, {vr(QE, 2)}
        v_pk_add_f32 {vr(src + 2, 2)}, {vr(src + 2, 2)}, {vr(QE + 2, 2)}
        L_noside_{tag}:
        """)

    def f32_row(self, key, dst):
        self.a(f"""
        s_lshr_b32 s{dst}, s{key}, 9
        s_cmp_lt_u32 s{dst}, 20
        s_cselect_b32 s{sA}, {AB // 1024}, {AF2 // 1024 - 20}
        s_add_u32 s{dst}, s{dst}, s{sA}
        s_lshl_b32 s{dst}, s{dst}, 10
        """)

    def flush(self, exact, mid=None, final=False):
        a = self.a
        if exact:
            if mid:
                mid()
            acc, done = a.newlabel("facc"), a.newlabel("fdone")
            a(f"s_cmp_eq_u32 s{sMODE}, 2\ns_cbranch_scc1 {acc}")
            if final:
                self.side_add(NN, "x")
            a(f"""
            v_cvt_pk_bf16_f32 v{TT}, v{NN}, v{NN + 1}
            v_cvt_pk_bf16_f32 v{TT + 1}, v{NN + 2}, v{NN + 3}
            ds_write_b64 v{AG}, {vr(TT, 2)}
            v_xor_b32 v{AG}, s{sD}, v{L8}
            s_branch {done}
            {acc}:
            """)
            for r in range(4):
                a(f"ds_add_f32 v{AG}, v{NN + r} offset:{256 * r}")
            if not final:
                self.f32_row(sD, sD)
                a(f"v_add_u32 v{AG}, s{sD}, v{L4}")
            a(f"{done}:\ns_waitcnt lgkmcnt(0)")
            return
        for r in range(4):
            a(f"v_rcp_f32 v{TT + r}, v{DD + r}")
        if mid:
            mid()
        a(f"v_max3_f32 v{CK1}, v{CK1}, v{DD}, v{DD + 1}")
        a(f"v_max3_f32 v{CK1}, v{CK1}, v{DD + 2}, v{DD + 3}")
        for h in range(2):
            a(f"v_pk_mul_f32 {vr(Y + 2 * h, 2)}, {vr(NN + 2 * h, 2)}, {vr(TT + 2 * h, 2)}")
        for h in range(2):
            a(f"v_pk_fma_f32 {vr(CK2, 2)}, {vr(Y + 2 * h, 2)}, 0, {vr(CK2, 2)} op_sel_hi:[1,0,1]")
        if final:
            self.side_add(Y, "f")
        a(f"v_cvt_pk_bf16_f32 v{TT}, v{Y}, v{Y + 1}")
        a(f"v_cvt_pk_bf16_f32 v{TT + 1}, v{Y + 2}, v{Y + 3}")
        a(f"ds_write_b64 v{AG}, {vr(TT, 2)}")
        if not final:
            a(f"v_xor_b32 v{AG}, s{sD}, v{L8}\ns_waitcnt lgkmcnt(1)")

    def p_reads(self, pb, slot):
        a = self.a
        for row in range(2):
            for r in range(4):
                a(f"ds_read_u16_d16_hi v{PA[pb] + 4 * row + r}, v{RG} offset:{ROFF[slot] + row * 512 + r * 128}")

    def gather(self, slot):
        if "nodma" in self.opts:
            return
        self.a(f"""
        s_mov_b32 m0, s{sSLOT + slot}
        buffer_load_dwordx4 {vr(IA, 2)}, {sr(sP, 4)}, 0 idxen offen sc1 lds
        """)

    def reads(self, jj):
        a = self.a
        pb = jj & 1
        self.p_reads(pb ^ 1, (jj + 1) & 3)
        a(f"ds_read_b64 {vr(EE[pb ^ 1], 2)}, v{EA} offset:{8 * (jj + 1)}")
        a(f"ds_read_u16 v{IA}, v{IXA} offset:{4 * (jj + 5)}")

    def main_loop(self, exact, exit_label):
        a = self.a
        tag = "x" if exact else "f"
        loop, fin = f"L_loop_{tag}", f"L_fin_{tag}"
        prio = not exact and "noprio" not in self.opts
        a.label(loop)
        for jj in range(4):
            a(f"s_and_b32 s{sA}, s{sTM}, {3 << (2 * jj)}\ns_cbranch_scc1 L_blk_{tag}_{jj}\ns_waitcnt vmcnt(3)")
            self.reads(jj)
            if exact or "noil" in self.opts or "noedge" in self.opts:
                self.edge(jj & 1, 0, exact, False)
                self.edge(jj & 1, 1, exact, False)
            else:
                self.pair(jj & 1)
            a.label(f"L_back_{tag}_{jj}")
            a(f"s_mov_b32 m0, s{sSLOT + ((jj + 1) & 3)}\ns_waitcnt lgkmcnt(0)")
            if "nodma" not in self.opts:
                a(f"buffer_load_dwordx4 {vr(IA, 2)}, {sr(sP, 4)}, 0 idxen offen sc1 lds")
        a(f"""
        v_add_u32 v{IXA}, 16, v{IXA}
        v_add_u32 v{EA}, 32, v{EA}
        s_lshr_b64 {sr(sMASK, 2)}, {sr(sMASK, 2)}, 8
        s_or_b32 s{sMASK + 1}, s{sMASK + 1}, s{sHB}
        s_mov_b32 s{sHB}, 0
        s_mov_b32 s{sTM}, s{sMASK}
        s_add_u32 s{sI}, s{sI}, 8
        """)
        t2, t1, t0 = self.opt("p2", 12), self.opt("p1", 8), self.opt("p0", 4)
        tu = self.opt("tu", 12)
        a(f"s_sub_u32 s{sREM}, s{sREM}, 4\ns_cmp_gt_i32 s{sREM}, {t2}\ns_cbranch_scc1 {loop}")
        if "u2early" not in self.opts and "nou2" not in self.opts:
            a(f"""
            s_cmp_gt_i32 s{sREM}, {tu}
            s_cbranch_scc1 L_nou2_{tag}
            s_cmp_eq_u32 s{sW11}, -1
            s_cbranch_scc0 L_nou2_{tag}
            """)
            self.u2_loads()
            a(f"s_mov_b32 s{sW11}, s{sI}\ns_or_b32 s{sTM}, s{sTM}, 0xff\nL_nou2_{tag}:")
        if prio:
            a(f"""
            s_setprio 2
            s_cmp_gt_i32 s{sREM}, {t1}
            s_cbranch_scc1 {loop}
            s_setprio 1
            s_cmp_gt_i32 s{sREM}, {t0}
            s_cbranch_scc1 {loop}
            s_setprio 0
            """)
        a(f"s_branch {loop}")
        for jj in range(4):
            pb = jj & 1
            b = f"L_blk_{tag}_{jj}"
            a.reset_hist()
            a(f"""
            {b}:
            s_waitcnt vmcnt(11)
            s_cmp_eq_u32 s{sI}, s{sW11}
            s_cbranch_scc1 {b}_w
            s_waitcnt vmcnt(3)
            {b}_w:
            """)
            self.reads(jj)
            a(f"s_bitcmp1_b32 s{sMASK}, {2 * jj}\ns_cbranch_scc1 {b}_f0")
            self.edge(pb, 0, exact, False)
            a(f"{b}_a:\ns_bitcmp1_b32 s{sMASK}, {2 * jj + 1}\ns_cbranch_scc1 {b}_f1")
            self.edge(pb, 1, exact, False)
            a(f"s_branch L_back_{tag}_{jj}")
            for which in range(2):
                a.reset_hist()
                a(f"""
                {b}_f{which}:
                s_add_u32 s{sA}, s{sI}, {2 * jj + which}
                s_cmp_eq_u32 s{sA}, s{sNE}
                s_cbranch_scc1 {fin}
                v_readlane_b32 s{sB}, v{INFO}, s{sA}
                """)

                def mid():
                    a(f"""
                    s_and_b32 s{sC}, s{sB}, 0xffff
                    s_lshr_b32 s{sD}, s{sB}, 16
                    v_add_u32 v{QA}, s{sC}, v{L4}
                    ds_read2st64_b32 {vr(Q, 2)}, v{QA} offset0:0 offset1:1
                    ds_read2st64_b32 {vr(Q + 2, 2)}, v{QA} offset0:2 offset1:3
                    """)

                self.flush(exact, mid)
                self.edge(pb, which, exact, True)
                a(f"s_branch {b + '_a' if which == 0 else f'L_back_{tag}_{jj}'}")
        a.reset_hist()
        a.label(fin)
        self.flush(exact, final=True)
        if "u2early" not in self.opts:
            a(f"s_cmp_eq_u32 s{sW11}, -1\ns_cbranch_scc0 {exit_label}")
            self.u2_loads()
        a(f"s_branch {exit_label}")

    def zero_agg(self, addr, zq):
        a = self.a
        lab = a.newlabel("zagg")
        a(f"""
        ds_write_b128 v{addr}, {vr(zq, 4)}
        s_cmp_lt_u32 s{sW}, 4
        s_cbranch_scc0 {lab}
        ds_write_b128 v{addr}, {vr(zq, 4)} offset:16384
        {lab}:
        """)

    def u2_loads(self):
        a = self.a
        a(f"""
        s_lshl_b32 s{sA}, s{sW}, 14
        s_add_u32 s{sA}, s{sA}, {W_UT + 8192}
        s_add_u32 s{sB}, s{sA}, 4096
        v_lshlrev_b32 v{TM}, 4, v{LANE}
        """)
        for s in range(8):
            so = sA if s < 4 else sB
            a(f"buffer_load_dwordx4 {vr(UF + 4 * s, 4)}, v{TM}, {sr(sWS, 4)}, s{so} offen offset:{(s & 3) * 1024} sc1")

    def hi_passes(self, fn):
        a = self.a
        fn(0)
        fn(1)
        lab = a.newlabel("hp")
        a(f"s_cmp_eq_u64 {sr(sVAL + 4, 2)}, 0\ns_cbranch_scc1 {lab}")
        fn(2)
        fn(3)
        a.label(lab)

    def rec_issue(self, S):
        a = self.a
        a(f"""
        s_lshl_b32 s{sA}, s{sP0}, 2
        s_lshl_b32 s{sB}, s{sP0}, 5
        v_mov_b32 v{S.tmp}, {OOB}
        s_add_u32 s{sC}, s{sA}, 4
        s_add_u32 s{sD}, s{sA}, 8
        v_cmp_lt_i32 {sr(sVAL, 2)}, s{sA}, v{CQ}
        s_add_u32 s{sA}, s{sA}, 12
        v_cmp_lt_i32 {sr(sVAL + 2, 2)}, s{sC}, v{CQ}
        v_cmp_lt_i32 {sr(sVAL + 4, 2)}, s{sD}, v{CQ}
        v_cmp_lt_i32 {sr(sVAL + 6, 2)}, s{sA}, v{CQ}
        s_cmp_gt_u32 s{sNP}, 1
        s_cselect_b64 {sr(sVAL + 2, 2)}, {sr(sVAL + 2, 2)}, 0
        s_cselect_b64 {sr(sVAL + 4, 2)}, {sr(sVAL + 4, 2)}, 0
        s_cselect_b64 {sr(sVAL + 6, 2)}, {sr(sVAL + 6, 2)}, 0
        """)
        lab = a.newlabel("hp")
        a(f"s_cmp_eq_u64 {sr(sVAL + 4, 2)}, 0\ns_cbranch_scc1 {lab}")
        for k in (2, 3, 0, 1):
            if k == 0:
                a.label(lab)
            a(f"""
            v_cndmask_b32 v{S.adr + k}, v{S.tmp}, v{RBA}, {sr(sVAL + 2 * k, 2)}
            buffer_load_dwordx2 {vr(S.rec[k], 2)}, v{S.adr + k}, {sr(sWS, 4)}, s{sB} offen offset:{32 * k} sc1
            """)

    def count(self, S):
        a = self.a
        a(f"v_mov_b32 v{S.tmp}, 1\ns_mov_b32 s{sA}, {CNTN}")

        def one(k):
            a(f"""
            s_mov_b64 exec, {sr(sVAL + 2 * k, 2)}
            v_bfe_u32 v{S.adr + k}, v{S.rec[k]}, 16, 6
            v_lshl_add_u32 v{S.adr + k}, v{S.adr + k}, 2, s{sA}
            ds_add_rtn_u32 v{S.rank + k}, v{S.adr + k}, v{S.tmp}
            """)
        self.hi_passes(one)
        a("s_mov_b64 exec, -1")

    def lists(self, S, generic_label):
        a = self.a
        sc = S.tmp
        done = a.newlabel("lists")
        a(f"""
        s_mov_b32 s{sA}, {CNTN}
        v_lshl_add_u32 v{sc + 3}, v{LANE}, 2, s{sA}
        v_mov_b32 v{sc + 2}, {MISC}
        ds_read_b32 v{sc}, v{sc + 3}
        ds_read_b32 v{sc + 2}, v{sc + 2}
        s_waitcnt lgkmcnt(0)
        v_mov_b32 v{sc + 1}, v{sc}
        v_readfirstlane_b32 s{sMAXC}, v{sc + 2}
        v_cmp_eq_u32 {sr(sZ, 2)}, 0, v{sc}
        v_subrev_u32 v{sc}, {DL}, v{sc}
        """)
        self.scan(sc + 1)
        a(f"""
        v_readlane_b32 s{sM}, v{sc + 1}, 63
        v_sub_u32 v{sc + 1}, v{sc + 1}, v{sc}
        s_cmp_eq_u32 s{sNP}, {NPASS}
        s_cbranch_scc0 {done}
        s_cmp_gt_u32 s{sM}, 1024
        s_cbranch_scc1 {generic_label}
        s_cmp_eq_u32 s{sMAXC}, 0
        s_cbranch_scc0 {generic_label}
        s_cmp_lt_u32 s{sM}, 64
        s_cbranch_scc0 {done}
        s_mov_b32 s{sMODE}, 2
        {done}:
        """)
        self.hi_passes(lambda k: a(f"ds_bpermute_b32 v{S.adr + k}, v{S.adr + k}, v{sc + 1}"))
        a(f"""
        s_add_u32 s{sA}, s{sM}, 1
        s_lshr_b32 s{sA}, s{sA}, 1
        s_mul_i32 s{sB}, s{sA}, s{sW}
        s_add_u32 s{sC}, s{sB}, s{sA}
        s_lshr_b32 s{sI}, s{sB}, 4
        s_lshr_b32 s{sC}, s{sC}, 4
        s_sub_u32 s{sREM}, s{sC}, s{sI}
        s_lshl_b32 s{sC}, s{sC}, 1
        s_cmp_lt_u32 s{sC}, s{sM}
        s_cselect_b32 s{sCO}, 1, 0
        s_min_u32 s{sC}, s{sC}, s{sM}
        s_lshl_b32 s{sI}, s{sI}, 1
        s_sub_u32 s{sNE}, s{sC}, s{sI}
        s_mov_b32 s{sA}, {(IL - 2 * DL) & 0xffffffff}
        s_mov_b32 s{sB}, {(EL - 4 * DL) & 0xffffffff}
        s_waitcnt lgkmcnt(0)
        """)

        def one(k):
            a(f"""
            s_mov_b64 exec, {sr(sVAL + 2 * k, 2)}
            v_add_u32 v{S.rank + k}, v{S.rank + k}, v{S.adr + k}
            v_lshl_add_u32 v{S.adr + k}, v{S.rank + k}, 1, s{sA}
            v_lshl_add_u32 v{sc + (k & 1)}, v{S.rank + k}, 2, s{sB}
            ds_write_b8_d16_hi v{S.rank + k}, v{S.rec[k]}
            ds_write_b16 v{S.adr + k}, v{S.rec[k]}
            ds_write_b32 v{sc + (k & 1)}, v{S.rec[k] + 1}
            """)
        self.hi_passes(one)
        a("s_mov_b64 exec, -1")

    def setup(self, tm):
        a = self.a
        a(f"""
        s_add_u32 s{sD}, s{sI}, {DL - 1}
        v_add_u32 v{INFO}, s{sD}, v{LANE}
        s_lshl_b32 s{sA}, s{sI}, 1
        s_add_u32 s{sA}, s{sA}, {IL}
        v_lshl_add_u32 v{EA}, v{LANE}, 1, s{sA}
        ds_read_u16 v{tm + 3}, v{EA}
        ds_read_u8 v{tm}, v{INFO}
        ds_read_u8 v{tm + 2}, v{INFO} offset:1
        ds_read_u8 v{tm + 1}, v{INFO} offset:2
        s_cmp_lt_u32 s{sW}, 9
        s_mov_b32 s{sC}, {PILB}
        s_cselect_b32 s{sC}, {PILA}, s{sC}
        s_mul_i32 s{sB}, s{sW}, 192
        s_add_u32 s{sB}, s{sB}, s{sC}
        v_lshl_add_u32 v{INFO}, v{LANE}, 1, s{sB}
        v_mov_b32 v{tm + 4}, 0xffff
        v_cmp_gt_i32 vcc, s{sNE}, v{LANE}
        s_mov_b32 exec_hi, 0
        ds_write_b16 v{INFO}, v{tm + 4} offset:128
        s_mov_b64 exec, -1
        v_lshrrev_b32 v{IXA}, 5, v{LANE}
        v_lshl_add_u32 v{IXA}, v{IXA}, 1, s{sB}
        s_lshl_b32 s{sA}, s{sI}, 2
        s_add_u32 s{sA}, s{sA}, {EL}
        v_mov_b32 v{EA}, s{sA}
        s_waitcnt lgkmcnt(4)
        v_cndmask_b32 v{tm + 3}, v{tm + 4}, v{tm + 3}, vcc
        ds_write_b16 v{INFO}, v{tm + 3}
        """)
        for k in range(5):
            a(f"ds_read_u16 v{IX0 + k}, v{IXA} offset:{4 * k}")
        a(f"""
        s_waitcnt lgkmcnt(7)
        v_cmp_ne_u32 {sr(sMASK, 2)}, v{tm + 2}, v{tm + 1}
        v_cmp_eq_u32 vcc, v{tm + 2}, v{tm}
        v_mul_u32_u24 v{INFO}, {QS}, v{tm + 2}
        v_and_b32 v{tm + 1}, 15, v{tm + 2}
        v_lshlrev_b32 v{tm + 1}, 4, v{tm + 1}
        v_lshl_add_u32 v{tm + 1}, v{tm + 2}, 9, v{tm + 1}
        v_lshl_or_b32 v{INFO}, v{tm + 1}, 16, v{INFO}
        s_sub_u32 s{sA}, s{sNE}, 1
        s_bitcmp0_b64 {sr(sMASK, 2)}, s{sA}
        s_cselect_b32 s{sCO}, s{sCO}, 0
        s_bitset1_b64 {sr(sMASK, 2)}, s{sA}
        v_readfirstlane_b32 s{sB}, v{INFO}
        ; end-of-segment bits become start-of-segment bits; bit 64 is carried separately
        s_lshr_b32 s{sHB2}, s{sMASK + 1}, 31
        s_lshl_b32 s{sHB2}, s{sHB2}, 24
        s_lshl_b64 {sr(sMASK, 2)}, {sr(sMASK, 2)}, 1
        s_and_b32 s{sC}, vcc_lo, 1
        s_cmp_eq_u32 s{sI}, 0
        s_cselect_b32 s{sC}, 0, s{sC}
        s_cmp_lt_u32 s{sMODE}, 2
        s_cselect_b32 s{sC}, s{sC}, 0
        s_lshl_b32 s{sA}, s{sW}, 9
        s_add_u32 s{sA}, s{sA}, {SIDE ^ AB}
        s_lshr_b32 s{sD}, s{sB}, 16
        s_cmp_eq_u32 s{sC}, 0
        s_cselect_b32 s{sAG0}, s{sD}, s{sA}
        s_and_b32 s{sQ0}, s{sB}, 0xffff
        """)

    def slot_consts(self):
        self.a(f"""
        s_lshl_b32 s{sA}, s{sW}, 11
        s_add_u32 s{sSLOT}, s{sA}, {RING + ROFF[0]}
        s_add_u32 s{sSLOT + 1}, s{sA}, {RING + ROFF[1]}
        s_add_u32 s{sSLOT + 2}, s{sA}, {RING + ROFF[2]}
        s_add_u32 s{sSLOT + 3}, s{sA}, {RING + ROFF[3]}
        v_and_b32 v{IA + 1}, 31, v{LANE}
        v_lshlrev_b32 v{IA + 1}, 4, v{IA + 1}
        """)

    def lane_consts(self):
        self.a(f"""
        v_lshl_add_u32 v{RG}, v{LANE}, 1, s{sSLOT}
        v_lshlrev_b32 v{L4}, 2, v{LANE}
        v_lshlrev_b32 v{L8}, 3, v{LANE}
        v_or_b32 v{L8}, {AB}, v{L8}
        """)

    def side_fill(self, tmp, adr):
        self.a(f"""
        v_mov_b64 {vr(tmp, 2)}, -1
        s_lshl_b32 s{sA}, s{sW}, 9
        s_add_u32 s{sA}, s{sA}, {SIDE}
        v_lshl_add_u32 v{adr}, v{LANE}, 3, s{sA}
        ds_write_b64 v{adr}, {vr(tmp, 2)}
        """)

    def tag_calc(self):
        self.a(f"""
        v_readfirstlane_b32 s{sTAG}, v{W3}
        v_readfirstlane_b32 s{sTAG + 1}, v{W3 + 1}
        s_add_u32 s{sTAG}, s{sTAG}, 1
        s_addc_u32 s{sTAG + 1}, s{sTAG + 1}, 0
        s_lshl_b32 s{sTLO}, s{sTAG + 1}, 20
        s_lshl_b32 s{sRA}, s{sTAG}, 24
        s_bfe_u32 s{sRB}, s{sTAG}, 0x100008
        """)

    def clean(self, S):
        a = self.a
        lp, ok = a.newlabel("clean"), a.newlabel("cleanok")
        a(f"s_mov_b32 s{sM}, 0\n{lp}:\ns_mov_b64 s[40:41], 0")

        def one(k):
            a(f"""
            s_mov_b64 exec, {sr(sVAL + 2 * k, 2)}
            v_xor_b32 v{S.rec[k]}, s{sRA}, v{S.rec[k]}
            v_xor_b32 v{S.rec[k] + 1}, s{sRB}, v{S.rec[k] + 1}
            v_lshrrev_b32 v{S.adr + k}, 24, v{S.rec[k]}
            v_lshl_or_b32 v{S.adr + k}, v{S.rec[k] + 1}, 16, v{S.adr + k}
            v_cmp_ne_u32 vcc, 0, v{S.adr + k}
            s_or_b64 s[40:41], s[40:41], vcc
            """)
        self.hi_passes(one)
        a(f"""
        s_mov_b64 exec, -1
        s_cmp_eq_u64 s[40:41], 0
        s_cbranch_scc1 {ok}
        s_add_u32 s{sM}, s{sM}, 1
        s_cmp_gt_u32 s{sM}, {POLL_LIMIT}
        s_cbranch_scc1 {ok}
        """)
        self.rec_issue(S)
        a(f"s_waitcnt vmcnt(0)\ns_branch {lp}\n{ok}:")

    def binning(self):
        a = self.a
        DV, SV, EP, AD, RK, RV, H0, B0, SQ, t4, t5, t6, t7 = 24, 26, 28, 30, 32, 34, 40, 44, 48, 52, 53, 54, 56
        a(f"""
        s_mov_b32 s{sC}, -40
        s_mov_b32 s{sD}, {HIST}
        v_mov_b32 v{t4}, 1
        v_mov_b32 v{t7}, {S1C}
        v_lshlrev_b32 v{t5}, 4, v{LANE}
        v_add_u32 v{t6}, {HIST}, v{t5}
        s_waitcnt vmcnt(1)
        """)
        self.stamp("edges")
        self.tag_calc()
        R2 = range(2)
        for i in R2:
            a(f"v_mul_u32_u24 v{AD + i}, 52429, v{DV + i}")
        for i in R2:
            a(f"v_lshrrev_b32 v{AD + i}, 21, v{AD + i}")
        for i in R2:
            a(f"v_min_u32 v{RK + i}, 255, v{AD + i}")
        for i in R2:
            a(f"v_and_b32 v{AD + i}, 7, v{RK + i}\nv_lshrrev_b32 v{H0 + i}, 3, v{RK + i}")
        for i in R2:
            a(f"v_lshl_or_b32 v{AD + i}, v{AD + i}, 5, v{H0 + i}")
        for i in R2:
            a(f"v_lshl_add_u32 v{AD + i}, v{AD + i}, 2, s{sD}")
        for i in R2:
            a(f"v_mad_i32_i24 v{DV + i}, v{RK + i}, s{sC}, v{DV + i}")
            a(f"ds_add_rtn_u32 v{RK + i}, v{AD + i}, v{t4}")
        a(f"s_mov_b64 exec, 1\nds_add_u32 v{t7}, v{t4}\ns_mov_b64 exec, -1")
        for i in R2:
            a(f"v_lshl_or_b32 v{RV + 2 * i}, v{DV + i}, 16, v{SV + i}")
        a(f"""
        v_mov_b32 v{RV + 3}, 0xffff0000
        v_lshl_or_b32 v{RV + 1}, v{EP}, 16, s{sRB}
        v_and_or_b32 v{RV + 3}, v{EP}, v{RV + 3}, s{sRB}
        v_or_b32 v{RV}, s{sRA}, v{RV}
        v_or_b32 v{RV + 2}, s{sRA}, v{RV + 2}
        """)
        self.spin(S1C, 5, t7, f"ds_read_b128 {vr(H0, 4)}, v{t6}")
        a(f"""
        v_add_u32 v{B0 + 1}, v{H0}, v{H0 + 1}
        v_add_u32 v{SQ}, v{H0 + 2}, v{H0 + 3}
        v_add_u32 v{SQ}, v{SQ}, v{B0 + 1}
        v_mov_b32 v{SQ + 1}, v{SQ}
        """)
        self.scan(SQ + 1)
        a(f"""
        v_sub_u32 v{B0}, v{SQ + 1}, v{SQ}
        v_add_u32 v{B0 + 2}, v{B0}, v{B0 + 1}
        v_add_u32 v{B0 + 1}, v{B0}, v{H0}
        v_add_u32 v{B0 + 3}, v{B0 + 2}, v{H0 + 2}
        ds_write_b128 v{t6}, {vr(B0, 4)} offset:{BASE - HIST}
        ds_read_b32 v{DV}, v{AD} offset:{BASE - HIST}
        ds_read_b32 v{DV + 1}, v{AD + 1} offset:{BASE - HIST}
        s_mov_b32 s{sD}, {SORT}
        v_mov_b32 v{t7}, {S2C}
        v_lshlrev_b32 v{t5}, 4, v{TID}
        v_add_u32 v{t6}, {SORT}, v{t5}
        s_mul_i32 s{sB}, s{sT}, {EC * 8}
        s_add_u32 s{sB}, s{sB}, {W_RECS}
        s_waitcnt lgkmcnt(0)
        v_add_u32 v{DV}, v{DV}, v{RK}
        v_add_u32 v{DV + 1}, v{DV + 1}, v{RK + 1}
        v_lshl_add_u32 v{DV}, v{DV}, 3, s{sD}
        v_lshl_add_u32 v{DV + 1}, v{DV + 1}, 3, s{sD}
        ds_write_b64 v{DV}, {vr(RV, 2)}
        ds_write_b64 v{DV + 1}, {vr(RV + 2, 2)}
        s_mov_b64 exec, 1
        ds_add_u32 v{t7}, v{t4}
        s_mov_b64 exec, -1
        """)
        self.spin(S2C, 5, t7, f"ds_read_b128 {vr(SQ, 4)}, v{t6}")
        a(f"buffer_store_dwordx4 {vr(SQ, 4)}, v{t5}, {sr(sWS, 4)}, s{sB} offen sc1")
        self.stamp("binned")

    def build(self):
        a = self.a
        t0, t1, t2, t3, t4, t5, t6, t7 = range(58, 66)
        PQ = 24
        UQ = 108
        u0, u1, u2, u3 = 57, 58, 59, 60

        if self.stamps and "dbg" not in self.opts:
            a(f"s_memrealtime s[86:87]\ns_memtime {sr(self.STAMP_REGS[0], 2)}")
        if "pad0" in self.opts or any(o.startswith("padat=") for o in self.opts):
            a("s_memrealtime s[96:97]")
        a(f"""
        s_cmp_ge_u32 s{sT}, {NT}
        s_cbranch_scc1 L_end
        s_load_dwordx16 s[40:55], s[0:1], 0
        s_load_dwordx2 s[56:57], s[0:1], 64
        v_and_b32 v{LANE}, 63, v{TID}
        """)
        if "nocodepf" not in self.opts:
            a(f"""
            s_getpc_b64 s[4:5]
            L_pc:
            """)
            if "fullpf" in self.opts:
                a(f"""
                v_lshlrev_b32 v{t0}, 4, v{TID}
                v_min_u32 v{t0}, L_code_end-L_pc-16, v{t0}
                global_load_dwordx4 {vr(AC2 + 8, 4)}, v{t0}, s[4:5]
                """)
            else:
                a(f"""
                s_lshr_b32 s6, s{sT}, 3
                s_and_b32 s6, s6, 31
                s_lshl_b32 s6, s6, 10
                v_lshl_add_u32 v{t0}, v{TID}, 4, s6
                v_min_u32 v{t0}, L_code_end-L_pc-16, v{t0}
                v_cmp_gt_u32 vcc, 64, v{TID}
                s_cbranch_vccz L_nopf
                global_load_dwordx4 {vr(AC2 + 8, 4)}, v{t0}, s[4:5]
                L_nopf:
                """)
        a(f"""
        v_lshrrev_b32 v{t0}, 6, v{TID}
        v_mov_b32 v{t6}, 0
        v_lshlrev_b32 v{t7}, 2, v{TID}
        v_readfirstlane_b32 s{sW}, v{t0}
        v_add_u32 v{t7}, {HIST}, v{t7}
        s_cmp_lt_u32 s{sW}, 4
        s_cbranch_scc1 L_z1
        s_cmp_gt_u32 s{sW}, 5
        s_cbranch_scc1 L_z2
        v_add_u32 v{t7}, {CNTN - HIST - 1024}, v{t7}
        L_z1:
        ds_write_b32 v{t7}, v{t6}
        L_z2:
        v_lshrrev_b32 v{t3}, 5, v{TID}
        v_and_b32 v{t4}, 31, v{TID}
        v_and_b32 v{t5}, 15, v{t3}
        v_xor_b32 v{t6}, v{t5}, v{t4}
        v_lshlrev_b32 v{t6}, 4, v{t6}
        s_mul_i32 s{sB}, s{sT}, {T * 512}
        v_lshl_add_u32 v{t6}, v{t3}, 9, v{t6}
        v_add_u32 v{GO}, s{sB}, v{t6}
        v_and_b32 v{t6}, 3, v{t5}
        v_lshrrev_b32 v{t7}, 1, v{t5}
        v_and_b32 v{t7}, 4, v{t7}
        v_or_b32 v{t6}, v{t6}, v{t7}
        v_lshlrev_b32 v{t6}, 1, v{t6}
        v_xor_b32 v{t6}, v{t6}, v{t4}
        v_lshlrev_b32 v{t6}, 4, v{t6}
        v_lshl_add_u32 v{WOFF}, v{t5}, 9, v{t6}
        s_and_b32 s{sW1K}, s{sW}, 7
        s_lshl_b32 s{sW1K}, s{sW1K}, 10
        """)
        if self.stamps:
            a(f"v_mov_b32 v{STAMPV}, 0")
            for r in self.STAMP_REGS[1:5]:
                a(f"s_mov_b32 s{r}, 0")
        a("s_waitcnt lgkmcnt(0)")

        def srd(s, p, nbytes):
            a(f"""
            s_mov_b32 s{s}, s{p}
            s_mov_b32 s{s + 1}, s{p + 1}
            s_mov_b32 s{s + 2}, {nbytes}
            s_mov_b32 s{s + 3}, 0x20000
            """)

        srd(sDST, 46, E * 4)
        srd(sSRC, 44, E * 4)
        srd(sEA, 42, E * 2)
        srd(sX, 40, N * 512)
        srd(sWM, 48, 513 * 512)
        srd(sWU, 50, 512 * 512)
        srd(sWS, 56, WS_SIZE)
        a("s_barrier")
        if self.opt("pad", 0) and "pad0" not in self.opts:
            a("s_memrealtime s[96:97]")
        self.stamp("start")
        self.stamp("bar0")
        EPV = W3
        a(f"""
        v_mov_b32 v{t0}, {W_EPOCH}
        s_cmp_ge_u32 s{sW}, 8
        s_cbranch_scc1 L_role_l
        s_cmp_ge_u32 s{sW}, 5
        s_cbranch_scc1 L_role_u
        s_setprio 3
        v_lshlrev_b32 v{t6}, 3, v{TID}
        v_lshlrev_b32 v{t7}, 2, v{TID}
        s_mul_i32 s{sA}, s{sT}, {EC * 4}
        s_mul_i32 s{sB}, s{sT}, {EC * 2}
        buffer_load_dwordx2 v[24:25], v{t6}, {sr(sDST, 4)}, s{sA} offen
        buffer_load_dwordx2 v[26:27], v{t6}, {sr(sSRC, 4)}, s{sA} offen
        buffer_load_dword v28, v{t7}, {sr(sEA, 4)}, s{sB} offen
        buffer_load_dwordx2 {vr(EPV, 2)}, v{t0}, {sr(sWS, 4)}, 0 offen
        s_sub_u32 s{sA}, s{sW}, 1
        s_and_b32 s{sA}, s{sA}, 7
        s_mul_i32 s{sD}, s{sA}, {NT}
        s_add_u32 s{sD}, s{sD}, s{sT}
        s_lshl_b32 s{sA}, s{sA}, 10
        s_add_u32 m0, s{sA}, {SLOT[3]}
        s_and_b32 s{sA}, s{sD}, 7
        s_bfe_u32 s{sB}, s{sD}, 0x40003
        s_lshr_b32 s{sC}, s{sD}, 7
        s_lshl_b32 s{sUO}, s{sB}, 4
        s_lshl_b32 s{sUG}, s{sC}, 3
        s_add_u32 s{sUO}, s{sUO}, s{sUG}
        s_add_u32 s{sUO}, s{sUO}, s{sA}
        s_lshl_b32 s{sUG}, s{sUO}, 5
        s_add_u32 s{sUG}, s{sUG}, {W_UTAG}
        s_lshl_b32 s{sUO}, s{sUO}, 10
        s_add_u32 s{sUO}, s{sUO}, {W_UT}
        s_lshl_b32 s{sA}, s{sA}, 5
        s_lshl_b32 s{sB}, s{sB}, 5
        s_cmp_lt_u32 s{sD}, 256
        s_cselect_b32 s{sB}, s{sB}, {OOB}
        s_cselect_b32 s{sUO}, s{sUO}, {OOB}
        s_cselect_b32 s{sUG}, s{sUG}, {OOB}
        v_lshrrev_b32 v{t6}, 1, v{LANE}
        v_add_u32 v{t6}, s{sA}, v{t6}
        v_and_b32 v{t5}, 1, v{LANE}
        v_lshlrev_b32 v{t5}, 4, v{t5}
        s_cmp_eq_u32 s{sC}, 0
        s_cbranch_scc1 L_pc_u1
        v_and_b32 v{t7}, 3, v{t6}
        v_lshrrev_b32 v{t6}, 2, v{t6}
        v_lshl_add_u32 v{t6}, v{t7}, 6, v{t6}
        v_add_u32 v{t6}, 256, v{t6}
        L_pc_u1:
        v_lshl_add_u32 v{t6}, v{t6}, 9, v{t5}
        buffer_load_dwordx4 v{t6}, {sr(sWU, 4)}, s{sB} offen lds
        s_branch L_role_done
        L_role_u:
        buffer_load_dwordx2 {vr(EPV, 2)}, v{t0}, {sr(sWS, 4)}, 0 offen
        v_subrev_u32 v{t3}, 10, v{t3}
        s_mul_i32 s{sB}, s{sT}, {T * 512}
        s_lshl_b32 s{sA}, s{sW}, 10
        """)
        for i in range(7):
            if i == 6:
                a(f"""
                s_cmp_eq_u32 s{sW}, 7
                s_cselect_b32 s{sC}, 2, 0
                v_subrev_u32 v{t3}, s{sC}, v{t3}
                s_lshl_b32 s{sC}, s{sC}, 9
                s_sub_u32 s{sA}, s{sA}, s{sC}
                """)
            a(f"""
            v_and_b32 v{t6}, 15, v{t3}
            v_xor_b32 v{t6}, v{t6}, v{t4}
            v_lshlrev_b32 v{t6}, 4, v{t6}
            s_add_u32 m0, s{sA}, {XB - 5120 + 3072 * i}
            v_lshl_add_u32 v{t6}, v{t3}, 9, v{t6}
            v_add_u32 v{t3}, 6, v{t3}
            buffer_load_dwordx4 v{t6}, {sr(sX, 4)}, s{sB} offen lds
            """)
        a(f"""
        s_branch L_role_done
        L_role_l:
        buffer_load_dwordx2 {vr(EPV, 2)}, v{t0}, {sr(sWS, 4)}, 0 offen
        s_lshr_b32 s{sA}, s{sT}, 3
        s_lshl_b32 s{sA}, s{sA}, 13
        s_add_u32 s{sA}, s{sA}, s{sW1K}
        s_lshr_b32 s{sC}, s{sA}, 1
        v_lshlrev_b32 v{t7}, 3, v{LANE}
        buffer_load_dwordx2 {vr(AC2, 2)}, v{t7}, {sr(sWM, 4)}, s{sC} offen
        s_add_u32 s{sC}, s{sC}, 131072
        buffer_load_dwordx2 {vr(AC2 + 2, 2)}, v{t7}, {sr(sWM, 4)}, s{sC} offen
        s_cmp_eq_u32 s{sW}, 15
        s_cbranch_scc0 L_role_done
        s_mov_b32 m0, {W3L}
        v_lshlrev_b32 v{t7}, 4, v{LANE}
        s_mov_b32 s{sB}, {512 * 512}
        buffer_load_dwordx4 v{t7}, {sr(sWM, 4)}, s{sB} offen lds
        L_role_done:
        """)
        UA = W3 - 9 - 5
        srd(sOUT, 52, N * 512)
        a(f"""
        s_add_u32 s{sP}, s56, {W_P}
        s_addc_u32 s{sP + 1}, s57, 0
        s_or_b32 s{sP + 1}, s{sP + 1}, {512 << 16}
        s_mov_b32 s{sP + 2}, {N}
        s_mov_b32 s{sP + 3}, 0x20000
        s_mov_b32 s{sNL2E}, {NLOG2E}
        s_mov_b32 s{sNL2E + 1}, {NLOG2E}
        s_mov_b32 s{sNLN2}, {NLN2}
        s_mov_b32 s{sNLN2 + 1}, {NLN2}
        s_lshl_b32 s{sWK}, s{sW}, 10
        s_lshr_b32 s{sHI}, s{sW}, 3
        s_lshl_b32 s{sHI}, s{sHI}, 13
        s_mov_b32 s{sGEN}, 0
        v_and_b32 v{t0}, 15, v{LANE}
        v_lshrrev_b32 v{t1}, 4, v{LANE}
        v_bfe_u32 v{t2}, v{LANE}, 2, 2
        v_and_b32 v{t3}, 3, v{LANE}
        s_lshl_b32 s{sB}, s{sW}, 1
        v_and_b32 v{t4}, 1, v{t1}
        v_lshl_or_b32 v{t4}, v{t4}, 2, v{t2}
        v_lshlrev_b32 v{t4}, 1, v{t4}
        v_lshrrev_b32 v{t5}, 1, v{t3}
        v_add_u32 v{t5}, s{sB}, v{t5}
        v_xor_b32 v{t4}, v{t4}, v{t5}
        v_lshlrev_b32 v{t4}, 4, v{t4}
        v_and_b32 v{t5}, 1, v{t3}
        v_lshl_add_u32 v{t4}, v{t5}, 3, v{t4}
        v_lshl_add_u32 v{t5}, v{t1}, 3, v{t2}
        v_lshl_add_u32 v{TR0}, v{t5}, 9, v{t4}
        v_add_u32 v{TR1}, 65536, v{TR0}
        v_lshlrev_b32 v{t5}, 5, v{t5}
        v_lshl_add_u32 v{UA + 9}, v{t3}, 3, v{t5}
        v_lshlrev_b32 v{t5}, 9, v{t0}
        v_add_u32 v{t5}, {XB}, v{t5}
        """)
        for k in range(4):
            a(f"""
            v_add_u32 v{t4}, {4 * k}, v{t1}
            v_xor_b32 v{t4}, v{t4}, v{t0}
            v_lshl_add_u32 v{XA + k}, v{t4}, 4, v{t5}
            """)
        a(f"""
        v_lshrrev_b32 v{t4}, 1, v{t1}
        v_add_u32 v{t4}, s{sB}, v{t4}
        v_xor_b32 v{t4}, v{t4}, v{t0}
        v_lshlrev_b32 v{t4}, 4, v{t4}
        v_and_b32 v{t6}, 1, v{t1}
        v_lshl_add_u32 v{t4}, v{t6}, 3, v{t4}
        v_lshl_add_u32 v{t4}, v{t0}, 9, v{t4}
        v_add_u32 v{STG}, {PS}, v{t4}
        v_lshlrev_b32 v{STR}, 4, v{TID}
        v_add_u32 v{STR}, {PS}, v{STR}
        v_add_u32 v{GO2}, 16384, v{GO}
        s_cmp_lt_u32 s{sW}, 4
        s_cbranch_scc1 L_go2
        v_mov_b32 v{GO2}, {OOB}
        L_go2:
        s_cmp_lt_u32 s{sW}, 5
        s_cbranch_scc0 L_nobin
        """)
        self.binning()
        a(f"""
        s_cmp_eq_u32 s{sW}, 0
        s_cbranch_scc0 L_piece
        v_lshlrev_b32 v{t0}, 3, v{LANE}
        v_add_u32 v{t0}, {HIST}, v{t0}
        ds_read_b64 {vr(66, 2)}, v{t0}
        ds_read_b64 {vr(68, 2)}, v{t0} offset:{BASE - HIST}
        ds_read_b64 {vr(70, 2)}, v{t0} offset:512
        ds_read_b64 {vr(72, 2)}, v{t0} offset:{BASE - HIST + 512}
        v_lshlrev_b32 v{t1}, 4, v{LANE}
        s_lshl_b32 s{sB}, s{sT}, 11
        s_add_u32 s{sB}, s{sB}, {W_OFFS}
        s_waitcnt lgkmcnt(0)
        """)
        for i in range(4):
            h, b = 66 + 4 * (i >> 1) + (i & 1), 68 + 4 * (i >> 1) + (i & 1)
            a(f"""
            v_lshl_or_b32 v{ACC + 2 * i}, v{h}, 10, v{b}
            v_mov_b32 v{ACC + 2 * i + 1}, s{sTAG}
            v_or_b32 v{ACC + 2 * i}, s{sTLO}, v{ACC + 2 * i}
            """)
        a(f"""
        buffer_store_dwordx4 {vr(ACC, 4)}, v{t1}, {sr(sWS, 4)}, s{sB} offen sc1
        buffer_store_dwordx4 {vr(ACC + 4, 4)}, v{t1}, {sr(sWS, 4)}, s{sB} offen offset:1024 sc1
        s_setprio 0
        s_branch L_bin_done
        L_piece:
        s_setprio 0
        s_cmp_lt_u32 s{sW}, 3
        s_cbranch_scc0 L_bin_done
        s_lshl_b32 s{sA}, s{sW}, 10
        s_add_u32 s{sA}, s{sA}, {SLOT[3] - 1024}
        v_add_u32 v{UA + 9}, s{sA}, v{UA + 9}
        v_lshlrev_b32 v{W3 + 2}, 4, v{LANE}
        s_waitcnt vmcnt(1)
        ds_read_b64_tr_b16 {vr(AC2 + 4, 2)}, v{UA + 9}
        ds_read_b64_tr_b16 {vr(AC2 + 6, 2)}, v{UA + 9} offset:128
        s_waitcnt lgkmcnt(0)
        buffer_store_dwordx4 {vr(AC2 + 4, 4)}, v{W3 + 2}, {sr(sWS, 4)}, s{sUO} offen sc1
        s_branch L_bin_done
        L_nobin:
        s_cmp_ge_u32 s{sW}, 8
        s_cbranch_scc1 L_bin_ld
        v_mov_b32 v{W3 + 2}, {XCNT}
        v_mov_b32 v{W3 + 3}, 1
        s_mov_b64 exec, 1
        s_waitcnt vmcnt(4)
        ds_add_u32 v{W3 + 2}, v{W3 + 3}
        s_mov_b64 exec, -1
        s_branch L_bin_done
        L_bin_ld:
        """)
        self.dma_body(0, 0)
        a(f"""
        s_waitcnt vmcnt(6)
        L_bin_done:
        """)
        self.tag_calc()
        self.xpreload(UA + 9)
        self.stamp("xpre")

        R0 = 116
        XBUF = (80, 92)
        fbuf = [UF + 4 * i for i in range(6)] + [56, 60]
        OV, o0, o1, o2, o3, UV = 20, 22, 23, 16, 17, 116

        def frag(i):
            a(f"""
            s_add_u32 s{sB}, s{sUB}, {1024 * i}
            buffer_load_dwordx4 {vr(fbuf[i], 4)}, v{FO}, {sr(sWS, 4)}, s{sB} offen sc1
            """)
            self.vm("LN", f"f{i}")

        def x3(i):
            for rb in range(3):
                a(f"ds_read_b128 {vr(XBUF[i & 1] + 4 * rb, 4)}, v{XA + (i & 3)} offset:{rb * 8192 + (i >> 2) * 256}")
                self.lq.append(f"x{i}")

        def consume(i):
            self.vmwait({f"f{i}"})
            if f"x{i}" in self.lq:
                self.lwait(f"x{i}")
            for rb in range(3):
                cin = "0" if i == 0 else vr(ACC + 4 * rb, 4)
                a(f"v_mfma_f32_16x16x32_bf16 {vr(ACC + 4 * rb, 4)}, {vr(fbuf[i], 4)}, {vr(XBUF[i & 1] + 4 * rb, 4)}, {cin}")
            if i + 2 < 8:
                x3(i + 2)

        def utag_issue(dst, adr):
            a(f"""
            v_lshlrev_b32 v{adr}, 5, v{LANE}
            s_lshl_b32 s{sC}, s{sW}, 9
            s_add_u32 s{sC}, s{sC}, {W_UTAG}
            s_mov_b64 exec, 0xffff
            buffer_load_dwordx2 {vr(dst, 2)}, v{adr}, {sr(sWS, 4)}, s{sC} offen sc1
            s_mov_b64 exec, -1
            """)

        def utag_check(dst):
            a(f"""
            v_cmp_ne_u64 vcc, {sr(sTAG, 2)}, {vr(dst, 2)}
            s_nop 1
            s_and_b32 s{sU}, vcc_lo, 0xffff
            """)

        def offs_issue():
            a(f"""
            s_and_b32 s{sC}, s{sT}, 7
            s_lshl_b32 s{sC}, s{sC}, 8
            s_and_b32 s{sB}, s{sT}, 0xf8
            s_add_u32 s{sC}, s{sC}, s{sB}
            s_add_u32 s{sC}, s{sC}, {W_OFFS}
            buffer_load_dwordx2 {vr(OV, 2)}, v{o0}, {sr(sWS, 4)}, s{sC} offen sc1
            """)

        def offs_check():
            a(f"""
            v_xor_b32 v{o1}, s{sTLO}, v{OV}
            v_cmp_ne_u32 vcc, s{sTAG}, v{OV + 1}
            s_mov_b32 s{sB}, 0x100000
            v_cmp_le_u32 s[40:41], s{sB}, v{o1}
            s_nop 1
            s_or_b64 vcc, vcc, s[40:41]
            s_and_b64 vcc, vcc, {sr(sVAL, 2)}
            """)

        def parse():
            a(f"""
            v_cndmask_b32 v{OV}, 0, v{o1}, {sr(sVAL, 2)}
            v_and_b32 v{o1}, 3, v{TID}
            v_mul_u32_u24 v{o0}, {EC * 8}, v{RBA}
            v_and_b32 v{o2}, 0x3ff, v{OV}
            v_bfe_u32 v{o3}, v{OV}, 10, 10
            v_add_u32 v{o2}, v{o2}, v{o1}
            v_lshl_add_u32 v{o0}, v{o2}, 3, v{o0}
            v_add_u32 v{RBA}, {W_RECS}, v{o0}
            v_sub_u32 v{CQ}, v{o3}, v{o1}
            v_cmp_lt_u32 vcc, {4 * NPASS}, v{o3}
            """)
            lab = a.newlabel("nomax")
            a(f"""
            s_cbranch_vccz {lab}
            v_mov_b32 v{o2}, {MISC}
            s_mov_b64 exec, vcc
            ds_max_u32 v{o2}, v{o3}
            s_mov_b64 exec, -1
            s_waitcnt lgkmcnt(0)
            {lab}:
            """)
            self.rec_issue(SCRP)

        slot = [0, 1, 2, 3, 0, 1, 0, 3]
        nearly = self.opt("early", 2)
        edel = self.opt("edel", 0)
        issue_at = {0: 3}
        for c in range(4, 4 + nearly):
            issue_at[c - 3 + edel] = c

        def gstep(k, lgkm=False, post=None):
            self.vmwait({f"c{k}"})
            self.barrier(f"B{k}", lgkm=lgkm)
            if post:
                post()
            self.trreads(slot[k])
            c = issue_at.get(k)
            self.mfmas(AC2, k & 3, (lambda sp: self.dma_all(c, slot[c], sp)) if c else None)
            if k not in (3, 7):
                self.xreads((k + 1) & 3)

        def look():
            a(f"""
            v_mov_b32 v{o1}, {OOB}
            v_lshrrev_b32 v{RBA}, 2, v{TID}
            v_lshlrev_b32 v{o0}, 11, v{RBA}
            s_movk_i32 s{sA}, {NT}
            v_cmp_gt_u32 {sr(sVAL, 2)}, s{sA}, v{RBA}
            s_mov_b32 s{sP0}, 0
            s_mov_b32 s{sNP}, {NPASS}
            s_mov_b32 s{sMODE}, 0
            v_cndmask_b32 v{o0}, v{o1}, v{o0}, {sr(sVAL, 2)}
            """)
            offs_issue()
            if "utearly" in self.opts:
                utag_issue(UV, UV + 2)
                self.vm("LN", "offs")
            self.vm("LN", "offs")

        def piece_tag():
            a(f"s_sub_u32 s{sA}, s{sW}, 1\ns_cmp_lt_u32 s{sA}, 2\ns_cbranch_scc0 L_notag\ns_waitcnt vmcnt(4)")
            self.tag_store(sUG, 116)
            a.label("L_notag")

        kis = self.opt("kis", 2)
        recpos = self.opt("recpos", 2)

        def try_records():
            self.vmwait({"offs"})
            if "utearly" in self.opts:
                utag_check(UV)
            offs_check()
            a(f"s_mov_b32 s{sE}, 0\ns_cbranch_scc1 L_late")
            parse()
            a(f"s_mov_b32 s{sE}, 1\ns_branch L_intime\nL_late:")
            offs_issue()
            offs_issue()
            a.label("L_intime")
            self.vm("LN", "rec", 2)

        for k in range(4):
            gstep(k, post=piece_tag if k == self.opt('kpt', 0) else None)
            if k == kis:
                look()
            if k == 2 and recpos == -1:
                try_records()
        for rb in range(3):
            for h in range(2):
                a(f"v_pk_mul_f32 {vr(AC2 + 4 * rb + 2 * h, 2)}, {vr(AC2 + 4 * rb + 2 * h, 2)}, {sr(sNL2E, 2)} op_sel_hi:[1,0]")
            a(f"v_cvt_pk_bf16_f32 v{AC2 + 4 * rb}, v{AC2 + 4 * rb}, v{AC2 + 4 * rb + 1}")
            a(f"v_cvt_pk_bf16_f32 v{AC2 + 4 * rb + 1}, v{AC2 + 4 * rb + 2}, v{AC2 + 4 * rb + 3}")
            a(f"ds_write_b64 v{STG}, {vr(AC2 + 4 * rb, 2)} offset:{rb * 8192}")
        if recpos == 0:
            try_records()
        a("s_setprio 3")
        self.barrier("PS")
        a(f"""
        ds_read_b128 {vr(AC2, 4)}, v{STR}
        ds_read_b128 {vr(AC2 + 4, 4)}, v{STR} offset:16384
        """)
        self.xreads(0)
        a(f"""
        s_mov_b32 s{sB}, {W_P}
        s_waitcnt lgkmcnt(3)
        buffer_store_dwordx4 {vr(AC2, 4)}, v{GO}, {sr(sWS, 4)}, s{sB} offen sc1
        s_waitcnt lgkmcnt(2)
        buffer_store_dwordx4 {vr(AC2 + 4, 4)}, v{GO2}, {sr(sWS, 4)}, s{sB} offen sc1
        s_setprio 0
        """)
        self.vm("LN", "p", 2)
        self.stamp("pst")
        if recpos == 2:
            try_records()
        self.stampval("E", sE)

        def fb():
            tmp = ACC + 8 if kfb == 6 else ACC
            if "repl" not in self.opts:
                a(f"s_lshl_b32 s{sB}, s{sT}, 5\ns_add_u32 s{sB}, s{sB}, {W_FB}")
                self.tag_store(sB, tmp)
                return
            a(f"""
            s_lshl_b32 s{sB}, s{sT}, 4
            s_add_u32 s{sB}, s{sB}, {W_FR}
            v_mov_b32 v{tmp}, s{sTAG}
            v_mov_b32 v{tmp + 1}, s{sTAG + 1}
            v_lshlrev_b32 v{tmp + 2}, 12, v{LANE}
            s_mov_b64 exec, 0xff
            buffer_store_dwordx2 {vr(tmp, 2)}, v{tmp + 2}, {sr(sWS, 4)}, s{sB} offen sc1
            s_mov_b64 exec, -1
            """)

        todo = [(c, m) for c in range(4 + nearly, 8) for m in range(2)]
        kfb = self.opt("kfb", 5)

        def issue(n):
            nonlocal todo
            for c, m in todo[:n]:
                self.dma_all(c, slot[c], m)
            todo = todo[n:]

        if nearly < 2:
            issue(self.opt("npre", 2))
        for k in (4, 5):
            if k == kfb:
                self.vmwait({"p"})
                self.stamp("ack")
            while todo and todo[0][0] <= k:
                issue(1)
            gstep(k, post=(lambda: self.wave0(fb)) if k == kfb else None)
            if k == 4 and "utearly" not in self.opts:
                utag_issue(24, 26)
                self.vm("LN", "utag")
            if k >= kfb and k == 4 and nearly < 2:
                issue(2)
        a(f"""
        s_lshl_b32 s{sUB}, s{sW}, 14
        s_add_u32 s{sUB}, s{sUB}, {W_UT}
        """)
        self.vmwait({"rec"})
        a(f"""
        s_cmp_eq_u32 s{sE}, 1
        s_cbranch_scc1 L_recs_ok
        s_mov_b32 s{sD}, 0
        L_offs_chk:
        """)
        offs_check()
        a(f"""
        s_cbranch_scc0 L_offs_ok
        s_add_u32 s{sD}, s{sD}, 1
        s_cmp_gt_u32 s{sD}, {POLL_LIMIT}
        s_cbranch_scc1 L_offs_ok
        """)
        offs_issue()
        a("s_waitcnt vmcnt(0)\ns_branch L_offs_chk\nL_offs_ok:")
        parse()
        a("s_waitcnt vmcnt(0)\nL_recs_ok:")
        self.stamp("rec")
        self.clean(SCRX)
        self.count(SCRX)
        issue(8)
        if kfb == 6:
            self.vmwait({"p"})
            self.stamp("ack")
        self.barrier("C1")
        if kfb == 6:
            self.wave0(fb)
        if "utearly" not in self.opts:
            self.vmwait({"utag"})
            utag_check(24)
        a(f"""
        v_lshlrev_b32 v{FO}, 4, v{LANE}
        s_cmp_eq_u32 s{sU}, 0
        s_cbranch_scc1 L_tags_ok
        s_mov_b32 s{sD}, 0
        L_tags:
        """)
        utag_issue(24, 26)
        a(f"s_add_u32 s{sD}, s{sD}, 1\ns_cmp_gt_u32 s{sD}, {POLL_LIMIT}\ns_waitcnt vmcnt(0)\ns_cbranch_scc1 L_tags_ok")
        utag_check(24)
        a("s_cbranch_scc1 L_tags\nL_tags_ok:")
        frag(0)
        frag(1)
        self.lists(SCRX, "L_gen1")
        a.label("L_gen1_back")
        self.side_fill(ACC + 10, ACC + 3)
        pp = self.opt("pp", 1)
        frag(2)
        frag(3)
        if pp == 0:
            self.wave0(self.poll_issue)
        gstep(6, lgkm=True)
        if pp == 1:
            self.wave0(self.poll_issue)
        a(f"s_mov_b32 s{sB}, {W3L}\nv_lshl_add_u32 v{ACC + 3}, v{LANE}, 1, s{sB}")
        for r in range(4):
            a(f"ds_read_u16_d16_hi v{W3 + r}, v{ACC + 3} offset:{128 * r}")
        frag(4)
        frag(5)
        self.setup(69)
        if pp == 2:
            self.wave0(self.poll_issue)
        frag(6)
        frag(7)
        a(f"""
        v_and_b32 v75, 15, v{LANE}
        v_cmp_gt_u32 {sr(sEX, 2)}, 8, v75
        v_mul_u32_u24 v74, {QS}, v75
        v_and_b32 v75, 48, v{LANE}
        s_lshl_b32 s{sB}, s{sW}, 6
        v_add3_u32 v74, v74, v75, s{sB}
        """)
        self.slot_consts()
        self.stamp("pre")

        def pw():
            self.poll_wait()
            a(f"s_cmp_eq_u32 s{sT}, 0\ns_cbranch_scc0 L_noep\ns_mov_b32 s{sB}, {W_EPOCH}")
            self.tag_store(sB, POLLB)
            a.label("L_noep")
        self.wave0(pw)
        self.vmwait({"c7"})
        self.barrier("C2")

        def g(k):
            a(f"v_mov_b32 v{IA}, v{IX0 + k}")
            self.gather(k)
            self.vm("LN", "g")

        self.trreads(slot[7])
        self.mfmas(AC2, 3, g if self.opt("gp", 1) == 1 else None)
        if self.opt("gp", 1) == 2:
            g(0)
            g(1)
        x3(0)
        x3(1)
        for rb in range(3):
            for h in range(2):
                a(f"v_pk_mul_f32 {vr(AC2 + 4 * rb + 2 * h, 2)}, {vr(AC2 + 4 * rb + 2 * h, 2)}, {sr(sNL2E, 2)} op_sel_hi:[1,0]")
            if rb == 2:
                a(f"s_mov_b64 exec, {sr(sEX, 2)}")
            a(f"ds_write_b128 v74, {vr(AC2 + 4 * rb, 4)} offset:{QB + rb * 16 * QS}")
            self.lq.append("q")
        a("s_mov_b64 exec, -1")
        self.stamp("q")
        g2, g3 = self.opt("g2", 2), self.opt("g3", 5)
        for i in range(8):
            consume(i)
            if i == 0:
                a("s_barrier")
            if i == g2:
                g(2)
            if i == g3:
                g(3)
        a(f"v_mov_b32 v{IA}, v{IX0 + 4}")
        for r in range(4):
            a(f"v_mul_f32 v{W3 + r}, s{sNL2E}, v{W3 + r}")
        for h in range(6):
            a(f"v_pk_mul_f32 {vr(ACC + 2 * h, 2)}, {vr(ACC + 2 * h, 2)}, {sr(sNL2E, 2)} op_sel_hi:[1,0]")
        self.lane_consts()
        self.barrier("R")
        a(f"""
        s_cmp_eq_u32 s{sGEN}, 0
        s_cbranch_scc0 L_generic
        s_and_b32 s{sZ + 1}, s{sZ + 1}, 0xff
        s_or_b32 s{sA}, s{sZ}, s{sZ + 1}
        s_or_b32 s{sA}, s{sA}, s{sMODE}
        s_cbranch_scc1 L_clear
        L_r_done:
        s_cmp_gt_i32 s{sNE}, 0
        s_cbranch_scc0 L_empty
        """)
        if "noprio" not in self.opts:
            a("s_setprio 3")
        a(f"""
        ds_read_b64 {vr(EE[0], 2)}, v{EA}
        v_add_u32 v{QA}, s{sQ0}, v{L4}
        ds_read2st64_b32 {vr(Q, 2)}, v{QA} offset0:0 offset1:1
        ds_read2st64_b32 {vr(Q + 2, 2)}, v{QA} offset0:2 offset1:3
        v_xor_b32 v{AG}, s{sAG0}, v{L8}
        v_add_u32 v{CNA}, {CNTN}, v{L4}
        v_mov_b32 v{TZ}, 0
        ds_write_b32 v{CNA}, v{TZ}
        v_mov_b64 {vr(NN, 2)}, 0
        v_mov_b64 {vr(NN + 2, 2)}, 0
        v_mov_b32 v{DD}, 1.0
        v_mov_b32 v{DD + 1}, 1.0
        v_mov_b32 v{DD + 2}, 1.0
        v_mov_b32 v{DD + 3}, 1.0
        v_mov_b64 {vr(CK2, 2)}, 0
        v_mov_b32 v{CK1}, 0
        s_mov_b32 s{sI}, 0
        s_or_b32 s{sTM}, s{sMASK}, {0xff if "u2early" in self.opts else 0}
        s_mov_b32 s{sW11}, {0 if "u2early" in self.opts else -1}
        """)
        self.stamp("setup")
        a("s_waitcnt vmcnt(3)")
        self.stamp("row0")
        self.p_reads(0, 0)
        a("s_waitcnt lgkmcnt(0)")
        self.gather(0)
        if "u2early" in self.opts:
            self.u2_loads()
        a(f"""
        s_cmp_eq_u32 s{sMODE}, 0
        s_cbranch_scc0 L_enter_x
        """)
        self.main_loop(False, "L_main_done")
        a.reset_hist()
        a.label("L_main_done")
        a("s_setprio 0")
        self.stamp("loop")
        a(f"""
        v_add_f32 v{CK2}, v{CK2}, v{CK2 + 1}
        v_mov_b32 v{TM}, {BIG}
        v_cmp_u_f32 vcc, v{CK2}, v{CK2}
        v_cmp_nle_f32 s[40:41], v{CK1}, v{TM}
        s_nop 1
        s_or_b64 vcc, vcc, s[40:41]
        s_cbranch_scc0 L_after
        v_mov_b32 v{TM}, {MISC + 4}
        v_mov_b32 v{TM + 1}, 1
        ds_write_b32 v{TM}, v{TM + 1}
        L_after:
        v_xor_b32 v{STG2}, 0x80, v{STG}
        v_and_b32 v{TM}, 8, v{LANE}
        v_subrev_u32 v{STG2}, 4092, v{STG2}
        v_cmp_eq_u32 vcc, 0, v{TM}
        v_cndmask_b32 v{STG2}, v{STG2}, v{STG}, vcc
        s_waitcnt vmcnt(0)
        """)
        self.barrier("M")
        a(f"""
        v_mov_b32 v{TM}, {MISC + 4}
        ds_read_b32 v{TM + 1}, v{TM}
        """)
        if "oldfin" in self.opts:
            order = [(s_, rb) for s_ in range(8) for rb in range(3)]
        else:
            order = [(s_, rb) for rb in range(3) for s_ in range(8)]
        NB = 12

        def rd(n):
            s_, rb = order[n]
            a(f"ds_read_b128 {vr(XF + 4 * (n % NB), 4)}, v{XA + (s_ & 3)} offset:{rb * 8192 + (s_ >> 2) * 256}")

        for n in range(NB):
            rd(n)
        a(f"""
        s_cmp_eq_u32 s{sMODE}, 0
        s_cbranch_scc0 L_slow_next
        s_waitcnt lgkmcnt(12)
        v_readfirstlane_b32 s{sA}, v{TM + 1}
        s_nop 1
        s_cmp_eq_u32 s{sA}, 0
        s_cbranch_scc0 L_redo
        L_final:
        """)
        TE = 104

        def act(rb):
            ops = []
            for r in range(4):
                ops.append(f"v_exp_f32 v{TE + 4 * rb + r}, v{ACC + 4 * rb + r}")
            for r in range(4):
                ops.append(f"v_add_f32 v{TE + 4 * rb + r}, 1.0, v{TE + 4 * rb + r}")
            for r in range(4):
                ops.append(f"v_rcp_f32 v{TE + 4 * rb + r}, v{TE + 4 * rb + r}")
            for r in range(4):
                ops.append(f"v_mul_f32 v{ACC + 4 * rb + r}, s{sNLN2}, v{ACC + 4 * rb + r}")
            for r in range(4):
                ops.append(f"v_mul_f32 v{ACC + 4 * rb + r}, v{ACC + 4 * rb + r}, v{TE + 4 * rb + r}")
            ops.append(f"v_cvt_pk_bf16_f32 v{TE + 4 * rb}, v{ACC + 4 * rb}, v{ACC + 4 * rb + 1}")
            ops.append(f"v_cvt_pk_bf16_f32 v{TE + 4 * rb + 1}, v{ACC + 4 * rb + 2}, v{ACC + 4 * rb + 3}")
            ops.append(f"ds_write_b64 v{STG}, {vr(TE + 4 * rb, 2)} offset:{rb * 8192}")
            return ops

        pend = []
        lq = [f"r{n}" for n in range(NB)]
        for n in range(24):
            s_, rb = order[n]
            last = lq.index(f"r{n}")
            a(f"s_waitcnt lgkmcnt({len(lq) - 1 - last})")
            lq = lq[last + 1:]
            a(f"v_mfma_f32_16x16x32_bf16 {vr(ACC + 4 * rb, 4)}, {vr(UF + 4 * s_, 4)}, {vr(XF + 4 * (n % NB), 4)}, {vr(ACC + 4 * rb, 4)}")
            if n + NB < 24:
                rd(n + NB)
                lq.append(f"r{n + NB}")
            if "oldfin" not in self.opts:
                if n in (9, 17):
                    pend += act(n // 8 - 1)
                for op in pend[:4]:
                    a(op)
                    if op.startswith("ds_"):
                        lq.append("w")
                pend = pend[4:]
        for op in pend:
            a(op)
        if "oldfin" in self.opts or "nofold" in self.opts:
            for rb in ([2] if "oldfin" not in self.opts else [0, 1, 2]):
                for op in act(rb):
                    a(op)
        else:
            A2 = ACC + 8
            a(f"""
            v_mov_b32_dpp v{A2}, v{A2 + 2} row_shr:8 row_mask:0xf bank_mask:0xc
            v_mov_b32_dpp v{A2 + 1}, v{A2 + 3} row_shr:8 row_mask:0xf bank_mask:0xc
            v_exp_f32 v{TE + 8}, v{A2}
            v_exp_f32 v{TE + 9}, v{A2 + 1}
            v_pk_mul_f32 {vr(A2, 2)}, {vr(A2, 2)}, {sr(sNLN2, 2)} op_sel_hi:[1,0]
            v_pk_add_f32 {vr(TE + 8, 2)}, {vr(TE + 8, 2)}, 1.0 op_sel_hi:[1,0]
            v_rcp_f32 v{TE + 8}, v{TE + 8}
            v_rcp_f32 v{TE + 9}, v{TE + 9}
            v_pk_mul_f32 {vr(A2, 2)}, {vr(A2, 2)}, {vr(TE + 8, 2)}
            v_cvt_pk_bf16_f32 v{TE + 8}, v{A2}, v{A2 + 1}
            ds_write_b32 v{STG2}, v{TE + 8} offset:16384
            """)
        self.barrier("F")
        a(f"""
        ds_read_b128 {vr(PQ + 8, 4)}, v{STR}
        ds_read_b128 {vr(PQ + 12, 4)}, v{STR} offset:16384
        s_waitcnt lgkmcnt(1)
        buffer_store_dwordx4 {vr(PQ + 8, 4)}, v{GO}, {sr(sOUT, 4)}, 0 offen sc1
        s_waitcnt lgkmcnt(0)
        buffer_store_dwordx4 {vr(PQ + 12, 4)}, v{GO2}, {sr(sOUT, 4)}, 0 offen sc1
        """)
        if self.opt("pad", 0):
            a(f"""
            L_pad:
            s_memrealtime s[98:99]
            s_waitcnt lgkmcnt(0)
            s_sub_u32 s98, s98, s96
            s_cmp_lt_u32 s98, {self.opt("pad", 0)}
            s_cbranch_scc1 L_pad
            """)
        if self.stamps:
            a.label("L_diag_end")
            a("s_waitcnt vmcnt(0)")
            self.stamp("end")
            a(f"""
            s_lshl_b32 s{sA}, s{sT}, 4
            s_add_u32 s{sA}, s{sA}, s{sW}
            s_lshl_b32 s{sA}, s{sA}, 8
            s_add_u32 s{sA}, s{sA}, {W_STAMP}
            v_lshlrev_b32 v{TM}, 2, v{LANE}
            buffer_store_dword v{STAMPV}, v{TM}, {sr(sWS, 4)}, s{sA} offen
            """)
        a.label("L_end")
        a("s_endpgm")
        a.reset_hist()
        a(f"""
        L_gen1:
        s_mov_b32 s{sGEN}, 1
        s_mov_b32 s{sI}, 0
        s_mov_b32 s{sNE}, 0
        s_branch L_gen1_back
        L_clear:
        v_mov_b64 {vr(XF, 2)}, 0
        v_mov_b64 {vr(XF + 2, 2)}, 0
        v_add_u32 v{XF + 4}, {AB - PS}, v{STR}
        """)
        self.zero_agg(XF + 4, XF)
        a(f"""
        s_cmp_eq_u32 s{sMODE}, 2
        s_cbranch_scc0 L_clear2
        v_add_u32 v{XF + 4}, {(AF2 - AB) & 0xffffffff}, v{XF + 4}
        """)
        self.zero_agg(XF + 4, XF)
        a(f"""
        L_clear2:
        s_waitcnt lgkmcnt(0)
        s_barrier
        s_branch L_r_done
        L_generic:
        s_waitcnt vmcnt(0) lgkmcnt(0)
        s_barrier
        s_mov_b32 s{sMODE}, 2
        v_mov_b64 {vr(XF, 2)}, 0
        v_mov_b64 {vr(XF + 2, 2)}, 0
        v_add_u32 v{XF + 4}, {AB - PS}, v{STR}
        """)
        self.zero_agg(XF + 4, XF)
        a(f"""
        s_cmp_eq_u32 s{sMODE}, 2
        s_cbranch_scc0 L_gen2
        v_add_u32 v{XF + 4}, {(AF2 - AB) & 0xffffffff}, v{XF + 4}
        """)
        self.zero_agg(XF + 4, XF)
        a(f"""
        L_gen2:
        v_add_u32 v{CNA}, {CNTN}, v{L4}
        v_mov_b32 v{TZ}, 0
        ds_write_b32 v{CNA}, v{TZ}
        s_mov_b32 s{sNP}, 1
        s_mov_b32 s{sMODE}, 2
        s_waitcnt lgkmcnt(0)
        s_barrier
        L_round:
        """)
        self.slot_consts()
        self.lane_consts()
        self.rec_issue(SCR2)
        a("s_waitcnt vmcnt(0)")
        self.clean(SCR2)
        self.count(SCR2)
        a("s_waitcnt lgkmcnt(0)\ns_barrier")
        self.lists(SCR2, "L_generic")
        a("s_waitcnt lgkmcnt(0)\ns_barrier")
        self.setup(SCR2.tmp)
        a(f"""
        s_waitcnt lgkmcnt(0)
        """)
        for k in range(4):
            a(f"v_mov_b32 v{IA}, v{IX0 + k}")
            self.gather(k)
        a(f"""
        v_mov_b32 v{IA}, v{IX0 + 4}
        s_branch L_r_done
        L_empty:
        v_add_u32 v{CNA}, {CNTN}, v{L4}
        v_mov_b32 v{TZ}, 0
        ds_write_b32 v{CNA}, v{TZ}
        """)
        self.u2_loads()
        a(f"""
        s_branch L_after
        L_slow_next:
        s_cmp_eq_u32 s{sMODE}, 1
        s_cbranch_scc1 L_final
        s_waitcnt lgkmcnt(0)
        s_cmp_eq_u32 s{sNP}, {NPASS}
        s_cbranch_scc1 L_convert
        s_add_u32 s{sP0}, s{sP0}, 1
        s_max_u32 s{sA}, s{sMAXC}, {4 * NPASS}
        s_lshl_b32 s{sB}, s{sP0}, 2
        s_cmp_lt_u32 s{sB}, s{sA}
        s_cbranch_scc1 L_round
        L_convert:
        """)
        self.lane_consts()
        for i in range(3):
            a(f"s_add_u32 s{sC}, s{sW}, {16 * i}\ns_min_u32 s{sC}, s{sC}, 39\ns_lshl_b32 s{sC}, s{sC}, 9")
            self.f32_row(sC, sD)
            a(f"""
            v_add_u32 v{TM}, s{sD}, v{L4}
            ds_read2st64_b32 {vr(56 + 4 * i, 2)}, v{TM} offset0:0 offset1:1
            ds_read2st64_b32 {vr(58 + 4 * i, 2)}, v{TM} offset0:2 offset1:3
            s_bfe_u32 s{sD}, s{sC}, 0x40009
            s_lshl_b32 s{sD}, s{sD}, 4
            s_or_b32 s{sD}, s{sD}, s{sC}
            v_xor_b32 v{68 + i}, s{sD}, v{L8}
            """)
        a("s_waitcnt lgkmcnt(0)\ns_barrier")
        for i in range(3):
            a(f"""
            v_cvt_pk_bf16_f32 v{56 + 4 * i}, v{56 + 4 * i}, v{57 + 4 * i}
            v_cvt_pk_bf16_f32 v{57 + 4 * i}, v{58 + 4 * i}, v{59 + 4 * i}
            ds_write_b64 v{68 + i}, {vr(56 + 4 * i, 2)}
            """)
        a("s_waitcnt lgkmcnt(0)\ns_barrier")
        for n in range(NB):
            rd(n)
        a(f"""
        s_branch L_final
        L_redo:
        s_waitcnt lgkmcnt(0)
        s_barrier
        s_mov_b32 s{sMODE}, 1
        """)
        self.side_fill(XF, XF + 2)
        a(f"""
        s_branch L_round
        L_enter_x:
        s_cmp_eq_u32 s{sMODE}, 2
        s_cbranch_scc0 L_loop_x
        """)
        self.f32_row(sAG0, sD)
        a(f"v_add_u32 v{AG}, s{sD}, v{L4}")
        self.main_loop(True, "L_after")
        a.label("L_code_end")

    def text(self):
        hdr = f"""; Fused MPNN edge-MLP kernel: P = x W1 published per tile, edges binned by destination tile,
; @launch grid=({NT},1,1) block=(1024,1,1) lds={LDS_TOTAL}
.amdgcn_target "amdgcn-amd-amdhsa--gfx950"
.text
.globl {NAME}_kernel
.p2align 8
.type {NAME}_kernel,@function
{NAME}_kernel:
"""
        ftr = f""".section .rodata,"a"
.p2align 6
.amdhsa_kernel {NAME}_kernel
  .amdhsa_next_free_vgpr 128
  .amdhsa_next_free_sgpr 102
  .amdhsa_accum_offset 128
  .amdhsa_group_segment_fixed_size 0
  .amdhsa_kernarg_size 72
  .amdhsa_user_sgpr_count 2
  .amdhsa_user_sgpr_kernarg_segment_ptr 1
  .amdhsa_system_sgpr_workgroup_id_x 1
.end_amdhsa_kernel
"""
        return hdr + self.a.text() + ftr


if __name__ == "__main__":
    out = [x for x in sys.argv[1:] if not x.startswith("--")]
    g = Gen(opts=[x[2:] for x in sys.argv[1:] if x.startswith("--")])
    g.build()
    txt = g.text()
    if g.stamps:
        txt = "; stamps: " + ",".join(g.names) + "\n" + txt
    open(out[0] if out else "cdna_kernels/%s.s" % NAME, "w").write(txt)
    print("nops inserted:", g.a.nops, "lines:", len(g.a.lines), "stamps:", g.nstamp)
```

```python
import sys
import struct
from asmlib import Asm

NAME = "gather_scatter__mpnn_edge_mlp__graph"
N, E, D = 10000, 160000, 256
T, NT, EC = 40, 250, 640

SLOT = (0, 32768, 65536, 98304)
XB = 131072
SIDE = 41984
AF2 = 41984
PILA, PILB = 158880, 162112 - 9 * 192
HIST, BASE, SORT, USC = 151552, 152576, 153600, 158720
CNTN, MISC = 160768, 161024
IL, EL, DL = 151552, 153664, 157824
QB, QS = 0, 1040
AB = XB
RING = 65536
ROFF = (0, 1024, 32768, 33792)
PS = 65536
LDS_TOTAL = 163840

W_EPOCH, W_FA, W_FB = 0, 0x1000, 0x3000
W_OFFS, W_RECS, W_UT, W_P = 0x10000, 0x90000, 0x700000, 0x200000
W_UTAG = 0x1000
W_FR = 0x8000
W_STAMP = 0x800000
WS_SIZE = 0xA00000
OOB = 0x80000000
POLL_LIMIT = 200000


def f2u(x):
    return struct.unpack("<I", struct.pack("<f", x))[0]


NLOG2E = f2u(-1.4426950408889634)
NLN2 = f2u(-0.6931471805599453)
BIG = f2u(2.0 ** 120)


def vr(a, n=1):
    return "v%d" % a if n == 1 else "v[%d:%d]" % (a, a + n - 1)


def sr(a, n=1):
    return "s%d" % a if n == 1 else "s[%d:%d]" % (a, a + n - 1)


TID, LANE = 0, 1
XA = 2
STG, GO, GO2, STR = 6, 7, 8, 9
RBA, CQ = 10, 11
ACC = 12
UF = 24
XR = 24
XF2, WF = 88, 96
AC2 = 104
XF = 56
WOFF, TR0, TR1 = 120, 121, 122
STAMPV = 123
W3 = 124
NPASS = 4
POLLB = 16
FO = 120
W3L = MISC + 64
XCNT, S1C, S2C, ACKC, BACK = MISC + 8, MISC + 12, MISC + 16, MISC + 20, MISC + 24


class Scratch:
    def __init__(self, rec, adr, rank, tmp):
        self.rec, self.adr, self.rank, self.tmp = rec, adr, rank, tmp


REC1 = [116, 118, 124, 126]
SCRP = Scratch(REC1, 12, None, 18)
SCRX = Scratch(REC1, ACC, ACC + 4, ACC + 8)
SCR2 = Scratch([24, 26, 28, 30], 40, 44, 48)
CNA = 109
PA = (56, 64)
EE = (72, 74)
IA, Q, QE, Y, TT, NN, DD = 76, 78, 86, 90, 94, 98, 102
CK2, CK1 = 106, 108
RG, IXA, EA, QA, AG, L4, L8, INFO, TM, IOF = 82, 116, 117, 112, 113, 83, 84, 118, 120, 85
TZ = 115
STG2 = 119
IX0 = 64

sT, sW = 2, 3
sX, sWM, sWU, sWS, sP, sOUT, sSRC, sDST, sEA = 4, 8, 12, 16, 20, 24, 28, 32, 36
sNL2E, sNLN2, sWK, sW1K = 58, 60, 62, 63
sMASK, sI, sNE, sREM, sTRIP, sSLOT = 64, 66, 67, 68, 69, 70
sM, sP0, sNP, sMAXC, sFIRST, sMODE = 74, 75, 76, 77, 78, 79
sVAL = 80
sA, sB, sC, sD = 88, 89, 90, 91
sEX = 42
sCO = 48
sHI, sTAG, sTLO, sGEN = 49, 52, 56, 57
sQ0, sAG0 = 44, 45
sUO, sUG, sUB, sE = 64, 65, 38, 39
sZ, sU, sRA, sRB = 6, 30, 29, 31
sTM, sHB, sW11 = 28, 69, 39
sHB2 = sHB


class Gen:
    def __init__(self, opts=()):
        self.opts = set(opts)
        self.a = Asm()
        self.stamps = "stamps" in self.opts
        self.nstamp = 0
        self.names = []
        self.lq = []
        self.q = {"L": [], "N": []}

    def opt(self, name, default):
        for o in self.opts:
            if o.startswith(name + "="):
                return int(o.split("=")[1])
        return default

    STAMP_REGS = [92, 94, 96, 98, 100, 50, 54, 4, 12, 14, 32, 34, 36]

    def stampval(self, name, sreg):
        sel = [o[3:].split("+") for o in self.opts if o.startswith("st=")]
        if not self.stamps or not sel or name not in sel[0]:
            return
        k = self.nstamp
        self.nstamp += 1
        self.names.append("=" + name)
        self.a(f"s_add_u32 s{self.STAMP_REGS[k]}, s{sreg}, 1")

    def stamp(self, name):
        if not self.stamps:
            return
        sel = [o[3:].split("+") for o in self.opts if o.startswith("st=")]
        if name not in ("start", "end") and sel and name not in sel[0]:
            return
        k = self.nstamp
        self.nstamp += 1
        self.names.append(name)
        if "dbg" in self.opts:
            self.a(f"s_memrealtime {sr(self.STAMP_REGS[k], 2)}")
            if name == "end":
                a = self.a
                a("s_load_dwordx2 s[40:41], s[0:1], 56\ns_waitcnt lgkmcnt(0)")
                a(f"s_not_b32 s44, s{self.STAMP_REGS[0]}\nv_writelane_b32 v{STAMPV}, s44, 15")
                for i in range(self.nstamp):
                    a(f"v_writelane_b32 v{STAMPV}, s{self.STAMP_REGS[i]}, {i}")
                a(f"""
                s_mov_b32 s42, 64
                s_mov_b32 s43, 0x20000
                v_lshlrev_b32 v{TM}, 2, v{LANE}
                s_cmp_eq_u32 s{sW}, 0
                s_cbranch_scc0 L_end
                buffer_atomic_umax v{STAMPV}, v{TM}, s[40:43], 0 offen
                s_branch L_end
                """)
            return
        if name == "start":
            self.a(f"v_writelane_b32 v{STAMPV}, s86, 0")
            return
        if name in ("start", "end"):
            self.a(f"""
            s_memrealtime s[40:41]
            s_waitcnt lgkmcnt(0)
            v_writelane_b32 v{STAMPV}, s40, {0 if name == "start" else 1}
            """)
        self.a(f"s_memtime {sr(self.STAMP_REGS[k], 2)}")
        if name == "end":
            self.a("s_waitcnt lgkmcnt(0)")
            for i in range(self.nstamp):
                self.a(f"v_writelane_b32 v{STAMPV}, s{self.STAMP_REGS[i]}, {32 + i}")

    def vm(self, roles, tag, n=1):
        for r in roles:
            self.q[r] += [tag] * n

    def vmwait(self, tags):
        need = {}
        for r, lst in self.q.items():
            last = max((i for i, t in enumerate(lst) if t in tags), default=None)
            if last is None:
                need[r] = None
            else:
                need[r] = len(lst) - 1 - last
                self.q[r] = lst[last + 1:]
        a = self.a
        if need["L"] == need["N"]:
            if need["L"] is not None:
                a(f"s_waitcnt vmcnt({need['L']})")
            return
        lab = a.newlabel("vw")
        if need["N"] is None:
            a(f"s_cmp_lt_u32 s{sW}, 8\ns_cbranch_scc1 {lab}\ns_waitcnt vmcnt({need['L']})\n{lab}:")
        elif need["L"] is None:
            a(f"s_cmp_ge_u32 s{sW}, 8\ns_cbranch_scc1 {lab}\ns_waitcnt vmcnt({need['N']})\n{lab}:")
        elif need["L"] > need["N"]:
            a(f"s_waitcnt vmcnt({need['L']})\ns_cmp_ge_u32 s{sW}, 8\ns_cbranch_scc1 {lab}\ns_waitcnt vmcnt({need['N']})\n{lab}:")
        else:
            a(f"s_waitcnt vmcnt({need['N']})\ns_cmp_lt_u32 s{sW}, 8\ns_cbranch_scc1 {lab}\ns_waitcnt vmcnt({need['L']})\n{lab}:")

    def lwait(self, tag):
        last = max(i for i, t in enumerate(self.lq) if t == tag)
        self.a(f"s_waitcnt lgkmcnt({len(self.lq) - 1 - last})")
        self.lq = self.lq[last + 1:]

    def barrier(self, name, lgkm=True):
        for o in self.opts:
            if o.startswith("padat=") and o.split("=")[1].split(":")[0] == name:
                self.a(f"""
                L_padat:
                s_memrealtime s[98:99]
                s_waitcnt lgkmcnt(0)
                s_sub_u32 s98, s98, s96
                s_cmp_lt_u32 s98, {o.split(":")[1]}
                s_cbranch_scc1 L_padat
                """)
        if lgkm:
            self.a("s_waitcnt lgkmcnt(0)")
        self.a("s_barrier")
        self.stamp(name)

    def dma_body(self, k, slot, role="L"):
        a = self.a
        if f"noc{k}" in self.opts:
            for m in range(4):
                a(f"s_mov_b32 m0, {USC + 1024}\ns_mov_b32 s{sB}, {OOB}\nbuffer_load_dwordx4 v{WOFF}, {sr(sWM, 4)}, s{sB} offen lds")
            self.vm(role, f"c{k}", 4)
            return
        srd, base = ((sWM, 0), (sWM, 131072))[k // 4]
        c = k % 4
        for m in range(4):
            a(f"""
            s_add_u32 m0, s{sW1K}, {SLOT[slot] + m * 8192}
            s_mov_b32 s{sB}, {base + c * 32768 + m * 8192}
            buffer_load_dwordx4 v{WOFF}, {sr(srd, 4)}, s{sB} offen lds
            """)
        self.vm(role, f"c{k}", 4)

    def dma_all(self, k, slot, m):
        a = self.a
        srd, base = ((sWM, 0), (sWM, 131072))[k // 4]
        a(f"""
        s_add_u32 m0, s{sWK}, {SLOT[slot] + m * 16384}
        s_add_u32 s{sB}, s{sHI}, {base + (k % 4) * 32768 + m * 16384}
        buffer_load_dwordx4 v{WOFF}, {sr(srd, 4)}, s{sB} offen lds
        """)
        self.vm("LN", f"c{k}")

    def spin(self, ctr, target, tmp, extra=None):
        a = self.a
        lab = a.newlabel("spin")
        a(f"v_mov_b32 v{tmp}, {ctr}")
        a.label(lab)
        a(f"ds_read_b32 v{tmp + 1}, v{tmp}")
        if extra:
            a(extra)
        a(f"""
        s_waitcnt lgkmcnt(0)
        v_readfirstlane_b32 s{sA}, v{tmp + 1}
        s_nop 0
        s_cmp_lt_u32 s{sA}, {target}
        s_cbranch_scc1 {lab}
        """)

    def xspin(self, shift):
        a = self.a
        lab = a.newlabel("xs")
        a(f"""
        {lab}:
        ds_read_b32 v{WF + 1}, v{WF}
        s_waitcnt lgkmcnt(0)
        v_readfirstlane_b32 s{sA}, v{WF + 1}
        s_nop 0
        s_bfe_u32 s{sA}, s{sA}, {shift | (4 << 16)}
        s_cmp_lt_u32 s{sA}, 3
        s_cbranch_scc0 {lab}_ok
        s_sleep 1
        s_branch {lab}
        {lab}_ok:
        """)

    def touch(self):
        a = self.a
        l2, done = a.newlabel("tw2"), a.newlabel("tdone")
        a(f"""
        s_lshr_b32 s{sA}, s{sT}, 3
        s_lshl_b32 s{sA}, s{sA}, 12
        s_mov_b32 m0, {USC + 1024}
        v_lshlrev_b32 v{W3 + 2}, 4, v{LANE}
        s_cmp_eq_u32 s{sW}, 5
        s_cbranch_scc0 {l2}
        """)
        for m in range(4):
            a(f"s_add_u32 s{sB}, s{sA}, {1024 * m}\nbuffer_load_dwordx4 v{W3 + 2}, {sr(sWU, 4)}, s{sB} offen lds")
        a(f"s_branch {done}\n{l2}:\ns_cmp_eq_u32 s{sW}, 6\ns_cbranch_scc0 {done}")
        for m in range(4):
            a(f"s_add_u32 s{sB}, s{sA}, {131072 + 1024 * m}\nbuffer_load_dwordx4 v{W3 + 2}, {sr(sWM, 4)}, s{sB} offen lds")
        a.label(done)

    def xpreload(self, ua):
        a = self.a
        a(f"v_mov_b32 v{WF}, {XCNT}")
        self.xspin(0)
        self.stamp("xa")
        for s in range(8):
            a(f"ds_read_b128 {vr(XR + 4 * s, 4)}, v{XA + (s & 3)} offset:{(s >> 2) * 256}")
        a(f"""
        s_cmp_lt_u32 s{sW}, 5
        s_cbranch_scc1 L_xp_go
        s_cmp_ge_u32 s{sW}, 8
        s_cbranch_scc1 L_xp_go
        v_mov_b32 v{W3 + 3}, 16
        s_mov_b64 exec, 1
        s_waitcnt vmcnt(0)
        ds_add_u32 v{WF}, v{W3 + 3}
        s_mov_b64 exec, -1
        """)
        a.label("L_xp_go")
        self.xspin(4)
        self.stamp("xb")
        for s in range(8):
            a(f"ds_read_b128 {vr(XR + 32 + 4 * s, 4)}, v{XA + (s & 3)} offset:{8192 + (s >> 2) * 256}")
        self.xreads(0)
        a(f"s_cmp_lt_u32 s{sW}, 8\ns_cbranch_scc1 L_xp_c2")
        self.dma_body(1, 1)
        a("s_branch L_xp_done\nL_xp_c2:")
        self.dma_body(2, 2, "N")
        a.label("L_xp_done")

    def xreads(self, c):
        a = self.a
        for sp in range(2):
            s = 2 * c + sp
            a(f"ds_read_b128 {vr(XF2 + 4 * sp, 4)}, v{XA + (s & 3)} offset:{2 * 8192 + (s >> 2) * 256}")

    def trreads(self, slot):
        a = self.a
        base = SLOT[slot]
        tr = TR0 if base < 65536 else TR1
        for sp in range(2):
            for p in range(2):
                a(f"ds_read_b64_tr_b16 {vr(WF + 4 * sp + 2 * p, 2)}, v{tr} offset:{(base & 65535) + 16384 * sp + 2048 * p}")

    def mfmas(self, acc, c, between=None):
        a = self.a
        for sp in range(2):
            if between:
                between(sp)
            a(f"s_waitcnt lgkmcnt({2 - 2 * sp})")
            for rb in range(3):
                cin = "0" if (c == 0 and sp == 0) else vr(acc + 4 * rb, 4)
                b = XR + 32 * rb + 4 * (2 * c + sp) if rb < 2 else XF2 + 4 * sp
                a(f"v_mfma_f32_16x16x32_bf16 {vr(acc + 4 * rb, 4)}, {vr(WF + 4 * sp, 4)}, {vr(b, 4)}, {cin}")

    def scan(self, v):
        a = self.a
        for sh in (1, 2, 4, 8):
            a(f"v_add_u32_dpp v{v}, v{v}, v{v} row_shr:{sh} row_mask:0xf bank_mask:0xf bound_ctrl:0")
        a(f"v_add_u32_dpp v{v}, v{v}, v{v} row_bcast:15 row_mask:0xa bank_mask:0xf")
        a(f"v_add_u32_dpp v{v}, v{v}, v{v} row_bcast:31 row_mask:0xc bank_mask:0xf")

    def poll_issue(self):
        a = self.a
        if "repl" not in self.opts:
            a(f"v_lshlrev_b32 v14, 5, v{LANE}\ns_mov_b32 s{sB}, {W_FB}\ns_mov_b32 s{sD}, {W_FB + 4096}")
            for k in range(4):
                a(f"buffer_load_dwordx2 {vr(POLLB + 2 * k, 2)}, v14, {sr(sWS, 4)}, s{sB if k < 2 else sD} offen offset:{2048 * (k & 1)} sc1")
            return
        a(f"v_lshlrev_b32 v14, 4, v{LANE}\ns_and_b32 s{sB}, s{sT}, 7\ns_lshl_b32 s{sB}, s{sB}, 12\ns_add_u32 s{sB}, s{sB}, {W_FR}")
        for k in range(4):
            a(f"buffer_load_dwordx2 {vr(POLLB + 2 * k, 2)}, v14, {sr(sWS, 4)}, s{sB} offen offset:{1024 * k} sc1")

    def poll_wait(self):
        a = self.a
        lp, chk, done = a.newlabel("poll"), a.newlabel("pchk"), a.newlabel("pdone")
        a(f"s_mov_b32 s{sC}, 0\ns_branch {chk}")
        a.label(lp)
        self.poll_issue()
        a.label(chk)
        m58 = (1 << (NT - 192)) - 1
        a(f"""
        s_waitcnt vmcnt(0)
        v_cmp_ne_u64 s[40:41], {sr(sTAG, 2)}, {vr(POLLB, 2)}
        v_cmp_ne_u64 vcc, {sr(sTAG, 2)}, {vr(POLLB + 2, 2)}
        v_cmp_ne_u64 s[88:89], {sr(sTAG, 2)}, {vr(POLLB + 4, 2)}
        v_cmp_ne_u64 s[46:47], {sr(sTAG, 2)}, {vr(POLLB + 6, 2)}
        s_nop 1
        s_and_b32 s47, s47, {m58 >> 32}
        s_or_b64 s[40:41], s[40:41], vcc
        s_or_b64 s[46:47], s[88:89], s[46:47]
        s_or_b64 s[40:41], s[40:41], s[46:47]
        s_cbranch_scc0 {done}
        s_add_u32 s{sC}, s{sC}, 1
        s_cmp_lt_u32 s{sC}, {POLL_LIMIT}
        s_cbranch_scc1 {lp}
        """)
        a.label(done)

    def tag_store(self, soff, tmp):
        a = self.a
        a(f"""
        v_mov_b32 v{tmp}, s{sTAG}
        v_mov_b32 v{tmp + 1}, s{sTAG + 1}
        v_lshlrev_b32 v{tmp + 2}, 24, v{LANE}
        buffer_store_dwordx2 {vr(tmp, 2)}, v{tmp + 2}, {sr(sWS, 4)}, s{soff} offen sc1
        """)

    def wave0(self, fn):
        a = self.a
        lab = a.newlabel("w0")
        a(f"s_cmp_eq_u32 s{sW}, 0\ns_cbranch_scc0 {lab}")
        fn()
        a.label(lab)

    def edge(self, pb, which, exact, first):
        a = self.a
        if "noedge" in self.opts:
            return
        p = PA[pb] + 4 * which
        sel = "op_sel:[1,0,0] op_sel_hi:[1,1,1]" if which else "op_sel:[0,0,0] op_sel_hi:[0,1,1]"
        y = NN if (first and not exact) else Y
        for h in range(2):
            a(f"v_pk_fma_f32 {vr(QE + 2 * h, 2)}, {vr(EE[pb], 2)}, {vr(W3 + 2 * h, 2)}, {vr(Q + 2 * h, 2)} {sel}")
        for h in range(2):
            a(f"v_pk_add_f32 {vr(y + 2 * h, 2)}, {vr(p + 2 * h, 2)}, {vr(QE + 2 * h, 2)}")
        for r in range(4):
            a(f"v_exp_f32 v{TT + r}, v{y + r}")
        if exact:
            for h in range(2):
                a(f"v_pk_add_f32 {vr(TT + 2 * h, 2)}, {vr(TT + 2 * h, 2)}, 1.0 op_sel_hi:[1,0]")
            for r in range(4):
                a(f"v_rcp_f32 v{TT + r}, v{TT + r}")
            for h in range(2):
                if first:
                    a(f"v_pk_mul_f32 {vr(NN + 2 * h, 2)}, {vr(Y + 2 * h, 2)}, {vr(TT + 2 * h, 2)}")
                else:
                    a(f"v_pk_fma_f32 {vr(NN + 2 * h, 2)}, {vr(Y + 2 * h, 2)}, {vr(TT + 2 * h, 2)}, {vr(NN + 2 * h, 2)}")
        elif first:
            for h in range(2):
                a(f"v_pk_add_f32 {vr(DD + 2 * h, 2)}, {vr(TT + 2 * h, 2)}, 1.0 op_sel_hi:[1,0]")
        else:
            for h in range(2):
                a(f"v_pk_fma_f32 {vr(NN + 2 * h, 2)}, {vr(NN + 2 * h, 2)}, {vr(TT + 2 * h, 2)}, {vr(NN + 2 * h, 2)}")
            for h in range(2):
                a(f"v_pk_fma_f32 {vr(NN + 2 * h, 2)}, {vr(Y + 2 * h, 2)}, {vr(DD + 2 * h, 2)}, {vr(NN + 2 * h, 2)}")
            for h in range(2):
                a(f"v_pk_fma_f32 {vr(DD + 2 * h, 2)}, {vr(DD + 2 * h, 2)}, {vr(TT + 2 * h, 2)}, {vr(DD + 2 * h, 2)}")

    def pair(self, pb):
        a = self.a
        p = PA[pb]
        lo, hi = "op_sel:[0,0,0] op_sel_hi:[0,1,1]", "op_sel:[1,0,0] op_sel_hi:[1,1,1]"

        def qe(dst, h, sel):
            return f"v_pk_fma_f32 {vr(dst + 2 * h, 2)}, {vr(EE[pb], 2)}, {vr(W3 + 2 * h, 2)}, {vr(Q + 2 * h, 2)} {sel}"

        def nt(t, h):
            return f"v_pk_fma_f32 {vr(NN + 2 * h, 2)}, {vr(NN + 2 * h, 2)}, {vr(t + 2 * h, 2)}, {vr(NN + 2 * h, 2)}"

        def yd(y, h):
            return f"v_pk_fma_f32 {vr(NN + 2 * h, 2)}, {vr(y + 2 * h, 2)}, {vr(DD + 2 * h, 2)}, {vr(NN + 2 * h, 2)}"

        def dt(t, h):
            return f"v_pk_fma_f32 {vr(DD + 2 * h, 2)}, {vr(DD + 2 * h, 2)}, {vr(t + 2 * h, 2)}, {vr(DD + 2 * h, 2)}"

        seq = [qe(Y, 0, lo), qe(Y, 1, lo), qe(QE, 0, hi), qe(QE, 1, hi)]
        seq += [f"v_pk_add_f32 {vr(Y + 2 * h, 2)}, {vr(p + 2 * h, 2)}, {vr(Y + 2 * h, 2)}" for h in range(2)]
        seq += [f"v_pk_add_f32 {vr(QE + 2 * h, 2)}, {vr(p + 4 + 2 * h, 2)}, {vr(QE + 2 * h, 2)}" for h in range(2)]
        seq += [f"v_exp_f32 v{TT + r}, v{Y + r}" for r in range(4)]
        seq += [f"v_exp_f32 v{p + r}, v{QE + r}" for r in range(2)]
        seq += [nt(TT, 0), nt(TT, 1)]
        seq += [f"v_exp_f32 v{p + 2}, v{QE + 2}", yd(Y, 0), yd(Y, 1), f"v_exp_f32 v{p + 3}, v{QE + 3}", dt(TT, 0), dt(TT, 1)]
        seq += [nt(p, 0), nt(p, 1), yd(QE, 0), yd(QE, 1), dt(p, 0), dt(p, 1)]
        for x in seq:
            a(x)

    def side_add(self, src, tag):
        self.a(f"""
        s_cmp_eq_u32 s{sCO}, 0
        s_cbranch_scc1 L_noside_{tag}
        s_lshl_b32 s{sA}, s{sW}, 9
        s_add_u32 s{sA}, s{sA}, {(SIDE + 512) ^ AB}
        v_xor_b32 v{QA}, s{sA}, v{L8}
        s_mov_b32 s{sC}, 0
        L_side_{tag}:
        ds_read_b64 {vr(TT, 2)}, v{QA}
        s_add_u32 s{sC}, s{sC}, 1
        s_waitcnt lgkmcnt(0)
        v_cmp_eq_u64 vcc, -1, {vr(TT, 2)}
        s_cmp_gt_u32 s{sC}, 40000
        s_cbranch_scc1 L_side_go_{tag}
        s_cbranch_vccnz L_side_{tag}
        L_side_go_{tag}:
        v_lshlrev_b32 v{QE}, 16, v{TT}
        v_and_b32 v{QE + 1}, 0xffff0000, v{TT}
        v_lshlrev_b32 v{QE + 2}, 16, v{TT + 1}
        v_and_b32 v{QE + 3}, 0xffff0000, v{TT + 1}
        v_pk_add_f32 {vr(src, 2)}, {vr(src, 2)}, {vr(QE, 2)}
        v_pk_add_f32 {vr(src + 2, 2)}, {vr(src + 2, 2)}, {vr(QE + 2, 2)}
        L_noside_{tag}:
        """)

    def f32_row(self, key, dst):
        self.a(f"""
        s_lshr_b32 s{dst}, s{key}, 9
        s_cmp_lt_u32 s{dst}, 20
        s_cselect_b32 s{sA}, {AB // 1024}, {AF2 // 1024 - 20}
        s_add_u32 s{dst}, s{dst}, s{sA}
        s_lshl_b32 s{dst}, s{dst}, 10
        """)

    def flush(self, exact, mid=None, final=False):
        a = self.a
        if exact:
            if mid:
                mid()
            acc, done = a.newlabel("facc"), a.newlabel("fdone")
            a(f"s_cmp_eq_u32 s{sMODE}, 2\ns_cbranch_scc1 {acc}")
            if final:
                self.side_add(NN, "x")
            a(f"""
            v_cvt_pk_bf16_f32 v{TT}, v{NN}, v{NN + 1}
            v_cvt_pk_bf16_f32 v{TT + 1}, v{NN + 2}, v{NN + 3}
            ds_write_b64 v{AG}, {vr(TT, 2)}
            v_xor_b32 v{AG}, s{sD}, v{L8}
            s_branch {done}
            {acc}:
            """)
            for r in range(4):
                a(f"ds_add_f32 v{AG}, v{NN + r} offset:{256 * r}")
            if not final:
                self.f32_row(sD, sD)
                a(f"v_add_u32 v{AG}, s{sD}, v{L4}")
            a(f"{done}:\ns_waitcnt lgkmcnt(0)")
            return
        for r in range(4):
            a(f"v_rcp_f32 v{TT + r}, v{DD + r}")
        if mid:
            mid()
        a(f"v_max3_f32 v{CK1}, v{CK1}, v{DD}, v{DD + 1}")
        a(f"v_max3_f32 v{CK1}, v{CK1}, v{DD + 2}, v{DD + 3}")
        for h in range(2):
            a(f"v_pk_mul_f32 {vr(Y + 2 * h, 2)}, {vr(NN + 2 * h, 2)}, {vr(TT + 2 * h, 2)}")
        for h in range(2):
            a(f"v_pk_fma_f32 {vr(CK2, 2)}, {vr(Y + 2 * h, 2)}, 0, {vr(CK2, 2)} op_sel_hi:[1,0,1]")
        if final:
            self.side_add(Y, "f")
        a(f"v_cvt_pk_bf16_f32 v{TT}, v{Y}, v{Y + 1}")
        a(f"v_cvt_pk_bf16_f32 v{TT + 1}, v{Y + 2}, v{Y + 3}")
        a(f"ds_write_b64 v{AG}, {vr(TT, 2)}")
        if not final:
            a(f"v_xor_b32 v{AG}, s{sD}, v{L8}\ns_waitcnt lgkmcnt(1)")

    def p_reads(self, pb, slot):
        a = self.a
        for row in range(2):
            for r in range(4):
                a(f"ds_read_u16_d16_hi v{PA[pb] + 4 * row + r}, v{RG} offset:{ROFF[slot] + row * 512 + r * 128}")

    def gather(self, slot):
        if "nodma" in self.opts:
            return
        self.a(f"""
        s_mov_b32 m0, s{sSLOT + slot}
        buffer_load_dwordx4 {vr(IA, 2)}, {sr(sP, 4)}, 0 idxen offen sc1 lds
        """)

    def reads(self, jj):
        a = self.a
        pb = jj & 1
        self.p_reads(pb ^ 1, (jj + 1) & 3)
        a(f"ds_read_b64 {vr(EE[pb ^ 1], 2)}, v{EA} offset:{8 * (jj + 1)}")
        a(f"ds_read_u16 v{IA}, v{IXA} offset:{4 * (jj + 5)}")

    def main_loop(self, exact, exit_label):
        a = self.a
        tag = "x" if exact else "f"
        loop, fin = f"L_loop_{tag}", f"L_fin_{tag}"
        prio = not exact and "noprio" not in self.opts
        a.label(loop)
        for jj in range(4):
            a(f"s_and_b32 s{sA}, s{sTM}, {3 << (2 * jj)}\ns_cbranch_scc1 L_blk_{tag}_{jj}\ns_waitcnt vmcnt(3)")
            self.reads(jj)
            if exact or "noil" in self.opts or "noedge" in self.opts:
                self.edge(jj & 1, 0, exact, False)
                self.edge(jj & 1, 1, exact, False)
            else:
                self.pair(jj & 1)
            a.label(f"L_back_{tag}_{jj}")
            a(f"s_mov_b32 m0, s{sSLOT + ((jj + 1) & 3)}\ns_waitcnt lgkmcnt(0)")
            if "nodma" not in self.opts:
                a(f"buffer_load_dwordx4 {vr(IA, 2)}, {sr(sP, 4)}, 0 idxen offen sc1 lds")
        a(f"""
        v_add_u32 v{IXA}, 16, v{IXA}
        v_add_u32 v{EA}, 32, v{EA}
        s_lshr_b64 {sr(sMASK, 2)}, {sr(sMASK, 2)}, 8
        s_or_b32 s{sMASK + 1}, s{sMASK + 1}, s{sHB}
        s_mov_b32 s{sHB}, 0
        s_mov_b32 s{sTM}, s{sMASK}
        s_add_u32 s{sI}, s{sI}, 8
        """)
        t2, t1, t0 = self.opt("p2", 12), self.opt("p1", 8), self.opt("p0", 4)
        tu = self.opt("tu", 12)
        a(f"s_sub_u32 s{sREM}, s{sREM}, 4\ns_cmp_gt_i32 s{sREM}, {t2}\ns_cbranch_scc1 {loop}")
        if "u2early" not in self.opts and "nou2" not in self.opts:
            a(f"""
            s_cmp_gt_i32 s{sREM}, {tu}
            s_cbranch_scc1 L_nou2_{tag}
            s_cmp_eq_u32 s{sW11}, -1
            s_cbranch_scc0 L_nou2_{tag}
            """)
            self.u2_loads()
            a(f"s_mov_b32 s{sW11}, s{sI}\ns_or_b32 s{sTM}, s{sTM}, 0xff\nL_nou2_{tag}:")
        if prio:
            a(f"""
            s_setprio 2
            s_cmp_gt_i32 s{sREM}, {t1}
            s_cbranch_scc1 {loop}
            s_setprio 1
            s_cmp_gt_i32 s{sREM}, {t0}
            s_cbranch_scc1 {loop}
            s_setprio 0
            """)
        a(f"s_branch {loop}")
        for jj in range(4):
            pb = jj & 1
            b = f"L_blk_{tag}_{jj}"
            a.reset_hist()
            a(f"""
            {b}:
            s_waitcnt vmcnt(11)
            s_cmp_eq_u32 s{sI}, s{sW11}
            s_cbranch_scc1 {b}_w
            s_waitcnt vmcnt(3)
            {b}_w:
            """)
            self.reads(jj)
            a(f"s_bitcmp1_b32 s{sMASK}, {2 * jj}\ns_cbranch_scc1 {b}_f0")
            self.edge(pb, 0, exact, False)
            a(f"{b}_a:\ns_bitcmp1_b32 s{sMASK}, {2 * jj + 1}\ns_cbranch_scc1 {b}_f1")
            self.edge(pb, 1, exact, False)
            a(f"s_branch L_back_{tag}_{jj}")
            for which in range(2):
                a.reset_hist()
                a(f"""
                {b}_f{which}:
                s_add_u32 s{sA}, s{sI}, {2 * jj + which}
                s_cmp_eq_u32 s{sA}, s{sNE}
                s_cbranch_scc1 {fin}
                v_readlane_b32 s{sB}, v{INFO}, s{sA}
                """)

                def mid():
                    a(f"""
                    s_and_b32 s{sC}, s{sB}, 0xffff
                    s_lshr_b32 s{sD}, s{sB}, 16
                    v_add_u32 v{QA}, s{sC}, v{L4}
                    ds_read2st64_b32 {vr(Q, 2)}, v{QA} offset0:0 offset1:1
                    ds_read2st64_b32 {vr(Q + 2, 2)}, v{QA} offset0:2 offset1:3
                    """)

                self.flush(exact, mid)
                self.edge(pb, which, exact, True)
                a(f"s_branch {b + '_a' if which == 0 else f'L_back_{tag}_{jj}'}")
        a.reset_hist()
        a.label(fin)
        self.flush(exact, final=True)
        if "u2early" not in self.opts:
            a(f"s_cmp_eq_u32 s{sW11}, -1\ns_cbranch_scc0 {exit_label}")
            self.u2_loads()
        a(f"s_branch {exit_label}")

    def zero_agg(self, addr, zq):
        a = self.a
        lab = a.newlabel("zagg")
        a(f"""
        ds_write_b128 v{addr}, {vr(zq, 4)}
        s_cmp_lt_u32 s{sW}, 4
        s_cbranch_scc0 {lab}
        ds_write_b128 v{addr}, {vr(zq, 4)} offset:16384
        {lab}:
        """)

    def u2_loads(self):
        a = self.a
        a(f"""
        s_lshl_b32 s{sA}, s{sW}, 14
        s_add_u32 s{sA}, s{sA}, {W_UT + 8192}
        s_add_u32 s{sB}, s{sA}, 4096
        v_lshlrev_b32 v{TM}, 4, v{LANE}
        """)
        for s in range(8):
            so = sA if s < 4 else sB
            a(f"buffer_load_dwordx4 {vr(UF + 4 * s, 4)}, v{TM}, {sr(sWS, 4)}, s{so} offen offset:{(s & 3) * 1024} sc1")

    def hi_passes(self, fn):
        a = self.a
        fn(0)
        fn(1)
        lab = a.newlabel("hp")
        a(f"s_cmp_eq_u64 {sr(sVAL + 4, 2)}, 0\ns_cbranch_scc1 {lab}")
        fn(2)
        fn(3)
        a.label(lab)

    def rec_issue(self, S):
        a = self.a
        a(f"""
        s_lshl_b32 s{sA}, s{sP0}, 2
        s_lshl_b32 s{sB}, s{sP0}, 5
        v_mov_b32 v{S.tmp}, {OOB}
        s_add_u32 s{sC}, s{sA}, 4
        s_add_u32 s{sD}, s{sA}, 8
        v_cmp_lt_i32 {sr(sVAL, 2)}, s{sA}, v{CQ}
        s_add_u32 s{sA}, s{sA}, 12
        v_cmp_lt_i32 {sr(sVAL + 2, 2)}, s{sC}, v{CQ}
        v_cmp_lt_i32 {sr(sVAL + 4, 2)}, s{sD}, v{CQ}
        v_cmp_lt_i32 {sr(sVAL + 6, 2)}, s{sA}, v{CQ}
        s_cmp_gt_u32 s{sNP}, 1
        s_cselect_b64 {sr(sVAL + 2, 2)}, {sr(sVAL + 2, 2)}, 0
        s_cselect_b64 {sr(sVAL + 4, 2)}, {sr(sVAL + 4, 2)}, 0
        s_cselect_b64 {sr(sVAL + 6, 2)}, {sr(sVAL + 6, 2)}, 0
        """)
        lab = a.newlabel("hp")
        a(f"s_cmp_eq_u64 {sr(sVAL + 4, 2)}, 0\ns_cbranch_scc1 {lab}")
        for k in (2, 3, 0, 1):
            if k == 0:
                a.label(lab)
            a(f"""
            v_cndmask_b32 v{S.adr + k}, v{S.tmp}, v{RBA}, {sr(sVAL + 2 * k, 2)}
            buffer_load_dwordx2 {vr(S.rec[k], 2)}, v{S.adr + k}, {sr(sWS, 4)}, s{sB} offen offset:{32 * k} sc1
            """)

    def count(self, S):
        a = self.a
        a(f"v_mov_b32 v{S.tmp}, 1\ns_mov_b32 s{sA}, {CNTN}")

        def one(k):
            a(f"""
            s_mov_b64 exec, {sr(sVAL + 2 * k, 2)}
            v_bfe_u32 v{S.adr + k}, v{S.rec[k]}, 16, 6
            v_lshl_add_u32 v{S.adr + k}, v{S.adr + k}, 2, s{sA}
            ds_add_rtn_u32 v{S.rank + k}, v{S.adr + k}, v{S.tmp}
            """)
        self.hi_passes(one)
        a("s_mov_b64 exec, -1")

    def lists(self, S, generic_label, first=True):
        a = self.a
        sc = S.tmp
        done = a.newlabel("lists")
        a(f"""
        s_mov_b32 s{sA}, {CNTN}
        v_lshl_add_u32 v{sc + 3}, v{LANE}, 2, s{sA}
        v_mov_b32 v{sc + 2}, {MISC}
        ds_read_b32 v{sc}, v{sc + 3}
        ds_read_b32 v{sc + 2}, v{sc + 2}
        s_waitcnt lgkmcnt(0)
        v_mov_b32 v{sc + 1}, v{sc}
        v_readfirstlane_b32 s{sMAXC}, v{sc + 2}
        v_cmp_eq_u32 {sr(sZ, 2)}, 0, v{sc}
        v_subrev_u32 v{sc}, {DL}, v{sc}
        """)
        self.scan(sc + 1)
        a(f"""
        v_readlane_b32 s{sM}, v{sc + 1}, 63
        v_sub_u32 v{sc + 1}, v{sc + 1}, v{sc}
        s_cmp_gt_u32 s{sM}, 1024
        s_cbranch_scc1 {generic_label}
        """)
        if first:
            a(f"""
            s_cmp_eq_u32 s{sMAXC}, 0
            s_cbranch_scc0 {generic_label}
            s_cmp_lt_u32 s{sM}, 64
            s_cbranch_scc0 {done}
            s_mov_b32 s{sMODE}, 2
            """)
        a(f"""
        {done}:
        """)
        self.hi_passes(lambda k: a(f"ds_bpermute_b32 v{S.adr + k}, v{S.adr + k}, v{sc + 1}"))
        a(f"""
        s_add_u32 s{sA}, s{sM}, 1
        s_lshr_b32 s{sA}, s{sA}, 1
        s_mul_i32 s{sB}, s{sA}, s{sW}
        s_add_u32 s{sC}, s{sB}, s{sA}
        s_lshr_b32 s{sI}, s{sB}, 4
        s_lshr_b32 s{sC}, s{sC}, 4
        s_sub_u32 s{sREM}, s{sC}, s{sI}
        s_lshl_b32 s{sC}, s{sC}, 1
        s_cmp_lt_u32 s{sC}, s{sM}
        s_cselect_b32 s{sCO}, 1, 0
        s_min_u32 s{sC}, s{sC}, s{sM}
        s_lshl_b32 s{sI}, s{sI}, 1
        s_sub_u32 s{sNE}, s{sC}, s{sI}
        s_mov_b32 s{sA}, {(IL - 2 * DL) & 0xffffffff}
        s_mov_b32 s{sB}, {(EL - 4 * DL) & 0xffffffff}
        s_waitcnt lgkmcnt(0)
        """)

        def one(k):
            a(f"""
            s_mov_b64 exec, {sr(sVAL + 2 * k, 2)}
            v_add_u32 v{S.rank + k}, v{S.rank + k}, v{S.adr + k}
            v_lshl_add_u32 v{S.adr + k}, v{S.rank + k}, 1, s{sA}
            v_lshl_add_u32 v{sc + (k & 1)}, v{S.rank + k}, 2, s{sB}
            ds_write_b8_d16_hi v{S.rank + k}, v{S.rec[k]}
            ds_write_b16 v{S.adr + k}, v{S.rec[k]}
            ds_write_b32 v{sc + (k & 1)}, v{S.rec[k] + 1}
            """)
        self.hi_passes(one)
        a("s_mov_b64 exec, -1")

    def setup(self, tm):
        a = self.a
        a(f"""
        s_add_u32 s{sD}, s{sI}, {DL - 1}
        v_add_u32 v{INFO}, s{sD}, v{LANE}
        s_lshl_b32 s{sA}, s{sI}, 1
        s_add_u32 s{sA}, s{sA}, {IL}
        v_lshl_add_u32 v{EA}, v{LANE}, 1, s{sA}
        ds_read_u16 v{tm + 3}, v{EA}
        ds_read_u8 v{tm}, v{INFO}
        ds_read_u8 v{tm + 2}, v{INFO} offset:1
        ds_read_u8 v{tm + 1}, v{INFO} offset:2
        s_cmp_lt_u32 s{sW}, 9
        s_mov_b32 s{sC}, {PILB}
        s_cselect_b32 s{sC}, {PILA}, s{sC}
        s_mul_i32 s{sB}, s{sW}, 192
        s_add_u32 s{sB}, s{sB}, s{sC}
        v_lshl_add_u32 v{INFO}, v{LANE}, 1, s{sB}
        v_mov_b32 v{tm + 4}, 0xffff
        v_cmp_gt_i32 vcc, s{sNE}, v{LANE}
        s_mov_b32 exec_hi, 0
        ds_write_b16 v{INFO}, v{tm + 4} offset:128
        s_mov_b64 exec, -1
        v_lshrrev_b32 v{IXA}, 5, v{LANE}
        v_lshl_add_u32 v{IXA}, v{IXA}, 1, s{sB}
        s_lshl_b32 s{sA}, s{sI}, 2
        s_add_u32 s{sA}, s{sA}, {EL}
        v_mov_b32 v{EA}, s{sA}
        s_waitcnt lgkmcnt(4)
        v_cndmask_b32 v{tm + 3}, v{tm + 4}, v{tm + 3}, vcc
        ds_write_b16 v{INFO}, v{tm + 3}
        """)
        for k in range(5):
            a(f"ds_read_u16 v{IX0 + k}, v{IXA} offset:{4 * k}")
        a(f"""
        s_waitcnt lgkmcnt(7)
        v_cmp_ne_u32 {sr(sMASK, 2)}, v{tm + 2}, v{tm + 1}
        v_cmp_eq_u32 vcc, v{tm + 2}, v{tm}
        v_mul_u32_u24 v{INFO}, {QS}, v{tm + 2}
        v_and_b32 v{tm + 1}, 15, v{tm + 2}
        v_lshlrev_b32 v{tm + 1}, 4, v{tm + 1}
        v_lshl_add_u32 v{tm + 1}, v{tm + 2}, 9, v{tm + 1}
        v_lshl_or_b32 v{INFO}, v{tm + 1}, 16, v{INFO}
        s_sub_u32 s{sA}, s{sNE}, 1
        s_bitcmp0_b64 {sr(sMASK, 2)}, s{sA}
        s_cselect_b32 s{sCO}, s{sCO}, 0
        s_bitset1_b64 {sr(sMASK, 2)}, s{sA}
        v_readfirstlane_b32 s{sB}, v{INFO}
        ; end-of-segment bits become start-of-segment bits; bit 64 is carried separately
        s_lshr_b32 s{sHB2}, s{sMASK + 1}, 31
        s_lshl_b32 s{sHB2}, s{sHB2}, 24
        s_lshl_b64 {sr(sMASK, 2)}, {sr(sMASK, 2)}, 1
        s_and_b32 s{sC}, vcc_lo, 1
        s_cmp_eq_u32 s{sI}, 0
        s_cselect_b32 s{sC}, 0, s{sC}
        s_cmp_lt_u32 s{sMODE}, 2
        s_cselect_b32 s{sC}, s{sC}, 0
        s_lshl_b32 s{sA}, s{sW}, 9
        s_add_u32 s{sA}, s{sA}, {SIDE ^ AB}
        s_lshr_b32 s{sD}, s{sB}, 16
        s_cmp_eq_u32 s{sC}, 0
        s_cselect_b32 s{sAG0}, s{sD}, s{sA}
        s_and_b32 s{sQ0}, s{sB}, 0xffff
        """)

    def slot_consts(self):
        self.a(f"""
        s_lshl_b32 s{sA}, s{sW}, 11
        s_add_u32 s{sSLOT}, s{sA}, {RING + ROFF[0]}
        s_add_u32 s{sSLOT + 1}, s{sA}, {RING + ROFF[1]}
        s_add_u32 s{sSLOT + 2}, s{sA}, {RING + ROFF[2]}
        s_add_u32 s{sSLOT + 3}, s{sA}, {RING + ROFF[3]}
        v_and_b32 v{IA + 1}, 31, v{LANE}
        v_lshlrev_b32 v{IA + 1}, 4, v{IA + 1}
        """)

    def lane_consts(self):
        self.a(f"""
        v_lshl_add_u32 v{RG}, v{LANE}, 1, s{sSLOT}
        v_lshlrev_b32 v{L4}, 2, v{LANE}
        v_lshlrev_b32 v{L8}, 3, v{LANE}
        v_or_b32 v{L8}, {AB}, v{L8}
        """)

    def side_fill(self, tmp, adr):
        self.a(f"""
        v_mov_b64 {vr(tmp, 2)}, -1
        s_lshl_b32 s{sA}, s{sW}, 9
        s_add_u32 s{sA}, s{sA}, {SIDE}
        v_lshl_add_u32 v{adr}, v{LANE}, 3, s{sA}
        ds_write_b64 v{adr}, {vr(tmp, 2)}
        """)

    def tag_calc(self):
        self.a(f"""
        v_readfirstlane_b32 s{sTAG}, v{W3}
        v_readfirstlane_b32 s{sTAG + 1}, v{W3 + 1}
        s_add_u32 s{sTAG}, s{sTAG}, 1
        s_addc_u32 s{sTAG + 1}, s{sTAG + 1}, 0
        s_lshl_b32 s{sTLO}, s{sTAG + 1}, 20
        s_lshl_b32 s{sRA}, s{sTAG}, 24
        s_bfe_u32 s{sRB}, s{sTAG}, 0x100008
        """)

    def clean(self, S):
        a = self.a
        lp, ok = a.newlabel("clean"), a.newlabel("cleanok")
        a(f"s_mov_b32 s{sM}, 0\n{lp}:\ns_mov_b64 s[40:41], 0")

        def one(k):
            a(f"""
            s_mov_b64 exec, {sr(sVAL + 2 * k, 2)}
            v_xor_b32 v{S.rec[k]}, s{sRA}, v{S.rec[k]}
            v_xor_b32 v{S.rec[k] + 1}, s{sRB}, v{S.rec[k] + 1}
            v_lshrrev_b32 v{S.adr + k}, 24, v{S.rec[k]}
            v_lshl_or_b32 v{S.adr + k}, v{S.rec[k] + 1}, 16, v{S.adr + k}
            v_cmp_ne_u32 vcc, 0, v{S.adr + k}
            s_or_b64 s[40:41], s[40:41], vcc
            """)
        self.hi_passes(one)
        a(f"""
        s_mov_b64 exec, -1
        s_cmp_eq_u64 s[40:41], 0
        s_cbranch_scc1 {ok}
        s_add_u32 s{sM}, s{sM}, 1
        s_cmp_gt_u32 s{sM}, {POLL_LIMIT}
        s_cbranch_scc1 {ok}
        """)
        self.rec_issue(S)
        a(f"s_waitcnt vmcnt(0)\ns_branch {lp}\n{ok}:")

    def binning(self):
        a = self.a
        DV, SV, EP, AD, RK, RV, H0, B0, SQ, t4, t5, t6, t7 = 24, 26, 28, 30, 32, 34, 40, 44, 48, 52, 53, 54, 56
        a(f"""
        s_mov_b32 s{sC}, -40
        s_mov_b32 s{sD}, {HIST}
        v_mov_b32 v{t4}, 1
        v_mov_b32 v{t7}, {S1C}
        v_lshlrev_b32 v{t5}, 4, v{LANE}
        v_add_u32 v{t6}, {HIST}, v{t5}
        s_waitcnt vmcnt(1)
        """)
        self.stamp("edges")
        self.tag_calc()
        R2 = range(2)
        for i in R2:
            a(f"v_mul_u32_u24 v{AD + i}, 52429, v{DV + i}")
        for i in R2:
            a(f"v_lshrrev_b32 v{AD + i}, 21, v{AD + i}")
        for i in R2:
            a(f"v_min_u32 v{RK + i}, 255, v{AD + i}")
        for i in R2:
            a(f"v_and_b32 v{AD + i}, 7, v{RK + i}\nv_lshrrev_b32 v{H0 + i}, 3, v{RK + i}")
        for i in R2:
            a(f"v_lshl_or_b32 v{AD + i}, v{AD + i}, 5, v{H0 + i}")
        for i in R2:
            a(f"v_lshl_add_u32 v{AD + i}, v{AD + i}, 2, s{sD}")
        for i in R2:
            a(f"v_mad_i32_i24 v{DV + i}, v{RK + i}, s{sC}, v{DV + i}")
            a(f"ds_add_rtn_u32 v{RK + i}, v{AD + i}, v{t4}")
        a(f"s_mov_b64 exec, 1\nds_add_u32 v{t7}, v{t4}\ns_mov_b64 exec, -1")
        for i in R2:
            a(f"v_lshl_or_b32 v{RV + 2 * i}, v{DV + i}, 16, v{SV + i}")
        a(f"""
        v_mov_b32 v{RV + 3}, 0xffff0000
        v_lshl_or_b32 v{RV + 1}, v{EP}, 16, s{sRB}
        v_and_or_b32 v{RV + 3}, v{EP}, v{RV + 3}, s{sRB}
        v_or_b32 v{RV}, s{sRA}, v{RV}
        v_or_b32 v{RV + 2}, s{sRA}, v{RV + 2}
        """)
        self.spin(S1C, 5, t7, f"ds_read_b128 {vr(H0, 4)}, v{t6}")
        a(f"""
        v_add_u32 v{B0 + 1}, v{H0}, v{H0 + 1}
        v_add_u32 v{SQ}, v{H0 + 2}, v{H0 + 3}
        v_add_u32 v{SQ}, v{SQ}, v{B0 + 1}
        v_mov_b32 v{SQ + 1}, v{SQ}
        """)
        self.scan(SQ + 1)
        a(f"""
        v_sub_u32 v{B0}, v{SQ + 1}, v{SQ}
        v_add_u32 v{B0 + 2}, v{B0}, v{B0 + 1}
        v_add_u32 v{B0 + 1}, v{B0}, v{H0}
        v_add_u32 v{B0 + 3}, v{B0 + 2}, v{H0 + 2}
        ds_write_b128 v{t6}, {vr(B0, 4)} offset:{BASE - HIST}
        ds_read_b32 v{DV}, v{AD} offset:{BASE - HIST}
        ds_read_b32 v{DV + 1}, v{AD + 1} offset:{BASE - HIST}
        s_mov_b32 s{sD}, {SORT}
        v_mov_b32 v{t7}, {S2C}
        v_lshlrev_b32 v{t5}, 4, v{TID}
        v_add_u32 v{t6}, {SORT}, v{t5}
        s_mul_i32 s{sB}, s{sT}, {EC * 8}
        s_add_u32 s{sB}, s{sB}, {W_RECS}
        s_waitcnt lgkmcnt(0)
        v_add_u32 v{DV}, v{DV}, v{RK}
        v_add_u32 v{DV + 1}, v{DV + 1}, v{RK + 1}
        v_lshl_add_u32 v{DV}, v{DV}, 3, s{sD}
        v_lshl_add_u32 v{DV + 1}, v{DV + 1}, 3, s{sD}
        ds_write_b64 v{DV}, {vr(RV, 2)}
        ds_write_b64 v{DV + 1}, {vr(RV + 2, 2)}
        s_mov_b64 exec, 1
        ds_add_u32 v{t7}, v{t4}
        s_mov_b64 exec, -1
        """)
        self.spin(S2C, 5, t7, f"ds_read_b128 {vr(SQ, 4)}, v{t6}")
        a(f"buffer_store_dwordx4 {vr(SQ, 4)}, v{t5}, {sr(sWS, 4)}, s{sB} offen sc1")
        self.stamp("binned")

    def build(self):
        a = self.a
        t0, t1, t2, t3, t4, t5, t6, t7 = range(58, 66)
        PQ = 24
        UQ = 108
        u0, u1, u2, u3 = 57, 58, 59, 60

        if self.stamps and "dbg" not in self.opts:
            a(f"s_memrealtime s[86:87]\ns_memtime {sr(self.STAMP_REGS[0], 2)}")
        if "pad0" in self.opts or any(o.startswith("padat=") for o in self.opts):
            a("s_memrealtime s[96:97]")
        a(f"""
        s_cmp_ge_u32 s{sT}, {NT}
        s_cbranch_scc1 L_end
        s_load_dwordx16 s[40:55], s[0:1], 0
        s_load_dwordx2 s[56:57], s[0:1], 64
        v_and_b32 v{LANE}, 63, v{TID}
        """)
        if "nocodepf" not in self.opts:
            a(f"""
            s_getpc_b64 s[4:5]
            L_pc:
            """)
            if "slicepf" not in self.opts:
                a(f"""
                v_lshlrev_b32 v{t0}, 4, v{TID}
                v_min_u32 v{t0}, L_end-L_pc-12, v{t0}
                global_load_dwordx4 {vr(AC2 + 8, 4)}, v{t0}, s[4:5]
                """)
            else:
                a(f"""
                s_lshr_b32 s6, s{sT}, 3
                s_and_b32 s6, s6, 31
                s_lshl_b32 s6, s6, 10
                v_lshl_add_u32 v{t0}, v{TID}, 4, s6
                v_min_u32 v{t0}, L_code_end-L_pc-16, v{t0}
                v_cmp_gt_u32 vcc, 64, v{TID}
                s_cbranch_vccz L_nopf
                global_load_dwordx4 {vr(AC2 + 8, 4)}, v{t0}, s[4:5]
                L_nopf:
                """)
        a(f"""
        v_lshrrev_b32 v{t0}, 6, v{TID}
        v_mov_b32 v{t6}, 0
        v_lshlrev_b32 v{t7}, 2, v{TID}
        v_readfirstlane_b32 s{sW}, v{t0}
        v_add_u32 v{t7}, {HIST}, v{t7}
        s_cmp_lt_u32 s{sW}, 4
        s_cbranch_scc1 L_z1
        s_cmp_gt_u32 s{sW}, 5
        s_cbranch_scc1 L_z2
        v_add_u32 v{t7}, {CNTN - HIST - 1024}, v{t7}
        L_z1:
        ds_write_b32 v{t7}, v{t6}
        L_z2:
        v_lshrrev_b32 v{t3}, 5, v{TID}
        v_and_b32 v{t4}, 31, v{TID}
        v_and_b32 v{t5}, 15, v{t3}
        v_xor_b32 v{t6}, v{t5}, v{t4}
        v_lshlrev_b32 v{t6}, 4, v{t6}
        s_mul_i32 s{sB}, s{sT}, {T * 512}
        v_lshl_add_u32 v{t6}, v{t3}, 9, v{t6}
        v_add_u32 v{GO}, s{sB}, v{t6}
        v_and_b32 v{t6}, 3, v{t5}
        v_lshrrev_b32 v{t7}, 1, v{t5}
        v_and_b32 v{t7}, 4, v{t7}
        v_or_b32 v{t6}, v{t6}, v{t7}
        v_lshlrev_b32 v{t6}, 1, v{t6}
        v_xor_b32 v{t6}, v{t6}, v{t4}
        v_lshlrev_b32 v{t6}, 4, v{t6}
        v_lshl_add_u32 v{WOFF}, v{t5}, 9, v{t6}
        s_and_b32 s{sW1K}, s{sW}, 7
        s_lshl_b32 s{sW1K}, s{sW1K}, 10
        """)
        if self.stamps:
            a(f"v_mov_b32 v{STAMPV}, 0")
            for r in self.STAMP_REGS[1:5]:
                a(f"s_mov_b32 s{r}, 0")
        a("s_waitcnt lgkmcnt(0)")

        def srd(s, p, nbytes):
            a(f"""
            s_mov_b32 s{s}, s{p}
            s_mov_b32 s{s + 1}, s{p + 1}
            s_mov_b32 s{s + 2}, {nbytes}
            s_mov_b32 s{s + 3}, 0x20000
            """)

        srd(sDST, 46, E * 4)
        srd(sSRC, 44, E * 4)
        srd(sEA, 42, E * 2)
        srd(sX, 40, N * 512)
        srd(sWM, 48, 513 * 512)
        srd(sWU, 50, 512 * 512)
        srd(sWS, 56, WS_SIZE)
        a("s_barrier")
        if self.opt("pad", 0) and "pad0" not in self.opts:
            a("s_memrealtime s[96:97]")
        self.stamp("start")
        self.stamp("bar0")
        EPV = W3
        a(f"""
        v_mov_b32 v{t0}, {W_EPOCH}
        s_cmp_ge_u32 s{sW}, 8
        s_cbranch_scc1 L_role_l
        s_cmp_ge_u32 s{sW}, 5
        s_cbranch_scc1 L_role_u
        s_setprio 3
        v_lshlrev_b32 v{t6}, 3, v{TID}
        v_lshlrev_b32 v{t7}, 2, v{TID}
        s_mul_i32 s{sA}, s{sT}, {EC * 4}
        s_mul_i32 s{sB}, s{sT}, {EC * 2}
        buffer_load_dwordx2 v[24:25], v{t6}, {sr(sDST, 4)}, s{sA} offen
        buffer_load_dwordx2 v[26:27], v{t6}, {sr(sSRC, 4)}, s{sA} offen
        buffer_load_dword v28, v{t7}, {sr(sEA, 4)}, s{sB} offen
        buffer_load_dwordx2 {vr(EPV, 2)}, v{t0}, {sr(sWS, 4)}, 0 offen
        s_sub_u32 s{sA}, s{sW}, 1
        s_and_b32 s{sA}, s{sA}, 7
        s_mul_i32 s{sD}, s{sA}, {NT}
        s_add_u32 s{sD}, s{sD}, s{sT}
        s_lshl_b32 s{sA}, s{sA}, 10
        s_add_u32 m0, s{sA}, {SLOT[3]}
        s_and_b32 s{sA}, s{sD}, 7
        s_bfe_u32 s{sB}, s{sD}, 0x40003
        s_lshr_b32 s{sC}, s{sD}, 7
        s_lshl_b32 s{sUO}, s{sB}, 4
        s_lshl_b32 s{sUG}, s{sC}, 3
        s_add_u32 s{sUO}, s{sUO}, s{sUG}
        s_add_u32 s{sUO}, s{sUO}, s{sA}
        s_lshl_b32 s{sUG}, s{sUO}, 5
        s_add_u32 s{sUG}, s{sUG}, {W_UTAG}
        s_lshl_b32 s{sUO}, s{sUO}, 10
        s_add_u32 s{sUO}, s{sUO}, {W_UT}
        s_lshl_b32 s{sA}, s{sA}, 5
        s_lshl_b32 s{sB}, s{sB}, 5
        s_cmp_lt_u32 s{sD}, 256
        s_cselect_b32 s{sB}, s{sB}, {OOB}
        s_cselect_b32 s{sUO}, s{sUO}, {OOB}
        s_cselect_b32 s{sUG}, s{sUG}, {OOB}
        v_lshrrev_b32 v{t6}, 1, v{LANE}
        v_add_u32 v{t6}, s{sA}, v{t6}
        v_and_b32 v{t5}, 1, v{LANE}
        v_lshlrev_b32 v{t5}, 4, v{t5}
        s_cmp_eq_u32 s{sC}, 0
        s_cbranch_scc1 L_pc_u1
        v_and_b32 v{t7}, 3, v{t6}
        v_lshrrev_b32 v{t6}, 2, v{t6}
        v_lshl_add_u32 v{t6}, v{t7}, 6, v{t6}
        v_add_u32 v{t6}, 256, v{t6}
        L_pc_u1:
        v_lshl_add_u32 v{t6}, v{t6}, 9, v{t5}
        buffer_load_dwordx4 v{t6}, {sr(sWU, 4)}, s{sB} offen lds
        s_branch L_role_done
        L_role_u:
        buffer_load_dwordx2 {vr(EPV, 2)}, v{t0}, {sr(sWS, 4)}, 0 offen
        v_subrev_u32 v{t3}, 10, v{t3}
        s_mul_i32 s{sB}, s{sT}, {T * 512}
        s_lshl_b32 s{sA}, s{sW}, 10
        """)
        for i in range(7):
            if i == 6:
                a(f"""
                s_cmp_eq_u32 s{sW}, 7
                s_cselect_b32 s{sC}, 2, 0
                v_subrev_u32 v{t3}, s{sC}, v{t3}
                s_lshl_b32 s{sC}, s{sC}, 9
                s_sub_u32 s{sA}, s{sA}, s{sC}
                """)
            a(f"""
            v_and_b32 v{t6}, 15, v{t3}
            v_xor_b32 v{t6}, v{t6}, v{t4}
            v_lshlrev_b32 v{t6}, 4, v{t6}
            s_add_u32 m0, s{sA}, {XB - 5120 + 3072 * i}
            v_lshl_add_u32 v{t6}, v{t3}, 9, v{t6}
            v_add_u32 v{t3}, 6, v{t3}
            buffer_load_dwordx4 v{t6}, {sr(sX, 4)}, s{sB} offen lds
            """)
        a(f"""
        s_branch L_role_done
        L_role_l:
        buffer_load_dwordx2 {vr(EPV, 2)}, v{t0}, {sr(sWS, 4)}, 0 offen
        s_lshr_b32 s{sA}, s{sT}, 3
        s_lshl_b32 s{sA}, s{sA}, 13
        s_add_u32 s{sA}, s{sA}, s{sW1K}
        s_lshr_b32 s{sC}, s{sA}, 1
        v_lshlrev_b32 v{t7}, 3, v{LANE}
        buffer_load_dwordx2 {vr(AC2, 2)}, v{t7}, {sr(sWM, 4)}, s{sC} offen
        s_add_u32 s{sC}, s{sC}, 131072
        buffer_load_dwordx2 {vr(AC2 + 2, 2)}, v{t7}, {sr(sWM, 4)}, s{sC} offen
        s_cmp_eq_u32 s{sW}, 15
        s_cbranch_scc0 L_role_done
        s_mov_b32 m0, {W3L}
        v_lshlrev_b32 v{t7}, 4, v{LANE}
        s_mov_b32 s{sB}, {512 * 512}
        buffer_load_dwordx4 v{t7}, {sr(sWM, 4)}, s{sB} offen lds
        L_role_done:
        """)
        UA = W3 - 9 - 5
        srd(sOUT, 52, N * 512)
        a(f"""
        s_add_u32 s{sP}, s56, {W_P}
        s_addc_u32 s{sP + 1}, s57, 0
        s_or_b32 s{sP + 1}, s{sP + 1}, {512 << 16}
        s_mov_b32 s{sP + 2}, {N}
        s_mov_b32 s{sP + 3}, 0x20000
        s_mov_b32 s{sNL2E}, {NLOG2E}
        s_mov_b32 s{sNL2E + 1}, {NLOG2E}
        s_mov_b32 s{sNLN2}, {NLN2}
        s_mov_b32 s{sNLN2 + 1}, {NLN2}
        s_lshl_b32 s{sWK}, s{sW}, 10
        s_lshr_b32 s{sHI}, s{sW}, 3
        s_lshl_b32 s{sHI}, s{sHI}, 13
        s_mov_b32 s{sGEN}, 0
        v_and_b32 v{t0}, 15, v{LANE}
        v_lshrrev_b32 v{t1}, 4, v{LANE}
        v_bfe_u32 v{t2}, v{LANE}, 2, 2
        v_and_b32 v{t3}, 3, v{LANE}
        s_lshl_b32 s{sB}, s{sW}, 1
        v_and_b32 v{t4}, 1, v{t1}
        v_lshl_or_b32 v{t4}, v{t4}, 2, v{t2}
        v_lshlrev_b32 v{t4}, 1, v{t4}
        v_lshrrev_b32 v{t5}, 1, v{t3}
        v_add_u32 v{t5}, s{sB}, v{t5}
        v_xor_b32 v{t4}, v{t4}, v{t5}
        v_lshlrev_b32 v{t4}, 4, v{t4}
        v_and_b32 v{t5}, 1, v{t3}
        v_lshl_add_u32 v{t4}, v{t5}, 3, v{t4}
        v_lshl_add_u32 v{t5}, v{t1}, 3, v{t2}
        v_lshl_add_u32 v{TR0}, v{t5}, 9, v{t4}
        v_add_u32 v{TR1}, 65536, v{TR0}
        v_lshlrev_b32 v{t5}, 5, v{t5}
        v_lshl_add_u32 v{UA + 9}, v{t3}, 3, v{t5}
        v_lshlrev_b32 v{t5}, 9, v{t0}
        v_add_u32 v{t5}, {XB}, v{t5}
        """)
        for k in range(4):
            a(f"""
            v_add_u32 v{t4}, {4 * k}, v{t1}
            v_xor_b32 v{t4}, v{t4}, v{t0}
            v_lshl_add_u32 v{XA + k}, v{t4}, 4, v{t5}
            """)
        a(f"""
        v_lshrrev_b32 v{t4}, 1, v{t1}
        v_add_u32 v{t4}, s{sB}, v{t4}
        v_xor_b32 v{t4}, v{t4}, v{t0}
        v_lshlrev_b32 v{t4}, 4, v{t4}
        v_and_b32 v{t6}, 1, v{t1}
        v_lshl_add_u32 v{t4}, v{t6}, 3, v{t4}
        v_lshl_add_u32 v{t4}, v{t0}, 9, v{t4}
        v_add_u32 v{STG}, {PS}, v{t4}
        v_lshlrev_b32 v{STR}, 4, v{TID}
        v_add_u32 v{STR}, {PS}, v{STR}
        v_add_u32 v{GO2}, 16384, v{GO}
        s_cmp_lt_u32 s{sW}, 4
        s_cbranch_scc1 L_go2
        v_mov_b32 v{GO2}, {OOB}
        L_go2:
        s_cmp_lt_u32 s{sW}, 5
        s_cbranch_scc0 L_nobin
        """)
        self.binning()
        a(f"""
        s_cmp_eq_u32 s{sW}, 0
        s_cbranch_scc0 L_piece
        v_lshlrev_b32 v{t0}, 3, v{LANE}
        v_add_u32 v{t0}, {HIST}, v{t0}
        ds_read_b64 {vr(66, 2)}, v{t0}
        ds_read_b64 {vr(68, 2)}, v{t0} offset:{BASE - HIST}
        ds_read_b64 {vr(70, 2)}, v{t0} offset:512
        ds_read_b64 {vr(72, 2)}, v{t0} offset:{BASE - HIST + 512}
        v_lshlrev_b32 v{t1}, 4, v{LANE}
        s_lshl_b32 s{sB}, s{sT}, 11
        s_add_u32 s{sB}, s{sB}, {W_OFFS}
        s_waitcnt lgkmcnt(0)
        """)
        for i in range(4):
            h, b = 66 + 4 * (i >> 1) + (i & 1), 68 + 4 * (i >> 1) + (i & 1)
            a(f"""
            v_lshl_or_b32 v{ACC + 2 * i}, v{h}, 10, v{b}
            v_mov_b32 v{ACC + 2 * i + 1}, s{sTAG}
            v_or_b32 v{ACC + 2 * i}, s{sTLO}, v{ACC + 2 * i}
            """)
        a(f"""
        buffer_store_dwordx4 {vr(ACC, 4)}, v{t1}, {sr(sWS, 4)}, s{sB} offen sc1
        buffer_store_dwordx4 {vr(ACC + 4, 4)}, v{t1}, {sr(sWS, 4)}, s{sB} offen offset:1024 sc1
        s_setprio 0
        s_branch L_bin_done
        L_piece:
        s_setprio 0
        s_cmp_lt_u32 s{sW}, 3
        s_cbranch_scc0 L_bin_done
        s_lshl_b32 s{sA}, s{sW}, 10
        s_add_u32 s{sA}, s{sA}, {SLOT[3] - 1024}
        v_add_u32 v{UA + 9}, s{sA}, v{UA + 9}
        v_lshlrev_b32 v{W3 + 2}, 4, v{LANE}
        s_waitcnt vmcnt(1)
        ds_read_b64_tr_b16 {vr(AC2 + 4, 2)}, v{UA + 9}
        ds_read_b64_tr_b16 {vr(AC2 + 6, 2)}, v{UA + 9} offset:128
        s_waitcnt lgkmcnt(0)
        buffer_store_dwordx4 {vr(AC2 + 4, 4)}, v{W3 + 2}, {sr(sWS, 4)}, s{sUO} offen sc1
        s_branch L_bin_done
        L_nobin:
        s_cmp_ge_u32 s{sW}, 8
        s_cbranch_scc1 L_bin_ld
        v_mov_b32 v{W3 + 2}, {XCNT}
        v_mov_b32 v{W3 + 3}, 1
        s_mov_b64 exec, 1
        s_waitcnt vmcnt(4)
        ds_add_u32 v{W3 + 2}, v{W3 + 3}
        s_mov_b64 exec, -1
        s_branch L_bin_done
        L_bin_ld:
        """)
        self.dma_body(0, 0)
        a(f"""
        s_waitcnt vmcnt(6)
        L_bin_done:
        """)
        self.tag_calc()
        self.xpreload(UA + 9)
        self.stamp("xpre")

        R0 = 116
        XBUF = (80, 92)
        fbuf = [UF + 4 * i for i in range(6)] + [56, 60]
        OV, o0, o1, o2, o3, UV = 20, 22, 23, 16, 17, 116

        def frag(i):
            a(f"""
            s_add_u32 s{sB}, s{sUB}, {1024 * i}
            buffer_load_dwordx4 {vr(fbuf[i], 4)}, v{FO}, {sr(sWS, 4)}, s{sB} offen sc1
            """)
            self.vm("LN", f"f{i}")

        def x3(i):
            for rb in range(3):
                a(f"ds_read_b128 {vr(XBUF[i & 1] + 4 * rb, 4)}, v{XA + (i & 3)} offset:{rb * 8192 + (i >> 2) * 256}")
                self.lq.append(f"x{i}")

        def consume(i):
            self.vmwait({f"f{i}"})
            if f"x{i}" in self.lq:
                self.lwait(f"x{i}")
            for rb in range(3):
                cin = "0" if i == 0 else vr(ACC + 4 * rb, 4)
                a(f"v_mfma_f32_16x16x32_bf16 {vr(ACC + 4 * rb, 4)}, {vr(fbuf[i], 4)}, {vr(XBUF[i & 1] + 4 * rb, 4)}, {cin}")
            if i + 2 < 8:
                x3(i + 2)

        def utag_issue(dst, adr):
            a(f"""
            v_lshlrev_b32 v{adr}, 5, v{LANE}
            s_lshl_b32 s{sC}, s{sW}, 9
            s_add_u32 s{sC}, s{sC}, {W_UTAG}
            s_mov_b64 exec, 0xffff
            buffer_load_dwordx2 {vr(dst, 2)}, v{adr}, {sr(sWS, 4)}, s{sC} offen sc1
            s_mov_b64 exec, -1
            """)

        def utag_check(dst):
            a(f"""
            v_cmp_ne_u64 vcc, {sr(sTAG, 2)}, {vr(dst, 2)}
            s_nop 1
            s_and_b32 s{sU}, vcc_lo, 0xffff
            """)

        def offs_issue():
            a(f"""
            s_and_b32 s{sC}, s{sT}, 7
            s_lshl_b32 s{sC}, s{sC}, 8
            s_and_b32 s{sB}, s{sT}, 0xf8
            s_add_u32 s{sC}, s{sC}, s{sB}
            s_add_u32 s{sC}, s{sC}, {W_OFFS}
            buffer_load_dwordx2 {vr(OV, 2)}, v{o0}, {sr(sWS, 4)}, s{sC} offen sc1
            """)

        def offs_check():
            a(f"""
            v_xor_b32 v{o1}, s{sTLO}, v{OV}
            v_cmp_ne_u32 vcc, s{sTAG}, v{OV + 1}
            s_mov_b32 s{sB}, 0x100000
            v_cmp_le_u32 s[40:41], s{sB}, v{o1}
            s_nop 1
            s_or_b64 vcc, vcc, s[40:41]
            s_and_b64 vcc, vcc, {sr(sVAL, 2)}
            """)

        def parse():
            a(f"""
            v_cndmask_b32 v{OV}, 0, v{o1}, {sr(sVAL, 2)}
            v_and_b32 v{o1}, 3, v{TID}
            v_mul_u32_u24 v{o0}, {EC * 8}, v{RBA}
            v_and_b32 v{o2}, 0x3ff, v{OV}
            v_bfe_u32 v{o3}, v{OV}, 10, 10
            v_add_u32 v{o2}, v{o2}, v{o1}
            v_lshl_add_u32 v{o0}, v{o2}, 3, v{o0}
            v_add_u32 v{RBA}, {W_RECS}, v{o0}
            v_sub_u32 v{CQ}, v{o3}, v{o1}
            v_cmp_lt_u32 vcc, {4 * NPASS}, v{o3}
            """)
            lab = a.newlabel("nomax")
            a(f"""
            s_cbranch_vccz {lab}
            v_mov_b32 v{o2}, {MISC}
            s_mov_b64 exec, vcc
            ds_max_u32 v{o2}, v{o3}
            s_mov_b64 exec, -1
            s_waitcnt lgkmcnt(0)
            {lab}:
            """)
            self.rec_issue(SCRP)

        slot = [0, 1, 2, 3, 0, 1, 0, 3]
        nearly = self.opt("early", 2)
        edel = self.opt("edel", 0)
        issue_at = {0: 3}
        for c in range(4, 4 + nearly):
            issue_at[c - 3 + edel] = c

        def gstep(k, lgkm=False, post=None):
            self.vmwait({f"c{k}"})
            self.barrier(f"B{k}", lgkm=lgkm)
            if post:
                post()
            self.trreads(slot[k])
            c = issue_at.get(k)
            self.mfmas(AC2, k & 3, (lambda sp: self.dma_all(c, slot[c], sp)) if c else None)
            if k not in (3, 7):
                self.xreads((k + 1) & 3)

        def look():
            a(f"""
            v_mov_b32 v{o1}, {OOB}
            v_lshrrev_b32 v{RBA}, 2, v{TID}
            v_lshlrev_b32 v{o0}, 11, v{RBA}
            s_movk_i32 s{sA}, {NT}
            v_cmp_gt_u32 {sr(sVAL, 2)}, s{sA}, v{RBA}
            s_mov_b32 s{sP0}, 0
            s_mov_b32 s{sNP}, {NPASS}
            s_mov_b32 s{sMODE}, 0
            v_cndmask_b32 v{o0}, v{o1}, v{o0}, {sr(sVAL, 2)}
            """)
            offs_issue()
            if "utearly" in self.opts:
                utag_issue(UV, UV + 2)
                self.vm("LN", "offs")
            self.vm("LN", "offs")

        def piece_tag():
            a(f"s_sub_u32 s{sA}, s{sW}, 1\ns_cmp_lt_u32 s{sA}, 2\ns_cbranch_scc0 L_notag\ns_waitcnt vmcnt(4)")
            self.tag_store(sUG, 116)
            a.label("L_notag")

        kis = self.opt("kis", 3)
        recpos = self.opt("recpos", 2)

        def try_records():
            self.vmwait({"offs"})
            if "utearly" in self.opts:
                utag_check(UV)
            offs_check()
            a(f"s_mov_b32 s{sE}, 0\ns_cbranch_scc1 L_late")
            parse()
            a(f"s_mov_b32 s{sE}, 1\ns_branch L_intime\nL_late:")
            offs_issue()
            offs_issue()
            a.label("L_intime")
            self.vm("LN", "rec", 2)

        for k in range(4):
            gstep(k, post=piece_tag if k == self.opt('kpt', 0) else None)
            if k == kis:
                look()
            if k == 2 and recpos == -1:
                try_records()
        for rb in range(3):
            for h in range(2):
                a(f"v_pk_mul_f32 {vr(AC2 + 4 * rb + 2 * h, 2)}, {vr(AC2 + 4 * rb + 2 * h, 2)}, {sr(sNL2E, 2)} op_sel_hi:[1,0]")
            a(f"v_cvt_pk_bf16_f32 v{AC2 + 4 * rb}, v{AC2 + 4 * rb}, v{AC2 + 4 * rb + 1}")
            a(f"v_cvt_pk_bf16_f32 v{AC2 + 4 * rb + 1}, v{AC2 + 4 * rb + 2}, v{AC2 + 4 * rb + 3}")
            a(f"ds_write_b64 v{STG}, {vr(AC2 + 4 * rb, 2)} offset:{rb * 8192}")
        if recpos == 0:
            try_records()
        a("s_setprio 3")
        self.barrier("PS")
        a(f"""
        ds_read_b128 {vr(AC2, 4)}, v{STR}
        ds_read_b128 {vr(AC2 + 4, 4)}, v{STR} offset:16384
        """)
        self.xreads(0)
        a(f"""
        s_mov_b32 s{sB}, {W_P}
        s_waitcnt lgkmcnt(3)
        buffer_store_dwordx4 {vr(AC2, 4)}, v{GO}, {sr(sWS, 4)}, s{sB} offen sc1
        s_waitcnt lgkmcnt(2)
        buffer_store_dwordx4 {vr(AC2 + 4, 4)}, v{GO2}, {sr(sWS, 4)}, s{sB} offen sc1
        s_setprio 0
        """)
        self.vm("LN", "p", 2)
        self.stamp("pst")
        if recpos == 2:
            try_records()
        self.stampval("E", sE)

        def fb():
            tmp = ACC + 8 if kfb == 6 else ACC
            if "repl" not in self.opts:
                a(f"s_lshl_b32 s{sB}, s{sT}, 5\ns_add_u32 s{sB}, s{sB}, {W_FB}")
                self.tag_store(sB, tmp)
                return
            a(f"""
            s_lshl_b32 s{sB}, s{sT}, 4
            s_add_u32 s{sB}, s{sB}, {W_FR}
            v_mov_b32 v{tmp}, s{sTAG}
            v_mov_b32 v{tmp + 1}, s{sTAG + 1}
            v_lshlrev_b32 v{tmp + 2}, 12, v{LANE}
            s_mov_b64 exec, 0xff
            buffer_store_dwordx2 {vr(tmp, 2)}, v{tmp + 2}, {sr(sWS, 4)}, s{sB} offen sc1
            s_mov_b64 exec, -1
            """)

        todo = [(c, m) for c in range(4 + nearly, 8) for m in range(2)]
        kfb = self.opt("kfb", 5)

        def issue(n):
            nonlocal todo
            for c, m in todo[:n]:
                self.dma_all(c, slot[c], m)
            todo = todo[n:]

        if nearly < 2:
            issue(self.opt("npre", 2))
        for k in (4, 5):
            if k == kfb:
                self.vmwait({"p"})
                self.stamp("ack")
            while todo and todo[0][0] <= k:
                issue(1)
            gstep(k, post=(lambda: self.wave0(fb)) if k == kfb else None)
            if k == 4 and "utearly" not in self.opts:
                utag_issue(24, 26)
                self.vm("LN", "utag")
            if k >= kfb and k == 4 and nearly < 2:
                issue(2)
        a(f"""
        s_lshl_b32 s{sUB}, s{sW}, 14
        s_add_u32 s{sUB}, s{sUB}, {W_UT}
        """)
        self.vmwait({"rec"})
        a(f"""
        s_cmp_eq_u32 s{sE}, 1
        s_cbranch_scc1 L_recs_ok
        s_mov_b32 s{sD}, 0
        L_offs_chk:
        """)
        offs_check()
        a(f"""
        s_cbranch_scc0 L_offs_ok
        s_add_u32 s{sD}, s{sD}, 1
        s_cmp_gt_u32 s{sD}, {POLL_LIMIT}
        s_cbranch_scc1 L_offs_ok
        """)
        offs_issue()
        a("s_waitcnt vmcnt(0)\ns_branch L_offs_chk\nL_offs_ok:")
        parse()
        a("s_waitcnt vmcnt(0)\nL_recs_ok:")
        self.stamp("rec")
        self.clean(SCRX)
        self.count(SCRX)
        issue(8)
        if kfb == 6:
            self.vmwait({"p"})
            self.stamp("ack")
        self.barrier("C1")
        if kfb == 6:
            self.wave0(fb)
        if "utearly" not in self.opts:
            self.vmwait({"utag"})
            utag_check(24)
        a(f"""
        v_lshlrev_b32 v{FO}, 4, v{LANE}
        s_cmp_eq_u32 s{sU}, 0
        s_cbranch_scc1 L_tags_ok
        s_mov_b32 s{sD}, 0
        L_tags:
        """)
        utag_issue(24, 26)
        a(f"s_add_u32 s{sD}, s{sD}, 1\ns_cmp_gt_u32 s{sD}, {POLL_LIMIT}\ns_waitcnt vmcnt(0)\ns_cbranch_scc1 L_tags_ok")
        utag_check(24)
        a("s_cbranch_scc1 L_tags\nL_tags_ok:")
        frag(0)
        frag(1)
        self.lists(SCRX, "L_gen1")
        a.label("L_gen1_back")
        self.side_fill(ACC + 10, ACC + 3)
        pp = self.opt("pp", 1)
        frag(2)
        frag(3)
        if pp == 0:
            self.wave0(self.poll_issue)
        gstep(6, lgkm=True)
        if pp == 1:
            self.wave0(self.poll_issue)
        a(f"s_mov_b32 s{sB}, {W3L}\nv_lshl_add_u32 v{ACC + 3}, v{LANE}, 1, s{sB}")
        for r in range(4):
            a(f"ds_read_u16_d16_hi v{W3 + r}, v{ACC + 3} offset:{128 * r}")
        frag(4)
        frag(5)
        self.setup(69)
        if pp == 2:
            self.wave0(self.poll_issue)
        frag(6)
        frag(7)
        a(f"""
        v_and_b32 v75, 15, v{LANE}
        v_cmp_gt_u32 {sr(sEX, 2)}, 8, v75
        v_mul_u32_u24 v74, {QS}, v75
        v_and_b32 v75, 48, v{LANE}
        s_lshl_b32 s{sB}, s{sW}, 6
        v_add3_u32 v74, v74, v75, s{sB}
        """)
        self.slot_consts()
        self.stamp("pre")

        def pw():
            self.poll_wait()
            a(f"s_cmp_eq_u32 s{sT}, 0\ns_cbranch_scc0 L_noep\ns_mov_b32 s{sB}, {W_EPOCH}")
            self.tag_store(sB, POLLB)
            a.label("L_noep")
        self.wave0(pw)
        self.vmwait({"c7"})
        self.barrier("C2")

        def g(k):
            a(f"v_mov_b32 v{IA}, v{IX0 + k}")
            self.gather(k)
            self.vm("LN", "g")

        self.trreads(slot[7])
        self.mfmas(AC2, 3, g if self.opt("gp", 1) == 1 else None)
        if self.opt("gp", 1) == 2:
            g(0)
            g(1)
        x3(0)
        x3(1)
        for rb in range(3):
            for h in range(2):
                a(f"v_pk_mul_f32 {vr(AC2 + 4 * rb + 2 * h, 2)}, {vr(AC2 + 4 * rb + 2 * h, 2)}, {sr(sNL2E, 2)} op_sel_hi:[1,0]")
            if rb == 2:
                a(f"s_mov_b64 exec, {sr(sEX, 2)}")
            a(f"ds_write_b128 v74, {vr(AC2 + 4 * rb, 4)} offset:{QB + rb * 16 * QS}")
            self.lq.append("q")
        a("s_mov_b64 exec, -1")
        self.stamp("q")
        g2, g3 = self.opt("g2", 2), self.opt("g3", 5)
        for i in range(8):
            consume(i)
            if i == 0:
                a("s_barrier")
            if i == g2:
                g(2)
            if i == g3:
                g(3)
        a(f"v_mov_b32 v{IA}, v{IX0 + 4}")
        for r in range(4):
            a(f"v_mul_f32 v{W3 + r}, s{sNL2E}, v{W3 + r}")
        for h in range(6):
            a(f"v_pk_mul_f32 {vr(ACC + 2 * h, 2)}, {vr(ACC + 2 * h, 2)}, {sr(sNL2E, 2)} op_sel_hi:[1,0]")
        self.lane_consts()
        self.barrier("R")
        a(f"""
        s_cmp_eq_u32 s{sGEN}, 0
        s_cbranch_scc0 L_generic
        s_and_b32 s{sZ + 1}, s{sZ + 1}, 0xff
        s_or_b32 s{sA}, s{sZ}, s{sZ + 1}
        s_or_b32 s{sA}, s{sA}, s{sMODE}
        s_cbranch_scc1 L_clear
        L_r_done:
        s_cmp_gt_i32 s{sNE}, 0
        s_cbranch_scc0 L_empty
        """)
        if "noprio" not in self.opts:
            a("s_setprio 3")
        a(f"""
        ds_read_b64 {vr(EE[0], 2)}, v{EA}
        v_add_u32 v{QA}, s{sQ0}, v{L4}
        ds_read2st64_b32 {vr(Q, 2)}, v{QA} offset0:0 offset1:1
        ds_read2st64_b32 {vr(Q + 2, 2)}, v{QA} offset0:2 offset1:3
        v_xor_b32 v{AG}, s{sAG0}, v{L8}
        v_add_u32 v{CNA}, {CNTN}, v{L4}
        v_mov_b32 v{TZ}, 0
        ds_write_b32 v{CNA}, v{TZ}
        v_mov_b64 {vr(NN, 2)}, 0
        v_mov_b64 {vr(NN + 2, 2)}, 0
        v_mov_b32 v{DD}, 1.0
        v_mov_b32 v{DD + 1}, 1.0
        v_mov_b32 v{DD + 2}, 1.0
        v_mov_b32 v{DD + 3}, 1.0
        v_mov_b64 {vr(CK2, 2)}, 0
        v_mov_b32 v{CK1}, 0
        s_mov_b32 s{sI}, 0
        s_or_b32 s{sTM}, s{sMASK}, {0xff if "u2early" in self.opts else 0}
        s_mov_b32 s{sW11}, {0 if "u2early" in self.opts else -1}
        """)
        self.stamp("setup")
        a("s_waitcnt vmcnt(3)")
        self.stamp("row0")
        self.p_reads(0, 0)
        a("s_waitcnt lgkmcnt(0)")
        self.gather(0)
        if "u2early" in self.opts:
            self.u2_loads()
        a(f"""
        s_cmp_eq_u32 s{sMODE}, 0
        s_cbranch_scc0 L_enter_x
        """)
        self.main_loop(False, "L_main_done")
        a.reset_hist()
        a.label("L_main_done")
        a("s_setprio 0")
        self.stamp("loop")
        a(f"""
        v_add_f32 v{CK2}, v{CK2}, v{CK2 + 1}
        v_mov_b32 v{TM}, {BIG}
        v_cmp_u_f32 vcc, v{CK2}, v{CK2}
        v_cmp_nle_f32 s[40:41], v{CK1}, v{TM}
        s_nop 1
        s_or_b64 vcc, vcc, s[40:41]
        s_cbranch_scc0 L_after
        v_mov_b32 v{TM}, {MISC + 4}
        v_mov_b32 v{TM + 1}, 1
        ds_write_b32 v{TM}, v{TM + 1}
        L_after:
        v_xor_b32 v{STG2}, 0x80, v{STG}
        v_and_b32 v{TM}, 8, v{LANE}
        v_subrev_u32 v{STG2}, 4092, v{STG2}
        v_cmp_eq_u32 vcc, 0, v{TM}
        v_cndmask_b32 v{STG2}, v{STG2}, v{STG}, vcc
        s_waitcnt vmcnt(0)
        """)
        self.barrier("M")
        a(f"""
        v_mov_b32 v{TM}, {MISC + 4}
        ds_read_b32 v{TM + 1}, v{TM}
        """)
        if "oldfin" in self.opts:
            order = [(s_, rb) for s_ in range(8) for rb in range(3)]
        else:
            order = [(s_, rb) for rb in range(3) for s_ in range(8)]
        NB = 12

        def rd(n):
            s_, rb = order[n]
            a(f"ds_read_b128 {vr(XF + 4 * (n % NB), 4)}, v{XA + (s_ & 3)} offset:{rb * 8192 + (s_ >> 2) * 256}")

        for n in range(NB):
            rd(n)
        a(f"""
        s_cmp_eq_u32 s{sMODE}, 0
        s_cbranch_scc0 L_slow_next
        s_waitcnt lgkmcnt(12)
        v_readfirstlane_b32 s{sA}, v{TM + 1}
        s_nop 1
        s_cmp_eq_u32 s{sA}, 0
        s_cbranch_scc0 L_redo
        L_final:
        """)
        TE = 104

        def act(rb):
            ops = []
            for r in range(4):
                ops.append(f"v_exp_f32 v{TE + 4 * rb + r}, v{ACC + 4 * rb + r}")
            for r in range(4):
                ops.append(f"v_add_f32 v{TE + 4 * rb + r}, 1.0, v{TE + 4 * rb + r}")
            for r in range(4):
                ops.append(f"v_rcp_f32 v{TE + 4 * rb + r}, v{TE + 4 * rb + r}")
            for r in range(4):
                ops.append(f"v_mul_f32 v{ACC + 4 * rb + r}, s{sNLN2}, v{ACC + 4 * rb + r}")
            for r in range(4):
                ops.append(f"v_mul_f32 v{ACC + 4 * rb + r}, v{ACC + 4 * rb + r}, v{TE + 4 * rb + r}")
            ops.append(f"v_cvt_pk_bf16_f32 v{TE + 4 * rb}, v{ACC + 4 * rb}, v{ACC + 4 * rb + 1}")
            ops.append(f"v_cvt_pk_bf16_f32 v{TE + 4 * rb + 1}, v{ACC + 4 * rb + 2}, v{ACC + 4 * rb + 3}")
            ops.append(f"ds_write_b64 v{STG}, {vr(TE + 4 * rb, 2)} offset:{rb * 8192}")
            return ops

        pend = []
        lq = [f"r{n}" for n in range(NB)]
        for n in range(24):
            s_, rb = order[n]
            last = lq.index(f"r{n}")
            a(f"s_waitcnt lgkmcnt({len(lq) - 1 - last})")
            lq = lq[last + 1:]
            a(f"v_mfma_f32_16x16x32_bf16 {vr(ACC + 4 * rb, 4)}, {vr(UF + 4 * s_, 4)}, {vr(XF + 4 * (n % NB), 4)}, {vr(ACC + 4 * rb, 4)}")
            if n + NB < 24:
                rd(n + NB)
                lq.append(f"r{n + NB}")
            if "oldfin" not in self.opts:
                if n in (9, 17):
                    pend += act(n // 8 - 1)
                for op in pend[:4]:
                    a(op)
                    if op.startswith("ds_"):
                        lq.append("w")
                pend = pend[4:]
        for op in pend:
            a(op)
        if "oldfin" in self.opts or "nofold" in self.opts:
            for rb in ([2] if "oldfin" not in self.opts else [0, 1, 2]):
                for op in act(rb):
                    a(op)
        else:
            A2 = ACC + 8
            if "nosplit" not in self.opts:
                a(f"s_waitcnt lgkmcnt(0)\ns_barrier\nds_read_b128 {vr(PQ + 8, 4)}, v{STR}")
            a(f"""
            v_mov_b32_dpp v{A2}, v{A2 + 2} row_shr:8 row_mask:0xf bank_mask:0xc
            v_mov_b32_dpp v{A2 + 1}, v{A2 + 3} row_shr:8 row_mask:0xf bank_mask:0xc
            v_exp_f32 v{TE + 8}, v{A2}
            v_exp_f32 v{TE + 9}, v{A2 + 1}
            v_pk_mul_f32 {vr(A2, 2)}, {vr(A2, 2)}, {sr(sNLN2, 2)} op_sel_hi:[1,0]
            v_pk_add_f32 {vr(TE + 8, 2)}, {vr(TE + 8, 2)}, 1.0 op_sel_hi:[1,0]
            v_rcp_f32 v{TE + 8}, v{TE + 8}
            v_rcp_f32 v{TE + 9}, v{TE + 9}
            v_pk_mul_f32 {vr(A2, 2)}, {vr(A2, 2)}, {vr(TE + 8, 2)}
            v_cvt_pk_bf16_f32 v{TE + 8}, v{A2}, v{A2 + 1}
            ds_write_b32 v{STG2}, v{TE + 8} offset:16384
            """)
            if "nosplit" not in self.opts:
                a(f"s_waitcnt lgkmcnt(1)\nbuffer_store_dwordx4 {vr(PQ + 8, 4)}, v{GO}, {sr(sOUT, 4)}, 0 offen sc1")
        self.barrier("F")
        a(f"""
        """)
        if "nosplit" in self.opts:
            a(f"""
            ds_read_b128 {vr(PQ + 8, 4)}, v{STR}
            ds_read_b128 {vr(PQ + 12, 4)}, v{STR} offset:16384
            s_waitcnt lgkmcnt(1)
            buffer_store_dwordx4 {vr(PQ + 8, 4)}, v{GO}, {sr(sOUT, 4)}, 0 offen sc1
            """)
        else:
            a(f"""
            s_cmp_lt_u32 s{sW}, 4
            s_cbranch_scc0 L_stored
            ds_read_b128 {vr(PQ + 12, 4)}, v{STR} offset:16384
            """)
        a(f"""
        s_waitcnt lgkmcnt(0)
        buffer_store_dwordx4 {vr(PQ + 12, 4)}, v{GO2}, {sr(sOUT, 4)}, 0 offen sc1
        L_stored:
        """)
        if self.opt("pad", 0):
            a(f"""
            L_pad:
            s_memrealtime s[98:99]
            s_waitcnt lgkmcnt(0)
            s_sub_u32 s98, s98, s96
            s_cmp_lt_u32 s98, {self.opt("pad", 0)}
            s_cbranch_scc1 L_pad
            """)
        if self.stamps:
            a.label("L_diag_end")
            a("s_waitcnt vmcnt(0)")
            self.stamp("end")
            a(f"""
            s_lshl_b32 s{sA}, s{sT}, 4
            s_add_u32 s{sA}, s{sA}, s{sW}
            s_lshl_b32 s{sA}, s{sA}, 8
            s_add_u32 s{sA}, s{sA}, {W_STAMP}
            v_lshlrev_b32 v{TM}, 2, v{LANE}
            buffer_store_dword v{STAMPV}, v{TM}, {sr(sWS, 4)}, s{sA} offen
            """)
        a.label("L_end")
        a("s_endpgm")
        a.reset_hist()
        a(f"""
        L_gen1:
        s_mov_b32 s{sGEN}, 1
        s_mov_b32 s{sI}, 0
        s_mov_b32 s{sNE}, 0
        s_branch L_gen1_back
        L_clear:
        v_mov_b64 {vr(XF, 2)}, 0
        v_mov_b64 {vr(XF + 2, 2)}, 0
        v_add_u32 v{XF + 4}, {AB - PS}, v{STR}
        """)
        self.zero_agg(XF + 4, XF)
        a(f"""
        s_cmp_eq_u32 s{sMODE}, 2
        s_cbranch_scc0 L_clear2
        v_add_u32 v{XF + 4}, {(AF2 - AB) & 0xffffffff}, v{XF + 4}
        """)
        self.zero_agg(XF + 4, XF)
        a(f"""
        L_clear2:
        s_waitcnt lgkmcnt(0)
        s_barrier
        s_branch L_r_done
        L_generic:
        s_waitcnt vmcnt(0) lgkmcnt(0)
        s_barrier
        s_mov_b32 s{sMODE}, 2
        v_mov_b64 {vr(XF, 2)}, 0
        v_mov_b64 {vr(XF + 2, 2)}, 0
        v_add_u32 v{XF + 4}, {AB - PS}, v{STR}
        """)
        self.zero_agg(XF + 4, XF)
        a(f"""
        s_cmp_eq_u32 s{sMODE}, 2
        s_cbranch_scc0 L_gen2
        v_add_u32 v{XF + 4}, {(AF2 - AB) & 0xffffffff}, v{XF + 4}
        """)
        self.zero_agg(XF + 4, XF)
        a(f"""
        L_gen2:
        v_add_u32 v{CNA}, {CNTN}, v{L4}
        v_mov_b32 v{TZ}, 0
        ds_write_b32 v{CNA}, v{TZ}
        s_waitcnt lgkmcnt(0)
        s_barrier
        L_round:
        """)
        self.slot_consts()
        self.lane_consts()
        self.rec_issue(SCR2)
        a("s_waitcnt vmcnt(0)")
        self.clean(SCR2)
        self.count(SCR2)
        a("s_waitcnt lgkmcnt(0)\ns_barrier")
        self.lists(SCR2, "L_narrow", first=False)
        a("s_waitcnt lgkmcnt(0)\ns_barrier")
        self.setup(SCR2.tmp)
        a(f"""
        s_waitcnt lgkmcnt(0)
        """)
        for k in range(4):
            a(f"v_mov_b32 v{IA}, v{IX0 + k}")
            self.gather(k)
        a(f"""
        v_mov_b32 v{IA}, v{IX0 + 4}
        s_branch L_r_done
        L_narrow:
        s_waitcnt lgkmcnt(0)
        s_barrier
        v_add_u32 v{CNA}, {CNTN}, v{L4}
        v_mov_b32 v{TZ}, 0
        ds_write_b32 v{CNA}, v{TZ}
        s_mov_b32 s{sNP}, 1
        s_waitcnt lgkmcnt(0)
        s_barrier
        s_branch L_round
        L_empty:
        v_add_u32 v{CNA}, {CNTN}, v{L4}
        v_mov_b32 v{TZ}, 0
        ds_write_b32 v{CNA}, v{TZ}
        """)
        self.u2_loads()
        a(f"""
        s_branch L_after
        L_slow_next:
        s_cmp_eq_u32 s{sMODE}, 1
        s_cbranch_scc1 L_final
        s_waitcnt lgkmcnt(0)
        s_add_u32 s{sP0}, s{sP0}, s{sNP}
        s_mov_b32 s{sNP}, {NPASS}
        s_max_u32 s{sA}, s{sMAXC}, {4 * NPASS}
        s_lshl_b32 s{sB}, s{sP0}, 2
        s_cmp_lt_u32 s{sB}, s{sA}
        s_cbranch_scc1 L_round
        L_convert:
        """)
        self.lane_consts()
        for i in range(3):
            a(f"s_add_u32 s{sC}, s{sW}, {16 * i}\ns_min_u32 s{sC}, s{sC}, 39\ns_lshl_b32 s{sC}, s{sC}, 9")
            self.f32_row(sC, sD)
            a(f"""
            v_add_u32 v{TM}, s{sD}, v{L4}
            ds_read2st64_b32 {vr(56 + 4 * i, 2)}, v{TM} offset0:0 offset1:1
            ds_read2st64_b32 {vr(58 + 4 * i, 2)}, v{TM} offset0:2 offset1:3
            s_bfe_u32 s{sD}, s{sC}, 0x40009
            s_lshl_b32 s{sD}, s{sD}, 4
            s_or_b32 s{sD}, s{sD}, s{sC}
            v_xor_b32 v{68 + i}, s{sD}, v{L8}
            """)
        a("s_waitcnt lgkmcnt(0)\ns_barrier")
        for i in range(3):
            a(f"""
            v_cvt_pk_bf16_f32 v{56 + 4 * i}, v{56 + 4 * i}, v{57 + 4 * i}
            v_cvt_pk_bf16_f32 v{57 + 4 * i}, v{58 + 4 * i}, v{59 + 4 * i}
            ds_write_b64 v{68 + i}, {vr(56 + 4 * i, 2)}
            """)
        a("s_waitcnt lgkmcnt(0)\ns_barrier")
        for n in range(NB):
            rd(n)
        a(f"""
        s_branch L_final
        L_redo:
        s_waitcnt lgkmcnt(0)
        s_barrier
        s_mov_b32 s{sMODE}, 1
        """)
        self.side_fill(XF, XF + 2)
        a(f"""
        s_branch L_round
        L_enter_x:
        s_cmp_eq_u32 s{sMODE}, 2
        s_cbranch_scc0 L_loop_x
        """)
        self.f32_row(sAG0, sD)
        a(f"v_add_u32 v{AG}, s{sD}, v{L4}")
        self.main_loop(True, "L_after")
        a.label("L_code_end")

    def text(self):
        hdr = f"""; Fused MPNN edge-MLP kernel: P = x W1 published per tile, edges binned by destination tile,
; @launch grid=({NT},1,1) block=(1024,1,1) lds={LDS_TOTAL}
.amdgcn_target "amdgcn-amd-amdhsa--gfx950"
.text
.globl {NAME}_kernel
.p2align 8
.type {NAME}_kernel,@function
{NAME}_kernel:
"""
        ftr = f""".section .rodata,"a"
.p2align 6
.amdhsa_kernel {NAME}_kernel
  .amdhsa_next_free_vgpr 128
  .amdhsa_next_free_sgpr 102
  .amdhsa_accum_offset 128
  .amdhsa_group_segment_fixed_size 0
  .amdhsa_kernarg_size 72
  .amdhsa_user_sgpr_count 2
  .amdhsa_user_sgpr_kernarg_segment_ptr 1
  .amdhsa_system_sgpr_workgroup_id_x 1
.end_amdhsa_kernel
"""
        return hdr + self.a.text() + ftr


if __name__ == "__main__":
    out = [x for x in sys.argv[1:] if not x.startswith("--")]
    g = Gen(opts=[x[2:] for x in sys.argv[1:] if x.startswith("--")])
    g.build()
    txt = g.text()
    if g.stamps:
        txt = "; stamps: " + ",".join(g.names) + "\n" + txt
    open(out[0] if out else "cdna_kernels/%s.s" % NAME, "w").write(txt)
    print("nops inserted:", g.a.nops, "lines:", len(g.a.lines), "stamps:", g.nstamp)
```

```python
import sys
import struct
from asmlib import Asm

NAME = "gather_scatter__mpnn_edge_mlp__graph"
N, E, D = 10000, 160000, 256
T, NT, EC = 40, 250, 640

SLOT = (0, 32768, 65536, 98304)
XB = 131072
SIDE = 41984
AF2 = 41984
PILA, PILB = 158880, 162112 - 9 * 192
HIST, BASE, SORT, USC = 151552, 152576, 153600, 158720
CNTN, MISC = 160768, 161024
IL, EL, DL = 151552, 153664, 157824
QB, QS = 0, 1040
AB = XB
RING = 65536
ROFF = (0, 1024, 32768, 33792)
PS = 65536
LDS_TOTAL = 163840

W_EPOCH, W_FA, W_FB = 0, 0x1000, 0x3000
W_OFFS, W_RECS, W_UT, W_P = 0x10000, 0x90000, 0x700000, 0x200000
W_UTAG = 0x1000
W_FR = 0x8000
W_STAMP = 0x800000
WS_SIZE = 0xA00000
OOB = 0x80000000
POLL_LIMIT = 200000


def f2u(x):
    return struct.unpack("<I", struct.pack("<f", x))[0]


NLOG2E = f2u(-1.4426950408889634)
NLN2 = f2u(-0.6931471805599453)
BIG = f2u(2.0 ** 120)


def vr(a, n=1):
    return "v%d" % a if n == 1 else "v[%d:%d]" % (a, a + n - 1)


def sr(a, n=1):
    return "s%d" % a if n == 1 else "s[%d:%d]" % (a, a + n - 1)


TID, LANE = 0, 1
XA = 2
STG, GO, GO2, STR = 6, 7, 8, 9
RBA, CQ = 10, 11
ACC = 12
UF = 24
XR = 24
XF2, WF = 88, 96
AC2 = 104
XF = 56
WOFF, TR0, TR1 = 120, 121, 122
STAMPV = 123
W3 = 124
NPASS = 4
POLLB = 16
FO = 120
W3L = MISC + 64
XCNT, S1C, S2C, ACKC, BACK = MISC + 8, MISC + 12, MISC + 16, MISC + 20, MISC + 24


class Scratch:
    def __init__(self, rec, adr, rank, tmp):
        self.rec, self.adr, self.rank, self.tmp = rec, adr, rank, tmp


REC1 = [116, 118, 124, 126]
SCRP = Scratch(REC1, 12, None, 18)
SCRX = Scratch(REC1, ACC, ACC + 4, ACC + 8)
SCR2 = Scratch([24, 26, 28, 30], 40, 44, 48)
CNA = 109
PA = (56, 64)
EE = (72, 74)
IA, Q, QE, Y, TT, NN, DD = 76, 78, 86, 90, 94, 98, 102
CK2, CK1 = 106, 108
RG, IXA, EA, QA, AG, L4, L8, INFO, TM, IOF = 82, 116, 117, 112, 113, 83, 84, 118, 120, 85
TZ = 115
STG2 = 119
IX0 = 64

sT, sW = 2, 3
sX, sWM, sWU, sWS, sP, sOUT, sSRC, sDST, sEA = 4, 8, 12, 16, 20, 24, 28, 32, 36
sNL2E, sNLN2, sWK, sW1K = 58, 60, 62, 63
sMASK, sI, sNE, sREM, sTRIP, sSLOT = 64, 66, 67, 68, 69, 70
sM, sP0, sNP, sMAXC, sFIRST, sMODE = 74, 75, 76, 77, 78, 79
sVAL = 80
sA, sB, sC, sD = 88, 89, 90, 91
sEX = 42
sCO = 48
sHI, sTAG, sTLO, sGEN = 49, 52, 56, 57
sQ0, sAG0 = 44, 45
sUO, sUG, sUB, sE = 64, 65, 38, 39
sZ, sU, sRA, sRB = 6, 30, 29, 31
sTM, sHB, sW11 = 28, 69, 39
sHB2 = sHB


class Gen:
    def __init__(self, opts=()):
        self.opts = set(opts)
        self.a = Asm()
        self.stamps = "stamps" in self.opts
        self.nstamp = 0
        self.names = []
        self.lq = []
        self.q = {"L": [], "N": []}

    def opt(self, name, default):
        for o in self.opts:
            if o.startswith(name + "="):
                return int(o.split("=")[1])
        return default

    STAMP_REGS = [92, 94, 96, 98, 100, 50, 54, 4, 12, 14, 32, 34, 36]

    def stampval(self, name, sreg):
        sel = [o[3:].split("+") for o in self.opts if o.startswith("st=")]
        if not self.stamps or not sel or name not in sel[0]:
            return
        k = self.nstamp
        self.nstamp += 1
        self.names.append("=" + name)
        self.a(f"s_add_u32 s{self.STAMP_REGS[k]}, s{sreg}, 1")

    def stamp(self, name):
        if not self.stamps:
            return
        sel = [o[3:].split("+") for o in self.opts if o.startswith("st=")]
        if name not in ("start", "end") and sel and name not in sel[0]:
            return
        k = self.nstamp
        self.nstamp += 1
        self.names.append(name)
        if "dbg" in self.opts:
            self.a(f"s_memrealtime {sr(self.STAMP_REGS[k], 2)}")
            if name == "end":
                a = self.a
                a("s_load_dwordx2 s[40:41], s[0:1], 56\ns_waitcnt lgkmcnt(0)")
                a(f"s_not_b32 s44, s{self.STAMP_REGS[0]}\nv_writelane_b32 v{STAMPV}, s44, 15")
                for i in range(self.nstamp):
                    a(f"v_writelane_b32 v{STAMPV}, s{self.STAMP_REGS[i]}, {i}")
                a(f"""
                s_mov_b32 s42, 64
                s_mov_b32 s43, 0x20000
                v_lshlrev_b32 v{TM}, 2, v{LANE}
                s_cmp_eq_u32 s{sW}, 0
                s_cbranch_scc0 L_end
                buffer_atomic_umax v{STAMPV}, v{TM}, s[40:43], 0 offen
                s_branch L_end
                """)
            return
        if name == "start":
            self.a(f"v_writelane_b32 v{STAMPV}, s86, 0")
            return
        if name in ("start", "end"):
            self.a(f"""
            s_memrealtime s[40:41]
            s_waitcnt lgkmcnt(0)
            v_writelane_b32 v{STAMPV}, s40, {0 if name == "start" else 1}
            """)
        self.a(f"s_memtime {sr(self.STAMP_REGS[k], 2)}")
        if name == "end":
            self.a("s_waitcnt lgkmcnt(0)")
            for i in range(self.nstamp):
                self.a(f"v_writelane_b32 v{STAMPV}, s{self.STAMP_REGS[i]}, {32 + i}")

    def vm(self, roles, tag, n=1):
        for r in roles:
            self.q[r] += [tag] * n

    def vmwait(self, tags):
        need = {}
        for r, lst in self.q.items():
            last = max((i for i, t in enumerate(lst) if t in tags), default=None)
            if last is None:
                need[r] = None
            else:
                need[r] = len(lst) - 1 - last
                self.q[r] = lst[last + 1:]
        a = self.a
        if need["L"] == need["N"]:
            if need["L"] is not None:
                a(f"s_waitcnt vmcnt({need['L']})")
            return
        lab = a.newlabel("vw")
        if need["N"] is None:
            a(f"s_cmp_lt_u32 s{sW}, 8\ns_cbranch_scc1 {lab}\ns_waitcnt vmcnt({need['L']})\n{lab}:")
        elif need["L"] is None:
            a(f"s_cmp_ge_u32 s{sW}, 8\ns_cbranch_scc1 {lab}\ns_waitcnt vmcnt({need['N']})\n{lab}:")
        elif need["L"] > need["N"]:
            a(f"s_waitcnt vmcnt({need['L']})\ns_cmp_ge_u32 s{sW}, 8\ns_cbranch_scc1 {lab}\ns_waitcnt vmcnt({need['N']})\n{lab}:")
        else:
            a(f"s_waitcnt vmcnt({need['N']})\ns_cmp_lt_u32 s{sW}, 8\ns_cbranch_scc1 {lab}\ns_waitcnt vmcnt({need['L']})\n{lab}:")

    def lwait(self, tag):
        last = max(i for i, t in enumerate(self.lq) if t == tag)
        self.a(f"s_waitcnt lgkmcnt({len(self.lq) - 1 - last})")
        self.lq = self.lq[last + 1:]

    def barrier(self, name, lgkm=True):
        for o in self.opts:
            if o.startswith("padat=") and o.split("=")[1].split(":")[0] == name:
                self.a(f"""
                L_padat:
                s_memrealtime s[98:99]
                s_waitcnt lgkmcnt(0)
                s_sub_u32 s98, s98, s96
                s_cmp_lt_u32 s98, {o.split(":")[1]}
                s_cbranch_scc1 L_padat
                """)
        if lgkm:
            self.a("s_waitcnt lgkmcnt(0)")
        self.a("s_barrier")
        self.stamp(name)

    def dma_body(self, k, slot, role="L"):
        a = self.a
        if f"noc{k}" in self.opts:
            for m in range(4):
                a(f"s_mov_b32 m0, {USC + 1024}\ns_mov_b32 s{sB}, {OOB}\nbuffer_load_dwordx4 v{WOFF}, {sr(sWM, 4)}, s{sB} offen lds")
            self.vm(role, f"c{k}", 4)
            return
        srd, base = ((sWM, 0), (sWM, 131072))[k // 4]
        c = k % 4
        for m in range(4):
            a(f"""
            s_add_u32 m0, s{sW1K}, {SLOT[slot] + m * 8192}
            s_mov_b32 s{sB}, {base + c * 32768 + m * 8192}
            buffer_load_dwordx4 v{WOFF}, {sr(srd, 4)}, s{sB} offen lds
            """)
        self.vm(role, f"c{k}", 4)

    def dma_all(self, k, slot, m):
        a = self.a
        srd, base = ((sWM, 0), (sWM, 131072))[k // 4]
        a(f"""
        s_add_u32 m0, s{sWK}, {SLOT[slot] + m * 16384}
        s_add_u32 s{sB}, s{sHI}, {base + (k % 4) * 32768 + m * 16384}
        buffer_load_dwordx4 v{WOFF}, {sr(srd, 4)}, s{sB} offen lds
        """)
        self.vm("LN", f"c{k}")

    def spin(self, ctr, target, tmp, extra=None):
        a = self.a
        lab = a.newlabel("spin")
        a(f"v_mov_b32 v{tmp}, {ctr}")
        a.label(lab)
        a(f"ds_read_b32 v{tmp + 1}, v{tmp}")
        if extra:
            a(extra)
        a(f"""
        s_waitcnt lgkmcnt(0)
        v_readfirstlane_b32 s{sA}, v{tmp + 1}
        s_nop 0
        s_cmp_lt_u32 s{sA}, {target}
        s_cbranch_scc1 {lab}
        """)

    def xspin(self, shift):
        a = self.a
        lab = a.newlabel("xs")
        a(f"""
        {lab}:
        ds_read_b32 v{WF + 1}, v{WF}
        s_waitcnt lgkmcnt(0)
        v_readfirstlane_b32 s{sA}, v{WF + 1}
        s_nop 0
        s_bfe_u32 s{sA}, s{sA}, {shift | (4 << 16)}
        s_cmp_lt_u32 s{sA}, 3
        s_cbranch_scc0 {lab}_ok
        s_sleep 1
        s_branch {lab}
        {lab}_ok:
        """)

    def touch(self):
        a = self.a
        l2, done = a.newlabel("tw2"), a.newlabel("tdone")
        a(f"""
        s_lshr_b32 s{sA}, s{sT}, 3
        s_lshl_b32 s{sA}, s{sA}, 12
        s_mov_b32 m0, {USC + 1024}
        v_lshlrev_b32 v{W3 + 2}, 4, v{LANE}
        s_cmp_eq_u32 s{sW}, 5
        s_cbranch_scc0 {l2}
        """)
        for m in range(4):
            a(f"s_add_u32 s{sB}, s{sA}, {1024 * m}\nbuffer_load_dwordx4 v{W3 + 2}, {sr(sWU, 4)}, s{sB} offen lds")
        a(f"s_branch {done}\n{l2}:\ns_cmp_eq_u32 s{sW}, 6\ns_cbranch_scc0 {done}")
        for m in range(4):
            a(f"s_add_u32 s{sB}, s{sA}, {131072 + 1024 * m}\nbuffer_load_dwordx4 v{W3 + 2}, {sr(sWM, 4)}, s{sB} offen lds")
        a.label(done)

    def xpreload(self, ua):
        a = self.a
        a(f"v_mov_b32 v{WF}, {XCNT}")
        self.xspin(0)
        self.stamp("xa")
        for s in range(8):
            a(f"ds_read_b128 {vr(XR + 4 * s, 4)}, v{XA + (s & 3)} offset:{(s >> 2) * 256}")
        a(f"""
        s_cmp_lt_u32 s{sW}, 5
        s_cbranch_scc1 L_xp_go
        s_cmp_ge_u32 s{sW}, 8
        s_cbranch_scc1 L_xp_go
        v_mov_b32 v{W3 + 3}, 16
        s_mov_b64 exec, 1
        s_waitcnt vmcnt(0)
        ds_add_u32 v{WF}, v{W3 + 3}
        s_mov_b64 exec, -1
        """)
        a.label("L_xp_go")
        self.xspin(4)
        self.stamp("xb")
        for s in range(8):
            a(f"ds_read_b128 {vr(XR + 32 + 4 * s, 4)}, v{XA + (s & 3)} offset:{8192 + (s >> 2) * 256}")
        self.xreads(0)
        a(f"s_cmp_lt_u32 s{sW}, 8\ns_cbranch_scc1 L_xp_c2")
        self.dma_body(1, 1)
        a("s_branch L_xp_done\nL_xp_c2:")
        self.dma_body(2, 2, "N")
        a.label("L_xp_done")

    def xreads(self, c):
        a = self.a
        for sp in range(2):
            s = 2 * c + sp
            a(f"ds_read_b128 {vr(XF2 + 4 * sp, 4)}, v{XA + (s & 3)} offset:{2 * 8192 + (s >> 2) * 256}")

    def trreads(self, slot):
        a = self.a
        base = SLOT[slot]
        tr = TR0 if base < 65536 else TR1
        for sp in range(2):
            for p in range(2):
                a(f"ds_read_b64_tr_b16 {vr(WF + 4 * sp + 2 * p, 2)}, v{tr} offset:{(base & 65535) + 16384 * sp + 2048 * p}")

    def mfmas(self, acc, c, between=None):
        a = self.a
        for sp in range(2):
            if between:
                between(sp)
            a(f"s_waitcnt lgkmcnt({2 - 2 * sp})")
            for rb in range(3):
                cin = "0" if (c == 0 and sp == 0) else vr(acc + 4 * rb, 4)
                b = XR + 32 * rb + 4 * (2 * c + sp) if rb < 2 else XF2 + 4 * sp
                a(f"v_mfma_f32_16x16x32_bf16 {vr(acc + 4 * rb, 4)}, {vr(WF + 4 * sp, 4)}, {vr(b, 4)}, {cin}")

    def scan(self, v):
        a = self.a
        for sh in (1, 2, 4, 8):
            a(f"v_add_u32_dpp v{v}, v{v}, v{v} row_shr:{sh} row_mask:0xf bank_mask:0xf bound_ctrl:0")
        a(f"v_add_u32_dpp v{v}, v{v}, v{v} row_bcast:15 row_mask:0xa bank_mask:0xf")
        a(f"v_add_u32_dpp v{v}, v{v}, v{v} row_bcast:31 row_mask:0xc bank_mask:0xf")

    def poll_issue(self):
        a = self.a
        if "repl" not in self.opts:
            a(f"v_lshlrev_b32 v14, 5, v{LANE}\ns_mov_b32 s{sB}, {W_FB}\ns_mov_b32 s{sD}, {W_FB + 4096}")
            for k in range(4):
                a(f"buffer_load_dwordx2 {vr(POLLB + 2 * k, 2)}, v14, {sr(sWS, 4)}, s{sB if k < 2 else sD} offen offset:{2048 * (k & 1)} sc1")
            return
        a(f"v_lshlrev_b32 v14, 4, v{LANE}\ns_and_b32 s{sB}, s{sT}, 7\ns_lshl_b32 s{sB}, s{sB}, 12\ns_add_u32 s{sB}, s{sB}, {W_FR}")
        for k in range(4):
            a(f"buffer_load_dwordx2 {vr(POLLB + 2 * k, 2)}, v14, {sr(sWS, 4)}, s{sB} offen offset:{1024 * k} sc1")

    def poll_wait(self):
        a = self.a
        lp, chk, done = a.newlabel("poll"), a.newlabel("pchk"), a.newlabel("pdone")
        a(f"s_mov_b32 s{sC}, 0\ns_branch {chk}")
        a.label(lp)
        self.poll_issue()
        a.label(chk)
        m58 = (1 << (NT - 192)) - 1
        a(f"""
        s_waitcnt vmcnt(0)
        v_cmp_ne_u64 s[40:41], {sr(sTAG, 2)}, {vr(POLLB, 2)}
        v_cmp_ne_u64 vcc, {sr(sTAG, 2)}, {vr(POLLB + 2, 2)}
        v_cmp_ne_u64 s[88:89], {sr(sTAG, 2)}, {vr(POLLB + 4, 2)}
        v_cmp_ne_u64 s[46:47], {sr(sTAG, 2)}, {vr(POLLB + 6, 2)}
        s_nop 1
        s_and_b32 s47, s47, {m58 >> 32}
        s_or_b64 s[40:41], s[40:41], vcc
        s_or_b64 s[46:47], s[88:89], s[46:47]
        s_or_b64 s[40:41], s[40:41], s[46:47]
        s_cbranch_scc0 {done}
        s_add_u32 s{sC}, s{sC}, 1
        s_cmp_lt_u32 s{sC}, {POLL_LIMIT}
        s_cbranch_scc1 {lp}
        """)
        a.label(done)

    def tag_store(self, soff, tmp):
        a = self.a
        a(f"""
        v_mov_b32 v{tmp}, s{sTAG}
        v_mov_b32 v{tmp + 1}, s{sTAG + 1}
        v_lshlrev_b32 v{tmp + 2}, 24, v{LANE}
        buffer_store_dwordx2 {vr(tmp, 2)}, v{tmp + 2}, {sr(sWS, 4)}, s{soff} offen sc1
        """)

    def wave0(self, fn):
        a = self.a
        lab = a.newlabel("w0")
        a(f"s_cmp_eq_u32 s{sW}, 0\ns_cbranch_scc0 {lab}")
        fn()
        a.label(lab)

    def edge(self, pb, which, exact, first):
        a = self.a
        if "noedge" in self.opts:
            return
        p = PA[pb] + 4 * which
        sel = "op_sel:[1,0,0] op_sel_hi:[1,1,1]" if which else "op_sel:[0,0,0] op_sel_hi:[0,1,1]"
        y = NN if (first and not exact) else Y
        for h in range(2):
            a(f"v_pk_fma_f32 {vr(QE + 2 * h, 2)}, {vr(EE[pb], 2)}, {vr(W3 + 2 * h, 2)}, {vr(Q + 2 * h, 2)} {sel}")
        for h in range(2):
            a(f"v_pk_add_f32 {vr(y + 2 * h, 2)}, {vr(p + 2 * h, 2)}, {vr(QE + 2 * h, 2)}")
        for r in range(4):
            a(f"v_exp_f32 v{TT + r}, v{y + r}")
        if exact:
            for h in range(2):
                a(f"v_pk_add_f32 {vr(TT + 2 * h, 2)}, {vr(TT + 2 * h, 2)}, 1.0 op_sel_hi:[1,0]")
            for r in range(4):
                a(f"v_rcp_f32 v{TT + r}, v{TT + r}")
            for h in range(2):
                if first:
                    a(f"v_pk_mul_f32 {vr(NN + 2 * h, 2)}, {vr(Y + 2 * h, 2)}, {vr(TT + 2 * h, 2)}")
                else:
                    a(f"v_pk_fma_f32 {vr(NN + 2 * h, 2)}, {vr(Y + 2 * h, 2)}, {vr(TT + 2 * h, 2)}, {vr(NN + 2 * h, 2)}")
        elif first:
            for h in range(2):
                a(f"v_pk_add_f32 {vr(DD + 2 * h, 2)}, {vr(TT + 2 * h, 2)}, 1.0 op_sel_hi:[1,0]")
        else:
            for h in range(2):
                a(f"v_pk_fma_f32 {vr(NN + 2 * h, 2)}, {vr(NN + 2 * h, 2)}, {vr(TT + 2 * h, 2)}, {vr(NN + 2 * h, 2)}")
            for h in range(2):
                a(f"v_pk_fma_f32 {vr(NN + 2 * h, 2)}, {vr(Y + 2 * h, 2)}, {vr(DD + 2 * h, 2)}, {vr(NN + 2 * h, 2)}")
            for h in range(2):
                a(f"v_pk_fma_f32 {vr(DD + 2 * h, 2)}, {vr(DD + 2 * h, 2)}, {vr(TT + 2 * h, 2)}, {vr(DD + 2 * h, 2)}")

    def pair(self, pb):
        a = self.a
        p = PA[pb]
        lo, hi = "op_sel:[0,0,0] op_sel_hi:[0,1,1]", "op_sel:[1,0,0] op_sel_hi:[1,1,1]"

        def qe(dst, h, sel):
            return f"v_pk_fma_f32 {vr(dst + 2 * h, 2)}, {vr(EE[pb], 2)}, {vr(W3 + 2 * h, 2)}, {vr(Q + 2 * h, 2)} {sel}"

        def nt(t, h):
            return f"v_pk_fma_f32 {vr(NN + 2 * h, 2)}, {vr(NN + 2 * h, 2)}, {vr(t + 2 * h, 2)}, {vr(NN + 2 * h, 2)}"

        def yd(y, h):
            return f"v_pk_fma_f32 {vr(NN + 2 * h, 2)}, {vr(y + 2 * h, 2)}, {vr(DD + 2 * h, 2)}, {vr(NN + 2 * h, 2)}"

        def dt(t, h):
            return f"v_pk_fma_f32 {vr(DD + 2 * h, 2)}, {vr(DD + 2 * h, 2)}, {vr(t + 2 * h, 2)}, {vr(DD + 2 * h, 2)}"

        seq = [qe(Y, 0, lo), qe(Y, 1, lo), qe(QE, 0, hi), qe(QE, 1, hi)]
        seq += [f"v_pk_add_f32 {vr(Y + 2 * h, 2)}, {vr(p + 2 * h, 2)}, {vr(Y + 2 * h, 2)}" for h in range(2)]
        seq += [f"v_pk_add_f32 {vr(QE + 2 * h, 2)}, {vr(p + 4 + 2 * h, 2)}, {vr(QE + 2 * h, 2)}" for h in range(2)]
        seq += [f"v_exp_f32 v{TT + r}, v{Y + r}" for r in range(4)]
        seq += [f"v_exp_f32 v{p + r}, v{QE + r}" for r in range(2)]
        seq += [nt(TT, 0), nt(TT, 1)]
        seq += [f"v_exp_f32 v{p + 2}, v{QE + 2}", yd(Y, 0), yd(Y, 1), f"v_exp_f32 v{p + 3}, v{QE + 3}", dt(TT, 0), dt(TT, 1)]
        seq += [nt(p, 0), nt(p, 1), yd(QE, 0), yd(QE, 1), dt(p, 0), dt(p, 1)]
        for x in seq:
            a(x)

    def side_add(self, src, tag):
        self.a(f"""
        s_cmp_eq_u32 s{sCO}, 0
        s_cbranch_scc1 L_noside_{tag}
        s_lshl_b32 s{sA}, s{sW}, 9
        s_add_u32 s{sA}, s{sA}, {(SIDE + 512) ^ AB}
        v_xor_b32 v{QA}, s{sA}, v{L8}
        s_mov_b32 s{sC}, 0
        L_side_{tag}:
        ds_read_b64 {vr(TT, 2)}, v{QA}
        s_add_u32 s{sC}, s{sC}, 1
        s_waitcnt lgkmcnt(0)
        v_cmp_eq_u64 vcc, -1, {vr(TT, 2)}
        s_cmp_gt_u32 s{sC}, 40000
        s_cbranch_scc1 L_side_go_{tag}
        s_cbranch_vccnz L_side_{tag}
        L_side_go_{tag}:
        v_lshlrev_b32 v{QE}, 16, v{TT}
        v_and_b32 v{QE + 1}, 0xffff0000, v{TT}
        v_lshlrev_b32 v{QE + 2}, 16, v{TT + 1}
        v_and_b32 v{QE + 3}, 0xffff0000, v{TT + 1}
        v_pk_add_f32 {vr(src, 2)}, {vr(src, 2)}, {vr(QE, 2)}
        v_pk_add_f32 {vr(src + 2, 2)}, {vr(src + 2, 2)}, {vr(QE + 2, 2)}
        L_noside_{tag}:
        """)

    def f32_row(self, key, dst):
        self.a(f"""
        s_lshr_b32 s{dst}, s{key}, 9
        s_cmp_lt_u32 s{dst}, 20
        s_cselect_b32 s{sA}, {AB // 1024}, {AF2 // 1024 - 20}
        s_add_u32 s{dst}, s{dst}, s{sA}
        s_lshl_b32 s{dst}, s{dst}, 10
        """)

    def flush(self, exact, mid=None, final=False):
        a = self.a
        if exact:
            if mid:
                mid()
            acc, done = a.newlabel("facc"), a.newlabel("fdone")
            a(f"s_cmp_eq_u32 s{sMODE}, 2\ns_cbranch_scc1 {acc}")
            if final:
                self.side_add(NN, "x")
            a(f"""
            v_cvt_pk_bf16_f32 v{TT}, v{NN}, v{NN + 1}
            v_cvt_pk_bf16_f32 v{TT + 1}, v{NN + 2}, v{NN + 3}
            ds_write_b64 v{AG}, {vr(TT, 2)}
            v_xor_b32 v{AG}, s{sD}, v{L8}
            s_branch {done}
            {acc}:
            """)
            for r in range(4):
                a(f"ds_add_f32 v{AG}, v{NN + r} offset:{256 * r}")
            if not final:
                self.f32_row(sD, sD)
                a(f"v_add_u32 v{AG}, s{sD}, v{L4}")
            a(f"{done}:\ns_waitcnt lgkmcnt(0)")
            return
        for r in range(4):
            a(f"v_rcp_f32 v{TT + r}, v{DD + r}")
        if mid:
            mid()
        a(f"v_max3_f32 v{CK1}, v{CK1}, v{DD}, v{DD + 1}")
        a(f"v_max3_f32 v{CK1}, v{CK1}, v{DD + 2}, v{DD + 3}")
        for h in range(2):
            a(f"v_pk_mul_f32 {vr(Y + 2 * h, 2)}, {vr(NN + 2 * h, 2)}, {vr(TT + 2 * h, 2)}")
        for h in range(2):
            a(f"v_pk_fma_f32 {vr(CK2, 2)}, {vr(Y + 2 * h, 2)}, 0, {vr(CK2, 2)} op_sel_hi:[1,0,1]")
        if final:
            self.side_add(Y, "f")
        a(f"v_cvt_pk_bf16_f32 v{TT}, v{Y}, v{Y + 1}")
        a(f"v_cvt_pk_bf16_f32 v{TT + 1}, v{Y + 2}, v{Y + 3}")
        a(f"ds_write_b64 v{AG}, {vr(TT, 2)}")
        if not final:
            a(f"v_xor_b32 v{AG}, s{sD}, v{L8}\ns_waitcnt lgkmcnt(1)")

    def p_reads(self, pb, slot):
        a = self.a
        for row in range(2):
            for r in range(4):
                a(f"ds_read_u16_d16_hi v{PA[pb] + 4 * row + r}, v{RG} offset:{ROFF[slot] + row * 512 + r * 128}")

    def gather(self, slot):
        if "nodma" in self.opts:
            return
        self.a(f"""
        s_mov_b32 m0, s{sSLOT + slot}
        buffer_load_dwordx4 {vr(IA, 2)}, {sr(sP, 4)}, 0 idxen offen sc1 lds
        """)

    def reads(self, jj):
        a = self.a
        pb = jj & 1
        self.p_reads(pb ^ 1, (jj + 1) & 3)
        a(f"ds_read_b64 {vr(EE[pb ^ 1], 2)}, v{EA} offset:{8 * (jj + 1)}")
        a(f"ds_read_u16 v{IA}, v{IXA} offset:{4 * (jj + 5)}")

    def main_loop(self, exact, exit_label):
        a = self.a
        tag = "x" if exact else "f"
        loop, fin = f"L_loop_{tag}", f"L_fin_{tag}"
        prio = not exact and "noprio" not in self.opts
        a.label(loop)
        for jj in range(4):
            a(f"s_and_b32 s{sA}, s{sTM}, {3 << (2 * jj)}\ns_cbranch_scc1 L_blk_{tag}_{jj}\ns_waitcnt vmcnt(3)")
            self.reads(jj)
            if exact or "noil" in self.opts or "noedge" in self.opts:
                self.edge(jj & 1, 0, exact, False)
                self.edge(jj & 1, 1, exact, False)
            else:
                self.pair(jj & 1)
            a.label(f"L_back_{tag}_{jj}")
            a(f"s_mov_b32 m0, s{sSLOT + ((jj + 1) & 3)}\ns_waitcnt lgkmcnt(0)")
            if "nodma" not in self.opts:
                a(f"buffer_load_dwordx4 {vr(IA, 2)}, {sr(sP, 4)}, 0 idxen offen sc1 lds")
        a(f"""
        v_add_u32 v{IXA}, 16, v{IXA}
        v_add_u32 v{EA}, 32, v{EA}
        s_lshr_b64 {sr(sMASK, 2)}, {sr(sMASK, 2)}, 8
        s_or_b32 s{sMASK + 1}, s{sMASK + 1}, s{sHB}
        s_mov_b32 s{sHB}, 0
        s_mov_b32 s{sTM}, s{sMASK}
        s_add_u32 s{sI}, s{sI}, 8
        """)
        t2, t1, t0 = self.opt("p2", 12), self.opt("p1", 8), self.opt("p0", 4)
        tu = self.opt("tu", 12)
        a(f"s_sub_u32 s{sREM}, s{sREM}, 4\ns_cmp_gt_i32 s{sREM}, {t2}\ns_cbranch_scc1 {loop}")
        if "u2early" not in self.opts and "nou2" not in self.opts:
            a(f"""
            s_cmp_gt_i32 s{sREM}, {tu}
            s_cbranch_scc1 L_nou2_{tag}
            s_cmp_eq_u32 s{sW11}, -1
            s_cbranch_scc0 L_nou2_{tag}
            """)
            self.u2_loads()
            a(f"s_mov_b32 s{sW11}, s{sI}\ns_or_b32 s{sTM}, s{sTM}, 0xff\nL_nou2_{tag}:")
        if prio:
            a(f"""
            s_setprio 2
            s_cmp_gt_i32 s{sREM}, {t1}
            s_cbranch_scc1 {loop}
            s_setprio 1
            s_cmp_gt_i32 s{sREM}, {t0}
            s_cbranch_scc1 {loop}
            s_setprio 0
            """)
        a(f"s_branch {loop}")
        for jj in range(4):
            pb = jj & 1
            b = f"L_blk_{tag}_{jj}"
            a.reset_hist()
            a(f"""
            {b}:
            s_waitcnt vmcnt(11)
            s_cmp_eq_u32 s{sI}, s{sW11}
            s_cbranch_scc1 {b}_w
            s_waitcnt vmcnt(3)
            {b}_w:
            """)
            self.reads(jj)
            a(f"s_bitcmp1_b32 s{sMASK}, {2 * jj}\ns_cbranch_scc1 {b}_f0")
            self.edge(pb, 0, exact, False)
            a(f"{b}_a:\ns_bitcmp1_b32 s{sMASK}, {2 * jj + 1}\ns_cbranch_scc1 {b}_f1")
            self.edge(pb, 1, exact, False)
            a(f"s_branch L_back_{tag}_{jj}")
            for which in range(2):
                a.reset_hist()
                a(f"""
                {b}_f{which}:
                s_add_u32 s{sA}, s{sI}, {2 * jj + which}
                s_cmp_eq_u32 s{sA}, s{sNE}
                s_cbranch_scc1 {fin}
                v_readlane_b32 s{sB}, v{INFO}, s{sA}
                """)

                def mid():
                    a(f"""
                    s_and_b32 s{sC}, s{sB}, 0xffff
                    s_lshr_b32 s{sD}, s{sB}, 16
                    v_add_u32 v{QA}, s{sC}, v{L4}
                    ds_read2st64_b32 {vr(Q, 2)}, v{QA} offset0:0 offset1:1
                    ds_read2st64_b32 {vr(Q + 2, 2)}, v{QA} offset0:2 offset1:3
                    """)

                self.flush(exact, mid)
                self.edge(pb, which, exact, True)
                a(f"s_branch {b + '_a' if which == 0 else f'L_back_{tag}_{jj}'}")
        a.reset_hist()
        a.label(fin)
        self.flush(exact, final=True)
        if "u2early" not in self.opts:
            a(f"s_cmp_eq_u32 s{sW11}, -1\ns_cbranch_scc0 {exit_label}")
            self.u2_loads()
        a(f"s_branch {exit_label}")

    def zero_agg(self, addr, zq):
        a = self.a
        lab = a.newlabel("zagg")
        a(f"""
        ds_write_b128 v{addr}, {vr(zq, 4)}
        s_cmp_lt_u32 s{sW}, 4
        s_cbranch_scc0 {lab}
        ds_write_b128 v{addr}, {vr(zq, 4)} offset:16384
        {lab}:
        """)

    def u2_loads(self):
        a = self.a
        a(f"""
        s_lshl_b32 s{sA}, s{sW}, 14
        s_add_u32 s{sA}, s{sA}, {W_UT + 8192}
        s_add_u32 s{sB}, s{sA}, 4096
        v_lshlrev_b32 v{TM}, 4, v{LANE}
        """)
        for s in range(8):
            so = sA if s < 4 else sB
            a(f"buffer_load_dwordx4 {vr(UF + 4 * s, 4)}, v{TM}, {sr(sWS, 4)}, s{so} offen offset:{(s & 3) * 1024} sc1")

    def hi_passes(self, fn):
        a = self.a
        fn(0)
        fn(1)
        lab = a.newlabel("hp")
        a(f"s_cmp_eq_u64 {sr(sVAL + 4, 2)}, 0\ns_cbranch_scc1 {lab}")
        fn(2)
        fn(3)
        a.label(lab)

    def rec_issue(self, S):
        a = self.a
        a(f"""
        s_lshl_b32 s{sA}, s{sP0}, 2
        s_lshl_b32 s{sB}, s{sP0}, 5
        v_mov_b32 v{S.tmp}, {OOB}
        s_add_u32 s{sC}, s{sA}, 4
        s_add_u32 s{sD}, s{sA}, 8
        v_cmp_lt_i32 {sr(sVAL, 2)}, s{sA}, v{CQ}
        s_add_u32 s{sA}, s{sA}, 12
        v_cmp_lt_i32 {sr(sVAL + 2, 2)}, s{sC}, v{CQ}
        v_cmp_lt_i32 {sr(sVAL + 4, 2)}, s{sD}, v{CQ}
        v_cmp_lt_i32 {sr(sVAL + 6, 2)}, s{sA}, v{CQ}
        s_cmp_gt_u32 s{sNP}, 1
        s_cselect_b64 {sr(sVAL + 2, 2)}, {sr(sVAL + 2, 2)}, 0
        s_cselect_b64 {sr(sVAL + 4, 2)}, {sr(sVAL + 4, 2)}, 0
        s_cselect_b64 {sr(sVAL + 6, 2)}, {sr(sVAL + 6, 2)}, 0
        """)
        lab = a.newlabel("hp")
        a(f"s_cmp_eq_u64 {sr(sVAL + 4, 2)}, 0\ns_cbranch_scc1 {lab}")
        for k in (2, 3, 0, 1):
            if k == 0:
                a.label(lab)
            a(f"""
            v_cndmask_b32 v{S.adr + k}, v{S.tmp}, v{RBA}, {sr(sVAL + 2 * k, 2)}
            buffer_load_dwordx2 {vr(S.rec[k], 2)}, v{S.adr + k}, {sr(sWS, 4)}, s{sB} offen offset:{32 * k} sc1
            """)

    def count(self, S):
        a = self.a
        a(f"v_mov_b32 v{S.tmp}, 1\ns_mov_b32 s{sA}, {CNTN}")

        def one(k):
            a(f"""
            s_mov_b64 exec, {sr(sVAL + 2 * k, 2)}
            v_bfe_u32 v{S.adr + k}, v{S.rec[k]}, 16, 6
            v_lshl_add_u32 v{S.adr + k}, v{S.adr + k}, 2, s{sA}
            ds_add_rtn_u32 v{S.rank + k}, v{S.adr + k}, v{S.tmp}
            """)
        self.hi_passes(one)
        a("s_mov_b64 exec, -1")

    def lists(self, S, generic_label, first=True):
        a = self.a
        sc = S.tmp
        done = a.newlabel("lists")
        a(f"""
        s_mov_b32 s{sA}, {CNTN}
        v_lshl_add_u32 v{sc + 3}, v{LANE}, 2, s{sA}
        v_mov_b32 v{sc + 2}, {MISC}
        ds_read_b32 v{sc}, v{sc + 3}
        ds_read_b32 v{sc + 2}, v{sc + 2}
        s_waitcnt lgkmcnt(0)
        v_mov_b32 v{sc + 1}, v{sc}
        v_readfirstlane_b32 s{sMAXC}, v{sc + 2}
        v_cmp_eq_u32 {sr(sZ, 2)}, 0, v{sc}
        v_subrev_u32 v{sc}, {DL}, v{sc}
        """)
        self.scan(sc + 1)
        a(f"""
        v_readlane_b32 s{sM}, v{sc + 1}, 63
        v_sub_u32 v{sc + 1}, v{sc + 1}, v{sc}
        s_cmp_gt_u32 s{sM}, 1024
        s_cbranch_scc1 {generic_label}
        """)
        if first:
            a(f"""
            s_cmp_eq_u32 s{sMAXC}, 0
            s_cbranch_scc0 {generic_label}
            s_cmp_lt_u32 s{sM}, 64
            s_cbranch_scc0 {done}
            s_mov_b32 s{sMODE}, 2
            """)
        a(f"""
        {done}:
        """)
        self.hi_passes(lambda k: a(f"ds_bpermute_b32 v{S.adr + k}, v{S.adr + k}, v{sc + 1}"))
        a(f"""
        s_add_u32 s{sA}, s{sM}, 1
        s_lshr_b32 s{sA}, s{sA}, 1
        s_mul_i32 s{sB}, s{sA}, s{sW}
        s_add_u32 s{sC}, s{sB}, s{sA}
        s_lshr_b32 s{sI}, s{sB}, 4
        s_lshr_b32 s{sC}, s{sC}, 4
        s_sub_u32 s{sREM}, s{sC}, s{sI}
        s_lshl_b32 s{sC}, s{sC}, 1
        s_cmp_lt_u32 s{sC}, s{sM}
        s_cselect_b32 s{sCO}, 1, 0
        s_min_u32 s{sC}, s{sC}, s{sM}
        s_lshl_b32 s{sI}, s{sI}, 1
        s_sub_u32 s{sNE}, s{sC}, s{sI}
        s_mov_b32 s{sA}, {(IL - 2 * DL) & 0xffffffff}
        s_mov_b32 s{sB}, {(EL - 4 * DL) & 0xffffffff}
        s_waitcnt lgkmcnt(0)
        """)

        def one(k):
            a(f"""
            s_mov_b64 exec, {sr(sVAL + 2 * k, 2)}
            v_add_u32 v{S.rank + k}, v{S.rank + k}, v{S.adr + k}
            v_lshl_add_u32 v{S.adr + k}, v{S.rank + k}, 1, s{sA}
            v_lshl_add_u32 v{sc + (k & 1)}, v{S.rank + k}, 2, s{sB}
            ds_write_b8_d16_hi v{S.rank + k}, v{S.rec[k]}
            ds_write_b16 v{S.adr + k}, v{S.rec[k]}
            ds_write_b32 v{sc + (k & 1)}, v{S.rec[k] + 1}
            """)
        self.hi_passes(one)
        a("s_mov_b64 exec, -1")

    def setup(self, tm):
        a = self.a
        a(f"""
        s_add_u32 s{sD}, s{sI}, {DL - 1}
        v_add_u32 v{INFO}, s{sD}, v{LANE}
        s_lshl_b32 s{sA}, s{sI}, 1
        s_add_u32 s{sA}, s{sA}, {IL}
        v_lshl_add_u32 v{EA}, v{LANE}, 1, s{sA}
        ds_read_u16 v{tm + 3}, v{EA}
        ds_read_u8 v{tm}, v{INFO}
        ds_read_u8 v{tm + 2}, v{INFO} offset:1
        ds_read_u8 v{tm + 1}, v{INFO} offset:2
        s_cmp_lt_u32 s{sW}, 9
        s_mov_b32 s{sC}, {PILB}
        s_cselect_b32 s{sC}, {PILA}, s{sC}
        s_mul_i32 s{sB}, s{sW}, 192
        s_add_u32 s{sB}, s{sB}, s{sC}
        v_lshl_add_u32 v{INFO}, v{LANE}, 1, s{sB}
        v_mov_b32 v{tm + 4}, 0xffff
        v_cmp_gt_i32 vcc, s{sNE}, v{LANE}
        s_mov_b32 exec_hi, 0
        ds_write_b16 v{INFO}, v{tm + 4} offset:128
        s_mov_b64 exec, -1
        v_lshrrev_b32 v{IXA}, 5, v{LANE}
        v_lshl_add_u32 v{IXA}, v{IXA}, 1, s{sB}
        s_lshl_b32 s{sA}, s{sI}, 2
        s_add_u32 s{sA}, s{sA}, {EL}
        v_mov_b32 v{EA}, s{sA}
        s_waitcnt lgkmcnt(4)
        v_cndmask_b32 v{tm + 3}, v{tm + 4}, v{tm + 3}, vcc
        ds_write_b16 v{INFO}, v{tm + 3}
        """)
        for k in range(5):
            a(f"ds_read_u16 v{IX0 + k}, v{IXA} offset:{4 * k}")
        a(f"""
        s_waitcnt lgkmcnt(7)
        v_cmp_ne_u32 {sr(sMASK, 2)}, v{tm + 2}, v{tm + 1}
        v_cmp_eq_u32 vcc, v{tm + 2}, v{tm}
        v_mul_u32_u24 v{INFO}, {QS}, v{tm + 2}
        v_and_b32 v{tm + 1}, 15, v{tm + 2}
        v_lshlrev_b32 v{tm + 1}, 4, v{tm + 1}
        v_lshl_add_u32 v{tm + 1}, v{tm + 2}, 9, v{tm + 1}
        v_lshl_or_b32 v{INFO}, v{tm + 1}, 16, v{INFO}
        s_sub_u32 s{sA}, s{sNE}, 1
        s_bitcmp0_b64 {sr(sMASK, 2)}, s{sA}
        s_cselect_b32 s{sCO}, s{sCO}, 0
        s_bitset1_b64 {sr(sMASK, 2)}, s{sA}
        v_readfirstlane_b32 s{sB}, v{INFO}
        ; end-of-segment bits become start-of-segment bits; bit 64 is carried separately
        s_lshr_b32 s{sHB2}, s{sMASK + 1}, 31
        s_lshl_b32 s{sHB2}, s{sHB2}, 24
        s_lshl_b64 {sr(sMASK, 2)}, {sr(sMASK, 2)}, 1
        s_and_b32 s{sC}, vcc_lo, 1
        s_cmp_eq_u32 s{sI}, 0
        s_cselect_b32 s{sC}, 0, s{sC}
        s_cmp_lt_u32 s{sMODE}, 2
        s_cselect_b32 s{sC}, s{sC}, 0
        s_lshl_b32 s{sA}, s{sW}, 9
        s_add_u32 s{sA}, s{sA}, {SIDE ^ AB}
        s_lshr_b32 s{sD}, s{sB}, 16
        s_cmp_eq_u32 s{sC}, 0
        s_cselect_b32 s{sAG0}, s{sD}, s{sA}
        s_and_b32 s{sQ0}, s{sB}, 0xffff
        """)

    def slot_consts(self):
        self.a(f"""
        s_lshl_b32 s{sA}, s{sW}, 11
        s_add_u32 s{sSLOT}, s{sA}, {RING + ROFF[0]}
        s_add_u32 s{sSLOT + 1}, s{sA}, {RING + ROFF[1]}
        s_add_u32 s{sSLOT + 2}, s{sA}, {RING + ROFF[2]}
        s_add_u32 s{sSLOT + 3}, s{sA}, {RING + ROFF[3]}
        v_and_b32 v{IA + 1}, 31, v{LANE}
        v_lshlrev_b32 v{IA + 1}, 4, v{IA + 1}
        """)

    def lane_consts(self):
        self.a(f"""
        v_lshl_add_u32 v{RG}, v{LANE}, 1, s{sSLOT}
        v_lshlrev_b32 v{L4}, 2, v{LANE}
        v_lshlrev_b32 v{L8}, 3, v{LANE}
        v_or_b32 v{L8}, {AB}, v{L8}
        """)

    def side_fill(self, tmp, adr):
        self.a(f"""
        v_mov_b64 {vr(tmp, 2)}, -1
        s_lshl_b32 s{sA}, s{sW}, 9
        s_add_u32 s{sA}, s{sA}, {SIDE}
        v_lshl_add_u32 v{adr}, v{LANE}, 3, s{sA}
        ds_write_b64 v{adr}, {vr(tmp, 2)}
        """)

    def tag_calc(self):
        self.a(f"""
        v_readfirstlane_b32 s{sTAG}, v{W3}
        v_readfirstlane_b32 s{sTAG + 1}, v{W3 + 1}
        s_add_u32 s{sTAG}, s{sTAG}, 1
        s_addc_u32 s{sTAG + 1}, s{sTAG + 1}, 0
        s_lshl_b32 s{sTLO}, s{sTAG + 1}, 20
        s_lshl_b32 s{sRA}, s{sTAG}, 24
        s_bfe_u32 s{sRB}, s{sTAG}, 0x100008
        """)

    def clean(self, S):
        a = self.a
        lp, ok = a.newlabel("clean"), a.newlabel("cleanok")
        a(f"s_mov_b32 s{sM}, 0\n{lp}:\ns_mov_b64 s[40:41], 0")

        def one(k):
            a(f"""
            s_mov_b64 exec, {sr(sVAL + 2 * k, 2)}
            v_xor_b32 v{S.rec[k]}, s{sRA}, v{S.rec[k]}
            v_xor_b32 v{S.rec[k] + 1}, s{sRB}, v{S.rec[k] + 1}
            v_lshrrev_b32 v{S.adr + k}, 24, v{S.rec[k]}
            v_lshl_or_b32 v{S.adr + k}, v{S.rec[k] + 1}, 16, v{S.adr + k}
            v_cmp_ne_u32 vcc, 0, v{S.adr + k}
            s_or_b64 s[40:41], s[40:41], vcc
            """)
        self.hi_passes(one)
        a(f"""
        s_mov_b64 exec, -1
        s_cmp_eq_u64 s[40:41], 0
        s_cbranch_scc1 {ok}
        s_add_u32 s{sM}, s{sM}, 1
        s_cmp_gt_u32 s{sM}, {POLL_LIMIT}
        s_cbranch_scc1 {ok}
        """)
        self.rec_issue(S)
        a(f"s_waitcnt vmcnt(0)\ns_branch {lp}\n{ok}:")

    def binning(self):
        a = self.a
        DV, SV, EP, AD, RK, RV, H0, B0, SQ, t4, t5, t6, t7 = 24, 26, 28, 30, 32, 34, 40, 44, 48, 52, 53, 54, 56
        a(f"""
        s_mov_b32 s{sC}, -40
        s_mov_b32 s{sD}, {HIST}
        v_mov_b32 v{t4}, 1
        v_mov_b32 v{t7}, {S1C}
        v_lshlrev_b32 v{t5}, 4, v{LANE}
        v_add_u32 v{t6}, {HIST}, v{t5}
        s_waitcnt vmcnt(1)
        """)
        self.stamp("edges")
        self.tag_calc()
        R2 = range(2)
        for i in R2:
            a(f"v_mul_u32_u24 v{AD + i}, 52429, v{DV + i}")
        for i in R2:
            a(f"v_lshrrev_b32 v{AD + i}, 21, v{AD + i}")
        for i in R2:
            a(f"v_min_u32 v{RK + i}, 255, v{AD + i}")
        for i in R2:
            a(f"v_and_b32 v{AD + i}, 7, v{RK + i}\nv_lshrrev_b32 v{H0 + i}, 3, v{RK + i}")
        for i in R2:
            a(f"v_lshl_or_b32 v{AD + i}, v{AD + i}, 5, v{H0 + i}")
        for i in R2:
            a(f"v_lshl_add_u32 v{AD + i}, v{AD + i}, 2, s{sD}")
        for i in R2:
            a(f"v_mad_i32_i24 v{DV + i}, v{RK + i}, s{sC}, v{DV + i}")
            a(f"ds_add_rtn_u32 v{RK + i}, v{AD + i}, v{t4}")
        a(f"s_mov_b64 exec, 1\nds_add_u32 v{t7}, v{t4}\ns_mov_b64 exec, -1")
        for i in R2:
            a(f"v_and_b32 v{DV + i}, 63, v{DV + i}\nv_and_b32 v{SV + i}, 0xffff, v{SV + i}")
        for i in R2:
            a(f"v_lshl_or_b32 v{RV + 2 * i}, v{DV + i}, 16, v{SV + i}")
        a(f"""
        v_mov_b32 v{RV + 3}, 0xffff0000
        v_lshl_or_b32 v{RV + 1}, v{EP}, 16, s{sRB}
        v_and_or_b32 v{RV + 3}, v{EP}, v{RV + 3}, s{sRB}
        v_or_b32 v{RV}, s{sRA}, v{RV}
        v_or_b32 v{RV + 2}, s{sRA}, v{RV + 2}
        """)
        self.spin(S1C, 5, t7, f"ds_read_b128 {vr(H0, 4)}, v{t6}")
        a(f"""
        v_add_u32 v{B0 + 1}, v{H0}, v{H0 + 1}
        v_add_u32 v{SQ}, v{H0 + 2}, v{H0 + 3}
        v_add_u32 v{SQ}, v{SQ}, v{B0 + 1}
        v_mov_b32 v{SQ + 1}, v{SQ}
        """)
        self.scan(SQ + 1)
        a(f"""
        v_sub_u32 v{B0}, v{SQ + 1}, v{SQ}
        v_add_u32 v{B0 + 2}, v{B0}, v{B0 + 1}
        v_add_u32 v{B0 + 1}, v{B0}, v{H0}
        v_add_u32 v{B0 + 3}, v{B0 + 2}, v{H0 + 2}
        ds_write_b128 v{t6}, {vr(B0, 4)} offset:{BASE - HIST}
        ds_read_b32 v{DV}, v{AD} offset:{BASE - HIST}
        ds_read_b32 v{DV + 1}, v{AD + 1} offset:{BASE - HIST}
        s_mov_b32 s{sD}, {SORT}
        v_mov_b32 v{t7}, {S2C}
        v_lshlrev_b32 v{t5}, 4, v{TID}
        v_add_u32 v{t6}, {SORT}, v{t5}
        s_mul_i32 s{sB}, s{sT}, {EC * 8}
        s_add_u32 s{sB}, s{sB}, {W_RECS}
        s_waitcnt lgkmcnt(0)
        v_add_u32 v{DV}, v{DV}, v{RK}
        v_add_u32 v{DV + 1}, v{DV + 1}, v{RK + 1}
        v_lshl_add_u32 v{DV}, v{DV}, 3, s{sD}
        v_lshl_add_u32 v{DV + 1}, v{DV + 1}, 3, s{sD}
        ds_write_b64 v{DV}, {vr(RV, 2)}
        ds_write_b64 v{DV + 1}, {vr(RV + 2, 2)}
        s_mov_b64 exec, 1
        ds_add_u32 v{t7}, v{t4}
        s_mov_b64 exec, -1
        """)
        self.spin(S2C, 5, t7, f"ds_read_b128 {vr(SQ, 4)}, v{t6}")
        a(f"buffer_store_dwordx4 {vr(SQ, 4)}, v{t5}, {sr(sWS, 4)}, s{sB} offen sc1")
        self.stamp("binned")

    def build(self):
        a = self.a
        t0, t1, t2, t3, t4, t5, t6, t7 = range(58, 66)
        PQ = 24
        UQ = 108
        u0, u1, u2, u3 = 57, 58, 59, 60

        if self.stamps and "dbg" not in self.opts:
            a(f"s_memrealtime s[86:87]\ns_memtime {sr(self.STAMP_REGS[0], 2)}")
        if "pad0" in self.opts or any(o.startswith("padat=") for o in self.opts):
            a("s_memrealtime s[96:97]")
        a(f"""
        s_cmp_ge_u32 s{sT}, {NT}
        s_cbranch_scc1 L_end
        s_load_dwordx16 s[40:55], s[0:1], 0
        s_load_dwordx2 s[56:57], s[0:1], 64
        v_and_b32 v{LANE}, 63, v{TID}
        """)
        if "nocodepf" not in self.opts:
            a(f"""
            s_getpc_b64 s[4:5]
            L_pc:
            """)
            if "slicepf" not in self.opts:
                a(f"""
                v_lshlrev_b32 v{t0}, 4, v{TID}
                v_min_u32 v{t0}, L_end-L_pc-12, v{t0}
                global_load_dwordx4 {vr(AC2 + 8, 4)}, v{t0}, s[4:5]
                """)
            else:
                a(f"""
                s_lshr_b32 s6, s{sT}, 3
                s_and_b32 s6, s6, 31
                s_lshl_b32 s6, s6, 10
                v_lshl_add_u32 v{t0}, v{TID}, 4, s6
                v_min_u32 v{t0}, L_code_end-L_pc-16, v{t0}
                v_cmp_gt_u32 vcc, 64, v{TID}
                s_cbranch_vccz L_nopf
                global_load_dwordx4 {vr(AC2 + 8, 4)}, v{t0}, s[4:5]
                L_nopf:
                """)
        a(f"""
        v_lshrrev_b32 v{t0}, 6, v{TID}
        v_mov_b32 v{t6}, 0
        v_lshlrev_b32 v{t7}, 2, v{TID}
        v_readfirstlane_b32 s{sW}, v{t0}
        v_add_u32 v{t7}, {HIST}, v{t7}
        s_cmp_lt_u32 s{sW}, 4
        s_cbranch_scc1 L_z1
        s_cmp_gt_u32 s{sW}, 5
        s_cbranch_scc1 L_z2
        v_add_u32 v{t7}, {CNTN - HIST - 1024}, v{t7}
        L_z1:
        ds_write_b32 v{t7}, v{t6}
        L_z2:
        v_lshrrev_b32 v{t3}, 5, v{TID}
        v_and_b32 v{t4}, 31, v{TID}
        v_and_b32 v{t5}, 15, v{t3}
        v_xor_b32 v{t6}, v{t5}, v{t4}
        v_lshlrev_b32 v{t6}, 4, v{t6}
        s_mul_i32 s{sB}, s{sT}, {T * 512}
        v_lshl_add_u32 v{t6}, v{t3}, 9, v{t6}
        v_add_u32 v{GO}, s{sB}, v{t6}
        v_and_b32 v{t6}, 3, v{t5}
        v_lshrrev_b32 v{t7}, 1, v{t5}
        v_and_b32 v{t7}, 4, v{t7}
        v_or_b32 v{t6}, v{t6}, v{t7}
        v_lshlrev_b32 v{t6}, 1, v{t6}
        v_xor_b32 v{t6}, v{t6}, v{t4}
        v_lshlrev_b32 v{t6}, 4, v{t6}
        v_lshl_add_u32 v{WOFF}, v{t5}, 9, v{t6}
        s_and_b32 s{sW1K}, s{sW}, 7
        s_lshl_b32 s{sW1K}, s{sW1K}, 10
        """)
        if self.stamps:
            a(f"v_mov_b32 v{STAMPV}, 0")
            for r in self.STAMP_REGS[1:5]:
                a(f"s_mov_b32 s{r}, 0")
        a("s_waitcnt lgkmcnt(0)")

        def srd(s, p, nbytes):
            a(f"""
            s_mov_b32 s{s}, s{p}
            s_mov_b32 s{s + 1}, s{p + 1}
            s_mov_b32 s{s + 2}, {nbytes}
            s_mov_b32 s{s + 3}, 0x20000
            """)

        srd(sDST, 46, E * 4)
        srd(sSRC, 44, E * 4)
        srd(sEA, 42, E * 2)
        srd(sX, 40, N * 512)
        srd(sWM, 48, 513 * 512)
        srd(sWU, 50, 512 * 512)
        srd(sWS, 56, WS_SIZE)
        a("s_barrier")
        if self.opt("pad", 0) and "pad0" not in self.opts:
            a("s_memrealtime s[96:97]")
        self.stamp("start")
        self.stamp("bar0")
        EPV = W3
        a(f"""
        v_mov_b32 v{t0}, {W_EPOCH}
        s_cmp_ge_u32 s{sW}, 8
        s_cbranch_scc1 L_role_l
        s_cmp_ge_u32 s{sW}, 5
        s_cbranch_scc1 L_role_u
        s_setprio 3
        v_lshlrev_b32 v{t6}, 3, v{TID}
        v_lshlrev_b32 v{t7}, 2, v{TID}
        s_mul_i32 s{sA}, s{sT}, {EC * 4}
        s_mul_i32 s{sB}, s{sT}, {EC * 2}
        buffer_load_dwordx2 v[24:25], v{t6}, {sr(sDST, 4)}, s{sA} offen
        buffer_load_dwordx2 v[26:27], v{t6}, {sr(sSRC, 4)}, s{sA} offen
        buffer_load_dword v28, v{t7}, {sr(sEA, 4)}, s{sB} offen
        buffer_load_dwordx2 {vr(EPV, 2)}, v{t0}, {sr(sWS, 4)}, 0 offen
        s_sub_u32 s{sA}, s{sW}, 1
        s_and_b32 s{sA}, s{sA}, 7
        s_mul_i32 s{sD}, s{sA}, {NT}
        s_add_u32 s{sD}, s{sD}, s{sT}
        s_lshl_b32 s{sA}, s{sA}, 10
        s_add_u32 m0, s{sA}, {SLOT[3]}
        s_and_b32 s{sA}, s{sD}, 7
        s_bfe_u32 s{sB}, s{sD}, 0x40003
        s_lshr_b32 s{sC}, s{sD}, 7
        s_lshl_b32 s{sUO}, s{sB}, 4
        s_lshl_b32 s{sUG}, s{sC}, 3
        s_add_u32 s{sUO}, s{sUO}, s{sUG}
        s_add_u32 s{sUO}, s{sUO}, s{sA}
        s_lshl_b32 s{sUG}, s{sUO}, 5
        s_add_u32 s{sUG}, s{sUG}, {W_UTAG}
        s_lshl_b32 s{sUO}, s{sUO}, 10
        s_add_u32 s{sUO}, s{sUO}, {W_UT}
        s_lshl_b32 s{sA}, s{sA}, 5
        s_lshl_b32 s{sB}, s{sB}, 5
        s_cmp_lt_u32 s{sD}, 256
        s_cselect_b32 s{sB}, s{sB}, {OOB}
        s_cselect_b32 s{sUO}, s{sUO}, {OOB}
        s_cselect_b32 s{sUG}, s{sUG}, {OOB}
        v_lshrrev_b32 v{t6}, 1, v{LANE}
        v_add_u32 v{t6}, s{sA}, v{t6}
        v_and_b32 v{t5}, 1, v{LANE}
        v_lshlrev_b32 v{t5}, 4, v{t5}
        s_cmp_eq_u32 s{sC}, 0
        s_cbranch_scc1 L_pc_u1
        v_and_b32 v{t7}, 3, v{t6}
        v_lshrrev_b32 v{t6}, 2, v{t6}
        v_lshl_add_u32 v{t6}, v{t7}, 6, v{t6}
        v_add_u32 v{t6}, 256, v{t6}
        L_pc_u1:
        v_lshl_add_u32 v{t6}, v{t6}, 9, v{t5}
        buffer_load_dwordx4 v{t6}, {sr(sWU, 4)}, s{sB} offen lds
        s_branch L_role_done
        L_role_u:
        buffer_load_dwordx2 {vr(EPV, 2)}, v{t0}, {sr(sWS, 4)}, 0 offen
        v_subrev_u32 v{t3}, 10, v{t3}
        s_mul_i32 s{sB}, s{sT}, {T * 512}
        s_lshl_b32 s{sA}, s{sW}, 10
        """)
        for i in range(7):
            if i == 6:
                a(f"""
                s_cmp_eq_u32 s{sW}, 7
                s_cselect_b32 s{sC}, 2, 0
                v_subrev_u32 v{t3}, s{sC}, v{t3}
                s_lshl_b32 s{sC}, s{sC}, 9
                s_sub_u32 s{sA}, s{sA}, s{sC}
                """)
            a(f"""
            v_and_b32 v{t6}, 15, v{t3}
            v_xor_b32 v{t6}, v{t6}, v{t4}
            v_lshlrev_b32 v{t6}, 4, v{t6}
            s_add_u32 m0, s{sA}, {XB - 5120 + 3072 * i}
            v_lshl_add_u32 v{t6}, v{t3}, 9, v{t6}
            v_add_u32 v{t3}, 6, v{t3}
            buffer_load_dwordx4 v{t6}, {sr(sX, 4)}, s{sB} offen lds
            """)
        a(f"""
        s_branch L_role_done
        L_role_l:
        buffer_load_dwordx2 {vr(EPV, 2)}, v{t0}, {sr(sWS, 4)}, 0 offen
        s_lshr_b32 s{sA}, s{sT}, 3
        s_lshl_b32 s{sA}, s{sA}, 13
        s_add_u32 s{sA}, s{sA}, s{sW1K}
        s_lshr_b32 s{sC}, s{sA}, 1
        v_lshlrev_b32 v{t7}, 3, v{LANE}
        buffer_load_dwordx2 {vr(AC2, 2)}, v{t7}, {sr(sWM, 4)}, s{sC} offen
        s_add_u32 s{sC}, s{sC}, 131072
        buffer_load_dwordx2 {vr(AC2 + 2, 2)}, v{t7}, {sr(sWM, 4)}, s{sC} offen
        s_cmp_eq_u32 s{sW}, 15
        s_cbranch_scc0 L_role_done
        s_mov_b32 m0, {W3L}
        v_lshlrev_b32 v{t7}, 4, v{LANE}
        s_mov_b32 s{sB}, {512 * 512}
        buffer_load_dwordx4 v{t7}, {sr(sWM, 4)}, s{sB} offen lds
        L_role_done:
        """)
        UA = W3 - 9 - 5
        srd(sOUT, 52, N * 512)
        a(f"""
        s_add_u32 s{sP}, s56, {W_P}
        s_addc_u32 s{sP + 1}, s57, 0
        s_or_b32 s{sP + 1}, s{sP + 1}, {512 << 16}
        s_mov_b32 s{sP + 2}, {N}
        s_mov_b32 s{sP + 3}, 0x20000
        s_mov_b32 s{sNL2E}, {NLOG2E}
        s_mov_b32 s{sNL2E + 1}, {NLOG2E}
        s_mov_b32 s{sNLN2}, {NLN2}
        s_mov_b32 s{sNLN2 + 1}, {NLN2}
        s_lshl_b32 s{sWK}, s{sW}, 10
        s_lshr_b32 s{sHI}, s{sW}, 3
        s_lshl_b32 s{sHI}, s{sHI}, 13
        s_mov_b32 s{sGEN}, 0
        v_and_b32 v{t0}, 15, v{LANE}
        v_lshrrev_b32 v{t1}, 4, v{LANE}
        v_bfe_u32 v{t2}, v{LANE}, 2, 2
        v_and_b32 v{t3}, 3, v{LANE}
        s_lshl_b32 s{sB}, s{sW}, 1
        v_and_b32 v{t4}, 1, v{t1}
        v_lshl_or_b32 v{t4}, v{t4}, 2, v{t2}
        v_lshlrev_b32 v{t4}, 1, v{t4}
        v_lshrrev_b32 v{t5}, 1, v{t3}
        v_add_u32 v{t5}, s{sB}, v{t5}
        v_xor_b32 v{t4}, v{t4}, v{t5}
        v_lshlrev_b32 v{t4}, 4, v{t4}
        v_and_b32 v{t5}, 1, v{t3}
        v_lshl_add_u32 v{t4}, v{t5}, 3, v{t4}
        v_lshl_add_u32 v{t5}, v{t1}, 3, v{t2}
        v_lshl_add_u32 v{TR0}, v{t5}, 9, v{t4}
        v_add_u32 v{TR1}, 65536, v{TR0}
        v_lshlrev_b32 v{t5}, 5, v{t5}
        v_lshl_add_u32 v{UA + 9}, v{t3}, 3, v{t5}
        v_lshlrev_b32 v{t5}, 9, v{t0}
        v_add_u32 v{t5}, {XB}, v{t5}
        """)
        for k in range(4):
            a(f"""
            v_add_u32 v{t4}, {4 * k}, v{t1}
            v_xor_b32 v{t4}, v{t4}, v{t0}
            v_lshl_add_u32 v{XA + k}, v{t4}, 4, v{t5}
            """)
        a(f"""
        v_lshrrev_b32 v{t4}, 1, v{t1}
        v_add_u32 v{t4}, s{sB}, v{t4}
        v_xor_b32 v{t4}, v{t4}, v{t0}
        v_lshlrev_b32 v{t4}, 4, v{t4}
        v_and_b32 v{t6}, 1, v{t1}
        v_lshl_add_u32 v{t4}, v{t6}, 3, v{t4}
        v_lshl_add_u32 v{t4}, v{t0}, 9, v{t4}
        v_add_u32 v{STG}, {PS}, v{t4}
        v_lshlrev_b32 v{STR}, 4, v{TID}
        v_add_u32 v{STR}, {PS}, v{STR}
        v_add_u32 v{GO2}, 16384, v{GO}
        s_cmp_lt_u32 s{sW}, 4
        s_cbranch_scc1 L_go2
        v_mov_b32 v{GO2}, {OOB}
        L_go2:
        s_cmp_lt_u32 s{sW}, 5
        s_cbranch_scc0 L_nobin
        """)
        self.binning()
        a(f"""
        s_cmp_eq_u32 s{sW}, 0
        s_cbranch_scc0 L_piece
        v_lshlrev_b32 v{t0}, 3, v{LANE}
        v_add_u32 v{t0}, {HIST}, v{t0}
        ds_read_b64 {vr(66, 2)}, v{t0}
        ds_read_b64 {vr(68, 2)}, v{t0} offset:{BASE - HIST}
        ds_read_b64 {vr(70, 2)}, v{t0} offset:512
        ds_read_b64 {vr(72, 2)}, v{t0} offset:{BASE - HIST + 512}
        v_lshlrev_b32 v{t1}, 4, v{LANE}
        s_lshl_b32 s{sB}, s{sT}, 11
        s_add_u32 s{sB}, s{sB}, {W_OFFS}
        s_waitcnt lgkmcnt(0)
        """)
        for i in range(4):
            h, b = 66 + 4 * (i >> 1) + (i & 1), 68 + 4 * (i >> 1) + (i & 1)
            a(f"""
            v_lshl_or_b32 v{ACC + 2 * i}, v{h}, 10, v{b}
            v_mov_b32 v{ACC + 2 * i + 1}, s{sTAG}
            v_or_b32 v{ACC + 2 * i}, s{sTLO}, v{ACC + 2 * i}
            """)
        a(f"""
        buffer_store_dwordx4 {vr(ACC, 4)}, v{t1}, {sr(sWS, 4)}, s{sB} offen sc1
        buffer_store_dwordx4 {vr(ACC + 4, 4)}, v{t1}, {sr(sWS, 4)}, s{sB} offen offset:1024 sc1
        s_setprio 0
        s_branch L_bin_done
        L_piece:
        s_setprio 0
        s_cmp_lt_u32 s{sW}, 3
        s_cbranch_scc0 L_bin_done
        s_lshl_b32 s{sA}, s{sW}, 10
        s_add_u32 s{sA}, s{sA}, {SLOT[3] - 1024}
        v_add_u32 v{UA + 9}, s{sA}, v{UA + 9}
        v_lshlrev_b32 v{W3 + 2}, 4, v{LANE}
        s_waitcnt vmcnt(1)
        ds_read_b64_tr_b16 {vr(AC2 + 4, 2)}, v{UA + 9}
        ds_read_b64_tr_b16 {vr(AC2 + 6, 2)}, v{UA + 9} offset:128
        s_waitcnt lgkmcnt(0)
        buffer_store_dwordx4 {vr(AC2 + 4, 4)}, v{W3 + 2}, {sr(sWS, 4)}, s{sUO} offen sc1
        s_branch L_bin_done
        L_nobin:
        s_cmp_ge_u32 s{sW}, 8
        s_cbranch_scc1 L_bin_ld
        v_mov_b32 v{W3 + 2}, {XCNT}
        v_mov_b32 v{W3 + 3}, 1
        s_mov_b64 exec, 1
        s_waitcnt vmcnt(4)
        ds_add_u32 v{W3 + 2}, v{W3 + 3}
        s_mov_b64 exec, -1
        s_branch L_bin_done
        L_bin_ld:
        """)
        self.dma_body(0, 0)
        a(f"""
        s_waitcnt vmcnt(6)
        L_bin_done:
        """)
        self.tag_calc()
        self.xpreload(UA + 9)
        self.stamp("xpre")

        R0 = 116
        XBUF = (80, 92)
        fbuf = [UF + 4 * i for i in range(6)] + [56, 60]
        OV, o0, o1, o2, o3, UV = 20, 22, 23, 16, 17, 116

        def frag(i):
            a(f"""
            s_add_u32 s{sB}, s{sUB}, {1024 * i}
            buffer_load_dwordx4 {vr(fbuf[i], 4)}, v{FO}, {sr(sWS, 4)}, s{sB} offen sc1
            """)
            self.vm("LN", f"f{i}")

        def x3(i):
            for rb in range(3):
                a(f"ds_read_b128 {vr(XBUF[i & 1] + 4 * rb, 4)}, v{XA + (i & 3)} offset:{rb * 8192 + (i >> 2) * 256}")
                self.lq.append(f"x{i}")

        def consume(i):
            self.vmwait({f"f{i}"})
            if f"x{i}" in self.lq:
                self.lwait(f"x{i}")
            for rb in range(3):
                cin = "0" if i == 0 else vr(ACC + 4 * rb, 4)
                a(f"v_mfma_f32_16x16x32_bf16 {vr(ACC + 4 * rb, 4)}, {vr(fbuf[i], 4)}, {vr(XBUF[i & 1] + 4 * rb, 4)}, {cin}")
            if i + 2 < 8:
                x3(i + 2)

        def utag_issue(dst, adr):
            a(f"""
            v_lshlrev_b32 v{adr}, 5, v{LANE}
            s_lshl_b32 s{sC}, s{sW}, 9
            s_add_u32 s{sC}, s{sC}, {W_UTAG}
            s_mov_b64 exec, 0xffff
            buffer_load_dwordx2 {vr(dst, 2)}, v{adr}, {sr(sWS, 4)}, s{sC} offen sc1
            s_mov_b64 exec, -1
            """)

        def utag_check(dst):
            a(f"""
            v_cmp_ne_u64 vcc, {sr(sTAG, 2)}, {vr(dst, 2)}
            s_nop 1
            s_and_b32 s{sU}, vcc_lo, 0xffff
            """)

        def offs_issue():
            a(f"""
            s_and_b32 s{sC}, s{sT}, 7
            s_lshl_b32 s{sC}, s{sC}, 8
            s_and_b32 s{sB}, s{sT}, 0xf8
            s_add_u32 s{sC}, s{sC}, s{sB}
            s_add_u32 s{sC}, s{sC}, {W_OFFS}
            buffer_load_dwordx2 {vr(OV, 2)}, v{o0}, {sr(sWS, 4)}, s{sC} offen sc1
            """)

        def offs_check():
            a(f"""
            v_xor_b32 v{o1}, s{sTLO}, v{OV}
            v_cmp_ne_u32 vcc, s{sTAG}, v{OV + 1}
            s_mov_b32 s{sB}, 0x100000
            v_cmp_le_u32 s[40:41], s{sB}, v{o1}
            s_nop 1
            s_or_b64 vcc, vcc, s[40:41]
            s_and_b64 vcc, vcc, {sr(sVAL, 2)}
            """)

        def parse():
            a(f"""
            v_cndmask_b32 v{OV}, 0, v{o1}, {sr(sVAL, 2)}
            v_and_b32 v{o1}, 3, v{TID}
            v_mul_u32_u24 v{o0}, {EC * 8}, v{RBA}
            v_and_b32 v{o2}, 0x3ff, v{OV}
            v_bfe_u32 v{o3}, v{OV}, 10, 10
            v_add_u32 v{o2}, v{o2}, v{o1}
            v_lshl_add_u32 v{o0}, v{o2}, 3, v{o0}
            v_add_u32 v{RBA}, {W_RECS}, v{o0}
            v_sub_u32 v{CQ}, v{o3}, v{o1}
            v_cmp_lt_u32 vcc, {4 * NPASS}, v{o3}
            """)
            lab = a.newlabel("nomax")
            a(f"""
            s_cbranch_vccz {lab}
            v_mov_b32 v{o2}, {MISC}
            s_mov_b64 exec, vcc
            ds_max_u32 v{o2}, v{o3}
            s_mov_b64 exec, -1
            s_waitcnt lgkmcnt(0)
            {lab}:
            """)
            self.rec_issue(SCRP)

        slot = [0, 1, 2, 3, 0, 1, 0, 3]
        nearly = self.opt("early", 2)
        edel = self.opt("edel", 0)
        issue_at = {0: 3}
        for c in range(4, 4 + nearly):
            issue_at[c - 3 + edel] = c

        def gstep(k, lgkm=False, post=None):
            self.vmwait({f"c{k}"})
            self.barrier(f"B{k}", lgkm=lgkm)
            if post:
                post()
            self.trreads(slot[k])
            c = issue_at.get(k)
            self.mfmas(AC2, k & 3, (lambda sp: self.dma_all(c, slot[c], sp)) if c else None)
            if k not in (3, 7):
                self.xreads((k + 1) & 3)

        def look():
            a(f"""
            v_mov_b32 v{o1}, {OOB}
            v_lshrrev_b32 v{RBA}, 2, v{TID}
            v_lshlrev_b32 v{o0}, 11, v{RBA}
            s_movk_i32 s{sA}, {NT}
            v_cmp_gt_u32 {sr(sVAL, 2)}, s{sA}, v{RBA}
            s_mov_b32 s{sP0}, 0
            s_mov_b32 s{sNP}, {NPASS}
            s_mov_b32 s{sMODE}, 0
            v_cndmask_b32 v{o0}, v{o1}, v{o0}, {sr(sVAL, 2)}
            """)
            offs_issue()
            if "utearly" in self.opts:
                utag_issue(UV, UV + 2)
                self.vm("LN", "offs")
            self.vm("LN", "offs")

        def piece_tag():
            a(f"s_sub_u32 s{sA}, s{sW}, 1\ns_cmp_lt_u32 s{sA}, 2\ns_cbranch_scc0 L_notag\ns_waitcnt vmcnt(4)")
            self.tag_store(sUG, 116)
            a.label("L_notag")

        kis = self.opt("kis", 3)
        recpos = self.opt("recpos", 2)

        def try_records():
            self.vmwait({"offs"})
            if "utearly" in self.opts:
                utag_check(UV)
            offs_check()
            a(f"s_mov_b32 s{sE}, 0\ns_cbranch_scc1 L_late")
            parse()
            a(f"s_mov_b32 s{sE}, 1\ns_branch L_intime\nL_late:")
            offs_issue()
            offs_issue()
            a.label("L_intime")
            self.vm("LN", "rec", 2)

        for k in range(4):
            gstep(k, post=piece_tag if k == self.opt('kpt', 0) else None)
            if k == kis:
                look()
            if k == 2 and recpos == -1:
                try_records()
        for rb in range(3):
            for h in range(2):
                a(f"v_pk_mul_f32 {vr(AC2 + 4 * rb + 2 * h, 2)}, {vr(AC2 + 4 * rb + 2 * h, 2)}, {sr(sNL2E, 2)} op_sel_hi:[1,0]")
            a(f"v_cvt_pk_bf16_f32 v{AC2 + 4 * rb}, v{AC2 + 4 * rb}, v{AC2 + 4 * rb + 1}")
            a(f"v_cvt_pk_bf16_f32 v{AC2 + 4 * rb + 1}, v{AC2 + 4 * rb + 2}, v{AC2 + 4 * rb + 3}")
            a(f"ds_write_b64 v{STG}, {vr(AC2 + 4 * rb, 2)} offset:{rb * 8192}")
        if recpos == 0:
            try_records()
        a("s_setprio 3")
        self.barrier("PS")
        a(f"""
        ds_read_b128 {vr(AC2, 4)}, v{STR}
        ds_read_b128 {vr(AC2 + 4, 4)}, v{STR} offset:16384
        """)
        self.xreads(0)
        a(f"""
        s_mov_b32 s{sB}, {W_P}
        s_waitcnt lgkmcnt(3)
        buffer_store_dwordx4 {vr(AC2, 4)}, v{GO}, {sr(sWS, 4)}, s{sB} offen sc1
        s_waitcnt lgkmcnt(2)
        buffer_store_dwordx4 {vr(AC2 + 4, 4)}, v{GO2}, {sr(sWS, 4)}, s{sB} offen sc1
        s_setprio 0
        """)
        self.vm("LN", "p", 2)
        self.stamp("pst")
        if recpos == 2:
            try_records()
        self.stampval("E", sE)

        def fb():
            tmp = ACC + 8 if kfb == 6 else ACC
            if "repl" not in self.opts:
                a(f"s_lshl_b32 s{sB}, s{sT}, 5\ns_add_u32 s{sB}, s{sB}, {W_FB}")
                self.tag_store(sB, tmp)
                return
            a(f"""
            s_lshl_b32 s{sB}, s{sT}, 4
            s_add_u32 s{sB}, s{sB}, {W_FR}
            v_mov_b32 v{tmp}, s{sTAG}
            v_mov_b32 v{tmp + 1}, s{sTAG + 1}
            v_lshlrev_b32 v{tmp + 2}, 12, v{LANE}
            s_mov_b64 exec, 0xff
            buffer_store_dwordx2 {vr(tmp, 2)}, v{tmp + 2}, {sr(sWS, 4)}, s{sB} offen sc1
            s_mov_b64 exec, -1
            """)

        todo = [(c, m) for c in range(4 + nearly, 8) for m in range(2)]
        kfb = self.opt("kfb", 5)

        def issue(n):
            nonlocal todo
            for c, m in todo[:n]:
                self.dma_all(c, slot[c], m)
            todo = todo[n:]

        if nearly < 2:
            issue(self.opt("npre", 2))
        for k in (4, 5):
            if k == kfb:
                self.vmwait({"p"})
                self.stamp("ack")
            while todo and todo[0][0] <= k:
                issue(1)
            gstep(k, post=(lambda: self.wave0(fb)) if k == kfb else None)
            if k == 4 and "utearly" not in self.opts:
                utag_issue(24, 26)
                self.vm("LN", "utag")
            if k >= kfb and k == 4 and nearly < 2:
                issue(2)
        a(f"""
        s_lshl_b32 s{sUB}, s{sW}, 14
        s_add_u32 s{sUB}, s{sUB}, {W_UT}
        """)
        self.vmwait({"rec"})
        a(f"""
        s_cmp_eq_u32 s{sE}, 1
        s_cbranch_scc1 L_recs_ok
        s_mov_b32 s{sD}, 0
        L_offs_chk:
        """)
        offs_check()
        a(f"""
        s_cbranch_scc0 L_offs_ok
        s_add_u32 s{sD}, s{sD}, 1
        s_cmp_gt_u32 s{sD}, {POLL_LIMIT}
        s_cbranch_scc1 L_offs_ok
        """)
        offs_issue()
        a("s_waitcnt vmcnt(0)\ns_branch L_offs_chk\nL_offs_ok:")
        parse()
        a("s_waitcnt vmcnt(0)\nL_recs_ok:")
        self.stamp("rec")
        self.clean(SCRX)
        self.count(SCRX)
        issue(8)
        if kfb == 6:
            self.vmwait({"p"})
            self.stamp("ack")
        self.barrier("C1")
        if kfb == 6:
            self.wave0(fb)
        if "utearly" not in self.opts:
            self.vmwait({"utag"})
            utag_check(24)
        a(f"""
        v_lshlrev_b32 v{FO}, 4, v{LANE}
        s_cmp_eq_u32 s{sU}, 0
        s_cbranch_scc1 L_tags_ok
        s_mov_b32 s{sD}, 0
        L_tags:
        """)
        utag_issue(24, 26)
        a(f"s_add_u32 s{sD}, s{sD}, 1\ns_cmp_gt_u32 s{sD}, {POLL_LIMIT}\ns_waitcnt vmcnt(0)\ns_cbranch_scc1 L_tags_ok")
        utag_check(24)
        a("s_cbranch_scc1 L_tags\nL_tags_ok:")
        frag(0)
        frag(1)
        self.lists(SCRX, "L_gen1")
        a.label("L_gen1_back")
        self.side_fill(ACC + 10, ACC + 3)
        pp = self.opt("pp", 1)
        frag(2)
        frag(3)
        if pp == 0:
            self.wave0(self.poll_issue)
        gstep(6, lgkm=True)
        if pp == 1:
            self.wave0(self.poll_issue)
        a(f"s_mov_b32 s{sB}, {W3L}\nv_lshl_add_u32 v{ACC + 3}, v{LANE}, 1, s{sB}")
        for r in range(4):
            a(f"ds_read_u16_d16_hi v{W3 + r}, v{ACC + 3} offset:{128 * r}")
        frag(4)
        frag(5)
        self.setup(69)
        if pp == 2:
            self.wave0(self.poll_issue)
        frag(6)
        frag(7)
        a(f"""
        v_and_b32 v75, 15, v{LANE}
        v_cmp_gt_u32 {sr(sEX, 2)}, 8, v75
        v_mul_u32_u24 v74, {QS}, v75
        v_and_b32 v75, 48, v{LANE}
        s_lshl_b32 s{sB}, s{sW}, 6
        v_add3_u32 v74, v74, v75, s{sB}
        """)
        self.slot_consts()
        self.stamp("pre")

        def pw():
            self.poll_wait()
            a(f"s_cmp_eq_u32 s{sT}, 0\ns_cbranch_scc0 L_noep\ns_mov_b32 s{sB}, {W_EPOCH}")
            self.tag_store(sB, POLLB)
            a.label("L_noep")
        self.wave0(pw)
        self.vmwait({"c7"})
        self.barrier("C2")

        def g(k):
            a(f"v_mov_b32 v{IA}, v{IX0 + k}")
            self.gather(k)
            self.vm("LN", "g")

        self.trreads(slot[7])
        self.mfmas(AC2, 3, g if self.opt("gp", 1) == 1 else None)
        if self.opt("gp", 1) == 2:
            g(0)
            g(1)
        x3(0)
        x3(1)
        for rb in range(3):
            for h in range(2):
                a(f"v_pk_mul_f32 {vr(AC2 + 4 * rb + 2 * h, 2)}, {vr(AC2 + 4 * rb + 2 * h, 2)}, {sr(sNL2E, 2)} op_sel_hi:[1,0]")
            if rb == 2:
                a(f"s_mov_b64 exec, {sr(sEX, 2)}")
            a(f"ds_write_b128 v74, {vr(AC2 + 4 * rb, 4)} offset:{QB + rb * 16 * QS}")
            self.lq.append("q")
        a("s_mov_b64 exec, -1")
        self.stamp("q")
        g2, g3 = self.opt("g2", 2), self.opt("g3", 5)
        for i in range(8):
            consume(i)
            if i == 0:
                a("s_barrier")
            if i == g2:
                g(2)
            if i == g3:
                g(3)
        a(f"v_mov_b32 v{IA}, v{IX0 + 4}")
        for r in range(4):
            a(f"v_mul_f32 v{W3 + r}, s{sNL2E}, v{W3 + r}")
        for h in range(6):
            a(f"v_pk_mul_f32 {vr(ACC + 2 * h, 2)}, {vr(ACC + 2 * h, 2)}, {sr(sNL2E, 2)} op_sel_hi:[1,0]")
        self.lane_consts()
        self.barrier("R")
        a(f"""
        s_cmp_eq_u32 s{sGEN}, 0
        s_cbranch_scc0 L_generic
        s_and_b32 s{sZ + 1}, s{sZ + 1}, 0xff
        s_or_b32 s{sA}, s{sZ}, s{sZ + 1}
        s_or_b32 s{sA}, s{sA}, s{sMODE}
        s_cbranch_scc1 L_clear
        L_r_done:
        s_cmp_gt_i32 s{sNE}, 0
        s_cbranch_scc0 L_empty
        """)
        if "noprio" not in self.opts:
            a("s_setprio 3")
        a(f"""
        ds_read_b64 {vr(EE[0], 2)}, v{EA}
        v_add_u32 v{QA}, s{sQ0}, v{L4}
        ds_read2st64_b32 {vr(Q, 2)}, v{QA} offset0:0 offset1:1
        ds_read2st64_b32 {vr(Q + 2, 2)}, v{QA} offset0:2 offset1:3
        v_xor_b32 v{AG}, s{sAG0}, v{L8}
        v_add_u32 v{CNA}, {CNTN}, v{L4}
        v_mov_b32 v{TZ}, 0
        ds_write_b32 v{CNA}, v{TZ}
        v_mov_b64 {vr(NN, 2)}, 0
        v_mov_b64 {vr(NN + 2, 2)}, 0
        v_mov_b32 v{DD}, 1.0
        v_mov_b32 v{DD + 1}, 1.0
        v_mov_b32 v{DD + 2}, 1.0
        v_mov_b32 v{DD + 3}, 1.0
        v_mov_b64 {vr(CK2, 2)}, 0
        v_mov_b32 v{CK1}, 0
        s_mov_b32 s{sI}, 0
        s_or_b32 s{sTM}, s{sMASK}, {0xff if "u2early" in self.opts else 0}
        s_mov_b32 s{sW11}, {0 if "u2early" in self.opts else -1}
        """)
        self.stamp("setup")
        a("s_waitcnt vmcnt(3)")
        self.stamp("row0")
        self.p_reads(0, 0)
        a("s_waitcnt lgkmcnt(0)")
        self.gather(0)
        if "u2early" in self.opts:
            self.u2_loads()
        a(f"""
        s_cmp_eq_u32 s{sMODE}, 0
        s_cbranch_scc0 L_enter_x
        """)
        self.main_loop(False, "L_main_done")
        a.reset_hist()
        a.label("L_main_done")
        a("s_setprio 0")
        self.stamp("loop")
        a(f"""
        v_add_f32 v{CK2}, v{CK2}, v{CK2 + 1}
        v_mov_b32 v{TM}, {BIG}
        v_cmp_u_f32 vcc, v{CK2}, v{CK2}
        v_cmp_nle_f32 s[40:41], v{CK1}, v{TM}
        s_nop 1
        s_or_b64 vcc, vcc, s[40:41]
        s_cbranch_scc0 L_after
        v_mov_b32 v{TM}, {MISC + 4}
        v_mov_b32 v{TM + 1}, 1
        ds_write_b32 v{TM}, v{TM + 1}
        L_after:
        v_xor_b32 v{STG2}, 0x80, v{STG}
        v_and_b32 v{TM}, 8, v{LANE}
        v_subrev_u32 v{STG2}, 4092, v{STG2}
        v_cmp_eq_u32 vcc, 0, v{TM}
        v_cndmask_b32 v{STG2}, v{STG2}, v{STG}, vcc
        s_waitcnt vmcnt(0)
        """)
        self.barrier("M")
        a(f"""
        v_mov_b32 v{TM}, {MISC + 4}
        ds_read_b32 v{TM + 1}, v{TM}
        """)
        if "oldfin" in self.opts:
            order = [(s_, rb) for s_ in range(8) for rb in range(3)]
        else:
            order = [(s_, rb) for rb in range(3) for s_ in range(8)]
        NB = 12

        def rd(n):
            s_, rb = order[n]
            a(f"ds_read_b128 {vr(XF + 4 * (n % NB), 4)}, v{XA + (s_ & 3)} offset:{rb * 8192 + (s_ >> 2) * 256}")

        for n in range(NB):
            rd(n)
        a(f"""
        s_cmp_eq_u32 s{sMODE}, 0
        s_cbranch_scc0 L_slow_next
        s_waitcnt lgkmcnt(12)
        v_readfirstlane_b32 s{sA}, v{TM + 1}
        s_nop 1
        s_cmp_eq_u32 s{sA}, 0
        s_cbranch_scc0 L_redo
        L_final:
        """)
        TE = 104

        def act(rb):
            ops = []
            for r in range(4):
                ops.append(f"v_exp_f32 v{TE + 4 * rb + r}, v{ACC + 4 * rb + r}")
            for r in range(4):
                ops.append(f"v_add_f32 v{TE + 4 * rb + r}, 1.0, v{TE + 4 * rb + r}")
            for r in range(4):
                ops.append(f"v_rcp_f32 v{TE + 4 * rb + r}, v{TE + 4 * rb + r}")
            for r in range(4):
                ops.append(f"v_mul_f32 v{ACC + 4 * rb + r}, s{sNLN2}, v{ACC + 4 * rb + r}")
            for r in range(4):
                ops.append(f"v_mul_f32 v{ACC + 4 * rb + r}, v{ACC + 4 * rb + r}, v{TE + 4 * rb + r}")
            ops.append(f"v_cvt_pk_bf16_f32 v{TE + 4 * rb}, v{ACC + 4 * rb}, v{ACC + 4 * rb + 1}")
            ops.append(f"v_cvt_pk_bf16_f32 v{TE + 4 * rb + 1}, v{ACC + 4 * rb + 2}, v{ACC + 4 * rb + 3}")
            ops.append(f"ds_write_b64 v{STG}, {vr(TE + 4 * rb, 2)} offset:{rb * 8192}")
            return ops

        pend = []
        lq = [f"r{n}" for n in range(NB)]
        for n in range(24):
            s_, rb = order[n]
            last = lq.index(f"r{n}")
            a(f"s_waitcnt lgkmcnt({len(lq) - 1 - last})")
            lq = lq[last + 1:]
            a(f"v_mfma_f32_16x16x32_bf16 {vr(ACC + 4 * rb, 4)}, {vr(UF + 4 * s_, 4)}, {vr(XF + 4 * (n % NB), 4)}, {vr(ACC + 4 * rb, 4)}")
            if n + NB < 24:
                rd(n + NB)
                lq.append(f"r{n + NB}")
            if "oldfin" not in self.opts:
                if n in (9, 17):
                    pend += act(n // 8 - 1)
                for op in pend[:4]:
                    a(op)
                    if op.startswith("ds_"):
                        lq.append("w")
                pend = pend[4:]
        for op in pend:
            a(op)
        if "oldfin" in self.opts or "nofold" in self.opts:
            for rb in ([2] if "oldfin" not in self.opts else [0, 1, 2]):
                for op in act(rb):
                    a(op)
        else:
            A2 = ACC + 8
            if "nosplit" not in self.opts:
                a(f"s_waitcnt lgkmcnt(0)\ns_barrier\nds_read_b128 {vr(PQ + 8, 4)}, v{STR}")
            a(f"""
            v_mov_b32_dpp v{A2}, v{A2 + 2} row_shr:8 row_mask:0xf bank_mask:0xc
            v_mov_b32_dpp v{A2 + 1}, v{A2 + 3} row_shr:8 row_mask:0xf bank_mask:0xc
            v_exp_f32 v{TE + 8}, v{A2}
            v_exp_f32 v{TE + 9}, v{A2 + 1}
            v_pk_mul_f32 {vr(A2, 2)}, {vr(A2, 2)}, {sr(sNLN2, 2)} op_sel_hi:[1,0]
            v_pk_add_f32 {vr(TE + 8, 2)}, {vr(TE + 8, 2)}, 1.0 op_sel_hi:[1,0]
            v_rcp_f32 v{TE + 8}, v{TE + 8}
            v_rcp_f32 v{TE + 9}, v{TE + 9}
            v_pk_mul_f32 {vr(A2, 2)}, {vr(A2, 2)}, {vr(TE + 8, 2)}
            v_cvt_pk_bf16_f32 v{TE + 8}, v{A2}, v{A2 + 1}
            ds_write_b32 v{STG2}, v{TE + 8} offset:16384
            """)
            if "nosplit" not in self.opts:
                a(f"s_waitcnt lgkmcnt(1)\nbuffer_store_dwordx4 {vr(PQ + 8, 4)}, v{GO}, {sr(sOUT, 4)}, 0 offen sc1")
        self.barrier("F")
        a(f"""
        """)
        if "nosplit" in self.opts:
            a(f"""
            ds_read_b128 {vr(PQ + 8, 4)}, v{STR}
            ds_read_b128 {vr(PQ + 12, 4)}, v{STR} offset:16384
            s_waitcnt lgkmcnt(1)
            buffer_store_dwordx4 {vr(PQ + 8, 4)}, v{GO}, {sr(sOUT, 4)}, 0 offen sc1
            """)
        else:
            a(f"""
            s_cmp_lt_u32 s{sW}, 4
            s_cbranch_scc0 L_stored
            ds_read_b128 {vr(PQ + 12, 4)}, v{STR} offset:16384
            """)
        a(f"""
        s_waitcnt lgkmcnt(0)
        buffer_store_dwordx4 {vr(PQ + 12, 4)}, v{GO2}, {sr(sOUT, 4)}, 0 offen sc1
        L_stored:
        """)
        if self.opt("pad", 0):
            a(f"""
            L_pad:
            s_memrealtime s[98:99]
            s_waitcnt lgkmcnt(0)
            s_sub_u32 s98, s98, s96
            s_cmp_lt_u32 s98, {self.opt("pad", 0)}
            s_cbranch_scc1 L_pad
            """)
        if self.stamps:
            a.label("L_diag_end")
            a("s_waitcnt vmcnt(0)")
            self.stamp("end")
            a(f"""
            s_lshl_b32 s{sA}, s{sT}, 4
            s_add_u32 s{sA}, s{sA}, s{sW}
            s_lshl_b32 s{sA}, s{sA}, 8
            s_add_u32 s{sA}, s{sA}, {W_STAMP}
            v_lshlrev_b32 v{TM}, 2, v{LANE}
            buffer_store_dword v{STAMPV}, v{TM}, {sr(sWS, 4)}, s{sA} offen
            """)
        a.label("L_end")
        a("s_endpgm")
        a.reset_hist()
        a(f"""
        L_gen1:
        s_mov_b32 s{sGEN}, 1
        s_mov_b32 s{sI}, 0
        s_mov_b32 s{sNE}, 0
        s_branch L_gen1_back
        L_clear:
        v_mov_b64 {vr(XF, 2)}, 0
        v_mov_b64 {vr(XF + 2, 2)}, 0
        v_add_u32 v{XF + 4}, {AB - PS}, v{STR}
        """)
        self.zero_agg(XF + 4, XF)
        a(f"""
        s_cmp_eq_u32 s{sMODE}, 2
        s_cbranch_scc0 L_clear2
        v_add_u32 v{XF + 4}, {(AF2 - AB) & 0xffffffff}, v{XF + 4}
        """)
        self.zero_agg(XF + 4, XF)
        a(f"""
        L_clear2:
        s_waitcnt lgkmcnt(0)
        s_barrier
        s_branch L_r_done
        L_generic:
        s_waitcnt vmcnt(0) lgkmcnt(0)
        s_barrier
        s_mov_b32 s{sMODE}, 2
        v_mov_b64 {vr(XF, 2)}, 0
        v_mov_b64 {vr(XF + 2, 2)}, 0
        v_add_u32 v{XF + 4}, {AB - PS}, v{STR}
        """)
        self.zero_agg(XF + 4, XF)
        a(f"""
        s_cmp_eq_u32 s{sMODE}, 2
        s_cbranch_scc0 L_gen2
        v_add_u32 v{XF + 4}, {(AF2 - AB) & 0xffffffff}, v{XF + 4}
        """)
        self.zero_agg(XF + 4, XF)
        a(f"""
        L_gen2:
        v_add_u32 v{CNA}, {CNTN}, v{L4}
        v_mov_b32 v{TZ}, 0
        ds_write_b32 v{CNA}, v{TZ}
        s_waitcnt lgkmcnt(0)
        s_barrier
        L_round:
        """)
        self.slot_consts()
        self.lane_consts()
        self.rec_issue(SCR2)
        a("s_waitcnt vmcnt(0)")
        self.clean(SCR2)
        self.count(SCR2)
        a("s_waitcnt lgkmcnt(0)\ns_barrier")
        self.lists(SCR2, "L_narrow", first=False)
        a("s_waitcnt lgkmcnt(0)\ns_barrier")
        self.setup(SCR2.tmp)
        a(f"""
        s_waitcnt lgkmcnt(0)
        """)
        for k in range(4):
            a(f"v_mov_b32 v{IA}, v{IX0 + k}")
            self.gather(k)
        a(f"""
        v_mov_b32 v{IA}, v{IX0 + 4}
        s_branch L_r_done
        L_narrow:
        s_waitcnt lgkmcnt(0)
        s_barrier
        v_add_u32 v{CNA}, {CNTN}, v{L4}
        v_mov_b32 v{TZ}, 0
        ds_write_b32 v{CNA}, v{TZ}
        s_mov_b32 s{sNP}, 1
        s_waitcnt lgkmcnt(0)
        s_barrier
        s_branch L_round
        L_empty:
        v_add_u32 v{CNA}, {CNTN}, v{L4}
        v_mov_b32 v{TZ}, 0
        ds_write_b32 v{CNA}, v{TZ}
        """)
        self.u2_loads()
        a(f"""
        s_branch L_after
        L_slow_next:
        s_cmp_eq_u32 s{sMODE}, 1
        s_cbranch_scc1 L_final
        s_waitcnt lgkmcnt(0)
        s_add_u32 s{sP0}, s{sP0}, s{sNP}
        s_mov_b32 s{sNP}, {NPASS}
        s_max_u32 s{sA}, s{sMAXC}, {4 * NPASS}
        s_lshl_b32 s{sB}, s{sP0}, 2
        s_cmp_lt_u32 s{sB}, s{sA}
        s_cbranch_scc1 L_round
        L_convert:
        """)
        self.lane_consts()
        for i in range(3):
            a(f"s_add_u32 s{sC}, s{sW}, {16 * i}\ns_min_u32 s{sC}, s{sC}, 39\ns_lshl_b32 s{sC}, s{sC}, 9")
            self.f32_row(sC, sD)
            a(f"""
            v_add_u32 v{TM}, s{sD}, v{L4}
            ds_read2st64_b32 {vr(56 + 4 * i, 2)}, v{TM} offset0:0 offset1:1
            ds_read2st64_b32 {vr(58 + 4 * i, 2)}, v{TM} offset0:2 offset1:3
            s_bfe_u32 s{sD}, s{sC}, 0x40009
            s_lshl_b32 s{sD}, s{sD}, 4
            s_or_b32 s{sD}, s{sD}, s{sC}
            v_xor_b32 v{68 + i}, s{sD}, v{L8}
            """)
        a("s_waitcnt lgkmcnt(0)\ns_barrier")
        for i in range(3):
            a(f"""
            v_cvt_pk_bf16_f32 v{56 + 4 * i}, v{56 + 4 * i}, v{57 + 4 * i}
            v_cvt_pk_bf16_f32 v{57 + 4 * i}, v{58 + 4 * i}, v{59 + 4 * i}
            ds_write_b64 v{68 + i}, {vr(56 + 4 * i, 2)}
            """)
        a("s_waitcnt lgkmcnt(0)\ns_barrier")
        for n in range(NB):
            rd(n)
        a(f"""
        s_branch L_final
        L_redo:
        s_waitcnt lgkmcnt(0)
        s_barrier
        s_mov_b32 s{sMODE}, 1
        """)
        self.side_fill(XF, XF + 2)
        a(f"""
        s_branch L_round
        L_enter_x:
        s_cmp_eq_u32 s{sMODE}, 2
        s_cbranch_scc0 L_loop_x
        """)
        self.f32_row(sAG0, sD)
        a(f"v_add_u32 v{AG}, s{sD}, v{L4}")
        self.main_loop(True, "L_after")
        a.label("L_code_end")

    def text(self):
        hdr = f"""; Fused MPNN edge-MLP kernel, one workgroup (16 waves) per tile of 40 nodes.
; @launch grid=({NT},1,1) block=(1024,1,1) lds={LDS_TOTAL}
.amdgcn_target "amdgcn-amd-amdhsa--gfx950"
.text
.globl {NAME}_kernel
.p2align 8
.type {NAME}_kernel,@function
{NAME}_kernel:
"""
        ftr = f""".section .rodata,"a"
.p2align 6
.amdhsa_kernel {NAME}_kernel
  .amdhsa_next_free_vgpr 128
  .amdhsa_next_free_sgpr {102 if self.stamps or self.opt('pad', 0) or any(o.startswith('padat=') for o in self.opts) else 92}
  .amdhsa_accum_offset 128
  .amdhsa_group_segment_fixed_size 0
  .amdhsa_kernarg_size 72
  .amdhsa_user_sgpr_count 2
  .amdhsa_user_sgpr_kernarg_segment_ptr 1
  .amdhsa_system_sgpr_workgroup_id_x 1
.end_amdhsa_kernel
"""
        return hdr + self.a.text() + ftr


if __name__ == "__main__":
    out = [x for x in sys.argv[1:] if not x.startswith("--")]
    g = Gen(opts=[x[2:] for x in sys.argv[1:] if x.startswith("--")])
    g.build()
    txt = g.text()
    if g.stamps:
        txt = "; stamps: " + ",".join(g.names) + "\n" + txt
    open(out[0] if out else "cdna_kernels/%s.s" % NAME, "w").write(txt)
    print("nops inserted:", g.a.nops, "lines:", len(g.a.lines), "stamps:", g.nstamp)
```

```python
import sys
import struct
from asmlib import Asm

NAME = "gather_scatter__mpnn_edge_mlp__graph"
N, E, D = 10000, 160000, 256
T, NT, EC = 40, 250, 640

SLOT = (0, 32768, 65536, 98304)
XB = 131072
SIDE = 41984
AF2 = 41984
PILA, PILB = 158880, 162112 - 9 * 192
HIST, BASE, SORT, USC = 151552, 152576, 153600, 158720
CNTN, MISC = 160768, 161024
IL, EL, DL = 151552, 153664, 157824
QB, QS = 0, 1040
AB = XB
RING = 65536
ROFF = (0, 1024, 32768, 33792)
PS = 65536
LDS_TOTAL = 163840

W_EPOCH, W_FA, W_FB = 0, 0x1000, 0x3000
W_OFFS, W_RECS, W_UT, W_P = 0x10000, 0x90000, 0x700000, 0x200000
W_UTAG = 0x1000
W_FR = 0x8000
W_STAMP = 0x800000
WS_SIZE = 0xA00000
OOB = 0x80000000
POLL_LIMIT = 200000


def f2u(x):
    return struct.unpack("<I", struct.pack("<f", x))[0]


NLOG2E = f2u(-1.4426950408889634)
NLN2 = f2u(-0.6931471805599453)
BIG = f2u(2.0 ** 120)


def vr(a, n=1):
    return "v%d" % a if n == 1 else "v[%d:%d]" % (a, a + n - 1)


def sr(a, n=1):
    return "s%d" % a if n == 1 else "s[%d:%d]" % (a, a + n - 1)


TID, LANE = 0, 1
XA = 2
STG, GO, GO2, STR = 6, 7, 8, 9
RBA, CQ = 10, 11
ACC = 12
UF = 24
XR = 24
XF2, WF = 88, 96
AC2 = 104
XF = 56
WOFF, TR0, TR1 = 120, 121, 122
STAMPV = 123
W3 = 124
NPASS = 4
POLLB = 16
FO = 120
W3L = MISC + 64
XCNT, S1C, S2C, ACKC, BACK = MISC + 8, MISC + 12, MISC + 16, MISC + 20, MISC + 24


class Scratch:
    def __init__(self, rec, adr, rank, tmp):
        self.rec, self.adr, self.rank, self.tmp = rec, adr, rank, tmp


REC1 = [116, 118, 124, 126]
SCRP = Scratch(REC1, 12, None, 18)
SCRX = Scratch(REC1, ACC, ACC + 4, ACC + 8)
SCR2 = Scratch([24, 26, 28, 30], 40, 44, 48)
CNA = 109
PA = (56, 64)
EE = (72, 74)
IA, Q, QE, Y, TT, NN, DD = 76, 78, 86, 90, 94, 98, 102
CK2, CK1 = 106, 108
RG, IXA, EA, QA, AG, L4, L8, INFO, TM, IOF = 82, 116, 117, 112, 113, 83, 84, 118, 120, 85
TZ = 115
STG2 = 119
IX0 = 64

sT, sW = 2, 3
sX, sWM, sWU, sWS, sP, sOUT, sSRC, sDST, sEA = 4, 8, 12, 16, 20, 24, 28, 32, 36
sNL2E, sNLN2, sWK, sW1K = 58, 60, 62, 63
sMASK, sI, sNE, sREM, sTRIP, sSLOT = 64, 66, 67, 68, 69, 70
sM, sP0, sNP, sMAXC, sFIRST, sMODE = 74, 75, 76, 77, 78, 79
sVAL = 80
sA, sB, sC, sD = 88, 89, 90, 91
sEX = 42
sCO = 48
sHI, sTAG, sTLO, sGEN = 49, 52, 56, 57
sQ0, sAG0 = 44, 45
sUO, sUG, sUB, sE = 64, 65, 38, 39
sZ, sU, sRA, sRB = 6, 30, 29, 31
sTM, sHB, sW11 = 28, 69, 39
sHB2 = sHB


class Gen:
    def __init__(self, opts=()):
        self.opts = set(opts)
        self.a = Asm()
        self.stamps = "stamps" in self.opts
        self.nstamp = 0
        self.names = []
        self.lq = []
        self.q = {"L": [], "N": []}

    def opt(self, name, default):
        for o in self.opts:
            if o.startswith(name + "="):
                return int(o.split("=")[1])
        return default

    STAMP_REGS = [92, 94, 96, 98, 100, 50, 54, 4, 12, 14, 32, 34, 36]

    def stampval(self, name, sreg):
        sel = [o[3:].split("+") for o in self.opts if o.startswith("st=")]
        if not self.stamps or not sel or name not in sel[0]:
            return
        k = self.nstamp
        self.nstamp += 1
        self.names.append("=" + name)
        self.a(f"s_add_u32 s{self.STAMP_REGS[k]}, s{sreg}, 1")

    def stamp(self, name):
        if not self.stamps:
            return
        sel = [o[3:].split("+") for o in self.opts if o.startswith("st=")]
        if name not in ("start", "end") and sel and name not in sel[0]:
            return
        k = self.nstamp
        self.nstamp += 1
        self.names.append(name)
        if "dbg" in self.opts:
            self.a(f"s_memrealtime {sr(self.STAMP_REGS[k], 2)}")
            if name == "end":
                a = self.a
                a("s_load_dwordx2 s[40:41], s[0:1], 56\ns_waitcnt lgkmcnt(0)")
                a(f"s_not_b32 s44, s{self.STAMP_REGS[0]}\nv_writelane_b32 v{STAMPV}, s44, 15")
                for i in range(self.nstamp):
                    a(f"v_writelane_b32 v{STAMPV}, s{self.STAMP_REGS[i]}, {i}")
                a(f"""
                s_mov_b32 s42, 64
                s_mov_b32 s43, 0x20000
                v_lshlrev_b32 v{TM}, 2, v{LANE}
                s_cmp_eq_u32 s{sW}, 0
                s_cbranch_scc0 L_end
                buffer_atomic_umax v{STAMPV}, v{TM}, s[40:43], 0 offen
                s_branch L_end
                """)
            return
        if name == "start":
            self.a(f"v_writelane_b32 v{STAMPV}, s86, 0")
            return
        if name in ("start", "end"):
            self.a(f"""
            s_memrealtime s[40:41]
            s_waitcnt lgkmcnt(0)
            v_writelane_b32 v{STAMPV}, s40, {0 if name == "start" else 1}
            """)
        self.a(f"s_memtime {sr(self.STAMP_REGS[k], 2)}")
        if name == "end":
            self.a("s_waitcnt lgkmcnt(0)")
            for i in range(self.nstamp):
                self.a(f"v_writelane_b32 v{STAMPV}, s{self.STAMP_REGS[i]}, {32 + i}")

    def vm(self, roles, tag, n=1):
        for r in roles:
            self.q[r] += [tag] * n

    def vmwait(self, tags):
        need = {}
        for r, lst in self.q.items():
            last = max((i for i, t in enumerate(lst) if t in tags), default=None)
            if last is None:
                need[r] = None
            else:
                need[r] = len(lst) - 1 - last
                self.q[r] = lst[last + 1:]
        a = self.a
        if need["L"] == need["N"]:
            if need["L"] is not None:
                a(f"s_waitcnt vmcnt({need['L']})")
            return
        lab = a.newlabel("vw")
        if need["N"] is None:
            a(f"s_cmp_lt_u32 s{sW}, 8\ns_cbranch_scc1 {lab}\ns_waitcnt vmcnt({need['L']})\n{lab}:")
        elif need["L"] is None:
            a(f"s_cmp_ge_u32 s{sW}, 8\ns_cbranch_scc1 {lab}\ns_waitcnt vmcnt({need['N']})\n{lab}:")
        elif need["L"] > need["N"]:
            a(f"s_waitcnt vmcnt({need['L']})\ns_cmp_ge_u32 s{sW}, 8\ns_cbranch_scc1 {lab}\ns_waitcnt vmcnt({need['N']})\n{lab}:")
        else:
            a(f"s_waitcnt vmcnt({need['N']})\ns_cmp_lt_u32 s{sW}, 8\ns_cbranch_scc1 {lab}\ns_waitcnt vmcnt({need['L']})\n{lab}:")

    def lwait(self, tag):
        last = max(i for i, t in enumerate(self.lq) if t == tag)
        self.a(f"s_waitcnt lgkmcnt({len(self.lq) - 1 - last})")
        self.lq = self.lq[last + 1:]

    def barrier(self, name, lgkm=True):
        for o in self.opts:
            if o.startswith("padat=") and o.split("=")[1].split(":")[0] == name:
                self.a(f"""
                L_padat:
                s_memrealtime s[98:99]
                s_waitcnt lgkmcnt(0)
                s_sub_u32 s98, s98, s96
                s_cmp_lt_u32 s98, {o.split(":")[1]}
                s_cbranch_scc1 L_padat
                """)
        if lgkm:
            self.a("s_waitcnt lgkmcnt(0)")
        self.a("s_barrier")
        self.stamp(name)

    def dma_body(self, k, slot, role="L"):
        a = self.a
        if f"noc{k}" in self.opts:
            for m in range(4):
                a(f"s_mov_b32 m0, {USC + 1024}\ns_mov_b32 s{sB}, {OOB}\nbuffer_load_dwordx4 v{WOFF}, {sr(sWM, 4)}, s{sB} offen lds")
            self.vm(role, f"c{k}", 4)
            return
        srd, base = ((sWM, 0), (sWM, 131072))[k // 4]
        c = k % 4
        for m in range(4):
            a(f"""
            s_add_u32 m0, s{sW1K}, {SLOT[slot] + m * 8192}
            s_mov_b32 s{sB}, {base + c * 32768 + m * 8192}
            buffer_load_dwordx4 v{WOFF}, {sr(srd, 4)}, s{sB} offen lds
            """)
        self.vm(role, f"c{k}", 4)

    def dma_all(self, k, slot, m):
        a = self.a
        srd, base = ((sWM, 0), (sWM, 131072))[k // 4]
        a(f"""
        s_add_u32 m0, s{sWK}, {SLOT[slot] + m * 16384}
        s_add_u32 s{sB}, s{sHI}, {base + (k % 4) * 32768 + m * 16384}
        buffer_load_dwordx4 v{WOFF}, {sr(srd, 4)}, s{sB} offen lds
        """)
        self.vm("LN", f"c{k}")

    def spin(self, ctr, target, tmp, extra=None):
        a = self.a
        lab = a.newlabel("spin")
        a(f"v_mov_b32 v{tmp}, {ctr}")
        a.label(lab)
        a(f"ds_read_b32 v{tmp + 1}, v{tmp}")
        if extra:
            a(extra)
        a(f"""
        s_waitcnt lgkmcnt(0)
        v_readfirstlane_b32 s{sA}, v{tmp + 1}
        s_nop 0
        s_cmp_lt_u32 s{sA}, {target}
        s_cbranch_scc1 {lab}
        """)

    def xspin(self, shift):
        a = self.a
        lab = a.newlabel("xs")
        a(f"""
        {lab}:
        ds_read_b32 v{WF + 1}, v{WF}
        s_waitcnt lgkmcnt(0)
        v_readfirstlane_b32 s{sA}, v{WF + 1}
        s_nop 0
        s_bfe_u32 s{sA}, s{sA}, {shift | (4 << 16)}
        s_cmp_lt_u32 s{sA}, 3
        s_cbranch_scc0 {lab}_ok
        s_sleep 1
        s_branch {lab}
        {lab}_ok:
        """)

    def touch(self):
        a = self.a
        l2, done = a.newlabel("tw2"), a.newlabel("tdone")
        a(f"""
        s_lshr_b32 s{sA}, s{sT}, 3
        s_lshl_b32 s{sA}, s{sA}, 12
        s_mov_b32 m0, {USC + 1024}
        v_lshlrev_b32 v{W3 + 2}, 4, v{LANE}
        s_cmp_eq_u32 s{sW}, 5
        s_cbranch_scc0 {l2}
        """)
        for m in range(4):
            a(f"s_add_u32 s{sB}, s{sA}, {1024 * m}\nbuffer_load_dwordx4 v{W3 + 2}, {sr(sWU, 4)}, s{sB} offen lds")
        a(f"s_branch {done}\n{l2}:\ns_cmp_eq_u32 s{sW}, 6\ns_cbranch_scc0 {done}")
        for m in range(4):
            a(f"s_add_u32 s{sB}, s{sA}, {131072 + 1024 * m}\nbuffer_load_dwordx4 v{W3 + 2}, {sr(sWM, 4)}, s{sB} offen lds")
        a.label(done)

    def xpreload(self, ua):
        a = self.a
        a(f"v_mov_b32 v{WF}, {XCNT}")
        self.xspin(0)
        self.stamp("xa")
        for s in range(8):
            a(f"ds_read_b128 {vr(XR + 4 * s, 4)}, v{XA + (s & 3)} offset:{(s >> 2) * 256}")
        a(f"""
        s_cmp_lt_u32 s{sW}, 5
        s_cbranch_scc1 L_xp_go
        s_cmp_ge_u32 s{sW}, 8
        s_cbranch_scc1 L_xp_go
        v_mov_b32 v{W3 + 3}, 16
        s_mov_b64 exec, 1
        s_waitcnt vmcnt(0)
        ds_add_u32 v{WF}, v{W3 + 3}
        s_mov_b64 exec, -1
        """)
        a.label("L_xp_go")
        self.xspin(4)
        self.stamp("xb")
        for s in range(8):
            a(f"ds_read_b128 {vr(XR + 32 + 4 * s, 4)}, v{XA + (s & 3)} offset:{8192 + (s >> 2) * 256}")
        self.xreads(0)
        v = self.opt("b0v", 0)
        if v == 0:
            a(f"s_cmp_lt_u32 s{sW}, 8\ns_cbranch_scc1 L_xp_c2")
            self.dma_body(1, 1)
            a("s_branch L_xp_done\nL_xp_c2:")
            self.dma_body(2, 2, "N")
            a.label("L_xp_done")
        elif v == 1:
            self.dma_all(1, 1, 0)
            self.dma_all(1, 1, 1)

    def xreads(self, c):
        a = self.a
        for sp in range(2):
            s = 2 * c + sp
            a(f"ds_read_b128 {vr(XF2 + 4 * sp, 4)}, v{XA + (s & 3)} offset:{2 * 8192 + (s >> 2) * 256}")

    def trreads(self, slot):
        a = self.a
        base = SLOT[slot]
        tr = TR0 if base < 65536 else TR1
        for sp in range(2):
            for p in range(2):
                a(f"ds_read_b64_tr_b16 {vr(WF + 4 * sp + 2 * p, 2)}, v{tr} offset:{(base & 65535) + 16384 * sp + 2048 * p}")

    def mfmas(self, acc, c, between=None):
        a = self.a
        for sp in range(2):
            if between:
                between(sp)
            a(f"s_waitcnt lgkmcnt({2 - 2 * sp})")
            for rb in range(3):
                cin = "0" if (c == 0 and sp == 0) else vr(acc + 4 * rb, 4)
                b = XR + 32 * rb + 4 * (2 * c + sp) if rb < 2 else XF2 + 4 * sp
                a(f"v_mfma_f32_16x16x32_bf16 {vr(acc + 4 * rb, 4)}, {vr(WF + 4 * sp, 4)}, {vr(b, 4)}, {cin}")

    def scan(self, v):
        a = self.a
        for sh in (1, 2, 4, 8):
            a(f"v_add_u32_dpp v{v}, v{v}, v{v} row_shr:{sh} row_mask:0xf bank_mask:0xf bound_ctrl:0")
        a(f"v_add_u32_dpp v{v}, v{v}, v{v} row_bcast:15 row_mask:0xa bank_mask:0xf")
        a(f"v_add_u32_dpp v{v}, v{v}, v{v} row_bcast:31 row_mask:0xc bank_mask:0xf")

    def poll_issue(self):
        a = self.a
        if "repl" not in self.opts:
            a(f"v_lshlrev_b32 v14, 5, v{LANE}\ns_mov_b32 s{sB}, {W_FB}\ns_mov_b32 s{sD}, {W_FB + 4096}")
            for k in range(4):
                a(f"buffer_load_dwordx2 {vr(POLLB + 2 * k, 2)}, v14, {sr(sWS, 4)}, s{sB if k < 2 else sD} offen offset:{2048 * (k & 1)} sc1")
            return
        a(f"v_lshlrev_b32 v14, 4, v{LANE}\ns_and_b32 s{sB}, s{sT}, 7\ns_lshl_b32 s{sB}, s{sB}, 12\ns_add_u32 s{sB}, s{sB}, {W_FR}")
        for k in range(4):
            a(f"buffer_load_dwordx2 {vr(POLLB + 2 * k, 2)}, v14, {sr(sWS, 4)}, s{sB} offen offset:{1024 * k} sc1")

    def poll_wait(self):
        a = self.a
        lp, chk, done = a.newlabel("poll"), a.newlabel("pchk"), a.newlabel("pdone")
        a(f"s_mov_b32 s{sC}, 0\ns_branch {chk}")
        a.label(lp)
        self.poll_issue()
        a.label(chk)
        m58 = (1 << (NT - 192)) - 1
        a(f"""
        s_waitcnt vmcnt(0)
        v_cmp_ne_u64 s[40:41], {sr(sTAG, 2)}, {vr(POLLB, 2)}
        v_cmp_ne_u64 vcc, {sr(sTAG, 2)}, {vr(POLLB + 2, 2)}
        v_cmp_ne_u64 s[88:89], {sr(sTAG, 2)}, {vr(POLLB + 4, 2)}
        v_cmp_ne_u64 s[46:47], {sr(sTAG, 2)}, {vr(POLLB + 6, 2)}
        s_nop 1
        s_and_b32 s47, s47, {m58 >> 32}
        s_or_b64 s[40:41], s[40:41], vcc
        s_or_b64 s[46:47], s[88:89], s[46:47]
        s_or_b64 s[40:41], s[40:41], s[46:47]
        s_cbranch_scc0 {done}
        s_add_u32 s{sC}, s{sC}, 1
        s_cmp_lt_u32 s{sC}, {POLL_LIMIT}
        s_cbranch_scc1 {lp}
        """)
        a.label(done)

    def tag_store(self, soff, tmp):
        a = self.a
        a(f"""
        v_mov_b32 v{tmp}, s{sTAG}
        v_mov_b32 v{tmp + 1}, s{sTAG + 1}
        v_lshlrev_b32 v{tmp + 2}, 24, v{LANE}
        buffer_store_dwordx2 {vr(tmp, 2)}, v{tmp + 2}, {sr(sWS, 4)}, s{soff} offen sc1
        """)

    def wave0(self, fn):
        a = self.a
        lab = a.newlabel("w0")
        a(f"s_cmp_eq_u32 s{sW}, 0\ns_cbranch_scc0 {lab}")
        fn()
        a.label(lab)

    def edge(self, pb, which, exact, first):
        a = self.a
        if "noedge" in self.opts:
            return
        p = PA[pb] + 4 * which
        sel = "op_sel:[1,0,0] op_sel_hi:[1,1,1]" if which else "op_sel:[0,0,0] op_sel_hi:[0,1,1]"
        y = NN if (first and not exact) else Y
        for h in range(2):
            a(f"v_pk_fma_f32 {vr(QE + 2 * h, 2)}, {vr(EE[pb], 2)}, {vr(W3 + 2 * h, 2)}, {vr(Q + 2 * h, 2)} {sel}")
        for h in range(2):
            a(f"v_pk_add_f32 {vr(y + 2 * h, 2)}, {vr(p + 2 * h, 2)}, {vr(QE + 2 * h, 2)}")
        for r in range(4):
            a(f"v_exp_f32 v{TT + r}, v{y + r}")
        if exact:
            for h in range(2):
                a(f"v_pk_add_f32 {vr(TT + 2 * h, 2)}, {vr(TT + 2 * h, 2)}, 1.0 op_sel_hi:[1,0]")
            for r in range(4):
                a(f"v_rcp_f32 v{TT + r}, v{TT + r}")
            for h in range(2):
                if first:
                    a(f"v_pk_mul_f32 {vr(NN + 2 * h, 2)}, {vr(Y + 2 * h, 2)}, {vr(TT + 2 * h, 2)}")
                else:
                    a(f"v_pk_fma_f32 {vr(NN + 2 * h, 2)}, {vr(Y + 2 * h, 2)}, {vr(TT + 2 * h, 2)}, {vr(NN + 2 * h, 2)}")
        elif first:
            for h in range(2):
                a(f"v_pk_add_f32 {vr(DD + 2 * h, 2)}, {vr(TT + 2 * h, 2)}, 1.0 op_sel_hi:[1,0]")
        else:
            for h in range(2):
                a(f"v_pk_fma_f32 {vr(NN + 2 * h, 2)}, {vr(NN + 2 * h, 2)}, {vr(TT + 2 * h, 2)}, {vr(NN + 2 * h, 2)}")
            for h in range(2):
                a(f"v_pk_fma_f32 {vr(NN + 2 * h, 2)}, {vr(Y + 2 * h, 2)}, {vr(DD + 2 * h, 2)}, {vr(NN + 2 * h, 2)}")
            for h in range(2):
                a(f"v_pk_fma_f32 {vr(DD + 2 * h, 2)}, {vr(DD + 2 * h, 2)}, {vr(TT + 2 * h, 2)}, {vr(DD + 2 * h, 2)}")

    def pair(self, pb):
        a = self.a
        p = PA[pb]
        lo, hi = "op_sel:[0,0,0] op_sel_hi:[0,1,1]", "op_sel:[1,0,0] op_sel_hi:[1,1,1]"

        def qe(dst, h, sel):
            return f"v_pk_fma_f32 {vr(dst + 2 * h, 2)}, {vr(EE[pb], 2)}, {vr(W3 + 2 * h, 2)}, {vr(Q + 2 * h, 2)} {sel}"

        def nt(t, h):
            return f"v_pk_fma_f32 {vr(NN + 2 * h, 2)}, {vr(NN + 2 * h, 2)}, {vr(t + 2 * h, 2)}, {vr(NN + 2 * h, 2)}"

        def yd(y, h):
            return f"v_pk_fma_f32 {vr(NN + 2 * h, 2)}, {vr(y + 2 * h, 2)}, {vr(DD + 2 * h, 2)}, {vr(NN + 2 * h, 2)}"

        def dt(t, h):
            return f"v_pk_fma_f32 {vr(DD + 2 * h, 2)}, {vr(DD + 2 * h, 2)}, {vr(t + 2 * h, 2)}, {vr(DD + 2 * h, 2)}"

        seq = [qe(Y, 0, lo), qe(Y, 1, lo), qe(QE, 0, hi), qe(QE, 1, hi)]
        seq += [f"v_pk_add_f32 {vr(Y + 2 * h, 2)}, {vr(p + 2 * h, 2)}, {vr(Y + 2 * h, 2)}" for h in range(2)]
        seq += [f"v_pk_add_f32 {vr(QE + 2 * h, 2)}, {vr(p + 4 + 2 * h, 2)}, {vr(QE + 2 * h, 2)}" for h in range(2)]
        seq += [f"v_exp_f32 v{TT + r}, v{Y + r}" for r in range(4)]
        seq += [f"v_exp_f32 v{p + r}, v{QE + r}" for r in range(2)]
        seq += [nt(TT, 0), nt(TT, 1)]
        seq += [f"v_exp_f32 v{p + 2}, v{QE + 2}", yd(Y, 0), yd(Y, 1), f"v_exp_f32 v{p + 3}, v{QE + 3}", dt(TT, 0), dt(TT, 1)]
        seq += [nt(p, 0), nt(p, 1), yd(QE, 0), yd(QE, 1), dt(p, 0), dt(p, 1)]
        for x in seq:
            a(x)

    def side_add(self, src, tag):
        self.a(f"""
        s_cmp_eq_u32 s{sCO}, 0
        s_cbranch_scc1 L_noside_{tag}
        s_lshl_b32 s{sA}, s{sW}, 9
        s_add_u32 s{sA}, s{sA}, {(SIDE + 512) ^ AB}
        v_xor_b32 v{QA}, s{sA}, v{L8}
        s_mov_b32 s{sC}, 0
        L_side_{tag}:
        ds_read_b64 {vr(TT, 2)}, v{QA}
        s_add_u32 s{sC}, s{sC}, 1
        s_waitcnt lgkmcnt(0)
        v_cmp_eq_u64 vcc, -1, {vr(TT, 2)}
        s_cmp_gt_u32 s{sC}, 40000
        s_cbranch_scc1 L_side_go_{tag}
        s_cbranch_vccnz L_side_{tag}
        L_side_go_{tag}:
        v_lshlrev_b32 v{QE}, 16, v{TT}
        v_and_b32 v{QE + 1}, 0xffff0000, v{TT}
        v_lshlrev_b32 v{QE + 2}, 16, v{TT + 1}
        v_and_b32 v{QE + 3}, 0xffff0000, v{TT + 1}
        v_pk_add_f32 {vr(src, 2)}, {vr(src, 2)}, {vr(QE, 2)}
        v_pk_add_f32 {vr(src + 2, 2)}, {vr(src + 2, 2)}, {vr(QE + 2, 2)}
        L_noside_{tag}:
        """)

    def f32_row(self, key, dst):
        self.a(f"""
        s_lshr_b32 s{dst}, s{key}, 9
        s_cmp_lt_u32 s{dst}, 20
        s_cselect_b32 s{sA}, {AB // 1024}, {AF2 // 1024 - 20}
        s_add_u32 s{dst}, s{dst}, s{sA}
        s_lshl_b32 s{dst}, s{dst}, 10
        """)

    def flush(self, exact, mid=None, final=False):
        a = self.a
        if exact:
            if mid:
                mid()
            acc, done = a.newlabel("facc"), a.newlabel("fdone")
            a(f"s_cmp_eq_u32 s{sMODE}, 2\ns_cbranch_scc1 {acc}")
            if final:
                self.side_add(NN, "x")
            a(f"""
            v_cvt_pk_bf16_f32 v{TT}, v{NN}, v{NN + 1}
            v_cvt_pk_bf16_f32 v{TT + 1}, v{NN + 2}, v{NN + 3}
            ds_write_b64 v{AG}, {vr(TT, 2)}
            v_xor_b32 v{AG}, s{sD}, v{L8}
            s_branch {done}
            {acc}:
            """)
            for r in range(4):
                a(f"ds_add_f32 v{AG}, v{NN + r} offset:{256 * r}")
            if not final:
                self.f32_row(sD, sD)
                a(f"v_add_u32 v{AG}, s{sD}, v{L4}")
            a(f"{done}:\ns_waitcnt lgkmcnt(0)")
            return
        for r in range(4):
            a(f"v_rcp_f32 v{TT + r}, v{DD + r}")
        if mid:
            mid()
        a(f"v_max3_f32 v{CK1}, v{CK1}, v{DD}, v{DD + 1}")
        a(f"v_max3_f32 v{CK1}, v{CK1}, v{DD + 2}, v{DD + 3}")
        for h in range(2):
            a(f"v_pk_mul_f32 {vr(Y + 2 * h, 2)}, {vr(NN + 2 * h, 2)}, {vr(TT + 2 * h, 2)}")
        for h in range(2):
            a(f"v_pk_fma_f32 {vr(CK2, 2)}, {vr(Y + 2 * h, 2)}, 0, {vr(CK2, 2)} op_sel_hi:[1,0,1]")
        if final:
            self.side_add(Y, "f")
        a(f"v_cvt_pk_bf16_f32 v{TT}, v{Y}, v{Y + 1}")
        a(f"v_cvt_pk_bf16_f32 v{TT + 1}, v{Y + 2}, v{Y + 3}")
        a(f"ds_write_b64 v{AG}, {vr(TT, 2)}")
        if not final:
            a(f"v_xor_b32 v{AG}, s{sD}, v{L8}\ns_waitcnt lgkmcnt(1)")

    def p_reads(self, pb, slot):
        a = self.a
        for row in range(2):
            for r in range(4):
                a(f"ds_read_u16_d16_hi v{PA[pb] + 4 * row + r}, v{RG} offset:{ROFF[slot] + row * 512 + r * 128}")

    def gather(self, slot):
        if "nodma" in self.opts:
            return
        self.a(f"""
        s_mov_b32 m0, s{sSLOT + slot}
        buffer_load_dwordx4 {vr(IA, 2)}, {sr(sP, 4)}, 0 idxen offen sc1 lds
        """)

    def reads(self, jj):
        a = self.a
        pb = jj & 1
        self.p_reads(pb ^ 1, (jj + 1) & 3)
        a(f"ds_read_b64 {vr(EE[pb ^ 1], 2)}, v{EA} offset:{8 * (jj + 1)}")
        a(f"ds_read_u16 v{IA}, v{IXA} offset:{4 * (jj + 5)}")

    def main_loop(self, exact, exit_label):
        a = self.a
        tag = "x" if exact else "f"
        loop, fin = f"L_loop_{tag}", f"L_fin_{tag}"
        prio = not exact and "noprio" not in self.opts
        a.label(loop)
        for jj in range(4):
            a(f"s_and_b32 s{sA}, s{sTM}, {3 << (2 * jj)}\ns_cbranch_scc1 L_blk_{tag}_{jj}\ns_waitcnt vmcnt(3)")
            self.reads(jj)
            if exact or "noil" in self.opts or "noedge" in self.opts:
                self.edge(jj & 1, 0, exact, False)
                self.edge(jj & 1, 1, exact, False)
            else:
                self.pair(jj & 1)
            a.label(f"L_back_{tag}_{jj}")
            a(f"s_mov_b32 m0, s{sSLOT + ((jj + 1) & 3)}\ns_waitcnt lgkmcnt(0)")
            if "nodma" not in self.opts:
                a(f"buffer_load_dwordx4 {vr(IA, 2)}, {sr(sP, 4)}, 0 idxen offen sc1 lds")
        a(f"""
        v_add_u32 v{IXA}, 16, v{IXA}
        v_add_u32 v{EA}, 32, v{EA}
        s_lshr_b64 {sr(sMASK, 2)}, {sr(sMASK, 2)}, 8
        s_or_b32 s{sMASK + 1}, s{sMASK + 1}, s{sHB}
        s_mov_b32 s{sHB}, 0
        s_mov_b32 s{sTM}, s{sMASK}
        s_add_u32 s{sI}, s{sI}, 8
        """)
        t2, t1, t0 = self.opt("p2", 12), self.opt("p1", 8), self.opt("p0", 4)
        tu = self.opt("tu", 12)
        a(f"s_sub_u32 s{sREM}, s{sREM}, 4\ns_cmp_gt_i32 s{sREM}, {t2}\ns_cbranch_scc1 {loop}")
        if "u2early" not in self.opts and "nou2" not in self.opts:
            a(f"""
            s_cmp_gt_i32 s{sREM}, {tu}
            s_cbranch_scc1 L_nou2_{tag}
            s_cmp_eq_u32 s{sW11}, -1
            s_cbranch_scc0 L_nou2_{tag}
            """)
            self.u2_loads()
            a(f"s_mov_b32 s{sW11}, s{sI}\ns_or_b32 s{sTM}, s{sTM}, 0xff\nL_nou2_{tag}:")
        if prio:
            a(f"""
            s_setprio 2
            s_cmp_gt_i32 s{sREM}, {t1}
            s_cbranch_scc1 {loop}
            s_setprio 1
            s_cmp_gt_i32 s{sREM}, {t0}
            s_cbranch_scc1 {loop}
            s_setprio 0
            """)
        a(f"s_branch {loop}")
        for jj in range(4):
            pb = jj & 1
            b = f"L_blk_{tag}_{jj}"
            a.reset_hist()
            a(f"""
            {b}:
            s_waitcnt vmcnt(11)
            s_cmp_eq_u32 s{sI}, s{sW11}
            s_cbranch_scc1 {b}_w
            s_waitcnt vmcnt(3)
            {b}_w:
            """)
            self.reads(jj)
            a(f"s_bitcmp1_b32 s{sMASK}, {2 * jj}\ns_cbranch_scc1 {b}_f0")
            self.edge(pb, 0, exact, False)
            a(f"{b}_a:\ns_bitcmp1_b32 s{sMASK}, {2 * jj + 1}\ns_cbranch_scc1 {b}_f1")
            self.edge(pb, 1, exact, False)
            a(f"s_branch L_back_{tag}_{jj}")
            for which in range(2):
                a.reset_hist()
                a(f"""
                {b}_f{which}:
                s_add_u32 s{sA}, s{sI}, {2 * jj + which}
                s_cmp_eq_u32 s{sA}, s{sNE}
                s_cbranch_scc1 {fin}
                v_readlane_b32 s{sB}, v{INFO}, s{sA}
                """)

                def mid():
                    a(f"""
                    s_and_b32 s{sC}, s{sB}, 0xffff
                    s_lshr_b32 s{sD}, s{sB}, 16
                    v_add_u32 v{QA}, s{sC}, v{L4}
                    ds_read2st64_b32 {vr(Q, 2)}, v{QA} offset0:0 offset1:1
                    ds_read2st64_b32 {vr(Q + 2, 2)}, v{QA} offset0:2 offset1:3
                    """)

                self.flush(exact, mid)
                self.edge(pb, which, exact, True)
                a(f"s_branch {b + '_a' if which == 0 else f'L_back_{tag}_{jj}'}")
        a.reset_hist()
        a.label(fin)
        self.flush(exact, final=True)
        if "u2early" not in self.opts:
            a(f"s_cmp_eq_u32 s{sW11}, -1\ns_cbranch_scc0 {exit_label}")
            self.u2_loads()
        a(f"s_branch {exit_label}")

    def zero_agg(self, addr, zq):
        a = self.a
        lab = a.newlabel("zagg")
        a(f"""
        ds_write_b128 v{addr}, {vr(zq, 4)}
        s_cmp_lt_u32 s{sW}, 4
        s_cbranch_scc0 {lab}
        ds_write_b128 v{addr}, {vr(zq, 4)} offset:16384
        {lab}:
        """)

    def u2_loads(self):
        a = self.a
        a(f"""
        s_lshl_b32 s{sA}, s{sW}, 14
        s_add_u32 s{sA}, s{sA}, {W_UT + 8192}
        s_add_u32 s{sB}, s{sA}, 4096
        v_lshlrev_b32 v{TM}, 4, v{LANE}
        """)
        for s in range(8):
            so = sA if s < 4 else sB
            a(f"buffer_load_dwordx4 {vr(UF + 4 * s, 4)}, v{TM}, {sr(sWS, 4)}, s{so} offen offset:{(s & 3) * 1024} sc1")

    def hi_passes(self, fn):
        a = self.a
        fn(0)
        fn(1)
        lab = a.newlabel("hp")
        a(f"s_cmp_eq_u64 {sr(sVAL + 4, 2)}, 0\ns_cbranch_scc1 {lab}")
        fn(2)
        fn(3)
        a.label(lab)

    def rec_issue(self, S):
        a = self.a
        a(f"""
        s_lshl_b32 s{sA}, s{sP0}, 2
        s_lshl_b32 s{sB}, s{sP0}, 5
        v_mov_b32 v{S.tmp}, {OOB}
        s_add_u32 s{sC}, s{sA}, 4
        s_add_u32 s{sD}, s{sA}, 8
        v_cmp_lt_i32 {sr(sVAL, 2)}, s{sA}, v{CQ}
        s_add_u32 s{sA}, s{sA}, 12
        v_cmp_lt_i32 {sr(sVAL + 2, 2)}, s{sC}, v{CQ}
        v_cmp_lt_i32 {sr(sVAL + 4, 2)}, s{sD}, v{CQ}
        v_cmp_lt_i32 {sr(sVAL + 6, 2)}, s{sA}, v{CQ}
        s_cmp_gt_u32 s{sNP}, 1
        s_cselect_b64 {sr(sVAL + 2, 2)}, {sr(sVAL + 2, 2)}, 0
        s_cselect_b64 {sr(sVAL + 4, 2)}, {sr(sVAL + 4, 2)}, 0
        s_cselect_b64 {sr(sVAL + 6, 2)}, {sr(sVAL + 6, 2)}, 0
        """)
        lab = a.newlabel("hp")
        a(f"s_cmp_eq_u64 {sr(sVAL + 4, 2)}, 0\ns_cbranch_scc1 {lab}")
        for k in (2, 3, 0, 1):
            if k == 0:
                a.label(lab)
            a(f"""
            v_cndmask_b32 v{S.adr + k}, v{S.tmp}, v{RBA}, {sr(sVAL + 2 * k, 2)}
            buffer_load_dwordx2 {vr(S.rec[k], 2)}, v{S.adr + k}, {sr(sWS, 4)}, s{sB} offen offset:{32 * k} sc1
            """)

    def count(self, S):
        a = self.a
        a(f"v_mov_b32 v{S.tmp}, 1\ns_mov_b32 s{sA}, {CNTN}")

        def one(k):
            a(f"""
            s_mov_b64 exec, {sr(sVAL + 2 * k, 2)}
            v_bfe_u32 v{S.adr + k}, v{S.rec[k]}, 16, 6
            v_lshl_add_u32 v{S.adr + k}, v{S.adr + k}, 2, s{sA}
            ds_add_rtn_u32 v{S.rank + k}, v{S.adr + k}, v{S.tmp}
            """)
        self.hi_passes(one)
        a("s_mov_b64 exec, -1")

    def lists(self, S, generic_label, first=True):
        a = self.a
        sc = S.tmp
        done = a.newlabel("lists")
        a(f"""
        s_mov_b32 s{sA}, {CNTN}
        v_lshl_add_u32 v{sc + 3}, v{LANE}, 2, s{sA}
        v_mov_b32 v{sc + 2}, {MISC}
        ds_read_b32 v{sc}, v{sc + 3}
        ds_read_b32 v{sc + 2}, v{sc + 2}
        s_waitcnt lgkmcnt(0)
        v_mov_b32 v{sc + 1}, v{sc}
        v_readfirstlane_b32 s{sMAXC}, v{sc + 2}
        v_cmp_eq_u32 {sr(sZ, 2)}, 0, v{sc}
        v_subrev_u32 v{sc}, {DL}, v{sc}
        """)
        self.scan(sc + 1)
        a(f"""
        v_readlane_b32 s{sM}, v{sc + 1}, 63
        v_sub_u32 v{sc + 1}, v{sc + 1}, v{sc}
        s_cmp_gt_u32 s{sM}, 1024
        s_cbranch_scc1 {generic_label}
        """)
        if first:
            a(f"""
            s_cmp_eq_u32 s{sMAXC}, 0
            s_cbranch_scc0 {generic_label}
            s_cmp_lt_u32 s{sM}, 64
            s_cbranch_scc0 {done}
            s_mov_b32 s{sMODE}, 2
            """)
        a(f"""
        {done}:
        """)
        self.hi_passes(lambda k: a(f"ds_bpermute_b32 v{S.adr + k}, v{S.adr + k}, v{sc + 1}"))
        a(f"""
        s_add_u32 s{sA}, s{sM}, 1
        s_lshr_b32 s{sA}, s{sA}, 1
        s_mul_i32 s{sB}, s{sA}, s{sW}
        s_add_u32 s{sC}, s{sB}, s{sA}
        s_lshr_b32 s{sI}, s{sB}, 4
        s_lshr_b32 s{sC}, s{sC}, 4
        s_sub_u32 s{sREM}, s{sC}, s{sI}
        s_lshl_b32 s{sC}, s{sC}, 1
        s_cmp_lt_u32 s{sC}, s{sM}
        s_cselect_b32 s{sCO}, 1, 0
        s_min_u32 s{sC}, s{sC}, s{sM}
        s_lshl_b32 s{sI}, s{sI}, 1
        s_sub_u32 s{sNE}, s{sC}, s{sI}
        s_mov_b32 s{sA}, {(IL - 2 * DL) & 0xffffffff}
        s_mov_b32 s{sB}, {(EL - 4 * DL) & 0xffffffff}
        s_waitcnt lgkmcnt(0)
        """)

        def one(k):
            a(f"""
            s_mov_b64 exec, {sr(sVAL + 2 * k, 2)}
            v_add_u32 v{S.rank + k}, v{S.rank + k}, v{S.adr + k}
            v_lshl_add_u32 v{S.adr + k}, v{S.rank + k}, 1, s{sA}
            v_lshl_add_u32 v{sc + (k & 1)}, v{S.rank + k}, 2, s{sB}
            ds_write_b8_d16_hi v{S.rank + k}, v{S.rec[k]}
            ds_write_b16 v{S.adr + k}, v{S.rec[k]}
            ds_write_b32 v{sc + (k & 1)}, v{S.rec[k] + 1}
            """)
        self.hi_passes(one)
        a("s_mov_b64 exec, -1")

    def setup(self, tm):
        a = self.a
        a(f"""
        s_add_u32 s{sD}, s{sI}, {DL - 1}
        v_add_u32 v{INFO}, s{sD}, v{LANE}
        s_lshl_b32 s{sA}, s{sI}, 1
        s_add_u32 s{sA}, s{sA}, {IL}
        v_lshl_add_u32 v{EA}, v{LANE}, 1, s{sA}
        ds_read_u16 v{tm + 3}, v{EA}
        ds_read_u8 v{tm}, v{INFO}
        ds_read_u8 v{tm + 2}, v{INFO} offset:1
        ds_read_u8 v{tm + 1}, v{INFO} offset:2
        s_cmp_lt_u32 s{sW}, 9
        s_mov_b32 s{sC}, {PILB}
        s_cselect_b32 s{sC}, {PILA}, s{sC}
        s_mul_i32 s{sB}, s{sW}, 192
        s_add_u32 s{sB}, s{sB}, s{sC}
        v_lshl_add_u32 v{INFO}, v{LANE}, 1, s{sB}
        v_mov_b32 v{tm + 4}, 0xffff
        v_cmp_gt_i32 vcc, s{sNE}, v{LANE}
        s_mov_b32 exec_hi, 0
        ds_write_b16 v{INFO}, v{tm + 4} offset:128
        s_mov_b64 exec, -1
        v_lshrrev_b32 v{IXA}, 5, v{LANE}
        v_lshl_add_u32 v{IXA}, v{IXA}, 1, s{sB}
        s_lshl_b32 s{sA}, s{sI}, 2
        s_add_u32 s{sA}, s{sA}, {EL}
        v_mov_b32 v{EA}, s{sA}
        s_waitcnt lgkmcnt(4)
        v_cndmask_b32 v{tm + 3}, v{tm + 4}, v{tm + 3}, vcc
        ds_write_b16 v{INFO}, v{tm + 3}
        """)
        for k in range(5):
            a(f"ds_read_u16 v{IX0 + k}, v{IXA} offset:{4 * k}")
        a(f"""
        s_waitcnt lgkmcnt(7)
        v_cmp_ne_u32 {sr(sMASK, 2)}, v{tm + 2}, v{tm + 1}
        v_cmp_eq_u32 vcc, v{tm + 2}, v{tm}
        v_mul_u32_u24 v{INFO}, {QS}, v{tm + 2}
        v_and_b32 v{tm + 1}, 15, v{tm + 2}
        v_lshlrev_b32 v{tm + 1}, 4, v{tm + 1}
        v_lshl_add_u32 v{tm + 1}, v{tm + 2}, 9, v{tm + 1}
        v_lshl_or_b32 v{INFO}, v{tm + 1}, 16, v{INFO}
        s_sub_u32 s{sA}, s{sNE}, 1
        s_bitcmp0_b64 {sr(sMASK, 2)}, s{sA}
        s_cselect_b32 s{sCO}, s{sCO}, 0
        s_bitset1_b64 {sr(sMASK, 2)}, s{sA}
        v_readfirstlane_b32 s{sB}, v{INFO}
        ; end-of-segment bits become start-of-segment bits; bit 64 is carried separately
        s_lshr_b32 s{sHB2}, s{sMASK + 1}, 31
        s_lshl_b32 s{sHB2}, s{sHB2}, 24
        s_lshl_b64 {sr(sMASK, 2)}, {sr(sMASK, 2)}, 1
        s_and_b32 s{sC}, vcc_lo, 1
        s_cmp_eq_u32 s{sI}, 0
        s_cselect_b32 s{sC}, 0, s{sC}
        s_cmp_lt_u32 s{sMODE}, 2
        s_cselect_b32 s{sC}, s{sC}, 0
        s_lshl_b32 s{sA}, s{sW}, 9
        s_add_u32 s{sA}, s{sA}, {SIDE ^ AB}
        s_lshr_b32 s{sD}, s{sB}, 16
        s_cmp_eq_u32 s{sC}, 0
        s_cselect_b32 s{sAG0}, s{sD}, s{sA}
        s_and_b32 s{sQ0}, s{sB}, 0xffff
        """)

    def slot_consts(self):
        self.a(f"""
        s_lshl_b32 s{sA}, s{sW}, 11
        s_add_u32 s{sSLOT}, s{sA}, {RING + ROFF[0]}
        s_add_u32 s{sSLOT + 1}, s{sA}, {RING + ROFF[1]}
        s_add_u32 s{sSLOT + 2}, s{sA}, {RING + ROFF[2]}
        s_add_u32 s{sSLOT + 3}, s{sA}, {RING + ROFF[3]}
        v_and_b32 v{IA + 1}, 31, v{LANE}
        v_lshlrev_b32 v{IA + 1}, 4, v{IA + 1}
        """)

    def lane_consts(self):
        self.a(f"""
        v_lshl_add_u32 v{RG}, v{LANE}, 1, s{sSLOT}
        v_lshlrev_b32 v{L4}, 2, v{LANE}
        v_lshlrev_b32 v{L8}, 3, v{LANE}
        v_or_b32 v{L8}, {AB}, v{L8}
        """)

    def side_fill(self, tmp, adr):
        self.a(f"""
        v_mov_b64 {vr(tmp, 2)}, -1
        s_lshl_b32 s{sA}, s{sW}, 9
        s_add_u32 s{sA}, s{sA}, {SIDE}
        v_lshl_add_u32 v{adr}, v{LANE}, 3, s{sA}
        ds_write_b64 v{adr}, {vr(tmp, 2)}
        """)

    def tag_calc(self):
        self.a(f"""
        v_readfirstlane_b32 s{sTAG}, v{W3}
        v_readfirstlane_b32 s{sTAG + 1}, v{W3 + 1}
        s_add_u32 s{sTAG}, s{sTAG}, 1
        s_addc_u32 s{sTAG + 1}, s{sTAG + 1}, 0
        s_lshl_b32 s{sTLO}, s{sTAG + 1}, 20
        s_lshl_b32 s{sRA}, s{sTAG}, 24
        s_bfe_u32 s{sRB}, s{sTAG}, 0x100008
        """)

    def clean(self, S):
        a = self.a
        lp, ok = a.newlabel("clean"), a.newlabel("cleanok")
        a(f"s_mov_b32 s{sM}, 0\n{lp}:\ns_mov_b64 s[40:41], 0")

        def one(k):
            a(f"""
            s_mov_b64 exec, {sr(sVAL + 2 * k, 2)}
            v_xor_b32 v{S.rec[k]}, s{sRA}, v{S.rec[k]}
            v_xor_b32 v{S.rec[k] + 1}, s{sRB}, v{S.rec[k] + 1}
            v_lshrrev_b32 v{S.adr + k}, 24, v{S.rec[k]}
            v_lshl_or_b32 v{S.adr + k}, v{S.rec[k] + 1}, 16, v{S.adr + k}
            v_cmp_ne_u32 vcc, 0, v{S.adr + k}
            s_or_b64 s[40:41], s[40:41], vcc
            """)
        self.hi_passes(one)
        a(f"""
        s_mov_b64 exec, -1
        s_cmp_eq_u64 s[40:41], 0
        s_cbranch_scc1 {ok}
        s_add_u32 s{sM}, s{sM}, 1
        s_cmp_gt_u32 s{sM}, {POLL_LIMIT}
        s_cbranch_scc1 {ok}
        """)
        self.rec_issue(S)
        a(f"s_waitcnt vmcnt(0)\ns_branch {lp}\n{ok}:")

    def binning(self):
        a = self.a
        DV, SV, EP, AD, RK, RV, H0, B0, SQ, t4, t5, t6, t7 = 24, 26, 28, 30, 32, 34, 40, 44, 48, 52, 53, 54, 56
        a(f"""
        s_mov_b32 s{sC}, -40
        s_mov_b32 s{sD}, {HIST}
        v_mov_b32 v{t4}, 1
        v_mov_b32 v{t7}, {S1C}
        v_lshlrev_b32 v{t5}, 4, v{LANE}
        v_add_u32 v{t6}, {HIST}, v{t5}
        s_waitcnt vmcnt(1)
        """)
        self.stamp("edges")
        self.tag_calc()
        R2 = range(2)
        for i in R2:
            a(f"v_mul_u32_u24 v{AD + i}, 52429, v{DV + i}")
        for i in R2:
            a(f"v_lshrrev_b32 v{AD + i}, 21, v{AD + i}")
        for i in R2:
            a(f"v_min_u32 v{RK + i}, 255, v{AD + i}")
        for i in R2:
            a(f"v_and_b32 v{AD + i}, 7, v{RK + i}\nv_lshrrev_b32 v{H0 + i}, 3, v{RK + i}")
        for i in R2:
            a(f"v_lshl_or_b32 v{AD + i}, v{AD + i}, 5, v{H0 + i}")
        for i in R2:
            a(f"v_lshl_add_u32 v{AD + i}, v{AD + i}, 2, s{sD}")
        for i in R2:
            a(f"v_mad_i32_i24 v{DV + i}, v{RK + i}, s{sC}, v{DV + i}")
            a(f"ds_add_rtn_u32 v{RK + i}, v{AD + i}, v{t4}")
        a(f"s_mov_b64 exec, 1\nds_add_u32 v{t7}, v{t4}\ns_mov_b64 exec, -1")
        for i in R2:
            a(f"v_and_b32 v{DV + i}, 63, v{DV + i}\nv_and_b32 v{SV + i}, 0xffff, v{SV + i}")
        for i in R2:
            a(f"v_lshl_or_b32 v{RV + 2 * i}, v{DV + i}, 16, v{SV + i}")
        a(f"""
        v_mov_b32 v{RV + 3}, 0xffff0000
        v_lshl_or_b32 v{RV + 1}, v{EP}, 16, s{sRB}
        v_and_or_b32 v{RV + 3}, v{EP}, v{RV + 3}, s{sRB}
        v_or_b32 v{RV}, s{sRA}, v{RV}
        v_or_b32 v{RV + 2}, s{sRA}, v{RV + 2}
        """)
        self.spin(S1C, 5, t7, f"ds_read_b128 {vr(H0, 4)}, v{t6}")
        a(f"""
        v_add_u32 v{B0 + 1}, v{H0}, v{H0 + 1}
        v_add_u32 v{SQ}, v{H0 + 2}, v{H0 + 3}
        v_add_u32 v{SQ}, v{SQ}, v{B0 + 1}
        v_mov_b32 v{SQ + 1}, v{SQ}
        """)
        self.scan(SQ + 1)
        a(f"""
        v_sub_u32 v{B0}, v{SQ + 1}, v{SQ}
        v_add_u32 v{B0 + 2}, v{B0}, v{B0 + 1}
        v_add_u32 v{B0 + 1}, v{B0}, v{H0}
        v_add_u32 v{B0 + 3}, v{B0 + 2}, v{H0 + 2}
        ds_write_b128 v{t6}, {vr(B0, 4)} offset:{BASE - HIST}
        ds_read_b32 v{DV}, v{AD} offset:{BASE - HIST}
        ds_read_b32 v{DV + 1}, v{AD + 1} offset:{BASE - HIST}
        s_mov_b32 s{sD}, {SORT}
        v_mov_b32 v{t7}, {S2C}
        v_lshlrev_b32 v{t5}, 4, v{TID}
        v_add_u32 v{t6}, {SORT}, v{t5}
        s_mul_i32 s{sB}, s{sT}, {EC * 8}
        s_add_u32 s{sB}, s{sB}, {W_RECS}
        s_waitcnt lgkmcnt(0)
        v_add_u32 v{DV}, v{DV}, v{RK}
        v_add_u32 v{DV + 1}, v{DV + 1}, v{RK + 1}
        v_lshl_add_u32 v{DV}, v{DV}, 3, s{sD}
        v_lshl_add_u32 v{DV + 1}, v{DV + 1}, 3, s{sD}
        ds_write_b64 v{DV}, {vr(RV, 2)}
        ds_write_b64 v{DV + 1}, {vr(RV + 2, 2)}
        s_mov_b64 exec, 1
        ds_add_u32 v{t7}, v{t4}
        s_mov_b64 exec, -1
        """)
        self.spin(S2C, 5, t7, f"ds_read_b128 {vr(SQ, 4)}, v{t6}")
        a(f"buffer_store_dwordx4 {vr(SQ, 4)}, v{t5}, {sr(sWS, 4)}, s{sB} offen sc1")
        self.stamp("binned")

    def build(self):
        a = self.a
        t0, t1, t2, t3, t4, t5, t6, t7 = range(58, 66)
        PQ = 24
        UQ = 108
        u0, u1, u2, u3 = 57, 58, 59, 60

        if self.stamps and "dbg" not in self.opts:
            a(f"s_memrealtime s[86:87]\ns_memtime {sr(self.STAMP_REGS[0], 2)}")
        if "pad0" in self.opts or any(o.startswith("padat=") for o in self.opts):
            a("s_memrealtime s[96:97]")
        a(f"""
        s_cmp_ge_u32 s{sT}, {NT}
        s_cbranch_scc1 L_end
        s_load_dwordx16 s[40:55], s[0:1], 0
        s_load_dwordx2 s[56:57], s[0:1], 64
        v_and_b32 v{LANE}, 63, v{TID}
        """)
        if "nocodepf" not in self.opts:
            a(f"""
            s_getpc_b64 s[4:5]
            L_pc:
            """)
            if "slicepf" not in self.opts:
                a(f"""
                v_lshlrev_b32 v{t0}, 4, v{TID}
                v_min_u32 v{t0}, L_end-L_pc-12, v{t0}
                global_load_dwordx4 {vr(AC2 + 8, 4)}, v{t0}, s[4:5]
                """)
            else:
                a(f"""
                s_lshr_b32 s6, s{sT}, 3
                s_and_b32 s6, s6, 31
                s_lshl_b32 s6, s6, 10
                v_lshl_add_u32 v{t0}, v{TID}, 4, s6
                v_min_u32 v{t0}, L_code_end-L_pc-16, v{t0}
                v_cmp_gt_u32 vcc, 64, v{TID}
                s_cbranch_vccz L_nopf
                global_load_dwordx4 {vr(AC2 + 8, 4)}, v{t0}, s[4:5]
                L_nopf:
                """)
        a(f"""
        v_lshrrev_b32 v{t0}, 6, v{TID}
        v_mov_b32 v{t6}, 0
        v_lshlrev_b32 v{t7}, 2, v{TID}
        v_readfirstlane_b32 s{sW}, v{t0}
        v_add_u32 v{t7}, {HIST}, v{t7}
        s_cmp_lt_u32 s{sW}, 4
        s_cbranch_scc1 L_z1
        s_cmp_gt_u32 s{sW}, 5
        s_cbranch_scc1 L_z2
        v_add_u32 v{t7}, {CNTN - HIST - 1024}, v{t7}
        L_z1:
        ds_write_b32 v{t7}, v{t6}
        L_z2:
        v_lshrrev_b32 v{t3}, 5, v{TID}
        v_and_b32 v{t4}, 31, v{TID}
        v_and_b32 v{t5}, 15, v{t3}
        v_xor_b32 v{t6}, v{t5}, v{t4}
        v_lshlrev_b32 v{t6}, 4, v{t6}
        s_mul_i32 s{sB}, s{sT}, {T * 512}
        v_lshl_add_u32 v{t6}, v{t3}, 9, v{t6}
        v_add_u32 v{GO}, s{sB}, v{t6}
        v_and_b32 v{t6}, 3, v{t5}
        v_lshrrev_b32 v{t7}, 1, v{t5}
        v_and_b32 v{t7}, 4, v{t7}
        v_or_b32 v{t6}, v{t6}, v{t7}
        v_lshlrev_b32 v{t6}, 1, v{t6}
        v_xor_b32 v{t6}, v{t6}, v{t4}
        v_lshlrev_b32 v{t6}, 4, v{t6}
        v_lshl_add_u32 v{WOFF}, v{t5}, 9, v{t6}
        s_and_b32 s{sW1K}, s{sW}, 7
        s_lshl_b32 s{sW1K}, s{sW1K}, 10
        """)
        for s_, nb in ((sDST, E * 4), (sSRC, E * 4), (sEA, E * 2), (sX, N * 512), (sWM, 513 * 512), (sWU, 512 * 512), (sWS, WS_SIZE)):
            if s_ == sX:
                continue
            a(f"s_mov_b32 s{s_ + 2}, {nb}\ns_mov_b32 s{s_ + 3}, 0x20000")
        a(f"s_mov_b32 s{sX + 2}, {N * 512}\ns_mov_b32 s{sX + 3}, 0x20000")
        if self.stamps:
            a(f"v_mov_b32 v{STAMPV}, 0")
            for r in self.STAMP_REGS[1:5]:
                a(f"s_mov_b32 s{r}, 0")
        a("s_waitcnt lgkmcnt(0)")

        def srd(s, p, nbytes):
            a(f"""
            s_mov_b32 s{s}, s{p}
            s_mov_b32 s{s + 1}, s{p + 1}
            s_mov_b32 s{s + 2}, {nbytes}
            s_mov_b32 s{s + 3}, 0x20000
            """)

        for s_, p_ in ((sDST, 46), (sSRC, 44), (sEA, 42), (sX, 40), (sWM, 48), (sWU, 50), (sWS, 56)):
            a(f"s_mov_b64 {sr(s_, 2)}, {sr(p_, 2)}")
        bp = self.opt("bp", 1)
        if bp == 0:
            a("s_barrier")
        if self.opt("pad", 0) and "pad0" not in self.opts:
            a("s_memrealtime s[96:97]")
        self.stamp("start")
        self.stamp("bar0")
        EPV = W3
        a(f"""
        v_mov_b32 v{t0}, {W_EPOCH}
        s_cmp_ge_u32 s{sW}, 8
        s_cbranch_scc1 L_role_l
        s_cmp_ge_u32 s{sW}, 5
        s_cbranch_scc1 L_role_u
        s_setprio 3
        v_lshlrev_b32 v{t6}, 3, v{TID}
        v_lshlrev_b32 v{t7}, 2, v{TID}
        s_mul_i32 s{sA}, s{sT}, {EC * 4}
        s_mul_i32 s{sB}, s{sT}, {EC * 2}
        buffer_load_dwordx2 v[24:25], v{t6}, {sr(sDST, 4)}, s{sA} offen
        buffer_load_dwordx2 v[26:27], v{t6}, {sr(sSRC, 4)}, s{sA} offen
        buffer_load_dword v28, v{t7}, {sr(sEA, 4)}, s{sB} offen
        buffer_load_dwordx2 {vr(EPV, 2)}, v{t0}, {sr(sWS, 4)}, 0 offen
        s_sub_u32 s{sA}, s{sW}, 1
        s_and_b32 s{sA}, s{sA}, 7
        s_mul_i32 s{sD}, s{sA}, {NT}
        s_add_u32 s{sD}, s{sD}, s{sT}
        s_lshl_b32 s{sA}, s{sA}, 10
        s_add_u32 m0, s{sA}, {SLOT[3]}
        s_and_b32 s{sA}, s{sD}, 7
        s_bfe_u32 s{sB}, s{sD}, 0x40003
        s_lshr_b32 s{sC}, s{sD}, 7
        s_lshl_b32 s{sUO}, s{sB}, 4
        s_lshl_b32 s{sUG}, s{sC}, 3
        s_add_u32 s{sUO}, s{sUO}, s{sUG}
        s_add_u32 s{sUO}, s{sUO}, s{sA}
        s_lshl_b32 s{sUG}, s{sUO}, 5
        s_add_u32 s{sUG}, s{sUG}, {W_UTAG}
        s_lshl_b32 s{sUO}, s{sUO}, 10
        s_add_u32 s{sUO}, s{sUO}, {W_UT}
        s_lshl_b32 s{sA}, s{sA}, 5
        s_lshl_b32 s{sB}, s{sB}, 5
        s_cmp_lt_u32 s{sD}, 256
        s_cselect_b32 s{sB}, s{sB}, {OOB}
        s_cselect_b32 s{sUO}, s{sUO}, {OOB}
        s_cselect_b32 s{sUG}, s{sUG}, {OOB}
        v_lshrrev_b32 v{t6}, 1, v{LANE}
        v_add_u32 v{t6}, s{sA}, v{t6}
        v_and_b32 v{t5}, 1, v{LANE}
        v_lshlrev_b32 v{t5}, 4, v{t5}
        s_cmp_eq_u32 s{sC}, 0
        s_cbranch_scc1 L_pc_u1
        v_and_b32 v{t7}, 3, v{t6}
        v_lshrrev_b32 v{t6}, 2, v{t6}
        v_lshl_add_u32 v{t6}, v{t7}, 6, v{t6}
        v_add_u32 v{t6}, 256, v{t6}
        L_pc_u1:
        v_lshl_add_u32 v{t6}, v{t6}, 9, v{t5}
        buffer_load_dwordx4 v{t6}, {sr(sWU, 4)}, s{sB} offen lds
        s_branch L_role_done
        L_role_u:
        buffer_load_dwordx2 {vr(EPV, 2)}, v{t0}, {sr(sWS, 4)}, 0 offen
        v_subrev_u32 v{t3}, 10, v{t3}
        s_mul_i32 s{sB}, s{sT}, {T * 512}
        s_lshl_b32 s{sA}, s{sW}, 10
        """)
        for i in range(7):
            if i == 6:
                a(f"""
                s_cmp_eq_u32 s{sW}, 7
                s_cselect_b32 s{sC}, 2, 0
                v_subrev_u32 v{t3}, s{sC}, v{t3}
                s_lshl_b32 s{sC}, s{sC}, 9
                s_sub_u32 s{sA}, s{sA}, s{sC}
                """)
            a(f"""
            v_and_b32 v{t6}, 15, v{t3}
            v_xor_b32 v{t6}, v{t6}, v{t4}
            v_lshlrev_b32 v{t6}, 4, v{t6}
            s_add_u32 m0, s{sA}, {XB - 5120 + 3072 * i}
            v_lshl_add_u32 v{t6}, v{t3}, 9, v{t6}
            v_add_u32 v{t3}, 6, v{t3}
            buffer_load_dwordx4 v{t6}, {sr(sX, 4)}, s{sB} offen lds
            """)
        a(f"""
        s_branch L_role_done
        L_role_l:
        buffer_load_dwordx2 {vr(EPV, 2)}, v{t0}, {sr(sWS, 4)}, 0 offen
        s_lshr_b32 s{sA}, s{sT}, 3
        s_lshl_b32 s{sA}, s{sA}, 13
        s_add_u32 s{sA}, s{sA}, s{sW1K}
        s_lshr_b32 s{sC}, s{sA}, 1
        v_lshlrev_b32 v{t7}, 3, v{LANE}
        buffer_load_dwordx2 {vr(AC2, 2)}, v{t7}, {sr(sWM, 4)}, s{sC} offen
        s_add_u32 s{sC}, s{sC}, 131072
        buffer_load_dwordx2 {vr(AC2 + 2, 2)}, v{t7}, {sr(sWM, 4)}, s{sC} offen
        s_cmp_eq_u32 s{sW}, 15
        s_cbranch_scc0 L_role_done
        s_mov_b32 m0, {W3L}
        v_lshlrev_b32 v{t7}, 4, v{LANE}
        s_mov_b32 s{sB}, {512 * 512}
        buffer_load_dwordx4 v{t7}, {sr(sWM, 4)}, s{sB} offen lds
        L_role_done:
        """)
        if bp == 1:
            a("s_barrier")
        UA = W3 - 9 - 5
        srd(sOUT, 52, N * 512)
        a(f"""
        s_add_u32 s{sP}, s56, {W_P}
        s_addc_u32 s{sP + 1}, s57, 0
        s_or_b32 s{sP + 1}, s{sP + 1}, {512 << 16}
        s_mov_b32 s{sP + 2}, {N}
        s_mov_b32 s{sP + 3}, 0x20000
        s_mov_b32 s{sNL2E}, {NLOG2E}
        s_mov_b32 s{sNL2E + 1}, {NLOG2E}
        s_mov_b32 s{sNLN2}, {NLN2}
        s_mov_b32 s{sNLN2 + 1}, {NLN2}
        s_lshl_b32 s{sWK}, s{sW}, 10
        s_lshr_b32 s{sHI}, s{sW}, 3
        s_lshl_b32 s{sHI}, s{sHI}, 13
        s_mov_b32 s{sGEN}, 0
        v_and_b32 v{t0}, 15, v{LANE}
        v_lshrrev_b32 v{t1}, 4, v{LANE}
        v_bfe_u32 v{t2}, v{LANE}, 2, 2
        v_and_b32 v{t3}, 3, v{LANE}
        s_lshl_b32 s{sB}, s{sW}, 1
        v_and_b32 v{t4}, 1, v{t1}
        v_lshl_or_b32 v{t4}, v{t4}, 2, v{t2}
        v_lshlrev_b32 v{t4}, 1, v{t4}
        v_lshrrev_b32 v{t5}, 1, v{t3}
        v_add_u32 v{t5}, s{sB}, v{t5}
        v_xor_b32 v{t4}, v{t4}, v{t5}
        v_lshlrev_b32 v{t4}, 4, v{t4}
        v_and_b32 v{t5}, 1, v{t3}
        v_lshl_add_u32 v{t4}, v{t5}, 3, v{t4}
        v_lshl_add_u32 v{t5}, v{t1}, 3, v{t2}
        v_lshl_add_u32 v{TR0}, v{t5}, 9, v{t4}
        v_add_u32 v{TR1}, 65536, v{TR0}
        v_lshlrev_b32 v{t5}, 5, v{t5}
        v_lshl_add_u32 v{UA + 9}, v{t3}, 3, v{t5}
        v_lshlrev_b32 v{t5}, 9, v{t0}
        v_add_u32 v{t5}, {XB}, v{t5}
        """)
        for k in range(4):
            a(f"""
            v_add_u32 v{t4}, {4 * k}, v{t1}
            v_xor_b32 v{t4}, v{t4}, v{t0}
            v_lshl_add_u32 v{XA + k}, v{t4}, 4, v{t5}
            """)
        a(f"""
        v_lshrrev_b32 v{t4}, 1, v{t1}
        v_add_u32 v{t4}, s{sB}, v{t4}
        v_xor_b32 v{t4}, v{t4}, v{t0}
        v_lshlrev_b32 v{t4}, 4, v{t4}
        v_and_b32 v{t6}, 1, v{t1}
        v_lshl_add_u32 v{t4}, v{t6}, 3, v{t4}
        v_lshl_add_u32 v{t4}, v{t0}, 9, v{t4}
        v_add_u32 v{STG}, {PS}, v{t4}
        v_lshlrev_b32 v{STR}, 4, v{TID}
        v_add_u32 v{STR}, {PS}, v{STR}
        v_add_u32 v{GO2}, 16384, v{GO}
        s_cmp_lt_u32 s{sW}, 4
        s_cbranch_scc1 L_go2
        v_mov_b32 v{GO2}, {OOB}
        L_go2:
        """)
        if bp == 2:
            a("s_barrier")
        a(f"""
        s_cmp_lt_u32 s{sW}, 5
        s_cbranch_scc0 L_nobin
        """)
        self.binning()
        a(f"""
        s_cmp_eq_u32 s{sW}, 0
        s_cbranch_scc0 L_piece
        v_lshlrev_b32 v{t0}, 3, v{LANE}
        v_add_u32 v{t0}, {HIST}, v{t0}
        ds_read_b64 {vr(66, 2)}, v{t0}
        ds_read_b64 {vr(68, 2)}, v{t0} offset:{BASE - HIST}
        ds_read_b64 {vr(70, 2)}, v{t0} offset:512
        ds_read_b64 {vr(72, 2)}, v{t0} offset:{BASE - HIST + 512}
        v_lshlrev_b32 v{t1}, 4, v{LANE}
        s_lshl_b32 s{sB}, s{sT}, 11
        s_add_u32 s{sB}, s{sB}, {W_OFFS}
        s_waitcnt lgkmcnt(0)
        """)
        for i in range(4):
            h, b = 66 + 4 * (i >> 1) + (i & 1), 68 + 4 * (i >> 1) + (i & 1)
            a(f"""
            v_lshl_or_b32 v{ACC + 2 * i}, v{h}, 10, v{b}
            v_mov_b32 v{ACC + 2 * i + 1}, s{sTAG}
            v_or_b32 v{ACC + 2 * i}, s{sTLO}, v{ACC + 2 * i}
            """)
        a(f"""
        buffer_store_dwordx4 {vr(ACC, 4)}, v{t1}, {sr(sWS, 4)}, s{sB} offen sc1
        buffer_store_dwordx4 {vr(ACC + 4, 4)}, v{t1}, {sr(sWS, 4)}, s{sB} offen offset:1024 sc1
        s_setprio 0
        s_branch L_bin_done
        L_piece:
        s_setprio 0
        s_cmp_lt_u32 s{sW}, 3
        s_cbranch_scc0 L_bin_done
        s_lshl_b32 s{sA}, s{sW}, 10
        s_add_u32 s{sA}, s{sA}, {SLOT[3] - 1024}
        v_add_u32 v{UA + 9}, s{sA}, v{UA + 9}
        v_lshlrev_b32 v{W3 + 2}, 4, v{LANE}
        s_waitcnt vmcnt(1)
        ds_read_b64_tr_b16 {vr(AC2 + 4, 2)}, v{UA + 9}
        ds_read_b64_tr_b16 {vr(AC2 + 6, 2)}, v{UA + 9} offset:128
        s_waitcnt lgkmcnt(0)
        buffer_store_dwordx4 {vr(AC2 + 4, 4)}, v{W3 + 2}, {sr(sWS, 4)}, s{sUO} offen sc1
        s_branch L_bin_done
        L_nobin:
        s_cmp_ge_u32 s{sW}, 8
        s_cbranch_scc1 L_bin_ld
        v_mov_b32 v{W3 + 2}, {XCNT}
        v_mov_b32 v{W3 + 3}, 1
        s_mov_b64 exec, 1
        s_waitcnt vmcnt(4)
        ds_add_u32 v{W3 + 2}, v{W3 + 3}
        s_mov_b64 exec, -1
        s_branch L_bin_done
        L_bin_ld:
        """)
        self.dma_body(0, 0)
        a(f"""
        s_waitcnt vmcnt(6)
        L_bin_done:
        """)
        self.tag_calc()
        self.xpreload(UA + 9)
        self.stamp("xpre")

        R0 = 116
        XBUF = (80, 92)
        fbuf = [UF + 4 * i for i in range(6)] + [56, 60]
        OV, o0, o1, o2, o3, UV = 20, 22, 23, 16, 17, 116

        def frag(i):
            a(f"""
            s_add_u32 s{sB}, s{sUB}, {1024 * i}
            buffer_load_dwordx4 {vr(fbuf[i], 4)}, v{FO}, {sr(sWS, 4)}, s{sB} offen sc1
            """)
            self.vm("LN", f"f{i}")

        def x3(i):
            for rb in range(3):
                a(f"ds_read_b128 {vr(XBUF[i & 1] + 4 * rb, 4)}, v{XA + (i & 3)} offset:{rb * 8192 + (i >> 2) * 256}")
                self.lq.append(f"x{i}")

        def consume(i):
            self.vmwait({f"f{i}"})
            if f"x{i}" in self.lq:
                self.lwait(f"x{i}")
            for rb in range(3):
                cin = "0" if i == 0 else vr(ACC + 4 * rb, 4)
                a(f"v_mfma_f32_16x16x32_bf16 {vr(ACC + 4 * rb, 4)}, {vr(fbuf[i], 4)}, {vr(XBUF[i & 1] + 4 * rb, 4)}, {cin}")
            if i + 2 < 8:
                x3(i + 2)

        def utag_issue(dst, adr):
            a(f"""
            v_lshlrev_b32 v{adr}, 5, v{LANE}
            s_lshl_b32 s{sC}, s{sW}, 9
            s_add_u32 s{sC}, s{sC}, {W_UTAG}
            s_mov_b64 exec, 0xffff
            buffer_load_dwordx2 {vr(dst, 2)}, v{adr}, {sr(sWS, 4)}, s{sC} offen sc1
            s_mov_b64 exec, -1
            """)

        def utag_check(dst):
            a(f"""
            v_cmp_ne_u64 vcc, {sr(sTAG, 2)}, {vr(dst, 2)}
            s_nop 1
            s_and_b32 s{sU}, vcc_lo, 0xffff
            """)

        def offs_issue():
            a(f"""
            s_and_b32 s{sC}, s{sT}, 7
            s_lshl_b32 s{sC}, s{sC}, 8
            s_and_b32 s{sB}, s{sT}, 0xf8
            s_add_u32 s{sC}, s{sC}, s{sB}
            s_add_u32 s{sC}, s{sC}, {W_OFFS}
            buffer_load_dwordx2 {vr(OV, 2)}, v{o0}, {sr(sWS, 4)}, s{sC} offen sc1
            """)

        def offs_check():
            a(f"""
            v_xor_b32 v{o1}, s{sTLO}, v{OV}
            v_cmp_ne_u32 vcc, s{sTAG}, v{OV + 1}
            s_mov_b32 s{sB}, 0x100000
            v_cmp_le_u32 s[40:41], s{sB}, v{o1}
            s_nop 1
            s_or_b64 vcc, vcc, s[40:41]
            s_and_b64 vcc, vcc, {sr(sVAL, 2)}
            """)

        def parse():
            a(f"""
            v_cndmask_b32 v{OV}, 0, v{o1}, {sr(sVAL, 2)}
            v_and_b32 v{o1}, 3, v{TID}
            v_mul_u32_u24 v{o0}, {EC * 8}, v{RBA}
            v_and_b32 v{o2}, 0x3ff, v{OV}
            v_bfe_u32 v{o3}, v{OV}, 10, 10
            v_add_u32 v{o2}, v{o2}, v{o1}
            v_lshl_add_u32 v{o0}, v{o2}, 3, v{o0}
            v_add_u32 v{RBA}, {W_RECS}, v{o0}
            v_sub_u32 v{CQ}, v{o3}, v{o1}
            v_cmp_lt_u32 vcc, {4 * NPASS}, v{o3}
            """)
            lab = a.newlabel("nomax")
            a(f"""
            s_cbranch_vccz {lab}
            v_mov_b32 v{o2}, {MISC}
            s_mov_b64 exec, vcc
            ds_max_u32 v{o2}, v{o3}
            s_mov_b64 exec, -1
            s_waitcnt lgkmcnt(0)
            {lab}:
            """)
            self.rec_issue(SCRP)

        slot = [0, 1, 2, 3, 0, 1, 0, 3]
        nearly = self.opt("early", 2)
        edel = self.opt("edel", 0)
        b0v = self.opt("b0v", 0)
        plan = {0: {0: [3], 1: [4], 2: [5]}, 1: {0: [2, 3], 1: [4], 2: [5]}, 2: {0: [1, 2], 1: [3], 2: [4], 3: [5]}, 3: {0: [1, 2], 1: [3, 4], 2: [5]}}[b0v]
        issue_at = {}

        def gstep(k, lgkm=False, post=None):
            self.vmwait({f"c{k}"})
            self.barrier(f"B{k}", lgkm=lgkm)
            if post:
                post()
            self.trreads(slot[k])
            cs = plan.get(k, [])

            def btw(sp):
                if len(cs) == 1:
                    self.dma_all(cs[0], slot[cs[0]], sp)
                elif len(cs) == 2:
                    self.dma_all(cs[0], slot[cs[0]], sp)

            self.mfmas(AC2, k & 3, btw if cs else None)
            if len(cs) == 2:
                self.dma_all(cs[1], slot[cs[1]], 0)
                self.dma_all(cs[1], slot[cs[1]], 1)
            if k not in (3, 7):
                self.xreads((k + 1) & 3)

        def look():
            a(f"""
            v_mov_b32 v{o1}, {OOB}
            v_lshrrev_b32 v{RBA}, 2, v{TID}
            v_lshlrev_b32 v{o0}, 11, v{RBA}
            s_movk_i32 s{sA}, {NT}
            v_cmp_gt_u32 {sr(sVAL, 2)}, s{sA}, v{RBA}
            s_mov_b32 s{sP0}, 0
            s_mov_b32 s{sNP}, {NPASS}
            s_mov_b32 s{sMODE}, 0
            v_cndmask_b32 v{o0}, v{o1}, v{o0}, {sr(sVAL, 2)}
            """)
            offs_issue()
            if "utearly" in self.opts:
                utag_issue(UV, UV + 2)
                self.vm("LN", "offs")
            self.vm("LN", "offs")

        def piece_tag():
            a(f"s_sub_u32 s{sA}, s{sW}, 1\ns_cmp_lt_u32 s{sA}, 2\ns_cbranch_scc0 L_notag\ns_waitcnt vmcnt({len(self.q['N'])})")
            self.tag_store(sUG, 116)
            a.label("L_notag")

        kis = self.opt("kis", 3)
        recpos = self.opt("recpos", 2)

        def try_records():
            self.vmwait({"offs"})
            if "utearly" in self.opts:
                utag_check(UV)
            offs_check()
            a(f"s_mov_b32 s{sE}, 0\ns_cbranch_scc1 L_late")
            parse()
            a(f"s_mov_b32 s{sE}, 1\ns_branch L_intime\nL_late:")
            offs_issue()
            offs_issue()
            a.label("L_intime")
            self.vm("LN", "rec", 2)

        for k in range(4):
            gstep(k, post=piece_tag if k == self.opt('kpt', 0) else None)
            if k == kis:
                look()
            if k == 2 and recpos == -1:
                try_records()
        for rb in range(3):
            for h in range(2):
                a(f"v_pk_mul_f32 {vr(AC2 + 4 * rb + 2 * h, 2)}, {vr(AC2 + 4 * rb + 2 * h, 2)}, {sr(sNL2E, 2)} op_sel_hi:[1,0]")
            a(f"v_cvt_pk_bf16_f32 v{AC2 + 4 * rb}, v{AC2 + 4 * rb}, v{AC2 + 4 * rb + 1}")
            a(f"v_cvt_pk_bf16_f32 v{AC2 + 4 * rb + 1}, v{AC2 + 4 * rb + 2}, v{AC2 + 4 * rb + 3}")
            a(f"ds_write_b64 v{STG}, {vr(AC2 + 4 * rb, 2)} offset:{rb * 8192}")
        if recpos == 0:
            try_records()
        a("s_setprio 3")
        self.barrier("PS")
        a(f"""
        ds_read_b128 {vr(AC2, 4)}, v{STR}
        ds_read_b128 {vr(AC2 + 4, 4)}, v{STR} offset:16384
        """)
        self.xreads(0)
        a(f"""
        s_mov_b32 s{sB}, {W_P}
        s_waitcnt lgkmcnt(3)
        buffer_store_dwordx4 {vr(AC2, 4)}, v{GO}, {sr(sWS, 4)}, s{sB} offen sc1
        s_waitcnt lgkmcnt(2)
        buffer_store_dwordx4 {vr(AC2 + 4, 4)}, v{GO2}, {sr(sWS, 4)}, s{sB} offen sc1
        s_setprio 0
        """)
        self.vm("LN", "p", 2)
        self.stamp("pst")
        if recpos == 2:
            try_records()
        self.stampval("E", sE)

        def fb():
            tmp = ACC + 8 if kfb == 6 else ACC
            if "repl" not in self.opts:
                a(f"s_lshl_b32 s{sB}, s{sT}, 5\ns_add_u32 s{sB}, s{sB}, {W_FB}")
                self.tag_store(sB, tmp)
                return
            a(f"""
            s_lshl_b32 s{sB}, s{sT}, 4
            s_add_u32 s{sB}, s{sB}, {W_FR}
            v_mov_b32 v{tmp}, s{sTAG}
            v_mov_b32 v{tmp + 1}, s{sTAG + 1}
            v_lshlrev_b32 v{tmp + 2}, 12, v{LANE}
            s_mov_b64 exec, 0xff
            buffer_store_dwordx2 {vr(tmp, 2)}, v{tmp + 2}, {sr(sWS, 4)}, s{sB} offen sc1
            s_mov_b64 exec, -1
            """)

        todo = [(c, m) for c in range(4 + nearly, 8) for m in range(2)]
        kfb = self.opt("kfb", 5)

        def issue(n):
            nonlocal todo
            for c, m in todo[:n]:
                self.dma_all(c, slot[c], m)
            todo = todo[n:]

        if nearly < 2:
            issue(self.opt("npre", 2))
        for k in (4, 5):
            if k == kfb:
                self.vmwait({"p"})
                self.stamp("ack")
            while todo and todo[0][0] <= k:
                issue(1)
            gstep(k, post=(lambda: self.wave0(fb)) if k == kfb else None)
            if k == 4 and "utearly" not in self.opts:
                utag_issue(24, 26)
                self.vm("LN", "utag")
            if k >= kfb and k == 4 and nearly < 2:
                issue(2)
        a(f"""
        s_lshl_b32 s{sUB}, s{sW}, 14
        s_add_u32 s{sUB}, s{sUB}, {W_UT}
        """)
        self.vmwait({"rec"})
        a(f"""
        s_cmp_eq_u32 s{sE}, 1
        s_cbranch_scc1 L_recs_ok
        s_mov_b32 s{sD}, 0
        L_offs_chk:
        """)
        offs_check()
        a(f"""
        s_cbranch_scc0 L_offs_ok
        s_add_u32 s{sD}, s{sD}, 1
        s_cmp_gt_u32 s{sD}, {POLL_LIMIT}
        s_cbranch_scc1 L_offs_ok
        """)
        offs_issue()
        a("s_waitcnt vmcnt(0)\ns_branch L_offs_chk\nL_offs_ok:")
        parse()
        a("s_waitcnt vmcnt(0)\nL_recs_ok:")
        self.stamp("rec")
        self.clean(SCRX)
        self.count(SCRX)
        issue(8)
        if kfb == 6:
            self.vmwait({"p"})
            self.stamp("ack")
        self.barrier("C1")
        if kfb == 6:
            self.wave0(fb)
        if "utearly" not in self.opts:
            self.vmwait({"utag"})
            utag_check(24)
        a(f"""
        v_lshlrev_b32 v{FO}, 4, v{LANE}
        s_cmp_eq_u32 s{sU}, 0
        s_cbranch_scc1 L_tags_ok
        s_mov_b32 s{sD}, 0
        L_tags:
        """)
        utag_issue(24, 26)
        a(f"s_add_u32 s{sD}, s{sD}, 1\ns_cmp_gt_u32 s{sD}, {POLL_LIMIT}\ns_waitcnt vmcnt(0)\ns_cbranch_scc1 L_tags_ok")
        utag_check(24)
        a("s_cbranch_scc1 L_tags\nL_tags_ok:")
        frag(0)
        frag(1)
        self.lists(SCRX, "L_gen1")
        a.label("L_gen1_back")
        self.side_fill(ACC + 10, ACC + 3)
        pp = self.opt("pp", 1)
        frag(2)
        frag(3)
        if pp == 0:
            self.wave0(self.poll_issue)
        gstep(6, lgkm=True)
        if pp == 1:
            self.wave0(self.poll_issue)
        a(f"s_mov_b32 s{sB}, {W3L}\nv_lshl_add_u32 v{ACC + 3}, v{LANE}, 1, s{sB}")
        for r in range(4):
            a(f"ds_read_u16_d16_hi v{W3 + r}, v{ACC + 3} offset:{128 * r}")
        frag(4)
        frag(5)
        self.setup(69)
        if pp == 2:
            self.wave0(self.poll_issue)
        frag(6)
        frag(7)
        a(f"""
        v_and_b32 v75, 15, v{LANE}
        v_cmp_gt_u32 {sr(sEX, 2)}, 8, v75
        v_mul_u32_u24 v74, {QS}, v75
        v_and_b32 v75, 48, v{LANE}
        s_lshl_b32 s{sB}, s{sW}, 6
        v_add3_u32 v74, v74, v75, s{sB}
        """)
        self.slot_consts()
        self.stamp("pre")

        def pw():
            self.poll_wait()
            a(f"s_cmp_eq_u32 s{sT}, 0\ns_cbranch_scc0 L_noep\ns_mov_b32 s{sB}, {W_EPOCH}")
            self.tag_store(sB, POLLB)
            a.label("L_noep")
        self.wave0(pw)
        self.vmwait({"c7"})
        self.barrier("C2")

        def g(k):
            a(f"v_mov_b32 v{IA}, v{IX0 + k}")
            self.gather(k)
            self.vm("LN", "g")

        self.trreads(slot[7])
        self.mfmas(AC2, 3, g if self.opt("gp", 1) == 1 else None)
        if self.opt("gp", 1) == 2:
            g(0)
            g(1)
        x3(0)
        x3(1)
        for rb in range(3):
            for h in range(2):
                a(f"v_pk_mul_f32 {vr(AC2 + 4 * rb + 2 * h, 2)}, {vr(AC2 + 4 * rb + 2 * h, 2)}, {sr(sNL2E, 2)} op_sel_hi:[1,0]")
            if rb == 2:
                a(f"s_mov_b64 exec, {sr(sEX, 2)}")
            a(f"ds_write_b128 v74, {vr(AC2 + 4 * rb, 4)} offset:{QB + rb * 16 * QS}")
            self.lq.append("q")
        a("s_mov_b64 exec, -1")
        self.stamp("q")
        g2, g3 = self.opt("g2", 2), self.opt("g3", 5)
        for i in range(8):
            consume(i)
            if i == 0:
                a("s_barrier")
            if i == g2:
                g(2)
            if i == g3:
                g(3)
        a(f"v_mov_b32 v{IA}, v{IX0 + 4}")
        for r in range(4):
            a(f"v_mul_f32 v{W3 + r}, s{sNL2E}, v{W3 + r}")
        for h in range(6):
            a(f"v_pk_mul_f32 {vr(ACC + 2 * h, 2)}, {vr(ACC + 2 * h, 2)}, {sr(sNL2E, 2)} op_sel_hi:[1,0]")
        self.lane_consts()
        self.barrier("R")
        a(f"""
        s_cmp_eq_u32 s{sGEN}, 0
        s_cbranch_scc0 L_generic
        s_and_b32 s{sZ + 1}, s{sZ + 1}, 0xff
        s_or_b32 s{sA}, s{sZ}, s{sZ + 1}
        s_or_b32 s{sA}, s{sA}, s{sMODE}
        s_cbranch_scc1 L_clear
        L_r_done:
        s_cmp_gt_i32 s{sNE}, 0
        s_cbranch_scc0 L_empty
        """)
        if "noprio" not in self.opts:
            a("s_setprio 3")
        a(f"""
        ds_read_b64 {vr(EE[0], 2)}, v{EA}
        v_add_u32 v{QA}, s{sQ0}, v{L4}
        ds_read2st64_b32 {vr(Q, 2)}, v{QA} offset0:0 offset1:1
        ds_read2st64_b32 {vr(Q + 2, 2)}, v{QA} offset0:2 offset1:3
        v_xor_b32 v{AG}, s{sAG0}, v{L8}
        v_add_u32 v{CNA}, {CNTN}, v{L4}
        v_mov_b32 v{TZ}, 0
        ds_write_b32 v{CNA}, v{TZ}
        v_mov_b64 {vr(NN, 2)}, 0
        v_mov_b64 {vr(NN + 2, 2)}, 0
        v_mov_b32 v{DD}, 1.0
        v_mov_b32 v{DD + 1}, 1.0
        v_mov_b32 v{DD + 2}, 1.0
        v_mov_b32 v{DD + 3}, 1.0
        v_mov_b64 {vr(CK2, 2)}, 0
        v_mov_b32 v{CK1}, 0
        s_mov_b32 s{sI}, 0
        s_or_b32 s{sTM}, s{sMASK}, {0xff if "u2early" in self.opts else 0}
        s_mov_b32 s{sW11}, {0 if "u2early" in self.opts else -1}
        """)
        self.stamp("setup")
        a("s_waitcnt vmcnt(3)")
        self.stamp("row0")
        self.p_reads(0, 0)
        a("s_waitcnt lgkmcnt(0)")
        self.gather(0)
        if "u2early" in self.opts:
            self.u2_loads()
        a(f"""
        s_cmp_eq_u32 s{sMODE}, 0
        s_cbranch_scc0 L_enter_x
        """)
        self.main_loop(False, "L_main_done")
        a.reset_hist()
        a.label("L_main_done")
        a("s_setprio 0")
        self.stamp("loop")
        a(f"""
        v_add_f32 v{CK2}, v{CK2}, v{CK2 + 1}
        v_mov_b32 v{TM}, {BIG}
        v_cmp_u_f32 vcc, v{CK2}, v{CK2}
        v_cmp_nle_f32 s[40:41], v{CK1}, v{TM}
        s_nop 1
        s_or_b64 vcc, vcc, s[40:41]
        s_cbranch_scc0 L_after
        v_mov_b32 v{TM}, {MISC + 4}
        v_mov_b32 v{TM + 1}, 1
        ds_write_b32 v{TM}, v{TM + 1}
        L_after:
        v_xor_b32 v{STG2}, 0x80, v{STG}
        v_and_b32 v{TM}, 8, v{LANE}
        v_subrev_u32 v{STG2}, 4092, v{STG2}
        v_cmp_eq_u32 vcc, 0, v{TM}
        v_cndmask_b32 v{STG2}, v{STG2}, v{STG}, vcc
        s_waitcnt vmcnt(0)
        """)
        self.barrier("M")
        a(f"""
        v_mov_b32 v{TM}, {MISC + 4}
        ds_read_b32 v{TM + 1}, v{TM}
        """)
        if "oldfin" in self.opts:
            order = [(s_, rb) for s_ in range(8) for rb in range(3)]
        else:
            order = [(s_, rb) for rb in range(3) for s_ in range(8)]
        NB = 12

        def rd(n):
            s_, rb = order[n]
            a(f"ds_read_b128 {vr(XF + 4 * (n % NB), 4)}, v{XA + (s_ & 3)} offset:{rb * 8192 + (s_ >> 2) * 256}")

        for n in range(NB):
            rd(n)
        a(f"""
        s_cmp_eq_u32 s{sMODE}, 0
        s_cbranch_scc0 L_slow_next
        s_waitcnt lgkmcnt(12)
        v_readfirstlane_b32 s{sA}, v{TM + 1}
        s_nop 1
        s_cmp_eq_u32 s{sA}, 0
        s_cbranch_scc0 L_redo
        L_final:
        """)
        TE = 104

        def act(rb):
            ops = []
            for r in range(4):
                ops.append(f"v_exp_f32 v{TE + 4 * rb + r}, v{ACC + 4 * rb + r}")
            for r in range(4):
                ops.append(f"v_add_f32 v{TE + 4 * rb + r}, 1.0, v{TE + 4 * rb + r}")
            for r in range(4):
                ops.append(f"v_rcp_f32 v{TE + 4 * rb + r}, v{TE + 4 * rb + r}")
            for r in range(4):
                ops.append(f"v_mul_f32 v{ACC + 4 * rb + r}, s{sNLN2}, v{ACC + 4 * rb + r}")
            for r in range(4):
                ops.append(f"v_mul_f32 v{ACC + 4 * rb + r}, v{ACC + 4 * rb + r}, v{TE + 4 * rb + r}")
            ops.append(f"v_cvt_pk_bf16_f32 v{TE + 4 * rb}, v{ACC + 4 * rb}, v{ACC + 4 * rb + 1}")
            ops.append(f"v_cvt_pk_bf16_f32 v{TE + 4 * rb + 1}, v{ACC + 4 * rb + 2}, v{ACC + 4 * rb + 3}")
            ops.append(f"ds_write_b64 v{STG}, {vr(TE + 4 * rb, 2)} offset:{rb * 8192}")
            return ops

        pend = []
        lq = [f"r{n}" for n in range(NB)]
        for n in range(24):
            s_, rb = order[n]
            last = lq.index(f"r{n}")
            a(f"s_waitcnt lgkmcnt({len(lq) - 1 - last})")
            lq = lq[last + 1:]
            a(f"v_mfma_f32_16x16x32_bf16 {vr(ACC + 4 * rb, 4)}, {vr(UF + 4 * s_, 4)}, {vr(XF + 4 * (n % NB), 4)}, {vr(ACC + 4 * rb, 4)}")
            if n + NB < 24:
                rd(n + NB)
                lq.append(f"r{n + NB}")
            if "oldfin" not in self.opts:
                if n in (9, 17):
                    pend += act(n // 8 - 1)
                for op in pend[:4]:
                    a(op)
                    if op.startswith("ds_"):
                        lq.append("w")
                pend = pend[4:]
        for op in pend:
            a(op)
        if "oldfin" in self.opts or "nofold" in self.opts:
            for rb in ([2] if "oldfin" not in self.opts else [0, 1, 2]):
                for op in act(rb):
                    a(op)
        else:
            A2 = ACC + 8
            if "nosplit" not in self.opts:
                a(f"s_waitcnt lgkmcnt(0)\ns_barrier\nds_read_b128 {vr(PQ + 8, 4)}, v{STR}")
            a(f"""
            v_mov_b32_dpp v{A2}, v{A2 + 2} row_shr:8 row_mask:0xf bank_mask:0xc
            v_mov_b32_dpp v{A2 + 1}, v{A2 + 3} row_shr:8 row_mask:0xf bank_mask:0xc
            v_exp_f32 v{TE + 8}, v{A2}
            v_exp_f32 v{TE + 9}, v{A2 + 1}
            v_pk_mul_f32 {vr(A2, 2)}, {vr(A2, 2)}, {sr(sNLN2, 2)} op_sel_hi:[1,0]
            v_pk_add_f32 {vr(TE + 8, 2)}, {vr(TE + 8, 2)}, 1.0 op_sel_hi:[1,0]
            v_rcp_f32 v{TE + 8}, v{TE + 8}
            v_rcp_f32 v{TE + 9}, v{TE + 9}
            v_pk_mul_f32 {vr(A2, 2)}, {vr(A2, 2)}, {vr(TE + 8, 2)}
            v_cvt_pk_bf16_f32 v{TE + 8}, v{A2}, v{A2 + 1}
            ds_write_b32 v{STG2}, v{TE + 8} offset:16384
            """)
            if "nosplit" not in self.opts:
                a(f"s_waitcnt lgkmcnt(1)\nbuffer_store_dwordx4 {vr(PQ + 8, 4)}, v{GO}, {sr(sOUT, 4)}, 0 offen sc1")
        self.barrier("F")
        a(f"""
        """)
        if "nosplit" in self.opts:
            a(f"""
            ds_read_b128 {vr(PQ + 8, 4)}, v{STR}
            ds_read_b128 {vr(PQ + 12, 4)}, v{STR} offset:16384
            s_waitcnt lgkmcnt(1)
            buffer_store_dwordx4 {vr(PQ + 8, 4)}, v{GO}, {sr(sOUT, 4)}, 0 offen sc1
            """)
        else:
            a(f"""
            s_cmp_lt_u32 s{sW}, 4
            s_cbranch_scc0 L_stored
            ds_read_b128 {vr(PQ + 12, 4)}, v{STR} offset:16384
            """)
        a(f"""
        s_waitcnt lgkmcnt(0)
        buffer_store_dwordx4 {vr(PQ + 12, 4)}, v{GO2}, {sr(sOUT, 4)}, 0 offen sc1
        L_stored:
        """)
        if self.opt("pad", 0):
            a(f"""
            L_pad:
            s_memrealtime s[98:99]
            s_waitcnt lgkmcnt(0)
            s_sub_u32 s98, s98, s96
            s_cmp_lt_u32 s98, {self.opt("pad", 0)}
            s_cbranch_scc1 L_pad
            """)
        if self.stamps:
            a.label("L_diag_end")
            a("s_waitcnt vmcnt(0)")
            self.stamp("end")
            a(f"""
            s_lshl_b32 s{sA}, s{sT}, 4
            s_add_u32 s{sA}, s{sA}, s{sW}
            s_lshl_b32 s{sA}, s{sA}, 8
            s_add_u32 s{sA}, s{sA}, {W_STAMP}
            v_lshlrev_b32 v{TM}, 2, v{LANE}
            buffer_store_dword v{STAMPV}, v{TM}, {sr(sWS, 4)}, s{sA} offen
            """)
        a.label("L_end")
        a("s_endpgm")
        a.reset_hist()
        a(f"""
        L_gen1:
        s_mov_b32 s{sGEN}, 1
        s_mov_b32 s{sI}, 0
        s_mov_b32 s{sNE}, 0
        s_branch L_gen1_back
        L_clear:
        v_mov_b64 {vr(XF, 2)}, 0
        v_mov_b64 {vr(XF + 2, 2)}, 0
        v_add_u32 v{XF + 4}, {AB - PS}, v{STR}
        """)
        self.zero_agg(XF + 4, XF)
        a(f"""
        s_cmp_eq_u32 s{sMODE}, 2
        s_cbranch_scc0 L_clear2
        v_add_u32 v{XF + 4}, {(AF2 - AB) & 0xffffffff}, v{XF + 4}
        """)
        self.zero_agg(XF + 4, XF)
        a(f"""
        L_clear2:
        s_waitcnt lgkmcnt(0)
        s_barrier
        s_branch L_r_done
        L_generic:
        s_waitcnt vmcnt(0) lgkmcnt(0)
        s_barrier
        s_mov_b32 s{sMODE}, 2
        v_mov_b64 {vr(XF, 2)}, 0
        v_mov_b64 {vr(XF + 2, 2)}, 0
        v_add_u32 v{XF + 4}, {AB - PS}, v{STR}
        """)
        self.zero_agg(XF + 4, XF)
        a(f"""
        s_cmp_eq_u32 s{sMODE}, 2
        s_cbranch_scc0 L_gen2
        v_add_u32 v{XF + 4}, {(AF2 - AB) & 0xffffffff}, v{XF + 4}
        """)
        self.zero_agg(XF + 4, XF)
        a(f"""
        L_gen2:
        v_add_u32 v{CNA}, {CNTN}, v{L4}
        v_mov_b32 v{TZ}, 0
        ds_write_b32 v{CNA}, v{TZ}
        s_waitcnt lgkmcnt(0)
        s_barrier
        L_round:
        """)
        self.slot_consts()
        self.lane_consts()
        self.rec_issue(SCR2)
        a("s_waitcnt vmcnt(0)")
        self.clean(SCR2)
        self.count(SCR2)
        a("s_waitcnt lgkmcnt(0)\ns_barrier")
        self.lists(SCR2, "L_narrow", first=False)
        a("s_waitcnt lgkmcnt(0)\ns_barrier")
        self.setup(SCR2.tmp)
        a(f"""
        s_waitcnt lgkmcnt(0)
        """)
        for k in range(4):
            a(f"v_mov_b32 v{IA}, v{IX0 + k}")
            self.gather(k)
        a(f"""
        v_mov_b32 v{IA}, v{IX0 + 4}
        s_branch L_r_done
        L_narrow:
        s_waitcnt lgkmcnt(0)
        s_barrier
        v_add_u32 v{CNA}, {CNTN}, v{L4}
        v_mov_b32 v{TZ}, 0
        ds_write_b32 v{CNA}, v{TZ}
        s_mov_b32 s{sNP}, 1
        s_waitcnt lgkmcnt(0)
        s_barrier
        s_branch L_round
        L_empty:
        v_add_u32 v{CNA}, {CNTN}, v{L4}
        v_mov_b32 v{TZ}, 0
        ds_write_b32 v{CNA}, v{TZ}
        """)
        self.u2_loads()
        a(f"""
        s_branch L_after
        L_slow_next:
        s_cmp_eq_u32 s{sMODE}, 1
        s_cbranch_scc1 L_final
        s_waitcnt lgkmcnt(0)
        s_add_u32 s{sP0}, s{sP0}, s{sNP}
        s_mov_b32 s{sNP}, {NPASS}
        s_max_u32 s{sA}, s{sMAXC}, {4 * NPASS}
        s_lshl_b32 s{sB}, s{sP0}, 2
        s_cmp_lt_u32 s{sB}, s{sA}
        s_cbranch_scc1 L_round
        L_convert:
        """)
        self.lane_consts()
        for i in range(3):
            a(f"s_add_u32 s{sC}, s{sW}, {16 * i}\ns_min_u32 s{sC}, s{sC}, 39\ns_lshl_b32 s{sC}, s{sC}, 9")
            self.f32_row(sC, sD)
            a(f"""
            v_add_u32 v{TM}, s{sD}, v{L4}
            ds_read2st64_b32 {vr(56 + 4 * i, 2)}, v{TM} offset0:0 offset1:1
            ds_read2st64_b32 {vr(58 + 4 * i, 2)}, v{TM} offset0:2 offset1:3
            s_bfe_u32 s{sD}, s{sC}, 0x40009
            s_lshl_b32 s{sD}, s{sD}, 4
            s_or_b32 s{sD}, s{sD}, s{sC}
            v_xor_b32 v{68 + i}, s{sD}, v{L8}
            """)
        a("s_waitcnt lgkmcnt(0)\ns_barrier")
        for i in range(3):
            a(f"""
            v_cvt_pk_bf16_f32 v{56 + 4 * i}, v{56 + 4 * i}, v{57 + 4 * i}
            v_cvt_pk_bf16_f32 v{57 + 4 * i}, v{58 + 4 * i}, v{59 + 4 * i}
            ds_write_b64 v{68 + i}, {vr(56 + 4 * i, 2)}
            """)
        a("s_waitcnt lgkmcnt(0)\ns_barrier")
        for n in range(NB):
            rd(n)
        a(f"""
        s_branch L_final
        L_redo:
        s_waitcnt lgkmcnt(0)
        s_barrier
        s_mov_b32 s{sMODE}, 1
        """)
        self.side_fill(XF, XF + 2)
        a(f"""
        s_branch L_round
        L_enter_x:
        s_cmp_eq_u32 s{sMODE}, 2
        s_cbranch_scc0 L_loop_x
        """)
        self.f32_row(sAG0, sD)
        a(f"v_add_u32 v{AG}, s{sD}, v{L4}")
        self.main_loop(True, "L_after")
        a.label("L_code_end")

    def text(self):
        hdr = f"""; Fused MPNN edge-MLP kernel, one workgroup (16 waves) per tile of 40 nodes.
; @launch grid=({NT},1,1) block=(1024,1,1) lds={LDS_TOTAL}
.amdgcn_target "amdgcn-amd-amdhsa--gfx950"
.text
.globl {NAME}_kernel
.p2align 8
.type {NAME}_kernel,@function
{NAME}_kernel:
"""
        ftr = f""".section .rodata,"a"
.p2align 6
.amdhsa_kernel {NAME}_kernel
  .amdhsa_next_free_vgpr 128
  .amdhsa_next_free_sgpr {102 if self.stamps or self.opt('pad', 0) or any(o.startswith('padat=') for o in self.opts) else 92}
  .amdhsa_accum_offset 128
  .amdhsa_group_segment_fixed_size 0
  .amdhsa_kernarg_size 72
  .amdhsa_user_sgpr_count 2
  .amdhsa_user_sgpr_kernarg_segment_ptr 1
  .amdhsa_system_sgpr_workgroup_id_x 1
.end_amdhsa_kernel
"""
        return hdr + self.a.text() + ftr


if __name__ == "__main__":
    out = [x for x in sys.argv[1:] if not x.startswith("--")]
    g = Gen(opts=[x[2:] for x in sys.argv[1:] if x.startswith("--")])
    g.build()
    txt = g.text()
    if g.stamps:
        txt = "; stamps: " + ",".join(g.names) + "\n" + txt
    open(out[0] if out else "cdna_kernels/%s.s" % NAME, "w").write(txt)
    print("nops inserted:", g.a.nops, "lines:", len(g.a.lines), "stamps:", g.nstamp)
```
